```python
import torch

def _softmax(x, axis=-1):
    return torch.softmax(x, dim=axis)

def _gelu(x):
    return torch.nn.functional.gelu(x, approximate='tanh')

def _silu(x):
    return torch.nn.functional.silu(x)

def _sigmoid(x):
    return torch.sigmoid(x)

def _layernorm(x, axis=-1, eps=1e-05):
    m = x.mean(dim=axis, keepdim=True)
    v = x.var(dim=axis, keepdim=True, unbiased=False)
    return (x - m) / torch.sqrt(v + eps)

def _scatter_add(tgt, idx, src, axis=0):
    return tgt.clone().index_add_(axis, idx, src)

def _segment_sum(src, seg, n):
    out = torch.zeros((n,) + src.shape[1:], dtype=src.dtype)
    return out.index_add_(0, seg, src)

def _pad(x, pw):
    flat = tuple((v for pair in reversed(pw) for v in pair))
    return torch.nn.functional.pad(x, flat)
kernel_name = 'parallel_sum__sliding_local_dilated__mixer_gmlp__prompt'

def setup_inputs():

    _w = lambda a: (lambda t: t.to(torch.bfloat16) if t.is_floating_point() else t)(torch.as_tensor(a))

    def _A_setup():
        B, S, D = (1, 2048, 576)
        return {'x': _w((lambda *s: torch.randn(*s, dtype=torch.bfloat16) * 0.05)(B, S, D)), 'wqkv': _w((lambda *s: torch.randn(*s, dtype=torch.bfloat16) * 0.2)(D, 3 * D)), 'wo': _w((lambda *s: torch.randn(*s, dtype=torch.bfloat16) * 0.1)(D, D))}
    _A_in = _A_setup()

    def _B_setup():
        B, S, D, F = (1, 2048, 576, 4608)
        Fh = F // 2
        return {'x': _w((lambda *s: torch.randn(*s, dtype=torch.bfloat16) * 0.05)(B, S, D)), 'w_in': _w((lambda *s: torch.randn(*s, dtype=torch.bfloat16) * 0.8)(D, 2 * Fh)), 'w_sp': _w(0.01 * (lambda *s: torch.randn(*s, dtype=torch.bfloat16) * 0.8)(S, S)), 'b_sp': _w(1.0 + 0.01 * (lambda *s: torch.randn(*s, dtype=torch.bfloat16) * 0.05)(S)), 'w_out': _w((lambda *s: torch.randn(*s, dtype=torch.bfloat16) * 0.05)(Fh, D))}
    _B_in = _B_setup()
    return {'A_x': _A_in['x'], 'A_wqkv': _A_in['wqkv'], 'A_wo': _A_in['wo'], 'B_x': _B_in['x'], 'B_w_in': _B_in['w_in'], 'B_w_sp': _B_in['w_sp'], 'B_b_sp': _B_in['b_sp'], 'B_w_out': _B_in['w_out']}

def reference(A_x, A_wqkv, A_wo, B_x, B_w_in, B_w_sp, B_b_sp, B_w_out):

    def _A_ref(x, wqkv, wo):
        B, S, D = x.shape
        H = 32
        Dh = D // H
        W, dil = (8, 2)
        qkv = (lambda x, *d: x.permute(*d))((x @ wqkv).reshape(B, S, 3, H, Dh), 2, 0, 3, 1, 4)
        q, k, v = (qkv[0], qkv[1], qkv[2])
        scale = Dh ** (-0.5)
        pos = torch.arange(S)
        off = torch.arange(W) * dil
        idx = pos[:, None] - off[None, :]
        mask = idx >= 0
        idx_c = torch.where(mask, idx, 0).reshape(-1)
        kg = k[:, :, idx_c, :].reshape(B, H, S, W, Dh)
        vg = v[:, :, idx_c, :].reshape(B, H, S, W, Dh)
        logits = torch.einsum('bhsd,bhswd->bhsw', q, kg) * scale
        logits = torch.where(mask[None, None, :, :], logits, -1000000000.0)
        attn = _softmax(logits, axis=-1)
        o = torch.einsum('bhsw,bhswd->bhsd', attn, vg)
        return (lambda x, *d: x.permute(*d))(o, 0, 2, 1, 3).reshape(B, S, D) @ wo

    def _B_ref(x, w_in, w_sp, b_sp, w_out):
        B, S, D = x.shape
        F = w_in.shape[-1]
        Fh = F // 2
        z = _gelu(torch.einsum('bsd,df->bsf', x, w_in))
        z1 = z[..., :Fh].clone()
        z2 = _layernorm(z[..., Fh:], axis=-1)
        g = torch.einsum('ts,bsf->btf', w_sp, z2) + b_sp[None, :, None]
        return torch.einsum('bsf,fd->bsd', z1 * g, w_out)
    x = A_x
    xn = _layernorm(x, axis=-1)
    return x + _A_ref(xn, A_wqkv, A_wo) + _B_ref(xn, B_w_in, B_w_sp, B_b_sp, B_w_out)
```

```python
import re

TRANS = ("v_exp_f32", "v_log_f32", "v_rcp_f32", "v_rsq_f32", "v_sqrt_f32", "v_sin_f32", "v_cos_f32", "v_rcp_iflag_f32")

def _regs(tok):
    tok = tok.strip()
    tok = re.sub(r"^(-|abs\(|neg\()+", "", tok).rstrip(")")
    m = re.fullmatch(r"([vsa])(\d+)", tok)
    if m: return {(m.group(1), int(m.group(2)))}
    m = re.fullmatch(r"([vsa])\[(\d+):(\d+)\]", tok)
    if m: return {(m.group(1), i) for i in range(int(m.group(2)), int(m.group(3)) + 1)}
    if tok in ("vcc", "vcc_lo", "vcc_hi"): return {("vcc", 0)}
    if tok in ("exec", "exec_lo", "exec_hi"): return {("exec", 0)}
    if tok == "m0": return {("m0", 0)}
    return set()

def _split_ops(s):
    out, depth, cur = [], 0, ""
    for ch in s:
        if ch in "[(": depth += 1
        if ch in "])": depth -= 1
        if ch == "," and depth == 0:
            out.append(cur); cur = ""
        else: cur += ch
    if cur.strip(): out.append(cur)
    return [o.strip() for o in out]

class Ins:
    def __init__(self, text):
        self.text = text
        t = text.split(";")[0].strip()
        parts = t.split(None, 1)
        self.op = parts[0]
        rest = parts[1] if len(parts) > 1 else ""
        ops = _split_ops(rest)
        mods = ""
        if ops:
            last = ops[-1].split(None, 1)
            ops[-1] = last[0]
            mods = last[1] if len(last) > 1 else ""
        self.ops, self.mods = ops, mods
        op = self.op
        self.is_mfma = op.startswith("v_mfma")
        self.is_valu = op.startswith("v_") and not self.is_mfma
        self.is_trans = any(op.startswith(x) for x in TRANS)
        self.is_vmem = op.startswith(("buffer_", "global_", "flat_"))
        self.is_ds = op.startswith("ds_")
        self.is_salu = op.startswith("s_")
        self.is_dpp = ("row_" in mods or "quad_perm" in mods or "wave_" in mods or op.endswith("_dpp"))
        self.is_perml = op.startswith("v_permlane")
        self.is_rdlane = op.startswith(("v_readfirstlane", "v_readlane"))
        self.lds_dma = self.is_vmem and (" lds" in (" " + mods) or "load_lds" in op)
        R = [_regs(o) for o in ops]
        self.dst, self.src = set(), set()
        U = lambda l: set().union(*l) if l else set()
        if self.is_mfma:
            self.dst = R[0]; self.srcA = R[1]; self.srcB = R[2]; self.srcC = R[3]; self.src = U(R[1:])
            self.passes = 8 if "32x32" in op else 4
        elif self.is_valu:
            if self.is_perml and "swap" in op:
                self.dst = R[0] | R[1]; self.src = R[0] | R[1]
            elif re.match(r"v_(add|sub|subrev|addc|subb|subbrev)_co", op) or op.startswith(("v_div_scale", "v_mad_u64")):
                self.dst = R[0] | R[1]; self.src = U(R[2:])
            else:
                self.dst = R[0]; self.src = U(R[1:])
                if op.startswith(("v_fmac", "v_dot2c", "v_mac", "v_pk_fmac")) or self.is_dpp: self.src |= R[0]
                if op.startswith("v_cndmask") and len(ops) == 3: self.src |= {("vcc", 0)}
        elif self.is_vmem:
            if "store" in op or "atomic" in op:
                self.src = U(R)
                self.store_data = R[0] if op.startswith("buffer_") else R[1]
                self.wide = op.endswith(("x3", "x4"))
            elif self.lds_dma:
                self.src = U(R) | {("m0", 0)}
            else:
                self.dst = R[0]; self.src = U(R[1:])
        elif self.is_ds:
            if op.startswith(("ds_read", "ds_bpermute", "ds_permute", "ds_swizzle")) or "_rtn" in op:
                self.dst = R[0]; self.src = U(R[1:])
            else: self.src = U(R)
        elif self.is_salu:
            if op.startswith(("s_cmp", "s_cbranch", "s_branch", "s_waitcnt", "s_barrier", "s_nop", "s_endpgm", "s_setprio", "s_sleep")):
                self.src = U(R)
            else:
                self.dst = R[0] if R else set(); self.src = U(R[1:])
                if "saveexec" in op: self.dst = self.dst | {("exec", 0)}
        self.states = 1
        if op == "s_nop": self.states = int(ops[0], 0) + 1

def need(p, c):
    n = 0
    vd = {r for r in p.dst if r[0] in "va"}
    sd = {r for r in p.dst if r[0] in ("s", "vcc")}
    if p.is_valu:
        if c.is_mfma and vd & c.src: n = max(n, 2)
        if c.is_valu:
            if c.is_dpp and vd & c.src: n = max(n, 2)
            if c.is_perml and vd & c.src: n = max(n, 2)
            if c.is_rdlane and vd & c.src: n = max(n, 1)
            if sd & c.src: n = max(n, 4 if (c.op.startswith(("v_readlane", "v_writelane"))) else 2)
            if p.is_trans and vd & c.src: n = max(n, 1)
            if ("exec", 0) in p.dst: n = max(n, 5 if c.is_dpp else 4)
        if (c.is_vmem or c.is_ds) and p.is_trans and vd & c.src: n = max(n, 1)
        if c.is_vmem and sd & c.src: n = max(n, 5)
        if c.is_salu and sd & c.src and p.is_rdlane: n = max(n, 1)
        if c.is_mfma and ("exec", 0) in p.dst: n = max(n, 4)
    if p.is_valu and p.op.startswith("v_dot") and (c.is_valu or c.is_vmem or c.is_ds or c.is_mfma):
        if c.op != p.op:
            if vd & (c.src | c.dst): n = max(n, 3)
        else:
            ab = set().union(*[_regs(o) for o in c.ops[1:3]])
            if vd & ab: n = max(n, 3)
    if p.is_mfma:
        big = 12 if p.passes == 8 else 8
        if c.is_mfma:
            if p.dst & (c.srcA | c.srcB): n = max(n, big)
            if p.dst & c.srcC and not (p.dst == c.srcC and p.passes == c.passes): n = max(n, big - 2)
        else:
            if p.dst & (c.src | c.dst): n = max(n, big)
            if c.is_valu and p.srcC & c.dst: n = max(n, 7 if p.passes == 8 else 3)
    if p.is_salu and ("m0", 0) in p.dst and c.lds_dma: n = max(n, 1)
    if p.is_vmem and getattr(p, "wide", False) and (p.store_data & c.dst):
        n = max(n, 2)
    return n

MAXD = 14

class Kern:
    def __init__(self, name):
        self.name = name
        self.items = []
        self.nlab = 0
    def __call__(self, text):
        for ln in text.strip().split("\n"):
            ln = ln.strip()
            if not ln: continue
            if ln.startswith(";"): self.items.append(("c", ln))
            elif ln.endswith(":"): self.items.append(("l", ln[:-1]))
            else: self.items.append(("i", ln))
    def lab(self, base="L"):
        self.nlab += 1
        return f"{self.name}_{base}{self.nlab}"
    def label(self, l): self.items.append(("l", l))
    def hazard_pass(self):
        out = []
        hist = []
        def req(hist, c):
            dist = 0; add = 0
            for p in reversed(hist):
                n = need(p, c)
                if n > dist: add = max(add, n - dist)
                dist += p.states
                if dist >= MAXD: break
            return add
        for kind, t in self.items:
            if kind != "i":
                out.append((kind, t)); continue
            c = Ins(t)
            add = req(hist, c)
            if add > 0:
                nop = Ins(f"s_nop {add-1}")
                out.append(("i", nop.text + " ; auto")); hist.append(nop)
            out.append(("i", t)); hist.append(c)
            if c.op in ("s_branch", "s_endpgm"): hist = []
            hist = hist[-MAXD:]
        labpos = {t: k for k, (kind, t) in enumerate(out) if kind == "l"}
        for k, (kind, t) in enumerate(out):
            if kind != "i": continue
            c = Ins(t)
            if c.op.startswith(("s_cbranch", "s_branch")):
                tgt = c.ops[0]
                if tgt not in labpos: raise RuntimeError(f"unknown label {tgt}")
                h = []
                j = k
                while j >= 0 and len(h) < MAXD:
                    if out[j][0] == "i":
                        ii = Ins(out[j][1])
                        if j != k and ii.op in ("s_branch", "s_endpgm"): break
                        h.insert(0, ii)
                    j -= 1
                j = labpos[tgt]; cnt = 0
                while j < len(out) and cnt < MAXD:
                    if out[j][0] == "i":
                        ci = Ins(out[j][1])
                        a = req(h, ci)
                        if a > 0:
                            raise RuntimeError(f"hazard across branch '{t}' -> '{out[j][1]}' needs {a} more")
                        h.append(ci); cnt += ci.states
                        if ci.op in ("s_branch", "s_endpgm"): break
                    j += 1
        self.items = out
    def text(self, vgpr, sgpr=102, accum=None):
        self.hazard_pass()
        s = [f".globl {self.name}", ".p2align 8", f".type {self.name},@function", f"{self.name}:"]
        for kind, t in self.items:
            if kind == "l": s.append(f"{t}:")
            else: s.append("    " + t)
        body = "\n".join(s) + "\n"
        if accum is None: accum = (vgpr + 3) // 4 * 4
        kd = f""".p2align 6
.amdhsa_kernel {self.name}
  .amdhsa_next_free_vgpr {vgpr}
  .amdhsa_next_free_sgpr {sgpr}
  .amdhsa_accum_offset {accum}
  .amdhsa_group_segment_fixed_size 0
  .amdhsa_kernarg_size 88
  .amdhsa_user_sgpr_count 2
  .amdhsa_user_sgpr_kernarg_segment_ptr 1
  .amdhsa_system_sgpr_workgroup_id_x 1
  .amdhsa_float_denorm_mode_32 3
.end_amdhsa_kernel
"""
        return body, kd

def vr(a, n=1): return f"v{a}" if n == 1 else f"v[{a}:{a+n-1}]"
def sr(a, n=1): return f"s{a}" if n == 1 else f"s[{a}:{a+n-1}]"

def assemble_file(header, kernels):
    out = header
    for k, vg, grid, block, lds in kernels:
        out += f"; @launch kernel={k.name} grid=({grid},1,1) block=({block},1,1) lds={lds}\n"
    out += '.amdgcn_target "amdgcn-amd-amdhsa--gfx950"\n.text\n'
    kds = ""
    done = set()
    for k, vg, grid, block, lds in kernels:
        if k.name in done: continue
        done.add(k.name)
        b, kd = k.text(vg)
        out += b
        kds += kd
    out += '.section .rodata,"a"\n' + kds
    return out
```

```python
import sys, math
from asmlib import *

XN_OFF   = 0x0000000; XN_SZ  = 9 * 128 * 2048
Z2T_OFF  = 0x0400000; Z2T_SZ = 32 * 144 * 2048
WSP_OFF  = 0x1000000; WSP_SZ = 32 * 128 * 2048
Z1P_OFF  = 0x1900000; Z1P_SZ = 128 * 16 * 4608
A3_OFF   = 0x2300000; A3_SZ  = 45 * 128 * 2048
W3_OFF   = 0x3000000; W3_SZ  = 45 * 8 * 9216
ST_OFF   = 0x3400000; ST_SZ  = 2048 * 8
CT_OFF   = 0x3410000; CT_SZ  = 4 * 2048 * 4
STAMP_OFF = 0x3800000

KA = dict(x=0, wqkv=8, wo=16, bx=24, w_in=32, w_sp=40, b_sp=48, w_out=56, out=64, dbg=72, ws=80)
import struct
def f2u(f): return struct.unpack("<I", struct.pack("<f", f))[0]
GC0 = -2.0 * math.sqrt(2.0 / math.pi) * math.log2(math.e)
GC1 = GC0 * 0.044715

def srd(k, d, base, off, size):
    if off:
        k(f"s_add_u32 s{d}, s{base}, {off:#x}")
        k(f"s_addc_u32 s{d+1}, s{base+1}, 0")
    else:
        k(f"s_mov_b32 s{d}, s{base}")
        k(f"s_mov_b32 s{d+1}, s{base+1}")
    k(f"s_mov_b32 s{d+2}, {size:#x}")
    k(f"s_mov_b32 s{d+3}, 0x20000")

class Stamps:
    def __init__(self, k, on, kidx=0): self.k, self.on, self.kidx = k, on, kidx
    def init(self, wsbase=4, widx=33):
        if not self.on: return
        k = self.k
        srd(k, 96, wsbase, STAMP_OFF + self.kidx * 0x100000, 1 << 20)
        k(f"s_lshl_b32 s95, s2, 4")
        k(f"s_add_u32 s95, s95, s{widx}")
        k(f"s_lshl_b32 s95, s95, 8")
    def __call__(self, v=254):
        if not self.on: return
        k = self.k
        k("s_memtime s[90:91]")
        k("s_memrealtime s[92:93]")
        k("s_waitcnt lgkmcnt(0)")
        k(f"v_mov_b32 v{v}, s90")
        k(f"v_mov_b32 v{v+1}, s92")
        k(f"v_mov_b32 v{v-1}, 0")
        k(f"buffer_store_dwordx2 v[{v}:{v+1}], v{v-1}, s[96:99], s95 offen")
        k("s_add_u32 s95, s95, 8")

def interleave(mf, other, start=0, step=1):
    out = []; oi = 0
    for n, m in enumerate(mf):
        out.append(m)
        if n >= start and (n - start) % step == 0 and oi < len(other):
            out.append(other[oi]); oi += 1
    out += other[oi:]
    return out

def preamble(k, nblocks, Lend, loads):
    k(f"s_cmp_ge_u32 s2, {nblocks}")
    k(f"s_cbranch_scc1 {Lend}")
    for reg, name in loads: k(f"s_load_dwordx2 s[{reg}:{reg+1}], s[0:1], {KA[name]}")
    k("""
    v_lshrrev_b32 v1, 6, v0
    v_and_b32 v0, 63, v0
    v_readfirstlane_b32 s33, v1
    s_and_b32 s34, s2, 7
    s_lshr_b32 s35, s2, 3
    v_lshlrev_b32 v1, 4, v0
    """)

def adv_setup(k, R, SZ):
    k(f"s_mov_b32 s59, 0")
    k(f"s_mov_b32 s57, {SZ}")
    k(f"s_mov_b32 s56, {(-(R-1)*SZ) & 0xffffffff:#x}")
def adv_ins(R, vregs):
    o = ["s_add_u32 s59, s59, 1", f"s_cmp_eq_u32 s59, {R}", "s_cselect_b32 s59, 0, s59", "s_cselect_b32 s55, s56, s57"]
    o += [f"v_add_u32 v{v}, s55, v{v}" for v in vregs]
    return o

def consumer_loop(k, S, nsub, reads, mfmas, adv, final_barrier, step=1, st=None):
    Ltop, Lex, Lent = k.lab("top"), k.lab("ex"), k.lab("ent")
    cnt = ["s_sub_u32 s58, s58, 1", "s_cmp_lg_u32 s58, 0"]
    if nsub == 1:
        n = S - 1
        k(f"s_mov_b32 s58, {(n+1)//2}")
        k("s_barrier")
        if st: st()
        for r in reads(0, 0) + adv: k(r)
        k("s_waitcnt lgkmcnt(0)")
        k.label(Ltop)
        k("s_barrier")
        for x in interleave(mfmas(0), reads(0, 1) + adv + (cnt if n & 1 else []), step=step): k(x)
        k("s_waitcnt lgkmcnt(0)")
        if n & 1: k(f"s_cbranch_scc0 {Lex}")
        k("s_barrier")
        for x in interleave(mfmas(1), reads(0, 0) + adv + ([] if n & 1 else cnt), step=step): k(x)
        k("s_waitcnt lgkmcnt(0)")
        if n & 1: k(f"s_branch {Ltop}")
        else: k(f"s_cbranch_scc1 {Ltop}")
        k.label(Lex)
        last = (S - 1) & 1
    else:
        k(f"s_mov_b32 s58, {S}")
        k("s_barrier")
        if st: st()
        for r in reads(0, 0): k(r)
        k("s_waitcnt lgkmcnt(0)")
        k(f"s_branch {Lent}")
        k.label(Ltop)
        k("s_barrier")
        for x in interleave(mfmas(1), reads(0, 0), step=step): k(x)
        k("s_waitcnt lgkmcnt(0)")
        k.label(Lent)
        for x in interleave(mfmas(0), reads(1, 1) + adv + cnt, step=step): k(x)
        k("s_waitcnt lgkmcnt(0)")
        k(f"s_cbranch_scc1 {Ltop}")
        last = 1
    if final_barrier: k("s_barrier")
    return last

def producer_loop(k, S, R, issue, nper, extra_after_last=None, nextra=0, after_b0=None):
    Lp0, Lp1 = k.lab("p0"), k.lab("p1")
    k(f"s_mov_b32 s58, {R}")
    k.label(Lp0)
    issue()
    k("s_sub_u32 s58, s58, 1")
    k("s_cmp_lg_u32 s58, 0")
    k(f"s_cbranch_scc1 {Lp0}")
    k(f"s_waitcnt vmcnt({(R-1)*nper})")
    k("s_barrier")
    if after_b0: after_b0()
    k(f"s_waitcnt vmcnt({(R-2)*nper})")
    k("s_barrier")
    k(f"s_mov_b32 s58, {S-R}")
    k.label(Lp1)
    issue()
    k("s_sub_u32 s58, s58, 1")
    k("s_cmp_lg_u32 s58, 0")
    k(f"s_waitcnt vmcnt({(R-2)*nper})")
    k("s_barrier")
    k(f"s_cbranch_scc1 {Lp1}")
    if extra_after_last: extra_after_last()
    for b in range(S - R + 2, S):
        k(f"s_waitcnt vmcnt({(S-1-b)*nper + nextra})")
        k("s_barrier")

def slot_adv_prod(k, R, SZ, sreg):
    k(f"s_add_u32 s{sreg}, s{sreg}, {SZ}")
    k(f"s_cmp_eq_u32 s{sreg}, {R*SZ}")
    k(f"s_cselect_b32 s{sreg}, 0, s{sreg}")

def gelu_consts(k, c):
    k(f"v_mov_b32 v{c}, {f2u(GC0):#x}");   k(f"v_mov_b32 v{c+1}, {f2u(GC0):#x}")
    k(f"v_mov_b32 v{c+2}, {f2u(GC1):#x}"); k(f"v_mov_b32 v{c+3}, {f2u(GC1):#x}")
    k(f"v_mov_b32 v{c+4}, 1.0");           k(f"v_mov_b32 v{c+5}, 1.0")
def gelu(k, pairs, t0, c):
    T = [t0 + 2 * i for i in range(len(pairs))]
    P = list(zip(pairs, T))
    for a, t in P: k(f"v_pk_mul_f32 {vr(t,2)}, {vr(a,2)}, {vr(a,2)}")
    for a, t in P: k(f"v_pk_fma_f32 {vr(t,2)}, {vr(t,2)}, {vr(c+2,2)}, {vr(c,2)}")
    for a, t in P: k(f"v_pk_mul_f32 {vr(t,2)}, {vr(t,2)}, {vr(a,2)}")
    for a, t in P: k(f"v_exp_f32 v{t}, v{t}"); k(f"v_exp_f32 v{t+1}, v{t+1}")
    for a, t in P: k(f"v_pk_add_f32 {vr(t,2)}, {vr(t,2)}, {vr(c+4,2)}")
    for a, t in P: k(f"v_rcp_f32 v{t}, v{t}"); k(f"v_rcp_f32 v{t+1}, v{t+1}")
    for a, t in P: k(f"v_pk_mul_f32 {vr(a,2)}, {vr(a,2)}, {vr(t,2)}")

def rnd_bf16(k, d, s):
    k(f"v_cvt_pk_bf16_f32 v{d}, v{s}, v{s}")
    k(f"v_lshlrev_b32 v{d}, 16, v{d}")

def w144_voffs(k, vbase, spw, pitch, tmp):
    for n in range(5):
        if n < 4:
            k(f"s_lshl_b32 s50, s{spw}, 8")
            k(f"s_add_u32 s50, s50, {n*64}")
        else:
            k(f"s_lshl_b32 s50, s{spw}, 5")
            k(f"s_add_u32 s50, s50, 1024")
        a, b, c = tmp, tmp + 1, tmp + 2
        k(f"""
        v_add_u32 v{a}, s50, v0
        v_mul_u32_u24 v{b}, 3641, v{a}
        v_lshrrev_b32 v{b}, 16, v{b}
        v_mul_u32_u24 v{c}, 18, v{b}
        v_sub_u32 v{a}, v{a}, v{c}              ; chunk
        v_lshlrev_b32 v{a}, 4, v{a}
        v_and_b32 v{c}, 4, v{b}
        v_lshlrev_b32 v{c}, 1, v{c}
        v_and_b32 v{vbase+n}, 8, v{b}
        v_lshrrev_b32 v{vbase+n}, 1, v{vbase+n}
        v_or_b32 v{c}, v{c}, v{vbase+n}
        v_and_b32 v{b}, 0x33, v{b}
        v_or_b32 v{b}, v{b}, v{c}               ; k row
        v_mul_u32_u24 v{b}, {pitch}, v{b}
        v_add_u32 v{vbase+n}, v{a}, v{b}
        """)

def tr_lane_base(k, d, pitch, tmp):
    a = tmp + 1
    k(f"""
    v_lshrrev_b32 v{d}, 5, v0
    v_lshlrev_b32 v{d}, 4, v{d}
    v_bfe_u32 v{tmp}, v0, 4, 1
    v_lshl_add_u32 v{d}, v{tmp}, 2, v{d}
    v_bfe_u32 v{a}, v0, 2, 2
    v_add_u32 v{d}, v{d}, v{a}
    v_mul_u32_u24 v{d}, {pitch}, v{d}
    v_and_b32 v{a}, 3, v0
    v_lshl_add_u32 v{d}, v{a}, 3, v{d}
    """)

def gen_prep(name):
    k = Kern(name)
    Lend, Lw3 = k.lab("end"), k.lab("w3")
    preamble(k, 128 + 45, Lend, [(4, "ws"), (6, "x"), (40, "wo"), (42, "w_out")])
    k("s_waitcnt lgkmcnt(0)")
    srd(k, 8, 6, 0, 2048 * 1152)
    srd(k, 12, 4, XN_OFF, XN_SZ)
    srd(k, 16, 4, ST_OFF, ST_SZ)
    srd(k, 20, 4, W3_OFF, W3_SZ)
    k(f"""
    s_cmp_ge_u32 s2, 128
    s_cbranch_scc1 {Lw3}
    v_and_b32 v2, 15, v0             ; row
    v_lshrrev_b32 v3, 4, v0          ; q
    s_mul_i32 s44, s2, {16*1152}
    s_lshl_b32 s45, s33, 7
    s_add_u32 s44, s44, s45
    v_mul_u32_u24 v4, 1152, v2
    v_lshl_add_u32 v4, v3, 4, v4
    buffer_load_dwordx4 v[8:11], v4, s[8:11], s44 offen
    buffer_load_dwordx4 v[12:15], v4, s[8:11], s44 offen offset:64
    v_mul_u32_u24 v5, 144, v2
    s_lshl_b32 s45, s33, 4
    v_lshl_add_u32 v6, v3, 2, v5
    v_add_u32 v6, s45, v6
    s_waitcnt vmcnt(0)
    """)
    for i in range(8):
        k(f"v_lshlrev_b32 v{16+2*i}, 16, v{8+i}")
        k(f"v_and_b32 v{17+2*i}, 0xffff0000, v{8+i}")
    def tree(base, n, dst):
        k(f"v_pk_add_f32 v[32:33], {vr(base,2)}, {vr(base+2,2)}")
        for i in range(2, n // 2): k(f"v_pk_add_f32 v[32:33], v[32:33], {vr(base+2*i,2)}")
        k(f"v_add_f32 v{dst}, v32, v33")
    tree(16, 16, 34)
    k("ds_write_b32 v6, v34")
    k("s_waitcnt lgkmcnt(0)")
    k("s_barrier")
    for i in range(9): k(f"ds_read_b128 {vr(44+4*i,4)}, v5 offset:{i*16}")
    k("s_waitcnt lgkmcnt(0)")
    tree(44, 36, 34)
    k(f"v_mul_f32 v34, {f2u(1.0/576):#x}, v34")
    k("v_mov_b32 v35, v34")
    for i in range(8): k(f"v_pk_add_f32 {vr(80+2*i,2)}, {vr(16+2*i,2)}, v[34:35] neg_lo:[0,1] neg_hi:[0,1]")
    k("v_pk_mul_f32 v[32:33], v[80:81], v[80:81]")
    for i in range(1, 8): k(f"v_pk_fma_f32 v[32:33], {vr(80+2*i,2)}, {vr(80+2*i,2)}, v[32:33]")
    k("v_add_f32 v36, v32, v33")
    k("ds_write_b32 v6, v36 offset:2304")
    k("s_waitcnt lgkmcnt(0)")
    k("s_barrier")
    for i in range(9): k(f"ds_read_b128 {vr(44+4*i,4)}, v5 offset:{2304+i*16}")
    k("s_waitcnt lgkmcnt(0)")
    tree(44, 36, 36)
    k(f"v_mul_f32 v36, {f2u(1.0/576):#x}, v36")
    rnd_bf16(k, 36, 36)
    k(f"v_add_f32 v36, {f2u(1e-5):#x}, v36")
    rnd_bf16(k, 36, 36)
    k("v_sqrt_f32 v36, v36")
    rnd_bf16(k, 36, 36)
    k("v_rcp_f32 v36, v36")
    rnd_bf16(k, 34, 34)
    k("v_mov_b32 v35, v34")
    k("v_mov_b32 v37, v36")
    for i in range(8): k(f"v_pk_add_f32 {vr(16+2*i,2)}, {vr(16+2*i,2)}, v[34:35] neg_lo:[0,1] neg_hi:[0,1]")
    for i in range(8): k(f"v_cvt_pk_bf16_f32 v{8+i}, v{16+2*i}, v{17+2*i}")
    for i in range(8):
        k(f"v_lshlrev_b32 v{16+2*i}, 16, v{8+i}")
        k(f"v_and_b32 v{17+2*i}, 0xffff0000, v{8+i}")
    for i in range(8): k(f"v_pk_mul_f32 {vr(16+2*i,2)}, {vr(16+2*i,2)}, v[36:37]")
    for i in range(8): k(f"v_cvt_pk_bf16_f32 v{8+i}, v{16+2*i}, v{17+2*i}")
    k(f"""
    s_lshl_b32 s44, s33, 7
    s_add_u32 s44, s44, s2
    s_lshl_b32 s44, s44, 11
    buffer_store_dwordx4 v[8:11], v1, s[12:15], s44 offen
    buffer_store_dwordx4 v[12:15], v1, s[12:15], s44 offen offset:1024
    s_cmp_lg_u32 s33, 0
    s_cbranch_scc1 {Lend}
    s_lshl_b32 s46, s2, 7
    v_lshlrev_b32 v7, 2, v0
    v_mov_b32 v40, 0
    s_mov_b32 exec_hi, 0
    buffer_store_dword v40, v7, s[16:19], s46 offen
    s_endpgm
    """)
    k.label(Lw3)
    k(f"""
    s_sub_u32 s44, s2, 128           ; st
    s_cmp_lt_u32 s44, 9
    s_cselect_b32 s24, s40, s42
    s_cselect_b32 s25, s41, s43
    s_cselect_b32 s26, {576*1152}, -1
    s_min_u32 s26, s26, {2304*1152}
    s_mov_b32 s27, 0x20000
    """)
    k("s_cmp_lt_u32 s44, 9")
    k("s_cselect_b32 s45, 8, 4")
    for ks in range(2):
        Ln, Ld = k.lab("nat"), k.lab("dn")
        k(f"""
        s_lshl_b32 s50, s44, 1
        s_add_u32 s50, s50, {ks}         ; step
        s_cmp_lt_u32 s44, 9
        s_cbranch_scc1 {Ln}
        s_sub_u32 s50, s50, 18
        s_mul_i32 s51, s50, 57
        s_lshr_b32 s51, s51, 9           ; u = step'/9
        s_mul_i32 s52, s51, 9
        s_sub_u32 s52, s50, s52          ; v
        s_mul_i32 s51, s51, 288
        s_lshr_b32 s53, s52, 2
        s_mul_i32 s53, s53, 144
        s_and_b32 s54, s52, 3
        s_lshl_b32 s54, s54, 5
        s_add_u32 s53, s53, s54
        s_cmp_eq_u32 s52, 8
        s_cselect_b32 s53, 128, s53
        s_cselect_b32 s{48+ks}, 144, 16
        s_add_u32 s{46+ks}, s51, s53
        s_branch {Ld}
        {Ln}:
        s_lshl_b32 s{46+ks}, s50, 5
        s_mov_b32 s{48+ks}, 4
        {Ld}:
        """)
    k("s_lshl_b32 s50, s33, 13")
    k("s_lshl_b32 s51, s33, 9")
    k("s_mov_b32 s52, 58255")
    for n in range(8):
        k(f"""
        s_add_u32 s53, s51, {n*64}
        v_add_u32 v2, s53, v0
        v_mul_lo_u32 v3, s52, v2
        v_lshrrev_b32 v3, 22, v3         ; rho
        v_mul_u32_u24 v4, 72, v3
        v_sub_u32 v2, v2, v4             ; chunk
        v_cmp_lt_u32 vcc, 31, v3
        v_mov_b32 v4, s46
        v_mov_b32 v5, s47
        v_cndmask_b32 v4, v4, v5, vcc    ; base
        v_mov_b32 v5, s48
        v_mov_b32 v6, s49
        v_cndmask_b32 v5, v5, v6, vcc    ; D
        v_bfe_u32 v6, v3, 2, 1
        v_mad_u32_u24 v4, v6, v5, v4
        v_bfe_u32 v6, v3, 3, 2
        v_mul_lo_u32 v6, s45, v6
        v_and_b32 v3, 3, v3
        v_add3_u32 v4, v4, v6, v3
        v_mul_u32_u24 v4, 1152, v4
        v_lshl_add_u32 v4, v2, 4, v4
        s_add_u32 m0, s50, {n*1024}
        s_nop 0
        buffer_load_dwordx4 v4, s[24:27], 0 offen lds
        """)
    L8, Lgo = k.lab("w8"), k.lab("go")
    k(f"""
    v_lshrrev_b32 v2, 4, v0          ; g
    v_bfe_u32 v3, v0, 2, 2           ; r
    v_and_b32 v4, 3, v0              ; c4
    s_cmp_eq_u32 s33, 8
    s_cbranch_scc1 {L8}
    s_and_b32 s50, s33, 1
    s_lshl_b32 s50, s50, 2
    v_add_u32 v2, s50, v2
    s_lshr_b32 s50, s33, 1
    s_lshl_b32 s50, s50, 5
    v_lshlrev_b32 v4, 3, v4
    v_add_u32 v4, s50, v4
    s_branch {Lgo}
    {L8}:
    v_lshrrev_b32 v5, 1, v4
    v_lshl_add_u32 v2, v2, 1, v5     ; combo = 2g + (c4>>1)
    v_and_b32 v4, 1, v4
    v_lshlrev_b32 v4, 3, v4
    v_add_u32 v4, 128, v4
    {Lgo}:
    v_lshl_add_u32 v2, v2, 3, v3
    v_mul_u32_u24 v2, 1152, v2
    v_add_u32 v2, v2, v4
    s_mul_i32 s50, s44, {8*9216}
    s_lshl_b32 s51, s33, 10
    s_add_u32 s50, s50, s51
    s_waitcnt vmcnt(0)
    s_barrier
    """)
    for nt in range(8):
        k(f"ds_read_b64_tr_b16 {vr(8+nt*4,2)}, v2 offset:{nt*144}")
        k(f"ds_read_b64_tr_b16 {vr(10+nt*4,2)}, v2 offset:{nt*144+4608}")
    for nt in range(8):
        k(f"s_waitcnt lgkmcnt({14-2*nt})")
        k(f"buffer_store_dwordx4 {vr(8+nt*4,4)}, v1, s[20:23], s50 offen")
        k(f"s_add_u32 s50, s50, 9216")
    k.label(Lend)
    k("s_endpgm")
    return k

def ksplit_reduce(k, send, nq, smh2, skh, vl16, va, vb, region):
    k(f"""
    s_add_u32 s43, s{smh2}, s{skh}
    s_mul_i32 s43, s43, {nq*1024}
    s_xor_b32 s44, s{skh}, 1
    s_add_u32 s44, s44, s{smh2}
    s_mul_i32 s44, s44, {nq*1024}
    s_add_u32 s43, s43, {region}
    s_add_u32 s44, s44, {region}
    v_add_u32 v{va}, s43, v{vl16}
    v_add_u32 v{vb}, s44, v{vl16}
    """)
    for n in range(nq): k(f"ds_write_b128 v{va}, {vr(send+n*4,4)} offset:{n*1024}")
    k("s_waitcnt lgkmcnt(0)")
    k("s_barrier")

def gen_z2(name, stamps=False):
    k = Kern(name); st = Stamps(k, stamps, 1)
    S, R, SZ, BO = 9, 4, 34816, 16384
    Lend, Lprod = k.lab("end"), k.lab("prod")
    preamble(k, 256, Lend, [(4, "ws"), (6, "w_in")])
    k("""
    s_and_b32 s36, s34, 1
    s_lshl_b32 s36, s36, 3
    s_and_b32 s37, s35, 7
    s_add_u32 s36, s36, s37          ; mt
    s_lshr_b32 s37, s34, 1
    s_lshl_b32 s37, s37, 2
    s_lshr_b32 s38, s35, 3
    s_add_u32 s37, s37, s38          ; nt
    s_waitcnt lgkmcnt(0)
    """)
    srd(k, 8, 4, XN_OFF, XN_SZ)
    srd(k, 12, 6, 0, 576 * 9216)
    srd(k, 16, 4, Z2T_OFF, Z2T_SZ)
    srd(k, 20, 4, ST_OFF, ST_SZ)
    k(f"s_cmp_ge_u32 s33, 4\ns_cbranch_scc1 {Lprod}")
    st.init(); st()
    ACC, BUF = 104, [0, 52]
    VA01, VA23, VB, VL16, VLN = 248, 249, 250, 251, 252
    acc = lambda i, j: ACC + (i * 9 + j) * 4
    k(f"""
    s_and_b32 s40, s33, 1            ; mh
    s_lshr_b32 s41, s33, 1           ; kh
    v_mov_b32 v{VL16}, v1
    v_mov_b32 v{VLN}, v0
    s_lshl_b32 s42, s40, 13
    s_lshl_b32 s43, s41, 10
    s_add_u32 s42, s42, s43
    s_lshl_b32 s44, s41, 12
    s_add_u32 s45, s42, s44
    v_add_u32 v{VA01}, s45, v1
    s_xor_b32 s44, s44, 4096
    s_add_u32 s45, s42, s44
    v_add_u32 v{VA23}, s45, v1
    """)
    tr_lane_base(k, VB, 288, 2)
    k(f"s_mul_i32 s45, s41, {32*288}\ns_add_u32 s45, s45, {BO}\nv_add_u32 v{VB}, s45, v{VB}")
    for r in range(ACC, ACC + 144): k(f"v_mov_b32 v{r}, 0")
    adv_setup(k, R, SZ)
    def reads(sub, b):
        o = [f"ds_read_b128 {vr(BUF[b]+i*4,4)}, v{VA01 if i < 2 else VA23} offset:{(i&1)*2048}" for i in range(4)]
        for j in range(9):
            for hh in range(2):
                o.append(f"ds_read_b64_tr_b16 {vr(BUF[b]+16+j*4+hh*2,2)}, v{VB} offset:{hh*8*288+j*32}")
        return o
    def mfmas(b):
        return [f"v_mfma_f32_16x16x32_bf16 {vr(acc(i,j),4)}, {vr(BUF[b]+i*4,4)}, {vr(BUF[b]+16+j*4,4)}, {vr(acc(i,j),4)}"
                for j in range(9) for i in range(4)]
    last = consumer_loop(k, S, 1, reads, mfmas, adv_ins(R, [VA01, VA23, VB]), True, st=st)
    st()
    for m in mfmas(last): k(m)
    k("s_lshl_b32 s42, s40, 1")
    ksplit_reduce(k, acc(2, 0), 18, 42, 41, VL16, VA01, VA23, 0)
    for j in range(9):
        for e in range(2): k(f"ds_read_b128 {vr(acc(2+e,j),4)}, v{VA23} offset:{(e*9+j)*1024}")
    C, SM, T, O = 60, 68, 84, 92
    gelu_consts(k, C)
    for r in range(SM, SM + 16): k(f"v_mov_b32 v{r}, 0")
    k(f"""
    s_lshl_b32 s46, s36, 1
    s_add_u32 s46, s46, s40          ; g2 stage
    s_mul_i32 s46, s46, 144
    s_mul_i32 s47, s37, 9
    s_add_u32 s46, s46, s47
    s_lshl_b32 s46, s46, 11
    s_lshl_b32 s47, s41, 10
    s_add_u32 s46, s46, s47
    """)
    st()
    for j in range(9):
        k(f"s_waitcnt lgkmcnt({min(15, 16-2*j)})")
        for e in range(2):
            a, b = acc(e, j), acc(2 + e, j)
            k(f"v_pk_add_f32 {vr(a,2)}, {vr(a,2)}, {vr(b,2)}")
            k(f"v_pk_add_f32 {vr(a+2,2)}, {vr(a+2,2)}, {vr(b+2,2)}")
        gelu(k, [acc(0, j), acc(0, j) + 2, acc(1, j), acc(1, j) + 2], T, C)
        o = O + (j & 1) * 4
        for e in range(2):
            a = acc(e, j)
            k(f"v_cvt_pk_bf16_f32 v{o+2*e}, v{a}, v{a+1}")
            k(f"v_cvt_pk_bf16_f32 v{o+2*e+1}, v{a+2}, v{a+3}")
        k(f"buffer_store_dwordx4 {vr(o,4)}, v{VL16}, s[16:19], s46 offen")
        k("s_add_u32 s46, s46, 2048")
        for e in range(2):
            a = acc(e, j)
            for h in range(2):
                k(f"v_pk_add_f32 {vr(SM+4*e+2*h,2)}, {vr(SM+4*e+2*h,2)}, {vr(a+2*h,2)}")
                k(f"v_pk_fma_f32 {vr(SM+8+4*e+2*h,2)}, {vr(a+2*h,2)}, {vr(a+2*h,2)}, {vr(SM+8+4*e+2*h,2)}")
    for ror in (8, 4, 2, 1):
        for r in range(SM, SM + 16):
            k(f"v_add_f32_dpp v{r}, v{r}, v{r} row_ror:{ror} row_mask:0xf bank_mask:0xf")
    k("s_mov_b32 s48, 0x00010001\ns_mov_b32 s49, 0x00010001")
    val = lambda i: SM + (i & 1) * 8 + (i >> 3) * 4 + ((i >> 1) & 3)
    k(f"v_mov_b32 v{T}, v{val(0)}")
    for i in range(1, 16):
        k("s_lshl_b64 s[48:49], s[48:49], 1")
        k(f"v_cndmask_b32 v{T}, v{T}, v{val(i)}, s[48:49]")
    k(f"""
    v_bfe_u32 v{T+1}, v{VLN}, 3, 1
    v_lshlrev_b32 v{T+1}, 5, v{T+1}
    v_lshrrev_b32 v{T+2}, 4, v{VLN}
    v_lshl_add_u32 v{T+1}, v{T+2}, 3, v{T+1}
    v_and_b32 v{T+2}, 7, v{VLN}
    v_add_lshl_u32 v{T+1}, v{T+1}, v{T+2}, 2
    s_lshl_b32 s46, s36, 10
    s_lshl_b32 s47, s40, 9
    s_add_u32 s46, s46, s47
    s_lshl_b32 s47, s41, 8
    s_add_u32 s46, s46, s47
    buffer_atomic_add_f32 v{T}, v{T+1}, s[20:23], s46 offen
    """)
    if stamps:
        st(); k("s_waitcnt vmcnt(0)"); st()
    k("s_endpgm")
    k.label(Lprod)
    k(f"""
    s_sub_u32 s40, s33, 4            ; pw
    s_lshl_b32 s41, s40, 12
    s_lshl_b32 s42, s36, 14
    s_add_u32 s42, s42, s41          ; A goff
    s_mul_i32 s43, s37, 288
    s_add_u32 s43, s43, 4608
    s_lshl_b32 s45, s40, 9
    s_add_u32 s47, s41, {BO}
    s_add_u32 s48, s45, {BO+16384}
    s_mov_b32 s49, 0
    """)
    w144_voffs(k, 8, 40, 9216, 2)
    def issue():
        k("s_add_u32 m0, s41, s49")
        for n in range(4): k(f"buffer_load_dwordx4 v1, s[8:11], s42 offen offset:{n*1024} lds")
        k("s_add_u32 s50, s47, s49")
        for n in range(4):
            k(f"s_add_u32 m0, s50, {n*1024}")
            k(f"buffer_load_dwordx4 v{8+n}, s[12:15], s43 offen lds")
        k("s_add_u32 m0, s48, s49")
        k("s_mov_b32 exec_hi, 0")
        k("buffer_load_dwordx4 v12, s[12:15], s43 offen lds")
        k("s_mov_b32 exec_hi, -1")
        k(f"s_add_u32 s42, s42, {128*2048}")
        k(f"s_add_u32 s43, s43, {64*9216}")
        slot_adv_prod(k, R, SZ, 49)
    producer_loop(k, S, R, issue, 9)
    k.label(Lend)
    k("s_endpgm")
    return k

def gen_z1qkv(name, stamps=False):
    k = Kern(name); st = Stamps(k, stamps, 2)
    Lend, Lqkv, Lprod, Lqprod, Latt = k.lab("end"), k.lab("qkv"), k.lab("prod"), k.lab("qprod"), k.lab("att")
    preamble(k, 256, Lend, [(4, "ws"), (6, "w_in"), (64, "wqkv"), (66, "w_sp")])
    k("s_waitcnt lgkmcnt(0)")
    srd(k, 8, 4, XN_OFF, XN_SZ)
    srd(k, 12, 6, 0, 576 * 9216)
    srd(k, 16, 4, Z1P_OFF, Z1P_SZ)
    srd(k, 20, 4, ST_OFF, ST_SZ)
    srd(k, 24, 66, 0, 2048 * 4096)
    srd(k, 28, 4, WSP_OFF, WSP_SZ)
    srd(k, 68, 4, CT_OFF, CT_SZ)
    srd(k, 72, 64, 0, 576 * 3456)
    srd(k, 76, 4, A3_OFF, A3_SZ)
    st.init()
    k(f"s_cmp_ge_u32 s35, 16\ns_cbranch_scc1 {Lqkv}")
    S, R, SZ, BO = 9, 3, 51200, 32768
    k(f"""
    s_and_b32 s36, s34, 1
    s_lshl_b32 s36, s36, 2
    s_and_b32 s37, s35, 3
    s_add_u32 s36, s36, s37
    s_lshr_b32 s37, s34, 1
    s_lshl_b32 s37, s37, 2
    s_lshr_b32 s38, s35, 2
    s_add_u32 s37, s37, s38          ; nt
    s_cmp_ge_u32 s33, 4
    s_cbranch_scc1 {Lprod}
    """)
    st()
    ACC, BUF = 104, [0, 52]
    VA, VB, VL16, VL8 = 248, 249, 250, 251
    acc = lambda i, j: ACC + (i * 9 + j) * 4
    k(f"""
    v_mov_b32 v{VL16}, v1
    v_lshrrev_b32 v{VL8}, 1, v1
    s_lshl_b32 s42, s33, 13
    v_add_u32 v{VA}, s42, v1
    """)
    tr_lane_base(k, VB, 288, 2)
    k(f"v_add_u32 v{VB}, {BO}, v{VB}")
    for r in range(ACC, ACC + 144): k(f"v_mov_b32 v{r}, 0")
    adv_setup(k, R, SZ)
    def reads(sub, b):
        o = [f"ds_read_b128 {vr(BUF[b]+i*4,4)}, v{VA} offset:{i*2048+sub*1024}" for i in range(4)]
        for j in range(9):
            for hh in range(2):
                o.append(f"ds_read_b64_tr_b16 {vr(BUF[b]+16+j*4+hh*2,2)}, v{VB} offset:{sub*32*288+hh*8*288+j*32}")
        return o
    def mfmas(b):
        return [f"v_mfma_f32_16x16x32_bf16 {vr(acc(i,j),4)}, {vr(BUF[b]+16+j*4,4)}, {vr(BUF[b]+i*4,4)}, {vr(acc(i,j),4)}"
                for i in range(4) for j in range(9)]
    last = consumer_loop(k, S, 2, reads, mfmas, adv_ins(R, [VA, VB]), False, st=st)
    st()
    for m in mfmas(last): k(m)
    C, T, O = 0, 8, 16
    gelu_consts(k, C)
    k(f"""
    s_lshl_b32 s46, s36, 4
    s_lshl_b32 s47, s33, 2
    s_add_u32 s46, s46, s47          ; tfrag0
    s_lshl_b32 s46, s46, 4
    s_add_u32 s46, s46, s37
    s_mul_i32 s46, s46, 4608
    """)
    n = 0
    for i in range(4):
        for p in range(4):
            a, b = acc(i, 2 * p), acc(i, 2 * p + 1)
            gelu(k, [a, a + 2, b, b + 2], T, C)
            o = O + (n & 1) * 4; n += 1
            for x, q in enumerate([a, a + 2, b, b + 2]): k(f"v_cvt_pk_bf16_f32 v{o+x}, v{q}, v{q+1}")
            k(f"buffer_store_dwordx4 {vr(o,4)}, v{VL16}, s[16:19], s46 offen offset:{p*1024}")
        k(f"s_add_u32 s{48+i}, s46, 4096")
        if i < 3: k(f"s_add_u32 s46, s46, {16*4608}")
    for i in (0, 2):
        a, b = acc(i, 8), acc(i + 1, 8)
        gelu(k, [a, a + 2, b, b + 2], T, C)
        o = O + (n & 1) * 4; n += 1
        for x, q in enumerate([a, a + 2, b, b + 2]): k(f"v_cvt_pk_bf16_f32 v{o+x}, v{q}, v{q+1}")
        k(f"buffer_store_dwordx2 {vr(o,2)}, v{VL8}, s[16:19], s{48+i} offen")
        k(f"buffer_store_dwordx2 {vr(o+2,2)}, v{VL8}, s[16:19], s{49+i} offen")
    if stamps:
        st(); k("s_waitcnt vmcnt(0)"); st()
    k("s_endpgm")
    k.label(Lprod)
    k(f"""
    s_sub_u32 s40, s33, 4            ; pw
    v_lshlrev_b32 v2, 6, v0
    s_lshl_b32 s41, s40, 12          ; pw*512*8
    buffer_load_dwordx4 v[16:19], v2, s[20:23], s41 offen
    buffer_load_dwordx4 v[20:23], v2, s[20:23], s41 offen offset:16
    buffer_load_dwordx4 v[24:27], v2, s[20:23], s41 offen offset:32
    buffer_load_dwordx4 v[28:31], v2, s[20:23], s41 offen offset:48
    s_lshl_b32 s41, s40, 13          ; pw*8192
    s_lshl_b32 s42, s36, 15
    s_add_u32 s42, s42, s41          ; A goff
    s_mul_i32 s43, s37, 288          ; B goff
    s_lshl_b32 s45, s40, 9
    s_lshl_b32 s47, s40, 12
    s_add_u32 s47, s47, {BO}
    s_add_u32 s48, s45, {BO+16384}
    s_mov_b32 s49, 0
    """)
    w144_voffs(k, 8, 40, 9216, 2)
    def issue():
        k("s_add_u32 m0, s41, s49")
        for n in range(4): k(f"buffer_load_dwordx4 v1, s[8:11], s42 offen offset:{n*1024} lds")
        k("s_add_u32 m0, m0, 4096")
        k("s_add_u32 s50, s42, 4096")
        for n in range(4): k(f"buffer_load_dwordx4 v1, s[8:11], s50 offen offset:{n*1024} lds")
        k("s_add_u32 s50, s47, s49")
        for n in range(4):
            k(f"s_add_u32 m0, s50, {n*1024}")
            k(f"buffer_load_dwordx4 v{8+n}, s[12:15], s43 offen lds")
        k("s_add_u32 m0, s48, s49")
        k("s_mov_b32 exec_hi, 0")
        k("buffer_load_dwordx4 v12, s[12:15], s43 offen lds")
        k("s_mov_b32 exec_hi, -1")
        k(f"s_add_u32 s42, s42, {128*2048}")
        k(f"s_add_u32 s43, s43, {64*9216}")
        slot_adv_prod(k, R, SZ, 49)
    RR, MM = 32, 40
    def after_b0():
        inv = f2u(1.0 / 2304)
        for i in range(8): k(f"v_mul_f32 v{16+2*i}, {inv:#x}, v{16+2*i}")
        for i in range(8): k(f"v_mul_f32 v{17+2*i}, {inv:#x}, v{17+2*i}")
        for i in range(8): k(f"v_fma_f32 v{17+2*i}, -v{16+2*i}, v{16+2*i}, v{17+2*i}")
        for i in range(8): k(f"v_max_f32 v{17+2*i}, 0, v{17+2*i}")
        for i in range(4): k(f"v_cvt_pk_bf16_f32 v{MM+i}, v{16+4*i}, v{18+4*i}")
        def rnd8():
            for i in range(4): k(f"v_cvt_pk_bf16_f32 v{44+i}, v{17+4*i}, v{19+4*i}")
            for i in range(4):
                k(f"v_lshlrev_b32 v{17+4*i}, 16, v{44+i}")
                k(f"v_and_b32 v{19+4*i}, 0xffff0000, v{44+i}")
        rnd8()
        for i in range(8): k(f"v_add_f32 v{17+2*i}, {f2u(1e-5):#x}, v{17+2*i}")
        rnd8()
        for i in range(8): k(f"v_sqrt_f32 v{17+2*i}, v{17+2*i}")
        rnd8()
        for i in range(8): k(f"v_rcp_f32 v{RR+i}, v{17+2*i}")
    W = 64
    def wloads():
        k(f"""
        s_lshl_b32 s50, s34, 4
        s_add_u32 s50, s50, s35
        s_lshl_b32 s51, s50, 16
        s_lshl_b32 s52, s40, 10
        s_add_u32 s51, s51, s52
        v_and_b32 v2, 15, v0
        v_lshlrev_b32 v2, 12, v2
        v_lshrrev_b32 v3, 4, v0
        v_lshl_add_u32 v2, v3, 4, v2
        """)
        for P in range(16): k(f"buffer_load_dwordx4 {vr(W+4*P,4)}, v2, s[24:27], s51 offen offset:{P*64}")
    producer_loop(k, S, R, issue, 13, extra_after_last=wloads, nextra=16, after_b0=after_b0)
    k(f"""
    s_mul_i32 s52, s40, 3072
    v_lshlrev_b32 v4, 5, v0
    v_add_u32 v4, s52, v4
    ds_write_b128 v4, v[32:35]
    ds_write_b128 v4, v[36:39] offset:16
    v_add_u32 v4, s52, v1
    ds_write_b128 v4, v[40:43] offset:2048
    v_lshlrev_b32 v4, 5, v3
    v_add_u32 v4, s52, v4
    v_lshlrev_b32 v5, 4, v3
    v_add_u32 v5, s52, v5
    v_mov_b32 v6, 0
    s_lshl_b32 s53, s40, 21
    s_lshl_b32 s54, s50, 11
    s_add_u32 s53, s53, s54
    s_waitcnt lgkmcnt(0)
    """)
    RB = [128, 140]
    def rd(P):
        b = RB[P & 1]
        k(f"ds_read_b128 {vr(b,4)}, v4 offset:{P*128}")
        k(f"ds_read_b128 {vr(b+4,4)}, v4 offset:{P*128+16}")
        k(f"ds_read_b128 {vr(b+8,4)}, v5 offset:{2048+P*64}")
    rd(0)
    for P in range(16):
        if P < 15: rd(P + 1)
        k(f"s_waitcnt vmcnt(15) lgkmcnt({3 if P < 15 else 0})")
        b, w, t = RB[P & 1], W + 4 * P, 152
        for i in range(4):
            k(f"v_lshlrev_b32 v{t+2*i}, 16, v{w+i}")
            k(f"v_and_b32 v{t+2*i+1}, 0xffff0000, v{w+i}")
        for i in range(4): k(f"v_pk_mul_f32 {vr(t+2*i,2)}, {vr(t+2*i,2)}, {vr(b+2*i,2)}")
        for i in range(4): k(f"v_cvt_pk_bf16_f32 v{w+i}, v{t+2*i}, v{t+2*i+1}")
        for i in range(4): k(f"v_dot2c_f32_bf16 v6, v{w+i}, v{b+8+i}")
        k(f"v_permlane16_swap_b32 v{w}, v{w+2}")
        k(f"v_permlane16_swap_b32 v{w+1}, v{w+3}")
        k(f"v_permlane32_swap_b32 v{w}, v{w+2}")
        k(f"v_permlane32_swap_b32 v{w+1}, v{w+3}")
        k(f"buffer_store_dwordx4 {vr(w,4)}, v1, s[28:31], s53 offen offset:{(P&1)*1024}")
        if P & 1: k(f"s_add_u32 s53, s53, {128*2048}")
    k(f"""
    v_mov_b32 v7, v6
    v_permlane16_swap_b32 v6, v7
    v_add_f32 v6, v6, v7
    v_mov_b32 v7, v6
    v_permlane32_swap_b32 v6, v7
    v_add_f32 v6, v6, v7
    s_lshl_b32 s53, s40, 13
    s_lshl_b32 s54, s50, 6
    s_add_u32 s53, s53, s54
    v_lshlrev_b32 v7, 2, v0
    s_mov_b64 exec, 0xffff
    buffer_store_dword v6, v7, s[68:71], s53 offen
    s_endpgm
    """)
    k.label(Lqkv)
    S, R, SZ, BO = 9, 3, 18432 + 28672, 18432
    k(f"""
    s_and_b32 s36, s34, 1
    s_lshl_b32 s36, s36, 3
    s_and_b32 s37, s35, 7
    s_add_u32 s36, s36, s37
    s_lshr_b32 s37, s34, 1
    s_lshl_b32 s37, s37, 1
    s_bfe_u32 s38, s35, 0x10003
    s_add_u32 s37, s37, s38          ; hg
    s_cmp_ge_u32 s33, 4
    s_cbranch_scc1 {Lqprod}
    """)
    st()
    ACC, BUF = 96, [0, 48]
    VA, VBE, VBO, VW = 240, 241, 242, 243
    acc = lambda i, j: ACC + (i * 7 + j) * 4
    k(f"""
    s_and_b32 s40, s33, 1            ; wm
    s_lshr_b32 s41, s33, 1           ; wn
    s_lshl_b32 s42, s40, 13
    v_add_u32 v{VA}, s42, v1
    """)
    tr_lane_base(k, VBE, 448, 2)
    k(f"""
    s_mul_i32 s42, s41, 224
    s_add_u32 s42, s42, {BO}
    v_add_u32 v{VBE}, s42, v{VBE}
    v_lshlrev_b32 v2, 5, v2          ; a*32
    v_sub_u32 v3, 0, v2
    s_cmp_eq_u32 s41, 0
    s_cselect_b64 vcc, -1, 0
    s_cselect_b32 s43, -1, 0
    v_cndmask_b32 v4, v3, v2, vcc    ; wn==0 ? +a32 : -a32
    v_sub_u32 v{VBO}, v{VBE}, v4
    v_add_u32 v{VBE}, v{VBE}, v4
    v_and_b32 v2, 15, v0
    s_lshl_b32 s42, s40, 6
    v_add_u32 v2, s42, v2
    v_mul_u32_u24 v{VW}, 440, v2
    v_lshrrev_b32 v2, 4, v0
    v_lshl_add_u32 v{VW}, v2, 3, v{VW}
    s_mul_i32 s42, s41, 224
    v_add_u32 v{VW}, s42, v{VW}
    """)
    for r in range(ACC, ACC + 140): k(f"v_mov_b32 v{r}, 0")
    adv_setup(k, R, SZ)
    def reads(sub, b):
        o = [f"ds_read_b128 {vr(BUF[b]+i*4,4)}, v{VA} offset:{i*2048+sub*1024}" for i in range(5)]
        for j in range(7):
            for hh in range(2):
                o.append(f"ds_read_b64_tr_b16 {vr(BUF[b]+20+j*4+hh*2,2)}, v{VBO if j & 1 else VBE} offset:{sub*32*448+hh*8*448+j*32}")
        return o
    def mfmas(b):
        return [f"v_mfma_f32_16x16x32_bf16 {vr(acc(i,j),4)}, {vr(BUF[b]+20+j*4,4)}, {vr(BUF[b]+i*4,4)}, {vr(acc(i,j),4)}"
                for i in range(5) for j in range(7)]
    last = consumer_loop(k, S, 2, reads, mfmas, adv_ins(R, [VA, VBE, VBO]), True, st=st)
    st()
    for m in mfmas(last): k(m)
    n = 0
    for j in range(7):
        if j == 6: k("s_mov_b32 exec_hi, s43")
        for i in range(5):
            a = acc(i, j); o = (n & 3) * 2; n += 1
            k(f"v_cvt_pk_bf16_f32 v{o}, v{a}, v{a+1}")
            k(f"v_cvt_pk_bf16_f32 v{o+1}, v{a+2}, v{a+3}")
            k(f"ds_write_b64 v{VW}, {vr(o,2)} offset:{i*16*440+j*32}")
    k("s_mov_b32 exec_hi, -1")
    k("s_waitcnt lgkmcnt(0)")
    k("v_mbcnt_lo_u32_b32 v0, -1, 0")
    k("v_mbcnt_hi_u32_b32 v0, -1, v0")
    k(f"s_branch {Latt}")
    k.label(Lqprod)
    k(f"""
    s_sub_u32 s40, s33, 4            ; pw
    s_lshl_b32 s41, s40, 12
    s_lshl_b32 s42, s36, 14
    s_lshl_b32 s45, s40, 9
    s_sub_u32 s44, s42, 2048
    s_cmp_eq_u32 s36, 0
    s_cselect_b32 s44, 0, s44
    s_add_u32 s44, s44, s45
    s_add_u32 s42, s42, s41          ; A goff
    s_add_u32 s41, s41, 2048         ; A lds
    s_mul_i32 s43, s37, 144          ; B goff
    s_mul_i32 s47, s40, 7168
    s_add_u32 s47, s47, {BO}
    s_mov_b32 s49, 0
    s_mul_i32 s51, s40, 448
    """)
    for n in range(7):
        k(f"""
        s_add_u32 s50, s51, {n*64}
        v_add_u32 v2, s50, v0
        v_mul_u32_u24 v3, 2341, v2
        v_lshrrev_b32 v3, 16, v3
        v_mul_u32_u24 v4, 28, v3
        v_sub_u32 v2, v2, v4             ; c'
        v_and_b32 v4, 4, v3
        v_lshrrev_b32 v5, 1, v4
        v_xor_b32 v2, v2, v5             ; c
        v_lshlrev_b32 v4, 1, v4
        v_and_b32 v5, 8, v3
        v_lshrrev_b32 v5, 1, v5
        v_or_b32 v4, v4, v5
        v_and_b32 v3, 0x33, v3
        v_or_b32 v3, v3, v4              ; k row
        v_mul_u32_u24 v3, 3456, v3
        v_mul_u32_u24 v4, 57, v2
        v_lshrrev_b32 v4, 9, v4          ; seg = c/9
        v_mul_u32_u24 v5, {1152-144}, v4
        v_lshl_add_u32 v5, v2, 4, v5
        v_add_u32 v3, v3, v5
        v_mov_b32 v5, 0x80000000
        v_cmp_gt_u32 vcc, 27, v2
        v_cndmask_b32 v{8+n}, v5, v3, vcc
        """)
    def issue():
        k("s_add_u32 m0, s41, s49")
        for n in range(4): k(f"buffer_load_dwordx4 v1, s[8:11], s42 offen offset:{n*1024} lds")
        k("s_add_u32 m0, s45, s49")
        k("s_mov_b32 exec_hi, 0")
        k("buffer_load_dwordx4 v1, s[8:11], s44 offen lds")
        k("s_mov_b32 exec_hi, -1")
        k("s_add_u32 s50, s47, s49")
        for n in range(7):
            k(f"s_add_u32 m0, s50, {n*1024}")
            k(f"buffer_load_dwordx4 v{8+n}, s[72:75], s43 offen lds")
        k(f"s_add_u32 s42, s42, {128*2048}")
        k(f"s_add_u32 s44, s44, {128*2048}")
        k(f"s_add_u32 s43, s43, {64*3456}")
        slot_adv_prod(k, R, SZ, 49)
    producer_loop(k, S, R, issue, 12)
    k("s_barrier")
    k.label(Latt)
    k(f"""
    s_and_b32 s40, s33, 3            ; head
    s_lshr_b32 s41, s33, 2
    s_and_b32 s42, s40, 1            ; odd
    s_lshl_b32 s43, s41, 6
    s_add_u32 s44, s43, 2
    v_add_u32 v2, s44, v0
    v_mul_u32_u24 v2, 440, v2
    s_mul_i32 s44, s40, 36
    s_lshl_b32 s45, s42, 2
    s_add_u32 s45, s45, s44
    v_add_u32 v3, s45, v2            ; b64 base
    s_xor_b32 s45, s42, 1
    s_lshl_b32 s45, s45, 5
    s_add_u32 s45, s45, s44
    v_add_u32 v2, s45, v2            ; b32 base
    s_lshl_b32 s46, s36, 7
    s_add_u32 s46, s46, s43
    v_add_u32 v4, s46, v0            ; t
    v_lshrrev_b32 v5, 4, v4
    v_lshlrev_b32 v5, 11, v5
    v_and_b32 v6, 15, v4
    v_lshl_add_u32 v5, v6, 4, v5
    s_mul_i32 s46, s37, 72
    s_mul_i32 s47, s40, 18
    s_add_u32 s46, s46, s47          ; col0
    s_mov_b32 s62, 0x05040100
    s_mov_b32 s63, 0x07060302
    """)
    for i in range(9):
        if i < 8: k(f"s_add_u32 s47, s42, {i}")
        else: k("s_xor_b32 s47, s42, 1\ns_lshl_b32 s47, s47, 3")
        k(f"""
        s_lshl_b32 s47, s47, 1
        s_add_u32 s47, s47, s46          ; col
        s_lshr_b32 s48, s47, 6
        s_lshl_b32 s48, s48, 18
        s_bfe_u32 s49, s47, 0x30003
        s_lshl_b32 s49, s49, 8
        s_add_u32 s48, s48, s49
        s_and_b32 s49, s47, 7
        s_lshl_b32 s49, s49, 1
        s_add_u32 s{80+i}, s48, s49
        """)
    k("s_barrier")
    st(20)
    Q, KK, VV, L, PP, OA = 24, 36, 116, 200, 210, 216
    def rdvec(dst, row, part):
        for h in range(4): k(f"ds_read_b64 {vr(dst+2*h,2)}, v3 offset:{row*440+part*144+8*h}")
        k(f"ds_read_b32 v{dst+8}, v2 offset:{row*440+part*144}")
    vecs = [(Q, 14, 0)] + [(KK + 10 * w, 14 - 2 * w, 1) for w in range(8)] + [(VV + 10 * w, 14 - 2 * w, 2) for w in range(8)]
    for v in vecs[:4]: rdvec(*v)
    nxt = 4
    for w in range(8): k(f"v_mov_b32 v{L+w}, 0")
    for w in range(8):
        k("s_waitcnt lgkmcnt(10)")
        for i in range(9): k(f"v_dot2c_f32_bf16 v{L+w}, v{Q+i}, v{KK+10*w+i}")
        rdvec(*vecs[nxt]); nxt += 1
    while nxt < len(vecs):
        rdvec(*vecs[nxt]); nxt += 1
    sc = f2u(18.0 ** -0.5)
    def rndL():
        for i in range(4): k(f"v_cvt_pk_bf16_f32 v{PP+i}, v{L+2*i}, v{L+2*i+1}")
        for i in range(4):
            k(f"v_lshlrev_b32 v{L+2*i}, 16, v{PP+i}")
            k(f"v_and_b32 v{L+2*i+1}, 0xffff0000, v{PP+i}")
    rndL()
    for w in range(8): k(f"v_mul_f32 v{L+w}, {sc:#x}, v{L+w}")
    rndL()
    k(f"v_mov_b32 v6, {f2u(-1e9):#x}")
    for w in range(1, 8):
        k(f"v_cmp_le_u32 s[{50+2*(w&3)}:{51+2*(w&3)}], {2*w}, v4")
        if w > 1: k(f"v_cndmask_b32 v{L+w-1}, v6, v{L+w-1}, s[{50+2*((w-1)&3)}:{51+2*((w-1)&3)}]")
    k(f"v_cndmask_b32 v{L+7}, v6, v{L+7}, s[56:57]")
    k(f"v_max3_f32 v7, v{L}, v{L+1}, v{L+2}")
    k(f"v_max3_f32 v8, v{L+3}, v{L+4}, v{L+5}")
    k(f"v_max3_f32 v7, v7, v{L+6}, v{L+7}")
    k(f"v_max_f32 v7, v7, v8")
    l2e = f2u(math.log2(math.e))
    for w in range(8): k(f"v_sub_f32 v{L+w}, v{L+w}, v7")
    for w in range(8): k(f"v_mul_f32 v{L+w}, {l2e:#x}, v{L+w}")
    for w in range(8): k(f"v_exp_f32 v{L+w}, v{L+w}")
    k(f"v_add_f32 v7, v{L}, v{L+1}")
    k(f"v_add_f32 v8, v{L+2}, v{L+3}")
    k(f"v_add_f32 v9, v{L+4}, v{L+5}")
    k(f"v_add_f32 v10, v{L+6}, v{L+7}")
    k("v_add_f32 v7, v7, v8\nv_add_f32 v9, v9, v10\nv_add_f32 v7, v7, v9\nv_rcp_f32 v7, v7")
    for w in range(8): k(f"v_mul_f32 v{L+w}, v{L+w}, v7")
    for i in range(4): k(f"v_cvt_pk_bf16_f32 v{PP+i}, v{L+2*i}, v{L+2*i+1}")
    for i in range(18): k(f"v_mov_b32 v{OA+i}, 0")
    k("s_waitcnt lgkmcnt(0)")
    for wp in range(4):
        x, y = VV + 20 * wp, VV + 20 * wp + 10
        for i in range(9):
            k(f"v_perm_b32 v{KK+2*i}, v{y+i}, v{x+i}, s62")
            k(f"v_perm_b32 v{KK+2*i+1}, v{y+i}, v{x+i}, s63")
        for i in range(18): k(f"v_dot2c_f32_bf16 v{OA+i}, v{KK+i}, v{PP+wp}")
    for i in range(9): k(f"v_cvt_pk_bf16_f32 v{Q+i}, v{OA+2*i}, v{OA+2*i+1}")
    for i in range(9): k(f"buffer_store_dword v{Q+i}, v5, s[76:79], s{80+i} offen")
    if stamps:
        st(20); k("s_waitcnt vmcnt(0)"); st(20)
    k.label(Lend)
    k("s_endpgm")
    return k

def gen_g2(name, stamps=False):
    k = Kern(name); st = Stamps(k, stamps, 3)
    S, R, SZ, BO = 32, 4, 34816, 16384
    Lend, Lprod = k.lab("end"), k.lab("prod")
    preamble(k, 256, Lend, [(4, "ws"), (6, "b_sp")])
    k("""
    s_and_b32 s36, s34, 1
    s_lshl_b32 s36, s36, 3
    s_and_b32 s37, s35, 7
    s_add_u32 s36, s36, s37          ; mt
    s_lshr_b32 s37, s34, 1
    s_lshl_b32 s37, s37, 2
    s_lshr_b32 s38, s35, 3
    s_add_u32 s37, s37, s38          ; nt
    s_waitcnt lgkmcnt(0)
    """)
    srd(k, 8, 4, WSP_OFF, WSP_SZ)
    srd(k, 12, 4, Z2T_OFF, Z2T_SZ)
    k(f"s_cmp_ge_u32 s33, 4\ns_cbranch_scc1 {Lprod}")
    srd(k, 16, 4, Z1P_OFF, Z1P_SZ)
    srd(k, 20, 4, A3_OFF, A3_SZ)
    srd(k, 24, 6, 0, 4096)
    srd(k, 28, 4, CT_OFF, CT_SZ)
    st.init(); st()
    ACC, BUF = 104, [0, 52]
    VA01, VA23, VB, VL16, VT = 248, 249, 250, 251, 252
    acc = lambda i, j: ACC + (i * 9 + j) * 4
    k(f"""
    s_and_b32 s40, s33, 1            ; mh
    s_lshr_b32 s41, s33, 1           ; kh
    v_mov_b32 v{VL16}, v1
    s_lshl_b32 s42, s40, 13
    s_lshl_b32 s43, s41, 10
    s_add_u32 s42, s42, s43
    s_lshl_b32 s44, s41, 12
    s_add_u32 s45, s42, s44
    v_add_u32 v{VA01}, s45, v1
    s_xor_b32 s44, s44, 4096
    s_add_u32 s45, s42, s44
    v_add_u32 v{VA23}, s45, v1
    s_add_u32 s45, s43, {BO}
    v_add_u32 v{VB}, s45, v1
    s_lshl_b32 s46, s36, 3
    s_lshl_b32 s47, s40, 2
    s_add_u32 s46, s46, s47
    s_lshl_b32 s47, s41, 1
    s_add_u32 s46, s46, s47          ; tfrag0
    v_and_b32 v2, 15, v0
    s_lshl_b32 s47, s46, 4
    v_add_u32 v2, s47, v2
    v_lshlrev_b32 v3, 1, v2
    v_lshlrev_b32 v2, 2, v2
    buffer_load_ushort v4, v3, s[24:27], 0 offen
    buffer_load_ushort v5, v3, s[24:27], 0 offen offset:32
    s_movk_i32 s48, 0x2000
    s_movk_i32 s49, 0x4000
    s_movk_i32 s50, 0x6000
    buffer_load_dword v6, v2, s[28:31], 0 offen
    buffer_load_dword v7, v2, s[28:31], s48 offen
    buffer_load_dword v8, v2, s[28:31], s49 offen
    buffer_load_dword v9, v2, s[28:31], s50 offen
    buffer_load_dword v10, v2, s[28:31], 0 offen offset:64
    buffer_load_dword v11, v2, s[28:31], s48 offen offset:64
    buffer_load_dword v12, v2, s[28:31], s49 offen offset:64
    buffer_load_dword v13, v2, s[28:31], s50 offen offset:64
    """)
    for r in range(acc(2, 0), acc(3, 8) + 4): k(f"v_mov_b32 v{r}, 0")
    k(f"""
    s_lshr_b32 s51, s37, 1           ; u
    s_and_b32 s52, s37, 1            ; e'
    s_mul_i32 s53, s51, 9
    s_add_u32 s53, s53, 18
    s_lshl_b32 s54, s52, 2
    s_add_u32 s54, s54, s53          ; step0
    s_add_u32 s53, s53, 8
    s_lshl_b32 s55, s46, 11
    """)
    for p in range(5):
        src = "s53" if p == 4 else "s54"
        add = 0 if p == 4 else p
        k(f"""
        s_add_u32 s56, {src}, {add}
        s_lshr_b32 s57, s56, 1
        s_lshl_b32 s57, s57, 18
        s_and_b32 s56, s56, 1
        s_lshl_b32 s56, s56, 10
        s_add_u32 s57, s57, s56
        s_add_u32 s{60+p}, s57, s55
        """)
    k(f"""
    s_lshl_b32 s56, s46, 4
    s_add_u32 s56, s56, s37
    s_mul_i32 s66, s56, 4608
    s_add_u32 s67, s66, {16*4608}
    s_waitcnt vmcnt(0)
    v_lshlrev_b32 v4, 16, v4
    v_lshlrev_b32 v5, 16, v5
    v_add_f32 v6, v6, v7
    v_add_f32 v8, v8, v9
    v_add_f32 v10, v10, v11
    v_add_f32 v12, v12, v13
    v_add_f32 v6, v6, v8
    v_add_f32 v10, v10, v12
    v_sub_f32 v4, v4, v6
    v_sub_f32 v5, v5, v10
    """)
    for e in range(2):
        for r in range(acc(e, 0), acc(e, 8) + 4): k(f"v_mov_b32 v{r}, v{4+e}")
    adv_setup(k, R, SZ)
    def reads(sub, b):
        o = [f"ds_read_b128 {vr(BUF[b]+i*4,4)}, v{VA01 if i < 2 else VA23} offset:{(i&1)*2048}" for i in range(4)]
        o += [f"ds_read_b128 {vr(BUF[b]+16+j*4,4)}, v{VB} offset:{j*2048}" for j in range(9)]
        return o
    def mfmas(b):
        return [f"v_mfma_f32_16x16x32_bf16 {vr(acc(i,j),4)}, {vr(BUF[b]+16+j*4,4)}, {vr(BUF[b]+i*4,4)}, {vr(acc(i,j),4)}"
                for j in range(9) for i in range(4)]
    last = consumer_loop(k, S, 1, reads, mfmas, adv_ins(R, [VA01, VA23, VB]), True, st=st)
    assert last == 1
    st()
    k(f"v_lshrrev_b32 v{VT}, 1, v{VL16}")
    for e in range(2):
        for p in range(4):
            k(f"buffer_load_dwordx4 {vr(e*20+p*4,4)}, v{VL16}, s[16:19], s{66+e} offen offset:{p*1024}")
        k(f"s_add_u32 s68, s{66+e}, 4096")
        k(f"buffer_load_dwordx2 {vr(e*20+16,2)}, v{VT}, s[16:19], s68 offen")
    for m in mfmas(1): k(m)
    k("s_lshl_b32 s42, s40, 1")
    ksplit_reduce(k, acc(2, 0), 18, 42, 41, VL16, VA01, VA23, 0)
    for n in range(18): k(f"ds_read_b128 {vr(acc(2,0)+n*4,4)}, v{VA23} offset:{n*1024}")
    k(f"s_lshl_b32 s52, s52, 3")
    k(f"v_add_u32 v{VT}, s52, v{VL16}")
    k("s_waitcnt vmcnt(0)")
    if stamps: st();
    T = 52
    for e in range(2):
        for j in range(9):
            n = e * 9 + j
            k(f"s_waitcnt lgkmcnt({min(15, 17-n)})")
            a, b = acc(e, j), acc(2 + e, j)
            z = e * 20 + j * 2
            t = T + (j & 1) * 4
            k(f"""
            v_pk_add_f32 {vr(a,2)}, {vr(a,2)}, {vr(b,2)}
            v_pk_add_f32 {vr(a+2,2)}, {vr(a+2,2)}, {vr(b+2,2)}
            v_lshlrev_b32 v{t}, 16, v{z}
            v_and_b32 v{t+1}, 0xffff0000, v{z}
            v_lshlrev_b32 v{t+2}, 16, v{z+1}
            v_and_b32 v{t+3}, 0xffff0000, v{z+1}
            v_pk_mul_f32 {vr(a,2)}, {vr(a,2)}, {vr(t,2)}
            v_pk_mul_f32 {vr(a+2,2)}, {vr(a+2,2)}, {vr(t+2,2)}
            v_cvt_pk_bf16_f32 v{z}, v{a}, v{a+1}
            v_cvt_pk_bf16_f32 v{z+1}, v{a+2}, v{a+3}
            """)
            if j & 1:
                p = j >> 1
                k(f"buffer_store_dwordx4 {vr(e*20+p*4,4)}, v{VL16}, s[20:23], s{60+p} offen offset:{e*2048}")
            elif j == 8:
                k(f"buffer_store_dwordx2 {vr(e*20+16,2)}, v{VT}, s[20:23], s64 offen offset:{e*2048}")
    if stamps:
        st(); k("s_waitcnt vmcnt(0)"); st()
    k("s_endpgm")
    k.label(Lprod)
    k(f"""
    s_sub_u32 s40, s33, 4            ; pw
    s_lshl_b32 s41, s40, 12
    s_lshl_b32 s42, s36, 14
    s_add_u32 s42, s42, s41          ; A goff
    s_mul_i32 s43, s37, 18432
    s_lshl_b32 s45, s40, 9
    s_add_u32 s44, s43, s45
    s_add_u32 s44, s44, 16384        ; B2 goff
    s_add_u32 s43, s43, s41          ; B goff
    s_add_u32 s47, s41, {BO}
    s_add_u32 s48, s45, {BO+16384}
    s_mov_b32 s49, 0
    """)
    def issue():
        k("s_add_u32 m0, s41, s49")
        for n in range(4): k(f"buffer_load_dwordx4 v1, s[8:11], s42 offen offset:{n*1024} lds")
        k("s_add_u32 m0, s47, s49")
        for n in range(4): k(f"buffer_load_dwordx4 v1, s[12:15], s43 offen offset:{n*1024} lds")
        k("s_add_u32 m0, s48, s49")
        k("s_mov_b32 exec_hi, 0")
        k("buffer_load_dwordx4 v1, s[12:15], s44 offen lds")
        k("s_mov_b32 exec_hi, -1")
        k(f"s_add_u32 s42, s42, {128*2048}")
        k(f"s_add_u32 s43, s43, {144*2048}")
        k(f"s_add_u32 s44, s44, {144*2048}")
        slot_adv_prod(k, R, SZ, 49)
    producer_loop(k, S, R, issue, 9)
    k.label(Lend)
    k("s_endpgm")
    return k

def gen_g3(name, stamps=False):
    k = Kern(name); st = Stamps(k, stamps, 4)
    S, R, SZ, BO = 45, 8, 17408, 8192
    Lend, Lprod = k.lab("end"), k.lab("prod")
    preamble(k, 256, Lend, [(4, "ws"), (6, "x"), (64, "out")])
    k("""
    s_and_b32 s36, s34, 3
    s_lshl_b32 s36, s36, 3
    s_and_b32 s37, s35, 7
    s_add_u32 s36, s36, s37
    s_lshr_b32 s37, s34, 2
    s_lshl_b32 s37, s37, 2
    s_lshr_b32 s38, s35, 3
    s_add_u32 s37, s37, s38          ; nt
    s_waitcnt lgkmcnt(0)
    """)
    srd(k, 8, 4, A3_OFF, A3_SZ)
    srd(k, 12, 4, W3_OFF, W3_SZ)
    k(f"s_cmp_ge_u32 s33, 4\ns_cbranch_scc1 {Lprod}")
    srd(k, 16, 6, 0, 2048 * 1152)
    srd(k, 20, 64, 0, 2048 * 1152)
    st.init(); st(100)
    ACC, BUF = 56, [0, 28]
    VA0, VA1, VB, VBH, VL16, VO = 104, 105, 106, 107, 108, 109
    acc = lambda i, j: ACC + (i * 5 + j) * 4
    k(f"""
    s_and_b32 s40, s33, 1            ; mh
    s_lshr_b32 s41, s33, 1           ; kh
    v_mov_b32 v{VL16}, v1
    s_lshl_b32 s42, s40, 12
    s_lshl_b32 s43, s41, 10
    s_add_u32 s42, s42, s43
    s_lshl_b32 s44, s41, 11
    s_add_u32 s45, s42, s44
    v_add_u32 v{VA0}, s45, v1
    s_xor_b32 s44, s44, 2048
    s_add_u32 s45, s42, s44
    v_add_u32 v{VA1}, s45, v1
    s_add_u32 s45, s43, {BO}
    v_add_u32 v{VB}, s45, v1
    v_lshrrev_b32 v2, 4, v0          ; q
    v_and_b32 v3, 7, v0
    v_lshl_add_u32 v3, v2, 3, v3
    v_lshlrev_b32 v3, 4, v3
    s_lshl_b32 s45, s41, 9
    s_add_u32 s45, s45, {BO+8192}
    v_add_u32 v{VBH}, s45, v3
    s_lshl_b32 s46, s36, 2
    s_lshl_b32 s47, s40, 1
    s_add_u32 s46, s46, s47
    s_add_u32 s46, s46, s41          ; tfrag
    s_mul_i32 s46, s46, {16*1152}
    s_mul_i32 s47, s37, 144
    s_add_u32 s46, s46, s47
    v_and_b32 v3, 15, v0
    v_mul_u32_u24 v3, 1152, v3
    v_lshl_add_u32 v{VO}, v2, 3, v3
    """)
    for j in range(5): k(f"buffer_load_dwordx2 {vr(4+2*j,2)}, v{VO}, s[16:19], s46 offen offset:{j*32}")
    for r in range(acc(1, 0), acc(1, 4) + 4): k(f"v_mov_b32 v{r}, 0")
    adv_setup(k, R, SZ)
    k("s_waitcnt vmcnt(0)")
    for j in range(5):
        for h in range(2):
            k(f"v_lshlrev_b32 v{acc(0,j)+2*h}, 16, v{4+2*j+h}")
            k(f"v_and_b32 v{acc(0,j)+2*h+1}, 0xffff0000, v{4+2*j+h}")
    def reads(sub, b):
        o = [f"ds_read_b128 {vr(BUF[b],4)}, v{VA0}", f"ds_read_b128 {vr(BUF[b]+4,4)}, v{VA1}"]
        o += [f"ds_read_b128 {vr(BUF[b]+8+j*4,4)}, v{VB} offset:{j*2048}" for j in range(4)]
        o += [f"ds_read_b128 {vr(BUF[b]+24,4)}, v{VBH}"]
        return o
    def mfmas(b):
        return [f"v_mfma_f32_16x16x32_bf16 {vr(acc(i,j),4)}, {vr(BUF[b]+8+j*4,4)}, {vr(BUF[b]+i*4,4)}, {vr(acc(i,j),4)}"
                for j in range(5) for i in range(2)]
    last = consumer_loop(k, S, 1, reads, mfmas, adv_ins(R, [VA0, VA1, VB, VBH]), True, st=(lambda: st(100)))
    st(100)
    for m in mfmas(last): k(m)
    k("s_lshl_b32 s42, s40, 1")
    ksplit_reduce(k, acc(1, 0), 5, 42, 41, VL16, VA0, VA1, 0)
    for n in range(5): k(f"ds_read_b128 {vr(acc(1,0)+n*4,4)}, v{VA1} offset:{n*1024}")
    for j in range(5):
        k(f"s_waitcnt lgkmcnt({4-j})")
        a, b = acc(0, j), acc(1, j)
        k(f"v_pk_add_f32 {vr(a,2)}, {vr(a,2)}, {vr(b,2)}")
        k(f"v_pk_add_f32 {vr(a+2,2)}, {vr(a+2,2)}, {vr(b+2,2)}")
        k(f"v_cvt_pk_bf16_f32 v{2*j}, v{a}, v{a+1}")
        k(f"v_cvt_pk_bf16_f32 v{2*j+1}, v{a+2}, v{a+3}")
        if j == 4: k("s_mov_b32 exec_hi, 0")
        k(f"buffer_store_dwordx2 {vr(2*j,2)}, v{VO}, s[20:23], s46 offen offset:{j*32}")
    if stamps:
        k("s_mov_b32 exec_hi, -1")
        st(100); k("s_waitcnt vmcnt(0)"); st(100)
    k("s_endpgm")
    k.label(Lprod)
    k(f"""
    s_sub_u32 s40, s33, 4            ; pw
    s_lshl_b32 s41, s40, 11
    s_lshl_b32 s42, s36, 13
    s_add_u32 s42, s42, s41          ; A goff
    s_mul_i32 s43, s37, 9216
    s_lshl_b32 s45, s40, 8
    s_add_u32 s44, s43, s45
    s_add_u32 s44, s44, 8192         ; B2 goff
    s_add_u32 s43, s43, s41          ; B goff
    s_add_u32 s47, s41, {BO}
    s_add_u32 s48, s45, {BO+8192}
    s_mov_b32 s49, 0
    """)
    def issue():
        k("s_add_u32 m0, s41, s49")
        for n in range(2): k(f"buffer_load_dwordx4 v1, s[8:11], s42 offen offset:{n*1024} lds")
        k("s_add_u32 m0, s47, s49")
        for n in range(2): k(f"buffer_load_dwordx4 v1, s[12:15], s43 offen offset:{n*1024} lds")
        k("s_add_u32 m0, s48, s49")
        k("s_mov_b64 exec, 0xffff")
        k("buffer_load_dwordx4 v1, s[12:15], s44 offen lds")
        k("s_mov_b64 exec, -1")
        k(f"s_add_u32 s42, s42, {128*2048}")
        k(f"s_add_u32 s43, s43, {8*9216}")
        k(f"s_add_u32 s44, s44, {8*9216}")
        slot_adv_prod(k, R, SZ, 49)
    producer_loop(k, S, R, issue, 5)
    k.label(Lend)
    k("s_endpgm")
    return k

HEADER = open("parallel_sum__sliding_local_dilated__mixer_gmlp__prompt.s.ref").read().split("; Override launch")[0] if __name__ == "__main__" else ""

def build(stamps=False):
    return [
        (gen_prep("prep_kernel"), 96, 173, 576, 73728),
        (gen_z2("z2_kernel", stamps), 256, 256, 512, 4 * 34816),
        (gen_z1qkv("z1qkv_kernel", stamps), 256, 256, 512, 3 * 51200),
        (gen_g2("g2_kernel", stamps), 256, 256, 512, 4 * 34816),
        (gen_g3("g3_kernel", stamps), 112, 256, 512, 8 * 17408),
    ]

if __name__ == "__main__":
    stamps = "stamps" in sys.argv[2:]
    open(sys.argv[1], "w").write(assemble_file(HEADER + "; generated by a python script (tile loops, fragment layouts and wait states hand-designed)\n", build(stamps)))
```

```python
import sys, math
from asmlib import *

XN_OFF   = 0x0000000; XN_SZ  = 9 * 128 * 2048
Z2T_OFF  = 0x0400000; Z2T_SZ = 32 * 144 * 2048
WSP_OFF  = 0x1000000; WSP_SZ = 32 * 128 * 2048
Z1P_OFF  = 0x1900000; Z1P_SZ = 128 * 16 * 4608
A3_OFF   = 0x2300000; A3_SZ  = 45 * 128 * 2048
W3_OFF   = 0x3000000; W3_SZ  = 45 * 8 * 9216
ST_OFF   = 0x3400000; ST_SZ  = 2048 * 8
CT_OFF   = 0x3410000; CT_SZ  = 4 * 2048 * 4
STAMP_OFF = 0x3800000

OPT = dict(noA=0, noB=0, linB=0, nomfma=0, la_z2=3, la_z1=2, la_g2=3, la_g3=7)
KA = dict(x=0, wqkv=8, wo=16, bx=24, w_in=32, w_sp=40, b_sp=48, w_out=56, out=64, dbg=72, ws=80)
import struct
def f2u(f): return struct.unpack("<I", struct.pack("<f", f))[0]
GC0 = -2.0 * math.sqrt(2.0 / math.pi) * math.log2(math.e)
GC1 = GC0 * 0.044715

def srd(k, d, base, off, size):
    if off:
        k(f"s_add_u32 s{d}, s{base}, {off:#x}")
        k(f"s_addc_u32 s{d+1}, s{base+1}, 0")
    else:
        k(f"s_mov_b32 s{d}, s{base}")
        k(f"s_mov_b32 s{d+1}, s{base+1}")
    k(f"s_mov_b32 s{d+2}, {size:#x}")
    k(f"s_mov_b32 s{d+3}, 0x20000")

class Stamps:
    def __init__(self, k, on, kidx=0): self.k, self.on, self.kidx = k, on, kidx
    def init(self, wsbase=4, widx=33):
        if not self.on: return
        k = self.k
        srd(k, 96, wsbase, STAMP_OFF + self.kidx * 0x100000, 1 << 20)
        k(f"s_lshl_b32 s95, s2, 4")
        k(f"s_add_u32 s95, s95, s{widx}")
        k(f"s_lshl_b32 s95, s95, 8")
    def __call__(self, v=254):
        if not self.on: return
        k = self.k
        k("s_memtime s[90:91]")
        k("s_memrealtime s[92:93]")
        k("s_waitcnt lgkmcnt(0)")
        k(f"v_mov_b32 v{v}, s90")
        k(f"v_mov_b32 v{v+1}, s92")
        k(f"v_mov_b32 v{v-1}, 0")
        k(f"buffer_store_dwordx2 v[{v}:{v+1}], v{v-1}, s[96:99], s95 offen")
        k("s_add_u32 s95, s95, 8")

def interleave(mf, other, start=0, step=1):
    out = []; oi = 0
    for n, m in enumerate(mf):
        out.append(m)
        if n >= start and (n - start) % step == 0 and oi < len(other):
            out.append(other[oi]); oi += 1
    out += other[oi:]
    return out

def preamble(k, nblocks, Lend, loads):
    k(f"s_cmp_ge_u32 s2, {nblocks}")
    k(f"s_cbranch_scc1 {Lend}")
    for reg, name in loads: k(f"s_load_dwordx2 s[{reg}:{reg+1}], s[0:1], {KA[name]}")
    k("""
    v_lshrrev_b32 v1, 6, v0
    v_and_b32 v0, 63, v0
    v_readfirstlane_b32 s33, v1
    s_and_b32 s34, s2, 7
    s_lshr_b32 s35, s2, 3
    v_lshlrev_b32 v1, 4, v0
    """)

def adv_setup(k, R, SZ):
    k(f"s_mov_b32 s59, 0")
    k(f"s_mov_b32 s57, {SZ}")
    k(f"s_mov_b32 s56, {(-(R-1)*SZ) & 0xffffffff:#x}")
def adv_ins(R, vregs):
    o = ["s_add_u32 s59, s59, 1", f"s_cmp_eq_u32 s59, {R}", "s_cselect_b32 s59, 0, s59", "s_cselect_b32 s55, s56, s57"]
    o += [f"v_add_u32 v{v}, s55, v{v}" for v in vregs]
    return o

def consumer_loop(k, S, nsub, reads, mfmas, adv, final_barrier, step=1, st=None):
    Ltop, Lex, Lent = k.lab("top"), k.lab("ex"), k.lab("ent")
    cnt = ["s_sub_u32 s58, s58, 1", "s_cmp_lg_u32 s58, 0"]
    if nsub == 1:
        n = S - 1
        k(f"s_mov_b32 s58, {(n+1)//2}")
        k("s_barrier")
        if st: st()
        for r in reads(0, 0) + adv: k(r)
        k("s_waitcnt lgkmcnt(0)")
        k.label(Ltop)
        k("s_barrier")
        for x in interleave(mfmas(0), reads(0, 1) + adv + (cnt if n & 1 else []), step=step): k(x)
        k("s_waitcnt lgkmcnt(0)")
        if n & 1: k(f"s_cbranch_scc0 {Lex}")
        k("s_barrier")
        for x in interleave(mfmas(1), reads(0, 0) + adv + ([] if n & 1 else cnt), step=step): k(x)
        k("s_waitcnt lgkmcnt(0)")
        if n & 1: k(f"s_branch {Ltop}")
        else: k(f"s_cbranch_scc1 {Ltop}")
        k.label(Lex)
        last = (S - 1) & 1
    else:
        k(f"s_mov_b32 s58, {S}")
        k("s_barrier")
        if st: st()
        for r in reads(0, 0): k(r)
        k("s_waitcnt lgkmcnt(0)")
        k(f"s_branch {Lent}")
        k.label(Ltop)
        k("s_barrier")
        for x in interleave(mfmas(1), reads(0, 0), step=step): k(x)
        k("s_waitcnt lgkmcnt(0)")
        k.label(Lent)
        for x in interleave(mfmas(0), reads(1, 1) + adv + cnt, step=step): k(x)
        k("s_waitcnt lgkmcnt(0)")
        k(f"s_cbranch_scc1 {Ltop}")
        last = 1
    if final_barrier: k("s_barrier")
    return last

def producer_loop(k, S, R, issue, nper, extra_after_last=None, nextra=0, after_b0=None, st=None, LA=None):
    if LA is None: LA = R - 1
    assert 1 <= LA <= R - 1
    Lp0, Lp1 = k.lab("p0"), k.lab("p1")
    if st: st()
    k(f"s_mov_b32 s58, {LA}")
    k.label(Lp0)
    issue()
    k("s_sub_u32 s58, s58, 1")
    k("s_cmp_lg_u32 s58, 0")
    k(f"s_cbranch_scc1 {Lp0}")
    if st: st()
    nloop = S - LA
    if after_b0:
        k(f"s_waitcnt vmcnt({(LA-1)*nper})")
        k("s_barrier")
        issue()
        after_b0()
        nloop -= 1
    k(f"s_mov_b32 s58, {nloop}")
    k.label(Lp1)
    k(f"s_waitcnt vmcnt({(LA-1)*nper})")
    k("s_barrier")
    issue()
    k("s_sub_u32 s58, s58, 1")
    k("s_cmp_lg_u32 s58, 0")
    k(f"s_cbranch_scc1 {Lp1}")
    if extra_after_last: extra_after_last()
    for b in range(S - LA, S):
        k(f"s_waitcnt vmcnt({(S-1-b)*nper + nextra})")
        k("s_barrier")

def slot_adv_prod(k, R, SZ, sreg):
    k(f"s_add_u32 s{sreg}, s{sreg}, {SZ}")
    k(f"s_cmp_eq_u32 s{sreg}, {R*SZ}")
    k(f"s_cselect_b32 s{sreg}, 0, s{sreg}")

def gelu_consts(k, c):
    k(f"v_mov_b32 v{c}, {f2u(GC0):#x}");   k(f"v_mov_b32 v{c+1}, {f2u(GC0):#x}")
    k(f"v_mov_b32 v{c+2}, {f2u(GC1):#x}"); k(f"v_mov_b32 v{c+3}, {f2u(GC1):#x}")
    k(f"v_mov_b32 v{c+4}, 1.0");           k(f"v_mov_b32 v{c+5}, 1.0")
def gelu(k, pairs, t0, c):
    T = [t0 + 2 * i for i in range(len(pairs))]
    P = list(zip(pairs, T))
    for a, t in P: k(f"v_pk_mul_f32 {vr(t,2)}, {vr(a,2)}, {vr(a,2)}")
    for a, t in P: k(f"v_pk_fma_f32 {vr(t,2)}, {vr(t,2)}, {vr(c+2,2)}, {vr(c,2)}")
    for a, t in P: k(f"v_pk_mul_f32 {vr(t,2)}, {vr(t,2)}, {vr(a,2)}")
    for a, t in P: k(f"v_exp_f32 v{t}, v{t}"); k(f"v_exp_f32 v{t+1}, v{t+1}")
    for a, t in P: k(f"v_pk_add_f32 {vr(t,2)}, {vr(t,2)}, {vr(c+4,2)}")
    for a, t in P: k(f"v_rcp_f32 v{t}, v{t}"); k(f"v_rcp_f32 v{t+1}, v{t+1}")
    for a, t in P: k(f"v_pk_mul_f32 {vr(a,2)}, {vr(a,2)}, {vr(t,2)}")

def rnd_bf16(k, d, s):
    k(f"v_cvt_pk_bf16_f32 v{d}, v{s}, v{s}")
    k(f"v_lshlrev_b32 v{d}, 16, v{d}")

def w144_voffs(k, vbase, spw, pitch, tmp):
    for n in range(5):
        if n < 4:
            k(f"s_lshl_b32 s50, s{spw}, 8")
            k(f"s_add_u32 s50, s50, {n*64}")
        else:
            k(f"s_lshl_b32 s50, s{spw}, 5")
            k(f"s_add_u32 s50, s50, 1024")
        a, b, c = tmp, tmp + 1, tmp + 2
        k(f"""
        v_add_u32 v{a}, s50, v0
        v_mul_u32_u24 v{b}, 3641, v{a}
        v_lshrrev_b32 v{b}, 16, v{b}
        v_mul_u32_u24 v{c}, 18, v{b}
        v_sub_u32 v{a}, v{a}, v{c}              ; chunk
        v_lshlrev_b32 v{a}, 4, v{a}
        v_and_b32 v{c}, 4, v{b}
        v_lshlrev_b32 v{c}, 1, v{c}
        v_and_b32 v{vbase+n}, 8, v{b}
        v_lshrrev_b32 v{vbase+n}, 1, v{vbase+n}
        v_or_b32 v{c}, v{c}, v{vbase+n}
        v_and_b32 v{b}, 0x33, v{b}
        v_or_b32 v{b}, v{b}, v{c}               ; k row
        v_mul_u32_u24 v{b}, {pitch}, v{b}
        v_add_u32 v{vbase+n}, v{a}, v{b}
        """)

def tr_lane_base(k, d, pitch, tmp):
    a = tmp + 1
    k(f"""
    v_lshrrev_b32 v{d}, 5, v0
    v_lshlrev_b32 v{d}, 4, v{d}
    v_bfe_u32 v{tmp}, v0, 4, 1
    v_lshl_add_u32 v{d}, v{tmp}, 2, v{d}
    v_bfe_u32 v{a}, v0, 2, 2
    v_add_u32 v{d}, v{d}, v{a}
    v_mul_u32_u24 v{d}, {pitch}, v{d}
    v_and_b32 v{a}, 3, v0
    v_lshl_add_u32 v{d}, v{a}, 3, v{d}
    """)

def gen_prep(name, pf=0):
    k = Kern(name)
    Lend, Lw3, Lpf = k.lab("end"), k.lab("w3"), k.lab("pf")
    NPF = 216 if pf in (1, 2, 3) else 0
    preamble(k, 128 + 45 + NPF, Lend, [(4, "ws"), (6, "x"), (40, "wo"), (42, "w_out"), (64, "w_in"), (66, "wqkv"), (68, "w_sp")])
    k("s_waitcnt lgkmcnt(0)")
    if NPF:
        k(f"s_cmp_ge_u32 s2, 173\ns_cbranch_scc1 {Lpf}")
    srd(k, 8, 6, 0, 2048 * 1152)
    srd(k, 12, 4, XN_OFF, XN_SZ)
    srd(k, 16, 4, ST_OFF, ST_SZ)
    srd(k, 20, 4, W3_OFF, W3_SZ)
    k(f"""
    s_cmp_ge_u32 s2, 128
    s_cbranch_scc1 {Lw3}
    v_and_b32 v2, 15, v0             ; row
    v_lshrrev_b32 v3, 4, v0          ; q
    s_mul_i32 s44, s2, {16*1152}
    s_lshl_b32 s45, s33, 7
    s_add_u32 s44, s44, s45
    v_mul_u32_u24 v4, 1152, v2
    v_lshl_add_u32 v4, v3, 4, v4
    buffer_load_dwordx4 v[8:11], v4, s[8:11], s44 offen
    buffer_load_dwordx4 v[12:15], v4, s[8:11], s44 offen offset:64
    v_mul_u32_u24 v5, 144, v2
    s_lshl_b32 s45, s33, 4
    v_lshl_add_u32 v6, v3, 2, v5
    v_add_u32 v6, s45, v6
    """)
    if pf == 9:
        k(f"""
        s_mul_i32 s50, s2, 9
        s_add_u32 s50, s50, s33
        s_sub_u32 s51, s50, 648
        s_cmp_lt_u32 s50, 648
        s_cselect_b32 s28, s64, s66
        s_cselect_b32 s29, s65, s67
        s_cselect_b32 s50, s50, s51
        s_mov_b32 s30, {576*3456}
        s_cselect_b32 s30, {576*9216}, s30
        s_mov_b32 s31, 0x20000
        s_lshl_b32 s50, s50, 13
        v_lshlrev_b32 v100, 7, v0
        buffer_load_dword v101, v100, s[28:31], s50 offen
        s_waitcnt vmcnt(1)
        """)
    else:
        k("s_waitcnt vmcnt(0)")
    for i in range(8):
        k(f"v_lshlrev_b32 v{16+2*i}, 16, v{8+i}")
        k(f"v_and_b32 v{17+2*i}, 0xffff0000, v{8+i}")
    def tree(base, n, dst):
        k(f"v_pk_add_f32 v[32:33], {vr(base,2)}, {vr(base+2,2)}")
        for i in range(2, n // 2): k(f"v_pk_add_f32 v[32:33], v[32:33], {vr(base+2*i,2)}")
        k(f"v_add_f32 v{dst}, v32, v33")
    tree(16, 16, 34)
    k("ds_write_b32 v6, v34")
    k("s_waitcnt lgkmcnt(0)")
    k("s_barrier")
    for i in range(9): k(f"ds_read_b128 {vr(44+4*i,4)}, v5 offset:{i*16}")
    k("s_waitcnt lgkmcnt(0)")
    tree(44, 36, 34)
    k(f"v_mul_f32 v34, {f2u(1.0/576):#x}, v34")
    k("v_mov_b32 v35, v34")
    for i in range(8): k(f"v_pk_add_f32 {vr(80+2*i,2)}, {vr(16+2*i,2)}, v[34:35] neg_lo:[0,1] neg_hi:[0,1]")
    k("v_pk_mul_f32 v[32:33], v[80:81], v[80:81]")
    for i in range(1, 8): k(f"v_pk_fma_f32 v[32:33], {vr(80+2*i,2)}, {vr(80+2*i,2)}, v[32:33]")
    k("v_add_f32 v36, v32, v33")
    k("ds_write_b32 v6, v36 offset:2304")
    k("s_waitcnt lgkmcnt(0)")
    k("s_barrier")
    for i in range(9): k(f"ds_read_b128 {vr(44+4*i,4)}, v5 offset:{2304+i*16}")
    k("s_waitcnt lgkmcnt(0)")
    tree(44, 36, 36)
    k(f"v_mul_f32 v36, {f2u(1.0/576):#x}, v36")
    rnd_bf16(k, 36, 36)
    k(f"v_add_f32 v36, {f2u(1e-5):#x}, v36")
    rnd_bf16(k, 36, 36)
    k("v_sqrt_f32 v36, v36")
    rnd_bf16(k, 36, 36)
    k("v_rcp_f32 v36, v36")
    rnd_bf16(k, 34, 34)
    k("v_mov_b32 v35, v34")
    k("v_mov_b32 v37, v36")
    for i in range(8): k(f"v_pk_add_f32 {vr(16+2*i,2)}, {vr(16+2*i,2)}, v[34:35] neg_lo:[0,1] neg_hi:[0,1]")
    for i in range(8): k(f"v_cvt_pk_bf16_f32 v{8+i}, v{16+2*i}, v{17+2*i}")
    for i in range(8):
        k(f"v_lshlrev_b32 v{16+2*i}, 16, v{8+i}")
        k(f"v_and_b32 v{17+2*i}, 0xffff0000, v{8+i}")
    for i in range(8): k(f"v_pk_mul_f32 {vr(16+2*i,2)}, {vr(16+2*i,2)}, v[36:37]")
    for i in range(8): k(f"v_cvt_pk_bf16_f32 v{8+i}, v{16+2*i}, v{17+2*i}")
    k(f"""
    s_lshl_b32 s44, s33, 7
    s_add_u32 s44, s44, s2
    s_lshl_b32 s44, s44, 11
    buffer_store_dwordx4 v[8:11], v1, s[12:15], s44 offen
    buffer_store_dwordx4 v[12:15], v1, s[12:15], s44 offen offset:1024
    s_cmp_lg_u32 s33, 0
    s_cbranch_scc1 {Lend}
    s_lshl_b32 s46, s2, 7
    v_lshlrev_b32 v7, 2, v0
    v_mov_b32 v40, 0
    s_mov_b32 exec_hi, 0
    buffer_store_dword v40, v7, s[16:19], s46 offen
    """)
    srd(k, 28, 4, 0x3420000, 16 * 128)
    k("s_mov_b64 exec, 1\nbuffer_store_dword v40, v7, s[28:31], s46 offen\ns_endpgm")
    k.label(Lw3)
    k(f"""
    s_sub_u32 s44, s2, 128           ; st
    s_cmp_lt_u32 s44, 9
    s_cselect_b32 s24, s40, s42
    s_cselect_b32 s25, s41, s43
    s_cselect_b32 s26, {576*1152}, -1
    s_min_u32 s26, s26, {2304*1152}
    s_mov_b32 s27, 0x20000
    """)
    k("s_cmp_lt_u32 s44, 9")
    k("s_cselect_b32 s45, 8, 4")
    for ks in range(2):
        Ln, Ld = k.lab("nat"), k.lab("dn")
        k(f"""
        s_lshl_b32 s50, s44, 1
        s_add_u32 s50, s50, {ks}         ; step
        s_cmp_lt_u32 s44, 9
        s_cbranch_scc1 {Ln}
        s_sub_u32 s50, s50, 18
        s_mul_i32 s51, s50, 57
        s_lshr_b32 s51, s51, 9           ; u = step'/9
        s_mul_i32 s52, s51, 9
        s_sub_u32 s52, s50, s52          ; v
        s_mul_i32 s51, s51, 288
        s_lshr_b32 s53, s52, 2
        s_mul_i32 s53, s53, 144
        s_and_b32 s54, s52, 3
        s_lshl_b32 s54, s54, 5
        s_add_u32 s53, s53, s54
        s_cmp_eq_u32 s52, 8
        s_cselect_b32 s53, 128, s53
        s_cselect_b32 s{48+ks}, 144, 16
        s_add_u32 s{46+ks}, s51, s53
        s_branch {Ld}
        {Ln}:
        s_lshl_b32 s{46+ks}, s50, 5
        s_mov_b32 s{48+ks}, 4
        {Ld}:
        """)
    k("s_lshl_b32 s50, s33, 13")
    k("s_lshl_b32 s51, s33, 9")
    k("s_mov_b32 s52, 58255")
    for n in range(8):
        k(f"""
        s_add_u32 s53, s51, {n*64}
        v_add_u32 v2, s53, v0
        v_mul_lo_u32 v3, s52, v2
        v_lshrrev_b32 v3, 22, v3         ; rho
        v_mul_u32_u24 v4, 72, v3
        v_sub_u32 v2, v2, v4             ; chunk
        v_cmp_lt_u32 vcc, 31, v3
        v_mov_b32 v4, s46
        v_mov_b32 v5, s47
        v_cndmask_b32 v4, v4, v5, vcc    ; base
        v_mov_b32 v5, s48
        v_mov_b32 v6, s49
        v_cndmask_b32 v5, v5, v6, vcc    ; D
        v_bfe_u32 v6, v3, 2, 1
        v_mad_u32_u24 v4, v6, v5, v4
        v_bfe_u32 v6, v3, 3, 2
        v_mul_lo_u32 v6, s45, v6
        v_and_b32 v3, 3, v3
        v_add3_u32 v4, v4, v6, v3
        v_mul_u32_u24 v4, 1152, v4
        v_lshl_add_u32 v4, v2, 4, v4
        s_add_u32 m0, s50, {n*1024}
        s_nop 0
        buffer_load_dwordx4 v4, s[24:27], 0 offen lds
        """)
    L8, Lgo = k.lab("w8"), k.lab("go")
    k(f"""
    v_lshrrev_b32 v2, 4, v0          ; g
    v_bfe_u32 v3, v0, 2, 2           ; r
    v_and_b32 v4, 3, v0              ; c4
    s_cmp_eq_u32 s33, 8
    s_cbranch_scc1 {L8}
    s_and_b32 s50, s33, 1
    s_lshl_b32 s50, s50, 2
    v_add_u32 v2, s50, v2
    s_lshr_b32 s50, s33, 1
    s_lshl_b32 s50, s50, 5
    v_lshlrev_b32 v4, 3, v4
    v_add_u32 v4, s50, v4
    s_branch {Lgo}
    {L8}:
    v_lshrrev_b32 v5, 1, v4
    v_lshl_add_u32 v2, v2, 1, v5     ; combo = 2g + (c4>>1)
    v_and_b32 v4, 1, v4
    v_lshlrev_b32 v4, 3, v4
    v_add_u32 v4, 128, v4
    {Lgo}:
    v_lshl_add_u32 v2, v2, 3, v3
    v_mul_u32_u24 v2, 1152, v2
    v_add_u32 v2, v2, v4
    s_mul_i32 s50, s44, {8*9216}
    s_lshl_b32 s51, s33, 10
    s_add_u32 s50, s50, s51
    s_waitcnt vmcnt(0)
    s_barrier
    """)
    for nt in range(8):
        k(f"ds_read_b64_tr_b16 {vr(8+nt*4,2)}, v2 offset:{nt*144}")
        k(f"ds_read_b64_tr_b16 {vr(10+nt*4,2)}, v2 offset:{nt*144+4608}")
    for nt in range(8):
        k(f"s_waitcnt lgkmcnt({14-2*nt})")
        k(f"buffer_store_dwordx4 {vr(8+nt*4,4)}, v1, s[20:23], s50 offen")
        k(f"s_add_u32 s50, s50, 9216")
    if NPF:
        k("s_endpgm")
        k.label(Lpf)
        La, Lb, Lc = k.lab("a"), k.lab("b"), k.lab("c")
        k(f"""
        s_sub_u32 s44, s2, 173
        s_mov_b32 s27, 0x20000
        s_cmp_lt_u32 s44, 72
        s_cbranch_scc1 {La}
        s_cmp_lt_u32 s44, 99
        s_cbranch_scc1 {Lb}
        s_sub_u32 s44, s44, 99
        s_mov_b32 s24, s68
        s_mov_b32 s25, s69
        s_mov_b32 s26, {2048*4096}
        s_branch {Lc}
        {La}:
        s_mov_b32 s24, s64
        s_mov_b32 s25, s65
        s_mov_b32 s26, {576*9216}
        s_branch {Lc}
        {Lb}:
        s_sub_u32 s44, s44, 72
        s_mov_b32 s24, s66
        s_mov_b32 s25, s67
        s_mov_b32 s26, {576*3456}
        {Lc}:
        s_mul_i32 s44, s44, 73728
        s_lshl_b32 s45, s33, 13
        s_add_u32 s44, s44, s45
        """)
        if pf == 1:
            for n in range(8):
                k(f"buffer_load_dwordx4 {vr(8+4*n,4)}, v1, s[24:27], s44 offen offset:{(n&3)*1024}")
                if n == 3: k("s_add_u32 s44, s44, 4096")
        elif pf == 2:
            k("v_lshlrev_b32 v2, 7, v0")
            k("buffer_load_dword v8, v2, s[24:27], s44 offen")
        elif pf == 3:
            k("v_lshlrev_b32 v2, 7, v0")
            k("buffer_load_dword v8, v2, s[24:27], s44 offen")
            k("buffer_load_dword v9, v2, s[24:27], s44 offen offset:64")
        k("s_waitcnt vmcnt(0)")
    k.label(Lend)
    k("s_endpgm")
    return k

def ksplit_reduce(k, send, nq, smh2, skh, vl16, va, vb, region):
    k(f"""
    s_add_u32 s43, s{smh2}, s{skh}
    s_mul_i32 s43, s43, {nq*1024}
    s_xor_b32 s44, s{skh}, 1
    s_add_u32 s44, s44, s{smh2}
    s_mul_i32 s44, s44, {nq*1024}
    s_add_u32 s43, s43, {region}
    s_add_u32 s44, s44, {region}
    v_add_u32 v{va}, s43, v{vl16}
    v_add_u32 v{vb}, s44, v{vl16}
    """)
    for n in range(nq): k(f"ds_write_b128 v{va}, {vr(send+n*4,4)} offset:{n*1024}")
    k("s_waitcnt lgkmcnt(0)")
    k("s_barrier")

def gen_z2(name, stamps=False):
    k = Kern(name); st = Stamps(k, stamps, 1)
    S, R, SZ, BO = 9, 4, 34816, 16384
    Lend, Lprod = k.lab("end"), k.lab("prod")
    preamble(k, 256, Lend, [(4, "ws"), (6, "w_in")])
    k("""
    s_and_b32 s36, s34, 1
    s_lshl_b32 s36, s36, 3
    s_and_b32 s37, s35, 7
    s_add_u32 s36, s36, s37          ; mt
    s_lshr_b32 s37, s34, 1
    s_lshl_b32 s37, s37, 2
    s_lshr_b32 s38, s35, 3
    s_add_u32 s37, s37, s38          ; nt
    s_waitcnt lgkmcnt(0)
    """)
    srd(k, 8, 4, XN_OFF, XN_SZ)
    srd(k, 12, 6, 0, 576 * 9216)
    srd(k, 16, 4, Z2T_OFF, Z2T_SZ)
    srd(k, 20, 4, ST_OFF, ST_SZ)
    st.init(); st()
    k(f"s_cmp_ge_u32 s33, 4\ns_cbranch_scc1 {Lprod}")
    ACC, BUF = 104, [0, 52]
    VA01, VA23, VB, VL16, VLN = 248, 249, 250, 251, 252
    acc = lambda i, j: ACC + (i * 9 + j) * 4
    k(f"""
    s_and_b32 s40, s33, 1            ; mh
    s_lshr_b32 s41, s33, 1           ; kh
    v_mov_b32 v{VL16}, v1
    v_mov_b32 v{VLN}, v0
    s_lshl_b32 s42, s40, 13
    s_lshl_b32 s43, s41, 10
    s_add_u32 s42, s42, s43
    s_lshl_b32 s44, s41, 12
    s_add_u32 s45, s42, s44
    v_add_u32 v{VA01}, s45, v1
    s_xor_b32 s44, s44, 4096
    s_add_u32 s45, s42, s44
    v_add_u32 v{VA23}, s45, v1
    """)
    tr_lane_base(k, VB, 288, 2)
    k(f"s_mul_i32 s45, s41, {32*288}\ns_add_u32 s45, s45, {BO}\nv_add_u32 v{VB}, s45, v{VB}")
    for r in range(ACC, ACC + 144): k(f"v_mov_b32 v{r}, 0")
    adv_setup(k, R, SZ)
    def reads(sub, b):
        o = [f"ds_read_b128 {vr(BUF[b]+i*4,4)}, v{VA01 if i < 2 else VA23} offset:{(i&1)*2048}" for i in range(4)]
        for j in range(9):
            for hh in range(2):
                o.append(f"ds_read_b64_tr_b16 {vr(BUF[b]+16+j*4+hh*2,2)}, v{VB} offset:{hh*8*288+j*32}")
        return o
    def mfmas(b):
        if OPT["nomfma"]: return []
        return [f"v_mfma_f32_16x16x32_bf16 {vr(acc(i,j),4)}, {vr(BUF[b]+i*4,4)}, {vr(BUF[b]+16+j*4,4)}, {vr(acc(i,j),4)}"
                for j in range(9) for i in range(4)]
    last = consumer_loop(k, S, 1, reads, mfmas, adv_ins(R, [VA01, VA23, VB]), True, st=st)
    st()
    for m in mfmas(last): k(m)
    k("s_lshl_b32 s42, s40, 1")
    ksplit_reduce(k, acc(2, 0), 18, 42, 41, VL16, VA01, VA23, 0)
    for j in range(9):
        for e in range(2): k(f"ds_read_b128 {vr(acc(2+e,j),4)}, v{VA23} offset:{(e*9+j)*1024}")
    C, SM, T, O = 60, 68, 84, 92
    gelu_consts(k, C)
    for r in range(SM, SM + 16): k(f"v_mov_b32 v{r}, 0")
    k(f"""
    s_lshl_b32 s46, s36, 1
    s_add_u32 s46, s46, s40          ; g2 stage
    s_mul_i32 s46, s46, 144
    s_mul_i32 s47, s37, 9
    s_add_u32 s46, s46, s47
    s_lshl_b32 s46, s46, 11
    s_lshl_b32 s47, s41, 10
    s_add_u32 s46, s46, s47
    """)
    st()
    for j in range(9):
        k(f"s_waitcnt lgkmcnt({min(15, 16-2*j)})")
        for e in range(2):
            a, b = acc(e, j), acc(2 + e, j)
            k(f"v_pk_add_f32 {vr(a,2)}, {vr(a,2)}, {vr(b,2)}")
            k(f"v_pk_add_f32 {vr(a+2,2)}, {vr(a+2,2)}, {vr(b+2,2)}")
        gelu(k, [acc(0, j), acc(0, j) + 2, acc(1, j), acc(1, j) + 2], T, C)
        o = O + (j & 1) * 4
        for e in range(2):
            a = acc(e, j)
            k(f"v_cvt_pk_bf16_f32 v{o+2*e}, v{a}, v{a+1}")
            k(f"v_cvt_pk_bf16_f32 v{o+2*e+1}, v{a+2}, v{a+3}")
        k(f"buffer_store_dwordx4 {vr(o,4)}, v{VL16}, s[16:19], s46 offen")
        k("s_add_u32 s46, s46, 2048")
        for e in range(2):
            a = acc(e, j)
            for h in range(2):
                k(f"v_pk_add_f32 {vr(SM+4*e+2*h,2)}, {vr(SM+4*e+2*h,2)}, {vr(a+2*h,2)}")
                k(f"v_pk_fma_f32 {vr(SM+8+4*e+2*h,2)}, {vr(a+2*h,2)}, {vr(a+2*h,2)}, {vr(SM+8+4*e+2*h,2)}")
    for ror in (8, 4, 2, 1):
        for r in range(SM, SM + 16):
            k(f"v_add_f32_dpp v{r}, v{r}, v{r} row_ror:{ror} row_mask:0xf bank_mask:0xf")
    k("s_mov_b32 s48, 0x00010001\ns_mov_b32 s49, 0x00010001")
    val = lambda i: SM + (i & 1) * 8 + (i >> 3) * 4 + ((i >> 1) & 3)
    k(f"v_mov_b32 v{T}, v{val(0)}")
    for i in range(1, 16):
        k("s_lshl_b64 s[48:49], s[48:49], 1")
        k(f"v_cndmask_b32 v{T}, v{T}, v{val(i)}, s[48:49]")
    k(f"""
    v_bfe_u32 v{T+1}, v{VLN}, 3, 1
    v_lshlrev_b32 v{T+1}, 5, v{T+1}
    v_lshrrev_b32 v{T+2}, 4, v{VLN}
    v_lshl_add_u32 v{T+1}, v{T+2}, 3, v{T+1}
    v_and_b32 v{T+2}, 7, v{VLN}
    v_add_lshl_u32 v{T+1}, v{T+1}, v{T+2}, 2
    s_lshl_b32 s46, s36, 10
    s_lshl_b32 s47, s40, 9
    s_add_u32 s46, s46, s47
    s_lshl_b32 s47, s41, 8
    s_add_u32 s46, s46, s47
    buffer_atomic_add_f32 v{T}, v{T+1}, s[20:23], s46 offen
    """)
    if stamps:
        st(); k("s_waitcnt vmcnt(0)"); st()
    k("s_endpgm")
    k.label(Lprod)
    k(f"""
    s_sub_u32 s40, s33, 4            ; pw
    s_lshl_b32 s41, s40, 12
    s_lshl_b32 s42, s36, 14
    s_add_u32 s42, s42, s41          ; A goff
    s_mul_i32 s43, s37, 288
    s_add_u32 s43, s43, 4608
    s_lshl_b32 s45, s40, 9
    s_add_u32 s47, s41, {BO}
    s_add_u32 s48, s45, {BO+16384}
    s_mov_b32 s49, 0
    """)
    w144_voffs(k, 8, 40, 9216, 2)
    if OPT["linB"]:
        k("s_mul_i32 s43, s37, 18432")
        for n in range(4):
            k(f"s_add_u32 s50, s41, {n*1024}")
            k(f"v_add_u32 v{8+n}, s50, v1")
        k("s_add_u32 s50, s45, 16384")
        k("v_add_u32 v12, s50, v1")
    def issue():
        k("s_add_u32 m0, s41, s49")
        if not OPT["noA"]:
            for n in range(4): k(f"buffer_load_dwordx4 v1, s[8:11], s42 offen offset:{n*1024} lds")
        k("s_add_u32 s50, s47, s49")
        if not OPT["noB"]:
            for n in range(4):
                k(f"s_add_u32 m0, s50, {n*1024}")
                k(f"buffer_load_dwordx4 v{8+n}, s[12:15], s43 offen lds")
            k("s_add_u32 m0, s48, s49")
            k("s_mov_b32 exec_hi, 0")
            k("buffer_load_dwordx4 v12, s[12:15], s43 offen lds")
            k("s_mov_b32 exec_hi, -1")
        k(f"s_add_u32 s42, s42, {128*2048}")
        k(f"s_add_u32 s43, s43, {64*9216}")
        slot_adv_prod(k, R, SZ, 49)
    producer_loop(k, S, R, issue, 9 - 4 * OPT["noA"] - 5 * OPT["noB"], st=st, LA=OPT["la_z2"])
    k.label(Lend)
    k("s_endpgm")
    return k

def gen_z1qkv(name, stamps=False):
    k = Kern(name); st = Stamps(k, stamps, 2)
    Lend, Lqkv, Lprod, Lqprod, Latt = k.lab("end"), k.lab("qkv"), k.lab("prod"), k.lab("qprod"), k.lab("att")
    preamble(k, 256, Lend, [(4, "ws"), (6, "w_in"), (64, "wqkv"), (66, "w_sp")])
    k("s_waitcnt lgkmcnt(0)")
    srd(k, 8, 4, XN_OFF, XN_SZ)
    srd(k, 12, 6, 0, 576 * 9216)
    srd(k, 16, 4, Z1P_OFF, Z1P_SZ)
    srd(k, 20, 4, ST_OFF, ST_SZ)
    srd(k, 24, 66, 0, 2048 * 4096)
    srd(k, 28, 4, WSP_OFF, WSP_SZ)
    srd(k, 68, 4, CT_OFF, CT_SZ)
    srd(k, 72, 64, 0, 576 * 3456)
    srd(k, 76, 4, A3_OFF, A3_SZ)
    st.init()
    k(f"s_cmp_ge_u32 s35, 16\ns_cbranch_scc1 {Lqkv}")
    S, R, SZ, BO = 9, 3, 51200, 32768
    k(f"""
    s_and_b32 s36, s34, 1
    s_lshl_b32 s36, s36, 2
    s_and_b32 s37, s35, 3
    s_add_u32 s36, s36, s37
    s_lshr_b32 s37, s34, 1
    s_lshl_b32 s37, s37, 2
    s_lshr_b32 s38, s35, 2
    s_add_u32 s37, s37, s38          ; nt
    s_cmp_ge_u32 s33, 4
    s_cbranch_scc1 {Lprod}
    """)
    st()
    ACC, BUF = 104, [0, 52]
    VA, VB, VL16, VL8 = 248, 249, 250, 251
    acc = lambda i, j: ACC + (i * 9 + j) * 4
    k(f"""
    v_mov_b32 v{VL16}, v1
    v_lshrrev_b32 v{VL8}, 1, v1
    s_lshl_b32 s42, s33, 13
    v_add_u32 v{VA}, s42, v1
    """)
    tr_lane_base(k, VB, 288, 2)
    k(f"v_add_u32 v{VB}, {BO}, v{VB}")
    for r in range(ACC, ACC + 144): k(f"v_mov_b32 v{r}, 0")
    adv_setup(k, R, SZ)
    def reads(sub, b):
        o = [f"ds_read_b128 {vr(BUF[b]+i*4,4)}, v{VA} offset:{i*2048+sub*1024}" for i in range(4)]
        for j in range(9):
            for hh in range(2):
                o.append(f"ds_read_b64_tr_b16 {vr(BUF[b]+16+j*4+hh*2,2)}, v{VB} offset:{sub*32*288+hh*8*288+j*32}")
        return o
    def mfmas(b):
        return [f"v_mfma_f32_16x16x32_bf16 {vr(acc(i,j),4)}, {vr(BUF[b]+16+j*4,4)}, {vr(BUF[b]+i*4,4)}, {vr(acc(i,j),4)}"
                for i in range(4) for j in range(9)]
    last = consumer_loop(k, S, 2, reads, mfmas, adv_ins(R, [VA, VB]), False, st=st)
    st()
    for m in mfmas(last): k(m)
    C, T, O = 0, 8, 16
    gelu_consts(k, C)
    k(f"""
    s_lshl_b32 s46, s36, 4
    s_lshl_b32 s47, s33, 2
    s_add_u32 s46, s46, s47          ; tfrag0
    s_lshl_b32 s46, s46, 4
    s_add_u32 s46, s46, s37
    s_mul_i32 s46, s46, 4608
    """)
    n = 0
    for i in range(4):
        for p in range(4):
            a, b = acc(i, 2 * p), acc(i, 2 * p + 1)
            gelu(k, [a, a + 2, b, b + 2], T, C)
            o = O + (n & 1) * 4; n += 1
            for x, q in enumerate([a, a + 2, b, b + 2]): k(f"v_cvt_pk_bf16_f32 v{o+x}, v{q}, v{q+1}")
            k(f"buffer_store_dwordx4 {vr(o,4)}, v{VL16}, s[16:19], s46 offen offset:{p*1024}")
        k(f"s_add_u32 s{48+i}, s46, 4096")
        if i < 3: k(f"s_add_u32 s46, s46, {16*4608}")
    for i in (0, 2):
        a, b = acc(i, 8), acc(i + 1, 8)
        gelu(k, [a, a + 2, b, b + 2], T, C)
        o = O + (n & 1) * 4; n += 1
        for x, q in enumerate([a, a + 2, b, b + 2]): k(f"v_cvt_pk_bf16_f32 v{o+x}, v{q}, v{q+1}")
        k(f"buffer_store_dwordx2 {vr(o,2)}, v{VL8}, s[16:19], s{48+i} offen")
        k(f"buffer_store_dwordx2 {vr(o+2,2)}, v{VL8}, s[16:19], s{49+i} offen")
    if stamps:
        st(); k("s_waitcnt vmcnt(0)"); st()
    k("s_endpgm")
    k.label(Lprod)
    k(f"""
    s_sub_u32 s40, s33, 4            ; pw
    v_lshlrev_b32 v2, 6, v0
    s_lshl_b32 s41, s40, 12          ; pw*512*8
    buffer_load_dwordx4 v[16:19], v2, s[20:23], s41 offen
    buffer_load_dwordx4 v[20:23], v2, s[20:23], s41 offen offset:16
    buffer_load_dwordx4 v[24:27], v2, s[20:23], s41 offen offset:32
    buffer_load_dwordx4 v[28:31], v2, s[20:23], s41 offen offset:48
    s_lshl_b32 s41, s40, 13          ; pw*8192
    s_lshl_b32 s42, s36, 15
    s_add_u32 s42, s42, s41          ; A goff
    s_mul_i32 s43, s37, 288          ; B goff
    s_lshl_b32 s45, s40, 9
    s_lshl_b32 s47, s40, 12
    s_add_u32 s47, s47, {BO}
    s_add_u32 s48, s45, {BO+16384}
    s_mov_b32 s49, 0
    """)
    w144_voffs(k, 8, 40, 9216, 2)
    def issue():
        k("s_add_u32 m0, s41, s49")
        for n in range(4): k(f"buffer_load_dwordx4 v1, s[8:11], s42 offen offset:{n*1024} lds")
        k("s_add_u32 m0, m0, 4096")
        k("s_add_u32 s50, s42, 4096")
        for n in range(4): k(f"buffer_load_dwordx4 v1, s[8:11], s50 offen offset:{n*1024} lds")
        k("s_add_u32 s50, s47, s49")
        for n in range(4):
            k(f"s_add_u32 m0, s50, {n*1024}")
            k(f"buffer_load_dwordx4 v{8+n}, s[12:15], s43 offen lds")
        k("s_add_u32 m0, s48, s49")
        k("s_mov_b32 exec_hi, 0")
        k("buffer_load_dwordx4 v12, s[12:15], s43 offen lds")
        k("s_mov_b32 exec_hi, -1")
        k(f"s_add_u32 s42, s42, {128*2048}")
        k(f"s_add_u32 s43, s43, {64*9216}")
        slot_adv_prod(k, R, SZ, 49)
    RR, MM = 32, 40
    def after_b0():
        inv = f2u(1.0 / 2304)
        for i in range(8): k(f"v_mul_f32 v{16+2*i}, {inv:#x}, v{16+2*i}")
        for i in range(8): k(f"v_mul_f32 v{17+2*i}, {inv:#x}, v{17+2*i}")
        for i in range(8): k(f"v_fma_f32 v{17+2*i}, -v{16+2*i}, v{16+2*i}, v{17+2*i}")
        for i in range(8): k(f"v_max_f32 v{17+2*i}, 0, v{17+2*i}")
        for i in range(4): k(f"v_cvt_pk_bf16_f32 v{MM+i}, v{16+4*i}, v{18+4*i}")
        def rnd8():
            for i in range(4): k(f"v_cvt_pk_bf16_f32 v{44+i}, v{17+4*i}, v{19+4*i}")
            for i in range(4):
                k(f"v_lshlrev_b32 v{17+4*i}, 16, v{44+i}")
                k(f"v_and_b32 v{19+4*i}, 0xffff0000, v{44+i}")
        rnd8()
        for i in range(8): k(f"v_add_f32 v{17+2*i}, {f2u(1e-5):#x}, v{17+2*i}")
        rnd8()
        for i in range(8): k(f"v_sqrt_f32 v{17+2*i}, v{17+2*i}")
        rnd8()
        for i in range(8): k(f"v_rcp_f32 v{RR+i}, v{17+2*i}")
    W = 64
    def wloads():
        k(f"""
        s_lshl_b32 s50, s34, 4
        s_add_u32 s50, s50, s35
        s_lshl_b32 s51, s50, 16
        s_lshl_b32 s52, s40, 10
        s_add_u32 s51, s51, s52
        v_and_b32 v2, 15, v0
        v_lshlrev_b32 v2, 12, v2
        v_lshrrev_b32 v3, 4, v0
        v_lshl_add_u32 v2, v3, 4, v2
        """)
        for P in range(16): k(f"buffer_load_dwordx4 {vr(W+4*P,4)}, v2, s[24:27], s51 offen offset:{P*64}")
    producer_loop(k, S, R, issue, 13, extra_after_last=wloads, nextra=16, after_b0=after_b0, LA=OPT["la_z1"])
    k(f"""
    s_mul_i32 s52, s40, 3072
    v_lshlrev_b32 v4, 5, v0
    v_add_u32 v4, s52, v4
    ds_write_b128 v4, v[32:35]
    ds_write_b128 v4, v[36:39] offset:16
    v_add_u32 v4, s52, v1
    ds_write_b128 v4, v[40:43] offset:2048
    v_lshlrev_b32 v4, 5, v3
    v_add_u32 v4, s52, v4
    v_lshlrev_b32 v5, 4, v3
    v_add_u32 v5, s52, v5
    v_mov_b32 v6, 0
    s_lshl_b32 s53, s40, 21
    s_lshl_b32 s54, s50, 11
    s_add_u32 s53, s53, s54
    s_waitcnt lgkmcnt(0)
    """)
    RB = [128, 140]
    def rd(P):
        b = RB[P & 1]
        k(f"ds_read_b128 {vr(b,4)}, v4 offset:{P*128}")
        k(f"ds_read_b128 {vr(b+4,4)}, v4 offset:{P*128+16}")
        k(f"ds_read_b128 {vr(b+8,4)}, v5 offset:{2048+P*64}")
    rd(0)
    for P in range(16):
        if P < 15: rd(P + 1)
        k(f"s_waitcnt vmcnt(15) lgkmcnt({3 if P < 15 else 0})")
        b, w, t = RB[P & 1], W + 4 * P, 152
        for i in range(4):
            k(f"v_lshlrev_b32 v{t+2*i}, 16, v{w+i}")
            k(f"v_and_b32 v{t+2*i+1}, 0xffff0000, v{w+i}")
        for i in range(4): k(f"v_pk_mul_f32 {vr(t+2*i,2)}, {vr(t+2*i,2)}, {vr(b+2*i,2)}")
        for i in range(4): k(f"v_cvt_pk_bf16_f32 v{w+i}, v{t+2*i}, v{t+2*i+1}")
        for i in range(4): k(f"v_dot2c_f32_bf16 v6, v{w+i}, v{b+8+i}")
        k(f"v_permlane16_swap_b32 v{w}, v{w+2}")
        k(f"v_permlane16_swap_b32 v{w+1}, v{w+3}")
        k(f"v_permlane32_swap_b32 v{w}, v{w+2}")
        k(f"v_permlane32_swap_b32 v{w+1}, v{w+3}")
        k(f"buffer_store_dwordx4 {vr(w,4)}, v1, s[28:31], s53 offen offset:{(P&1)*1024}")
        if P & 1: k(f"s_add_u32 s53, s53, {128*2048}")
    k(f"""
    v_mov_b32 v7, v6
    v_permlane16_swap_b32 v6, v7
    v_add_f32 v6, v6, v7
    v_mov_b32 v7, v6
    v_permlane32_swap_b32 v6, v7
    v_add_f32 v6, v6, v7
    s_lshl_b32 s53, s40, 13
    s_lshl_b32 s54, s50, 6
    s_add_u32 s53, s53, s54
    v_lshlrev_b32 v7, 2, v0
    s_mov_b64 exec, 0xffff
    buffer_store_dword v6, v7, s[68:71], s53 offen
    s_endpgm
    """)
    k.label(Lqkv)
    S, R, SZ, BO = 9, 3, 18432 + 28672, 18432
    k(f"""
    s_and_b32 s36, s34, 1
    s_lshl_b32 s36, s36, 3
    s_and_b32 s37, s35, 7
    s_add_u32 s36, s36, s37
    s_lshr_b32 s37, s34, 1
    s_lshl_b32 s37, s37, 1
    s_bfe_u32 s38, s35, 0x10003
    s_add_u32 s37, s37, s38          ; hg
    s_cmp_ge_u32 s33, 4
    s_cbranch_scc1 {Lqprod}
    """)
    st()
    ACC, BUF = 96, [0, 48]
    VA, VBE, VBO, VW = 240, 241, 242, 243
    acc = lambda i, j: ACC + (i * 7 + j) * 4
    k(f"""
    s_and_b32 s40, s33, 1            ; wm
    s_lshr_b32 s41, s33, 1           ; wn
    s_lshl_b32 s42, s40, 13
    v_add_u32 v{VA}, s42, v1
    """)
    tr_lane_base(k, VBE, 448, 2)
    k(f"""
    s_mul_i32 s42, s41, 224
    s_add_u32 s42, s42, {BO}
    v_add_u32 v{VBE}, s42, v{VBE}
    v_lshlrev_b32 v2, 5, v2          ; a*32
    v_sub_u32 v3, 0, v2
    s_cmp_eq_u32 s41, 0
    s_cselect_b64 vcc, -1, 0
    s_cselect_b32 s43, -1, 0
    v_cndmask_b32 v4, v3, v2, vcc    ; wn==0 ? +a32 : -a32
    v_sub_u32 v{VBO}, v{VBE}, v4
    v_add_u32 v{VBE}, v{VBE}, v4
    v_and_b32 v2, 15, v0
    s_lshl_b32 s42, s40, 6
    v_add_u32 v2, s42, v2
    v_mul_u32_u24 v{VW}, 440, v2
    v_lshrrev_b32 v2, 4, v0
    v_lshl_add_u32 v{VW}, v2, 3, v{VW}
    s_mul_i32 s42, s41, 224
    v_add_u32 v{VW}, s42, v{VW}
    """)
    for r in range(ACC, ACC + 140): k(f"v_mov_b32 v{r}, 0")
    adv_setup(k, R, SZ)
    def reads(sub, b):
        o = [f"ds_read_b128 {vr(BUF[b]+i*4,4)}, v{VA} offset:{i*2048+sub*1024}" for i in range(5)]
        for j in range(7):
            for hh in range(2):
                o.append(f"ds_read_b64_tr_b16 {vr(BUF[b]+20+j*4+hh*2,2)}, v{VBO if j & 1 else VBE} offset:{sub*32*448+hh*8*448+j*32}")
        return o
    def mfmas(b):
        return [f"v_mfma_f32_16x16x32_bf16 {vr(acc(i,j),4)}, {vr(BUF[b]+20+j*4,4)}, {vr(BUF[b]+i*4,4)}, {vr(acc(i,j),4)}"
                for i in range(5) for j in range(7)]
    last = consumer_loop(k, S, 2, reads, mfmas, adv_ins(R, [VA, VBE, VBO]), True, st=st)
    st()
    for m in mfmas(last): k(m)
    n = 0
    for j in range(7):
        if j == 6: k("s_mov_b32 exec_hi, s43")
        for i in range(5):
            a = acc(i, j); o = (n & 3) * 2; n += 1
            k(f"v_cvt_pk_bf16_f32 v{o}, v{a}, v{a+1}")
            k(f"v_cvt_pk_bf16_f32 v{o+1}, v{a+2}, v{a+3}")
            k(f"ds_write_b64 v{VW}, {vr(o,2)} offset:{i*16*440+j*32}")
    k("s_mov_b32 exec_hi, -1")
    k("s_waitcnt lgkmcnt(0)")
    k("v_mbcnt_lo_u32_b32 v0, -1, 0")
    k("v_mbcnt_hi_u32_b32 v0, -1, v0")
    k(f"s_branch {Latt}")
    k.label(Lqprod)
    k(f"""
    s_sub_u32 s40, s33, 4            ; pw
    s_lshl_b32 s41, s40, 12
    s_lshl_b32 s42, s36, 14
    s_lshl_b32 s45, s40, 9
    s_sub_u32 s44, s42, 2048
    s_cmp_eq_u32 s36, 0
    s_cselect_b32 s44, 0, s44
    s_add_u32 s44, s44, s45
    s_add_u32 s42, s42, s41          ; A goff
    s_add_u32 s41, s41, 2048         ; A lds
    s_mul_i32 s43, s37, 144          ; B goff
    s_mul_i32 s47, s40, 7168
    s_add_u32 s47, s47, {BO}
    s_mov_b32 s49, 0
    s_mul_i32 s51, s40, 448
    """)
    for n in range(7):
        k(f"""
        s_add_u32 s50, s51, {n*64}
        v_add_u32 v2, s50, v0
        v_mul_u32_u24 v3, 2341, v2
        v_lshrrev_b32 v3, 16, v3
        v_mul_u32_u24 v4, 28, v3
        v_sub_u32 v2, v2, v4             ; c'
        v_and_b32 v4, 4, v3
        v_lshrrev_b32 v5, 1, v4
        v_xor_b32 v2, v2, v5             ; c
        v_lshlrev_b32 v4, 1, v4
        v_and_b32 v5, 8, v3
        v_lshrrev_b32 v5, 1, v5
        v_or_b32 v4, v4, v5
        v_and_b32 v3, 0x33, v3
        v_or_b32 v3, v3, v4              ; k row
        v_mul_u32_u24 v3, 3456, v3
        v_mul_u32_u24 v4, 57, v2
        v_lshrrev_b32 v4, 9, v4          ; seg = c/9
        v_mul_u32_u24 v5, {1152-144}, v4
        v_lshl_add_u32 v5, v2, 4, v5
        v_add_u32 v3, v3, v5
        v_mov_b32 v5, 0x80000000
        v_cmp_gt_u32 vcc, 27, v2
        v_cndmask_b32 v{8+n}, v5, v3, vcc
        """)
    def issue():
        k("s_add_u32 m0, s41, s49")
        for n in range(4): k(f"buffer_load_dwordx4 v1, s[8:11], s42 offen offset:{n*1024} lds")
        k("s_add_u32 m0, s45, s49")
        k("s_mov_b32 exec_hi, 0")
        k("buffer_load_dwordx4 v1, s[8:11], s44 offen lds")
        k("s_mov_b32 exec_hi, -1")
        k("s_add_u32 s50, s47, s49")
        for n in range(7):
            k(f"s_add_u32 m0, s50, {n*1024}")
            k(f"buffer_load_dwordx4 v{8+n}, s[72:75], s43 offen lds")
        k(f"s_add_u32 s42, s42, {128*2048}")
        k(f"s_add_u32 s44, s44, {128*2048}")
        k(f"s_add_u32 s43, s43, {64*3456}")
        slot_adv_prod(k, R, SZ, 49)
    producer_loop(k, S, R, issue, 12, LA=OPT["la_z1"])
    k("s_barrier")
    k.label(Latt)
    k(f"""
    s_and_b32 s40, s33, 3            ; head
    s_lshr_b32 s41, s33, 2
    s_and_b32 s42, s40, 1            ; odd
    s_lshl_b32 s43, s41, 6
    s_add_u32 s44, s43, 2
    v_add_u32 v2, s44, v0
    v_mul_u32_u24 v2, 440, v2
    s_mul_i32 s44, s40, 36
    s_lshl_b32 s45, s42, 2
    s_add_u32 s45, s45, s44
    v_add_u32 v3, s45, v2            ; b64 base
    s_xor_b32 s45, s42, 1
    s_lshl_b32 s45, s45, 5
    s_add_u32 s45, s45, s44
    v_add_u32 v2, s45, v2            ; b32 base
    s_lshl_b32 s46, s36, 7
    s_add_u32 s46, s46, s43
    v_add_u32 v4, s46, v0            ; t
    v_lshrrev_b32 v5, 4, v4
    v_lshlrev_b32 v5, 11, v5
    v_and_b32 v6, 15, v4
    v_lshl_add_u32 v5, v6, 4, v5
    s_mul_i32 s46, s37, 72
    s_mul_i32 s47, s40, 18
    s_add_u32 s46, s46, s47          ; col0
    s_mov_b32 s62, 0x05040100
    s_mov_b32 s63, 0x07060302
    """)
    for i in range(9):
        if i < 8: k(f"s_add_u32 s47, s42, {i}")
        else: k("s_xor_b32 s47, s42, 1\ns_lshl_b32 s47, s47, 3")
        k(f"""
        s_lshl_b32 s47, s47, 1
        s_add_u32 s47, s47, s46          ; col
        s_lshr_b32 s48, s47, 6
        s_lshl_b32 s48, s48, 18
        s_bfe_u32 s49, s47, 0x30003
        s_lshl_b32 s49, s49, 8
        s_add_u32 s48, s48, s49
        s_and_b32 s49, s47, 7
        s_lshl_b32 s49, s49, 1
        s_add_u32 s{80+i}, s48, s49
        """)
    k("s_barrier")
    st(20)
    Q, KK, VV, L, PP, OA = 24, 36, 116, 200, 210, 216
    def rdvec(dst, row, part):
        for h in range(4): k(f"ds_read_b64 {vr(dst+2*h,2)}, v3 offset:{row*440+part*144+8*h}")
        k(f"ds_read_b32 v{dst+8}, v2 offset:{row*440+part*144}")
    vecs = [(Q, 14, 0)] + [(KK + 10 * w, 14 - 2 * w, 1) for w in range(8)] + [(VV + 10 * w, 14 - 2 * w, 2) for w in range(8)]
    for v in vecs[:4]: rdvec(*v)
    nxt = 4
    for w in range(8): k(f"v_mov_b32 v{L+w}, 0")
    for w in range(8):
        k("s_waitcnt lgkmcnt(10)")
        for i in range(9): k(f"v_dot2c_f32_bf16 v{L+w}, v{Q+i}, v{KK+10*w+i}")
        rdvec(*vecs[nxt]); nxt += 1
    while nxt < len(vecs):
        rdvec(*vecs[nxt]); nxt += 1
    sc = f2u(18.0 ** -0.5)
    def rndL():
        for i in range(4): k(f"v_cvt_pk_bf16_f32 v{PP+i}, v{L+2*i}, v{L+2*i+1}")
        for i in range(4):
            k(f"v_lshlrev_b32 v{L+2*i}, 16, v{PP+i}")
            k(f"v_and_b32 v{L+2*i+1}, 0xffff0000, v{PP+i}")
    rndL()
    for w in range(8): k(f"v_mul_f32 v{L+w}, {sc:#x}, v{L+w}")
    rndL()
    k(f"v_mov_b32 v6, {f2u(-1e9):#x}")
    for w in range(1, 8):
        k(f"v_cmp_le_u32 s[{50+2*(w&3)}:{51+2*(w&3)}], {2*w}, v4")
        if w > 1: k(f"v_cndmask_b32 v{L+w-1}, v6, v{L+w-1}, s[{50+2*((w-1)&3)}:{51+2*((w-1)&3)}]")
    k(f"v_cndmask_b32 v{L+7}, v6, v{L+7}, s[56:57]")
    k(f"v_max3_f32 v7, v{L}, v{L+1}, v{L+2}")
    k(f"v_max3_f32 v8, v{L+3}, v{L+4}, v{L+5}")
    k(f"v_max3_f32 v7, v7, v{L+6}, v{L+7}")
    k(f"v_max_f32 v7, v7, v8")
    l2e = f2u(math.log2(math.e))
    for w in range(8): k(f"v_sub_f32 v{L+w}, v{L+w}, v7")
    for w in range(8): k(f"v_mul_f32 v{L+w}, {l2e:#x}, v{L+w}")
    for w in range(8): k(f"v_exp_f32 v{L+w}, v{L+w}")
    k(f"v_add_f32 v7, v{L}, v{L+1}")
    k(f"v_add_f32 v8, v{L+2}, v{L+3}")
    k(f"v_add_f32 v9, v{L+4}, v{L+5}")
    k(f"v_add_f32 v10, v{L+6}, v{L+7}")
    k("v_add_f32 v7, v7, v8\nv_add_f32 v9, v9, v10\nv_add_f32 v7, v7, v9\nv_rcp_f32 v7, v7")
    for w in range(8): k(f"v_mul_f32 v{L+w}, v{L+w}, v7")
    for i in range(4): k(f"v_cvt_pk_bf16_f32 v{PP+i}, v{L+2*i}, v{L+2*i+1}")
    for i in range(18): k(f"v_mov_b32 v{OA+i}, 0")
    k("s_waitcnt lgkmcnt(0)")
    for wp in range(4):
        x, y = VV + 20 * wp, VV + 20 * wp + 10
        for i in range(9):
            k(f"v_perm_b32 v{KK+2*i}, v{y+i}, v{x+i}, s62")
            k(f"v_perm_b32 v{KK+2*i+1}, v{y+i}, v{x+i}, s63")
        for i in range(18): k(f"v_dot2c_f32_bf16 v{OA+i}, v{KK+i}, v{PP+wp}")
    for i in range(9): k(f"v_cvt_pk_bf16_f32 v{Q+i}, v{OA+2*i}, v{OA+2*i+1}")
    for i in range(9): k(f"buffer_store_dword v{Q+i}, v5, s[76:79], s{80+i} offen")
    if stamps:
        st(20); k("s_waitcnt vmcnt(0)"); st(20)
    k.label(Lend)
    k("s_endpgm")
    return k

def gen_g2(name, stamps=False):
    k = Kern(name); st = Stamps(k, stamps, 3)
    S, R, SZ, BO = 32, 4, 34816, 16384
    Lend, Lprod = k.lab("end"), k.lab("prod")
    preamble(k, 256, Lend, [(4, "ws"), (6, "b_sp")])
    k("""
    s_and_b32 s36, s34, 1
    s_lshl_b32 s36, s36, 3
    s_and_b32 s37, s35, 7
    s_add_u32 s36, s36, s37          ; mt
    s_lshr_b32 s37, s34, 1
    s_lshl_b32 s37, s37, 2
    s_lshr_b32 s38, s35, 3
    s_add_u32 s37, s37, s38          ; nt
    s_waitcnt lgkmcnt(0)
    """)
    srd(k, 8, 4, WSP_OFF, WSP_SZ)
    srd(k, 12, 4, Z2T_OFF, Z2T_SZ)
    k(f"s_cmp_ge_u32 s33, 4\ns_cbranch_scc1 {Lprod}")
    srd(k, 16, 4, Z1P_OFF, Z1P_SZ)
    srd(k, 20, 4, A3_OFF, A3_SZ)
    srd(k, 24, 6, 0, 4096)
    srd(k, 28, 4, CT_OFF, CT_SZ)
    st.init(); st()
    ACC, BUF = 104, [0, 52]
    VA01, VA23, VB, VL16, VT = 248, 249, 250, 251, 252
    acc = lambda i, j: ACC + (i * 9 + j) * 4
    k(f"""
    s_and_b32 s40, s33, 1            ; mh
    s_lshr_b32 s41, s33, 1           ; kh
    v_mov_b32 v{VL16}, v1
    s_lshl_b32 s42, s40, 13
    s_lshl_b32 s43, s41, 10
    s_add_u32 s42, s42, s43
    s_lshl_b32 s44, s41, 12
    s_add_u32 s45, s42, s44
    v_add_u32 v{VA01}, s45, v1
    s_xor_b32 s44, s44, 4096
    s_add_u32 s45, s42, s44
    v_add_u32 v{VA23}, s45, v1
    s_add_u32 s45, s43, {BO}
    v_add_u32 v{VB}, s45, v1
    s_lshl_b32 s46, s36, 3
    s_lshl_b32 s47, s40, 2
    s_add_u32 s46, s46, s47
    s_lshl_b32 s47, s41, 1
    s_add_u32 s46, s46, s47          ; tfrag0
    v_and_b32 v2, 15, v0
    s_lshl_b32 s47, s46, 4
    v_add_u32 v2, s47, v2
    v_lshlrev_b32 v3, 1, v2
    v_lshlrev_b32 v2, 2, v2
    buffer_load_ushort v4, v3, s[24:27], 0 offen
    buffer_load_ushort v5, v3, s[24:27], 0 offen offset:32
    s_movk_i32 s48, 0x2000
    s_movk_i32 s49, 0x4000
    s_movk_i32 s50, 0x6000
    buffer_load_dword v6, v2, s[28:31], 0 offen
    buffer_load_dword v7, v2, s[28:31], s48 offen
    buffer_load_dword v8, v2, s[28:31], s49 offen
    buffer_load_dword v9, v2, s[28:31], s50 offen
    buffer_load_dword v10, v2, s[28:31], 0 offen offset:64
    buffer_load_dword v11, v2, s[28:31], s48 offen offset:64
    buffer_load_dword v12, v2, s[28:31], s49 offen offset:64
    buffer_load_dword v13, v2, s[28:31], s50 offen offset:64
    """)
    for r in range(acc(2, 0), acc(3, 8) + 4): k(f"v_mov_b32 v{r}, 0")
    k(f"""
    s_lshr_b32 s51, s37, 1           ; u
    s_and_b32 s52, s37, 1            ; e'
    s_mul_i32 s53, s51, 9
    s_add_u32 s53, s53, 18
    s_lshl_b32 s54, s52, 2
    s_add_u32 s54, s54, s53          ; step0
    s_add_u32 s53, s53, 8
    s_lshl_b32 s55, s46, 11
    """)
    for p in range(5):
        src = "s53" if p == 4 else "s54"
        add = 0 if p == 4 else p
        k(f"""
        s_add_u32 s56, {src}, {add}
        s_lshr_b32 s57, s56, 1
        s_lshl_b32 s57, s57, 18
        s_and_b32 s56, s56, 1
        s_lshl_b32 s56, s56, 10
        s_add_u32 s57, s57, s56
        s_add_u32 s{60+p}, s57, s55
        """)
    k(f"""
    s_lshl_b32 s56, s46, 4
    s_add_u32 s56, s56, s37
    s_mul_i32 s66, s56, 4608
    s_add_u32 s67, s66, {16*4608}
    s_waitcnt vmcnt(0)
    v_lshlrev_b32 v4, 16, v4
    v_lshlrev_b32 v5, 16, v5
    v_add_f32 v6, v6, v7
    v_add_f32 v8, v8, v9
    v_add_f32 v10, v10, v11
    v_add_f32 v12, v12, v13
    v_add_f32 v6, v6, v8
    v_add_f32 v10, v10, v12
    v_sub_f32 v4, v4, v6
    v_sub_f32 v5, v5, v10
    """)
    for e in range(2):
        for r in range(acc(e, 0), acc(e, 8) + 4): k(f"v_mov_b32 v{r}, v{4+e}")
    adv_setup(k, R, SZ)
    def reads(sub, b):
        o = [f"ds_read_b128 {vr(BUF[b]+i*4,4)}, v{VA01 if i < 2 else VA23} offset:{(i&1)*2048}" for i in range(4)]
        o += [f"ds_read_b128 {vr(BUF[b]+16+j*4,4)}, v{VB} offset:{j*2048}" for j in range(9)]
        return o
    def mfmas(b):
        return [f"v_mfma_f32_16x16x32_bf16 {vr(acc(i,j),4)}, {vr(BUF[b]+16+j*4,4)}, {vr(BUF[b]+i*4,4)}, {vr(acc(i,j),4)}"
                for j in range(9) for i in range(4)]
    last = consumer_loop(k, S, 1, reads, mfmas, adv_ins(R, [VA01, VA23, VB]), True, st=st)
    assert last == 1
    st()
    k(f"v_lshrrev_b32 v{VT}, 1, v{VL16}")
    for e in range(2):
        for p in range(4):
            k(f"buffer_load_dwordx4 {vr(e*20+p*4,4)}, v{VL16}, s[16:19], s{66+e} offen offset:{p*1024}")
        k(f"s_add_u32 s68, s{66+e}, 4096")
        k(f"buffer_load_dwordx2 {vr(e*20+16,2)}, v{VT}, s[16:19], s68 offen")
    for m in mfmas(1): k(m)
    k("s_lshl_b32 s42, s40, 1")
    ksplit_reduce(k, acc(2, 0), 18, 42, 41, VL16, VA01, VA23, 0)
    for n in range(18): k(f"ds_read_b128 {vr(acc(2,0)+n*4,4)}, v{VA23} offset:{n*1024}")
    k(f"s_lshl_b32 s52, s52, 3")
    k(f"v_add_u32 v{VT}, s52, v{VL16}")
    k("s_waitcnt vmcnt(0)")
    if stamps: st();
    T = 52
    for e in range(2):
        for j in range(9):
            n = e * 9 + j
            k(f"s_waitcnt lgkmcnt({min(15, 17-n)})")
            a, b = acc(e, j), acc(2 + e, j)
            z = e * 20 + j * 2
            t = T + (j & 1) * 4
            k(f"""
            v_pk_add_f32 {vr(a,2)}, {vr(a,2)}, {vr(b,2)}
            v_pk_add_f32 {vr(a+2,2)}, {vr(a+2,2)}, {vr(b+2,2)}
            v_lshlrev_b32 v{t}, 16, v{z}
            v_and_b32 v{t+1}, 0xffff0000, v{z}
            v_lshlrev_b32 v{t+2}, 16, v{z+1}
            v_and_b32 v{t+3}, 0xffff0000, v{z+1}
            v_pk_mul_f32 {vr(a,2)}, {vr(a,2)}, {vr(t,2)}
            v_pk_mul_f32 {vr(a+2,2)}, {vr(a+2,2)}, {vr(t+2,2)}
            v_cvt_pk_bf16_f32 v{z}, v{a}, v{a+1}
            v_cvt_pk_bf16_f32 v{z+1}, v{a+2}, v{a+3}
            """)
            if j & 1:
                p = j >> 1
                k(f"buffer_store_dwordx4 {vr(e*20+p*4,4)}, v{VL16}, s[20:23], s{60+p} offen offset:{e*2048}")
            elif j == 8:
                k(f"buffer_store_dwordx2 {vr(e*20+16,2)}, v{VT}, s[20:23], s64 offen offset:{e*2048}")
    if stamps:
        st(); k("s_waitcnt vmcnt(0)"); st()
    k("s_endpgm")
    k.label(Lprod)
    k(f"""
    s_sub_u32 s40, s33, 4            ; pw
    s_lshl_b32 s41, s40, 12
    s_lshl_b32 s42, s36, 14
    s_add_u32 s42, s42, s41          ; A goff
    s_mul_i32 s43, s37, 18432
    s_lshl_b32 s45, s40, 9
    s_add_u32 s44, s43, s45
    s_add_u32 s44, s44, 16384        ; B2 goff
    s_add_u32 s43, s43, s41          ; B goff
    s_add_u32 s47, s41, {BO}
    s_add_u32 s48, s45, {BO+16384}
    s_mov_b32 s49, 0
    """)
    def issue():
        k("s_add_u32 m0, s41, s49")
        for n in range(4): k(f"buffer_load_dwordx4 v1, s[8:11], s42 offen offset:{n*1024} lds")
        k("s_add_u32 m0, s47, s49")
        for n in range(4): k(f"buffer_load_dwordx4 v1, s[12:15], s43 offen offset:{n*1024} lds")
        k("s_add_u32 m0, s48, s49")
        k("s_mov_b32 exec_hi, 0")
        k("buffer_load_dwordx4 v1, s[12:15], s44 offen lds")
        k("s_mov_b32 exec_hi, -1")
        k(f"s_add_u32 s42, s42, {128*2048}")
        k(f"s_add_u32 s43, s43, {144*2048}")
        k(f"s_add_u32 s44, s44, {144*2048}")
        slot_adv_prod(k, R, SZ, 49)
    producer_loop(k, S, R, issue, 9, LA=OPT["la_g2"])
    k.label(Lend)
    k("s_endpgm")
    return k

def gen_g3(name, stamps=False):
    k = Kern(name); st = Stamps(k, stamps, 4)
    S, R, SZ, BO = 45, 8, 17408, 8192
    Lend, Lprod = k.lab("end"), k.lab("prod")
    preamble(k, 256, Lend, [(4, "ws"), (6, "x"), (64, "out")])
    k("""
    s_and_b32 s36, s34, 3
    s_lshl_b32 s36, s36, 3
    s_and_b32 s37, s35, 7
    s_add_u32 s36, s36, s37
    s_lshr_b32 s37, s34, 2
    s_lshl_b32 s37, s37, 2
    s_lshr_b32 s38, s35, 3
    s_add_u32 s37, s37, s38          ; nt
    s_waitcnt lgkmcnt(0)
    """)
    srd(k, 8, 4, A3_OFF, A3_SZ)
    srd(k, 12, 4, W3_OFF, W3_SZ)
    k(f"s_cmp_ge_u32 s33, 4\ns_cbranch_scc1 {Lprod}")
    srd(k, 16, 6, 0, 2048 * 1152)
    srd(k, 20, 64, 0, 2048 * 1152)
    st.init(); st(100)
    ACC, BUF = 56, [0, 28]
    VA0, VA1, VB, VBH, VL16, VO = 104, 105, 106, 107, 108, 109
    acc = lambda i, j: ACC + (i * 5 + j) * 4
    k(f"""
    s_and_b32 s40, s33, 1            ; mh
    s_lshr_b32 s41, s33, 1           ; kh
    v_mov_b32 v{VL16}, v1
    s_lshl_b32 s42, s40, 12
    s_lshl_b32 s43, s41, 10
    s_add_u32 s42, s42, s43
    s_lshl_b32 s44, s41, 11
    s_add_u32 s45, s42, s44
    v_add_u32 v{VA0}, s45, v1
    s_xor_b32 s44, s44, 2048
    s_add_u32 s45, s42, s44
    v_add_u32 v{VA1}, s45, v1
    s_add_u32 s45, s43, {BO}
    v_add_u32 v{VB}, s45, v1
    v_lshrrev_b32 v2, 4, v0          ; q
    v_and_b32 v3, 7, v0
    v_lshl_add_u32 v3, v2, 3, v3
    v_lshlrev_b32 v3, 4, v3
    s_lshl_b32 s45, s41, 9
    s_add_u32 s45, s45, {BO+8192}
    v_add_u32 v{VBH}, s45, v3
    s_lshl_b32 s46, s36, 2
    s_lshl_b32 s47, s40, 1
    s_add_u32 s46, s46, s47
    s_add_u32 s46, s46, s41          ; tfrag
    s_mul_i32 s46, s46, {16*1152}
    s_mul_i32 s47, s37, 144
    s_add_u32 s46, s46, s47
    v_and_b32 v3, 15, v0
    v_mul_u32_u24 v3, 1152, v3
    v_lshl_add_u32 v{VO}, v2, 3, v3
    """)
    for j in range(5): k(f"buffer_load_dwordx2 {vr(4+2*j,2)}, v{VO}, s[16:19], s46 offen offset:{j*32}")
    for r in range(acc(1, 0), acc(1, 4) + 4): k(f"v_mov_b32 v{r}, 0")
    adv_setup(k, R, SZ)
    k("s_waitcnt vmcnt(0)")
    for j in range(5):
        for h in range(2):
            k(f"v_lshlrev_b32 v{acc(0,j)+2*h}, 16, v{4+2*j+h}")
            k(f"v_and_b32 v{acc(0,j)+2*h+1}, 0xffff0000, v{4+2*j+h}")
    def reads(sub, b):
        o = [f"ds_read_b128 {vr(BUF[b],4)}, v{VA0}", f"ds_read_b128 {vr(BUF[b]+4,4)}, v{VA1}"]
        o += [f"ds_read_b128 {vr(BUF[b]+8+j*4,4)}, v{VB} offset:{j*2048}" for j in range(4)]
        o += [f"ds_read_b128 {vr(BUF[b]+24,4)}, v{VBH}"]
        return o
    def mfmas(b):
        return [f"v_mfma_f32_16x16x32_bf16 {vr(acc(i,j),4)}, {vr(BUF[b]+8+j*4,4)}, {vr(BUF[b]+i*4,4)}, {vr(acc(i,j),4)}"
                for j in range(5) for i in range(2)]
    last = consumer_loop(k, S, 1, reads, mfmas, adv_ins(R, [VA0, VA1, VB, VBH]), True, st=(lambda: st(100)))
    st(100)
    for m in mfmas(last): k(m)
    k("s_lshl_b32 s42, s40, 1")
    ksplit_reduce(k, acc(1, 0), 5, 42, 41, VL16, VA0, VA1, 0)
    for n in range(5): k(f"ds_read_b128 {vr(acc(1,0)+n*4,4)}, v{VA1} offset:{n*1024}")
    for j in range(5):
        k(f"s_waitcnt lgkmcnt({4-j})")
        a, b = acc(0, j), acc(1, j)
        k(f"v_pk_add_f32 {vr(a,2)}, {vr(a,2)}, {vr(b,2)}")
        k(f"v_pk_add_f32 {vr(a+2,2)}, {vr(a+2,2)}, {vr(b+2,2)}")
        k(f"v_cvt_pk_bf16_f32 v{2*j}, v{a}, v{a+1}")
        k(f"v_cvt_pk_bf16_f32 v{2*j+1}, v{a+2}, v{a+3}")
        if j == 4: k("s_mov_b32 exec_hi, 0")
        k(f"buffer_store_dwordx2 {vr(2*j,2)}, v{VO}, s[20:23], s46 offen offset:{j*32}")
    if stamps:
        k("s_mov_b32 exec_hi, -1")
        st(100); k("s_waitcnt vmcnt(0)"); st(100)
    k("s_endpgm")
    k.label(Lprod)
    k(f"""
    s_sub_u32 s40, s33, 4            ; pw
    s_lshl_b32 s41, s40, 11
    s_lshl_b32 s42, s36, 13
    s_add_u32 s42, s42, s41          ; A goff
    s_mul_i32 s43, s37, 9216
    s_lshl_b32 s45, s40, 8
    s_add_u32 s44, s43, s45
    s_add_u32 s44, s44, 8192         ; B2 goff
    s_add_u32 s43, s43, s41          ; B goff
    s_add_u32 s47, s41, {BO}
    s_add_u32 s48, s45, {BO+8192}
    s_mov_b32 s49, 0
    """)
    def issue():
        k("s_add_u32 m0, s41, s49")
        for n in range(2): k(f"buffer_load_dwordx4 v1, s[8:11], s42 offen offset:{n*1024} lds")
        k("s_add_u32 m0, s47, s49")
        for n in range(2): k(f"buffer_load_dwordx4 v1, s[12:15], s43 offen offset:{n*1024} lds")
        k("s_add_u32 m0, s48, s49")
        k("s_mov_b64 exec, 0xffff")
        k("buffer_load_dwordx4 v1, s[12:15], s44 offen lds")
        k("s_mov_b64 exec, -1")
        k(f"s_add_u32 s42, s42, {128*2048}")
        k(f"s_add_u32 s43, s43, {8*9216}")
        k(f"s_add_u32 s44, s44, {8*9216}")
        slot_adv_prod(k, R, SZ, 49)
    producer_loop(k, S, R, issue, 5, LA=OPT["la_g3"])
    k.label(Lend)
    k("s_endpgm")
    return k

HEADER = open("parallel_sum__sliding_local_dilated__mixer_gmlp__prompt.s.ref").read().split("; Override launch")[0] if __name__ == "__main__" else ""

def build(stamps=False, pf=0):
    return [
        (gen_prep("prep_kernel", pf), 96, 173 + (216 if pf else 0), 576, 73728),
        (gen_z2("z2_kernel", stamps), 256, 256, 512, 4 * 34816),
        (gen_z1qkv("z1qkv_kernel", stamps), 256, 256, 512, 3 * 51200),
        (gen_g2("g2_kernel", stamps), 256, 256, 512, 4 * 34816),
        (gen_g3("g3_kernel", stamps), 112, 256, 512, 8 * 17408),
    ]

if __name__ == "__main__":
    stamps = "stamps" in sys.argv[2:]
    for a in sys.argv[2:]:
        if "=" in a: OPT[a.split("=")[0]] = int(a.split("=")[1])
    pf = [int(a[2:]) for a in sys.argv[2:] if a.startswith("pf")]
    txt = assemble_file(HEADER + "; generated by a python script (tile loops, fragment layouts and wait states hand-designed)\n", build(stamps, pf[0] if pf else 0))
    if "sc1" in sys.argv[2:]:
        import re
        txt = re.sub(r"(?m)^(\s+buffer_store_dwordx4 .*offen( offset:[0-9]+)?)$", r"\1 sc1", txt)
    open(sys.argv[1], "w").write(txt)
```

```python
import sys, math, re
from asmlib import *
import gen2
from gen2 import *

CNT_OFF = 0x3420000; CNT_SZ = 16 * 128
SC1 = " sc1"

class VmTrack:
    def __init__(self): self.ops = []
    def add(self, tag, n=1): self.ops += [tag] * n
    def allowed(self, tag):
        idx = max(i for i, t in enumerate(self.ops) if t == tag)
        return len(self.ops) - 1 - idx

def qkv_voffs(k, vbase, spw):
    k(f"s_mul_i32 s51, s{spw}, 448")
    for n in range(7):
        k(f"""
        s_add_u32 s50, s51, {n*64}
        v_add_u32 v2, s50, v0
        v_mul_u32_u24 v3, 2341, v2
        v_lshrrev_b32 v3, 16, v3
        v_mul_u32_u24 v4, 28, v3
        v_sub_u32 v2, v2, v4             ; c'
        v_and_b32 v4, 4, v3
        v_lshrrev_b32 v5, 1, v4
        v_xor_b32 v2, v2, v5             ; c
        v_lshlrev_b32 v4, 1, v4
        v_and_b32 v5, 8, v3
        v_lshrrev_b32 v5, 1, v5
        v_or_b32 v4, v4, v5
        v_and_b32 v3, 0x33, v3
        v_or_b32 v3, v3, v4              ; k row
        v_mul_u32_u24 v3, 3456, v3
        v_mul_u32_u24 v4, 57, v2
        v_lshrrev_b32 v4, 9, v4          ; seg = c/9
        v_mul_u32_u24 v5, {1152-144}, v4
        v_lshl_add_u32 v5, v2, 4, v5
        v_add_u32 v3, v3, v5
        v_mov_b32 v5, 0x80000000
        v_cmp_gt_u32 vcc, 27, v2
        v_cndmask_b32 v{vbase+n}, v5, v3, vcc
        """)

def reduce16(k, sets, smask):
    for half, dpp in ((8, "row_ror:8"), (4, "row_half_mirror")):
        lo, hi = (0x3, 0xc) if half == 8 else (0x5, 0xa)
        for m in range(half):
            for R in sets:
                k(f"v_add_f32_dpp v{R[m]}, v{R[m]}, v{R[m]} {dpp} row_mask:0xf bank_mask:{lo:#x}")
        for m in range(half):
            for R in sets:
                k(f"v_add_f32_dpp v{R[m]}, v{R[m+half]}, v{R[m+half]} {dpp} row_mask:0xf bank_mask:{hi:#x}")
    for qp in ("quad_perm:[1,0,3,2]", "quad_perm:[2,3,0,1]"):
        for m in range(4):
            for R in sets:
                k(f"v_add_f32_dpp v{R[m]}, v{R[m]}, v{R[m]} {qp} row_mask:0xf bank_mask:0xf")
    for m in range(1, 4):
        for R in sets:
            k(f"v_cndmask_b32 v{R[0]}, v{R[0]}, v{R[m]}, s[{smask+2*(m-1)}:{smask+2*(m-1)+1}]")

def gen_k1(name, stamps=False):
    k = Kern(name); st = Stamps(k, stamps, 1)
    R, SZ = 3, 51200
    BO1, BOZ, BOQ = 16384, 32768, 18432
    L = {n: k.lab(n) for n in "end tq tdone P C2q att Patt".split()}
    preamble(k, 256, L["end"], [(4, "ws"), (6, "w_in"), (64, "wqkv"), (66, "w_sp")])
    k(f"""
    s_and_b32 s36, s34, 1
    s_lshl_b32 s36, s36, 3
    s_and_b32 s37, s35, 7
    s_add_u32 s36, s36, s37          ; z2 mt
    s_lshr_b32 s37, s34, 1
    s_lshl_b32 s37, s37, 2
    s_lshr_b32 s38, s35, 3
    s_add_u32 s37, s37, s38          ; z2 nt
    s_and_b32 s40, s33, 3
    s_waitcnt lgkmcnt(0)
    s_lshr_b32 s32, s35, 4
    s_cmp_lg_u32 s32, 0
    s_cbranch_scc1 {L['tq']}
    s_and_b32 s38, s34, 1
    s_lshl_b32 s38, s38, 2
    s_and_b32 s39, s35, 3
    s_add_u32 s38, s38, s39
    s_lshr_b32 s39, s34, 1
    s_lshl_b32 s39, s39, 2
    s_lshr_b32 s50, s35, 2
    s_add_u32 s39, s39, s50          ; z1 nt
    s_lshl_b32 s63, s40, 13          ; mA
    s_lshl_b32 s60, s38, 15
    s_add_u32 s60, s60, s63          ; sA
    s_add_u32 s61, s60, 4096         ; sX
    s_mul_i32 s62, s39, 288          ; sY
    s_mov_b32 s3, s62                ; sZ
    s_add_u32 s88, s63, 4096         ; mX
    s_lshl_b32 s89, s40, 12
    s_add_u32 s89, s89, {BOZ}        ; mY
    s_add_u32 s100, s89, 3072        ; mY3
    s_lshl_b32 s101, s40, 9
    s_add_u32 s101, s101, {BOZ+16384} ; mZ
    s_mov_b32 s0, {128*2048}         ; dX
    s_mov_b32 s1, {64*9216}          ; dY
    s_mov_b32 s45, {64*9216}         ; dZ
    s_branch {L['tdone']}
    {L['tq']}:
    s_mov_b32 s38, s36
    s_lshr_b32 s39, s34, 1
    s_lshl_b32 s39, s39, 1
    s_bfe_u32 s50, s35, 0x10003
    s_add_u32 s39, s39, s50          ; hg
    s_lshl_b32 s63, s40, 12
    s_lshl_b32 s60, s38, 14
    s_lshl_b32 s101, s40, 9
    s_sub_u32 s3, s60, 2048
    s_cmp_eq_u32 s38, 0
    s_cselect_b32 s3, 0, s3
    s_add_u32 s3, s3, s101           ; sZ
    s_add_u32 s60, s60, s63          ; sA
    s_add_u32 s63, s63, 2048         ; mA
    s_mul_i32 s61, s39, 144          ; sX
    s_mov_b32 s62, s61               ; sY
    s_mul_i32 s88, s40, 7168
    s_add_u32 s88, s88, {BOQ}        ; mX
    s_add_u32 s89, s88, 4096         ; mY
    s_lshl_b32 s100, s40, 10
    s_add_u32 s100, s100, {BOQ+28672}
    s_mov_b32 s0, {64*3456}
    s_mov_b32 s1, {64*3456}
    s_mov_b32 s45, {128*2048}
    {L['tdone']}:
    s_waitcnt lgkmcnt(0)
    """)
    srd(k, 8, 4, XN_OFF, XN_SZ)
    srd(k, 12, 6, 0, 576 * 9216)
    srd(k, 16, 4, Z1P_OFF, Z1P_SZ)
    srd(k, 20, 4, ST_OFF, ST_SZ)
    srd(k, 24, 66, 0, 2048 * 4096)
    srd(k, 28, 4, WSP_OFF, WSP_SZ)
    srd(k, 68, 4, CT_OFF, CT_SZ)
    srd(k, 76, 4, A3_OFF, A3_SZ)
    srd(k, 80, 4, Z2T_OFF, Z2T_SZ)
    srd(k, 84, 4, CNT_OFF, CNT_SZ)
    st.init()
    k(f"""
    s_cmp_eq_u32 s32, 0
    s_cselect_b32 s72, s12, s64
    s_cselect_b32 s73, s13, s65
    s_cselect_b32 s64, s8, s64
    s_cselect_b32 s65, s9, s65
    s_cselect_b32 s4, s12, s8
    s_cselect_b32 s5, s13, s9
    s_cselect_b32 s6, s14, s10
    s_mov_b32 s74, {576*3456}
    s_cselect_b32 s66, s10, s74
    s_cselect_b32 s74, s14, s74
    s_mov_b32 s7, 0x20000
    s_mov_b32 s67, 0x20000
    s_mov_b32 s75, 0x20000
    """)
    k(f"s_cmp_ge_u32 s33, 4\ns_cbranch_scc1 {L['P']}")

    def issue2_groups(V, vl16):
        g = []
        for n in range(4):
            g.append((["s_add_u32 m0, s63, s49"] if n == 0 else []) + [f"buffer_load_dwordx4 v{vl16}, s[8:11], s60 offen offset:{n*1024} lds"])
        g[3] += ["s_add_u32 s51, s88, s49"]
        for n in range(4):
            g.append([f"s_add_u32 m0, s51, {n*1024}", f"buffer_load_dwordx4 v{V+n}, s[64:67], s61 offen lds"])
        g[7] += ["s_add_u32 s51, s89, s49"]
        for n in range(3):
            g.append([f"s_add_u32 m0, s51, {n*1024}", f"buffer_load_dwordx4 v{V+4+n}, s[72:75], s62 offen lds"])
        g.append(["s_add_u32 m0, s100, s49", f"buffer_load_dwordx4 v{V+7}, s[72:75], s62 offen lds"])
        g.append(["s_add_u32 m0, s101, s49", "s_mov_b32 exec_hi, 0", f"buffer_load_dwordx4 v{V+8}, s[4:7], s3 offen lds", "s_mov_b32 exec_hi, -1",
                  f"s_add_u32 s60, s60, {128*2048}", "s_add_u32 s61, s61, s0", "s_add_u32 s62, s62, s1", "s_add_u32 s3, s3, s45",
                  f"s_add_u32 s49, s49, {SZ}", f"s_cmp_eq_u32 s49, {R*SZ}", "s_cselect_b32 s49, 0, s49"])
        return g
    def issue2(V, vl16):
        for g in issue2_groups(V, vl16):
            for x in g: k(x)
    def voffs2(V, vl16):
        Lq, Ld = k.lab("vq"), k.lab("vd")
        for r in range(V, V + 9): k(f"v_mov_b32 v{r}, 0x80000000")
        k(f"s_cmp_lg_u32 s32, 0\ns_cbranch_scc1 {Lq}")
        w144_voffs(k, V + 4, 40, 9216, 2)
        for n in range(4): k(f"v_add_u32 v{V+n}, {n*1024}, v{vl16}")
        k(f"s_branch {Ld}")
        k.label(Lq)
        qkv_voffs(k, V, 40)
        k(f"v_mov_b32 v{V+8}, v{vl16}")
        k.label(Ld)
    N2 = 13


    cnt = ["s_sub_u32 s58, s58, 1", "s_cmp_lg_u32 s58, 0"]
    def loop2(reads, half, adv, vmw):
        Ltop = k.lab("top")
        k("s_mov_b32 s58, 8")
        k("s_barrier")
        st()
        for r in reads(0, 0): k(r)
        k("s_waitcnt lgkmcnt(0)")
        half(0, reads(1, 1) + adv, True)
        k("s_waitcnt lgkmcnt(0)")
        k.label(Ltop)
        k("s_barrier")
        half(1, reads(0, 0), False)
        k("s_waitcnt lgkmcnt(0)")
        half(0, reads(1, 1) + adv + cnt, False)
        k("s_waitcnt vmcnt(0) lgkmcnt(0)" if vmw else "s_waitcnt lgkmcnt(0)")
        k(f"s_cbranch_scc1 {Ltop}")
        st()
    st()
    ACC, BUF = 104, [0, 36]
    VA, VB, VL16, VLN = 244, 245, 246, 247
    acc = lambda i, j: ACC + (i * 5 + j) * 4
    k(f"""
    s_and_b32 s41, s40, 1            ; wm
    s_lshr_b32 s42, s40, 1           ; wn
    v_mov_b32 v{VL16}, v1
    v_mov_b32 v{VLN}, v0
    s_lshl_b32 s43, s41, 13
    v_add_u32 v{VA}, s43, v1
    """)
    tr_lane_base(k, VB, 288, 2)
    k(f"s_mul_i32 s43, s42, 160\ns_add_u32 s43, s43, {BO1}\nv_add_u32 v{VB}, s43, v{VB}")
    Lq, Ld = k.lab("cq"), k.lab("cd")
    ZA, ZB, ZL16, ZL8 = 248, 249, 250, 251
    QA, QBE, QBO, QW = 248, 249, 250, 251
    k(f"s_cmp_lg_u32 s32, 0\ns_cbranch_scc1 {Lq}")
    k(f"""
    v_mov_b32 v{ZL16}, v1
    v_lshrrev_b32 v{ZL8}, 1, v1
    s_lshl_b32 s50, s40, 13
    v_add_u32 v{ZA}, s50, v1
    """)
    tr_lane_base(k, ZB, 288, 2)
    k(f"v_add_u32 v{ZB}, {BOZ}, v{ZB}")
    k(f"s_branch {Ld}")
    k.label(Lq)
    k(f"v_add_u32 v{QA}, s43, v1\nv_mov_b32 v{QA}, v{VA}")
    tr_lane_base(k, QBE, 448, 2)
    k(f"""
    s_mul_i32 s50, s42, 224
    s_add_u32 s50, s50, {BOQ}
    v_add_u32 v{QBE}, s50, v{QBE}
    v_lshlrev_b32 v2, 5, v2
    v_sub_u32 v3, 0, v2
    s_cmp_eq_u32 s42, 0
    s_cselect_b64 vcc, -1, 0
    v_cndmask_b32 v4, v3, v2, vcc
    v_sub_u32 v{QBO}, v{QBE}, v4
    v_add_u32 v{QBE}, v{QBE}, v4
    v_and_b32 v2, 15, v0
    s_lshl_b32 s50, s41, 6
    v_add_u32 v2, s50, v2
    v_mul_u32_u24 v{QW}, 440, v2
    v_lshrrev_b32 v2, 4, v0
    v_lshl_add_u32 v{QW}, v2, 3, v{QW}
    s_mul_i32 s50, s42, 224
    v_add_u32 v{QW}, s50, v{QW}
    """)
    k.label(Ld)
    k(f"""
    s_cmp_eq_u32 s42, 0
    s_cselect_b64 vcc, -1, 0
    s_cselect_b32 s54, -1, 0
    s_lshl_b32 s46, s36, 1
    s_add_u32 s46, s46, s41          ; g2 stage
    s_mul_i32 s46, s46, 144
    s_mul_i32 s47, s37, 9
    s_add_u32 s46, s46, s47
    s_mul_i32 s47, s42, 5
    s_add_u32 s46, s46, s47
    s_lshl_b32 s46, s46, 11
    """)
    C, T, O, SM = 72, 80, 88, 184
    gelu_consts(k, C)
    for r in range(SM, SM + 32): k(f"v_mov_b32 v{r}, 0")
    adv_setup(k, R, SZ)
    def reads1(sub, b):
        o = [f"ds_read_b128 {vr(BUF[b]+i*4,4)}, v{VA} offset:{i*2048+sub*1024}" for i in range(4)]
        for j in range(5):
            for hh in range(2):
                o.append(f"ds_read_b64_tr_b16 {vr(BUF[b]+16+j*4+hh*2,2)}, v{VB} offset:{sub*32*288+hh*8*288+j*32}")
        return o
    def mf1(b, js, zero):
        return [f"v_mfma_f32_16x16x32_bf16 {vr(acc(i,j),4)}, {vr(BUF[b]+i*4,4)}, {vr(BUF[b]+16+j*4,4)}, {'0' if zero else vr(acc(i,j),4)}"
                for j in js for i in range(4)]
    def half1(b, other, zero):
        for x in interleave(mf1(b, range(4), zero), other): k(x)
        Ls = k.lab("sk")
        k(f"s_cbranch_vccz {Ls}")
        for x in mf1(b, [4], zero): k(x)
        k.label(Ls)
    loop2(reads1, half1, adv_ins(R, [VA, VB]), False)
    half1(1, [], False)
    n = 0
    for jj in range(5):
        if jj == 4:
            Ls = k.lab("us"); k(f"s_cbranch_vccz {Ls}")
        for P in range(2):
            a, b = acc(2 * P, jj), acc(2 * P + 1, jj)
            gelu(k, [a, a + 2, b, b + 2], T, C)
            o = O + (n & 1) * 4; n += 1
            for x, q in enumerate([a, a + 2, b, b + 2]): k(f"v_cvt_pk_bf16_f32 v{o+x}, v{q}, v{q+1}")
            k(f"buffer_store_dwordx4 {vr(o,4)}, v{VL16}, s[80:83], s46 offen offset:{P*1024}{SC1}")
            for e, q in enumerate([a, b]):
                i = 2 * P + e
                for h in range(2):
                    k(f"v_pk_add_f32 {vr(SM+4*i+2*h,2)}, {vr(SM+4*i+2*h,2)}, {vr(q+2*h,2)}")
                    k(f"v_pk_fma_f32 {vr(SM+16+4*i+2*h,2)}, {vr(q+2*h,2)}, {vr(q+2*h,2)}, {vr(SM+16+4*i+2*h,2)}")
        if jj < 4: k("s_add_u32 s46, s46, 2048")
    k.label(Ls)
    for m in range(1, 4):
        v = 0x11111111 << m
        k(f"s_mov_b32 s{58+2*m}, {v:#x}\ns_mov_b32 s{59+2*m}, {v:#x}")
    val = lambda P, i: SM + (i & 1) * 16 + (2 * P + (i >> 3)) * 4 + ((i >> 1) & 3)
    sets = [[val(P, i) for i in range(16)] for P in range(2)]
    reduce16(k, sets, 60)
    k(f"""
    v_bfe_u32 v{T+1}, v{VLN}, 3, 1
    v_lshlrev_b32 v{T+1}, 5, v{T+1}
    v_lshrrev_b32 v{T+2}, 4, v{VLN}
    v_lshl_add_u32 v{T+1}, v{T+2}, 3, v{T+1}
    v_and_b32 v{T+2}, 7, v{VLN}
    v_add_lshl_u32 v{T+1}, v{T+1}, v{T+2}, 2
    s_lshl_b32 s46, s36, 10
    s_lshl_b32 s47, s41, 9
    s_add_u32 s46, s46, s47
    buffer_atomic_add_f32 v{sets[0][0]}, v{T+1}, s[20:23], s46 offen
    buffer_atomic_add_f32 v{sets[1][0]}, v{T+1}, s[20:23], s46 offen offset:256
    """)
    st()
    k(f"s_cmp_lg_u32 s32, 0\ns_cbranch_scc1 {L['C2q']}")
    ACZ, BZ = 104, [0, 52]
    acz = lambda i, j: ACZ + (i * 9 + j) * 4
    def readsz(sub, b):
        o = [f"ds_read_b128 {vr(BZ[b]+i*4,4)}, v{ZA} offset:{i*2048+sub*1024}" for i in range(4)]
        for j in range(9):
            for hh in range(2):
                o.append(f"ds_read_b64_tr_b16 {vr(BZ[b]+16+j*4+hh*2,2)}, v{ZB} offset:{sub*32*288+hh*8*288+j*32}")
        return o
    def halfz(b, other, zero):
        mf = [f"v_mfma_f32_16x16x32_bf16 {vr(acz(i,j),4)}, {vr(BZ[b]+16+j*4,4)}, {vr(BZ[b]+i*4,4)}, {'0' if zero else vr(acz(i,j),4)}"
              for i in range(4) for j in range(9)]
        for x in interleave(mf, other): k(x)
    loop2(readsz, halfz, adv_ins(R, [ZA, ZB]), True)
    halfz(1, [], False)
    C, T, O = 0, 8, 16
    gelu_consts(k, C)
    k(f"""
    s_lshl_b32 s46, s38, 4
    s_lshl_b32 s47, s40, 2
    s_add_u32 s46, s46, s47
    s_lshl_b32 s46, s46, 4
    s_add_u32 s46, s46, s39
    s_mul_i32 s46, s46, 4608
    """)
    n = 0
    for i in range(4):
        for p in range(4):
            a, b = acz(i, 2 * p), acz(i, 2 * p + 1)
            gelu(k, [a, a + 2, b, b + 2], T, C)
            o = O + (n & 1) * 4; n += 1
            for x, q in enumerate([a, a + 2, b, b + 2]): k(f"v_cvt_pk_bf16_f32 v{o+x}, v{q}, v{q+1}")
            k(f"buffer_store_dwordx4 {vr(o,4)}, v{ZL16}, s[16:19], s46 offen offset:{p*1024}{SC1}")
        k(f"s_add_u32 s{48+i}, s46, 4096")
        if i < 3: k(f"s_add_u32 s46, s46, {16*4608}")
    for i in (0, 2):
        a, b = acz(i, 8), acz(i + 1, 8)
        gelu(k, [a, a + 2, b, b + 2], T, C)
        o = O + (n & 1) * 4; n += 1
        for x, q in enumerate([a, a + 2, b, b + 2]): k(f"v_cvt_pk_bf16_f32 v{o+x}, v{q}, v{q+1}")
        k(f"buffer_store_dwordx2 {vr(o,2)}, v{ZL8}, s[16:19], s{48+i} offen")
        k(f"buffer_store_dwordx2 {vr(o+2,2)}, v{ZL8}, s[16:19], s{49+i} offen")
    if stamps:
        st(); k("s_waitcnt vmcnt(0)"); st()
    k("s_endpgm")
    k.label(L["P"])
    VLN, VL16, W, VWA = 0, 1, 64, 26
    k(f"""
    s_lshl_b32 s41, s40, 12
    s_lshl_b32 s42, s36, 14
    s_add_u32 s42, s42, s41          ; A goff
    s_mul_i32 s43, s37, 288
    s_add_u32 s43, s43, 4608         ; B goff
    s_lshl_b32 s48, s40, 9
    s_add_u32 s47, s41, {BO1}
    s_add_u32 s48, s48, {BO1+16384}
    s_mov_b32 s49, 0
    """)
    def issue1A():
        k("s_add_u32 m0, s41, s49")
        for n in range(4): k(f"buffer_load_dwordx4 v1, s[8:11], s42 offen offset:{n*1024} lds")
    def issue1B():
        k("s_add_u32 s50, s47, s49")
        for n in range(4):
            k(f"s_add_u32 m0, s50, {n*1024}")
            k(f"buffer_load_dwordx4 v{8+n}, s[12:15], s43 offen lds")
        k("s_add_u32 m0, s48, s49")
        k("s_mov_b32 exec_hi, 0")
        k("buffer_load_dwordx4 v12, s[12:15], s43 offen lds")
        k("s_mov_b32 exec_hi, -1")
        k(f"s_add_u32 s42, s42, {128*2048}")
        k(f"s_add_u32 s43, s43, {64*9216}")
        slot_adv_prod(k, R, SZ, 49)
    issue1A()
    w144_voffs(k, 8, 40, 9216, 2)
    issue1B(); issue1A(); issue1B()
    voffs2(16, 1)
    k(f"""
    s_lshl_b32 s44, s34, 4
    s_add_u32 s44, s44, s35          ; tf
    s_lshl_b32 s46, s44, 16
    s_lshl_b32 s50, s40, 10
    s_add_u32 s46, s46, s50
    s_cmp_eq_u32 s32, 0
    s_cselect_b32 s46, s46, 0x7fffffff
    v_and_b32 v{VWA}, 15, v0
    v_lshlrev_b32 v{VWA}, 12, v{VWA}
    v_lshrrev_b32 v3, 4, v0
    v_lshl_add_u32 v{VWA}, v3, 4, v{VWA}
    v_and_b32 v27, 15, v0
    v_lshlrev_b32 v27, 7, v27
    v_lshlrev_b32 v28, 6, v0
    s_mov_b32 s58, 7
    """)
    Lp1, Lp2 = k.lab("p1"), k.lab("p2")
    k.label(Lp1)
    k("s_waitcnt vmcnt(9)")
    k("s_barrier")
    issue1A(); issue1B()
    k(f"s_sub_u32 s58, s58, 1\ns_cmp_lg_u32 s58, 0\ns_cbranch_scc1 {Lp1}")
    k("s_waitcnt vmcnt(9)")
    k("s_barrier")
    issue2(16, 1)
    k(f"s_waitcnt vmcnt({N2})")
    k("s_barrier")
    issue2(16, 1)
    for P in range(16): k(f"buffer_load_dwordx4 {vr(W+4*P,4)}, v{VWA}, s[24:27], s46 offen offset:{P*64}")
    k(f"s_waitcnt vmcnt({N2+16})")
    k("s_barrier")
    issue2(16, 1)
    k(f"s_waitcnt vmcnt({N2+16})")
    k("s_barrier")
    issue2(16, 1)
    k(f"s_waitcnt vmcnt({N2})")
    k("s_barrier")
    Ls = k.lab("nc")
    k(f"""
    s_cmp_lg_u32 s40, 0
    s_cbranch_scc1 {Ls}
    v_mov_b32 v2, 1
    v_mov_b32 v4, 0
    s_lshl_b32 s50, s36, 7
    s_mov_b64 exec, 1
    buffer_atomic_add v2, v4, s[84:87], s50 offen
    s_mov_b64 exec, -1
    {Ls}:
    s_mov_b32 s58, 4
    """)
    k.label(Lp2)
    issue2(16, 1)
    k(f"s_sub_u32 s58, s58, 1\ns_cmp_lg_u32 s58, 0")
    k(f"s_waitcnt vmcnt({N2})")
    k("s_barrier")
    k(f"s_cbranch_scc1 {Lp2}")
    Lp, Lpd, Lnf = k.lab("poll"), k.lab("pd"), k.lab("nf")
    def stat_loads():
        k("s_lshl_b32 s41, s40, 12")
        for i in range(4): k(f"buffer_load_dwordx4 {vr(128+4*i,4)}, v28, s[20:23], s41 offen offset:{16*i} sc1")
    k("buffer_load_dword v5, v27, s[84:87], 0 offen sc1")
    issue2(16, 1)
    k(f"s_waitcnt vmcnt({N2})")
    k(f"v_cmp_ne_u32 vcc, 16, v5\ns_cbranch_vccnz {Lnf}")
    stat_loads()
    k.label(Lnf)
    k("s_barrier")
    k("s_waitcnt vmcnt(0)")
    k("s_barrier")
    st(250)
    k(f"s_cmp_lg_u32 s32, 0\ns_cbranch_scc1 {L['Patt']}")
    k(f"""
    s_cbranch_vccz {Lpd}
    s_mov_b32 s50, 0x40000
    {Lp}:
    s_sleep 2
    buffer_load_dword v5, v27, s[84:87], 0 offen sc1
    s_waitcnt vmcnt(0)
    s_sub_u32 s50, s50, 1
    v_cmp_ne_u32 vcc, 16, v5
    s_cmp_eq_u32 s50, 0
    s_cselect_b64 vcc, 0, vcc
    s_cbranch_vccnz {Lp}
    """)
    stat_loads()
    k("s_waitcnt vmcnt(0)")
    k.label(Lpd)
    for i in range(16): k(f"v_mov_b32 v{16+i}, v{128+i}")
    RR, MM = 32, 40
    inv = f2u(1.0 / 2304)
    for i in range(8): k(f"v_mul_f32 v{16+2*i}, {inv:#x}, v{16+2*i}")
    for i in range(8): k(f"v_mul_f32 v{17+2*i}, {inv:#x}, v{17+2*i}")
    for i in range(8): k(f"v_fma_f32 v{17+2*i}, -v{16+2*i}, v{16+2*i}, v{17+2*i}")
    for i in range(8): k(f"v_max_f32 v{17+2*i}, 0, v{17+2*i}")
    for i in range(4): k(f"v_cvt_pk_bf16_f32 v{MM+i}, v{16+4*i}, v{18+4*i}")
    def rnd8():
        for i in range(4): k(f"v_cvt_pk_bf16_f32 v{44+i}, v{17+4*i}, v{19+4*i}")
        for i in range(4):
            k(f"v_lshlrev_b32 v{17+4*i}, 16, v{44+i}")
            k(f"v_and_b32 v{19+4*i}, 0xffff0000, v{44+i}")
    rnd8()
    for i in range(8): k(f"v_add_f32 v{17+2*i}, {f2u(1e-5):#x}, v{17+2*i}")
    rnd8()
    for i in range(8): k(f"v_sqrt_f32 v{17+2*i}, v{17+2*i}")
    rnd8()
    for i in range(8): k(f"v_rcp_f32 v{RR+i}, v{17+2*i}")
    k(f"""
    s_mul_i32 s52, s40, 3072
    v_lshlrev_b32 v4, 5, v{VLN}
    v_add_u32 v4, s52, v4
    ds_write_b128 v4, v[32:35]
    ds_write_b128 v4, v[36:39] offset:16
    v_add_u32 v4, s52, v{VL16}
    ds_write_b128 v4, v[40:43] offset:2048
    v_lshlrev_b32 v4, 5, v3
    v_add_u32 v4, s52, v4
    v_lshlrev_b32 v5, 4, v3
    v_add_u32 v5, s52, v5
    v_mov_b32 v6, 0
    s_lshl_b32 s53, s40, 21
    s_lshl_b32 s54, s44, 11
    s_add_u32 s53, s53, s54
    s_waitcnt lgkmcnt(0)
    """)
    RB = [136, 148]
    def rd(P):
        b = RB[P & 1]
        k(f"ds_read_b128 {vr(b,4)}, v4 offset:{P*128}")
        k(f"ds_read_b128 {vr(b+4,4)}, v4 offset:{P*128+16}")
        k(f"ds_read_b128 {vr(b+8,4)}, v5 offset:{2048+P*64}")
    rd(0)
    for P in range(16):
        if P < 15: rd(P + 1)
        k(f"s_waitcnt lgkmcnt({3 if P < 15 else 0})")
        b, w, t = RB[P & 1], W + 4 * P, 128
        for i in range(4):
            k(f"v_lshlrev_b32 v{t+2*i}, 16, v{w+i}")
            k(f"v_and_b32 v{t+2*i+1}, 0xffff0000, v{w+i}")
        for i in range(4): k(f"v_pk_mul_f32 {vr(t+2*i,2)}, {vr(t+2*i,2)}, {vr(b+2*i,2)}")
        for i in range(4): k(f"v_cvt_pk_bf16_f32 v{w+i}, v{t+2*i}, v{t+2*i+1}")
        for i in range(4): k(f"v_dot2c_f32_bf16 v6, v{w+i}, v{b+8+i}")
        k(f"v_permlane16_swap_b32 v{w}, v{w+2}")
        k(f"v_permlane16_swap_b32 v{w+1}, v{w+3}")
        k(f"v_permlane32_swap_b32 v{w}, v{w+2}")
        k(f"v_permlane32_swap_b32 v{w+1}, v{w+3}")
        k(f"buffer_store_dwordx4 {vr(w,4)}, v{VL16}, s[28:31], s53 offen offset:{(P&1)*1024}{SC1}")
        if P & 1: k(f"s_add_u32 s53, s53, {128*2048}")
    k(f"""
    v_mov_b32 v7, v6
    v_permlane16_swap_b32 v6, v7
    v_add_f32 v6, v6, v7
    v_mov_b32 v7, v6
    v_permlane32_swap_b32 v6, v7
    v_add_f32 v6, v6, v7
    s_lshl_b32 s53, s40, 13
    s_lshl_b32 s54, s44, 6
    s_add_u32 s53, s53, s54
    v_lshlrev_b32 v7, 2, v{VLN}
    s_mov_b64 exec, 0xffff
    buffer_store_dword v6, v7, s[68:71], s53 offen
    """)
    if stamps:
        k("s_mov_b64 exec, -1"); st(250); k("s_waitcnt vmcnt(0)"); st(250)
    k("s_endpgm")
    k.label(L["Patt"])
    k("s_barrier")
    k(f"s_branch {L['att']}")
    k.label(L["C2q"])
    ACQ, BQ = 104, [0, 48]
    acq = lambda i, j: ACQ + (i * 7 + j) * 4
    def readsq(sub, b):
        o = [f"ds_read_b128 {vr(BQ[b]+i*4,4)}, v{QA} offset:{i*2048+sub*1024}" for i in range(5)]
        for j in range(7):
            for hh in range(2):
                o.append(f"ds_read_b64_tr_b16 {vr(BQ[b]+20+j*4+hh*2,2)}, v{QBO if j & 1 else QBE} offset:{sub*32*448+hh*8*448+j*32}")
        return o
    def halfq(b, other, zero):
        mf = [f"v_mfma_f32_16x16x32_bf16 {vr(acq(i,j),4)}, {vr(BQ[b]+20+j*4,4)}, {vr(BQ[b]+i*4,4)}, {'0' if zero else vr(acq(i,j),4)}"
              for i in range(5) for j in range(7)]
        for x in interleave(mf, other): k(x)
    loop2(readsq, halfq, adv_ins(R, [QA, QBE, QBO]), True)
    k("s_barrier")
    halfq(1, [], False)
    n = 0
    for j in range(7):
        if j == 6: k("s_mov_b32 exec_hi, s54")
        for i in range(5):
            a = acq(i, j); o = (n & 3) * 2; n += 1
            k(f"v_cvt_pk_bf16_f32 v{o}, v{a}, v{a+1}")
            k(f"v_cvt_pk_bf16_f32 v{o+1}, v{a+2}, v{a+3}")
            k(f"ds_write_b64 v{QW}, {vr(o,2)} offset:{i*16*440+j*32}")
    k("s_mov_b32 exec_hi, -1")
    k("s_waitcnt lgkmcnt(0)")
    k("v_mbcnt_lo_u32_b32 v0, -1, 0")
    k("v_mbcnt_hi_u32_b32 v0, -1, v0")
    k.label(L["att"])
    k(f"""
    s_lshr_b32 s41, s33, 2
    s_and_b32 s42, s40, 1
    s_lshl_b32 s43, s41, 6
    s_add_u32 s44, s43, 2
    v_add_u32 v2, s44, v0
    v_mul_u32_u24 v2, 440, v2
    s_mul_i32 s44, s40, 36
    s_lshl_b32 s45, s42, 2
    s_add_u32 s45, s45, s44
    v_add_u32 v3, s45, v2
    s_xor_b32 s45, s42, 1
    s_lshl_b32 s45, s45, 5
    s_add_u32 s45, s45, s44
    v_add_u32 v2, s45, v2
    s_lshl_b32 s46, s38, 7
    s_add_u32 s46, s46, s43
    v_add_u32 v4, s46, v0            ; t
    v_lshrrev_b32 v5, 4, v4
    v_lshlrev_b32 v5, 11, v5
    v_and_b32 v6, 15, v4
    v_lshl_add_u32 v5, v6, 4, v5
    s_mul_i32 s46, s39, 72
    s_mul_i32 s47, s40, 18
    s_add_u32 s46, s46, s47
    s_mov_b32 s62, 0x05040100
    s_mov_b32 s63, 0x07060302
    """)
    SO = [58, 59, 60, 61, 88, 89, 64, 65, 66]
    for i in range(9):
        if i < 8: k(f"s_add_u32 s47, s42, {i}")
        else: k("s_xor_b32 s47, s42, 1\ns_lshl_b32 s47, s47, 3")
        k(f"""
        s_lshl_b32 s47, s47, 1
        s_add_u32 s47, s47, s46
        s_lshr_b32 s48, s47, 6
        s_lshl_b32 s48, s48, 18
        s_bfe_u32 s49, s47, 0x30003
        s_lshl_b32 s49, s49, 8
        s_add_u32 s48, s48, s49
        s_and_b32 s49, s47, 7
        s_lshl_b32 s49, s49, 1
        s_add_u32 s{SO[i]}, s48, s49
        """)
    k("s_barrier")
    st(20)
    Q, KK, VV, LL, PP, OA = 24, 36, 116, 200, 210, 216
    def rdvec(dst, row, part):
        for h in range(4): k(f"ds_read_b64 {vr(dst+2*h,2)}, v3 offset:{row*440+part*144+8*h}")
        k(f"ds_read_b32 v{dst+8}, v2 offset:{row*440+part*144}")
    vecs = [(Q, 14, 0)] + [(KK + 10 * w, 14 - 2 * w, 1) for w in range(8)] + [(VV + 10 * w, 14 - 2 * w, 2) for w in range(8)]
    for v in vecs[:4]: rdvec(*v)
    nxt = 4
    for w in range(8): k(f"v_mov_b32 v{LL+w}, 0")
    for w in range(8):
        k("s_waitcnt lgkmcnt(10)")
        for i in range(9): k(f"v_dot2c_f32_bf16 v{LL+w}, v{Q+i}, v{KK+10*w+i}")
        rdvec(*vecs[nxt]); nxt += 1
    while nxt < len(vecs):
        rdvec(*vecs[nxt]); nxt += 1
    sc = f2u(18.0 ** -0.5)
    def rndL():
        for i in range(4): k(f"v_cvt_pk_bf16_f32 v{PP+i}, v{LL+2*i}, v{LL+2*i+1}")
        for i in range(4):
            k(f"v_lshlrev_b32 v{LL+2*i}, 16, v{PP+i}")
            k(f"v_and_b32 v{LL+2*i+1}, 0xffff0000, v{PP+i}")
    rndL()
    for w in range(8): k(f"v_mul_f32 v{LL+w}, {sc:#x}, v{LL+w}")
    rndL()
    k(f"v_mov_b32 v6, {f2u(-1e9):#x}")
    for w in range(1, 8):
        k(f"v_cmp_le_u32 s[{50+2*(w&3)}:{51+2*(w&3)}], {2*w}, v4")
        if w > 1: k(f"v_cndmask_b32 v{LL+w-1}, v6, v{LL+w-1}, s[{50+2*((w-1)&3)}:{51+2*((w-1)&3)}]")
    k(f"v_cndmask_b32 v{LL+7}, v6, v{LL+7}, s[56:57]")
    k(f"v_max3_f32 v7, v{LL}, v{LL+1}, v{LL+2}")
    k(f"v_max3_f32 v8, v{LL+3}, v{LL+4}, v{LL+5}")
    k(f"v_max3_f32 v7, v7, v{LL+6}, v{LL+7}")
    k(f"v_max_f32 v7, v7, v8")
    l2e = f2u(math.log2(math.e))
    for w in range(8): k(f"v_sub_f32 v{LL+w}, v{LL+w}, v7")
    for w in range(8): k(f"v_mul_f32 v{LL+w}, {l2e:#x}, v{LL+w}")
    for w in range(8): k(f"v_exp_f32 v{LL+w}, v{LL+w}")
    k(f"v_add_f32 v7, v{LL}, v{LL+1}")
    k(f"v_add_f32 v8, v{LL+2}, v{LL+3}")
    k(f"v_add_f32 v9, v{LL+4}, v{LL+5}")
    k(f"v_add_f32 v10, v{LL+6}, v{LL+7}")
    k("v_add_f32 v7, v7, v8\nv_add_f32 v9, v9, v10\nv_add_f32 v7, v7, v9\nv_rcp_f32 v7, v7")
    for w in range(8): k(f"v_mul_f32 v{LL+w}, v{LL+w}, v7")
    for i in range(4): k(f"v_cvt_pk_bf16_f32 v{PP+i}, v{LL+2*i}, v{LL+2*i+1}")
    for i in range(18): k(f"v_mov_b32 v{OA+i}, 0")
    k("s_waitcnt lgkmcnt(0)")
    for wp in range(4):
        x, y = VV + 20 * wp, VV + 20 * wp + 10
        for i in range(9):
            k(f"v_perm_b32 v{KK+2*i}, v{y+i}, v{x+i}, s62")
            k(f"v_perm_b32 v{KK+2*i+1}, v{y+i}, v{x+i}, s63")
        for i in range(18): k(f"v_dot2c_f32_bf16 v{OA+i}, v{KK+i}, v{PP+wp}")
    for i in range(9): k(f"v_cvt_pk_bf16_f32 v{Q+i}, v{OA+2*i}, v{OA+2*i+1}")
    for i in range(9): k(f"buffer_store_dword v{Q+i}, v5, s[76:79], s{SO[i]} offen")
    if stamps:
        st(20); k("s_waitcnt vmcnt(0)"); st(20)
    k.label(L["end"])
    k("s_endpgm")
    return k

def build3(stamps=False):
    return [
        (gen_prep("prep_kernel", 9), 104, 173, 576, 73728),
        (gen_k1("k1_kernel", stamps), 256, 256, 512, 3 * 51200),
        (gen_g2("g2_kernel", stamps), 256, 256, 512, 4 * 34816),
        (gen_g3("g3_kernel", stamps), 112, 256, 512, 8 * 17408),
    ]

if __name__ == "__main__":
    HEADER = open("parallel_sum__sliding_local_dilated__mixer_gmlp__prompt.s.ref").read().split("; Override launch")[0]
    stamps = "stamps" in sys.argv[2:]
    OPT.update(la_g2=2, la_g3=4)
    for a in sys.argv[2:]:
        if "=" in a: OPT[a.split("=")[0]] = int(a.split("=")[1])
    txt = assemble_file(HEADER + "; generated by a python script (tile loops, fragment layouts and wait states hand-designed)\n", build3(stamps))
    txt = re.sub(r"(?m)^(\s+buffer_store_dwordx4 .*offen( offset:[0-9]+)?)$", r"\1 sc1", txt)
    open(sys.argv[1], "w").write(txt)
```

```python
import sys, math, re
from asmlib import *
import gen2, gen4
from gen2 import *
from gen4 import *

F4_OFF = 0x3430000; F4_SZ = 1024

def gen_g23(name, stamps=False):
    k = Kern(name); st = Stamps(k, stamps, 3)
    S, R, SZ, BO = 32, 3, 34816, 16384
    ZS = 126976
    S3, R3, SZ3, BO3, LA3, SL0 = 45, 7, 17408, 8192, 4, 5
    LD = " sc1" if OPT.get("ldsc1", 1) else ""
    Lend, Lprod = k.lab("end"), k.lab("prod")
    preamble(k, 256, Lend, [(4, "ws"), (6, "b_sp"), (64, "x"), (66, "out")])
    k("""
    s_and_b32 s36, s34, 1
    s_lshl_b32 s36, s36, 3
    s_and_b32 s37, s35, 7
    s_add_u32 s36, s36, s37          ; mt
    s_lshr_b32 s37, s34, 1
    s_lshl_b32 s37, s37, 2
    s_lshr_b32 s38, s35, 3
    s_add_u32 s37, s37, s38          ; nt
    s_and_b32 s38, s34, 3
    s_lshl_b32 s38, s38, 3
    s_and_b32 s39, s35, 7
    s_add_u32 s38, s38, s39
    s_lshr_b32 s39, s34, 2
    s_lshl_b32 s39, s39, 2
    s_lshr_b32 s50, s35, 3
    s_add_u32 s39, s39, s50          ; nt3
    s_waitcnt lgkmcnt(0)
    """)
    srd(k, 8, 4, WSP_OFF, WSP_SZ)
    srd(k, 12, 4, Z2T_OFF, Z2T_SZ)
    srd(k, 16, 4, Z1P_OFF, Z1P_SZ)
    srd(k, 20, 4, A3_OFF, A3_SZ)
    k(f"s_cmp_ge_u32 s33, 4\ns_cbranch_scc1 {Lprod}")
    srd(k, 24, 6, 0, 4096)
    srd(k, 28, 4, CT_OFF, CT_SZ)
    srd(k, 72, 64, 0, 2048 * 1152)
    srd(k, 76, 66, 0, 2048 * 1152)
    st.init(); st()
    ACC, BUF = 104, [0, 52]
    VA01, VA23, VB, VL16, VT = 248, 249, 250, 251, 252
    acc = lambda i, j: ACC + (i * 9 + j) * 4
    k(f"""
    s_and_b32 s40, s33, 1            ; mh
    s_lshr_b32 s41, s33, 1           ; kh
    v_mov_b32 v{VL16}, v1
    s_lshl_b32 s42, s40, 13
    s_lshl_b32 s43, s41, 10
    s_add_u32 s42, s42, s43
    s_lshl_b32 s44, s41, 12
    s_add_u32 s45, s42, s44
    v_add_u32 v{VA01}, s45, v1
    s_xor_b32 s44, s44, 4096
    s_add_u32 s45, s42, s44
    v_add_u32 v{VA23}, s45, v1
    s_add_u32 s45, s43, {BO}
    v_add_u32 v{VB}, s45, v1
    s_lshl_b32 s47, s40, 2
    s_lshl_b32 s69, s41, 1
    s_add_u32 s69, s69, s47
    s_lshl_b32 s46, s36, 3
    s_add_u32 s46, s46, s69          ; tfrag0
    v_and_b32 v2, 15, v0
    s_lshl_b32 s47, s46, 4
    v_add_u32 v2, s47, v2
    v_lshlrev_b32 v3, 1, v2
    v_lshlrev_b32 v2, 2, v2
    buffer_load_ushort v4, v3, s[24:27], 0 offen
    buffer_load_ushort v5, v3, s[24:27], 0 offen offset:32
    s_movk_i32 s48, 0x2000
    s_movk_i32 s49, 0x4000
    s_movk_i32 s50, 0x6000
    buffer_load_dword v6, v2, s[28:31], 0 offen
    buffer_load_dword v7, v2, s[28:31], s48 offen
    buffer_load_dword v8, v2, s[28:31], s49 offen
    buffer_load_dword v9, v2, s[28:31], s50 offen
    buffer_load_dword v10, v2, s[28:31], 0 offen offset:64
    buffer_load_dword v11, v2, s[28:31], s48 offen offset:64
    buffer_load_dword v12, v2, s[28:31], s49 offen offset:64
    buffer_load_dword v13, v2, s[28:31], s50 offen offset:64
    """)
    for r in range(acc(2, 0), acc(3, 8) + 4): k(f"v_mov_b32 v{r}, 0")
    k(f"""
    s_lshr_b32 s51, s37, 1           ; u
    s_and_b32 s52, s37, 1            ; e'
    s_mul_i32 s53, s51, 9
    s_add_u32 s53, s53, 18
    s_lshl_b32 s54, s52, 2
    s_add_u32 s54, s54, s53          ; step0
    s_add_u32 s53, s53, 8
    s_lshl_b32 s55, s46, 11
    """)
    for p in range(5):
        src = "s53" if p == 4 else "s54"
        add = 0 if p == 4 else p
        k(f"""
        s_add_u32 s56, {src}, {add}
        s_lshr_b32 s57, s56, 1
        s_lshl_b32 s57, s57, 18
        s_and_b32 s56, s56, 1
        s_lshl_b32 s56, s56, 10
        s_add_u32 s57, s57, s56
        s_add_u32 s{60+p}, s57, s55
        """)
    k(f"""
    s_mul_i32 s69, s69, 4608
    s_add_u32 s69, s69, {ZS}
    s_waitcnt vmcnt(0)
    v_lshlrev_b32 v4, 16, v4
    v_lshlrev_b32 v5, 16, v5
    v_add_f32 v6, v6, v7
    v_add_f32 v8, v8, v9
    v_add_f32 v10, v10, v11
    v_add_f32 v12, v12, v13
    v_add_f32 v6, v6, v8
    v_add_f32 v10, v10, v12
    v_sub_f32 v4, v4, v6
    v_sub_f32 v5, v5, v10
    """)
    for e in range(2):
        for r in range(acc(e, 0), acc(e, 8) + 4): k(f"v_mov_b32 v{r}, v{4+e}")
    adv_setup(k, R, SZ)
    def reads(sub, b):
        o = [f"ds_read_b128 {vr(BUF[b]+i*4,4)}, v{VA01 if i < 2 else VA23} offset:{(i&1)*2048}" for i in range(4)]
        o += [f"ds_read_b128 {vr(BUF[b]+16+j*4,4)}, v{VB} offset:{j*2048}" for j in range(9)]
        return o
    def mfmas(b):
        return [f"v_mfma_f32_16x16x32_bf16 {vr(acc(i,j),4)}, {vr(BUF[b]+16+j*4,4)}, {vr(BUF[b]+i*4,4)}, {vr(acc(i,j),4)}"
                for j in range(9) for i in range(4)]
    last = consumer_loop(k, S, 1, reads, mfmas, adv_ins(R, [VA01, VA23, VB]), True, st=st)
    assert last == 1
    st()
    k(f"v_add_u32 v{VA01}, s69, v{VL16}")
    k(f"v_lshrrev_b32 v{VT}, 1, v{VL16}")
    k(f"v_add_u32 v{VT}, s69, v{VT}")
    zr = []
    for e in range(2):
        for p in range(4): zr.append(f"ds_read_b128 {vr(e*20+p*4,4)}, v{VA01} offset:{e*4608+p*1024}")
        zr.append(f"ds_read_b64 {vr(e*20+16,2)}, v{VT} offset:{e*4608+4096}")
    for m in interleave(mfmas(1), zr): k(m)
    XT = 60
    G0, G1, GB, GBH, GO = 96, 97, 98, 99, 100
    k(f"""
    v_lshrrev_b32 v{XT+10}, 8, v{VL16}   ; q
    v_bfe_u32 v{XT+11}, v{VL16}, 4, 4    ; lane&15
    v_mul_u32_u24 v{GO}, 1152, v{XT+11}
    v_lshl_add_u32 v{GO}, v{XT+10}, 3, v{GO}
    s_lshl_b32 s70, s38, 2
    s_lshl_b32 s47, s40, 1
    s_add_u32 s70, s70, s47
    s_add_u32 s70, s70, s41          ; tfrag
    s_mul_i32 s70, s70, {16*1152}
    s_mul_i32 s47, s39, 144
    s_add_u32 s70, s70, s47
    """)
    for j in range(5): k(f"buffer_load_dwordx2 {vr(XT+2*j,2)}, v{GO}, s[72:75], s70 offen offset:{j*32}")
    k(f"""
    s_lshl_b32 s42, s40, 12
    s_lshl_b32 s43, s41, 10
    s_add_u32 s42, s42, s43
    s_add_u32 s42, s42, {SL0*SZ3}
    s_lshl_b32 s44, s41, 11
    s_add_u32 s45, s42, s44
    v_add_u32 v{G0}, s45, v{VL16}
    s_xor_b32 s44, s44, 2048
    s_add_u32 s45, s42, s44
    v_add_u32 v{G1}, s45, v{VL16}
    s_add_u32 s45, s43, {BO3+SL0*SZ3}
    v_add_u32 v{GB}, s45, v{VL16}
    v_and_b32 v{XT+11}, 7, v{XT+11}
    v_lshl_add_u32 v{XT+11}, v{XT+10}, 3, v{XT+11}
    v_lshlrev_b32 v{XT+11}, 4, v{XT+11}
    s_lshl_b32 s45, s41, 9
    s_add_u32 s45, s45, {BO3+8192+SL0*SZ3}
    v_add_u32 v{GBH}, s45, v{XT+11}
    s_lshl_b32 s42, s40, 1
    """)
    ksplit_reduce(k, acc(2, 0), 18, 42, 41, VL16, VA01, VA23, 0)
    for n in range(18): k(f"ds_read_b128 {vr(acc(2,0)+n*4,4)}, v{VA23} offset:{n*1024}")
    k(f"s_lshl_b32 s52, s52, 3")
    k(f"v_add_u32 v{VT}, s52, v{VL16}")
    k("s_waitcnt lgkmcnt(0)")
    k("s_barrier")
    st()
    T = 52
    for e in range(2):
        for j in range(9):
            a, b = acc(e, j), acc(2 + e, j)
            z = e * 20 + j * 2
            t = T + (j & 1) * 4
            k(f"""
            v_pk_add_f32 {vr(a,2)}, {vr(a,2)}, {vr(b,2)}
            v_pk_add_f32 {vr(a+2,2)}, {vr(a+2,2)}, {vr(b+2,2)}
            v_lshlrev_b32 v{t}, 16, v{z}
            v_and_b32 v{t+1}, 0xffff0000, v{z}
            v_lshlrev_b32 v{t+2}, 16, v{z+1}
            v_and_b32 v{t+3}, 0xffff0000, v{z+1}
            v_pk_mul_f32 {vr(a,2)}, {vr(a,2)}, {vr(t,2)}
            v_pk_mul_f32 {vr(a+2,2)}, {vr(a+2,2)}, {vr(t+2,2)}
            v_cvt_pk_bf16_f32 v{z}, v{a}, v{a+1}
            v_cvt_pk_bf16_f32 v{z+1}, v{a+2}, v{a+3}
            """)
            if j & 1:
                p = j >> 1
                k(f"buffer_store_dwordx4 {vr(e*20+p*4,4)}, v{VL16}, s[20:23], s{60+p} offen offset:{e*2048} sc1")
            elif j == 8:
                k(f"buffer_store_dwordx2 {vr(e*20+16,2)}, v{VT}, s[20:23], s64 offen offset:{e*2048} sc1")
    AC3, BU3 = 104, [0, 28]
    ac3 = lambda i, j: AC3 + (i * 5 + j) * 4
    k("s_waitcnt vmcnt(10)")
    for j in range(5):
        for h in range(2):
            k(f"v_lshlrev_b32 v{ac3(0,j)+2*h}, 16, v{XT+2*j+h}")
            k(f"v_and_b32 v{ac3(0,j)+2*h+1}, 0xffff0000, v{XT+2*j+h}")
    for r in range(ac3(1, 0), ac3(1, 4) + 4): k(f"v_mov_b32 v{r}, 0")
    adv_setup(k, R3, SZ3)
    k(f"s_mov_b32 s59, {SL0}")
    st()
    k("s_waitcnt vmcnt(0)")
    def reads3(sub, b):
        o = [f"ds_read_b128 {vr(BU3[b],4)}, v{G0}", f"ds_read_b128 {vr(BU3[b]+4,4)}, v{G1}"]
        o += [f"ds_read_b128 {vr(BU3[b]+8+j*4,4)}, v{GB} offset:{j*2048}" for j in range(4)]
        o += [f"ds_read_b128 {vr(BU3[b]+24,4)}, v{GBH}"]
        return o
    def mf3(b):
        return [f"v_mfma_f32_16x16x32_bf16 {vr(ac3(i,j),4)}, {vr(BU3[b]+8+j*4,4)}, {vr(BU3[b]+i*4,4)}, {vr(ac3(i,j),4)}"
                for j in range(5) for i in range(2)]
    last = consumer_loop(k, S3, 1, reads3, mf3, adv_ins(R3, [G0, G1, GB, GBH]), True, st=st)
    st()
    for m in mf3(last): k(m)
    k("s_lshl_b32 s42, s40, 1")
    ksplit_reduce(k, ac3(1, 0), 5, 42, 41, VL16, G0, G1, 0)
    for n in range(5): k(f"ds_read_b128 {vr(ac3(1,0)+n*4,4)}, v{G1} offset:{n*1024}")
    for j in range(5):
        k(f"s_waitcnt lgkmcnt({4-j})")
        a, b = ac3(0, j), ac3(1, j)
        k(f"v_pk_add_f32 {vr(a,2)}, {vr(a,2)}, {vr(b,2)}")
        k(f"v_pk_add_f32 {vr(a+2,2)}, {vr(a+2,2)}, {vr(b+2,2)}")
        k(f"v_cvt_pk_bf16_f32 v{2*j}, v{a}, v{a+1}")
        k(f"v_cvt_pk_bf16_f32 v{2*j+1}, v{a+2}, v{a+3}")
        if j == 4: k("s_mov_b32 exec_hi, 0")
        k(f"buffer_store_dwordx2 {vr(2*j,2)}, v{GO}, s[76:79], s70 offen offset:{j*32}")
    if stamps:
        k("s_mov_b32 exec_hi, -1")
        st(); k("s_waitcnt vmcnt(0)"); st()
    k("s_endpgm")
    k.label(Lprod)
    k(f"""
    s_sub_u32 s40, s33, 4            ; pw
    s_lshl_b32 s41, s40, 12
    s_lshl_b32 s42, s36, 14
    s_add_u32 s42, s42, s41          ; A goff
    s_mul_i32 s43, s37, 18432
    s_lshl_b32 s45, s40, 9
    s_add_u32 s44, s43, s45
    s_add_u32 s44, s44, 16384        ; B2 goff
    s_add_u32 s43, s43, s41          ; B goff
    s_add_u32 s47, s41, {BO}
    s_add_u32 s48, s45, {BO+16384}
    s_mov_b32 s49, 0
    """)
    def issue():
        k("s_add_u32 m0, s41, s49")
        for n in range(4): k(f"buffer_load_dwordx4 v1, s[8:11], s42 offen offset:{n*1024} lds")
        k("s_add_u32 m0, s47, s49")
        for n in range(4): k(f"buffer_load_dwordx4 v1, s[12:15], s43 offen offset:{n*1024} lds")
        k("s_add_u32 m0, s48, s49")
        k("s_mov_b32 exec_hi, 0")
        k("buffer_load_dwordx4 v1, s[12:15], s44 offen lds")
        k("s_mov_b32 exec_hi, -1")
        k(f"s_add_u32 s42, s42, {128*2048}")
        k(f"s_add_u32 s43, s43, {144*2048}")
        k(f"s_add_u32 s44, s44, {144*2048}")
        slot_adv_prod(k, R, SZ, 49)
    def ploop(n, iss, allowed):
        Lp = k.lab("pl")
        k(f"s_mov_b32 s58, {n}")
        k.label(Lp)
        k(f"s_waitcnt vmcnt({allowed})")
        k("s_barrier")
        iss()
        k(f"s_sub_u32 s58, s58, 1\ns_cmp_lg_u32 s58, 0\ns_cbranch_scc1 {Lp}")
    issue(); issue()
    srd(k, 68, 4, W3_OFF, W3_SZ)
    srd(k, 80, 4, F4_OFF, F4_SZ)
    k(f"""
    s_lshl_b32 s60, s40, 11
    s_lshl_b32 s61, s38, 13
    s_add_u32 s61, s61, s60          ; g3 A goff
    s_mul_i32 s62, s39, 9216
    s_lshl_b32 s63, s40, 8
    s_add_u32 s64, s62, s63
    s_add_u32 s64, s64, 8192         ; g3 B2 goff
    s_add_u32 s62, s62, s60          ; g3 B goff
    s_add_u32 s65, s60, {BO3}
    s_add_u32 s66, s63, {BO3+8192}
    s_mov_b32 s67, {SL0*SZ3}
    s_lshl_b32 s51, s36, 3
    s_lshl_b32 s52, s40, 1
    s_add_u32 s51, s51, s52
    s_lshl_b32 s51, s51, 4
    s_add_u32 s51, s51, s37
    s_mul_i32 s51, s51, 4608
    s_mul_i32 s52, s52, 4608
    s_add_u32 s52, s52, {ZS}
    v_lshlrev_b32 v2, 2, v0
    s_lshr_b32 s53, s38, 1
    s_lshl_b32 s53, s53, 6
    """)
    ZB = OPT.get("zb", 21)
    ploop(ZB, issue, 9)
    for e in range(2):
        k(f"s_add_u32 m0, s52, {e*4608}")
        for n in range(4): k(f"buffer_load_dwordx4 v1, s[16:19], s51 offen offset:{n*1024} lds")
        k(f"s_add_u32 m0, s52, {e*4608+4096}")
        k("s_add_u32 s50, s51, 4096")
        k("s_mov_b32 exec_hi, 0")
        k("buffer_load_dwordx4 v1, s[16:19], s50 offen lds")
        k("s_mov_b32 exec_hi, -1")
        k(f"s_add_u32 s51, s51, {16*4608}")
    ploop(2, issue, 19)
    ploop(30 - ZB - 2, issue, 9)
    def issue3():
        k("s_add_u32 m0, s60, s67")
        for n in range(2): k(f"buffer_load_dwordx4 v1, s[20:23], s61 offen offset:{n*1024}{LD} lds")
        k("s_add_u32 m0, s65, s67")
        for n in range(2): k(f"buffer_load_dwordx4 v1, s[68:71], s62 offen offset:{n*1024} lds")
        k("s_add_u32 m0, s66, s67")
        k("s_mov_b64 exec, 0xffff")
        k("buffer_load_dwordx4 v1, s[68:71], s64 offen lds")
        k("s_mov_b64 exec, -1")
        k(f"s_add_u32 s61, s61, {128*2048}")
        k(f"s_add_u32 s62, s62, {8*9216}")
        k(f"s_add_u32 s64, s64, {8*9216}")
        slot_adv_prod(k, R3, SZ3, 67)
    k("s_waitcnt vmcnt(9)")
    k("s_barrier")
    issue3(); issue3()
    k("s_waitcnt vmcnt(10)")
    k("s_barrier")
    k("s_barrier")
    k("s_barrier")
    k("s_barrier")
    issue3(); issue3()
    k("s_waitcnt vmcnt(15)")
    k("s_barrier")
    Ls = k.lab("nf")
    k(f"""
    s_cmp_lg_u32 s40, 0
    s_cbranch_scc1 {Ls}
    v_mov_b32 v3, 1
    s_lshl_b32 s50, s36, 6
    s_lshl_b32 s54, s37, 2
    s_add_u32 s50, s50, s54
    s_mov_b64 exec, 1
    buffer_store_dword v3, v2, s[80:83], s50 offen sc1
    s_mov_b64 exec, -1
    {Ls}:
    """)
    issue3()
    ploop(3, issue3, 15)
    k("s_mov_b64 exec, 0xffff\nbuffer_load_dword v4, v2, s[80:83], s53 offen sc1\ns_mov_b64 exec, -1")
    k("s_waitcnt vmcnt(16)")
    k("s_barrier")
    issue3()
    k("s_waitcnt vmcnt(16)")
    k("s_barrier")
    Lp, Lpd = k.lab("poll"), k.lab("pd")
    k(f"""
    s_waitcnt vmcnt(5)
    s_mov_b64 exec, 0xffff
    v_cmp_ne_u32 vcc, 1, v4
    s_cbranch_vccz {Lpd}
    s_mov_b32 s50, 0x40000
    {Lp}:
    s_sleep 1
    buffer_load_dword v4, v2, s[80:83], s53 offen sc1
    s_waitcnt vmcnt(0)
    s_sub_u32 s50, s50, 1
    v_cmp_ne_u32 vcc, 1, v4
    s_cmp_eq_u32 s50, 0
    s_cselect_b64 vcc, 0, vcc
    s_cbranch_vccnz {Lp}
    {Lpd}:
    s_mov_b64 exec, -1
    """)
    issue3()
    ploop(S3 - LA3 - 6, issue3, 15)
    for b in range(S3 - LA3, S3):
        k(f"s_waitcnt vmcnt({(S3-1-b)*5})")
        k("s_barrier")
    k.label(Lend)
    k("s_endpgm")
    return k

def gen_prep5(name):
    k = gen_prep(name, 9)
    items = []
    for kind, t in k.items:
        if t == "s_mov_b64 exec, 1":
            k2 = Kern("x")
            srd(k2, 24, 4, F4_OFF, F4_SZ)
            k2("s_lshl_b32 s47, s2, 3\ns_mov_b64 exec, 3\nbuffer_store_dword v40, v7, s[24:27], s47 offen")
            items += k2.items
        items.append((kind, t))
    k.items = items
    return k

def build5(stamps=False):
    return [
        (gen_prep5("prep_kernel"), 104, 173, 576, 73728),
        (gen_k1("k1_kernel", stamps), 256, 256, 512, 3 * 51200),
        (gen_g23("g23_kernel", stamps), 256, 256, 512, 163840),
    ]

if __name__ == "__main__":
    HEADER = open("parallel_sum__sliding_local_dilated__mixer_gmlp__prompt.s.ref").read().split("; Override launch")[0]
    stamps = "stamps" in sys.argv[2:]
    for a in sys.argv[2:]:
        if "=" in a: OPT[a.split("=")[0]] = int(a.split("=")[1])
    txt = assemble_file(HEADER + "; generated by a python script (tile loops, fragment layouts and wait states hand-designed)\n", build5(stamps))
    txt = re.sub(r"(?m)^(\s+buffer_store_dwordx4 .*offen( offset:[0-9]+)?)$", r"\1 sc1", txt)
    open(sys.argv[1], "w").write(txt)
```

```python
import sys, math
from asmlib import *

XN_OFF   = 0x0000000; XN_SZ  = 9 * 128 * 2048
Z2T_OFF  = 0x0400000; Z2T_SZ = 32 * 144 * 2048
WSP_OFF  = 0x1000000; WSP_SZ = 32 * 128 * 2048
Z1P_OFF  = 0x1900000; Z1P_SZ = 128 * 16 * 4608
A3_OFF   = 0x2300000; A3_SZ  = 45 * 128 * 2048
W3_OFF   = 0x3000000; W3_SZ  = 45 * 8 * 9216
ST_OFF   = 0x3400000; ST_SZ  = 2048 * 8
CT_OFF   = 0x3410000; CT_SZ  = 4 * 2048 * 4
STAMP_OFF = 0x3800000

OPT = dict(noA=0, noB=0, linB=0, nomfma=0, la_z2=3, la_z1=2, la_g2=3, la_g3=7)
KA = dict(x=0, wqkv=8, wo=16, bx=24, w_in=32, w_sp=40, b_sp=48, w_out=56, out=64, dbg=72, ws=80)
import struct
def f2u(f): return struct.unpack("<I", struct.pack("<f", f))[0]
GC0 = -2.0 * math.sqrt(2.0 / math.pi) * math.log2(math.e)
GC1 = GC0 * 0.044715

def srd(k, d, base, off, size):
    if off:
        k(f"s_add_u32 s{d}, s{base}, {off:#x}")
        k(f"s_addc_u32 s{d+1}, s{base+1}, 0")
    else:
        k(f"s_mov_b32 s{d}, s{base}")
        k(f"s_mov_b32 s{d+1}, s{base+1}")
    k(f"s_mov_b32 s{d+2}, {size:#x}")
    k(f"s_mov_b32 s{d+3}, 0x20000")

class Stamps:
    def __init__(self, k, on, kidx=0): self.k, self.on, self.kidx = k, on, kidx
    def init(self, wsbase=4, widx=33):
        if not self.on: return
        k = self.k
        srd(k, 96, wsbase, STAMP_OFF + self.kidx * 0x100000, 1 << 20)
        k(f"s_lshl_b32 s95, s2, 4")
        k(f"s_add_u32 s95, s95, s{widx}")
        k(f"s_lshl_b32 s95, s95, 8")
    def __call__(self, v=254):
        if not self.on: return
        k = self.k
        k("s_memtime s[90:91]")
        k("s_memrealtime s[92:93]")
        k("s_waitcnt lgkmcnt(0)")
        k(f"v_mov_b32 v{v}, s90")
        k(f"v_mov_b32 v{v+1}, s92")
        k(f"v_mov_b32 v{v-1}, 0")
        k(f"buffer_store_dwordx2 v[{v}:{v+1}], v{v-1}, s[96:99], s95 offen")
        k("s_add_u32 s95, s95, 8")

def interleave(mf, other, start=0, step=1):
    out = []; oi = 0
    for n, m in enumerate(mf):
        out.append(m)
        if n >= start and (n - start) % step == 0 and oi < len(other):
            out.append(other[oi]); oi += 1
    out += other[oi:]
    return out

def preamble(k, nblocks, Lend, loads):
    k(f"s_cmp_ge_u32 s2, {nblocks}")
    k(f"s_cbranch_scc1 {Lend}")
    for reg, name in loads: k(f"s_load_dwordx2 s[{reg}:{reg+1}], s[0:1], {KA[name]}")
    k("""
    v_lshrrev_b32 v1, 6, v0
    v_and_b32 v0, 63, v0
    v_readfirstlane_b32 s33, v1
    s_and_b32 s34, s2, 7
    s_lshr_b32 s35, s2, 3
    v_lshlrev_b32 v1, 4, v0
    """)

def adv_setup(k, R, SZ):
    k(f"s_mov_b32 s59, 0")
    k(f"s_mov_b32 s57, {SZ}")
    k(f"s_mov_b32 s56, {(-(R-1)*SZ) & 0xffffffff:#x}")
def adv_ins(R, vregs):
    o = ["s_add_u32 s59, s59, 1", f"s_cmp_eq_u32 s59, {R}", "s_cselect_b32 s59, 0, s59", "s_cselect_b32 s55, s56, s57"]
    o += [f"v_add_u32 v{v}, s55, v{v}" for v in vregs]
    return o

def consumer_loop(k, S, nsub, reads, mfmas, adv, final_barrier, step=1, st=None):
    Ltop, Lex, Lent = k.lab("top"), k.lab("ex"), k.lab("ent")
    cnt = ["s_sub_u32 s58, s58, 1", "s_cmp_lg_u32 s58, 0"]
    if nsub == 1:
        n = S - 1
        k(f"s_mov_b32 s58, {(n+1)//2}")
        k("s_barrier")
        if st: st()
        for r in reads(0, 0) + adv: k(r)
        k("s_waitcnt lgkmcnt(0)")
        k.label(Ltop)
        k("s_barrier")
        for x in interleave(mfmas(0), reads(0, 1) + adv + (cnt if n & 1 else []), step=step): k(x)
        k("s_waitcnt lgkmcnt(0)")
        if n & 1: k(f"s_cbranch_scc0 {Lex}")
        k("s_barrier")
        for x in interleave(mfmas(1), reads(0, 0) + adv + ([] if n & 1 else cnt), step=step): k(x)
        k("s_waitcnt lgkmcnt(0)")
        if n & 1: k(f"s_branch {Ltop}")
        else: k(f"s_cbranch_scc1 {Ltop}")
        k.label(Lex)
        last = (S - 1) & 1
    else:
        k(f"s_mov_b32 s58, {S}")
        k("s_barrier")
        if st: st()
        for r in reads(0, 0): k(r)
        k("s_waitcnt lgkmcnt(0)")
        k(f"s_branch {Lent}")
        k.label(Ltop)
        k("s_barrier")
        for x in interleave(mfmas(1), reads(0, 0), step=step): k(x)
        k("s_waitcnt lgkmcnt(0)")
        k.label(Lent)
        for x in interleave(mfmas(0), reads(1, 1) + adv + cnt, step=step): k(x)
        k("s_waitcnt lgkmcnt(0)")
        k(f"s_cbranch_scc1 {Ltop}")
        last = 1
    if final_barrier: k("s_barrier")
    return last

def producer_loop(k, S, R, issue, nper, extra_after_last=None, nextra=0, after_b0=None, st=None, LA=None):
    if LA is None: LA = R - 1
    assert 1 <= LA <= R - 1
    Lp0, Lp1 = k.lab("p0"), k.lab("p1")
    if st: st()
    k(f"s_mov_b32 s58, {LA}")
    k.label(Lp0)
    issue()
    k("s_sub_u32 s58, s58, 1")
    k("s_cmp_lg_u32 s58, 0")
    k(f"s_cbranch_scc1 {Lp0}")
    if st: st()
    nloop = S - LA
    if after_b0:
        k(f"s_waitcnt vmcnt({(LA-1)*nper})")
        k("s_barrier")
        issue()
        after_b0()
        nloop -= 1
    k(f"s_mov_b32 s58, {nloop}")
    k.label(Lp1)
    k(f"s_waitcnt vmcnt({(LA-1)*nper})")
    k("s_barrier")
    issue()
    k("s_sub_u32 s58, s58, 1")
    k("s_cmp_lg_u32 s58, 0")
    k(f"s_cbranch_scc1 {Lp1}")
    if extra_after_last: extra_after_last()
    for b in range(S - LA, S):
        k(f"s_waitcnt vmcnt({(S-1-b)*nper + nextra})")
        k("s_barrier")

def slot_adv_prod(k, R, SZ, sreg):
    k(f"s_add_u32 s{sreg}, s{sreg}, {SZ}")
    k(f"s_cmp_eq_u32 s{sreg}, {R*SZ}")
    k(f"s_cselect_b32 s{sreg}, 0, s{sreg}")

def gelu_consts(k, c):
    k(f"v_mov_b32 v{c}, {f2u(GC0):#x}");   k(f"v_mov_b32 v{c+1}, {f2u(GC0):#x}")
    k(f"v_mov_b32 v{c+2}, {f2u(GC1):#x}"); k(f"v_mov_b32 v{c+3}, {f2u(GC1):#x}")
    k(f"v_mov_b32 v{c+4}, 1.0");           k(f"v_mov_b32 v{c+5}, 1.0")
def gelu(k, pairs, t0, c):
    T = [t0 + 2 * i for i in range(len(pairs))]
    P = list(zip(pairs, T))
    for a, t in P: k(f"v_pk_mul_f32 {vr(t,2)}, {vr(a,2)}, {vr(a,2)}")
    for a, t in P: k(f"v_pk_fma_f32 {vr(t,2)}, {vr(t,2)}, {vr(c+2,2)}, {vr(c,2)}")
    for a, t in P: k(f"v_pk_mul_f32 {vr(t,2)}, {vr(t,2)}, {vr(a,2)}")
    for a, t in P: k(f"v_exp_f32 v{t}, v{t}"); k(f"v_exp_f32 v{t+1}, v{t+1}")
    for a, t in P: k(f"v_pk_add_f32 {vr(t,2)}, {vr(t,2)}, {vr(c+4,2)}")
    for a, t in P: k(f"v_rcp_f32 v{t}, v{t}"); k(f"v_rcp_f32 v{t+1}, v{t+1}")
    for a, t in P: k(f"v_pk_mul_f32 {vr(a,2)}, {vr(a,2)}, {vr(t,2)}")

def rnd_bf16(k, d, s):
    k(f"v_cvt_pk_bf16_f32 v{d}, v{s}, v{s}")
    k(f"v_lshlrev_b32 v{d}, 16, v{d}")

def w144_voffs(k, vbase, spw, pitch, tmp):
    for n in range(5):
        if n < 4:
            k(f"s_lshl_b32 s50, s{spw}, 8")
            k(f"s_add_u32 s50, s50, {n*64}")
        else:
            k(f"s_lshl_b32 s50, s{spw}, 5")
            k(f"s_add_u32 s50, s50, 1024")
        a, b, c = tmp, tmp + 1, tmp + 2
        k(f"""
        v_add_u32 v{a}, s50, v0
        v_mul_u32_u24 v{b}, 3641, v{a}
        v_lshrrev_b32 v{b}, 16, v{b}
        v_mul_u32_u24 v{c}, 18, v{b}
        v_sub_u32 v{a}, v{a}, v{c}              ; chunk
        v_lshlrev_b32 v{a}, 4, v{a}
        v_and_b32 v{c}, 4, v{b}
        v_lshlrev_b32 v{c}, 1, v{c}
        v_and_b32 v{vbase+n}, 8, v{b}
        v_lshrrev_b32 v{vbase+n}, 1, v{vbase+n}
        v_or_b32 v{c}, v{c}, v{vbase+n}
        v_and_b32 v{b}, 0x33, v{b}
        v_or_b32 v{b}, v{b}, v{c}               ; k row
        v_mul_u32_u24 v{b}, {pitch}, v{b}
        v_add_u32 v{vbase+n}, v{a}, v{b}
        """)

def tr_lane_base(k, d, pitch, tmp):
    a = tmp + 1
    k(f"""
    v_lshrrev_b32 v{d}, 5, v0
    v_lshlrev_b32 v{d}, 4, v{d}
    v_bfe_u32 v{tmp}, v0, 4, 1
    v_lshl_add_u32 v{d}, v{tmp}, 2, v{d}
    v_bfe_u32 v{a}, v0, 2, 2
    v_add_u32 v{d}, v{d}, v{a}
    v_mul_u32_u24 v{d}, {pitch}, v{d}
    v_and_b32 v{a}, 3, v0
    v_lshl_add_u32 v{d}, v{a}, 3, v{d}
    """)

def gen_prep(name, pf=0):
    k = Kern(name)
    Lend, Lw3, Lpf = k.lab("end"), k.lab("w3"), k.lab("pf")
    NPF = 216 if pf in (1, 2, 3) else 0
    preamble(k, 128 + 45 + NPF, Lend, [(4, "ws"), (6, "x"), (40, "wo"), (42, "w_out"), (64, "w_in"), (66, "wqkv"), (68, "w_sp")])
    k("s_waitcnt lgkmcnt(0)")
    if NPF:
        k(f"s_cmp_ge_u32 s2, 173\ns_cbranch_scc1 {Lpf}")
    srd(k, 8, 6, 0, 2048 * 1152)
    srd(k, 12, 4, XN_OFF, XN_SZ)
    srd(k, 16, 4, ST_OFF, ST_SZ)
    srd(k, 20, 4, W3_OFF, W3_SZ)
    k(f"""
    s_cmp_ge_u32 s2, 128
    s_cbranch_scc1 {Lw3}
    v_and_b32 v2, 15, v0             ; row
    v_lshrrev_b32 v3, 4, v0          ; q
    s_mul_i32 s44, s2, {16*1152}
    s_lshl_b32 s45, s33, 7
    s_add_u32 s44, s44, s45
    v_mul_u32_u24 v4, 1152, v2
    v_lshl_add_u32 v4, v3, 4, v4
    buffer_load_dwordx4 v[8:11], v4, s[8:11], s44 offen
    buffer_load_dwordx4 v[12:15], v4, s[8:11], s44 offen offset:64
    v_mul_u32_u24 v5, 144, v2
    s_lshl_b32 s45, s33, 4
    v_lshl_add_u32 v6, v3, 2, v5
    v_add_u32 v6, s45, v6
    """)
    if pf == 9:
        k(f"""
        s_mul_i32 s50, s2, 9
        s_add_u32 s50, s50, s33
        s_sub_u32 s51, s50, 648
        s_cmp_lt_u32 s50, 648
        s_cselect_b32 s28, s64, s66
        s_cselect_b32 s29, s65, s67
        s_cselect_b32 s50, s50, s51
        s_mov_b32 s30, {576*3456}
        s_cselect_b32 s30, {576*9216}, s30
        s_mov_b32 s31, 0x20000
        s_lshl_b32 s50, s50, 13
        v_lshlrev_b32 v100, 7, v0
        buffer_load_dword v101, v100, s[28:31], s50 offen
        s_waitcnt vmcnt(1)
        """)
    else:
        k("s_waitcnt vmcnt(0)")
    for i in range(8):
        k(f"v_lshlrev_b32 v{16+2*i}, 16, v{8+i}")
        k(f"v_and_b32 v{17+2*i}, 0xffff0000, v{8+i}")
    def tree(base, n, dst):
        k(f"v_pk_add_f32 v[32:33], {vr(base,2)}, {vr(base+2,2)}")
        for i in range(2, n // 2): k(f"v_pk_add_f32 v[32:33], v[32:33], {vr(base+2*i,2)}")
        k(f"v_add_f32 v{dst}, v32, v33")
    tree(16, 16, 34)
    k("ds_write_b32 v6, v34")
    k("s_waitcnt lgkmcnt(0)")
    k("s_barrier")
    for i in range(9): k(f"ds_read_b128 {vr(44+4*i,4)}, v5 offset:{i*16}")
    k("s_waitcnt lgkmcnt(0)")
    tree(44, 36, 34)
    k(f"v_mul_f32 v34, {f2u(1.0/576):#x}, v34")
    k("v_mov_b32 v35, v34")
    for i in range(8): k(f"v_pk_add_f32 {vr(80+2*i,2)}, {vr(16+2*i,2)}, v[34:35] neg_lo:[0,1] neg_hi:[0,1]")
    k("v_pk_mul_f32 v[32:33], v[80:81], v[80:81]")
    for i in range(1, 8): k(f"v_pk_fma_f32 v[32:33], {vr(80+2*i,2)}, {vr(80+2*i,2)}, v[32:33]")
    k("v_add_f32 v36, v32, v33")
    k("ds_write_b32 v6, v36 offset:2304")
    k("s_waitcnt lgkmcnt(0)")
    k("s_barrier")
    for i in range(9): k(f"ds_read_b128 {vr(44+4*i,4)}, v5 offset:{2304+i*16}")
    k("s_waitcnt lgkmcnt(0)")
    tree(44, 36, 36)
    k(f"v_mul_f32 v36, {f2u(1.0/576):#x}, v36")
    rnd_bf16(k, 36, 36)
    k(f"v_add_f32 v36, {f2u(1e-5):#x}, v36")
    rnd_bf16(k, 36, 36)
    k("v_sqrt_f32 v36, v36")
    rnd_bf16(k, 36, 36)
    k("v_rcp_f32 v36, v36")
    rnd_bf16(k, 34, 34)
    k("v_mov_b32 v35, v34")
    k("v_mov_b32 v37, v36")
    for i in range(8): k(f"v_pk_add_f32 {vr(16+2*i,2)}, {vr(16+2*i,2)}, v[34:35] neg_lo:[0,1] neg_hi:[0,1]")
    for i in range(8): k(f"v_cvt_pk_bf16_f32 v{8+i}, v{16+2*i}, v{17+2*i}")
    for i in range(8):
        k(f"v_lshlrev_b32 v{16+2*i}, 16, v{8+i}")
        k(f"v_and_b32 v{17+2*i}, 0xffff0000, v{8+i}")
    for i in range(8): k(f"v_pk_mul_f32 {vr(16+2*i,2)}, {vr(16+2*i,2)}, v[36:37]")
    for i in range(8): k(f"v_cvt_pk_bf16_f32 v{8+i}, v{16+2*i}, v{17+2*i}")
    k(f"""
    s_lshl_b32 s44, s33, 7
    s_add_u32 s44, s44, s2
    s_lshl_b32 s44, s44, 11
    buffer_store_dwordx4 v[8:11], v1, s[12:15], s44 offen
    buffer_store_dwordx4 v[12:15], v1, s[12:15], s44 offen offset:1024
    s_cmp_lg_u32 s33, 0
    s_cbranch_scc1 {Lend}
    s_lshl_b32 s46, s2, 7
    v_lshlrev_b32 v7, 2, v0
    v_mov_b32 v40, 0
    s_mov_b32 exec_hi, 0
    buffer_store_dword v40, v7, s[16:19], s46 offen
    """)
    srd(k, 28, 4, 0x3420000, 16 * 128)
    k("s_mov_b64 exec, 1\nbuffer_store_dword v40, v7, s[28:31], s46 offen\ns_endpgm")
    k.label(Lw3)
    k(f"""
    s_sub_u32 s44, s2, 128           ; st
    s_cmp_lt_u32 s44, 9
    s_cselect_b32 s24, s40, s42
    s_cselect_b32 s25, s41, s43
    s_cselect_b32 s26, {576*1152}, -1
    s_min_u32 s26, s26, {2304*1152}
    s_mov_b32 s27, 0x20000
    """)
    for ks in range(2):
        Ln, Ld = k.lab("nat"), k.lab("dn")
        k(f"""
        s_lshl_b32 s50, s44, 1
        s_add_u32 s50, s50, {ks}         ; step
        s_cmp_lt_u32 s44, 9
        s_cbranch_scc1 {Ln}
        s_sub_u32 s50, s50, 18
        s_mul_i32 s51, s50, 57
        s_lshr_b32 s51, s51, 9           ; u = step'/9
        s_mul_i32 s52, s51, 9
        s_sub_u32 s52, s50, s52          ; v
        s_mul_i32 s51, s51, 288
        s_lshr_b32 s53, s52, 2
        s_mul_i32 s53, s53, 144
        s_and_b32 s54, s52, 3
        s_lshl_b32 s54, s54, 5
        s_add_u32 s53, s53, s54
        s_cmp_eq_u32 s52, 8
        s_cselect_b32 s53, 128, s53
        s_cselect_b32 s{48+ks}, 4, 16
        s_cselect_b32 s{60+ks}, 8, 4
        s_cselect_b32 s{62+ks}, 144, 8
        s_add_u32 s{46+ks}, s51, s53
        s_branch {Ld}
        {Ln}:
        s_lshl_b32 s{46+ks}, s50, 5
        s_mov_b32 s{48+ks}, 4
        s_mov_b32 s{60+ks}, 8
        s_mov_b32 s{62+ks}, 16
        {Ld}:
        """)
    k("s_lshl_b32 s50, s33, 13")
    k("s_lshl_b32 s51, s33, 9")
    k("s_mov_b32 s52, 58255")
    for n in range(8):
        k(f"""
        s_add_u32 s53, s51, {n*64}
        v_add_u32 v2, s53, v0
        v_mul_lo_u32 v3, s52, v2
        v_lshrrev_b32 v3, 22, v3         ; rho
        v_mul_u32_u24 v4, 72, v3
        v_sub_u32 v2, v2, v4             ; chunk
        v_cmp_lt_u32 vcc, 31, v3
        v_mov_b32 v4, s46
        v_mov_b32 v5, s47
        v_cndmask_b32 v4, v4, v5, vcc    ; base
        v_mov_b32 v5, s48
        v_mov_b32 v6, s49
        v_cndmask_b32 v5, v5, v6, vcc    ; D
        v_bfe_u32 v6, v3, 2, 1
        v_mad_u32_u24 v4, v6, v5, v4
        v_mov_b32 v5, s60
        v_mov_b32 v6, s61
        v_cndmask_b32 v5, v5, v6, vcc    ; Q0
        v_bfe_u32 v6, v3, 3, 1
        v_mad_u32_u24 v4, v6, v5, v4
        v_mov_b32 v5, s62
        v_mov_b32 v6, s63
        v_cndmask_b32 v5, v5, v6, vcc    ; Q1
        v_bfe_u32 v6, v3, 4, 1
        v_mad_u32_u24 v4, v6, v5, v4
        v_and_b32 v3, 3, v3
        v_add_u32 v4, v4, v3
        v_mul_u32_u24 v4, 1152, v4
        v_lshl_add_u32 v4, v2, 4, v4
        s_add_u32 m0, s50, {n*1024}
        s_nop 0
        buffer_load_dwordx4 v4, s[24:27], 0 offen lds
        """)
    L8, Lgo = k.lab("w8"), k.lab("go")
    k(f"""
    v_lshrrev_b32 v2, 4, v0          ; g
    v_bfe_u32 v3, v0, 2, 2           ; r
    v_and_b32 v4, 3, v0              ; c4
    s_cmp_eq_u32 s33, 8
    s_cbranch_scc1 {L8}
    s_and_b32 s50, s33, 1
    s_lshl_b32 s50, s50, 2
    v_add_u32 v2, s50, v2
    s_lshr_b32 s50, s33, 1
    s_lshl_b32 s50, s50, 5
    v_lshlrev_b32 v4, 3, v4
    v_add_u32 v4, s50, v4
    s_branch {Lgo}
    {L8}:
    v_lshrrev_b32 v5, 1, v4
    v_lshl_add_u32 v2, v2, 1, v5     ; combo = 2g + (c4>>1)
    v_and_b32 v4, 1, v4
    v_lshlrev_b32 v4, 3, v4
    v_add_u32 v4, 128, v4
    {Lgo}:
    v_lshl_add_u32 v2, v2, 3, v3
    v_mul_u32_u24 v2, 1152, v2
    v_add_u32 v2, v2, v4
    s_mul_i32 s50, s44, {8*9216}
    s_lshl_b32 s51, s33, 10
    s_add_u32 s50, s50, s51
    s_waitcnt vmcnt(0)
    s_barrier
    """)
    for nt in range(8):
        k(f"ds_read_b64_tr_b16 {vr(8+nt*4,2)}, v2 offset:{nt*144}")
        k(f"ds_read_b64_tr_b16 {vr(10+nt*4,2)}, v2 offset:{nt*144+4608}")
    for nt in range(8):
        k(f"s_waitcnt lgkmcnt({14-2*nt})")
        k(f"buffer_store_dwordx4 {vr(8+nt*4,4)}, v1, s[20:23], s50 offen")
        k(f"s_add_u32 s50, s50, 9216")
    if NPF:
        k("s_endpgm")
        k.label(Lpf)
        La, Lb, Lc = k.lab("a"), k.lab("b"), k.lab("c")
        k(f"""
        s_sub_u32 s44, s2, 173
        s_mov_b32 s27, 0x20000
        s_cmp_lt_u32 s44, 72
        s_cbranch_scc1 {La}
        s_cmp_lt_u32 s44, 99
        s_cbranch_scc1 {Lb}
        s_sub_u32 s44, s44, 99
        s_mov_b32 s24, s68
        s_mov_b32 s25, s69
        s_mov_b32 s26, {2048*4096}
        s_branch {Lc}
        {La}:
        s_mov_b32 s24, s64
        s_mov_b32 s25, s65
        s_mov_b32 s26, {576*9216}
        s_branch {Lc}
        {Lb}:
        s_sub_u32 s44, s44, 72
        s_mov_b32 s24, s66
        s_mov_b32 s25, s67
        s_mov_b32 s26, {576*3456}
        {Lc}:
        s_mul_i32 s44, s44, 73728
        s_lshl_b32 s45, s33, 13
        s_add_u32 s44, s44, s45
        """)
        if pf == 1:
            for n in range(8):
                k(f"buffer_load_dwordx4 {vr(8+4*n,4)}, v1, s[24:27], s44 offen offset:{(n&3)*1024}")
                if n == 3: k("s_add_u32 s44, s44, 4096")
        elif pf == 2:
            k("v_lshlrev_b32 v2, 7, v0")
            k("buffer_load_dword v8, v2, s[24:27], s44 offen")
        elif pf == 3:
            k("v_lshlrev_b32 v2, 7, v0")
            k("buffer_load_dword v8, v2, s[24:27], s44 offen")
            k("buffer_load_dword v9, v2, s[24:27], s44 offen offset:64")
        k("s_waitcnt vmcnt(0)")
    k.label(Lend)
    k("s_endpgm")
    return k

def ksplit_reduce(k, send, nq, smh2, skh, vl16, va, vb, region):
    k(f"""
    s_add_u32 s43, s{smh2}, s{skh}
    s_mul_i32 s43, s43, {nq*1024}
    s_xor_b32 s44, s{skh}, 1
    s_add_u32 s44, s44, s{smh2}
    s_mul_i32 s44, s44, {nq*1024}
    s_add_u32 s43, s43, {region}
    s_add_u32 s44, s44, {region}
    v_add_u32 v{va}, s43, v{vl16}
    v_add_u32 v{vb}, s44, v{vl16}
    """)
    for n in range(nq): k(f"ds_write_b128 v{va}, {vr(send+n*4,4)} offset:{n*1024}")
    k("s_waitcnt lgkmcnt(0)")
    k("s_barrier")

def gen_z2(name, stamps=False):
    k = Kern(name); st = Stamps(k, stamps, 1)
    S, R, SZ, BO = 9, 4, 34816, 16384
    Lend, Lprod = k.lab("end"), k.lab("prod")
    preamble(k, 256, Lend, [(4, "ws"), (6, "w_in")])
    k("""
    s_and_b32 s36, s34, 1
    s_lshl_b32 s36, s36, 3
    s_and_b32 s37, s35, 7
    s_add_u32 s36, s36, s37          ; mt
    s_lshr_b32 s37, s34, 1
    s_lshl_b32 s37, s37, 2
    s_lshr_b32 s38, s35, 3
    s_add_u32 s37, s37, s38          ; nt
    s_waitcnt lgkmcnt(0)
    """)
    srd(k, 8, 4, XN_OFF, XN_SZ)
    srd(k, 12, 6, 0, 576 * 9216)
    srd(k, 16, 4, Z2T_OFF, Z2T_SZ)
    srd(k, 20, 4, ST_OFF, ST_SZ)
    st.init(); st()
    k(f"s_cmp_ge_u32 s33, 4\ns_cbranch_scc1 {Lprod}")
    ACC, BUF = 104, [0, 52]
    VA01, VA23, VB, VL16, VLN = 248, 249, 250, 251, 252
    acc = lambda i, j: ACC + (i * 9 + j) * 4
    k(f"""
    s_and_b32 s40, s33, 1            ; mh
    s_lshr_b32 s41, s33, 1           ; kh
    v_mov_b32 v{VL16}, v1
    v_mov_b32 v{VLN}, v0
    s_lshl_b32 s42, s40, 13
    s_lshl_b32 s43, s41, 10
    s_add_u32 s42, s42, s43
    s_lshl_b32 s44, s41, 12
    s_add_u32 s45, s42, s44
    v_add_u32 v{VA01}, s45, v1
    s_xor_b32 s44, s44, 4096
    s_add_u32 s45, s42, s44
    v_add_u32 v{VA23}, s45, v1
    """)
    tr_lane_base(k, VB, 288, 2)
    k(f"s_mul_i32 s45, s41, {32*288}\ns_add_u32 s45, s45, {BO}\nv_add_u32 v{VB}, s45, v{VB}")
    for r in range(ACC, ACC + 144): k(f"v_mov_b32 v{r}, 0")
    adv_setup(k, R, SZ)
    def reads(sub, b):
        o = [f"ds_read_b128 {vr(BUF[b]+i*4,4)}, v{VA01 if i < 2 else VA23} offset:{(i&1)*2048}" for i in range(4)]
        for j in range(9):
            for hh in range(2):
                o.append(f"ds_read_b64_tr_b16 {vr(BUF[b]+16+j*4+hh*2,2)}, v{VB} offset:{hh*8*288+j*32}")
        return o
    def mfmas(b):
        if OPT["nomfma"]: return []
        return [f"v_mfma_f32_16x16x32_bf16 {vr(acc(i,j),4)}, {vr(BUF[b]+i*4,4)}, {vr(BUF[b]+16+j*4,4)}, {vr(acc(i,j),4)}"
                for j in range(9) for i in range(4)]
    last = consumer_loop(k, S, 1, reads, mfmas, adv_ins(R, [VA01, VA23, VB]), True, st=st)
    st()
    for m in mfmas(last): k(m)
    k("s_lshl_b32 s42, s40, 1")
    ksplit_reduce(k, acc(2, 0), 18, 42, 41, VL16, VA01, VA23, 0)
    for j in range(9):
        for e in range(2): k(f"ds_read_b128 {vr(acc(2+e,j),4)}, v{VA23} offset:{(e*9+j)*1024}")
    C, SM, T, O = 60, 68, 84, 92
    gelu_consts(k, C)
    for r in range(SM, SM + 16): k(f"v_mov_b32 v{r}, 0")
    k(f"""
    s_lshl_b32 s46, s36, 1
    s_add_u32 s46, s46, s40          ; g2 stage
    s_mul_i32 s46, s46, 144
    s_mul_i32 s47, s37, 9
    s_add_u32 s46, s46, s47
    s_lshl_b32 s46, s46, 11
    s_lshl_b32 s47, s41, 10
    s_add_u32 s46, s46, s47
    """)
    st()
    for j in range(9):
        k(f"s_waitcnt lgkmcnt({min(15, 16-2*j)})")
        for e in range(2):
            a, b = acc(e, j), acc(2 + e, j)
            k(f"v_pk_add_f32 {vr(a,2)}, {vr(a,2)}, {vr(b,2)}")
            k(f"v_pk_add_f32 {vr(a+2,2)}, {vr(a+2,2)}, {vr(b+2,2)}")
        gelu(k, [acc(0, j), acc(0, j) + 2, acc(1, j), acc(1, j) + 2], T, C)
        o = O + (j & 1) * 4
        for e in range(2):
            a = acc(e, j)
            k(f"v_cvt_pk_bf16_f32 v{o+2*e}, v{a}, v{a+1}")
            k(f"v_cvt_pk_bf16_f32 v{o+2*e+1}, v{a+2}, v{a+3}")
        k(f"buffer_store_dwordx4 {vr(o,4)}, v{VL16}, s[16:19], s46 offen")
        k("s_add_u32 s46, s46, 2048")
        for e in range(2):
            a = acc(e, j)
            for h in range(2):
                k(f"v_pk_add_f32 {vr(SM+4*e+2*h,2)}, {vr(SM+4*e+2*h,2)}, {vr(a+2*h,2)}")
                k(f"v_pk_fma_f32 {vr(SM+8+4*e+2*h,2)}, {vr(a+2*h,2)}, {vr(a+2*h,2)}, {vr(SM+8+4*e+2*h,2)}")
    for ror in (8, 4, 2, 1):
        for r in range(SM, SM + 16):
            k(f"v_add_f32_dpp v{r}, v{r}, v{r} row_ror:{ror} row_mask:0xf bank_mask:0xf")
    k("s_mov_b32 s48, 0x00010001\ns_mov_b32 s49, 0x00010001")
    val = lambda i: SM + (i & 1) * 8 + (i >> 3) * 4 + ((i >> 1) & 3)
    k(f"v_mov_b32 v{T}, v{val(0)}")
    for i in range(1, 16):
        k("s_lshl_b64 s[48:49], s[48:49], 1")
        k(f"v_cndmask_b32 v{T}, v{T}, v{val(i)}, s[48:49]")
    k(f"""
    v_bfe_u32 v{T+1}, v{VLN}, 3, 1
    v_lshlrev_b32 v{T+1}, 5, v{T+1}
    v_lshrrev_b32 v{T+2}, 4, v{VLN}
    v_lshl_add_u32 v{T+1}, v{T+2}, 3, v{T+1}
    v_and_b32 v{T+2}, 7, v{VLN}
    v_add_lshl_u32 v{T+1}, v{T+1}, v{T+2}, 2
    s_lshl_b32 s46, s36, 10
    s_lshl_b32 s47, s40, 9
    s_add_u32 s46, s46, s47
    s_lshl_b32 s47, s41, 8
    s_add_u32 s46, s46, s47
    buffer_atomic_add_f32 v{T}, v{T+1}, s[20:23], s46 offen
    """)
    if stamps:
        st(); k("s_waitcnt vmcnt(0)"); st()
    k("s_endpgm")
    k.label(Lprod)
    k(f"""
    s_sub_u32 s40, s33, 4            ; pw
    s_lshl_b32 s41, s40, 12
    s_lshl_b32 s42, s36, 14
    s_add_u32 s42, s42, s41          ; A goff
    s_mul_i32 s43, s37, 288
    s_add_u32 s43, s43, 4608
    s_lshl_b32 s45, s40, 9
    s_add_u32 s47, s41, {BO}
    s_add_u32 s48, s45, {BO+16384}
    s_mov_b32 s49, 0
    """)
    w144_voffs(k, 8, 40, 9216, 2)
    if OPT["linB"]:
        k("s_mul_i32 s43, s37, 18432")
        for n in range(4):
            k(f"s_add_u32 s50, s41, {n*1024}")
            k(f"v_add_u32 v{8+n}, s50, v1")
        k("s_add_u32 s50, s45, 16384")
        k("v_add_u32 v12, s50, v1")
    def issue():
        k("s_add_u32 m0, s41, s49")
        if not OPT["noA"]:
            for n in range(4): k(f"buffer_load_dwordx4 v1, s[8:11], s42 offen offset:{n*1024} lds")
        k("s_add_u32 s50, s47, s49")
        if not OPT["noB"]:
            for n in range(4):
                k(f"s_add_u32 m0, s50, {n*1024}")
                k(f"buffer_load_dwordx4 v{8+n}, s[12:15], s43 offen lds")
            k("s_add_u32 m0, s48, s49")
            k("s_mov_b32 exec_hi, 0")
            k("buffer_load_dwordx4 v12, s[12:15], s43 offen lds")
            k("s_mov_b32 exec_hi, -1")
        k(f"s_add_u32 s42, s42, {128*2048}")
        k(f"s_add_u32 s43, s43, {64*9216}")
        slot_adv_prod(k, R, SZ, 49)
    producer_loop(k, S, R, issue, 9 - 4 * OPT["noA"] - 5 * OPT["noB"], st=st, LA=OPT["la_z2"])
    k.label(Lend)
    k("s_endpgm")
    return k

def gen_z1qkv(name, stamps=False):
    k = Kern(name); st = Stamps(k, stamps, 2)
    Lend, Lqkv, Lprod, Lqprod, Latt = k.lab("end"), k.lab("qkv"), k.lab("prod"), k.lab("qprod"), k.lab("att")
    preamble(k, 256, Lend, [(4, "ws"), (6, "w_in"), (64, "wqkv"), (66, "w_sp")])
    k("s_waitcnt lgkmcnt(0)")
    srd(k, 8, 4, XN_OFF, XN_SZ)
    srd(k, 12, 6, 0, 576 * 9216)
    srd(k, 16, 4, Z1P_OFF, Z1P_SZ)
    srd(k, 20, 4, ST_OFF, ST_SZ)
    srd(k, 24, 66, 0, 2048 * 4096)
    srd(k, 28, 4, WSP_OFF, WSP_SZ)
    srd(k, 68, 4, CT_OFF, CT_SZ)
    srd(k, 72, 64, 0, 576 * 3456)
    srd(k, 76, 4, A3_OFF, A3_SZ)
    st.init()
    k(f"s_cmp_ge_u32 s35, 16\ns_cbranch_scc1 {Lqkv}")
    S, R, SZ, BO = 9, 3, 51200, 32768
    k(f"""
    s_and_b32 s36, s34, 1
    s_lshl_b32 s36, s36, 2
    s_and_b32 s37, s35, 3
    s_add_u32 s36, s36, s37
    s_lshr_b32 s37, s34, 1
    s_lshl_b32 s37, s37, 2
    s_lshr_b32 s38, s35, 2
    s_add_u32 s37, s37, s38          ; nt
    s_cmp_ge_u32 s33, 4
    s_cbranch_scc1 {Lprod}
    """)
    st()
    ACC, BUF = 104, [0, 52]
    VA, VB, VL16, VL8 = 248, 249, 250, 251
    acc = lambda i, j: ACC + (i * 9 + j) * 4
    k(f"""
    v_mov_b32 v{VL16}, v1
    v_lshrrev_b32 v{VL8}, 1, v1
    s_lshl_b32 s42, s33, 13
    v_add_u32 v{VA}, s42, v1
    """)
    tr_lane_base(k, VB, 288, 2)
    k(f"v_add_u32 v{VB}, {BO}, v{VB}")
    for r in range(ACC, ACC + 144): k(f"v_mov_b32 v{r}, 0")
    adv_setup(k, R, SZ)
    def reads(sub, b):
        o = [f"ds_read_b128 {vr(BUF[b]+i*4,4)}, v{VA} offset:{i*2048+sub*1024}" for i in range(4)]
        for j in range(9):
            for hh in range(2):
                o.append(f"ds_read_b64_tr_b16 {vr(BUF[b]+16+j*4+hh*2,2)}, v{VB} offset:{sub*32*288+hh*8*288+j*32}")
        return o
    def mfmas(b):
        return [f"v_mfma_f32_16x16x32_bf16 {vr(acc(i,j),4)}, {vr(BUF[b]+16+j*4,4)}, {vr(BUF[b]+i*4,4)}, {vr(acc(i,j),4)}"
                for i in range(4) for j in range(9)]
    last = consumer_loop(k, S, 2, reads, mfmas, adv_ins(R, [VA, VB]), False, st=st)
    st()
    for m in mfmas(last): k(m)
    C, T, O = 0, 8, 16
    gelu_consts(k, C)
    k(f"""
    s_lshl_b32 s46, s36, 4
    s_lshl_b32 s47, s33, 2
    s_add_u32 s46, s46, s47          ; tfrag0
    s_lshl_b32 s46, s46, 4
    s_add_u32 s46, s46, s37
    s_mul_i32 s46, s46, 4608
    """)
    n = 0
    for i in range(4):
        for p in range(4):
            a, b = acc(i, 2 * p), acc(i, 2 * p + 1)
            gelu(k, [a, a + 2, b, b + 2], T, C)
            o = O + (n & 1) * 4; n += 1
            for x, q in enumerate([a, a + 2, b, b + 2]): k(f"v_cvt_pk_bf16_f32 v{o+x}, v{q}, v{q+1}")
            k(f"buffer_store_dwordx4 {vr(o,4)}, v{VL16}, s[16:19], s46 offen offset:{p*1024}")
        k(f"s_add_u32 s{48+i}, s46, 4096")
        if i < 3: k(f"s_add_u32 s46, s46, {16*4608}")
    for i in (0, 2):
        a, b = acc(i, 8), acc(i + 1, 8)
        gelu(k, [a, a + 2, b, b + 2], T, C)
        o = O + (n & 1) * 4; n += 1
        for x, q in enumerate([a, a + 2, b, b + 2]): k(f"v_cvt_pk_bf16_f32 v{o+x}, v{q}, v{q+1}")
        k(f"buffer_store_dwordx2 {vr(o,2)}, v{VL8}, s[16:19], s{48+i} offen")
        k(f"buffer_store_dwordx2 {vr(o+2,2)}, v{VL8}, s[16:19], s{49+i} offen")
    if stamps:
        st(); k("s_waitcnt vmcnt(0)"); st()
    k("s_endpgm")
    k.label(Lprod)
    k(f"""
    s_sub_u32 s40, s33, 4            ; pw
    v_lshlrev_b32 v2, 6, v0
    s_lshl_b32 s41, s40, 12          ; pw*512*8
    buffer_load_dwordx4 v[16:19], v2, s[20:23], s41 offen
    buffer_load_dwordx4 v[20:23], v2, s[20:23], s41 offen offset:16
    buffer_load_dwordx4 v[24:27], v2, s[20:23], s41 offen offset:32
    buffer_load_dwordx4 v[28:31], v2, s[20:23], s41 offen offset:48
    s_lshl_b32 s41, s40, 13          ; pw*8192
    s_lshl_b32 s42, s36, 15
    s_add_u32 s42, s42, s41          ; A goff
    s_mul_i32 s43, s37, 288          ; B goff
    s_lshl_b32 s45, s40, 9
    s_lshl_b32 s47, s40, 12
    s_add_u32 s47, s47, {BO}
    s_add_u32 s48, s45, {BO+16384}
    s_mov_b32 s49, 0
    """)
    w144_voffs(k, 8, 40, 9216, 2)
    def issue():
        k("s_add_u32 m0, s41, s49")
        for n in range(4): k(f"buffer_load_dwordx4 v1, s[8:11], s42 offen offset:{n*1024} lds")
        k("s_add_u32 m0, m0, 4096")
        k("s_add_u32 s50, s42, 4096")
        for n in range(4): k(f"buffer_load_dwordx4 v1, s[8:11], s50 offen offset:{n*1024} lds")
        k("s_add_u32 s50, s47, s49")
        for n in range(4):
            k(f"s_add_u32 m0, s50, {n*1024}")
            k(f"buffer_load_dwordx4 v{8+n}, s[12:15], s43 offen lds")
        k("s_add_u32 m0, s48, s49")
        k("s_mov_b32 exec_hi, 0")
        k("buffer_load_dwordx4 v12, s[12:15], s43 offen lds")
        k("s_mov_b32 exec_hi, -1")
        k(f"s_add_u32 s42, s42, {128*2048}")
        k(f"s_add_u32 s43, s43, {64*9216}")
        slot_adv_prod(k, R, SZ, 49)
    RR, MM = 32, 40
    def after_b0():
        inv = f2u(1.0 / 2304)
        for i in range(8): k(f"v_mul_f32 v{16+2*i}, {inv:#x}, v{16+2*i}")
        for i in range(8): k(f"v_mul_f32 v{17+2*i}, {inv:#x}, v{17+2*i}")
        for i in range(8): k(f"v_fma_f32 v{17+2*i}, -v{16+2*i}, v{16+2*i}, v{17+2*i}")
        for i in range(8): k(f"v_max_f32 v{17+2*i}, 0, v{17+2*i}")
        for i in range(4): k(f"v_cvt_pk_bf16_f32 v{MM+i}, v{16+4*i}, v{18+4*i}")
        def rnd8():
            for i in range(4): k(f"v_cvt_pk_bf16_f32 v{44+i}, v{17+4*i}, v{19+4*i}")
            for i in range(4):
                k(f"v_lshlrev_b32 v{17+4*i}, 16, v{44+i}")
                k(f"v_and_b32 v{19+4*i}, 0xffff0000, v{44+i}")
        rnd8()
        for i in range(8): k(f"v_add_f32 v{17+2*i}, {f2u(1e-5):#x}, v{17+2*i}")
        rnd8()
        for i in range(8): k(f"v_sqrt_f32 v{17+2*i}, v{17+2*i}")
        rnd8()
        for i in range(8): k(f"v_rcp_f32 v{RR+i}, v{17+2*i}")
    W = 64
    def wloads():
        k(f"""
        s_lshl_b32 s50, s34, 4
        s_add_u32 s50, s50, s35
        s_lshl_b32 s51, s50, 16
        s_lshl_b32 s52, s40, 10
        s_add_u32 s51, s51, s52
        v_and_b32 v2, 15, v0
        v_lshlrev_b32 v2, 12, v2
        v_lshrrev_b32 v3, 4, v0
        v_lshl_add_u32 v2, v3, 4, v2
        """)
        for P in range(16): k(f"buffer_load_dwordx4 {vr(W+4*P,4)}, v2, s[24:27], s51 offen offset:{P*64}")
    producer_loop(k, S, R, issue, 13, extra_after_last=wloads, nextra=16, after_b0=after_b0, LA=OPT["la_z1"])
    k(f"""
    s_mul_i32 s52, s40, 3072
    v_lshlrev_b32 v4, 5, v0
    v_add_u32 v4, s52, v4
    ds_write_b128 v4, v[32:35]
    ds_write_b128 v4, v[36:39] offset:16
    v_add_u32 v4, s52, v1
    ds_write_b128 v4, v[40:43] offset:2048
    v_lshlrev_b32 v4, 5, v3
    v_add_u32 v4, s52, v4
    v_lshlrev_b32 v5, 4, v3
    v_add_u32 v5, s52, v5
    v_mov_b32 v6, 0
    s_lshl_b32 s53, s40, 21
    s_lshl_b32 s54, s50, 11
    s_add_u32 s53, s53, s54
    s_waitcnt lgkmcnt(0)
    """)
    RB = [128, 140]
    def rd(P):
        b = RB[P & 1]
        k(f"ds_read_b128 {vr(b,4)}, v4 offset:{P*128}")
        k(f"ds_read_b128 {vr(b+4,4)}, v4 offset:{P*128+16}")
        k(f"ds_read_b128 {vr(b+8,4)}, v5 offset:{2048+P*64}")
    rd(0)
    for P in range(16):
        if P < 15: rd(P + 1)
        k(f"s_waitcnt vmcnt(15) lgkmcnt({3 if P < 15 else 0})")
        b, w, t = RB[P & 1], W + 4 * P, 152
        for i in range(4):
            k(f"v_lshlrev_b32 v{t+2*i}, 16, v{w+i}")
            k(f"v_and_b32 v{t+2*i+1}, 0xffff0000, v{w+i}")
        for i in range(4): k(f"v_pk_mul_f32 {vr(t+2*i,2)}, {vr(t+2*i,2)}, {vr(b+2*i,2)}")
        for i in range(4): k(f"v_cvt_pk_bf16_f32 v{w+i}, v{t+2*i}, v{t+2*i+1}")
        for i in range(4): k(f"v_dot2c_f32_bf16 v6, v{w+i}, v{b+8+i}")
        k(f"v_permlane16_swap_b32 v{w}, v{w+2}")
        k(f"v_permlane16_swap_b32 v{w+1}, v{w+3}")
        k(f"v_permlane32_swap_b32 v{w}, v{w+2}")
        k(f"v_permlane32_swap_b32 v{w+1}, v{w+3}")
        k(f"buffer_store_dwordx4 {vr(w,4)}, v1, s[28:31], s53 offen offset:{(P&1)*1024}")
        if P & 1: k(f"s_add_u32 s53, s53, {128*2048}")
    k(f"""
    v_mov_b32 v7, v6
    v_permlane16_swap_b32 v6, v7
    v_add_f32 v6, v6, v7
    v_mov_b32 v7, v6
    v_permlane32_swap_b32 v6, v7
    v_add_f32 v6, v6, v7
    s_lshl_b32 s53, s40, 13
    s_lshl_b32 s54, s50, 6
    s_add_u32 s53, s53, s54
    v_lshlrev_b32 v7, 2, v0
    s_mov_b64 exec, 0xffff
    buffer_store_dword v6, v7, s[68:71], s53 offen
    s_endpgm
    """)
    k.label(Lqkv)
    S, R, SZ, BO = 9, 3, 18432 + 28672, 18432
    k(f"""
    s_and_b32 s36, s34, 1
    s_lshl_b32 s36, s36, 3
    s_and_b32 s37, s35, 7
    s_add_u32 s36, s36, s37
    s_lshr_b32 s37, s34, 1
    s_lshl_b32 s37, s37, 1
    s_bfe_u32 s38, s35, 0x10003
    s_add_u32 s37, s37, s38          ; hg
    s_cmp_ge_u32 s33, 4
    s_cbranch_scc1 {Lqprod}
    """)
    st()
    ACC, BUF = 96, [0, 48]
    VA, VBE, VBO, VW = 240, 241, 242, 243
    acc = lambda i, j: ACC + (i * 7 + j) * 4
    k(f"""
    s_and_b32 s40, s33, 1            ; wm
    s_lshr_b32 s41, s33, 1           ; wn
    s_lshl_b32 s42, s40, 13
    v_add_u32 v{VA}, s42, v1
    """)
    tr_lane_base(k, VBE, 448, 2)
    k(f"""
    s_mul_i32 s42, s41, 224
    s_add_u32 s42, s42, {BO}
    v_add_u32 v{VBE}, s42, v{VBE}
    v_lshlrev_b32 v2, 5, v2          ; a*32
    v_sub_u32 v3, 0, v2
    s_cmp_eq_u32 s41, 0
    s_cselect_b64 vcc, -1, 0
    s_cselect_b32 s43, -1, 0
    v_cndmask_b32 v4, v3, v2, vcc    ; wn==0 ? +a32 : -a32
    v_sub_u32 v{VBO}, v{VBE}, v4
    v_add_u32 v{VBE}, v{VBE}, v4
    v_and_b32 v2, 15, v0
    s_lshl_b32 s42, s40, 6
    v_add_u32 v2, s42, v2
    v_mul_u32_u24 v{VW}, 440, v2
    v_lshrrev_b32 v2, 4, v0
    v_lshl_add_u32 v{VW}, v2, 3, v{VW}
    s_mul_i32 s42, s41, 224
    v_add_u32 v{VW}, s42, v{VW}
    """)
    for r in range(ACC, ACC + 140): k(f"v_mov_b32 v{r}, 0")
    adv_setup(k, R, SZ)
    def reads(sub, b):
        o = [f"ds_read_b128 {vr(BUF[b]+i*4,4)}, v{VA} offset:{i*2048+sub*1024}" for i in range(5)]
        for j in range(7):
            for hh in range(2):
                o.append(f"ds_read_b64_tr_b16 {vr(BUF[b]+20+j*4+hh*2,2)}, v{VBO if j & 1 else VBE} offset:{sub*32*448+hh*8*448+j*32}")
        return o
    def mfmas(b):
        return [f"v_mfma_f32_16x16x32_bf16 {vr(acc(i,j),4)}, {vr(BUF[b]+20+j*4,4)}, {vr(BUF[b]+i*4,4)}, {vr(acc(i,j),4)}"
                for i in range(5) for j in range(7)]
    last = consumer_loop(k, S, 2, reads, mfmas, adv_ins(R, [VA, VBE, VBO]), True, st=st)
    st()
    for m in mfmas(last): k(m)
    n = 0
    for j in range(7):
        if j == 6: k("s_mov_b32 exec_hi, s43")
        for i in range(5):
            a = acc(i, j); o = (n & 3) * 2; n += 1
            k(f"v_cvt_pk_bf16_f32 v{o}, v{a}, v{a+1}")
            k(f"v_cvt_pk_bf16_f32 v{o+1}, v{a+2}, v{a+3}")
            k(f"ds_write_b64 v{VW}, {vr(o,2)} offset:{i*16*440+j*32}")
    k("s_mov_b32 exec_hi, -1")
    k("s_waitcnt lgkmcnt(0)")
    k("v_mbcnt_lo_u32_b32 v0, -1, 0")
    k("v_mbcnt_hi_u32_b32 v0, -1, v0")
    k(f"s_branch {Latt}")
    k.label(Lqprod)
    k(f"""
    s_sub_u32 s40, s33, 4            ; pw
    s_lshl_b32 s41, s40, 12
    s_lshl_b32 s42, s36, 14
    s_lshl_b32 s45, s40, 9
    s_sub_u32 s44, s42, 2048
    s_cmp_eq_u32 s36, 0
    s_cselect_b32 s44, 0, s44
    s_add_u32 s44, s44, s45
    s_add_u32 s42, s42, s41          ; A goff
    s_add_u32 s41, s41, 2048         ; A lds
    s_mul_i32 s43, s37, 144          ; B goff
    s_mul_i32 s47, s40, 7168
    s_add_u32 s47, s47, {BO}
    s_mov_b32 s49, 0
    s_mul_i32 s51, s40, 448
    """)
    for n in range(7):
        k(f"""
        s_add_u32 s50, s51, {n*64}
        v_add_u32 v2, s50, v0
        v_mul_u32_u24 v3, 2341, v2
        v_lshrrev_b32 v3, 16, v3
        v_mul_u32_u24 v4, 28, v3
        v_sub_u32 v2, v2, v4             ; c'
        v_and_b32 v4, 4, v3
        v_lshrrev_b32 v5, 1, v4
        v_xor_b32 v2, v2, v5             ; c
        v_lshlrev_b32 v4, 1, v4
        v_and_b32 v5, 8, v3
        v_lshrrev_b32 v5, 1, v5
        v_or_b32 v4, v4, v5
        v_and_b32 v3, 0x33, v3
        v_or_b32 v3, v3, v4              ; k row
        v_mul_u32_u24 v3, 3456, v3
        v_mul_u32_u24 v4, 57, v2
        v_lshrrev_b32 v4, 9, v4          ; seg = c/9
        v_mul_u32_u24 v5, {1152-144}, v4
        v_lshl_add_u32 v5, v2, 4, v5
        v_add_u32 v3, v3, v5
        v_mov_b32 v5, 0x80000000
        v_cmp_gt_u32 vcc, 27, v2
        v_cndmask_b32 v{8+n}, v5, v3, vcc
        """)
    def issue():
        k("s_add_u32 m0, s41, s49")
        for n in range(4): k(f"buffer_load_dwordx4 v1, s[8:11], s42 offen offset:{n*1024} lds")
        k("s_add_u32 m0, s45, s49")
        k("s_mov_b32 exec_hi, 0")
        k("buffer_load_dwordx4 v1, s[8:11], s44 offen lds")
        k("s_mov_b32 exec_hi, -1")
        k("s_add_u32 s50, s47, s49")
        for n in range(7):
            k(f"s_add_u32 m0, s50, {n*1024}")
            k(f"buffer_load_dwordx4 v{8+n}, s[72:75], s43 offen lds")
        k(f"s_add_u32 s42, s42, {128*2048}")
        k(f"s_add_u32 s44, s44, {128*2048}")
        k(f"s_add_u32 s43, s43, {64*3456}")
        slot_adv_prod(k, R, SZ, 49)
    producer_loop(k, S, R, issue, 12, LA=OPT["la_z1"])
    k("s_barrier")
    k.label(Latt)
    k(f"""
    s_and_b32 s40, s33, 3            ; head
    s_lshr_b32 s41, s33, 2
    s_and_b32 s42, s40, 1            ; odd
    s_lshl_b32 s43, s41, 6
    s_add_u32 s44, s43, 2
    v_add_u32 v2, s44, v0
    v_mul_u32_u24 v2, 440, v2
    s_mul_i32 s44, s40, 36
    s_lshl_b32 s45, s42, 2
    s_add_u32 s45, s45, s44
    v_add_u32 v3, s45, v2            ; b64 base
    s_xor_b32 s45, s42, 1
    s_lshl_b32 s45, s45, 5
    s_add_u32 s45, s45, s44
    v_add_u32 v2, s45, v2            ; b32 base
    s_lshl_b32 s46, s36, 7
    s_add_u32 s46, s46, s43
    v_add_u32 v4, s46, v0            ; t
    v_lshrrev_b32 v5, 4, v4
    v_lshlrev_b32 v5, 11, v5
    v_and_b32 v6, 15, v4
    v_lshl_add_u32 v5, v6, 4, v5
    s_mul_i32 s46, s37, 72
    s_mul_i32 s47, s40, 18
    s_add_u32 s46, s46, s47          ; col0
    s_mov_b32 s62, 0x05040100
    s_mov_b32 s63, 0x07060302
    """)
    for i in range(9):
        if i < 8: k(f"s_add_u32 s47, s42, {i}")
        else: k("s_xor_b32 s47, s42, 1\ns_lshl_b32 s47, s47, 3")
        k(f"""
        s_lshl_b32 s47, s47, 1
        s_add_u32 s47, s47, s46          ; col
        s_lshr_b32 s48, s47, 6
        s_lshl_b32 s48, s48, 18
        s_bfe_u32 s49, s47, 0x30003
        s_lshl_b32 s49, s49, 8
        s_add_u32 s48, s48, s49
        s_and_b32 s49, s47, 7
        s_lshl_b32 s49, s49, 1
        s_add_u32 s{80+i}, s48, s49
        """)
    k("s_barrier")
    st(20)
    Q, KK, VV, L, PP, OA = 24, 36, 116, 200, 210, 216
    def rdvec(dst, row, part):
        for h in range(4): k(f"ds_read_b64 {vr(dst+2*h,2)}, v3 offset:{row*440+part*144+8*h}")
        k(f"ds_read_b32 v{dst+8}, v2 offset:{row*440+part*144}")
    vecs = [(Q, 14, 0)] + [(KK + 10 * w, 14 - 2 * w, 1) for w in range(8)] + [(VV + 10 * w, 14 - 2 * w, 2) for w in range(8)]
    for v in vecs[:4]: rdvec(*v)
    nxt = 4
    for w in range(8): k(f"v_mov_b32 v{L+w}, 0")
    for w in range(8):
        k("s_waitcnt lgkmcnt(10)")
        for i in range(9): k(f"v_dot2c_f32_bf16 v{L+w}, v{Q+i}, v{KK+10*w+i}")
        rdvec(*vecs[nxt]); nxt += 1
    while nxt < len(vecs):
        rdvec(*vecs[nxt]); nxt += 1
    sc = f2u(18.0 ** -0.5)
    def rndL():
        for i in range(4): k(f"v_cvt_pk_bf16_f32 v{PP+i}, v{L+2*i}, v{L+2*i+1}")
        for i in range(4):
            k(f"v_lshlrev_b32 v{L+2*i}, 16, v{PP+i}")
            k(f"v_and_b32 v{L+2*i+1}, 0xffff0000, v{PP+i}")
    rndL()
    for w in range(8): k(f"v_mul_f32 v{L+w}, {sc:#x}, v{L+w}")
    rndL()
    k(f"v_mov_b32 v6, {f2u(-1e9):#x}")
    for w in range(1, 8):
        k(f"v_cmp_le_u32 s[{50+2*(w&3)}:{51+2*(w&3)}], {2*w}, v4")
        if w > 1: k(f"v_cndmask_b32 v{L+w-1}, v6, v{L+w-1}, s[{50+2*((w-1)&3)}:{51+2*((w-1)&3)}]")
    k(f"v_cndmask_b32 v{L+7}, v6, v{L+7}, s[56:57]")
    k(f"v_max3_f32 v7, v{L}, v{L+1}, v{L+2}")
    k(f"v_max3_f32 v8, v{L+3}, v{L+4}, v{L+5}")
    k(f"v_max3_f32 v7, v7, v{L+6}, v{L+7}")
    k(f"v_max_f32 v7, v7, v8")
    l2e = f2u(math.log2(math.e))
    for w in range(8): k(f"v_sub_f32 v{L+w}, v{L+w}, v7")
    for w in range(8): k(f"v_mul_f32 v{L+w}, {l2e:#x}, v{L+w}")
    for w in range(8): k(f"v_exp_f32 v{L+w}, v{L+w}")
    k(f"v_add_f32 v7, v{L}, v{L+1}")
    k(f"v_add_f32 v8, v{L+2}, v{L+3}")
    k(f"v_add_f32 v9, v{L+4}, v{L+5}")
    k(f"v_add_f32 v10, v{L+6}, v{L+7}")
    k("v_add_f32 v7, v7, v8\nv_add_f32 v9, v9, v10\nv_add_f32 v7, v7, v9\nv_rcp_f32 v7, v7")
    for w in range(8): k(f"v_mul_f32 v{L+w}, v{L+w}, v7")
    for i in range(4): k(f"v_cvt_pk_bf16_f32 v{PP+i}, v{L+2*i}, v{L+2*i+1}")
    for i in range(18): k(f"v_mov_b32 v{OA+i}, 0")
    k("s_waitcnt lgkmcnt(0)")
    for wp in range(4):
        x, y = VV + 20 * wp, VV + 20 * wp + 10
        for i in range(9):
            k(f"v_perm_b32 v{KK+2*i}, v{y+i}, v{x+i}, s62")
            k(f"v_perm_b32 v{KK+2*i+1}, v{y+i}, v{x+i}, s63")
        for i in range(18): k(f"v_dot2c_f32_bf16 v{OA+i}, v{KK+i}, v{PP+wp}")
    for i in range(9): k(f"v_cvt_pk_bf16_f32 v{Q+i}, v{OA+2*i}, v{OA+2*i+1}")
    for i in range(9): k(f"buffer_store_dword v{Q+i}, v5, s[76:79], s{80+i} offen")
    if stamps:
        st(20); k("s_waitcnt vmcnt(0)"); st(20)
    k.label(Lend)
    k("s_endpgm")
    return k

def gen_g2(name, stamps=False):
    k = Kern(name); st = Stamps(k, stamps, 3)
    S, R, SZ, BO = 32, 4, 34816, 16384
    Lend, Lprod = k.lab("end"), k.lab("prod")
    preamble(k, 256, Lend, [(4, "ws"), (6, "b_sp")])
    k("""
    s_and_b32 s36, s34, 1
    s_lshl_b32 s36, s36, 3
    s_and_b32 s37, s35, 7
    s_add_u32 s36, s36, s37          ; mt
    s_lshr_b32 s37, s34, 1
    s_lshl_b32 s37, s37, 2
    s_lshr_b32 s38, s35, 3
    s_add_u32 s37, s37, s38          ; nt
    s_waitcnt lgkmcnt(0)
    """)
    srd(k, 8, 4, WSP_OFF, WSP_SZ)
    srd(k, 12, 4, Z2T_OFF, Z2T_SZ)
    k(f"s_cmp_ge_u32 s33, 4\ns_cbranch_scc1 {Lprod}")
    srd(k, 16, 4, Z1P_OFF, Z1P_SZ)
    srd(k, 20, 4, A3_OFF, A3_SZ)
    srd(k, 24, 6, 0, 4096)
    srd(k, 28, 4, CT_OFF, CT_SZ)
    st.init(); st()
    ACC, BUF = 104, [0, 52]
    VA01, VA23, VB, VL16, VT = 248, 249, 250, 251, 252
    acc = lambda i, j: ACC + (i * 9 + j) * 4
    k(f"""
    s_and_b32 s40, s33, 1            ; mh
    s_lshr_b32 s41, s33, 1           ; kh
    v_mov_b32 v{VL16}, v1
    s_lshl_b32 s42, s40, 13
    s_lshl_b32 s43, s41, 10
    s_add_u32 s42, s42, s43
    s_lshl_b32 s44, s41, 12
    s_add_u32 s45, s42, s44
    v_add_u32 v{VA01}, s45, v1
    s_xor_b32 s44, s44, 4096
    s_add_u32 s45, s42, s44
    v_add_u32 v{VA23}, s45, v1
    s_add_u32 s45, s43, {BO}
    v_add_u32 v{VB}, s45, v1
    s_lshl_b32 s46, s36, 3
    s_lshl_b32 s47, s40, 2
    s_add_u32 s46, s46, s47
    s_lshl_b32 s47, s41, 1
    s_add_u32 s46, s46, s47          ; tfrag0
    v_and_b32 v2, 15, v0
    s_lshl_b32 s47, s46, 4
    v_add_u32 v2, s47, v2
    v_lshlrev_b32 v3, 1, v2
    v_lshlrev_b32 v2, 2, v2
    buffer_load_ushort v4, v3, s[24:27], 0 offen
    buffer_load_ushort v5, v3, s[24:27], 0 offen offset:32
    s_movk_i32 s48, 0x2000
    s_movk_i32 s49, 0x4000
    s_movk_i32 s50, 0x6000
    buffer_load_dword v6, v2, s[28:31], 0 offen
    buffer_load_dword v7, v2, s[28:31], s48 offen
    buffer_load_dword v8, v2, s[28:31], s49 offen
    buffer_load_dword v9, v2, s[28:31], s50 offen
    buffer_load_dword v10, v2, s[28:31], 0 offen offset:64
    buffer_load_dword v11, v2, s[28:31], s48 offen offset:64
    buffer_load_dword v12, v2, s[28:31], s49 offen offset:64
    buffer_load_dword v13, v2, s[28:31], s50 offen offset:64
    """)
    for r in range(acc(2, 0), acc(3, 8) + 4): k(f"v_mov_b32 v{r}, 0")
    k(f"""
    s_lshr_b32 s51, s37, 1           ; u
    s_and_b32 s52, s37, 1            ; e'
    s_mul_i32 s53, s51, 9
    s_add_u32 s53, s53, 18
    s_lshl_b32 s54, s52, 2
    s_add_u32 s54, s54, s53          ; step0
    s_add_u32 s53, s53, 8
    s_lshl_b32 s55, s46, 11
    """)
    for p in range(5):
        src = "s53" if p == 4 else "s54"
        add = 0 if p == 4 else p
        k(f"""
        s_add_u32 s56, {src}, {add}
        s_lshr_b32 s57, s56, 1
        s_lshl_b32 s57, s57, 18
        s_and_b32 s56, s56, 1
        s_lshl_b32 s56, s56, 10
        s_add_u32 s57, s57, s56
        s_add_u32 s{60+p}, s57, s55
        """)
    k(f"""
    s_lshl_b32 s56, s46, 4
    s_add_u32 s56, s56, s37
    s_mul_i32 s66, s56, 4608
    s_add_u32 s67, s66, {16*4608}
    s_waitcnt vmcnt(0)
    v_lshlrev_b32 v4, 16, v4
    v_lshlrev_b32 v5, 16, v5
    v_add_f32 v6, v6, v7
    v_add_f32 v8, v8, v9
    v_add_f32 v10, v10, v11
    v_add_f32 v12, v12, v13
    v_add_f32 v6, v6, v8
    v_add_f32 v10, v10, v12
    v_sub_f32 v4, v4, v6
    v_sub_f32 v5, v5, v10
    """)
    for e in range(2):
        for r in range(acc(e, 0), acc(e, 8) + 4): k(f"v_mov_b32 v{r}, v{4+e}")
    adv_setup(k, R, SZ)
    def reads(sub, b):
        o = [f"ds_read_b128 {vr(BUF[b]+i*4,4)}, v{VA01 if i < 2 else VA23} offset:{(i&1)*2048}" for i in range(4)]
        o += [f"ds_read_b128 {vr(BUF[b]+16+j*4,4)}, v{VB} offset:{j*2048}" for j in range(9)]
        return o
    def mfmas(b):
        return [f"v_mfma_f32_16x16x32_bf16 {vr(acc(i,j),4)}, {vr(BUF[b]+16+j*4,4)}, {vr(BUF[b]+i*4,4)}, {vr(acc(i,j),4)}"
                for j in range(9) for i in range(4)]
    last = consumer_loop(k, S, 1, reads, mfmas, adv_ins(R, [VA01, VA23, VB]), True, st=st)
    assert last == 1
    st()
    k(f"v_lshrrev_b32 v{VT}, 1, v{VL16}")
    for e in range(2):
        for p in range(4):
            k(f"buffer_load_dwordx4 {vr(e*20+p*4,4)}, v{VL16}, s[16:19], s{66+e} offen offset:{p*1024}")
        k(f"s_add_u32 s68, s{66+e}, 4096")
        k(f"buffer_load_dwordx2 {vr(e*20+16,2)}, v{VT}, s[16:19], s68 offen")
    for m in mfmas(1): k(m)
    k("s_lshl_b32 s42, s40, 1")
    ksplit_reduce(k, acc(2, 0), 18, 42, 41, VL16, VA01, VA23, 0)
    for n in range(18): k(f"ds_read_b128 {vr(acc(2,0)+n*4,4)}, v{VA23} offset:{n*1024}")
    k(f"s_lshl_b32 s52, s52, 3")
    k(f"v_add_u32 v{VT}, s52, v{VL16}")
    k("s_waitcnt vmcnt(0)")
    if stamps: st();
    T = 52
    for e in range(2):
        for j in range(9):
            n = e * 9 + j
            k(f"s_waitcnt lgkmcnt({min(15, 17-n)})")
            a, b = acc(e, j), acc(2 + e, j)
            z = e * 20 + j * 2
            t = T + (j & 1) * 4
            k(f"""
            v_pk_add_f32 {vr(a,2)}, {vr(a,2)}, {vr(b,2)}
            v_pk_add_f32 {vr(a+2,2)}, {vr(a+2,2)}, {vr(b+2,2)}
            v_lshlrev_b32 v{t}, 16, v{z}
            v_and_b32 v{t+1}, 0xffff0000, v{z}
            v_lshlrev_b32 v{t+2}, 16, v{z+1}
            v_and_b32 v{t+3}, 0xffff0000, v{z+1}
            v_pk_mul_f32 {vr(a,2)}, {vr(a,2)}, {vr(t,2)}
            v_pk_mul_f32 {vr(a+2,2)}, {vr(a+2,2)}, {vr(t+2,2)}
            v_cvt_pk_bf16_f32 v{z}, v{a}, v{a+1}
            v_cvt_pk_bf16_f32 v{z+1}, v{a+2}, v{a+3}
            """)
            if j & 1:
                p = j >> 1
                k(f"buffer_store_dwordx4 {vr(e*20+p*4,4)}, v{VL16}, s[20:23], s{60+p} offen offset:{e*2048}")
            elif j == 8:
                k(f"buffer_store_dwordx2 {vr(e*20+16,2)}, v{VT}, s[20:23], s64 offen offset:{e*2048}")
    if stamps:
        st(); k("s_waitcnt vmcnt(0)"); st()
    k("s_endpgm")
    k.label(Lprod)
    k(f"""
    s_sub_u32 s40, s33, 4            ; pw
    s_lshl_b32 s41, s40, 12
    s_lshl_b32 s42, s36, 14
    s_add_u32 s42, s42, s41          ; A goff
    s_mul_i32 s43, s37, 18432
    s_lshl_b32 s45, s40, 9
    s_add_u32 s44, s43, s45
    s_add_u32 s44, s44, 16384        ; B2 goff
    s_add_u32 s43, s43, s41          ; B goff
    s_add_u32 s47, s41, {BO}
    s_add_u32 s48, s45, {BO+16384}
    s_mov_b32 s49, 0
    """)
    def issue():
        k("s_add_u32 m0, s41, s49")
        for n in range(4): k(f"buffer_load_dwordx4 v1, s[8:11], s42 offen offset:{n*1024} lds")
        k("s_add_u32 m0, s47, s49")
        for n in range(4): k(f"buffer_load_dwordx4 v1, s[12:15], s43 offen offset:{n*1024} lds")
        k("s_add_u32 m0, s48, s49")
        k("s_mov_b32 exec_hi, 0")
        k("buffer_load_dwordx4 v1, s[12:15], s44 offen lds")
        k("s_mov_b32 exec_hi, -1")
        k(f"s_add_u32 s42, s42, {128*2048}")
        k(f"s_add_u32 s43, s43, {144*2048}")
        k(f"s_add_u32 s44, s44, {144*2048}")
        slot_adv_prod(k, R, SZ, 49)
    producer_loop(k, S, R, issue, 9, LA=OPT["la_g2"])
    k.label(Lend)
    k("s_endpgm")
    return k

def gen_g3(name, stamps=False):
    k = Kern(name); st = Stamps(k, stamps, 4)
    S, R, SZ, BO = 45, 8, 17408, 8192
    Lend, Lprod = k.lab("end"), k.lab("prod")
    preamble(k, 256, Lend, [(4, "ws"), (6, "x"), (64, "out")])
    k("""
    s_and_b32 s36, s34, 3
    s_lshl_b32 s36, s36, 3
    s_and_b32 s37, s35, 7
    s_add_u32 s36, s36, s37
    s_lshr_b32 s37, s34, 2
    s_lshl_b32 s37, s37, 2
    s_lshr_b32 s38, s35, 3
    s_add_u32 s37, s37, s38          ; nt
    s_waitcnt lgkmcnt(0)
    """)
    srd(k, 8, 4, A3_OFF, A3_SZ)
    srd(k, 12, 4, W3_OFF, W3_SZ)
    k(f"s_cmp_ge_u32 s33, 4\ns_cbranch_scc1 {Lprod}")
    srd(k, 16, 6, 0, 2048 * 1152)
    srd(k, 20, 64, 0, 2048 * 1152)
    st.init(); st(100)
    ACC, BUF = 56, [0, 28]
    VA0, VA1, VB, VBH, VL16, VO = 104, 105, 106, 107, 108, 109
    acc = lambda i, j: ACC + (i * 5 + j) * 4
    k(f"""
    s_and_b32 s40, s33, 1            ; mh
    s_lshr_b32 s41, s33, 1           ; kh
    v_mov_b32 v{VL16}, v1
    s_lshl_b32 s42, s40, 12
    s_lshl_b32 s43, s41, 10
    s_add_u32 s42, s42, s43
    s_lshl_b32 s44, s41, 11
    s_add_u32 s45, s42, s44
    v_add_u32 v{VA0}, s45, v1
    s_xor_b32 s44, s44, 2048
    s_add_u32 s45, s42, s44
    v_add_u32 v{VA1}, s45, v1
    s_add_u32 s45, s43, {BO}
    v_add_u32 v{VB}, s45, v1
    v_lshrrev_b32 v2, 4, v0          ; q
    v_and_b32 v3, 7, v0
    v_lshl_add_u32 v3, v2, 3, v3
    v_lshlrev_b32 v3, 4, v3
    s_lshl_b32 s45, s41, 9
    s_add_u32 s45, s45, {BO+8192}
    v_add_u32 v{VBH}, s45, v3
    s_lshl_b32 s46, s36, 2
    s_lshl_b32 s47, s40, 1
    s_add_u32 s46, s46, s47
    s_add_u32 s46, s46, s41          ; tfrag
    s_mul_i32 s46, s46, {16*1152}
    s_mul_i32 s47, s37, 144
    s_add_u32 s46, s46, s47
    v_and_b32 v3, 15, v0
    v_mul_u32_u24 v3, 1152, v3
    v_lshl_add_u32 v{VO}, v2, 3, v3
    """)
    for j in range(5): k(f"buffer_load_dwordx2 {vr(4+2*j,2)}, v{VO}, s[16:19], s46 offen offset:{j*32}")
    for r in range(acc(1, 0), acc(1, 4) + 4): k(f"v_mov_b32 v{r}, 0")
    adv_setup(k, R, SZ)
    k("s_waitcnt vmcnt(0)")
    for j in range(5):
        for h in range(2):
            k(f"v_lshlrev_b32 v{acc(0,j)+2*h}, 16, v{4+2*j+h}")
            k(f"v_and_b32 v{acc(0,j)+2*h+1}, 0xffff0000, v{4+2*j+h}")
    def reads(sub, b):
        o = [f"ds_read_b128 {vr(BUF[b],4)}, v{VA0}", f"ds_read_b128 {vr(BUF[b]+4,4)}, v{VA1}"]
        o += [f"ds_read_b128 {vr(BUF[b]+8+j*4,4)}, v{VB} offset:{j*2048}" for j in range(4)]
        o += [f"ds_read_b128 {vr(BUF[b]+24,4)}, v{VBH}"]
        return o
    def mfmas(b):
        return [f"v_mfma_f32_16x16x32_bf16 {vr(acc(i,j),4)}, {vr(BUF[b]+8+j*4,4)}, {vr(BUF[b]+i*4,4)}, {vr(acc(i,j),4)}"
                for j in range(5) for i in range(2)]
    last = consumer_loop(k, S, 1, reads, mfmas, adv_ins(R, [VA0, VA1, VB, VBH]), True, st=(lambda: st(100)))
    st(100)
    for m in mfmas(last): k(m)
    k("s_lshl_b32 s42, s40, 1")
    ksplit_reduce(k, acc(1, 0), 5, 42, 41, VL16, VA0, VA1, 0)
    for n in range(5): k(f"ds_read_b128 {vr(acc(1,0)+n*4,4)}, v{VA1} offset:{n*1024}")
    for j in range(5):
        k(f"s_waitcnt lgkmcnt({4-j})")
        a, b = acc(0, j), acc(1, j)
        k(f"v_pk_add_f32 {vr(a,2)}, {vr(a,2)}, {vr(b,2)}")
        k(f"v_pk_add_f32 {vr(a+2,2)}, {vr(a+2,2)}, {vr(b+2,2)}")
        k(f"v_cvt_pk_bf16_f32 v{2*j}, v{a}, v{a+1}")
        k(f"v_cvt_pk_bf16_f32 v{2*j+1}, v{a+2}, v{a+3}")
        if j == 4: k("s_mov_b32 exec_hi, 0")
        k(f"buffer_store_dwordx2 {vr(2*j,2)}, v{VO}, s[20:23], s46 offen offset:{j*32}")
    if stamps:
        k("s_mov_b32 exec_hi, -1")
        st(100); k("s_waitcnt vmcnt(0)"); st(100)
    k("s_endpgm")
    k.label(Lprod)
    k(f"""
    s_sub_u32 s40, s33, 4            ; pw
    s_lshl_b32 s41, s40, 11
    s_lshl_b32 s42, s36, 13
    s_add_u32 s42, s42, s41          ; A goff
    s_mul_i32 s43, s37, 9216
    s_lshl_b32 s45, s40, 8
    s_add_u32 s44, s43, s45
    s_add_u32 s44, s44, 8192         ; B2 goff
    s_add_u32 s43, s43, s41          ; B goff
    s_add_u32 s47, s41, {BO}
    s_add_u32 s48, s45, {BO+8192}
    s_mov_b32 s49, 0
    """)
    def issue():
        k("s_add_u32 m0, s41, s49")
        for n in range(2): k(f"buffer_load_dwordx4 v1, s[8:11], s42 offen offset:{n*1024} lds")
        k("s_add_u32 m0, s47, s49")
        for n in range(2): k(f"buffer_load_dwordx4 v1, s[12:15], s43 offen offset:{n*1024} lds")
        k("s_add_u32 m0, s48, s49")
        k("s_mov_b64 exec, 0xffff")
        k("buffer_load_dwordx4 v1, s[12:15], s44 offen lds")
        k("s_mov_b64 exec, -1")
        k(f"s_add_u32 s42, s42, {128*2048}")
        k(f"s_add_u32 s43, s43, {8*9216}")
        k(f"s_add_u32 s44, s44, {8*9216}")
        slot_adv_prod(k, R, SZ, 49)
    producer_loop(k, S, R, issue, 5, LA=OPT["la_g3"])
    k.label(Lend)
    k("s_endpgm")
    return k

HEADER = open("parallel_sum__sliding_local_dilated__mixer_gmlp__prompt.s.ref").read().split("; Override launch")[0] if __name__ == "__main__" else ""

def build(stamps=False, pf=0):
    return [
        (gen_prep("prep_kernel", pf), 96, 173 + (216 if pf else 0), 576, 73728),
        (gen_z2("z2_kernel", stamps), 256, 256, 512, 4 * 34816),
        (gen_z1qkv("z1qkv_kernel", stamps), 256, 256, 512, 3 * 51200),
        (gen_g2("g2_kernel", stamps), 256, 256, 512, 4 * 34816),
        (gen_g3("g3_kernel", stamps), 112, 256, 512, 8 * 17408),
    ]

if __name__ == "__main__":
    stamps = "stamps" in sys.argv[2:]
    for a in sys.argv[2:]:
        if "=" in a: OPT[a.split("=")[0]] = int(a.split("=")[1])
    pf = [int(a[2:]) for a in sys.argv[2:] if a.startswith("pf")]
    txt = assemble_file(HEADER + "; generated by a python script (tile loops, fragment layouts and wait states hand-designed)\n", build(stamps, pf[0] if pf else 0))
    if "sc1" in sys.argv[2:]:
        import re
        txt = re.sub(r"(?m)^(\s+buffer_store_dwordx4 .*offen( offset:[0-9]+)?)$", r"\1 sc1", txt)
    open(sys.argv[1], "w").write(txt)
```

```python
import sys, math, re
from asmlib import *
import gen2
from gen2 import *
from gen4 import reduce16

FLG_OFF = 0x3430000; FLG_SZ = 10240
F1, F2, F3, F4 = 0, 1024, 5120, 6144
TFS = 90 * 1024
ATT = 69632
HSC = 153600

def snake(no, ni):
    return [(o, i if o % 2 == 0 else ni - 1 - i) for o in range(no) for i in range(ni)]

def w144_voff(k, d, sid, pitch):
    k(f"""
    v_add_u32 v2, s{sid}, v0
    v_mul_u32_u24 v3, 3641, v2
    v_lshrrev_b32 v3, 16, v3
    v_mul_u32_u24 v4, 18, v3
    v_sub_u32 v2, v2, v4
    v_and_b32 v4, 4, v3
    v_and_b32 v5, 8, v3
    v_lshlrev_b32 v4, 1, v4
    v_lshrrev_b32 v5, 1, v5
    v_and_b32 v3, 0x33, v3
    v_or3_b32 v3, v3, v4, v5
    v_mul_u32_u24 v3, {pitch}, v3
    v_lshl_add_u32 v{d}, v2, 4, v3
    """)
def qkv_voff(k, d, sid):
    k(f"""
    v_add_u32 v2, s{sid}, v0
    v_mul_u32_u24 v3, 2341, v2
    v_lshrrev_b32 v3, 16, v3
    v_mul_u32_u24 v4, 28, v3
    v_sub_u32 v2, v2, v4
    v_and_b32 v4, 4, v3
    v_lshrrev_b32 v5, 1, v4
    v_xor_b32 v2, v2, v5
    v_lshlrev_b32 v4, 1, v4
    v_and_b32 v5, 8, v3
    v_lshrrev_b32 v5, 1, v5
    v_and_b32 v3, 0x33, v3
    v_or3_b32 v3, v3, v4, v5
    v_mul_u32_u24 v3, 3456, v3
    v_mul_u32_u24 v4, 57, v2
    v_lshrrev_b32 v4, 9, v4
    v_mul_u32_u24 v5, {1152-144}, v4
    v_lshl_add_u32 v5, v2, 4, v5
    v_add_u32 v3, v3, v5
    v_mov_b32 v5, 0x80000000
    v_cmp_gt_u32 vcc, 27, v2
    v_cndmask_b32 v{d}, v5, v3, vcc
    """)

def lin_dma(k, n, srdr, soff, mbase, slot, vl16=1, mods=""):
    for g in range(0, n, 4):
        if g == 0:
            k(f"s_add_u32 m0, s{mbase}, s{slot}"); so = soff
        else:
            k("s_add_u32 m0, m0, 4096"); k(f"s_add_u32 s50, s{soff}, {g*1024}"); so = 50
        for i in range(min(4, n - g)):
            k(f"buffer_load_dwordx4 v{vl16}, s[{srdr}:{srdr+3}], s{so} offen offset:{i*1024}{mods} lds")
def gat_dma(k, n, srdr, soff, mbase, slot, V):
    k(f"s_add_u32 m0, s{mbase}, s{slot}")
    for i in range(n):
        if i: k("s_add_u32 m0, m0, 1024")
        k(f"buffer_load_dwordx4 v{V+i}, s[{srdr}:{srdr+3}], s{soff} offen lds")

def spin(k, load, check):
    Lp, Ld = k.lab("sp"), k.lab("sd")
    check()
    k(f"s_cbranch_vccz {Ld}")
    k("s_mov_b32 s50, 0x40000")
    k.label(Lp)
    k("s_sleep 1")
    load()
    k("s_waitcnt vmcnt(0)")
    k("s_sub_u32 s50, s50, 1")
    check()
    k("s_cmp_eq_u32 s50, 0")
    k("s_cselect_b64 vcc, 0, vcc")
    k(f"s_cbranch_vccnz {Lp}")
    k.label(Ld)

def set_flag(k, soff_expr_lines, vt):
    k(soff_expr_lines)
    k(f"""
    v_mov_b32 v{vt}, 1
    v_mov_b32 v{vt+1}, 0
    s_mov_b64 exec, 1
    buffer_store_dword v{vt}, v{vt+1}, s[84:87], s50 offen sc1
    s_mov_b64 exec, -1
    """)

CNT = ["s_sub_u32 s58, s58, 1", "s_cmp_lg_u32 s58, 0"]

def k1_body(k, st, L, fused):
    R, SZ = 3, 51200
    BO1, BOZ, BOQ = 16384, 32768, 18432
    stamps = st.on
    k(f"""
    s_and_b32 s36, s34, 1
    s_lshl_b32 s36, s36, 3
    s_and_b32 s37, s35, 7
    s_add_u32 s36, s36, s37          ; z2 mt
    s_lshr_b32 s37, s34, 1
    s_lshl_b32 s37, s37, 2
    s_lshr_b32 s38, s35, 3
    s_add_u32 s37, s37, s38          ; z2 nt
    s_lshr_b32 s32, s35, 4
    s_and_b32 s38, s34, 1
    s_lshl_b32 s38, s38, 2
    s_and_b32 s39, s35, 3
    s_add_u32 s38, s38, s39
    s_lshr_b32 s39, s34, 1
    s_lshl_b32 s50, s39, 1
    s_lshl_b32 s39, s39, 2
    s_lshr_b32 s51, s35, 2
    s_add_u32 s39, s39, s51          ; z1 nt
    s_bfe_u32 s51, s35, 0x10003
    s_add_u32 s50, s50, s51          ; hg
    s_cmp_eq_u32 s32, 0
    s_cselect_b32 s38, s38, s36
    s_cselect_b32 s39, s39, s50
    s_waitcnt lgkmcnt(0)
    """)
    srd(k, 8, 4, XN_OFF, XN_SZ)
    srd(k, 12, 6, 0, 576 * 9216)
    k(f"s_cmp_ge_u32 s33, 4\ns_cbranch_scc1 {L['D']}")
    srd(k, 16, 4, A3_OFF, A3_SZ)
    srd(k, 20, 4, ST_OFF, ST_SZ)
    st.init()
    def loop2(reads, half, adv, vmw):
        Ltop = k.lab("top")
        k("s_mov_b32 s58, 8")
        k("s_barrier")
        st()
        for r in reads(0, 0): k(r)
        k("s_waitcnt lgkmcnt(0)")
        if vmw: k("s_barrier")
        half(0, reads(1, 1) + adv, True)
        k("s_waitcnt vmcnt(0) lgkmcnt(0)" if vmw else "s_waitcnt lgkmcnt(0)")
        k.label(Ltop)
        k("s_barrier")
        half(1, reads(0, 0), False)
        k("s_waitcnt lgkmcnt(0)")
        half(0, reads(1, 1) + adv + CNT, False)
        k("s_waitcnt lgkmcnt(0)")
        k(f"s_cbranch_scc1 {Ltop}")
        st()
    st()
    ACC, BUF = 104, [0, 36]
    VA, VB, VL16, VLN = 244, 245, 246, 247
    acc = lambda i, j: ACC + (i * 5 + j) * 4
    k(f"""
    s_mov_b32 s40, s33
    s_and_b32 s41, s40, 1            ; wm
    s_lshr_b32 s42, s40, 1           ; wn
    v_mov_b32 v{VL16}, v1
    v_mov_b32 v{VLN}, v0
    s_lshl_b32 s43, s41, 13
    v_add_u32 v{VA}, s43, v1
    """)
    tr_lane_base(k, VB, 288, 2)
    k(f"s_mul_i32 s43, s42, 160\ns_add_u32 s43, s43, {BO1}\nv_add_u32 v{VB}, s43, v{VB}")
    Lq, Ld = k.lab("cq"), k.lab("cd")
    ZA, ZB, ZL16, ZL8 = 248, 249, 250, 251
    QA, QBE, QBO, QW = 248, 249, 250, 251
    k(f"s_cmp_lg_u32 s32, 0\ns_cbranch_scc1 {Lq}")
    k(f"""
    v_mov_b32 v{ZL16}, v1
    v_lshrrev_b32 v2, 5, v0
    v_lshlrev_b32 v2, 8, v2
    v_and_b32 v3, 15, v0
    v_lshl_add_u32 v2, v3, 4, v2
    v_bfe_u32 v3, v0, 4, 1
    v_lshl_add_u32 v{ZL8}, v3, 3, v2
    s_lshl_b32 s50, s40, 13
    v_add_u32 v{ZA}, s50, v1
    """)
    tr_lane_base(k, ZB, 288, 2)
    k(f"v_add_u32 v{ZB}, {BOZ}, v{ZB}")
    k(f"s_branch {Ld}")
    k.label(Lq)
    k(f"v_mov_b32 v{QA}, v{VA}")
    tr_lane_base(k, QBE, 448, 2)
    k(f"""
    s_mul_i32 s50, s42, 224
    s_add_u32 s50, s50, {BOQ}
    v_add_u32 v{QBE}, s50, v{QBE}
    v_lshlrev_b32 v2, 5, v2
    v_sub_u32 v3, 0, v2
    s_cmp_eq_u32 s42, 0
    s_cselect_b64 vcc, -1, 0
    v_cndmask_b32 v4, v3, v2, vcc
    v_sub_u32 v{QBO}, v{QBE}, v4
    v_add_u32 v{QBE}, v{QBE}, v4
    v_and_b32 v2, 15, v0
    s_lshl_b32 s50, s41, 6
    v_add_u32 v2, s50, v2
    v_mul_u32_u24 v{QW}, 440, v2
    v_lshrrev_b32 v2, 4, v0
    v_lshl_add_u32 v{QW}, v2, 3, v{QW}
    s_mul_i32 s50, s42, 224
    s_add_u32 s50, s50, {ATT}
    v_add_u32 v{QW}, s50, v{QW}
    """)
    k.label(Ld)
    k(f"""
    s_cmp_eq_u32 s42, 0
    s_cselect_b64 vcc, -1, 0
    s_cselect_b32 s54, -1, 0
    s_mul_i32 s46, s41, {18*1024}
    s_mul_i32 s47, s42, {5*1024}
    s_add_u32 s46, s46, s47
    s_add_u32 s46, s46, {2*SZ}
    v_add_u32 v{VL16}, s46, v1
    """)
    C, T, O, SM = 72, 80, 88, 184
    gelu_consts(k, C)
    for r in range(SM, SM + 32): k(f"v_mov_b32 v{r}, 0")
    adv_setup(k, R, SZ)
    def reads1(sub, b):
        o = [f"ds_read_b128 {vr(BUF[b]+i*4,4)}, v{VA} offset:{i*2048+sub*1024}" for i in range(4)]
        for j in range(5):
            for hh in range(2):
                o.append(f"ds_read_b64_tr_b16 {vr(BUF[b]+16+j*4+hh*2,2)}, v{VB} offset:{sub*32*288+hh*8*288+j*32}")
        return o
    def mf1(b, seq, zero):
        return [f"v_mfma_f32_16x16x32_bf16 {vr(acc(i,j),4)}, {vr(BUF[b]+i*4,4)}, {vr(BUF[b]+16+j*4,4)}, {'0' if zero else vr(acc(i,j),4)}"
                for j, i in seq]
    def half1(b, other, zero):
        for x in interleave(mf1(b, snake(4, 4), zero), other): k(x)
        Ls = k.lab("sk")
        k(f"s_cbranch_vccz {Ls}")
        for x in mf1(b, [(4, i) for i in range(4)], zero): k(x)
        k.label(Ls)
    loop2(reads1, half1, adv_ins(R, [VA, VB]), False)
    k("s_barrier")
    half1(1, [], False)
    n = 0
    for jj in range(5):
        if jj == 4:
            Ls = k.lab("us"); k(f"s_cbranch_vccz {Ls}")
        for P in range(2):
            a, b = acc(2 * P, jj), acc(2 * P + 1, jj)
            gelu(k, [a, a + 2, b, b + 2], T, C)
            o = O + (n & 1) * 4; n += 1
            for x, q in enumerate([a, a + 2, b, b + 2]): k(f"v_cvt_pk_bf16_f32 v{o+x}, v{q}, v{q+1}")
            k(f"ds_write_b128 v{VL16}, {vr(o,4)} offset:{(P*9+jj)*1024}")
            for e, q in enumerate([a, b]):
                i = 2 * P + e
                for h in range(2):
                    k(f"v_pk_add_f32 {vr(SM+4*i+2*h,2)}, {vr(SM+4*i+2*h,2)}, {vr(q+2*h,2)}")
                    k(f"v_pk_fma_f32 {vr(SM+16+4*i+2*h,2)}, {vr(q+2*h,2)}, {vr(q+2*h,2)}, {vr(SM+16+4*i+2*h,2)}")
    k.label(Ls)
    for m in range(1, 4):
        v = 0x11111111 << m
        k(f"s_mov_b32 s{58+2*m}, {v:#x}\ns_mov_b32 s{59+2*m}, {v:#x}")
    val = lambda P, i: SM + (i & 1) * 16 + (2 * P + (i >> 3)) * 4 + ((i >> 1) & 3)
    sets = [[val(P, i) for i in range(16)] for P in range(2)]
    reduce16(k, sets, 60)
    k(f"""
    v_bfe_u32 v{T+1}, v{VLN}, 3, 1
    v_lshlrev_b32 v{T+1}, 5, v{T+1}
    v_lshrrev_b32 v{T+2}, 4, v{VLN}
    v_lshl_add_u32 v{T+1}, v{T+2}, 3, v{T+1}
    v_and_b32 v{T+2}, 7, v{VLN}
    v_add_lshl_u32 v{T+1}, v{T+1}, v{T+2}, 2
    s_lshl_b32 s46, s36, 10
    s_lshl_b32 s47, s41, 9
    s_add_u32 s46, s46, s47
    buffer_atomic_add_f32 v{sets[0][0]}, v{T+1}, s[20:23], s46 offen
    buffer_atomic_add_f32 v{sets[1][0]}, v{T+1}, s[20:23], s46 offen offset:256
    s_waitcnt lgkmcnt(0)
    """)
    st()
    k(f"s_cmp_lg_u32 s32, 0\ns_cbranch_scc1 {L['C2q']}")
    ACZ, BZ = 104, [0, 52]
    acz = lambda i, j: ACZ + (i * 9 + j) * 4
    def readsz(sub, b):
        o = [f"ds_read_b128 {vr(BZ[b]+i*4,4)}, v{ZA} offset:{i*2048+sub*1024}" for i in range(4)]
        for j in range(9):
            for hh in range(2):
                o.append(f"ds_read_b64_tr_b16 {vr(BZ[b]+16+j*4+hh*2,2)}, v{ZB} offset:{sub*32*288+hh*8*288+j*32}")
        return o
    def halfz(b, other, zero):
        mf = [f"v_mfma_f32_16x16x32_bf16 {vr(acz(i,j),4)}, {vr(BZ[b]+16+j*4,4)}, {vr(BZ[b]+i*4,4)}, {'0' if zero else vr(acz(i,j),4)}"
              for i, j in snake(4, 9)]
        for x in interleave(mf, other): k(x)
    loop2(readsz, halfz, adv_ins(R, [ZA, ZB]), True)
    halfz(1, [], False)
    C, T, O = 0, 8, 16
    gelu_consts(k, C)
    k(f"""
    s_lshl_b32 s46, s38, 4
    s_lshl_b32 s47, s40, 2
    s_add_u32 s46, s46, s47          ; tfrag0
    s_mul_i32 s46, s46, {TFS}
    s_lshr_b32 s47, s39, 1
    s_mul_i32 s47, s47, 9216
    s_add_u32 s46, s46, s47
    s_and_b32 s47, s39, 1
    s_lshl_b32 s48, s47, 9
    s_add_u32 s48, s48, s46
    s_add_u32 s48, s48, {(18+8)*1024}
    s_lshl_b32 s47, s47, 12
    s_add_u32 s46, s46, s47
    s_add_u32 s46, s46, {18*1024}
    """)
    n = 0
    for i in range(4):
        for p in range(4):
            a, b = acz(i, 2 * p), acz(i, 2 * p + 1)
            gelu(k, [a, a + 2, b, b + 2], T, C)
            o = O + (n & 1) * 4; n += 1
            for x, q in enumerate([a, a + 2, b, b + 2]): k(f"v_cvt_pk_bf16_f32 v{o+x}, v{q}, v{q+1}")
            k(f"buffer_store_dwordx4 {vr(o,4)}, v{ZL16}, s[16:19], s46 offen offset:{p*1024} sc1")
        if i < 3: k(f"s_add_u32 s46, s46, {TFS}\ns_add_u32 s{49+i}, s{48+i}, {TFS}")
    for i in (0, 2):
        a, b = acz(i, 8), acz(i + 1, 8)
        gelu(k, [a, a + 2, b, b + 2], T, C)
        o = O + (n & 1) * 4; n += 1
        for x, q in enumerate([a, a + 2, b, b + 2]): k(f"v_cvt_pk_bf16_f32 v{o+x}, v{q}, v{q+1}")
        k(f"buffer_store_dwordx2 {vr(o,2)}, v{ZL8}, s[16:19], s{48+i} offen sc1")
        k(f"buffer_store_dwordx2 {vr(o+2,2)}, v{ZL8}, s[16:19], s{49+i} offen sc1")
    if stamps and not fused:
        st(); k("s_waitcnt vmcnt(0)"); st()
    k(f"s_branch {L['g2C']}" if fused else "s_endpgm")
    k.label(L["D"])
    if OPT.get("pd", 3): k(f"s_setprio {OPT.get('pd', 3)}")
    k(f"""
    s_sub_u32 s40, s33, 4            ; pw
    s_lshl_b32 s41, s40, 12          ; A lds
    s_lshl_b32 s42, s36, 14
    s_add_u32 s42, s42, s41          ; A goff
    s_mul_i32 s43, s37, 288
    s_add_u32 s43, s43, 4608         ; B goff
    s_add_u32 s47, s41, {BO1}        ; B lds
    s_lshl_b32 s48, s40, 9
    s_add_u32 s48, s48, {BO1+16384}
    s_mov_b32 s49, 0
    s_lshl_b32 s51, s40, 8
    """)
    lin_dma(k, 4, 8, 42, 41, 49)
    k("s_mov_b32 m0, s47")
    for n in range(4):
        w144_voff(k, 8 + n, 51, 9216)
        k("s_add_u32 s51, s51, 64")
        k(f"buffer_load_dwordx4 v{8+n}, s[12:15], s43 offen lds")
        k("s_add_u32 m0, m0, 1024")
    k("s_lshl_b32 s51, s40, 5\ns_add_u32 s51, s51, 1024")
    w144_voff(k, 12, 51, 9216)
    def half_dma(srdr, v, soff, mbase):
        k(f"s_add_u32 m0, s{mbase}, s49")
        k("s_mov_b32 exec_hi, 0")
        k(f"buffer_load_dwordx4 v{v}, s[{srdr}:{srdr+3}], s{soff} offen lds")
        k("s_mov_b32 exec_hi, -1")
    half_dma(12, 12, 43, 48)
    def adv1():
        k(f"s_add_u32 s42, s42, {128*2048}")
        k(f"s_add_u32 s43, s43, {64*9216}")
        slot_adv_prod(k, R, SZ, 49)
    def issue1():
        lin_dma(k, 4, 8, 42, 41, 49); gat_dma(k, 4, 12, 43, 47, 49, 8); half_dma(12, 12, 43, 48); adv1()
    adv1(); issue1()
    srd(k, 72, 64, 0, 576 * 3456)
    srd(k, 16, 4, A3_OFF, A3_SZ)
    srd(k, 20, 4, ST_OFF, ST_SZ)
    srd(k, 24, 66, 0, 2048 * 4096)
    srd(k, 80, 4, Z2T_OFF, Z2T_SZ)
    srd(k, 84, 4, FLG_OFF, FLG_SZ)
    st.init()
    for r in range(20, 27): k(f"v_mov_b32 v{r}, 0x80000000")
    Lq, Ld = k.lab("dq"), k.lab("dd")
    k(f"""
    s_cmp_lg_u32 s32, 0
    s_cbranch_scc1 {Lq}
    s_lshl_b32 s63, s40, 13          ; A lds
    s_lshl_b32 s60, s38, 15
    s_add_u32 s60, s60, s63          ; A goff
    s_mul_i32 s61, s39, 288          ; B goff
    s_add_u32 s88, s41, {BOZ}
    s_lshl_b32 s89, s40, 9
    s_add_u32 s89, s89, {BOZ+16384}
    s_mov_b32 s62, 0
    s_branch {Ld}
    {Lq}:
    s_lshl_b32 s60, s38, 14
    s_lshl_b32 s89, s40, 9
    s_sub_u32 s62, s60, 2048
    s_cmp_eq_u32 s38, 0
    s_cselect_b32 s62, 0, s62
    s_add_u32 s62, s62, s89
    s_add_u32 s60, s60, s41          ; A goff
    s_add_u32 s63, s41, 2048
    s_mul_i32 s61, s39, 144
    s_mul_i32 s88, s40, 7168
    s_add_u32 s88, s88, {BOQ}
    s_mul_i32 s51, s40, 448
    """)
    for n in range(7):
        qkv_voff(k, 20 + n, 51)
        k("s_add_u32 s51, s51, 64")
    k.label(Ld)
    k(f"""
    v_lshlrev_b32 v28, 7, v0
    s_lshl_b32 s44, s2, 2
    s_add_u32 s44, s44, s40
    s_lshl_b32 s44, s44, 13
    v_lshlrev_b32 v29, 2, v0
    v_lshrrev_b32 v30, 4, v0
    v_lshlrev_b32 v30, 5, v30
    s_lshl_b32 s45, s36, 10
    s_lshl_b32 s50, s40, 8
    s_add_u32 s45, s45, s50
    s_mul_i32 s50, s40, {9*1024}
    s_add_u32 s50, s50, {2*SZ}
    v_add_u32 v31, s50, v1
    s_lshl_b32 s46, s36, 1
    s_lshr_b32 s50, s40, 1
    s_add_u32 s46, s46, s50
    s_mul_i32 s46, s46, 144
    s_mul_i32 s50, s37, 9
    s_add_u32 s46, s46, s50
    s_lshl_b32 s46, s46, 11
    s_and_b32 s50, s40, 1
    s_lshl_b32 s50, s50, 10
    s_add_u32 s46, s46, s50          ; Z2T offset
    s_lshl_b32 s53, s36, 6           ; F1 row
    """)
    def ploop(n, iss, allowed):
        Lp = k.lab("pl")
        k(f"s_mov_b32 s58, {n}")
        k.label(Lp)
        k(f"s_waitcnt vmcnt({allowed})")
        k("s_barrier")
        iss()
        k(f"s_sub_u32 s58, s58, 1\ns_cmp_lg_u32 s58, 0\ns_cbranch_scc1 {Lp}")
    ploop(7, issue1, 9)
    def issue2():
        Lq, Ld = k.lab("iq"), k.lab("id")
        k(f"s_cmp_lg_u32 s32, 0\ns_cbranch_scc1 {Lq}")
        lin_dma(k, 8, 8, 60, 63, 49); gat_dma(k, 4, 12, 61, 88, 49, 8); half_dma(12, 12, 61, 89)
        k(f"s_add_u32 s61, s61, {64*9216}\ns_branch {Ld}")
        k.label(Lq)
        lin_dma(k, 4, 8, 60, 63, 49); half_dma(8, 1, 62, 89); gat_dma(k, 7, 72, 61, 88, 49, 20)
        k(f"s_add_u32 s62, s62, {128*2048}\ns_add_u32 s61, s61, {64*3456}")
        k.label(Ld)
        k(f"s_add_u32 s60, s60, {128*2048}")
        slot_adv_prod(k, R, SZ, 49)
    N2 = 12
    k("s_waitcnt vmcnt(9)")
    k("s_barrier")
    issue2()
    k(f"s_waitcnt vmcnt({N2})")
    k("s_barrier")
    issue2()
    if OPT.get("wpf", 1): k("buffer_load_dword v32, v28, s[24:27], s44 offen")
    k("s_barrier")
    k(f"s_waitcnt vmcnt({N2+OPT.get('wpf', 1)})")
    k("s_barrier")
    Z = 64
    for j in range(9): k(f"ds_read_b128 {vr(Z+4*j,4)}, v31 offset:{j*1024}")
    k("s_waitcnt lgkmcnt(0)")
    k("s_barrier")
    issue2()
    k(f"s_waitcnt vmcnt({N2+OPT.get('wpf', 1)})")
    k("s_barrier")
    Ls = k.lab("h1")
    k(f"s_cmp_lg_u32 s40, 0\ns_cbranch_scc1 {Ls}")
    set_flag(k, f"s_lshl_b32 s50, s37, 2\ns_add_u32 s50, s50, s53", 33)
    k.label(Ls)
    issue2()
    PB = OPT.get("pb", 13)
    if PB > 11: ploop(PB - 11, issue2, N2)
    ld1 = lambda: k("s_mov_b64 exec, 0xffff\nbuffer_load_dword v33, v29, s[84:87], s53 offen sc1\ns_mov_b64 exec, -1")
    ld1()
    k(f"s_waitcnt vmcnt({N2+1})")
    k("s_barrier")
    issue2()
    k(f"s_waitcnt vmcnt({N2})")
    spin(k, ld1, lambda: k("s_mov_b64 exec, 0xffff\nv_cmp_ne_u32 vcc, 1, v33\ns_mov_b64 exec, -1"))
    for i in range(4): k(f"buffer_load_dwordx4 {vr(36+4*i,4)}, v30, s[20:23], s45 offen offset:{(i>>1)*128+(i&1)*16} sc1")
    k("s_barrier")
    st(250)
    vm = [("L%d" % (PB + 2), N2), ("s", 4)]
    def allowed(tag):
        n = 0
        for t, c in reversed(vm):
            if t == tag: return n
            n += c
        raise KeyError(tag)
    def rcalc():
        k(f"s_waitcnt vmcnt({allowed('s')})")
        inv = f2u(1.0 / 2304)
        for i in range(8): k(f"v_mul_f32 v{36+2*i}, {inv:#x}, v{36+2*i}")
        for i in range(8): k(f"v_mul_f32 v{37+2*i}, {inv:#x}, v{37+2*i}")
        for i in range(8): k(f"v_fma_f32 v{37+2*i}, -v{36+2*i}, v{36+2*i}, v{37+2*i}")
        for i in range(8): k(f"v_max_f32 v{37+2*i}, 0, v{37+2*i}")
        def rnd8(o):
            for i in range(4): k(f"v_cvt_pk_bf16_f32 v{52+i}, v{o+4*i}, v{o+2+4*i}")
            for i in range(4):
                k(f"v_lshlrev_b32 v{o+4*i}, 16, v{52+i}")
                k(f"v_and_b32 v{o+2+4*i}, 0xffff0000, v{52+i}")
        rnd8(36); rnd8(37)
        for i in range(8): k(f"v_add_f32 v{37+2*i}, {f2u(1e-5):#x}, v{37+2*i}")
        rnd8(37)
        for i in range(8): k(f"v_sqrt_f32 v{37+2*i}, v{37+2*i}")
        rnd8(37)
        for i in range(8): k(f"v_rcp_f32 v{37+2*i}, v{37+2*i}")
        for i in range(8): k(f"v_mul_f32 v{36+2*i}, v{36+2*i}, v{37+2*i}")
    def unit(j):
        w, t = Z + 4 * j, 56
        for i in range(4):
            k(f"v_lshlrev_b32 v{t+2*i}, 16, v{w+i}")
            k(f"v_and_b32 v{t+2*i+1}, 0xffff0000, v{w+i}")
        for i in range(8): k(f"v_fma_f32 v{t+i}, v{t+i}, v{37+2*i}, -v{36+2*i}")
        for i in range(4): k(f"v_cvt_pk_bf16_f32 v{w+i}, v{t+2*i}, v{t+2*i+1}")
        k(f"v_permlane32_swap_b32 v{w}, v{w+2}")
        k(f"v_permlane32_swap_b32 v{w+1}, v{w+3}")
        k(f"v_permlane16_swap_b32 v{w}, v{w+2}")
        k(f"v_permlane16_swap_b32 v{w+1}, v{w+3}")
        if j and j % 2 == 0: k("s_add_u32 s46, s46, 4096")
        k(f"buffer_store_dwordx4 {vr(w,4)}, v1, s[80:83], s46 offen offset:{(j&1)*2048} sc1")
        vm.append(("z", 1))
    work = [rcalc] + [(lambda j=j: unit(j)) for j in range(9)]
    split = {13: [[0, 1, 2], [3, 4, 5], [6, 7, 8, 9]], 12: [[0, 1], [2, 3, 4], [5, 6], [7, 8, 9]], 11: [[0], [1, 2], [3, 4], [5, 6], [7, 8, 9]]}[PB]
    for n, b in enumerate(range(PB + 1, 17)):
        if b + 2 <= 17:
            issue2(); vm.append((f"L{b+2}", N2))
        for w_ in split[n]: work[w_]()
        k(f"s_waitcnt vmcnt({allowed(f'L{b+1}')})")
        k("s_barrier")
    st(250)
    if fused:
        k("s_waitcnt vmcnt(0)")
        set_flag(k, f"s_lshl_b32 s50, s37, 8\ns_lshl_b32 s51, s36, 4\ns_add_u32 s50, s50, s51\ns_lshl_b32 s51, s40, 2\ns_add_u32 s50, s50, s51\ns_add_u32 s50, s50, {F2}", 33)
    Lha = k.lab("ha")
    k(f"s_cmp_lg_u32 s32, 0\ns_cbranch_scc1 {Lha}")
    k(f"s_branch {L['g2D']}" if fused else "s_endpgm")
    k.label(Lha)
    k("s_setprio 0")
    k("s_barrier")
    k(f"s_branch {L['att']}")
    k.label(L["C2q"])
    ACQ, BQ = 104, [0, 48]
    acq = lambda i, j: ACQ + (i * 7 + j) * 4
    def readsq(sub, b):
        o = [f"ds_read_b128 {vr(BQ[b]+i*4,4)}, v{QA} offset:{i*2048+sub*1024}" for i in range(5)]
        for j in range(7):
            for hh in range(2):
                o.append(f"ds_read_b64_tr_b16 {vr(BQ[b]+20+j*4+hh*2,2)}, v{QBO if j & 1 else QBE} offset:{sub*32*448+hh*8*448+j*32}")
        return o
    def halfq(b, other, zero):
        mf = [f"v_mfma_f32_16x16x32_bf16 {vr(acq(i,j),4)}, {vr(BQ[b]+20+j*4,4)}, {vr(BQ[b]+i*4,4)}, {'0' if zero else vr(acq(i,j),4)}"
              for i, j in snake(5, 7)]
        for x in interleave(mf, other): k(x)
    loop2(readsq, halfq, adv_ins(R, [QA, QBE, QBO]), True)
    k("s_barrier")
    halfq(1, [], False)
    n = 0
    for j in range(7):
        if j == 6: k("s_mov_b32 exec_hi, s54")
        for i in range(5):
            a = acq(i, j); o = (n & 3) * 2; n += 1
            k(f"v_cvt_pk_bf16_f32 v{o}, v{a}, v{a+1}")
            k(f"v_cvt_pk_bf16_f32 v{o+1}, v{a+2}, v{a+3}")
            k(f"ds_write_b64 v{QW}, {vr(o,2)} offset:{i*16*440+j*32}")
    k("s_mov_b32 exec_hi, -1")
    k("s_waitcnt lgkmcnt(0)")
    k("v_mbcnt_lo_u32_b32 v0, -1, 0")
    k("v_mbcnt_hi_u32_b32 v0, -1, v0")
    k.label(L["att"])
    k(f"""
    s_and_b32 s55, s33, 3            ; head
    s_lshr_b32 s41, s33, 2
    s_and_b32 s42, s55, 1
    s_lshl_b32 s43, s41, 6
    s_add_u32 s44, s43, 2
    v_add_u32 v2, s44, v0
    v_mul_u32_u24 v2, 440, v2
    s_mul_i32 s44, s55, 36
    s_add_u32 s44, s44, {ATT}
    s_lshl_b32 s45, s42, 2
    s_add_u32 s45, s45, s44
    v_add_u32 v3, s45, v2
    s_xor_b32 s45, s42, 1
    s_lshl_b32 s45, s45, 5
    s_add_u32 s45, s45, s44
    v_add_u32 v2, s45, v2
    s_lshl_b32 s46, s38, 7
    s_add_u32 s46, s46, s43
    v_add_u32 v4, s46, v0            ; t
    s_mov_b32 s56, 0x05040100
    s_mov_b32 s57, 0x07060302
    v_and_b32 v11, 15, v0
    v_lshrrev_b32 v12, 4, v0
    s_lshl_b32 s46, s33, 4
    s_add_u32 s46, s46, 16
    v_add_u32 v13, s46, v11
    v_mul_u32_u24 v13, 440, v13
    v_lshl_add_u32 v13, v12, 4, v13
    v_add_u32 v13, {ATT}, v13
    s_mul_i32 s46, s39, 9
    v_add_u32 v12, s46, v12
    v_lshlrev_b32 v12, 8, v12
    v_lshl_add_u32 v12, v11, 4, v12
    s_lshl_b32 s46, s38, 3
    s_add_u32 s46, s46, s33
    s_mul_i32 s46, s46, {TFS}
    """)
    k("s_barrier")
    st(20)
    Q, KK, VV, LL, PP, OA = 24, 36, 116, 200, 210, 216
    def rdvec(dst, row, part):
        for h in range(4): k(f"ds_read_b64 {vr(dst+2*h,2)}, v3 offset:{row*440+part*144+8*h}")
        k(f"ds_read_b32 v{dst+8}, v2 offset:{row*440+part*144}")
    vecs = [(Q, 14, 0)] + [(KK + 10 * w, 14 - 2 * w, 1) for w in range(8)] + [(VV + 10 * w, 14 - 2 * w, 2) for w in range(8)]
    for v in vecs[:4]: rdvec(*v)
    nxt = 4
    for w in range(8): k(f"v_mov_b32 v{LL+w}, 0")
    for w in range(8):
        k("s_waitcnt lgkmcnt(10)")
        for i in range(9): k(f"v_dot2c_f32_bf16 v{LL+w}, v{Q+i}, v{KK+10*w+i}")
        rdvec(*vecs[nxt]); nxt += 1
    while nxt < len(vecs):
        rdvec(*vecs[nxt]); nxt += 1
    sc = f2u(18.0 ** -0.5)
    def rndL():
        for i in range(4): k(f"v_cvt_pk_bf16_f32 v{PP+i}, v{LL+2*i}, v{LL+2*i+1}")
        for i in range(4):
            k(f"v_lshlrev_b32 v{LL+2*i}, 16, v{PP+i}")
            k(f"v_and_b32 v{LL+2*i+1}, 0xffff0000, v{PP+i}")
    rndL()
    for w in range(8): k(f"v_mul_f32 v{LL+w}, {sc:#x}, v{LL+w}")
    rndL()
    k(f"v_mov_b32 v6, {f2u(-1e9):#x}")
    for w in range(1, 8):
        k(f"v_cmp_le_u32 s[{58+2*(w&1)}:{59+2*(w&1)}], {2*w}, v4")
        if w > 1: k(f"v_cndmask_b32 v{LL+w-1}, v6, v{LL+w-1}, s[{58+2*((w-1)&1)}:{59+2*((w-1)&1)}]")
    k(f"v_cndmask_b32 v{LL+7}, v6, v{LL+7}, s[60:61]")
    k(f"v_max3_f32 v7, v{LL}, v{LL+1}, v{LL+2}")
    k(f"v_max3_f32 v8, v{LL+3}, v{LL+4}, v{LL+5}")
    k(f"v_max3_f32 v7, v7, v{LL+6}, v{LL+7}")
    k(f"v_max_f32 v7, v7, v8")
    l2e = f2u(math.log2(math.e))
    for w in range(8): k(f"v_sub_f32 v{LL+w}, v{LL+w}, v7")
    for w in range(8): k(f"v_mul_f32 v{LL+w}, {l2e:#x}, v{LL+w}")
    for w in range(8): k(f"v_exp_f32 v{LL+w}, v{LL+w}")
    k(f"v_add_f32 v7, v{LL}, v{LL+1}")
    k(f"v_add_f32 v8, v{LL+2}, v{LL+3}")
    k(f"v_add_f32 v9, v{LL+4}, v{LL+5}")
    k(f"v_add_f32 v10, v{LL+6}, v{LL+7}")
    k("v_add_f32 v7, v7, v8\nv_add_f32 v9, v9, v10\nv_add_f32 v7, v7, v9\nv_rcp_f32 v7, v7")
    for w in range(8): k(f"v_mul_f32 v{LL+w}, v{LL+w}, v7")
    for i in range(4): k(f"v_cvt_pk_bf16_f32 v{PP+i}, v{LL+2*i}, v{LL+2*i+1}")
    for i in range(18): k(f"v_mov_b32 v{OA+i}, 0")
    k("s_waitcnt lgkmcnt(0)")
    for wp in range(4):
        x, y = VV + 20 * wp, VV + 20 * wp + 10
        for i in range(9):
            k(f"v_perm_b32 v{KK+2*i}, v{y+i}, v{x+i}, s56")
            k(f"v_perm_b32 v{KK+2*i+1}, v{y+i}, v{x+i}, s57")
        for i in range(18): k(f"v_dot2c_f32_bf16 v{OA+i}, v{KK+i}, v{PP+wp}")
    for i in range(9): k(f"v_cvt_pk_bf16_f32 v{Q+i}, v{OA+2*i}, v{OA+2*i+1}")
    for h in range(4): k(f"ds_write_b64 v3, {vr(Q+2*h,2)} offset:{14*440+8*h}")
    k(f"ds_write_b32 v2, v{Q+8} offset:{14*440}")
    k("s_waitcnt lgkmcnt(0)")
    k("s_barrier")
    for n in range(3):
        k(f"ds_read_b64 {vr(KK+4*n,2)}, v13 offset:{64*n}")
        k(f"ds_read_b64 {vr(KK+4*n+2,2)}, v13 offset:{64*n+8}")
    for n in range(3):
        k(f"s_waitcnt lgkmcnt({4-2*n})")
        if n == 2: k("s_mov_b64 exec, 0xffff")
        k(f"buffer_store_dwordx4 {vr(KK+4*n,4)}, v12, s[16:19], s46 offen offset:{1024*n} sc1")
    k("s_mov_b64 exec, -1")
    if stamps and not fused:
        st(20); k("s_waitcnt vmcnt(0)"); st(20)
    if fused: k(f"s_branch {L['g2X']}")
    else: k("s_endpgm")

def gen_k1(name, stamps=False):
    k = Kern(name); st = Stamps(k, stamps, 1)
    L = {n: k.lab(n) for n in "end D H Dq C2q att".split()}
    preamble(k, 256, L["end"], [(4, "ws"), (6, "w_in"), (64, "wqkv"), (66, "w_sp")])
    k1_body(k, st, L, False)
    k.label(L["end"])
    k("s_endpgm")
    return k

def g23_body(k, st, L, fused):
    S, R, SZ, BO = 32, 3, 34816, 16384
    ZS = 126976
    S3, R3, SZ3, BO3, LA3, SL0 = 45, 7, 17408, 8192, 4, 5
    stamps = st.on
    def tiles():
        k("""
        s_and_b32 s36, s34, 1
        s_lshl_b32 s36, s36, 3
        s_and_b32 s37, s35, 7
        s_add_u32 s36, s36, s37          ; mt
        s_lshr_b32 s37, s34, 1
        s_lshl_b32 s37, s37, 2
        s_lshr_b32 s38, s35, 3
        s_add_u32 s37, s37, s38          ; nt
        s_and_b32 s38, s34, 3
        s_lshl_b32 s38, s38, 3
        s_and_b32 s39, s35, 7
        s_add_u32 s38, s38, s39
        s_lshr_b32 s39, s34, 2
        s_lshl_b32 s39, s39, 2
        s_lshr_b32 s50, s35, 3
        s_add_u32 s39, s39, s50          ; nt3
        """)
    if fused:
        k.label(L["g2X"])
        k(f"s_cmp_ge_u32 s33, 4\ns_cbranch_scc1 {L['g2D2']}")
    k.label(L["g2C"])
    ACC, BUF = 104, [0, 52]
    VA01, VA23, VB, VL16, VT = 248, 249, 250, 251, 252
    acc = lambda i, j: ACC + (i * 9 + j) * 4
    k(f"""
    s_load_dwordx2 s[6:7], s[0:1], {KA['b_sp']}
    s_load_dwordx2 s[64:65], s[0:1], {KA['x']}
    s_load_dwordx2 s[66:67], s[0:1], {KA['out']}
    v_mbcnt_lo_u32_b32 v{VL16}, -1, 0
    v_mbcnt_hi_u32_b32 v{VL16}, -1, v{VL16}
    v_lshlrev_b32 v{VL16}, 4, v{VL16}
    s_and_b32 s40, s33, 1            ; mh
    s_lshr_b32 s41, s33, 1           ; kh
    v_bfe_u32 v{VB}, v{VL16}, 4, 4       ; row
    v_lshrrev_b32 v{VT}, 8, v{VL16}      ; q
    s_lshl_b32 s42, s41, 2
    v_add_u32 v{VT}, s42, v{VT}
    v_lshrrev_b32 v{VA01}, 1, v{VB}
    v_xor_b32 v{VT}, v{VT}, v{VA01}
    v_lshlrev_b32 v{VT}, 4, v{VT}
    v_lshl_add_u32 v{VT}, v{VB}, 7, v{VT}
    s_lshl_b32 s42, s40, 13
    s_lshl_b32 s43, s41, 10
    s_lshl_b32 s44, s41, 12
    s_add_u32 s45, s42, s44
    v_add_u32 v{VA01}, s45, v{VT}
    s_xor_b32 s44, s44, 4096
    s_add_u32 s45, s42, s44
    v_add_u32 v{VA23}, s45, v{VT}
    s_add_u32 s45, s43, {BO}
    v_add_u32 v{VB}, s45, v{VL16}
    """)
    adv_setup(k, R, SZ)
    st()
    def reads(b):
        o = [f"ds_read_b128 {vr(BUF[b]+i*4,4)}, v{VA01 if i < 2 else VA23} offset:{(i&1)*2048}" for i in range(4)]
        o += [f"ds_read_b128 {vr(BUF[b]+16+j*4,4)}, v{VB} offset:{j*2048}" for j in range(9)]
        return o
    def mfmas(b, zero=False, seq=None):
        return [f"v_mfma_f32_16x16x32_bf16 {vr(acc(i,j),4)}, {vr(BUF[b]+16+j*4,4)}, {vr(BUF[b]+i*4,4)}, {'0' if zero else vr(acc(i,j),4)}"
                for i, j in (seq or snake(4, 9))]
    adv = adv_ins(R, [VA01, VA23, VB])
    k("s_barrier")
    st()
    for r in reads(0) + adv: k(r)
    tiles()
    k(f"""
    s_lshl_b32 s47, s40, 2
    s_lshl_b32 s69, s41, 1
    s_add_u32 s69, s69, s47
    s_lshl_b32 s46, s36, 3
    s_add_u32 s46, s46, s69          ; tfrag0
    s_mul_i32 s60, s46, {TFS}
    s_lshr_b32 s47, s37, 1
    s_mul_i32 s47, s47, 9216
    s_add_u32 s60, s60, s47
    s_and_b32 s47, s37, 1
    s_lshl_b32 s62, s47, 9
    s_add_u32 s62, s62, s60
    s_add_u32 s62, s62, {(18+8)*1024}
    s_lshl_b32 s47, s47, 12
    s_add_u32 s60, s60, s47
    s_add_u32 s60, s60, {18*1024}
    s_add_u32 s61, s60, {TFS}
    s_add_u32 s63, s62, {TFS}
    s_mul_i32 s48, s69, 4608
    s_add_u32 s48, s48, {ZS}
    s_mov_b32 s58, 15
    s_waitcnt lgkmcnt(0)
    """)
    srd(k, 16, 4, A3_OFF, A3_SZ)
    srd(k, 24, 6, 0, 4096)
    srd(k, 72, 64, 0, 2048 * 1152)
    srd(k, 76, 66, 0, 2048 * 1152)
    srd(k, 84, 4, FLG_OFF, FLG_SZ)
    k("s_barrier")
    for x in interleave(mfmas(0, True), reads(1) + adv): k(x)
    k("s_waitcnt lgkmcnt(0)")
    Ltop = k.lab("top")
    k.label(Ltop)
    k("s_barrier")
    for x in interleave(mfmas(1), reads(0) + adv): k(x)
    k("s_waitcnt vmcnt(0) lgkmcnt(0)")
    k("s_barrier")
    for x in interleave(mfmas(0), reads(1) + adv + CNT): k(x)
    k("s_waitcnt lgkmcnt(0)")
    k(f"s_cbranch_scc1 {Ltop}")
    k("s_barrier")
    st()
    XT, BT = 40, 96
    k(f"""
    v_add_u32 v{VA01}, s48, v{VL16}
    v_lshrrev_b32 v50, 9, v{VL16}
    v_lshlrev_b32 v50, 8, v50
    v_and_b32 v51, 0xf0, v{VL16}
    v_add_u32 v50, v50, v51
    v_bfe_u32 v51, v{VL16}, 8, 1
    v_lshl_add_u32 v{VT}, v51, 3, v50
    v_add_u32 v{VB}, s48, v{VT}
    s_lshl_b32 s42, s40, 1
    s_add_u32 s43, s42, s41
    s_mul_i32 s43, s43, 18432
    s_xor_b32 s44, s41, 1
    s_add_u32 s44, s44, s42
    s_mul_i32 s44, s44, 18432
    """)
    zr = []
    for e in range(2):
        for p in range(4): zr.append(f"ds_read_b128 {vr(e*20+p*4,4)}, v{VA01} offset:{e*4608+p*1024}")
        zr.append(f"ds_read_b64 {vr(e*20+16,2)}, v{VB} offset:{e*4608+4096}")
    zr += [f"v_add_u32 v{VA23}, s43, v{VL16}"]
    send = [(i, j) for i in (2, 3) for j in range(9)]
    keep = [(i, j) for i in (0, 1) for j in range(9)]
    for m in interleave(mfmas(1, seq=send), zr): k(m)
    wr = [f"ds_write_b128 v{VA23}, {vr(acc(2,0)+n*4,4)} offset:{n*1024}" for n in range(18)]
    for m in interleave(mfmas(1, seq=keep), wr): k(m)
    G0, G1, GB, GBH, GO = 96, 97, 98, 99, 100
    k(f"""
    v_add_u32 v{VA23}, s44, v{VL16}
    v_bfe_u32 v53, v{VL16}, 4, 4         ; lane&15
    s_lshl_b32 s47, s46, 4
    v_add_u32 v54, s47, v53
    v_lshlrev_b32 v55, 1, v54
    buffer_load_ushort v60, v55, s[24:27], 0 offen
    buffer_load_ushort v61, v55, s[24:27], 0 offen offset:32
    v_lshrrev_b32 v52, 8, v{VL16}        ; q
    v_mul_u32_u24 v{GO}, 1152, v53
    v_lshl_add_u32 v{GO}, v52, 3, v{GO}
    s_lshl_b32 s70, s38, 2
    s_add_u32 s70, s70, s42
    s_add_u32 s70, s70, s41
    s_mul_i32 s47, s70, {16*1152}
    s_mul_i32 s50, s39, 144
    s_add_u32 s47, s47, s50          ; out offset
    """.replace("s70", "s52"))
    for j in range(5): k(f"buffer_load_dwordx2 {vr(XT+2*j,2)}, v{GO}, s[72:75], s47 offen offset:{j*32}")
    k("s_waitcnt lgkmcnt(0)")
    k("s_barrier")
    for n in range(18): k(f"ds_read_b128 {vr(acc(2,0)+n*4,4)}, v{VA23} offset:{n*1024}")
    k(f"""
    s_lshl_b32 s42, s40, 12
    s_lshl_b32 s43, s41, 10
    s_add_u32 s42, s42, s43
    s_add_u32 s42, s42, {SL0*SZ3}
    s_lshl_b32 s44, s41, 11
    s_add_u32 s45, s42, s44
    v_add_u32 v{G0}, s45, v{VL16}
    s_xor_b32 s44, s44, 2048
    s_add_u32 s45, s42, s44
    v_add_u32 v{G1}, s45, v{VL16}
    s_add_u32 s45, s43, {BO3+SL0*SZ3}
    v_add_u32 v{GB}, s45, v{VL16}
    v_and_b32 v53, 7, v53
    v_lshl_add_u32 v53, v52, 3, v53
    v_lshlrev_b32 v53, 4, v53
    s_lshl_b32 s45, s41, 9
    s_add_u32 s45, s45, {BO3+8192+SL0*SZ3}
    v_add_u32 v{GBH}, s45, v53
    s_waitcnt vmcnt(5)
    v_lshlrev_b32 v70, 16, v60
    v_lshlrev_b32 v72, 16, v61
    v_mov_b32 v71, v70
    v_mov_b32 v73, v72
    s_waitcnt lgkmcnt(0)
    s_barrier
    """)
    st()
    T = 52
    for e in range(2):
        for j in range(9):
            a, b = acc(e, j), acc(2 + e, j)
            z = e * 20 + j * 2
            t = T + (j & 1) * 4
            k(f"""
            v_pk_add_f32 {vr(a,2)}, {vr(a,2)}, {vr(b,2)}
            v_pk_add_f32 {vr(a+2,2)}, {vr(a+2,2)}, {vr(b+2,2)}
            v_lshlrev_b32 v{t}, 16, v{z}
            v_and_b32 v{t+1}, 0xffff0000, v{z}
            v_pk_add_f32 {vr(a,2)}, {vr(a,2)}, {vr(70+2*e,2)}
            v_pk_add_f32 {vr(a+2,2)}, {vr(a+2,2)}, {vr(70+2*e,2)}
            v_lshlrev_b32 v{t+2}, 16, v{z+1}
            v_and_b32 v{t+3}, 0xffff0000, v{z+1}
            v_pk_mul_f32 {vr(a,2)}, {vr(a,2)}, {vr(t,2)}
            v_pk_mul_f32 {vr(a+2,2)}, {vr(a+2,2)}, {vr(t+2,2)}
            v_cvt_pk_bf16_f32 v{z}, v{a}, v{a+1}
            v_cvt_pk_bf16_f32 v{z+1}, v{a+2}, v{a+3}
            """)
            if j & 1:
                p = j >> 1
                k(f"buffer_store_dwordx4 {vr(e*20+p*4,4)}, v{VL16}, s[16:19], s{60+e} offen offset:{p*1024} sc1")
            elif j == 8:
                k(f"buffer_store_dwordx2 {vr(e*20+16,2)}, v{VT}, s[16:19], s{62+e} offen sc1")
    AC3, BU3 = 104, [0, 28]
    ac3 = lambda i, j: AC3 + (i * 5 + j) * 4
    k("s_waitcnt vmcnt(10)")
    for j in range(5):
        for h in range(2):
            k(f"v_lshlrev_b32 v{ac3(0,j)+2*h}, 16, v{XT+2*j+h}")
            k(f"v_and_b32 v{ac3(0,j)+2*h+1}, 0xffff0000, v{XT+2*j+h}")
    for r in range(ac3(1, 0), ac3(1, 4) + 4): k(f"v_mov_b32 v{r}, 0")
    adv_setup(k, R3, SZ3)
    k(f"s_mov_b32 s59, {SL0}")
    st()
    k("s_waitcnt vmcnt(0)")
    set_flag(k, f"s_lshl_b32 s50, s36, 8\ns_lshl_b32 s51, s37, 4\ns_add_u32 s50, s50, s51\ns_lshl_b32 s51, s33, 2\ns_add_u32 s50, s50, s51\ns_add_u32 s50, s50, {F4}", 60)
    def reads3(sub, b):
        o = [f"ds_read_b128 {vr(BU3[b],4)}, v{G0}", f"ds_read_b128 {vr(BU3[b]+4,4)}, v{G1}"]
        o += [f"ds_read_b128 {vr(BU3[b]+8+j*4,4)}, v{GB} offset:{j*2048}" for j in range(4)]
        o += [f"ds_read_b128 {vr(BU3[b]+24,4)}, v{GBH}"]
        return o
    def mf3(b):
        return [f"v_mfma_f32_16x16x32_bf16 {vr(ac3(i,j),4)}, {vr(BU3[b]+8+j*4,4)}, {vr(BU3[b]+i*4,4)}, {vr(ac3(i,j),4)}"
                for i, j in snake(2, 5)]
    last = consumer_loop(k, S3, 1, reads3, mf3, adv_ins(R3, [G0, G1, GB, GBH]), True, st=st)
    st()
    for m in mf3(last): k(m)
    k("s_lshl_b32 s42, s40, 1")
    ksplit_reduce(k, ac3(1, 0), 5, 42, 41, VL16, G0, G1, 0)
    for n in range(5): k(f"ds_read_b128 {vr(ac3(1,0)+n*4,4)}, v{G1} offset:{n*1024}")
    for j in range(5):
        k(f"s_waitcnt lgkmcnt({4-j})")
        a, b = ac3(0, j), ac3(1, j)
        k(f"v_pk_add_f32 {vr(a,2)}, {vr(a,2)}, {vr(b,2)}")
        k(f"v_pk_add_f32 {vr(a+2,2)}, {vr(a+2,2)}, {vr(b+2,2)}")
        k(f"v_cvt_pk_bf16_f32 v{2*j}, v{a}, v{a+1}")
        k(f"v_cvt_pk_bf16_f32 v{2*j+1}, v{a+2}, v{a+3}")
        if j == 4: k("s_mov_b32 exec_hi, 0")
        k(f"buffer_store_dwordx2 {vr(2*j,2)}, v{GO}, s[76:79], s47 offen offset:{j*32}")
    if stamps:
        k("s_mov_b32 exec_hi, -1")
        st(); k("s_waitcnt vmcnt(0)"); st()
    k("s_endpgm")
    k.label(L["g2D"])
    LD = " sc1" if fused else ""
    if fused: k.label(L["g2D2"])
    if OPT.get("pd", 3): k(f"s_setprio {OPT.get('pd', 3)}")
    k(f"s_load_dwordx2 s[6:7], s[0:1], {KA['w_sp']}")
    tiles()
    srd(k, 12, 4, Z2T_OFF, Z2T_SZ)
    srd(k, 16, 4, A3_OFF, A3_SZ)
    srd(k, 84, 4, FLG_OFF, FLG_SZ)
    k(f"""
    v_mbcnt_lo_u32_b32 v0, -1, 0
    v_mbcnt_hi_u32_b32 v0, -1, v0
    v_lshlrev_b32 v1, 4, v0
    v_lshlrev_b32 v2, 2, v0
    v_lshrrev_b32 v5, 4, v0
    v_and_b32 v6, 7, v0
    v_xor_b32 v6, v6, v5
    v_lshrrev_b32 v5, 3, v0
    v_lshlrev_b32 v5, 12, v5
    v_lshl_add_u32 v6, v6, 4, v5
    v_xor_b32 v7, 64, v6
    s_sub_u32 s40, s33, 4            ; pw
    s_lshl_b32 s41, s40, 12
    s_lshl_b32 s42, s36, 19
    s_lshl_b32 s50, s40, 17
    s_add_u32 s42, s42, s50          ; A goff
    s_mul_i32 s43, s37, 18432
    s_lshl_b32 s45, s40, 9
    s_add_u32 s46, s43, s45
    s_add_u32 s46, s46, 16384        ; B2 goff
    s_add_u32 s43, s43, s41          ; B goff
    s_add_u32 s47, s41, {BO}
    s_add_u32 s45, s45, {BO+16384}
    s_mov_b32 s49, 0
    s_waitcnt lgkmcnt(0)
    """)
    srd(k, 8, 6, 0, 2048 * 4096)
    def issueA():
        k("s_add_u32 m0, s41, s49")
        for n in range(4):
            if n: k(f"s_add_u32 m0, m0, 1024\ns_add_u32 s50, s42, {n*32768}")
            k(f"buffer_load_dwordx4 v{6+(n&1)}, s[8:11], s{50 if n else 42} offen lds")
        k("s_add_u32 s42, s42, 128")
    def issueB():
        lin_dma(k, 4, 12, 43, 47, 49, mods=LD)
        k("s_add_u32 m0, s45, s49")
        k("s_mov_b32 exec_hi, 0")
        k(f"buffer_load_dwordx4 v1, s[12:15], s46 offen{LD} lds")
        k("s_mov_b32 exec_hi, -1")
        k(f"s_add_u32 s43, s43, {144*2048}")
        k(f"s_add_u32 s46, s46, {144*2048}")
    def issue():
        issueA(); issueB(); slot_adv_prod(k, R, SZ, 49)
    def ploop(n, iss, allowed):
        Lp = k.lab("pl")
        k(f"s_mov_b32 s58, {n}")
        k.label(Lp)
        k(f"s_waitcnt vmcnt({allowed})")
        k("s_barrier")
        iss()
        k(f"s_sub_u32 s58, s58, 1\ns_cmp_lg_u32 s58, 0\ns_cbranch_scc1 {Lp}")
    if fused:
        k(f"s_lshl_b32 s53, s37, 8\ns_add_u32 s53, s53, {F2}")
        ld = lambda: k("buffer_load_dword v4, v2, s[84:87], s53 offen sc1")
        ld(); k("s_waitcnt vmcnt(0)")
        spin(k, ld, lambda: k("v_cmp_ne_u32 vcc, 1, v4"))
    issue(); issue()
    srd(k, 68, 4, W3_OFF, W3_SZ)
    k(f"""
    s_lshl_b32 s60, s40, 11          ; g3 A lds
    s_lshl_b32 s61, s38, 2
    s_add_u32 s61, s61, s40
    s_mul_i32 s61, s61, {TFS}        ; g3 A goff
    s_mul_i32 s62, s39, 9216
    s_lshl_b32 s63, s40, 8
    s_add_u32 s48, s62, s63
    s_add_u32 s48, s48, 8192         ; g3 B2 goff
    s_add_u32 s62, s62, s60          ; g3 B goff
    s_add_u32 s65, s60, {BO3}
    s_add_u32 s66, s63, {BO3+8192}
    s_mov_b32 s67, {SL0*SZ3}
    s_lshl_b32 s51, s36, 3
    s_lshl_b32 s52, s40, 1
    s_add_u32 s51, s51, s52
    s_mul_i32 s51, s51, {TFS}
    s_lshr_b32 s50, s37, 1
    s_mul_i32 s50, s50, 9216
    s_add_u32 s51, s51, s50
    s_and_b32 s50, s37, 1
    s_lshl_b32 s44, s50, 9
    s_add_u32 s44, s44, s51
    s_add_u32 s44, s44, {26*1024}
    s_lshl_b32 s50, s50, 12
    s_add_u32 s51, s51, s50
    s_add_u32 s51, s51, {18*1024}
    s_mul_i32 s52, s52, 4608
    s_add_u32 s52, s52, {ZS}
    s_lshr_b32 s53, s38, 1
    s_lshl_b32 s53, s53, 8
    s_add_u32 s53, s53, {F4}
    s_movk_i32 s54, {F3}
    """)
    ZB = OPT.get("zb", 21)
    if fused:
        ploop(4, issue, 9)
        Ls = k.lab("f3")
        k(f"s_cmp_lg_u32 s40, 0\ns_cbranch_scc1 {Ls}")
        set_flag(k, f"s_lshl_b32 s50, s2, 2\ns_add_u32 s50, s50, {F3}", 8)
        k.label(Ls)
        ploop(ZB - 5, issue, 9)
        ld = lambda: k("buffer_load_dwordx4 v[8:11], v1, s[84:87], s54 offen sc1")
        ld()
        ploop(1, issue, 10)
        k("s_waitcnt vmcnt(9)")
        spin(k, ld, lambda: k("v_and_b32 v8, v8, v9\nv_and_b32 v10, v10, v11\nv_and_b32 v8, v8, v10\nv_cmp_ne_u32 vcc, 1, v8"))
    else:
        ploop(ZB, issue, 9)
    for e in range(2):
        k(f"s_add_u32 m0, s52, {e*4608}")
        for n in range(4): k(f"buffer_load_dwordx4 v1, s[16:19], s51 offen offset:{n*1024}{LD} lds")
        k(f"s_add_u32 m0, s52, {e*4608+4096}")
        k("s_mov_b32 exec_hi, 0")
        k(f"buffer_load_dwordx4 v1, s[16:19], s44 offen{LD} lds")
        k("s_mov_b32 exec_hi, -1")
        k(f"s_add_u32 s51, s51, {TFS}\ns_add_u32 s44, s44, {TFS}")
    ploop(2, issue, 19)
    ploop(30 - ZB - 2, issue, 9)
    def issue3():
        k("s_add_u32 m0, s60, s67")
        for n in range(2): k(f"buffer_load_dwordx4 v1, s[16:19], s61 offen offset:{n*1024} sc1 lds")
        k("s_add_u32 m0, s65, s67")
        for n in range(2): k(f"buffer_load_dwordx4 v1, s[68:71], s62 offen offset:{n*1024} lds")
        k("s_add_u32 m0, s66, s67")
        k("s_mov_b64 exec, 0xffff")
        k(f"buffer_load_dwordx4 v1, s[68:71], s48 offen lds")
        k("s_mov_b64 exec, -1")
        k(f"s_add_u32 s61, s61, 2048")
        k(f"s_add_u32 s62, s62, {8*9216}")
        k(f"s_add_u32 s48, s48, {8*9216}")
        slot_adv_prod(k, R3, SZ3, 67)
    k("s_waitcnt vmcnt(9)")
    k("s_barrier")
    issue3(); issue3()
    k("s_waitcnt vmcnt(10)")
    k("s_barrier")
    k("s_barrier")
    k("s_barrier")
    k("s_barrier")
    issue3(); issue3()
    ploop(4, issue3, 15)
    ld4 = lambda: k("buffer_load_dword v4, v2, s[84:87], s53 offen sc1")
    ld4()
    k("s_waitcnt vmcnt(16)")
    k("s_barrier")
    issue3()
    k("s_waitcnt vmcnt(16)")
    k("s_barrier")
    k("s_waitcnt vmcnt(5)")
    spin(k, ld4, lambda: k("v_cmp_ne_u32 vcc, 1, v4"))
    issue3()
    ploop(S3 - LA3 - 6, issue3, 15)
    for b in range(S3 - LA3, S3):
        k(f"s_waitcnt vmcnt({(S3-1-b)*5})")
        k("s_barrier")
    k("s_endpgm")

def gen_g23(name, stamps=False):
    k = Kern(name); st = Stamps(k, stamps, 3)
    L = {n: k.lab(n) for n in "end g2C g2D".split()}
    preamble(k, 256, L["end"], [(4, "ws")])
    k("s_waitcnt lgkmcnt(0)")
    st.init()
    k(f"s_cmp_ge_u32 s33, 4\ns_cbranch_scc1 {L['g2D']}")
    g23_body(k, st, L, False)
    k.label(L["end"])
    k("s_endpgm")
    return k

def gen_main(name, stamps=False):
    k = Kern(name); st = Stamps(k, stamps, 1)
    L = {n: k.lab(n) for n in "end D H Dq C2q att g2C g2D g2D2 g2X".split()}
    preamble(k, 256, L["end"], [(4, "ws"), (6, "w_in"), (64, "wqkv"), (66, "w_sp")])
    k1_body(k, st, L, True)
    g23_body(k, st, L, True)
    k.label(L["end"])
    k("s_endpgm")
    return k

def gen_prep6(name):
    k = gen_prep(name, 9)
    items = []
    for kind, t in k.items:
        if t == "s_mov_b64 exec, 1":
            k2 = Kern("x")
            srd(k2, 24, 4, FLG_OFF, FLG_SZ)
            k2("s_mul_i32 s47, s2, 80\ns_mov_b64 exec, 0xfffff\nbuffer_store_dword v40, v7, s[24:27], s47 offen")
            items += k2.items
        items.append((kind, t))
    k.items = items
    return k

if __name__ == "__main__":
    HEADER = open("parallel_sum__sliding_local_dilated__mixer_gmlp__prompt.s.ref").read().split("; Override launch")[0]
    stamps = "stamps" in sys.argv[2:]
    for a in sys.argv[2:]:
        if "=" in a: OPT[a.split("=")[0]] = int(a.split("=")[1])
    ks = [(gen_prep6("prep_kernel"), 104, 173, 576, 73728)]
    if "fused" in sys.argv[2:]:
        ks += [(gen_main("main_kernel", stamps), 256, 256, 512, 163840)]
    else:
        ks += [(gen_k1("k1_kernel", stamps), 256, 256, 512, 163840), (gen_g23("g23_kernel", stamps), 256, 256, 512, 163840)]
    txt = assemble_file(HEADER + "; generated by a python script (tile loops, fragment layouts and wait states hand-designed)\n", ks)
    txt = re.sub(r"(?m)^(\s+buffer_store_dwordx4 .*offen( offset:[0-9]+)?)$", r"\1 sc1", txt)
    open(sys.argv[1], "w").write(txt)
```

```python
import sys, math
from asmlib import *

XN_OFF   = 0x0000000; XN_SZ  = 9 * 128 * 2048
Z2T_OFF  = 0x0400000; Z2T_SZ = 32 * 144 * 2048
WSP_OFF  = 0x1000000; WSP_SZ = 32 * 128 * 2048
Z1P_OFF  = 0x1900000; Z1P_SZ = 128 * 16 * 4608
A3_OFF   = 0x2300000; A3_SZ  = 45 * 128 * 2048
W3_OFF   = 0x3000000; W3_SZ  = 45 * 8 * 9216
ST_OFF   = 0x3400000; ST_SZ  = 2048 * 8
CT_OFF   = 0x3410000; CT_SZ  = 4 * 2048 * 4
STAMP_OFF = 0x3800000

OPT = dict(noA=0, noB=0, linB=0, nomfma=0, la_z2=3, la_z1=2, la_g2=3, la_g3=7)
KA = dict(x=0, wqkv=8, wo=16, bx=24, w_in=32, w_sp=40, b_sp=48, w_out=56, out=64, dbg=72, ws=80)
import struct
def f2u(f): return struct.unpack("<I", struct.pack("<f", f))[0]
GC0 = -2.0 * math.sqrt(2.0 / math.pi) * math.log2(math.e)
GC1 = GC0 * 0.044715

def srd(k, d, base, off, size):
    if off:
        k(f"s_add_u32 s{d}, s{base}, {off:#x}")
        k(f"s_addc_u32 s{d+1}, s{base+1}, 0")
    else:
        k(f"s_mov_b32 s{d}, s{base}")
        k(f"s_mov_b32 s{d+1}, s{base+1}")
    k(f"s_mov_b32 s{d+2}, {size:#x}")
    k(f"s_mov_b32 s{d+3}, 0x20000")

class Stamps:
    def __init__(self, k, on, kidx=0): self.k, self.on, self.kidx = k, on, kidx
    def init(self, wsbase=4, widx=33):
        if not self.on: return
        k = self.k
        srd(k, 96, wsbase, STAMP_OFF + self.kidx * 0x100000, 1 << 20)
        k(f"s_lshl_b32 s95, s2, 4")
        k(f"s_add_u32 s95, s95, s{widx}")
        k(f"s_lshl_b32 s95, s95, 8")
    def __call__(self, v=254):
        if not self.on: return
        k = self.k
        k("s_memtime s[90:91]")
        k("s_memrealtime s[92:93]")
        k("s_waitcnt lgkmcnt(0)")
        k(f"v_mov_b32 v{v}, s90")
        k(f"v_mov_b32 v{v+1}, s92")
        k(f"v_mov_b32 v{v-1}, 0")
        k(f"buffer_store_dwordx2 v[{v}:{v+1}], v{v-1}, s[96:99], s95 offen")
        k("s_add_u32 s95, s95, 8")

def interleave(mf, other, start=0, step=1):
    out = []; oi = 0
    for n, m in enumerate(mf):
        out.append(m)
        if n >= start and (n - start) % step == 0 and oi < len(other):
            out.append(other[oi]); oi += 1
    out += other[oi:]
    return out

def preamble(k, nblocks, Lend, loads):
    k(f"s_cmp_ge_u32 s2, {nblocks}")
    k(f"s_cbranch_scc1 {Lend}")
    for reg, name in loads: k(f"s_load_dwordx2 s[{reg}:{reg+1}], s[0:1], {KA[name]}")
    k("""
    v_lshrrev_b32 v1, 6, v0
    v_and_b32 v0, 63, v0
    v_readfirstlane_b32 s33, v1
    s_and_b32 s34, s2, 7
    s_lshr_b32 s35, s2, 3
    v_lshlrev_b32 v1, 4, v0
    """)

def adv_setup(k, R, SZ):
    k(f"s_mov_b32 s59, 0")
    k(f"s_mov_b32 s57, {SZ}")
    k(f"s_mov_b32 s56, {(-(R-1)*SZ) & 0xffffffff:#x}")
def adv_ins(R, vregs):
    o = ["s_add_u32 s59, s59, 1", f"s_cmp_eq_u32 s59, {R}", "s_cselect_b32 s59, 0, s59", "s_cselect_b32 s55, s56, s57"]
    o += [f"v_add_u32 v{v}, s55, v{v}" for v in vregs]
    return o

def consumer_loop(k, S, nsub, reads, mfmas, adv, final_barrier, step=1, st=None):
    Ltop, Lex, Lent = k.lab("top"), k.lab("ex"), k.lab("ent")
    cnt = ["s_sub_u32 s58, s58, 1", "s_cmp_lg_u32 s58, 0"]
    if nsub == 1:
        n = S - 1
        k(f"s_mov_b32 s58, {(n+1)//2}")
        k("s_barrier")
        if st: st()
        for r in reads(0, 0) + adv: k(r)
        k("s_waitcnt lgkmcnt(0)")
        k.label(Ltop)
        k("s_barrier")
        for x in interleave(mfmas(0), reads(0, 1) + adv + (cnt if n & 1 else []), step=step): k(x)
        k("s_waitcnt lgkmcnt(0)")
        if n & 1: k(f"s_cbranch_scc0 {Lex}")
        k("s_barrier")
        for x in interleave(mfmas(1), reads(0, 0) + adv + ([] if n & 1 else cnt), step=step): k(x)
        k("s_waitcnt lgkmcnt(0)")
        if n & 1: k(f"s_branch {Ltop}")
        else: k(f"s_cbranch_scc1 {Ltop}")
        k.label(Lex)
        last = (S - 1) & 1
    else:
        k(f"s_mov_b32 s58, {S}")
        k("s_barrier")
        if st: st()
        for r in reads(0, 0): k(r)
        k("s_waitcnt lgkmcnt(0)")
        k(f"s_branch {Lent}")
        k.label(Ltop)
        k("s_barrier")
        for x in interleave(mfmas(1), reads(0, 0), step=step): k(x)
        k("s_waitcnt lgkmcnt(0)")
        k.label(Lent)
        for x in interleave(mfmas(0), reads(1, 1) + adv + cnt, step=step): k(x)
        k("s_waitcnt lgkmcnt(0)")
        k(f"s_cbranch_scc1 {Ltop}")
        last = 1
    if final_barrier: k("s_barrier")
    return last

def producer_loop(k, S, R, issue, nper, extra_after_last=None, nextra=0, after_b0=None, st=None, LA=None):
    if LA is None: LA = R - 1
    assert 1 <= LA <= R - 1
    Lp0, Lp1 = k.lab("p0"), k.lab("p1")
    if st: st()
    k(f"s_mov_b32 s58, {LA}")
    k.label(Lp0)
    issue()
    k("s_sub_u32 s58, s58, 1")
    k("s_cmp_lg_u32 s58, 0")
    k(f"s_cbranch_scc1 {Lp0}")
    if st: st()
    nloop = S - LA
    if after_b0:
        k(f"s_waitcnt vmcnt({(LA-1)*nper})")
        k("s_barrier")
        issue()
        after_b0()
        nloop -= 1
    k(f"s_mov_b32 s58, {nloop}")
    k.label(Lp1)
    k(f"s_waitcnt vmcnt({(LA-1)*nper})")
    k("s_barrier")
    issue()
    k("s_sub_u32 s58, s58, 1")
    k("s_cmp_lg_u32 s58, 0")
    k(f"s_cbranch_scc1 {Lp1}")
    if extra_after_last: extra_after_last()
    for b in range(S - LA, S):
        k(f"s_waitcnt vmcnt({(S-1-b)*nper + nextra})")
        k("s_barrier")

def slot_adv_prod(k, R, SZ, sreg):
    k(f"s_add_u32 s{sreg}, s{sreg}, {SZ}")
    k(f"s_cmp_eq_u32 s{sreg}, {R*SZ}")
    k(f"s_cselect_b32 s{sreg}, 0, s{sreg}")

def gelu_consts(k, c):
    k(f"v_mov_b32 v{c}, {f2u(GC0):#x}");   k(f"v_mov_b32 v{c+1}, {f2u(GC0):#x}")
    k(f"v_mov_b32 v{c+2}, {f2u(GC1):#x}"); k(f"v_mov_b32 v{c+3}, {f2u(GC1):#x}")
    k(f"v_mov_b32 v{c+4}, 1.0");           k(f"v_mov_b32 v{c+5}, 1.0")
def gelu(k, pairs, t0, c):
    T = [t0 + 2 * i for i in range(len(pairs))]
    P = list(zip(pairs, T))
    for a, t in P: k(f"v_pk_mul_f32 {vr(t,2)}, {vr(a,2)}, {vr(a,2)}")
    for a, t in P: k(f"v_pk_fma_f32 {vr(t,2)}, {vr(t,2)}, {vr(c+2,2)}, {vr(c,2)}")
    for a, t in P: k(f"v_pk_mul_f32 {vr(t,2)}, {vr(t,2)}, {vr(a,2)}")
    for a, t in P: k(f"v_exp_f32 v{t}, v{t}"); k(f"v_exp_f32 v{t+1}, v{t+1}")
    for a, t in P: k(f"v_pk_add_f32 {vr(t,2)}, {vr(t,2)}, {vr(c+4,2)}")
    for a, t in P: k(f"v_rcp_f32 v{t}, v{t}"); k(f"v_rcp_f32 v{t+1}, v{t+1}")
    for a, t in P: k(f"v_pk_mul_f32 {vr(a,2)}, {vr(a,2)}, {vr(t,2)}")

def rnd_bf16(k, d, s):
    k(f"v_cvt_pk_bf16_f32 v{d}, v{s}, v{s}")
    k(f"v_lshlrev_b32 v{d}, 16, v{d}")

def w144_voffs(k, vbase, spw, pitch, tmp):
    for n in range(5):
        if n < 4:
            k(f"s_lshl_b32 s50, s{spw}, 8")
            k(f"s_add_u32 s50, s50, {n*64}")
        else:
            k(f"s_lshl_b32 s50, s{spw}, 5")
            k(f"s_add_u32 s50, s50, 1024")
        a, b, c = tmp, tmp + 1, tmp + 2
        k(f"""
        v_add_u32 v{a}, s50, v0
        v_mul_u32_u24 v{b}, 3641, v{a}
        v_lshrrev_b32 v{b}, 16, v{b}
        v_mul_u32_u24 v{c}, 18, v{b}
        v_sub_u32 v{a}, v{a}, v{c}              ; chunk
        v_lshlrev_b32 v{a}, 4, v{a}
        v_and_b32 v{c}, 4, v{b}
        v_lshlrev_b32 v{c}, 1, v{c}
        v_and_b32 v{vbase+n}, 8, v{b}
        v_lshrrev_b32 v{vbase+n}, 1, v{vbase+n}
        v_or_b32 v{c}, v{c}, v{vbase+n}
        v_and_b32 v{b}, 0x33, v{b}
        v_or_b32 v{b}, v{b}, v{c}               ; k row
        v_mul_u32_u24 v{b}, {pitch}, v{b}
        v_add_u32 v{vbase+n}, v{a}, v{b}
        """)

def tr_lane_base(k, d, pitch, tmp):
    a = tmp + 1
    k(f"""
    v_lshrrev_b32 v{d}, 5, v0
    v_lshlrev_b32 v{d}, 4, v{d}
    v_bfe_u32 v{tmp}, v0, 4, 1
    v_lshl_add_u32 v{d}, v{tmp}, 2, v{d}
    v_bfe_u32 v{a}, v0, 2, 2
    v_add_u32 v{d}, v{d}, v{a}
    v_mul_u32_u24 v{d}, {pitch}, v{d}
    v_and_b32 v{a}, 3, v0
    v_lshl_add_u32 v{d}, v{a}, 3, v{d}
    """)

def gen_prep(name, pf=0):
    k = Kern(name)
    Lend, Lw3, Lpf = k.lab("end"), k.lab("w3"), k.lab("pf")
    NPF = 216 if pf in (1, 2, 3) else 0
    preamble(k, 128 + 45 + NPF, Lend, [(4, "ws"), (6, "x"), (40, "wo"), (42, "w_out"), (64, "w_in"), (66, "wqkv"), (68, "w_sp")])
    k("s_waitcnt lgkmcnt(0)")
    if NPF:
        k(f"s_cmp_ge_u32 s2, 173\ns_cbranch_scc1 {Lpf}")
    srd(k, 8, 6, 0, 2048 * 1152)
    srd(k, 12, 4, XN_OFF, XN_SZ)
    srd(k, 16, 4, ST_OFF, ST_SZ)
    srd(k, 20, 4, W3_OFF, W3_SZ)
    k(f"""
    s_cmp_ge_u32 s2, 128
    s_cbranch_scc1 {Lw3}
    v_and_b32 v2, 15, v0             ; row
    v_lshrrev_b32 v3, 4, v0          ; q
    s_mul_i32 s44, s2, {16*1152}
    s_lshl_b32 s45, s33, 7
    s_add_u32 s44, s44, s45
    v_mul_u32_u24 v4, 1152, v2
    v_lshl_add_u32 v4, v3, 4, v4
    buffer_load_dwordx4 v[8:11], v4, s[8:11], s44 offen
    buffer_load_dwordx4 v[12:15], v4, s[8:11], s44 offen offset:64
    v_mul_u32_u24 v5, 144, v2
    s_lshl_b32 s45, s33, 4
    v_lshl_add_u32 v6, v3, 2, v5
    v_add_u32 v6, s45, v6
    """)
    if pf == 9:
        k(f"""
        s_mul_i32 s50, s2, 9
        s_add_u32 s50, s50, s33
        s_sub_u32 s51, s50, 648
        s_cmp_lt_u32 s50, 648
        s_cselect_b32 s28, s64, s66
        s_cselect_b32 s29, s65, s67
        s_cselect_b32 s50, s50, s51
        s_mov_b32 s30, {576*3456}
        s_cselect_b32 s30, {576*9216}, s30
        s_mov_b32 s31, 0x20000
        s_lshl_b32 s50, s50, 13
        v_lshlrev_b32 v100, 7, v0
        buffer_load_dword v101, v100, s[28:31], s50 offen
        """)
        if OPT.get("pwsp", 0):
            srd(k, 28, 68, 0, 2048 * 4096)
            k("s_mul_i32 s50, s2, 9\ns_add_u32 s50, s50, s33\ns_lshl_b32 s50, s50, 13")
            k("buffer_load_dword v102, v100, s[28:31], s50 offen")
            k("s_waitcnt vmcnt(2)")
        else:
            k("s_waitcnt vmcnt(1)")
    else:
        k("s_waitcnt vmcnt(0)")
    for i in range(8):
        k(f"v_lshlrev_b32 v{16+2*i}, 16, v{8+i}")
        k(f"v_and_b32 v{17+2*i}, 0xffff0000, v{8+i}")
    def tree(base, n, dst):
        k(f"v_pk_add_f32 v[32:33], {vr(base,2)}, {vr(base+2,2)}")
        for i in range(2, n // 2): k(f"v_pk_add_f32 v[32:33], v[32:33], {vr(base+2*i,2)}")
        k(f"v_add_f32 v{dst}, v32, v33")
    tree(16, 16, 34)
    k("ds_write_b32 v6, v34")
    k("s_waitcnt lgkmcnt(0)")
    k("s_barrier")
    for i in range(9): k(f"ds_read_b128 {vr(44+4*i,4)}, v5 offset:{i*16}")
    k("s_waitcnt lgkmcnt(0)")
    tree(44, 36, 34)
    k(f"v_mul_f32 v34, {f2u(1.0/576):#x}, v34")
    k("v_mov_b32 v35, v34")
    for i in range(8): k(f"v_pk_add_f32 {vr(80+2*i,2)}, {vr(16+2*i,2)}, v[34:35] neg_lo:[0,1] neg_hi:[0,1]")
    k("v_pk_mul_f32 v[32:33], v[80:81], v[80:81]")
    for i in range(1, 8): k(f"v_pk_fma_f32 v[32:33], {vr(80+2*i,2)}, {vr(80+2*i,2)}, v[32:33]")
    k("v_add_f32 v36, v32, v33")
    k("ds_write_b32 v6, v36 offset:2304")
    k("s_waitcnt lgkmcnt(0)")
    k("s_barrier")
    for i in range(9): k(f"ds_read_b128 {vr(44+4*i,4)}, v5 offset:{2304+i*16}")
    k("s_waitcnt lgkmcnt(0)")
    tree(44, 36, 36)
    k(f"v_mul_f32 v36, {f2u(1.0/576):#x}, v36")
    rnd_bf16(k, 36, 36)
    k(f"v_add_f32 v36, {f2u(1e-5):#x}, v36")
    rnd_bf16(k, 36, 36)
    k("v_sqrt_f32 v36, v36")
    rnd_bf16(k, 36, 36)
    k("v_rcp_f32 v36, v36")
    rnd_bf16(k, 34, 34)
    k("v_mov_b32 v35, v34")
    k("v_mov_b32 v37, v36")
    for i in range(8): k(f"v_pk_add_f32 {vr(16+2*i,2)}, {vr(16+2*i,2)}, v[34:35] neg_lo:[0,1] neg_hi:[0,1]")
    for i in range(8): k(f"v_cvt_pk_bf16_f32 v{8+i}, v{16+2*i}, v{17+2*i}")
    for i in range(8):
        k(f"v_lshlrev_b32 v{16+2*i}, 16, v{8+i}")
        k(f"v_and_b32 v{17+2*i}, 0xffff0000, v{8+i}")
    for i in range(8): k(f"v_pk_mul_f32 {vr(16+2*i,2)}, {vr(16+2*i,2)}, v[36:37]")
    for i in range(8): k(f"v_cvt_pk_bf16_f32 v{8+i}, v{16+2*i}, v{17+2*i}")
    k(f"""
    s_lshl_b32 s44, s33, 7
    s_add_u32 s44, s44, s2
    s_lshl_b32 s44, s44, 11
    buffer_store_dwordx4 v[8:11], v1, s[12:15], s44 offen
    buffer_store_dwordx4 v[12:15], v1, s[12:15], s44 offen offset:1024
    s_cmp_lg_u32 s33, 0
    s_cbranch_scc1 {Lend}
    s_lshl_b32 s46, s2, 7
    v_lshlrev_b32 v7, 2, v0
    v_mov_b32 v40, 0
    s_mov_b32 exec_hi, 0
    buffer_store_dword v40, v7, s[16:19], s46 offen
    """)
    srd(k, 28, 4, 0x3420000, 16 * 128)
    k("s_mov_b64 exec, 1\nbuffer_store_dword v40, v7, s[28:31], s46 offen\ns_endpgm")
    k.label(Lw3)
    k(f"""
    s_sub_u32 s44, s2, 128           ; st
    s_cmp_lt_u32 s44, 9
    s_cselect_b32 s24, s40, s42
    s_cselect_b32 s25, s41, s43
    s_cselect_b32 s26, {576*1152}, -1
    s_min_u32 s26, s26, {2304*1152}
    s_mov_b32 s27, 0x20000
    """)
    for ks in range(2):
        Ln, Ld = k.lab("nat"), k.lab("dn")
        k(f"""
        s_lshl_b32 s50, s44, 1
        s_add_u32 s50, s50, {ks}         ; step
        s_cmp_lt_u32 s44, 9
        s_cbranch_scc1 {Ln}
        s_sub_u32 s50, s50, 18
        s_mul_i32 s51, s50, 57
        s_lshr_b32 s51, s51, 9           ; u = step'/9
        s_mul_i32 s52, s51, 9
        s_sub_u32 s52, s50, s52          ; v
        s_mul_i32 s51, s51, 288
        s_lshr_b32 s53, s52, 2
        s_mul_i32 s53, s53, 144
        s_and_b32 s54, s52, 3
        s_lshl_b32 s54, s54, 5
        s_add_u32 s53, s53, s54
        s_cmp_eq_u32 s52, 8
        s_cselect_b32 s53, 128, s53
        s_cselect_b32 s{48+ks}, 4, 16
        s_cselect_b32 s{60+ks}, 8, 4
        s_cselect_b32 s{62+ks}, 144, 8
        s_add_u32 s{46+ks}, s51, s53
        s_branch {Ld}
        {Ln}:
        s_lshl_b32 s{46+ks}, s50, 5
        s_mov_b32 s{48+ks}, 4
        s_mov_b32 s{60+ks}, 8
        s_mov_b32 s{62+ks}, 16
        {Ld}:
        """)
    k("s_lshl_b32 s50, s33, 13")
    k("s_lshl_b32 s51, s33, 9")
    k("s_mov_b32 s52, 58255")
    for n in range(8):
        k(f"""
        s_add_u32 s53, s51, {n*64}
        v_add_u32 v2, s53, v0
        v_mul_lo_u32 v3, s52, v2
        v_lshrrev_b32 v3, 22, v3         ; rho
        v_mul_u32_u24 v4, 72, v3
        v_sub_u32 v2, v2, v4             ; chunk
        v_cmp_lt_u32 vcc, 31, v3
        v_mov_b32 v4, s46
        v_mov_b32 v5, s47
        v_cndmask_b32 v4, v4, v5, vcc    ; base
        v_mov_b32 v5, s48
        v_mov_b32 v6, s49
        v_cndmask_b32 v5, v5, v6, vcc    ; D
        v_bfe_u32 v6, v3, 2, 1
        v_mad_u32_u24 v4, v6, v5, v4
        v_mov_b32 v5, s60
        v_mov_b32 v6, s61
        v_cndmask_b32 v5, v5, v6, vcc    ; Q0
        v_bfe_u32 v6, v3, 3, 1
        v_mad_u32_u24 v4, v6, v5, v4
        v_mov_b32 v5, s62
        v_mov_b32 v6, s63
        v_cndmask_b32 v5, v5, v6, vcc    ; Q1
        v_bfe_u32 v6, v3, 4, 1
        v_mad_u32_u24 v4, v6, v5, v4
        v_and_b32 v3, 3, v3
        v_add_u32 v4, v4, v3
        v_mul_u32_u24 v4, 1152, v4
        v_lshl_add_u32 v4, v2, 4, v4
        s_add_u32 m0, s50, {n*1024}
        s_nop 0
        buffer_load_dwordx4 v4, s[24:27], 0 offen lds
        """)
    L8, Lgo = k.lab("w8"), k.lab("go")
    k(f"""
    v_lshrrev_b32 v2, 4, v0          ; g
    v_bfe_u32 v3, v0, 2, 2           ; r
    v_and_b32 v4, 3, v0              ; c4
    s_cmp_eq_u32 s33, 8
    s_cbranch_scc1 {L8}
    s_and_b32 s50, s33, 1
    s_lshl_b32 s50, s50, 2
    v_add_u32 v2, s50, v2
    s_lshr_b32 s50, s33, 1
    s_lshl_b32 s50, s50, 5
    v_lshlrev_b32 v4, 3, v4
    v_add_u32 v4, s50, v4
    s_branch {Lgo}
    {L8}:
    v_lshrrev_b32 v5, 1, v4
    v_lshl_add_u32 v2, v2, 1, v5     ; combo = 2g + (c4>>1)
    v_and_b32 v4, 1, v4
    v_lshlrev_b32 v4, 3, v4
    v_add_u32 v4, 128, v4
    {Lgo}:
    v_lshl_add_u32 v2, v2, 3, v3
    v_mul_u32_u24 v2, 1152, v2
    v_add_u32 v2, v2, v4
    s_mul_i32 s50, s44, {8*9216}
    s_lshl_b32 s51, s33, 10
    s_add_u32 s50, s50, s51
    s_waitcnt vmcnt(0)
    s_barrier
    """)
    for nt in range(8):
        k(f"ds_read_b64_tr_b16 {vr(8+nt*4,2)}, v2 offset:{nt*144}")
        k(f"ds_read_b64_tr_b16 {vr(10+nt*4,2)}, v2 offset:{nt*144+4608}")
    for nt in range(8):
        k(f"s_waitcnt lgkmcnt({14-2*nt})")
        k(f"buffer_store_dwordx4 {vr(8+nt*4,4)}, v1, s[20:23], s50 offen")
        k(f"s_add_u32 s50, s50, 9216")
    if NPF:
        k("s_endpgm")
        k.label(Lpf)
        La, Lb, Lc = k.lab("a"), k.lab("b"), k.lab("c")
        k(f"""
        s_sub_u32 s44, s2, 173
        s_mov_b32 s27, 0x20000
        s_cmp_lt_u32 s44, 72
        s_cbranch_scc1 {La}
        s_cmp_lt_u32 s44, 99
        s_cbranch_scc1 {Lb}
        s_sub_u32 s44, s44, 99
        s_mov_b32 s24, s68
        s_mov_b32 s25, s69
        s_mov_b32 s26, {2048*4096}
        s_branch {Lc}
        {La}:
        s_mov_b32 s24, s64
        s_mov_b32 s25, s65
        s_mov_b32 s26, {576*9216}
        s_branch {Lc}
        {Lb}:
        s_sub_u32 s44, s44, 72
        s_mov_b32 s24, s66
        s_mov_b32 s25, s67
        s_mov_b32 s26, {576*3456}
        {Lc}:
        s_mul_i32 s44, s44, 73728
        s_lshl_b32 s45, s33, 13
        s_add_u32 s44, s44, s45
        """)
        if pf == 1:
            for n in range(8):
                k(f"buffer_load_dwordx4 {vr(8+4*n,4)}, v1, s[24:27], s44 offen offset:{(n&3)*1024}")
                if n == 3: k("s_add_u32 s44, s44, 4096")
        elif pf == 2:
            k("v_lshlrev_b32 v2, 7, v0")
            k("buffer_load_dword v8, v2, s[24:27], s44 offen")
        elif pf == 3:
            k("v_lshlrev_b32 v2, 7, v0")
            k("buffer_load_dword v8, v2, s[24:27], s44 offen")
            k("buffer_load_dword v9, v2, s[24:27], s44 offen offset:64")
        k("s_waitcnt vmcnt(0)")
    k.label(Lend)
    k("s_endpgm")
    return k

def ksplit_reduce(k, send, nq, smh2, skh, vl16, va, vb, region):
    k(f"""
    s_add_u32 s43, s{smh2}, s{skh}
    s_mul_i32 s43, s43, {nq*1024}
    s_xor_b32 s44, s{skh}, 1
    s_add_u32 s44, s44, s{smh2}
    s_mul_i32 s44, s44, {nq*1024}
    s_add_u32 s43, s43, {region}
    s_add_u32 s44, s44, {region}
    v_add_u32 v{va}, s43, v{vl16}
    v_add_u32 v{vb}, s44, v{vl16}
    """)
    for n in range(nq): k(f"ds_write_b128 v{va}, {vr(send+n*4,4)} offset:{n*1024}")
    k("s_waitcnt lgkmcnt(0)")
    k("s_barrier")

def gen_z2(name, stamps=False):
    k = Kern(name); st = Stamps(k, stamps, 1)
    S, R, SZ, BO = 9, 4, 34816, 16384
    Lend, Lprod = k.lab("end"), k.lab("prod")
    preamble(k, 256, Lend, [(4, "ws"), (6, "w_in")])
    k("""
    s_and_b32 s36, s34, 1
    s_lshl_b32 s36, s36, 3
    s_and_b32 s37, s35, 7
    s_add_u32 s36, s36, s37          ; mt
    s_lshr_b32 s37, s34, 1
    s_lshl_b32 s37, s37, 2
    s_lshr_b32 s38, s35, 3
    s_add_u32 s37, s37, s38          ; nt
    s_waitcnt lgkmcnt(0)
    """)
    srd(k, 8, 4, XN_OFF, XN_SZ)
    srd(k, 12, 6, 0, 576 * 9216)
    srd(k, 16, 4, Z2T_OFF, Z2T_SZ)
    srd(k, 20, 4, ST_OFF, ST_SZ)
    st.init(); st()
    k(f"s_cmp_ge_u32 s33, 4\ns_cbranch_scc1 {Lprod}")
    ACC, BUF = 104, [0, 52]
    VA01, VA23, VB, VL16, VLN = 248, 249, 250, 251, 252
    acc = lambda i, j: ACC + (i * 9 + j) * 4
    k(f"""
    s_and_b32 s40, s33, 1            ; mh
    s_lshr_b32 s41, s33, 1           ; kh
    v_mov_b32 v{VL16}, v1
    v_mov_b32 v{VLN}, v0
    s_lshl_b32 s42, s40, 13
    s_lshl_b32 s43, s41, 10
    s_add_u32 s42, s42, s43
    s_lshl_b32 s44, s41, 12
    s_add_u32 s45, s42, s44
    v_add_u32 v{VA01}, s45, v1
    s_xor_b32 s44, s44, 4096
    s_add_u32 s45, s42, s44
    v_add_u32 v{VA23}, s45, v1
    """)
    tr_lane_base(k, VB, 288, 2)
    k(f"s_mul_i32 s45, s41, {32*288}\ns_add_u32 s45, s45, {BO}\nv_add_u32 v{VB}, s45, v{VB}")
    for r in range(ACC, ACC + 144): k(f"v_mov_b32 v{r}, 0")
    adv_setup(k, R, SZ)
    def reads(sub, b):
        o = [f"ds_read_b128 {vr(BUF[b]+i*4,4)}, v{VA01 if i < 2 else VA23} offset:{(i&1)*2048}" for i in range(4)]
        for j in range(9):
            for hh in range(2):
                o.append(f"ds_read_b64_tr_b16 {vr(BUF[b]+16+j*4+hh*2,2)}, v{VB} offset:{hh*8*288+j*32}")
        return o
    def mfmas(b):
        if OPT["nomfma"]: return []
        return [f"v_mfma_f32_16x16x32_bf16 {vr(acc(i,j),4)}, {vr(BUF[b]+i*4,4)}, {vr(BUF[b]+16+j*4,4)}, {vr(acc(i,j),4)}"
                for j in range(9) for i in range(4)]
    last = consumer_loop(k, S, 1, reads, mfmas, adv_ins(R, [VA01, VA23, VB]), True, st=st)
    st()
    for m in mfmas(last): k(m)
    k("s_lshl_b32 s42, s40, 1")
    ksplit_reduce(k, acc(2, 0), 18, 42, 41, VL16, VA01, VA23, 0)
    for j in range(9):
        for e in range(2): k(f"ds_read_b128 {vr(acc(2+e,j),4)}, v{VA23} offset:{(e*9+j)*1024}")
    C, SM, T, O = 60, 68, 84, 92
    gelu_consts(k, C)
    for r in range(SM, SM + 16): k(f"v_mov_b32 v{r}, 0")
    k(f"""
    s_lshl_b32 s46, s36, 1
    s_add_u32 s46, s46, s40          ; g2 stage
    s_mul_i32 s46, s46, 144
    s_mul_i32 s47, s37, 9
    s_add_u32 s46, s46, s47
    s_lshl_b32 s46, s46, 11
    s_lshl_b32 s47, s41, 10
    s_add_u32 s46, s46, s47
    """)
    st()
    for j in range(9):
        k(f"s_waitcnt lgkmcnt({min(15, 16-2*j)})")
        for e in range(2):
            a, b = acc(e, j), acc(2 + e, j)
            k(f"v_pk_add_f32 {vr(a,2)}, {vr(a,2)}, {vr(b,2)}")
            k(f"v_pk_add_f32 {vr(a+2,2)}, {vr(a+2,2)}, {vr(b+2,2)}")
        gelu(k, [acc(0, j), acc(0, j) + 2, acc(1, j), acc(1, j) + 2], T, C)
        o = O + (j & 1) * 4
        for e in range(2):
            a = acc(e, j)
            k(f"v_cvt_pk_bf16_f32 v{o+2*e}, v{a}, v{a+1}")
            k(f"v_cvt_pk_bf16_f32 v{o+2*e+1}, v{a+2}, v{a+3}")
        k(f"buffer_store_dwordx4 {vr(o,4)}, v{VL16}, s[16:19], s46 offen")
        k("s_add_u32 s46, s46, 2048")
        for e in range(2):
            a = acc(e, j)
            for h in range(2):
                k(f"v_pk_add_f32 {vr(SM+4*e+2*h,2)}, {vr(SM+4*e+2*h,2)}, {vr(a+2*h,2)}")
                k(f"v_pk_fma_f32 {vr(SM+8+4*e+2*h,2)}, {vr(a+2*h,2)}, {vr(a+2*h,2)}, {vr(SM+8+4*e+2*h,2)}")
    for ror in (8, 4, 2, 1):
        for r in range(SM, SM + 16):
            k(f"v_add_f32_dpp v{r}, v{r}, v{r} row_ror:{ror} row_mask:0xf bank_mask:0xf")
    k("s_mov_b32 s48, 0x00010001\ns_mov_b32 s49, 0x00010001")
    val = lambda i: SM + (i & 1) * 8 + (i >> 3) * 4 + ((i >> 1) & 3)
    k(f"v_mov_b32 v{T}, v{val(0)}")
    for i in range(1, 16):
        k("s_lshl_b64 s[48:49], s[48:49], 1")
        k(f"v_cndmask_b32 v{T}, v{T}, v{val(i)}, s[48:49]")
    k(f"""
    v_bfe_u32 v{T+1}, v{VLN}, 3, 1
    v_lshlrev_b32 v{T+1}, 5, v{T+1}
    v_lshrrev_b32 v{T+2}, 4, v{VLN}
    v_lshl_add_u32 v{T+1}, v{T+2}, 3, v{T+1}
    v_and_b32 v{T+2}, 7, v{VLN}
    v_add_lshl_u32 v{T+1}, v{T+1}, v{T+2}, 2
    s_lshl_b32 s46, s36, 10
    s_lshl_b32 s47, s40, 9
    s_add_u32 s46, s46, s47
    s_lshl_b32 s47, s41, 8
    s_add_u32 s46, s46, s47
    buffer_atomic_add_f32 v{T}, v{T+1}, s[20:23], s46 offen
    """)
    if stamps:
        st(); k("s_waitcnt vmcnt(0)"); st()
    k("s_endpgm")
    k.label(Lprod)
    k(f"""
    s_sub_u32 s40, s33, 4            ; pw
    s_lshl_b32 s41, s40, 12
    s_lshl_b32 s42, s36, 14
    s_add_u32 s42, s42, s41          ; A goff
    s_mul_i32 s43, s37, 288
    s_add_u32 s43, s43, 4608
    s_lshl_b32 s45, s40, 9
    s_add_u32 s47, s41, {BO}
    s_add_u32 s48, s45, {BO+16384}
    s_mov_b32 s49, 0
    """)
    w144_voffs(k, 8, 40, 9216, 2)
    if OPT["linB"]:
        k("s_mul_i32 s43, s37, 18432")
        for n in range(4):
            k(f"s_add_u32 s50, s41, {n*1024}")
            k(f"v_add_u32 v{8+n}, s50, v1")
        k("s_add_u32 s50, s45, 16384")
        k("v_add_u32 v12, s50, v1")
    def issue():
        k("s_add_u32 m0, s41, s49")
        if not OPT["noA"]:
            for n in range(4): k(f"buffer_load_dwordx4 v1, s[8:11], s42 offen offset:{n*1024} lds")
        k("s_add_u32 s50, s47, s49")
        if not OPT["noB"]:
            for n in range(4):
                k(f"s_add_u32 m0, s50, {n*1024}")
                k(f"buffer_load_dwordx4 v{8+n}, s[12:15], s43 offen lds")
            k("s_add_u32 m0, s48, s49")
            k("s_mov_b32 exec_hi, 0")
            k("buffer_load_dwordx4 v12, s[12:15], s43 offen lds")
            k("s_mov_b32 exec_hi, -1")
        k(f"s_add_u32 s42, s42, {128*2048}")
        k(f"s_add_u32 s43, s43, {64*9216}")
        slot_adv_prod(k, R, SZ, 49)
    producer_loop(k, S, R, issue, 9 - 4 * OPT["noA"] - 5 * OPT["noB"], st=st, LA=OPT["la_z2"])
    k.label(Lend)
    k("s_endpgm")
    return k

def gen_z1qkv(name, stamps=False):
    k = Kern(name); st = Stamps(k, stamps, 2)
    Lend, Lqkv, Lprod, Lqprod, Latt = k.lab("end"), k.lab("qkv"), k.lab("prod"), k.lab("qprod"), k.lab("att")
    preamble(k, 256, Lend, [(4, "ws"), (6, "w_in"), (64, "wqkv"), (66, "w_sp")])
    k("s_waitcnt lgkmcnt(0)")
    srd(k, 8, 4, XN_OFF, XN_SZ)
    srd(k, 12, 6, 0, 576 * 9216)
    srd(k, 16, 4, Z1P_OFF, Z1P_SZ)
    srd(k, 20, 4, ST_OFF, ST_SZ)
    srd(k, 24, 66, 0, 2048 * 4096)
    srd(k, 28, 4, WSP_OFF, WSP_SZ)
    srd(k, 68, 4, CT_OFF, CT_SZ)
    srd(k, 72, 64, 0, 576 * 3456)
    srd(k, 76, 4, A3_OFF, A3_SZ)
    st.init()
    k(f"s_cmp_ge_u32 s35, 16\ns_cbranch_scc1 {Lqkv}")
    S, R, SZ, BO = 9, 3, 51200, 32768
    k(f"""
    s_and_b32 s36, s34, 1
    s_lshl_b32 s36, s36, 2
    s_and_b32 s37, s35, 3
    s_add_u32 s36, s36, s37
    s_lshr_b32 s37, s34, 1
    s_lshl_b32 s37, s37, 2
    s_lshr_b32 s38, s35, 2
    s_add_u32 s37, s37, s38          ; nt
    s_cmp_ge_u32 s33, 4
    s_cbranch_scc1 {Lprod}
    """)
    st()
    ACC, BUF = 104, [0, 52]
    VA, VB, VL16, VL8 = 248, 249, 250, 251
    acc = lambda i, j: ACC + (i * 9 + j) * 4
    k(f"""
    v_mov_b32 v{VL16}, v1
    v_lshrrev_b32 v{VL8}, 1, v1
    s_lshl_b32 s42, s33, 13
    v_add_u32 v{VA}, s42, v1
    """)
    tr_lane_base(k, VB, 288, 2)
    k(f"v_add_u32 v{VB}, {BO}, v{VB}")
    for r in range(ACC, ACC + 144): k(f"v_mov_b32 v{r}, 0")
    adv_setup(k, R, SZ)
    def reads(sub, b):
        o = [f"ds_read_b128 {vr(BUF[b]+i*4,4)}, v{VA} offset:{i*2048+sub*1024}" for i in range(4)]
        for j in range(9):
            for hh in range(2):
                o.append(f"ds_read_b64_tr_b16 {vr(BUF[b]+16+j*4+hh*2,2)}, v{VB} offset:{sub*32*288+hh*8*288+j*32}")
        return o
    def mfmas(b):
        return [f"v_mfma_f32_16x16x32_bf16 {vr(acc(i,j),4)}, {vr(BUF[b]+16+j*4,4)}, {vr(BUF[b]+i*4,4)}, {vr(acc(i,j),4)}"
                for i in range(4) for j in range(9)]
    last = consumer_loop(k, S, 2, reads, mfmas, adv_ins(R, [VA, VB]), False, st=st)
    st()
    for m in mfmas(last): k(m)
    C, T, O = 0, 8, 16
    gelu_consts(k, C)
    k(f"""
    s_lshl_b32 s46, s36, 4
    s_lshl_b32 s47, s33, 2
    s_add_u32 s46, s46, s47          ; tfrag0
    s_lshl_b32 s46, s46, 4
    s_add_u32 s46, s46, s37
    s_mul_i32 s46, s46, 4608
    """)
    n = 0
    for i in range(4):
        for p in range(4):
            a, b = acc(i, 2 * p), acc(i, 2 * p + 1)
            gelu(k, [a, a + 2, b, b + 2], T, C)
            o = O + (n & 1) * 4; n += 1
            for x, q in enumerate([a, a + 2, b, b + 2]): k(f"v_cvt_pk_bf16_f32 v{o+x}, v{q}, v{q+1}")
            k(f"buffer_store_dwordx4 {vr(o,4)}, v{VL16}, s[16:19], s46 offen offset:{p*1024}")
        k(f"s_add_u32 s{48+i}, s46, 4096")
        if i < 3: k(f"s_add_u32 s46, s46, {16*4608}")
    for i in (0, 2):
        a, b = acc(i, 8), acc(i + 1, 8)
        gelu(k, [a, a + 2, b, b + 2], T, C)
        o = O + (n & 1) * 4; n += 1
        for x, q in enumerate([a, a + 2, b, b + 2]): k(f"v_cvt_pk_bf16_f32 v{o+x}, v{q}, v{q+1}")
        k(f"buffer_store_dwordx2 {vr(o,2)}, v{VL8}, s[16:19], s{48+i} offen")
        k(f"buffer_store_dwordx2 {vr(o+2,2)}, v{VL8}, s[16:19], s{49+i} offen")
    if stamps:
        st(); k("s_waitcnt vmcnt(0)"); st()
    k("s_endpgm")
    k.label(Lprod)
    k(f"""
    s_sub_u32 s40, s33, 4            ; pw
    v_lshlrev_b32 v2, 6, v0
    s_lshl_b32 s41, s40, 12          ; pw*512*8
    buffer_load_dwordx4 v[16:19], v2, s[20:23], s41 offen
    buffer_load_dwordx4 v[20:23], v2, s[20:23], s41 offen offset:16
    buffer_load_dwordx4 v[24:27], v2, s[20:23], s41 offen offset:32
    buffer_load_dwordx4 v[28:31], v2, s[20:23], s41 offen offset:48
    s_lshl_b32 s41, s40, 13          ; pw*8192
    s_lshl_b32 s42, s36, 15
    s_add_u32 s42, s42, s41          ; A goff
    s_mul_i32 s43, s37, 288          ; B goff
    s_lshl_b32 s45, s40, 9
    s_lshl_b32 s47, s40, 12
    s_add_u32 s47, s47, {BO}
    s_add_u32 s48, s45, {BO+16384}
    s_mov_b32 s49, 0
    """)
    w144_voffs(k, 8, 40, 9216, 2)
    def issue():
        k("s_add_u32 m0, s41, s49")
        for n in range(4): k(f"buffer_load_dwordx4 v1, s[8:11], s42 offen offset:{n*1024} lds")
        k("s_add_u32 m0, m0, 4096")
        k("s_add_u32 s50, s42, 4096")
        for n in range(4): k(f"buffer_load_dwordx4 v1, s[8:11], s50 offen offset:{n*1024} lds")
        k("s_add_u32 s50, s47, s49")
        for n in range(4):
            k(f"s_add_u32 m0, s50, {n*1024}")
            k(f"buffer_load_dwordx4 v{8+n}, s[12:15], s43 offen lds")
        k("s_add_u32 m0, s48, s49")
        k("s_mov_b32 exec_hi, 0")
        k("buffer_load_dwordx4 v12, s[12:15], s43 offen lds")
        k("s_mov_b32 exec_hi, -1")
        k(f"s_add_u32 s42, s42, {128*2048}")
        k(f"s_add_u32 s43, s43, {64*9216}")
        slot_adv_prod(k, R, SZ, 49)
    RR, MM = 32, 40
    def after_b0():
        inv = f2u(1.0 / 2304)
        for i in range(8): k(f"v_mul_f32 v{16+2*i}, {inv:#x}, v{16+2*i}")
        for i in range(8): k(f"v_mul_f32 v{17+2*i}, {inv:#x}, v{17+2*i}")
        for i in range(8): k(f"v_fma_f32 v{17+2*i}, -v{16+2*i}, v{16+2*i}, v{17+2*i}")
        for i in range(8): k(f"v_max_f32 v{17+2*i}, 0, v{17+2*i}")
        for i in range(4): k(f"v_cvt_pk_bf16_f32 v{MM+i}, v{16+4*i}, v{18+4*i}")
        def rnd8():
            for i in range(4): k(f"v_cvt_pk_bf16_f32 v{44+i}, v{17+4*i}, v{19+4*i}")
            for i in range(4):
                k(f"v_lshlrev_b32 v{17+4*i}, 16, v{44+i}")
                k(f"v_and_b32 v{19+4*i}, 0xffff0000, v{44+i}")
        rnd8()
        for i in range(8): k(f"v_add_f32 v{17+2*i}, {f2u(1e-5):#x}, v{17+2*i}")
        rnd8()
        for i in range(8): k(f"v_sqrt_f32 v{17+2*i}, v{17+2*i}")
        rnd8()
        for i in range(8): k(f"v_rcp_f32 v{RR+i}, v{17+2*i}")
    W = 64
    def wloads():
        k(f"""
        s_lshl_b32 s50, s34, 4
        s_add_u32 s50, s50, s35
        s_lshl_b32 s51, s50, 16
        s_lshl_b32 s52, s40, 10
        s_add_u32 s51, s51, s52
        v_and_b32 v2, 15, v0
        v_lshlrev_b32 v2, 12, v2
        v_lshrrev_b32 v3, 4, v0
        v_lshl_add_u32 v2, v3, 4, v2
        """)
        for P in range(16): k(f"buffer_load_dwordx4 {vr(W+4*P,4)}, v2, s[24:27], s51 offen offset:{P*64}")
    producer_loop(k, S, R, issue, 13, extra_after_last=wloads, nextra=16, after_b0=after_b0, LA=OPT["la_z1"])
    k(f"""
    s_mul_i32 s52, s40, 3072
    v_lshlrev_b32 v4, 5, v0
    v_add_u32 v4, s52, v4
    ds_write_b128 v4, v[32:35]
    ds_write_b128 v4, v[36:39] offset:16
    v_add_u32 v4, s52, v1
    ds_write_b128 v4, v[40:43] offset:2048
    v_lshlrev_b32 v4, 5, v3
    v_add_u32 v4, s52, v4
    v_lshlrev_b32 v5, 4, v3
    v_add_u32 v5, s52, v5
    v_mov_b32 v6, 0
    s_lshl_b32 s53, s40, 21
    s_lshl_b32 s54, s50, 11
    s_add_u32 s53, s53, s54
    s_waitcnt lgkmcnt(0)
    """)
    RB = [128, 140]
    def rd(P):
        b = RB[P & 1]
        k(f"ds_read_b128 {vr(b,4)}, v4 offset:{P*128}")
        k(f"ds_read_b128 {vr(b+4,4)}, v4 offset:{P*128+16}")
        k(f"ds_read_b128 {vr(b+8,4)}, v5 offset:{2048+P*64}")
    rd(0)
    for P in range(16):
        if P < 15: rd(P + 1)
        k(f"s_waitcnt vmcnt(15) lgkmcnt({3 if P < 15 else 0})")
        b, w, t = RB[P & 1], W + 4 * P, 152
        for i in range(4):
            k(f"v_lshlrev_b32 v{t+2*i}, 16, v{w+i}")
            k(f"v_and_b32 v{t+2*i+1}, 0xffff0000, v{w+i}")
        for i in range(4): k(f"v_pk_mul_f32 {vr(t+2*i,2)}, {vr(t+2*i,2)}, {vr(b+2*i,2)}")
        for i in range(4): k(f"v_cvt_pk_bf16_f32 v{w+i}, v{t+2*i}, v{t+2*i+1}")
        for i in range(4): k(f"v_dot2c_f32_bf16 v6, v{w+i}, v{b+8+i}")
        k(f"v_permlane16_swap_b32 v{w}, v{w+2}")
        k(f"v_permlane16_swap_b32 v{w+1}, v{w+3}")
        k(f"v_permlane32_swap_b32 v{w}, v{w+2}")
        k(f"v_permlane32_swap_b32 v{w+1}, v{w+3}")
        k(f"buffer_store_dwordx4 {vr(w,4)}, v1, s[28:31], s53 offen offset:{(P&1)*1024}")
        if P & 1: k(f"s_add_u32 s53, s53, {128*2048}")
    k(f"""
    v_mov_b32 v7, v6
    v_permlane16_swap_b32 v6, v7
    v_add_f32 v6, v6, v7
    v_mov_b32 v7, v6
    v_permlane32_swap_b32 v6, v7
    v_add_f32 v6, v6, v7
    s_lshl_b32 s53, s40, 13
    s_lshl_b32 s54, s50, 6
    s_add_u32 s53, s53, s54
    v_lshlrev_b32 v7, 2, v0
    s_mov_b64 exec, 0xffff
    buffer_store_dword v6, v7, s[68:71], s53 offen
    s_endpgm
    """)
    k.label(Lqkv)
    S, R, SZ, BO = 9, 3, 18432 + 28672, 18432
    k(f"""
    s_and_b32 s36, s34, 1
    s_lshl_b32 s36, s36, 3
    s_and_b32 s37, s35, 7
    s_add_u32 s36, s36, s37
    s_lshr_b32 s37, s34, 1
    s_lshl_b32 s37, s37, 1
    s_bfe_u32 s38, s35, 0x10003
    s_add_u32 s37, s37, s38          ; hg
    s_cmp_ge_u32 s33, 4
    s_cbranch_scc1 {Lqprod}
    """)
    st()
    ACC, BUF = 96, [0, 48]
    VA, VBE, VBO, VW = 240, 241, 242, 243
    acc = lambda i, j: ACC + (i * 7 + j) * 4
    k(f"""
    s_and_b32 s40, s33, 1            ; wm
    s_lshr_b32 s41, s33, 1           ; wn
    s_lshl_b32 s42, s40, 13
    v_add_u32 v{VA}, s42, v1
    """)
    tr_lane_base(k, VBE, 448, 2)
    k(f"""
    s_mul_i32 s42, s41, 224
    s_add_u32 s42, s42, {BO}
    v_add_u32 v{VBE}, s42, v{VBE}
    v_lshlrev_b32 v2, 5, v2          ; a*32
    v_sub_u32 v3, 0, v2
    s_cmp_eq_u32 s41, 0
    s_cselect_b64 vcc, -1, 0
    s_cselect_b32 s43, -1, 0
    v_cndmask_b32 v4, v3, v2, vcc    ; wn==0 ? +a32 : -a32
    v_sub_u32 v{VBO}, v{VBE}, v4
    v_add_u32 v{VBE}, v{VBE}, v4
    v_and_b32 v2, 15, v0
    s_lshl_b32 s42, s40, 6
    v_add_u32 v2, s42, v2
    v_mul_u32_u24 v{VW}, 440, v2
    v_lshrrev_b32 v2, 4, v0
    v_lshl_add_u32 v{VW}, v2, 3, v{VW}
    s_mul_i32 s42, s41, 224
    v_add_u32 v{VW}, s42, v{VW}
    """)
    for r in range(ACC, ACC + 140): k(f"v_mov_b32 v{r}, 0")
    adv_setup(k, R, SZ)
    def reads(sub, b):
        o = [f"ds_read_b128 {vr(BUF[b]+i*4,4)}, v{VA} offset:{i*2048+sub*1024}" for i in range(5)]
        for j in range(7):
            for hh in range(2):
                o.append(f"ds_read_b64_tr_b16 {vr(BUF[b]+20+j*4+hh*2,2)}, v{VBO if j & 1 else VBE} offset:{sub*32*448+hh*8*448+j*32}")
        return o
    def mfmas(b):
        return [f"v_mfma_f32_16x16x32_bf16 {vr(acc(i,j),4)}, {vr(BUF[b]+20+j*4,4)}, {vr(BUF[b]+i*4,4)}, {vr(acc(i,j),4)}"
                for i in range(5) for j in range(7)]
    last = consumer_loop(k, S, 2, reads, mfmas, adv_ins(R, [VA, VBE, VBO]), True, st=st)
    st()
    for m in mfmas(last): k(m)
    n = 0
    for j in range(7):
        if j == 6: k("s_mov_b32 exec_hi, s43")
        for i in range(5):
            a = acc(i, j); o = (n & 3) * 2; n += 1
            k(f"v_cvt_pk_bf16_f32 v{o}, v{a}, v{a+1}")
            k(f"v_cvt_pk_bf16_f32 v{o+1}, v{a+2}, v{a+3}")
            k(f"ds_write_b64 v{VW}, {vr(o,2)} offset:{i*16*440+j*32}")
    k("s_mov_b32 exec_hi, -1")
    k("s_waitcnt lgkmcnt(0)")
    k("v_mbcnt_lo_u32_b32 v0, -1, 0")
    k("v_mbcnt_hi_u32_b32 v0, -1, v0")
    k(f"s_branch {Latt}")
    k.label(Lqprod)
    k(f"""
    s_sub_u32 s40, s33, 4            ; pw
    s_lshl_b32 s41, s40, 12
    s_lshl_b32 s42, s36, 14
    s_lshl_b32 s45, s40, 9
    s_sub_u32 s44, s42, 2048
    s_cmp_eq_u32 s36, 0
    s_cselect_b32 s44, 0, s44
    s_add_u32 s44, s44, s45
    s_add_u32 s42, s42, s41          ; A goff
    s_add_u32 s41, s41, 2048         ; A lds
    s_mul_i32 s43, s37, 144          ; B goff
    s_mul_i32 s47, s40, 7168
    s_add_u32 s47, s47, {BO}
    s_mov_b32 s49, 0
    s_mul_i32 s51, s40, 448
    """)
    for n in range(7):
        k(f"""
        s_add_u32 s50, s51, {n*64}
        v_add_u32 v2, s50, v0
        v_mul_u32_u24 v3, 2341, v2
        v_lshrrev_b32 v3, 16, v3
        v_mul_u32_u24 v4, 28, v3
        v_sub_u32 v2, v2, v4             ; c'
        v_and_b32 v4, 4, v3
        v_lshrrev_b32 v5, 1, v4
        v_xor_b32 v2, v2, v5             ; c
        v_lshlrev_b32 v4, 1, v4
        v_and_b32 v5, 8, v3
        v_lshrrev_b32 v5, 1, v5
        v_or_b32 v4, v4, v5
        v_and_b32 v3, 0x33, v3
        v_or_b32 v3, v3, v4              ; k row
        v_mul_u32_u24 v3, 3456, v3
        v_mul_u32_u24 v4, 57, v2
        v_lshrrev_b32 v4, 9, v4          ; seg = c/9
        v_mul_u32_u24 v5, {1152-144}, v4
        v_lshl_add_u32 v5, v2, 4, v5
        v_add_u32 v3, v3, v5
        v_mov_b32 v5, 0x80000000
        v_cmp_gt_u32 vcc, 27, v2
        v_cndmask_b32 v{8+n}, v5, v3, vcc
        """)
    def issue():
        k("s_add_u32 m0, s41, s49")
        for n in range(4): k(f"buffer_load_dwordx4 v1, s[8:11], s42 offen offset:{n*1024} lds")
        k("s_add_u32 m0, s45, s49")
        k("s_mov_b32 exec_hi, 0")
        k("buffer_load_dwordx4 v1, s[8:11], s44 offen lds")
        k("s_mov_b32 exec_hi, -1")
        k("s_add_u32 s50, s47, s49")
        for n in range(7):
            k(f"s_add_u32 m0, s50, {n*1024}")
            k(f"buffer_load_dwordx4 v{8+n}, s[72:75], s43 offen lds")
        k(f"s_add_u32 s42, s42, {128*2048}")
        k(f"s_add_u32 s44, s44, {128*2048}")
        k(f"s_add_u32 s43, s43, {64*3456}")
        slot_adv_prod(k, R, SZ, 49)
    producer_loop(k, S, R, issue, 12, LA=OPT["la_z1"])
    k("s_barrier")
    k.label(Latt)
    k(f"""
    s_and_b32 s40, s33, 3            ; head
    s_lshr_b32 s41, s33, 2
    s_and_b32 s42, s40, 1            ; odd
    s_lshl_b32 s43, s41, 6
    s_add_u32 s44, s43, 2
    v_add_u32 v2, s44, v0
    v_mul_u32_u24 v2, 440, v2
    s_mul_i32 s44, s40, 36
    s_lshl_b32 s45, s42, 2
    s_add_u32 s45, s45, s44
    v_add_u32 v3, s45, v2            ; b64 base
    s_xor_b32 s45, s42, 1
    s_lshl_b32 s45, s45, 5
    s_add_u32 s45, s45, s44
    v_add_u32 v2, s45, v2            ; b32 base
    s_lshl_b32 s46, s36, 7
    s_add_u32 s46, s46, s43
    v_add_u32 v4, s46, v0            ; t
    v_lshrrev_b32 v5, 4, v4
    v_lshlrev_b32 v5, 11, v5
    v_and_b32 v6, 15, v4
    v_lshl_add_u32 v5, v6, 4, v5
    s_mul_i32 s46, s37, 72
    s_mul_i32 s47, s40, 18
    s_add_u32 s46, s46, s47          ; col0
    s_mov_b32 s62, 0x05040100
    s_mov_b32 s63, 0x07060302
    """)
    for i in range(9):
        if i < 8: k(f"s_add_u32 s47, s42, {i}")
        else: k("s_xor_b32 s47, s42, 1\ns_lshl_b32 s47, s47, 3")
        k(f"""
        s_lshl_b32 s47, s47, 1
        s_add_u32 s47, s47, s46          ; col
        s_lshr_b32 s48, s47, 6
        s_lshl_b32 s48, s48, 18
        s_bfe_u32 s49, s47, 0x30003
        s_lshl_b32 s49, s49, 8
        s_add_u32 s48, s48, s49
        s_and_b32 s49, s47, 7
        s_lshl_b32 s49, s49, 1
        s_add_u32 s{80+i}, s48, s49
        """)
    k("s_barrier")
    st(20)
    Q, KK, VV, L, PP, OA = 24, 36, 116, 200, 210, 216
    def rdvec(dst, row, part):
        for h in range(4): k(f"ds_read_b64 {vr(dst+2*h,2)}, v3 offset:{row*440+part*144+8*h}")
        k(f"ds_read_b32 v{dst+8}, v2 offset:{row*440+part*144}")
    vecs = [(Q, 14, 0)] + [(KK + 10 * w, 14 - 2 * w, 1) for w in range(8)] + [(VV + 10 * w, 14 - 2 * w, 2) for w in range(8)]
    for v in vecs[:4]: rdvec(*v)
    nxt = 4
    for w in range(8): k(f"v_mov_b32 v{L+w}, 0")
    for w in range(8):
        k("s_waitcnt lgkmcnt(10)")
        for i in range(9): k(f"v_dot2c_f32_bf16 v{L+w}, v{Q+i}, v{KK+10*w+i}")
        rdvec(*vecs[nxt]); nxt += 1
    while nxt < len(vecs):
        rdvec(*vecs[nxt]); nxt += 1
    sc = f2u(18.0 ** -0.5)
    def rndL():
        for i in range(4): k(f"v_cvt_pk_bf16_f32 v{PP+i}, v{L+2*i}, v{L+2*i+1}")
        for i in range(4):
            k(f"v_lshlrev_b32 v{L+2*i}, 16, v{PP+i}")
            k(f"v_and_b32 v{L+2*i+1}, 0xffff0000, v{PP+i}")
    rndL()
    for w in range(8): k(f"v_mul_f32 v{L+w}, {sc:#x}, v{L+w}")
    rndL()
    k(f"v_mov_b32 v6, {f2u(-1e9):#x}")
    for w in range(1, 8):
        k(f"v_cmp_le_u32 s[{50+2*(w&3)}:{51+2*(w&3)}], {2*w}, v4")
        if w > 1: k(f"v_cndmask_b32 v{L+w-1}, v6, v{L+w-1}, s[{50+2*((w-1)&3)}:{51+2*((w-1)&3)}]")
    k(f"v_cndmask_b32 v{L+7}, v6, v{L+7}, s[56:57]")
    k(f"v_max3_f32 v7, v{L}, v{L+1}, v{L+2}")
    k(f"v_max3_f32 v8, v{L+3}, v{L+4}, v{L+5}")
    k(f"v_max3_f32 v7, v7, v{L+6}, v{L+7}")
    k(f"v_max_f32 v7, v7, v8")
    l2e = f2u(math.log2(math.e))
    for w in range(8): k(f"v_sub_f32 v{L+w}, v{L+w}, v7")
    for w in range(8): k(f"v_mul_f32 v{L+w}, {l2e:#x}, v{L+w}")
    for w in range(8): k(f"v_exp_f32 v{L+w}, v{L+w}")
    k(f"v_add_f32 v7, v{L}, v{L+1}")
    k(f"v_add_f32 v8, v{L+2}, v{L+3}")
    k(f"v_add_f32 v9, v{L+4}, v{L+5}")
    k(f"v_add_f32 v10, v{L+6}, v{L+7}")
    k("v_add_f32 v7, v7, v8\nv_add_f32 v9, v9, v10\nv_add_f32 v7, v7, v9\nv_rcp_f32 v7, v7")
    for w in range(8): k(f"v_mul_f32 v{L+w}, v{L+w}, v7")
    for i in range(4): k(f"v_cvt_pk_bf16_f32 v{PP+i}, v{L+2*i}, v{L+2*i+1}")
    for i in range(18): k(f"v_mov_b32 v{OA+i}, 0")
    k("s_waitcnt lgkmcnt(0)")
    for wp in range(4):
        x, y = VV + 20 * wp, VV + 20 * wp + 10
        for i in range(9):
            k(f"v_perm_b32 v{KK+2*i}, v{y+i}, v{x+i}, s62")
            k(f"v_perm_b32 v{KK+2*i+1}, v{y+i}, v{x+i}, s63")
        for i in range(18): k(f"v_dot2c_f32_bf16 v{OA+i}, v{KK+i}, v{PP+wp}")
    for i in range(9): k(f"v_cvt_pk_bf16_f32 v{Q+i}, v{OA+2*i}, v{OA+2*i+1}")
    for i in range(9): k(f"buffer_store_dword v{Q+i}, v5, s[76:79], s{80+i} offen")
    if stamps:
        st(20); k("s_waitcnt vmcnt(0)"); st(20)
    k.label(Lend)
    k("s_endpgm")
    return k

def gen_g2(name, stamps=False):
    k = Kern(name); st = Stamps(k, stamps, 3)
    S, R, SZ, BO = 32, 4, 34816, 16384
    Lend, Lprod = k.lab("end"), k.lab("prod")
    preamble(k, 256, Lend, [(4, "ws"), (6, "b_sp")])
    k("""
    s_and_b32 s36, s34, 1
    s_lshl_b32 s36, s36, 3
    s_and_b32 s37, s35, 7
    s_add_u32 s36, s36, s37          ; mt
    s_lshr_b32 s37, s34, 1
    s_lshl_b32 s37, s37, 2
    s_lshr_b32 s38, s35, 3
    s_add_u32 s37, s37, s38          ; nt
    s_waitcnt lgkmcnt(0)
    """)
    srd(k, 8, 4, WSP_OFF, WSP_SZ)
    srd(k, 12, 4, Z2T_OFF, Z2T_SZ)
    k(f"s_cmp_ge_u32 s33, 4\ns_cbranch_scc1 {Lprod}")
    srd(k, 16, 4, Z1P_OFF, Z1P_SZ)
    srd(k, 20, 4, A3_OFF, A3_SZ)
    srd(k, 24, 6, 0, 4096)
    srd(k, 28, 4, CT_OFF, CT_SZ)
    st.init(); st()
    ACC, BUF = 104, [0, 52]
    VA01, VA23, VB, VL16, VT = 248, 249, 250, 251, 252
    acc = lambda i, j: ACC + (i * 9 + j) * 4
    k(f"""
    s_and_b32 s40, s33, 1            ; mh
    s_lshr_b32 s41, s33, 1           ; kh
    v_mov_b32 v{VL16}, v1
    s_lshl_b32 s42, s40, 13
    s_lshl_b32 s43, s41, 10
    s_add_u32 s42, s42, s43
    s_lshl_b32 s44, s41, 12
    s_add_u32 s45, s42, s44
    v_add_u32 v{VA01}, s45, v1
    s_xor_b32 s44, s44, 4096
    s_add_u32 s45, s42, s44
    v_add_u32 v{VA23}, s45, v1
    s_add_u32 s45, s43, {BO}
    v_add_u32 v{VB}, s45, v1
    s_lshl_b32 s46, s36, 3
    s_lshl_b32 s47, s40, 2
    s_add_u32 s46, s46, s47
    s_lshl_b32 s47, s41, 1
    s_add_u32 s46, s46, s47          ; tfrag0
    v_and_b32 v2, 15, v0
    s_lshl_b32 s47, s46, 4
    v_add_u32 v2, s47, v2
    v_lshlrev_b32 v3, 1, v2
    v_lshlrev_b32 v2, 2, v2
    buffer_load_ushort v4, v3, s[24:27], 0 offen
    buffer_load_ushort v5, v3, s[24:27], 0 offen offset:32
    s_movk_i32 s48, 0x2000
    s_movk_i32 s49, 0x4000
    s_movk_i32 s50, 0x6000
    buffer_load_dword v6, v2, s[28:31], 0 offen
    buffer_load_dword v7, v2, s[28:31], s48 offen
    buffer_load_dword v8, v2, s[28:31], s49 offen
    buffer_load_dword v9, v2, s[28:31], s50 offen
    buffer_load_dword v10, v2, s[28:31], 0 offen offset:64
    buffer_load_dword v11, v2, s[28:31], s48 offen offset:64
    buffer_load_dword v12, v2, s[28:31], s49 offen offset:64
    buffer_load_dword v13, v2, s[28:31], s50 offen offset:64
    """)
    for r in range(acc(2, 0), acc(3, 8) + 4): k(f"v_mov_b32 v{r}, 0")
    k(f"""
    s_lshr_b32 s51, s37, 1           ; u
    s_and_b32 s52, s37, 1            ; e'
    s_mul_i32 s53, s51, 9
    s_add_u32 s53, s53, 18
    s_lshl_b32 s54, s52, 2
    s_add_u32 s54, s54, s53          ; step0
    s_add_u32 s53, s53, 8
    s_lshl_b32 s55, s46, 11
    """)
    for p in range(5):
        src = "s53" if p == 4 else "s54"
        add = 0 if p == 4 else p
        k(f"""
        s_add_u32 s56, {src}, {add}
        s_lshr_b32 s57, s56, 1
        s_lshl_b32 s57, s57, 18
        s_and_b32 s56, s56, 1
        s_lshl_b32 s56, s56, 10
        s_add_u32 s57, s57, s56
        s_add_u32 s{60+p}, s57, s55
        """)
    k(f"""
    s_lshl_b32 s56, s46, 4
    s_add_u32 s56, s56, s37
    s_mul_i32 s66, s56, 4608
    s_add_u32 s67, s66, {16*4608}
    s_waitcnt vmcnt(0)
    v_lshlrev_b32 v4, 16, v4
    v_lshlrev_b32 v5, 16, v5
    v_add_f32 v6, v6, v7
    v_add_f32 v8, v8, v9
    v_add_f32 v10, v10, v11
    v_add_f32 v12, v12, v13
    v_add_f32 v6, v6, v8
    v_add_f32 v10, v10, v12
    v_sub_f32 v4, v4, v6
    v_sub_f32 v5, v5, v10
    """)
    for e in range(2):
        for r in range(acc(e, 0), acc(e, 8) + 4): k(f"v_mov_b32 v{r}, v{4+e}")
    adv_setup(k, R, SZ)
    def reads(sub, b):
        o = [f"ds_read_b128 {vr(BUF[b]+i*4,4)}, v{VA01 if i < 2 else VA23} offset:{(i&1)*2048}" for i in range(4)]
        o += [f"ds_read_b128 {vr(BUF[b]+16+j*4,4)}, v{VB} offset:{j*2048}" for j in range(9)]
        return o
    def mfmas(b):
        return [f"v_mfma_f32_16x16x32_bf16 {vr(acc(i,j),4)}, {vr(BUF[b]+16+j*4,4)}, {vr(BUF[b]+i*4,4)}, {vr(acc(i,j),4)}"
                for j in range(9) for i in range(4)]
    last = consumer_loop(k, S, 1, reads, mfmas, adv_ins(R, [VA01, VA23, VB]), True, st=st)
    assert last == 1
    st()
    k(f"v_lshrrev_b32 v{VT}, 1, v{VL16}")
    for e in range(2):
        for p in range(4):
            k(f"buffer_load_dwordx4 {vr(e*20+p*4,4)}, v{VL16}, s[16:19], s{66+e} offen offset:{p*1024}")
        k(f"s_add_u32 s68, s{66+e}, 4096")
        k(f"buffer_load_dwordx2 {vr(e*20+16,2)}, v{VT}, s[16:19], s68 offen")
    for m in mfmas(1): k(m)
    k("s_lshl_b32 s42, s40, 1")
    ksplit_reduce(k, acc(2, 0), 18, 42, 41, VL16, VA01, VA23, 0)
    for n in range(18): k(f"ds_read_b128 {vr(acc(2,0)+n*4,4)}, v{VA23} offset:{n*1024}")
    k(f"s_lshl_b32 s52, s52, 3")
    k(f"v_add_u32 v{VT}, s52, v{VL16}")
    k("s_waitcnt vmcnt(0)")
    if stamps: st();
    T = 52
    for e in range(2):
        for j in range(9):
            n = e * 9 + j
            k(f"s_waitcnt lgkmcnt({min(15, 17-n)})")
            a, b = acc(e, j), acc(2 + e, j)
            z = e * 20 + j * 2
            t = T + (j & 1) * 4
            k(f"""
            v_pk_add_f32 {vr(a,2)}, {vr(a,2)}, {vr(b,2)}
            v_pk_add_f32 {vr(a+2,2)}, {vr(a+2,2)}, {vr(b+2,2)}
            v_lshlrev_b32 v{t}, 16, v{z}
            v_and_b32 v{t+1}, 0xffff0000, v{z}
            v_lshlrev_b32 v{t+2}, 16, v{z+1}
            v_and_b32 v{t+3}, 0xffff0000, v{z+1}
            v_pk_mul_f32 {vr(a,2)}, {vr(a,2)}, {vr(t,2)}
            v_pk_mul_f32 {vr(a+2,2)}, {vr(a+2,2)}, {vr(t+2,2)}
            v_cvt_pk_bf16_f32 v{z}, v{a}, v{a+1}
            v_cvt_pk_bf16_f32 v{z+1}, v{a+2}, v{a+3}
            """)
            if j & 1:
                p = j >> 1
                k(f"buffer_store_dwordx4 {vr(e*20+p*4,4)}, v{VL16}, s[20:23], s{60+p} offen offset:{e*2048}")
            elif j == 8:
                k(f"buffer_store_dwordx2 {vr(e*20+16,2)}, v{VT}, s[20:23], s64 offen offset:{e*2048}")
    if stamps:
        st(); k("s_waitcnt vmcnt(0)"); st()
    k("s_endpgm")
    k.label(Lprod)
    k(f"""
    s_sub_u32 s40, s33, 4            ; pw
    s_lshl_b32 s41, s40, 12
    s_lshl_b32 s42, s36, 14
    s_add_u32 s42, s42, s41          ; A goff
    s_mul_i32 s43, s37, 18432
    s_lshl_b32 s45, s40, 9
    s_add_u32 s44, s43, s45
    s_add_u32 s44, s44, 16384        ; B2 goff
    s_add_u32 s43, s43, s41          ; B goff
    s_add_u32 s47, s41, {BO}
    s_add_u32 s48, s45, {BO+16384}
    s_mov_b32 s49, 0
    """)
    def issue():
        k("s_add_u32 m0, s41, s49")
        for n in range(4): k(f"buffer_load_dwordx4 v1, s[8:11], s42 offen offset:{n*1024} lds")
        k("s_add_u32 m0, s47, s49")
        for n in range(4): k(f"buffer_load_dwordx4 v1, s[12:15], s43 offen offset:{n*1024} lds")
        k("s_add_u32 m0, s48, s49")
        k("s_mov_b32 exec_hi, 0")
        k("buffer_load_dwordx4 v1, s[12:15], s44 offen lds")
        k("s_mov_b32 exec_hi, -1")
        k(f"s_add_u32 s42, s42, {128*2048}")
        k(f"s_add_u32 s43, s43, {144*2048}")
        k(f"s_add_u32 s44, s44, {144*2048}")
        slot_adv_prod(k, R, SZ, 49)
    producer_loop(k, S, R, issue, 9, LA=OPT["la_g2"])
    k.label(Lend)
    k("s_endpgm")
    return k

def gen_g3(name, stamps=False):
    k = Kern(name); st = Stamps(k, stamps, 4)
    S, R, SZ, BO = 45, 8, 17408, 8192
    Lend, Lprod = k.lab("end"), k.lab("prod")
    preamble(k, 256, Lend, [(4, "ws"), (6, "x"), (64, "out")])
    k("""
    s_and_b32 s36, s34, 3
    s_lshl_b32 s36, s36, 3
    s_and_b32 s37, s35, 7
    s_add_u32 s36, s36, s37
    s_lshr_b32 s37, s34, 2
    s_lshl_b32 s37, s37, 2
    s_lshr_b32 s38, s35, 3
    s_add_u32 s37, s37, s38          ; nt
    s_waitcnt lgkmcnt(0)
    """)
    srd(k, 8, 4, A3_OFF, A3_SZ)
    srd(k, 12, 4, W3_OFF, W3_SZ)
    k(f"s_cmp_ge_u32 s33, 4\ns_cbranch_scc1 {Lprod}")
    srd(k, 16, 6, 0, 2048 * 1152)
    srd(k, 20, 64, 0, 2048 * 1152)
    st.init(); st(100)
    ACC, BUF = 56, [0, 28]
    VA0, VA1, VB, VBH, VL16, VO = 104, 105, 106, 107, 108, 109
    acc = lambda i, j: ACC + (i * 5 + j) * 4
    k(f"""
    s_and_b32 s40, s33, 1            ; mh
    s_lshr_b32 s41, s33, 1           ; kh
    v_mov_b32 v{VL16}, v1
    s_lshl_b32 s42, s40, 12
    s_lshl_b32 s43, s41, 10
    s_add_u32 s42, s42, s43
    s_lshl_b32 s44, s41, 11
    s_add_u32 s45, s42, s44
    v_add_u32 v{VA0}, s45, v1
    s_xor_b32 s44, s44, 2048
    s_add_u32 s45, s42, s44
    v_add_u32 v{VA1}, s45, v1
    s_add_u32 s45, s43, {BO}
    v_add_u32 v{VB}, s45, v1
    v_lshrrev_b32 v2, 4, v0          ; q
    v_and_b32 v3, 7, v0
    v_lshl_add_u32 v3, v2, 3, v3
    v_lshlrev_b32 v3, 4, v3
    s_lshl_b32 s45, s41, 9
    s_add_u32 s45, s45, {BO+8192}
    v_add_u32 v{VBH}, s45, v3
    s_lshl_b32 s46, s36, 2
    s_lshl_b32 s47, s40, 1
    s_add_u32 s46, s46, s47
    s_add_u32 s46, s46, s41          ; tfrag
    s_mul_i32 s46, s46, {16*1152}
    s_mul_i32 s47, s37, 144
    s_add_u32 s46, s46, s47
    v_and_b32 v3, 15, v0
    v_mul_u32_u24 v3, 1152, v3
    v_lshl_add_u32 v{VO}, v2, 3, v3
    """)
    for j in range(5): k(f"buffer_load_dwordx2 {vr(4+2*j,2)}, v{VO}, s[16:19], s46 offen offset:{j*32}")
    for r in range(acc(1, 0), acc(1, 4) + 4): k(f"v_mov_b32 v{r}, 0")
    adv_setup(k, R, SZ)
    k("s_waitcnt vmcnt(0)")
    for j in range(5):
        for h in range(2):
            k(f"v_lshlrev_b32 v{acc(0,j)+2*h}, 16, v{4+2*j+h}")
            k(f"v_and_b32 v{acc(0,j)+2*h+1}, 0xffff0000, v{4+2*j+h}")
    def reads(sub, b):
        o = [f"ds_read_b128 {vr(BUF[b],4)}, v{VA0}", f"ds_read_b128 {vr(BUF[b]+4,4)}, v{VA1}"]
        o += [f"ds_read_b128 {vr(BUF[b]+8+j*4,4)}, v{VB} offset:{j*2048}" for j in range(4)]
        o += [f"ds_read_b128 {vr(BUF[b]+24,4)}, v{VBH}"]
        return o
    def mfmas(b):
        return [f"v_mfma_f32_16x16x32_bf16 {vr(acc(i,j),4)}, {vr(BUF[b]+8+j*4,4)}, {vr(BUF[b]+i*4,4)}, {vr(acc(i,j),4)}"
                for j in range(5) for i in range(2)]
    last = consumer_loop(k, S, 1, reads, mfmas, adv_ins(R, [VA0, VA1, VB, VBH]), True, st=(lambda: st(100)))
    st(100)
    for m in mfmas(last): k(m)
    k("s_lshl_b32 s42, s40, 1")
    ksplit_reduce(k, acc(1, 0), 5, 42, 41, VL16, VA0, VA1, 0)
    for n in range(5): k(f"ds_read_b128 {vr(acc(1,0)+n*4,4)}, v{VA1} offset:{n*1024}")
    for j in range(5):
        k(f"s_waitcnt lgkmcnt({4-j})")
        a, b = acc(0, j), acc(1, j)
        k(f"v_pk_add_f32 {vr(a,2)}, {vr(a,2)}, {vr(b,2)}")
        k(f"v_pk_add_f32 {vr(a+2,2)}, {vr(a+2,2)}, {vr(b+2,2)}")
        k(f"v_cvt_pk_bf16_f32 v{2*j}, v{a}, v{a+1}")
        k(f"v_cvt_pk_bf16_f32 v{2*j+1}, v{a+2}, v{a+3}")
        if j == 4: k("s_mov_b32 exec_hi, 0")
        k(f"buffer_store_dwordx2 {vr(2*j,2)}, v{VO}, s[20:23], s46 offen offset:{j*32}")
    if stamps:
        k("s_mov_b32 exec_hi, -1")
        st(100); k("s_waitcnt vmcnt(0)"); st(100)
    k("s_endpgm")
    k.label(Lprod)
    k(f"""
    s_sub_u32 s40, s33, 4            ; pw
    s_lshl_b32 s41, s40, 11
    s_lshl_b32 s42, s36, 13
    s_add_u32 s42, s42, s41          ; A goff
    s_mul_i32 s43, s37, 9216
    s_lshl_b32 s45, s40, 8
    s_add_u32 s44, s43, s45
    s_add_u32 s44, s44, 8192         ; B2 goff
    s_add_u32 s43, s43, s41          ; B goff
    s_add_u32 s47, s41, {BO}
    s_add_u32 s48, s45, {BO+8192}
    s_mov_b32 s49, 0
    """)
    def issue():
        k("s_add_u32 m0, s41, s49")
        for n in range(2): k(f"buffer_load_dwordx4 v1, s[8:11], s42 offen offset:{n*1024} lds")
        k("s_add_u32 m0, s47, s49")
        for n in range(2): k(f"buffer_load_dwordx4 v1, s[12:15], s43 offen offset:{n*1024} lds")
        k("s_add_u32 m0, s48, s49")
        k("s_mov_b64 exec, 0xffff")
        k("buffer_load_dwordx4 v1, s[12:15], s44 offen lds")
        k("s_mov_b64 exec, -1")
        k(f"s_add_u32 s42, s42, {128*2048}")
        k(f"s_add_u32 s43, s43, {8*9216}")
        k(f"s_add_u32 s44, s44, {8*9216}")
        slot_adv_prod(k, R, SZ, 49)
    producer_loop(k, S, R, issue, 5, LA=OPT["la_g3"])
    k.label(Lend)
    k("s_endpgm")
    return k

HEADER = open("parallel_sum__sliding_local_dilated__mixer_gmlp__prompt.s.ref").read().split("; Override launch")[0] if __name__ == "__main__" else ""

def build(stamps=False, pf=0):
    return [
        (gen_prep("prep_kernel", pf), 96, 173 + (216 if pf else 0), 576, 73728),
        (gen_z2("z2_kernel", stamps), 256, 256, 512, 4 * 34816),
        (gen_z1qkv("z1qkv_kernel", stamps), 256, 256, 512, 3 * 51200),
        (gen_g2("g2_kernel", stamps), 256, 256, 512, 4 * 34816),
        (gen_g3("g3_kernel", stamps), 112, 256, 512, 8 * 17408),
    ]

if __name__ == "__main__":
    stamps = "stamps" in sys.argv[2:]
    for a in sys.argv[2:]:
        if "=" in a: OPT[a.split("=")[0]] = int(a.split("=")[1])
    pf = [int(a[2:]) for a in sys.argv[2:] if a.startswith("pf")]
    txt = assemble_file(HEADER + "; generated by a python script (tile loops, fragment layouts and wait states hand-designed)\n", build(stamps, pf[0] if pf else 0))
    if "sc1" in sys.argv[2:]:
        import re
        txt = re.sub(r"(?m)^(\s+buffer_store_dwordx4 .*offen( offset:[0-9]+)?)$", r"\1 sc1", txt)
    open(sys.argv[1], "w").write(txt)
```

```python
import sys, math, re
from asmlib import *
import gen2
from gen2 import *
from gen4 import reduce16

FLG_OFF = 0x3430000; FLG_SZ = 32768
F0 = 16384
F1, F2, F4, F3 = 0, 4096, 8192, 12288
TFS = 90 * 1024
ATT = 69632
HSC = 153600

def snake(no, ni):
    return [(o, i if o % 2 == 0 else ni - 1 - i) for o in range(no) for i in range(ni)]

def w144_voff(k, d, sid, pitch):
    k(f"""
    v_add_u32 v2, s{sid}, v0
    v_mul_u32_u24 v3, 3641, v2
    v_lshrrev_b32 v3, 16, v3
    v_mul_u32_u24 v4, 18, v3
    v_sub_u32 v2, v2, v4
    v_and_b32 v4, 4, v3
    v_and_b32 v5, 8, v3
    v_lshlrev_b32 v4, 1, v4
    v_lshrrev_b32 v5, 1, v5
    v_and_b32 v3, 0x33, v3
    v_or3_b32 v3, v3, v4, v5
    v_mul_u32_u24 v3, {pitch}, v3
    v_lshl_add_u32 v{d}, v2, 4, v3
    """)
def qkv_voff(k, d, sid):
    k(f"""
    v_add_u32 v2, s{sid}, v0
    v_mul_u32_u24 v3, 2341, v2
    v_lshrrev_b32 v3, 16, v3
    v_mul_u32_u24 v4, 28, v3
    v_sub_u32 v2, v2, v4
    v_and_b32 v4, 4, v3
    v_lshrrev_b32 v5, 1, v4
    v_xor_b32 v2, v2, v5
    v_lshlrev_b32 v4, 1, v4
    v_and_b32 v5, 8, v3
    v_lshrrev_b32 v5, 1, v5
    v_and_b32 v3, 0x33, v3
    v_or3_b32 v3, v3, v4, v5
    v_mul_u32_u24 v3, 3456, v3
    v_mul_u32_u24 v4, 57, v2
    v_lshrrev_b32 v4, 9, v4
    v_mul_u32_u24 v5, {1152-144}, v4
    v_lshl_add_u32 v5, v2, 4, v5
    v_add_u32 v3, v3, v5
    v_mov_b32 v5, 0x80000000
    v_cmp_gt_u32 vcc, 27, v2
    v_cndmask_b32 v{d}, v5, v3, vcc
    """)

def lin_dma(k, n, srdr, soff, mbase, slot, vl16=1, mods=""):
    for g in range(0, n, 4):
        if g == 0:
            k(f"s_add_u32 m0, s{mbase}, s{slot}"); so = soff
        else:
            k("s_add_u32 m0, m0, 4096"); k(f"s_add_u32 s50, s{soff}, {g*1024}"); so = 50
        for i in range(min(4, n - g)):
            k(f"buffer_load_dwordx4 v{vl16}, s[{srdr}:{srdr+3}], s{so} offen offset:{i*1024}{mods} lds")
def gat_dma(k, n, srdr, soff, mbase, slot, V):
    k(f"s_add_u32 m0, s{mbase}, s{slot}")
    for i in range(n):
        if i: k("s_add_u32 m0, m0, 1024")
        k(f"buffer_load_dwordx4 v{V+i}, s[{srdr}:{srdr+3}], s{soff} offen lds")

def spin(k, load, check):
    Lp, Ld = k.lab("sp"), k.lab("sd")
    check()
    k(f"s_cbranch_vccz {Ld}")
    k("s_mov_b32 s50, 0x40000")
    k.label(Lp)
    k(f"s_sleep {OPT.get('slp', 4)}")
    load()
    k("s_waitcnt vmcnt(0)")
    k("s_sub_u32 s50, s50, 1")
    check()
    k("s_cmp_eq_u32 s50, 0")
    k("s_cselect_b64 vcc, 0, vcc")
    k(f"s_cbranch_vccnz {Lp}")
    k.label(Ld)

def set_flag(k, soff_expr_lines, vt):
    k(soff_expr_lines)
    k(f"""
    v_mov_b32 v{vt}, s101
    v_mov_b32 v{vt+1}, 0
    s_mov_b64 exec, 1
    buffer_store_dword v{vt}, v{vt+1}, s[84:87], s50 offen sc1
    s_mov_b64 exec, -1
    """)

CNT = ["s_sub_u32 s58, s58, 1", "s_cmp_lg_u32 s58, 0"]


def phase0(k, st, L):
    SZ = 51200
    Lw, Ld, Ln6, Lnz, Lnt = k.lab("w3"), k.lab("p0d"), k.lab("n6"), k.lab("nz"), k.lab("nt")
    srd(k, 84, 4, FLG_OFF, FLG_SZ)
    k(f"""
    s_lshl_b32 s44, s34, 4
    s_and_b32 s50, s35, 15
    s_add_u32 s44, s44, s50
    s_cmp_lg_u32 s33, 7
    s_cbranch_scc1 {Lnz}
    s_lshl_b32 s50, s36, 8
    s_lshl_b32 s51, s37, 4
    s_add_u32 s50, s50, s51
    s_lshl_b32 s51, s37, 8
    s_lshl_b32 s52, s36, 4
    s_add_u32 s51, s51, s52
    s_add_u32 s51, s51, {F2}
    s_add_u32 s52, s50, {F4}
    s_lshl_b32 s53, s2, 2
    s_add_u32 s53, s53, {F3}
    v_mov_b32 v4, s50
    v_writelane_b32 v4, s51, 1
    v_writelane_b32 v4, s52, 2
    v_writelane_b32 v4, s53, 3
    s_mov_b64 exec, 15
    buffer_load_dword v241, v4, s[84:87], 0 offen
    s_mov_b64 exec, -1
    {Lnz}:
    s_cmp_lg_u32 s33, 6
    s_cbranch_scc1 {Lnt}
    """)
    srd(k, 28, 74, 0, 256)
    Lrd, Lgot = k.lab("rd"), k.lab("got")
    k(f"""
    v_mov_b32 v4, 0
    s_mov_b64 exec, 1
    s_cmp_lg_u32 s2, 0
    s_cbranch_scc1 {Lrd}
    s_memrealtime s[50:51]
    s_waitcnt lgkmcnt(0)
    s_or_b32 s50, s50, 1
    v_mov_b32 v5, s50
    buffer_store_dword v5, v4, s[28:31], 0 offen sc1
    s_branch {Lgot}
    {Lrd}:
    """)
    ldn = lambda: k("buffer_load_dword v5, v4, s[28:31], 0 offen sc1")
    ldn(); k("s_waitcnt vmcnt(0)")
    spin(k, ldn, lambda: k("v_cmp_eq_u32 vcc, 0, v5"))
    k(f"""
    {Lgot}:
    v_readfirstlane_b32 s101, v5
    v_mov_b32 v4, {HSC}
    ds_write_b32 v4, v5
    s_mov_b64 exec, -1
    {Lnt}:
    s_cmp_eq_u32 s32, 0
    s_cbranch_scc1 {Lw}
    """)
    srd(k, 24, 68, 0, 2048 * 1152)
    k(f"""
    s_cmp_ge_u32 s33, 6
    s_cbranch_scc1 {Ln6}
    v_and_b32 v2, 15, v0             ; row
    v_lshrrev_b32 v3, 4, v0          ; q
    s_mul_i32 s45, s44, {16*1152}
    s_mul_i32 s46, s33, 192
    s_add_u32 s45, s45, s46
    v_mul_u32_u24 v4, 1152, v2
    v_lshl_add_u32 v4, v3, 4, v4
    buffer_load_dwordx4 v[8:11], v4, s[24:27], s45 offen
    buffer_load_dwordx4 v[12:15], v4, s[24:27], s45 offen offset:64
    buffer_load_dwordx4 v[16:19], v4, s[24:27], s45 offen offset:128
    v_mul_u32_u24 v5, 112, v2
    v_add_u32 v5, {2*SZ}, v5
    s_lshl_b32 s46, s33, 4
    v_lshl_add_u32 v6, v3, 2, v5
    v_add_u32 v6, s46, v6
    s_mul_i32 s46, s33, 3
    s_lshl_b32 s47, s44, 11
    """)
    for i in range(3):
        k(f"""
        s_add_u32 s50, s46, {i}
        s_lshr_b32 s51, s50, 1
        s_lshl_b32 s51, s51, 18
        s_and_b32 s50, s50, 1
        s_lshl_b32 s50, s50, 10
        s_add_u32 s51, s51, s50
        s_add_u32 s{60+i}, s51, s47
        """)
    k("s_waitcnt vmcnt(0)")
    X, D = 20, 68
    for i in range(12):
        k(f"v_lshlrev_b32 v{X+2*i}, 16, v{8+i}")
        k(f"v_and_b32 v{X+2*i+1}, 0xffff0000, v{8+i}")
    def tree(base, n, dst):
        k(f"v_pk_add_f32 v[92:93], {vr(base,2)}, {vr(base+2,2)}")
        k(f"v_pk_add_f32 v[94:95], {vr(base+4,2)}, {vr(base+6,2)}")
        for i in range(4, n // 2): k(f"v_pk_add_f32 {vr(92+2*(i&1),2)}, {vr(92+2*(i&1),2)}, {vr(base+2*i,2)}")
        k("v_pk_add_f32 v[92:93], v[92:93], v[94:95]")
        k(f"v_add_f32 v{dst}, v92, v93")
    tree(X, 24, 96)
    k("ds_write_b32 v6, v96")
    k("s_waitcnt lgkmcnt(0)")
    k("s_barrier")
    for i in range(6): k(f"ds_read_b128 {vr(44+4*i,4)}, v5 offset:{i*16}")
    k("s_waitcnt lgkmcnt(0)")
    tree(44, 24, 96)
    k(f"v_mul_f32 v96, {f2u(1.0/576):#x}, v96")
    k("v_mov_b32 v97, v96")
    for i in range(12): k(f"v_pk_add_f32 {vr(D+2*i,2)}, {vr(X+2*i,2)}, v[96:97] neg_lo:[0,1] neg_hi:[0,1]")
    k(f"v_pk_mul_f32 v[92:93], {vr(D,2)}, {vr(D,2)}")
    k(f"v_pk_mul_f32 v[94:95], {vr(D+2,2)}, {vr(D+2,2)}")
    for i in range(2, 12): k(f"v_pk_fma_f32 {vr(92+2*(i&1),2)}, {vr(D+2*i,2)}, {vr(D+2*i,2)}, {vr(92+2*(i&1),2)}")
    k("v_pk_add_f32 v[92:93], v[92:93], v[94:95]")
    k("v_add_f32 v98, v92, v93")
    k("ds_write_b32 v6, v98 offset:2048")
    rnd_bf16(k, 96, 96)
    k("v_mov_b32 v97, v96")
    for i in range(12): k(f"v_pk_add_f32 {vr(X+2*i,2)}, {vr(X+2*i,2)}, v[96:97] neg_lo:[0,1] neg_hi:[0,1]")
    k("s_waitcnt lgkmcnt(0)")
    k("s_barrier")
    for i in range(6): k(f"ds_read_b128 {vr(44+4*i,4)}, v5 offset:{2048+i*16}")
    for i in range(12): k(f"v_cvt_pk_bf16_f32 v{8+i}, v{X+2*i}, v{X+2*i+1}")
    for i in range(12):
        k(f"v_lshlrev_b32 v{X+2*i}, 16, v{8+i}")
        k(f"v_and_b32 v{X+2*i+1}, 0xffff0000, v{8+i}")
    k("s_waitcnt lgkmcnt(0)")
    tree(44, 24, 98)
    k(f"v_mul_f32 v98, {f2u(1.0/576):#x}, v98")
    rnd_bf16(k, 98, 98)
    k(f"v_add_f32 v98, {f2u(1e-5):#x}, v98")
    rnd_bf16(k, 98, 98)
    k("v_sqrt_f32 v98, v98")
    rnd_bf16(k, 98, 98)
    k("v_rcp_f32 v98, v98")
    k("v_mov_b32 v99, v98")
    for i in range(12): k(f"v_pk_mul_f32 {vr(X+2*i,2)}, {vr(X+2*i,2)}, v[98:99]")
    for i in range(12): k(f"v_cvt_pk_bf16_f32 v{8+i}, v{X+2*i}, v{X+2*i+1}")
    for i in range(3): k(f"buffer_store_dwordx4 {vr(8+4*i,4)}, v1, s[8:11], s{60+i} offen sc1")
    k(f"s_waitcnt vmcnt(0)\ns_barrier\ns_branch {Ld}")
    k.label(Ln6)
    srd(k, 20, 4, ST_OFF, ST_SZ)
    Lz = k.lab("z7")
    k(f"""
    v_mov_b32 v4, 0
    v_lshlrev_b32 v5, 2, v0
    s_lshl_b32 s45, s44, 7
    s_cmp_lg_u32 s33, 7
    s_cbranch_scc1 {Lz}
    s_mov_b32 exec_hi, 0
    buffer_store_dword v4, v5, s[20:23], s45 offen sc1
    s_mov_b32 exec_hi, -1
    {Lz}:
    s_barrier
    s_barrier
    s_waitcnt vmcnt(0)
    s_barrier
    s_cmp_lg_u32 s33, 6
    s_cbranch_scc1 {Ld}
    v_mov_b32 v4, s101
    s_add_u32 s45, s45, {F0}
    s_mov_b32 exec_hi, 0
    buffer_store_dword v4, v5, s[84:87], s45 offen sc1
    s_mov_b32 exec_hi, -1
    s_branch {Ld}
    """)
    k.label(Lw)
    def warm():
        if OPT.get("w0", 0):
            k(f"""
            s_lshl_b32 s50, s44, 3
            s_add_u32 s50, s50, s33
            s_lshl_b32 s51, s50, 6
            v_add_u32 v243, s51, v0
            s_mov_b32 s52, 116509
            v_mul_lo_u32 v242, s52, v243
            v_lshrrev_b32 v242, 22, v242
            v_lshlrev_b32 v243, 7, v243
            v_mul_u32_u24 v242, 4608, v242
            v_add_u32 v243, v243, v242
            s_mov_b32 s51, 0x7fffffff
            s_cmp_lt_u32 s50, 324
            s_cselect_b32 s51, 4608, s51
            buffer_load_dword v243, v243, s[12:15], s51 offen
            """)
            return
        k(f"""
        s_lshl_b32 s50, s44, 3
        s_add_u32 s50, s50, s33
        s_sub_u32 s51, s50, 648
        s_cmp_lt_u32 s50, 648
        s_cselect_b32 s28, s6, s64
        s_cselect_b32 s29, s7, s65
        s_cselect_b32 s50, s50, s51
        s_mov_b32 s30, {576*3456}
        s_cselect_b32 s30, {576*9216}, s30
        s_mov_b32 s31, 0x20000
        s_lshl_b32 s50, s50, 13
        v_lshlrev_b32 v243, 7, v0
        buffer_load_dword v243, v243, s[28:31], s50 offen
        """)
    warm()
    k.label(Ld)

def k1_body(k, st, L, fused, single=False):
    R, SZ = 3, 51200
    BO1, BOZ, BOQ = 16384, 32768, 18432
    stamps = st.on
    k(f"""
    s_and_b32 s36, s34, 1
    s_lshl_b32 s36, s36, 3
    s_and_b32 s37, s35, 7
    s_add_u32 s36, s36, s37          ; z2 mt
    s_lshr_b32 s37, s34, 1
    s_lshl_b32 s37, s37, 2
    s_lshr_b32 s38, s35, 3
    s_add_u32 s37, s37, s38          ; z2 nt
    s_lshr_b32 s32, s35, 4
    s_and_b32 s38, s34, 1
    s_lshl_b32 s38, s38, 2
    s_and_b32 s39, s35, 3
    s_add_u32 s38, s38, s39
    s_lshr_b32 s39, s34, 1
    s_lshl_b32 s50, s39, 1
    s_lshl_b32 s39, s39, 2
    s_lshr_b32 s51, s35, 2
    s_add_u32 s39, s39, s51          ; z1 nt
    s_bfe_u32 s51, s35, 0x10003
    s_add_u32 s50, s50, s51          ; hg
    s_cmp_eq_u32 s32, 0
    s_cselect_b32 s38, s38, s36
    s_cselect_b32 s39, s39, s50
    s_waitcnt lgkmcnt(0)
    """)
    srd(k, 8, 4, XN_OFF, XN_SZ)
    srd(k, 12, 6, 0, 576 * 9216)
    XS = " sc1" if single else ""
    st.init()
    if single:
        st(250)
        phase0(k, st, L)
        st(250)
    k(f"s_cmp_ge_u32 s33, 4\ns_cbranch_scc1 {L['D']}")
    srd(k, 16, 4, A3_OFF, A3_SZ)
    def loop2(reads, half, adv, vmw):
        Ltop = k.lab("top")
        k("s_mov_b32 s58, 8")
        k("s_barrier")
        st()
        for r in reads(0, 0): k(r)
        k("s_waitcnt lgkmcnt(0)")
        if vmw: k("s_barrier")
        half(0, reads(1, 1) + adv, True)
        k("s_waitcnt vmcnt(0) lgkmcnt(0)")
        k.label(Ltop)
        k("s_barrier")
        half(1, reads(0, 0), False)
        k("s_waitcnt lgkmcnt(0)")
        half(0, reads(1, 1) + adv + CNT, False)
        k("s_waitcnt lgkmcnt(0)")
        k(f"s_cbranch_scc1 {Ltop}")
        st()
    st()
    ACC, BUF = 104, [0, 36]
    VA, VB, VL16, VLN = 244, 245, 246, 247
    acc = lambda i, j: ACC + (i * 5 + j) * 4
    k(f"""
    s_mov_b32 s40, s33
    s_and_b32 s41, s40, 1            ; wm
    s_lshr_b32 s42, s40, 1           ; wn
    v_mov_b32 v{VL16}, v1
    v_mov_b32 v{VLN}, v0
    s_lshl_b32 s43, s41, 13
    v_add_u32 v{VA}, s43, v1
    """)
    tr_lane_base(k, VB, 288, 2)
    k(f"s_mul_i32 s43, s42, 160\ns_add_u32 s43, s43, {BO1}\nv_add_u32 v{VB}, s43, v{VB}")
    Lq, Ld = k.lab("cq"), k.lab("cd")
    ZA, ZB, ZL16, ZL8 = 248, 249, 250, 251
    QA, QBE, QBO, QW = 248, 249, 250, 251
    k(f"s_cmp_lg_u32 s32, 0\ns_cbranch_scc1 {Lq}")
    k(f"""
    v_mov_b32 v{ZL16}, v1
    v_lshrrev_b32 v2, 5, v0
    v_lshlrev_b32 v2, 8, v2
    v_and_b32 v3, 15, v0
    v_lshl_add_u32 v2, v3, 4, v2
    v_bfe_u32 v3, v0, 4, 1
    v_lshl_add_u32 v{ZL8}, v3, 3, v2     ; single-piece lane offset
    s_lshl_b32 s50, s40, 13
    v_add_u32 v{ZA}, s50, v1
    """)
    tr_lane_base(k, ZB, 288, 2)
    k(f"v_add_u32 v{ZB}, {BOZ}, v{ZB}")
    k(f"s_branch {Ld}")
    k.label(Lq)
    k(f"v_mov_b32 v{QA}, v{VA}")
    tr_lane_base(k, QBE, 448, 2)
    k(f"""
    s_mul_i32 s50, s42, 224
    s_add_u32 s50, s50, {BOQ}
    v_add_u32 v{QBE}, s50, v{QBE}
    v_lshlrev_b32 v2, 5, v2
    v_sub_u32 v3, 0, v2
    s_cmp_eq_u32 s42, 0
    s_cselect_b64 vcc, -1, 0
    v_cndmask_b32 v4, v3, v2, vcc
    v_sub_u32 v{QBO}, v{QBE}, v4
    v_add_u32 v{QBE}, v{QBE}, v4
    v_and_b32 v2, 15, v0
    s_lshl_b32 s50, s41, 6
    v_add_u32 v2, s50, v2
    v_mul_u32_u24 v{QW}, 440, v2
    v_lshrrev_b32 v2, 4, v0
    v_lshl_add_u32 v{QW}, v2, 3, v{QW}
    s_mul_i32 s50, s42, 224
    s_add_u32 s50, s50, {ATT}
    v_add_u32 v{QW}, s50, v{QW}
    """)
    k.label(Ld)
    k(f"""
    s_cmp_eq_u32 s42, 0
    s_cselect_b64 vcc, -1, 0
    s_cselect_b32 s54, -1, 0
    s_mul_i32 s46, s41, {18*1024}
    s_mul_i32 s47, s42, {5*1024}
    s_add_u32 s46, s46, s47
    s_add_u32 s46, s46, {2*SZ}
    v_add_u32 v{VL16}, s46, v1
    """)
    C, T, O, SM = 72, 80, 88, 184
    gelu_consts(k, C)
    for r in range(SM, SM + 32): k(f"v_mov_b32 v{r}, 0")
    adv_setup(k, R, SZ)
    def reads1(sub, b):
        o = [f"ds_read_b128 {vr(BUF[b]+i*4,4)}, v{VA} offset:{i*2048+sub*1024}" for i in range(4)]
        for j in range(5):
            for hh in range(2):
                o.append(f"ds_read_b64_tr_b16 {vr(BUF[b]+16+j*4+hh*2,2)}, v{VB} offset:{sub*32*288+hh*8*288+j*32}")
        return o
    def mf1(b, seq, zero):
        return [f"v_mfma_f32_16x16x32_bf16 {vr(acc(i,j),4)}, {vr(BUF[b]+i*4,4)}, {vr(BUF[b]+16+j*4,4)}, {'0' if zero else vr(acc(i,j),4)}"
                for j, i in seq]
    def half1(b, other, zero):
        for x in interleave(mf1(b, snake(4, 4), zero), other): k(x)
        Ls = k.lab("sk")
        k(f"s_cbranch_vccz {Ls}")
        for x in mf1(b, [(4, i) for i in range(4)], zero): k(x)
        k.label(Ls)
    if single:
        k("s_barrier")
        k(f"v_mov_b32 v2, {HSC}\nds_read_b32 v2, v2\ns_waitcnt lgkmcnt(0)\nv_readfirstlane_b32 s101, v2")
    if single and OPT.get("w0", 0):
        Ln1, Ln2 = k.lab("n1"), k.lab("n2")
        srd(k, 72, 64, 0, 576 * 3456)
        k(f"""
        s_lshl_b32 s50, s2, 2
        s_add_u32 s50, s50, s40
        s_lshl_b32 s51, s50, 6
        v_add_u32 v242, s51, v0
        v_lshlrev_b32 v241, 7, v242
        s_mov_b32 s52, 116509
        v_mul_lo_u32 v242, s52, v242
        v_lshrrev_b32 v242, 22, v242
        v_mul_u32_u24 v242, 4608, v242
        v_add_u32 v242, v241, v242
        v_subrev_u32 v241, {324*64*128}, v241
        s_cmp_lt_u32 s50, 324
        s_cbranch_scc0 {Ln1}
        buffer_load_dword v242, v242, s[12:15], 0 offen
        s_branch {Ln2}
        {Ln1}:
        buffer_load_dword v242, v241, s[72:75], 0 offen
        {Ln2}:
        """)
    loop2(reads1, half1, adv_ins(R, [VA, VB]), False)
    k("s_barrier")
    half1(1, [], False)
    n = 0
    for jj in range(5):
        if jj == 4:
            Ls = k.lab("us"); k(f"s_cbranch_vccz {Ls}")
        for P in range(2):
            a, b = acc(2 * P, jj), acc(2 * P + 1, jj)
            gelu(k, [a, a + 2, b, b + 2], T, C)
            o = O + (n & 1) * 4; n += 1
            for x, q in enumerate([a, a + 2, b, b + 2]): k(f"v_cvt_pk_bf16_f32 v{o+x}, v{q}, v{q+1}")
            k(f"ds_write_b128 v{VL16}, {vr(o,4)} offset:{(P*9+jj)*1024}")
            for e, q in enumerate([a, b]):
                i = 2 * P + e
                for h in range(2):
                    k(f"v_pk_add_f32 {vr(SM+4*i+2*h,2)}, {vr(SM+4*i+2*h,2)}, {vr(q+2*h,2)}")
                    k(f"v_pk_fma_f32 {vr(SM+16+4*i+2*h,2)}, {vr(q+2*h,2)}, {vr(q+2*h,2)}, {vr(SM+16+4*i+2*h,2)}")
    k.label(Ls)
    for m in range(1, 4):
        v = 0x11111111 << m
        k(f"s_mov_b32 s{58+2*m}, {v:#x}\ns_mov_b32 s{59+2*m}, {v:#x}")
    val = lambda P, i: SM + (i & 1) * 16 + (2 * P + (i >> 3)) * 4 + ((i >> 1) & 3)
    sets = [[val(P, i) for i in range(16)] for P in range(2)]
    reduce16(k, sets, 60)
    k(f"""
    s_lshl_b32 s46, s40, 9
    s_add_u32 s46, s46, {2*SZ+36864}
    v_lshlrev_b32 v{T+1}, 2, v{VLN}
    v_add_u32 v{T+1}, s46, v{T+1}
    ds_write_b32 v{T+1}, v{sets[0][0]}
    ds_write_b32 v{T+1}, v{sets[1][0]} offset:256
    s_waitcnt lgkmcnt(0)
    """)
    k("s_waitcnt vmcnt(0)")
    st()
    k(f"s_cmp_lg_u32 s32, 0\ns_cbranch_scc1 {L['C2q']}")
    ACZ, BZ = 104, [0, 52]
    acz = lambda i, j: ACZ + (i * 9 + j) * 4
    def readsz(sub, b):
        o = [f"ds_read_b128 {vr(BZ[b]+i*4,4)}, v{ZA} offset:{i*2048+sub*1024}" for i in range(4)]
        for j in range(9):
            for hh in range(2):
                o.append(f"ds_read_b64_tr_b16 {vr(BZ[b]+16+j*4+hh*2,2)}, v{ZB} offset:{sub*32*288+hh*8*288+j*32}")
        return o
    def halfz(b, other, zero):
        mf = [f"v_mfma_f32_16x16x32_bf16 {vr(acz(i,j),4)}, {vr(BZ[b]+16+j*4,4)}, {vr(BZ[b]+i*4,4)}, {'0' if zero else vr(acz(i,j),4)}"
              for i, j in snake(4, 9)]
        for x in interleave(mf, other): k(x)
    loop2(readsz, halfz, adv_ins(R, [ZA, ZB]), True)
    halfz(1, [], False)
    C, T, O = 0, 8, 16
    gelu_consts(k, C)
    k(f"""
    s_lshl_b32 s46, s38, 4
    s_lshl_b32 s47, s40, 2
    s_add_u32 s46, s46, s47          ; tfrag0
    s_mul_i32 s46, s46, {TFS}
    s_lshr_b32 s47, s39, 1
    s_mul_i32 s47, s47, 9216
    s_add_u32 s46, s46, s47
    s_and_b32 s47, s39, 1
    s_lshl_b32 s48, s47, 9
    s_add_u32 s48, s48, s46
    s_add_u32 s48, s48, {(18+8)*1024}   ; single piece
    s_lshl_b32 s47, s47, 12
    s_add_u32 s46, s46, s47
    s_add_u32 s46, s46, {18*1024}
    """)
    n = 0
    for i in range(4):
        for p in range(4):
            a, b = acz(i, 2 * p), acz(i, 2 * p + 1)
            gelu(k, [a, a + 2, b, b + 2], T, C)
            o = O + (n & 1) * 4; n += 1
            for x, q in enumerate([a, a + 2, b, b + 2]): k(f"v_cvt_pk_bf16_f32 v{o+x}, v{q}, v{q+1}")
            k(f"buffer_store_dwordx4 {vr(o,4)}, v{ZL16}, s[16:19], s46 offen offset:{p*1024} sc1")
        if i < 3: k(f"s_add_u32 s46, s46, {TFS}\ns_add_u32 s{49+i}, s{48+i}, {TFS}")
    for i in (0, 2):
        a, b = acz(i, 8), acz(i + 1, 8)
        gelu(k, [a, a + 2, b, b + 2], T, C)
        o = O + (n & 1) * 4; n += 1
        for x, q in enumerate([a, a + 2, b, b + 2]): k(f"v_cvt_pk_bf16_f32 v{o+x}, v{q}, v{q+1}")
        k(f"buffer_store_dwordx2 {vr(o,2)}, v{ZL8}, s[16:19], s{48+i} offen sc1")
        k(f"buffer_store_dwordx2 {vr(o+2,2)}, v{ZL8}, s[16:19], s{49+i} offen sc1")
    if stamps and not fused:
        st(); k("s_waitcnt vmcnt(0)"); st()
    k(f"s_branch {L['g2C']}" if fused else "s_endpgm")
    k.label(L["D"])
    if OPT.get("pd", 3): k(f"s_setprio {OPT.get('pd', 3)}")
    k(f"""
    s_sub_u32 s40, s33, 4            ; pw
    s_lshl_b32 s41, s40, 12          ; A lds
    s_lshl_b32 s42, s36, 14
    s_add_u32 s42, s42, s41          ; A goff
    s_mul_i32 s43, s37, 288
    s_add_u32 s43, s43, 4608         ; B goff
    s_add_u32 s47, s41, {BO1}        ; B lds
    s_lshl_b32 s48, s40, 9
    s_add_u32 s48, s48, {BO1+16384}
    s_mov_b32 s49, 0
    s_lshl_b32 s51, s40, 8
    """)
    def half_dma(srdr, v, soff, mbase, mods=""):
        k(f"s_add_u32 m0, s{mbase}, s49")
        k("s_mov_b32 exec_hi, 0")
        k(f"buffer_load_dwordx4 v{v}, s[{srdr}:{srdr+3}], s{soff} offen{mods} lds")
        k("s_mov_b32 exec_hi, -1")
    def i1A():
        lin_dma(k, 4, 8, 42, 41, 49, mods=XS); k(f"s_add_u32 s42, s42, {128*2048}")
    def i1B():
        gat_dma(k, 4, 12, 43, 47, 49, 8); half_dma(12, 12, 43, 48); k(f"s_add_u32 s43, s43, {64*9216}")
    def issue1():
        i1A(); i1B(); slot_adv_prod(k, R, SZ, 49)
    if single:
        Lnp = k.lab("np")
        k(f"""
        v_lshlrev_b32 v28, 7, v0
        s_lshl_b32 s52, s36, 10
        s_add_u32 s52, s52, {F0}
        s_cmp_lg_u32 s40, 2
        s_cbranch_scc1 {Lnp}
        s_mov_b64 exec, 0xff
        buffer_load_dword v33, v28, s[84:87], s52 offen sc1
        s_mov_b64 exec, -1
        {Lnp}:
        """)
        for n in range(5):
            if n == 4: k("s_lshl_b32 s51, s40, 5\ns_add_u32 s51, s51, 1024")
            w144_voff(k, 8 + n, 51, 9216)
            k("s_add_u32 s51, s51, 64")
        Lnp = k.lab("np")
        k(f"s_cmp_lg_u32 s40, 2\ns_cbranch_scc1 {Lnp}")
        ldx = lambda: k("buffer_load_dword v33, v28, s[84:87], s52 offen sc1")
        k("s_mov_b64 exec, 0xff\ns_waitcnt vmcnt(0) lgkmcnt(0)")
        spin(k, ldx, lambda: k("v_cmp_ne_u32 vcc, s101, v33"))
        k("s_mov_b64 exec, -1")
        k.label(Lnp)
        k("s_barrier")
        st(250)
        issue1(); issue1()
        k(f"v_mov_b32 v33, {HSC}\nds_read_b32 v33, v33\ns_waitcnt lgkmcnt(0)\nv_readfirstlane_b32 s101, v33")
    else:
        i1A()
        k("s_mov_b32 m0, s47")
        for n in range(4):
            w144_voff(k, 8 + n, 51, 9216)
            k("s_add_u32 s51, s51, 64")
            k(f"buffer_load_dwordx4 v{8+n}, s[12:15], s43 offen lds")
            k("s_add_u32 m0, m0, 1024")
        k("s_lshl_b32 s51, s40, 5\ns_add_u32 s51, s51, 1024")
        w144_voff(k, 12, 51, 9216)
        half_dma(12, 12, 43, 48)
        k(f"s_add_u32 s43, s43, {64*9216}\ns_mov_b32 s49, {SZ}")
        issue1()
    srd(k, 72, 64, 0, 576 * 3456)
    srd(k, 16, 4, A3_OFF, A3_SZ)
    srd(k, 20, 4, ST_OFF, ST_SZ)
    srd(k, 24, 66, 0, 2048 * 4096)
    srd(k, 80, 4, Z2T_OFF, Z2T_SZ)
    srd(k, 84, 4, FLG_OFF, FLG_SZ)
    k("s_waitcnt vmcnt(9)")
    k("s_barrier")
    issue1()
    for r in range(20, 27): k(f"v_mov_b32 v{r}, 0x80000000")
    Lq, Ld = k.lab("dq"), k.lab("dd")
    k(f"""
    s_cmp_lg_u32 s32, 0
    s_cbranch_scc1 {Lq}
    s_lshl_b32 s63, s40, 13          ; A lds
    s_lshl_b32 s60, s38, 15
    s_add_u32 s60, s60, s63          ; A goff
    s_mul_i32 s61, s39, 288          ; B goff
    s_add_u32 s88, s41, {BOZ}
    s_lshl_b32 s89, s40, 9
    s_add_u32 s89, s89, {BOZ+16384}
    s_mov_b32 s62, 0
    s_branch {Ld}
    {Lq}:
    s_lshl_b32 s60, s38, 14
    s_lshl_b32 s89, s40, 9
    s_sub_u32 s62, s60, 2048
    s_cmp_eq_u32 s38, 0
    s_cselect_b32 s62, 0, s62
    s_add_u32 s62, s62, s89
    s_add_u32 s60, s60, s41          ; A goff
    s_add_u32 s63, s41, 2048
    s_mul_i32 s61, s39, 144
    s_mul_i32 s88, s40, 7168
    s_add_u32 s88, s88, {BOQ}
    s_mul_i32 s51, s40, 448
    """)
    for n in range(7):
        qkv_voff(k, 20 + n, 51)
        k("s_add_u32 s51, s51, 64")
    k.label(Ld)
    k(f"""
    v_lshlrev_b32 v28, 7, v0
    s_lshl_b32 s44, s2, 2
    s_add_u32 s44, s44, s40
    s_lshl_b32 s44, s44, 13
    v_lshlrev_b32 v29, 2, v0
    v_lshrrev_b32 v30, 4, v0
    v_lshlrev_b32 v30, 5, v30
    s_lshl_b32 s45, s36, 10
    s_lshl_b32 s50, s40, 8
    s_add_u32 s45, s45, s50
    s_mul_i32 s50, s40, {9*1024}
    s_add_u32 s50, s50, {2*SZ}
    v_add_u32 v31, s50, v1
    s_lshl_b32 s46, s36, 1
    s_lshr_b32 s50, s40, 1
    s_add_u32 s46, s46, s50
    s_mul_i32 s46, s46, 144
    s_mul_i32 s50, s37, 9
    s_add_u32 s46, s46, s50
    s_lshl_b32 s46, s46, 11
    s_and_b32 s50, s40, 1
    s_lshl_b32 s50, s50, 10
    s_add_u32 s46, s46, s50          ; Z2T offset
    s_lshl_b32 s53, s36, 8           ; F1 row
    s_lshl_b32 s50, s40, 9
    s_add_u32 s50, s50, {2*SZ+36864}
    v_add_u32 v35, s50, v29
    v_bfe_u32 v27, v0, 3, 1
    v_lshlrev_b32 v27, 5, v27
    v_lshrrev_b32 v2, 4, v0
    v_lshl_add_u32 v27, v2, 3, v27
    v_and_b32 v2, 7, v0
    v_add_lshl_u32 v27, v27, v2, 2
    s_lshl_b32 s52, s36, 10
    s_and_b32 s50, s40, 1
    s_lshl_b32 s50, s50, 9
    s_add_u32 s52, s52, s50
    """)
    def ploop(n, iss, allowed):
        Lp = k.lab("pl")
        k(f"s_mov_b32 s58, {n}")
        k.label(Lp)
        k(f"s_waitcnt vmcnt({allowed})")
        k("s_barrier")
        iss()
        k(f"s_sub_u32 s58, s58, 1\ns_cmp_lg_u32 s58, 0\ns_cbranch_scc1 {Lp}")
    ploop(6, issue1, 9)
    def issue2():
        Lq, Ld = k.lab("iq"), k.lab("id")
        k(f"s_cmp_lg_u32 s32, 0\ns_cbranch_scc1 {Lq}")
        lin_dma(k, 8, 8, 60, 63, 49, mods=XS); gat_dma(k, 4, 12, 61, 88, 49, 8); half_dma(12, 12, 61, 89)
        k(f"s_add_u32 s61, s61, {64*9216}\ns_branch {Ld}")
        k.label(Lq)
        lin_dma(k, 4, 8, 60, 63, 49, mods=XS); half_dma(8, 1, 62, 89, XS); gat_dma(k, 7, 72, 61, 88, 49, 20)
        k(f"s_add_u32 s62, s62, {128*2048}\ns_add_u32 s61, s61, {64*3456}")
        k.label(Ld)
        k(f"s_add_u32 s60, s60, {128*2048}")
        slot_adv_prod(k, R, SZ, 49)
    N2 = 12
    if single:
        k(f"""
        s_lshl_b32 s54, s38, 3
        s_lshl_b32 s50, s38, 4
        s_cmp_eq_u32 s32, 0
        s_cselect_b32 s54, s50, s54
        s_max_u32 s54, s54, 1
        s_min_u32 s54, s54, 112
        s_lshl_b32 s54, s54, 7
        s_add_u32 s54, s54, {F0 - 128}
        """)
        ldb = lambda: k("buffer_load_dword v33, v28, s[84:87], s54 offen sc1")
        k("s_mov_b64 exec, 0x1ffff"); ldb(); k("s_mov_b64 exec, -1")
    k("s_waitcnt vmcnt(%d)" % (10 if single else 9))
    k("s_barrier")
    if single:
        k("s_mov_b64 exec, 0x1ffff\ns_waitcnt vmcnt(0)")
        spin(k, ldb, lambda: k("v_cmp_ne_u32 vcc, s101, v33"))
        k("s_mov_b64 exec, -1")
    issue2()
    k(f"s_waitcnt vmcnt({N2})")
    k("s_barrier")
    issue2()
    if OPT.get("wpf", 1): k("buffer_load_dword v32, v28, s[24:27], s44 offen")
    k("s_barrier")
    k(f"s_waitcnt vmcnt({N2+OPT.get('wpf', 1)})")
    k("s_barrier")
    Z = 64
    for j in range(9): k(f"ds_read_b128 {vr(Z+4*j,4)}, v31 offset:{j*1024}")
    k(f"""
    ds_read_b32 v34, v35
    ds_read_b32 v33, v35 offset:256
    s_waitcnt lgkmcnt(0)
    s_barrier
    buffer_atomic_add_f32 v34, v27, s[20:23], s52 offen
    buffer_atomic_add_f32 v33, v27, s[20:23], s52 offen offset:256
    """)
    issue2()
    k(f"s_waitcnt vmcnt({N2+2+OPT.get('wpf', 1)})")
    k("s_barrier")
    issue2()
    k(f"s_waitcnt vmcnt({N2})")
    set_flag(k, f"s_lshl_b32 s50, s37, 4\ns_add_u32 s50, s50, s53\ns_lshl_b32 s51, s40, 2\ns_add_u32 s50, s50, s51", 33)
    k("s_barrier")
    issue2()
    PB = OPT.get("pb", 13)
    if PB > 12: ploop(PB - 12, issue2, N2)
    ld1 = lambda: k("buffer_load_dword v33, v29, s[84:87], s53 offen sc1")
    ld1()
    k(f"s_waitcnt vmcnt({N2+1})")
    k("s_barrier")
    issue2()
    k(f"s_waitcnt vmcnt({N2})")
    spin(k, ld1, lambda: k("v_cmp_ne_u32 vcc, s101, v33"))
    for i in range(4): k(f"buffer_load_dwordx4 {vr(36+4*i,4)}, v30, s[20:23], s45 offen offset:{(i>>1)*128+(i&1)*16} sc1")
    k("s_barrier")
    st(250)
    vm = [("L%d" % (PB + 2), N2), ("s", 4)]
    def allowed(tag):
        n = 0
        for t, c in reversed(vm):
            if t == tag: return n
            n += c
        raise KeyError(tag)
    def rcalc():
        k(f"s_waitcnt vmcnt({allowed('s')})")
        inv = f2u(1.0 / 2304)
        for i in range(8): k(f"v_mul_f32 v{36+2*i}, {inv:#x}, v{36+2*i}")
        for i in range(8): k(f"v_mul_f32 v{37+2*i}, {inv:#x}, v{37+2*i}")
        for i in range(8): k(f"v_fma_f32 v{37+2*i}, -v{36+2*i}, v{36+2*i}, v{37+2*i}")
        for i in range(8): k(f"v_max_f32 v{37+2*i}, 0, v{37+2*i}")
        def rnd8(o):
            for i in range(4): k(f"v_cvt_pk_bf16_f32 v{52+i}, v{o+4*i}, v{o+2+4*i}")
            for i in range(4):
                k(f"v_lshlrev_b32 v{o+4*i}, 16, v{52+i}")
                k(f"v_and_b32 v{o+2+4*i}, 0xffff0000, v{52+i}")
        rnd8(36); rnd8(37)
        for i in range(8): k(f"v_add_f32 v{37+2*i}, {f2u(1e-5):#x}, v{37+2*i}")
        rnd8(37)
        for i in range(8): k(f"v_sqrt_f32 v{37+2*i}, v{37+2*i}")
        rnd8(37)
        for i in range(8): k(f"v_rcp_f32 v{37+2*i}, v{37+2*i}")
        for i in range(8): k(f"v_mul_f32 v{36+2*i}, v{36+2*i}, v{37+2*i}")
    def unit(j):
        w, t = Z + 4 * j, 56
        for i in range(4):
            k(f"v_lshlrev_b32 v{t+2*i}, 16, v{w+i}")
            k(f"v_and_b32 v{t+2*i+1}, 0xffff0000, v{w+i}")
        for i in range(8): k(f"v_fma_f32 v{t+i}, v{t+i}, v{37+2*i}, -v{36+2*i}")
        for i in range(4): k(f"v_cvt_pk_bf16_f32 v{w+i}, v{t+2*i}, v{t+2*i+1}")
        k(f"v_permlane32_swap_b32 v{w}, v{w+2}")
        k(f"v_permlane32_swap_b32 v{w+1}, v{w+3}")
        k(f"v_permlane16_swap_b32 v{w}, v{w+2}")
        k(f"v_permlane16_swap_b32 v{w+1}, v{w+3}")
        if j and j % 2 == 0: k("s_add_u32 s46, s46, 4096")
        k(f"buffer_store_dwordx4 {vr(w,4)}, v1, s[80:83], s46 offen offset:{(j&1)*2048} sc1")
        vm.append(("z", 1))
    work = [rcalc] + [(lambda j=j: unit(j)) for j in range(9)]
    split = {13: [[0, 1, 2], [3, 4, 5], [6, 7, 8, 9]], 12: [[0, 1], [2, 3, 4], [5, 6], [7, 8, 9]], 11: [[0], [1, 2], [3, 4], [5, 6], [7, 8, 9]]}[PB]
    for n, b in enumerate(range(PB + 1, 17)):
        if b + 2 <= 17:
            issue2(); vm.append((f"L{b+2}", N2))
        for w_ in split[n]: work[w_]()
        k(f"s_waitcnt vmcnt({allowed(f'L{b+1}')})")
        k("s_barrier")
    st(250)
    if fused:
        k("s_waitcnt vmcnt(0)")
        set_flag(k, f"s_lshl_b32 s50, s37, 8\ns_lshl_b32 s51, s36, 4\ns_add_u32 s50, s50, s51\ns_lshl_b32 s51, s40, 2\ns_add_u32 s50, s50, s51\ns_add_u32 s50, s50, {F2}", 33)
    if single:
        k(f"""
        s_load_dwordx2 s[28:29], s[0:1], {KA['wo']}
        s_load_dwordx2 s[30:31], s[0:1], {KA['w_out']}
        s_lshr_b32 s50, s44, 13
        s_sub_u32 s51, s50, 81
        s_waitcnt lgkmcnt(0)
        s_cmp_lt_u32 s50, 81
        s_cselect_b32 s24, s28, s30
        s_cselect_b32 s25, s29, s31
        s_cselect_b32 s50, s50, s51
        s_mov_b32 s26, {2304*1152}
        s_cselect_b32 s26, {576*1152}, s26
        s_mov_b32 s27, 0x20000
        s_lshl_b32 s50, s50, 13
        buffer_load_dword v240, v28, s[24:27], s50 offen
        """)
    Lha = k.lab("ha")
    k(f"s_cmp_lg_u32 s32, 0\ns_cbranch_scc1 {Lha}")
    k(f"s_branch {L['g2D']}" if fused else "s_endpgm")
    k.label(Lha)
    k("s_setprio 0")
    k("s_barrier")
    k(f"s_branch {L['att']}")
    k.label(L["C2q"])
    ACQ, BQ = 104, [0, 48]
    acq = lambda i, j: ACQ + (i * 7 + j) * 4
    def readsq(sub, b):
        o = [f"ds_read_b128 {vr(BQ[b]+i*4,4)}, v{QA} offset:{i*2048+sub*1024}" for i in range(5)]
        for j in range(7):
            for hh in range(2):
                o.append(f"ds_read_b64_tr_b16 {vr(BQ[b]+20+j*4+hh*2,2)}, v{QBO if j & 1 else QBE} offset:{sub*32*448+hh*8*448+j*32}")
        return o
    def halfq(b, other, zero):
        mf = [f"v_mfma_f32_16x16x32_bf16 {vr(acq(i,j),4)}, {vr(BQ[b]+20+j*4,4)}, {vr(BQ[b]+i*4,4)}, {'0' if zero else vr(acq(i,j),4)}"
              for i, j in snake(5, 7)]
        for x in interleave(mf, other): k(x)
    loop2(readsq, halfq, adv_ins(R, [QA, QBE, QBO]), True)
    k("s_barrier")
    halfq(1, [], False)
    n = 0
    for j in range(7):
        if j == 6: k("s_mov_b32 exec_hi, s54")
        for i in range(5):
            a = acq(i, j); o = (n & 3) * 2; n += 1
            k(f"v_cvt_pk_bf16_f32 v{o}, v{a}, v{a+1}")
            k(f"v_cvt_pk_bf16_f32 v{o+1}, v{a+2}, v{a+3}")
            k(f"ds_write_b64 v{QW}, {vr(o,2)} offset:{i*16*440+j*32}")
    k("s_mov_b32 exec_hi, -1")
    k("s_waitcnt lgkmcnt(0)")
    k("v_mbcnt_lo_u32_b32 v0, -1, 0")
    k("v_mbcnt_hi_u32_b32 v0, -1, v0")
    k.label(L["att"])
    k(f"""
    s_and_b32 s55, s33, 3            ; head
    s_lshr_b32 s41, s33, 2
    s_and_b32 s42, s55, 1
    s_lshl_b32 s43, s41, 6
    s_add_u32 s44, s43, 2
    v_add_u32 v2, s44, v0
    v_mul_u32_u24 v2, 440, v2
    s_mul_i32 s44, s55, 36
    s_add_u32 s44, s44, {ATT}
    s_lshl_b32 s45, s42, 2
    s_add_u32 s45, s45, s44
    v_add_u32 v3, s45, v2
    s_xor_b32 s45, s42, 1
    s_lshl_b32 s45, s45, 5
    s_add_u32 s45, s45, s44
    v_add_u32 v2, s45, v2
    s_lshl_b32 s46, s38, 7
    s_add_u32 s46, s46, s43
    v_add_u32 v4, s46, v0            ; t
    s_mov_b32 s56, 0x05040100
    s_mov_b32 s57, 0x07060302
    v_and_b32 v11, 15, v0
    v_lshrrev_b32 v12, 4, v0
    s_lshl_b32 s46, s33, 4
    s_add_u32 s46, s46, 16
    v_add_u32 v13, s46, v11
    v_mul_u32_u24 v13, 440, v13
    v_lshl_add_u32 v13, v12, 4, v13
    v_add_u32 v13, {ATT}, v13
    s_mul_i32 s46, s39, 9
    v_add_u32 v12, s46, v12
    v_lshlrev_b32 v12, 8, v12
    v_lshl_add_u32 v12, v11, 4, v12
    s_lshl_b32 s46, s38, 3
    s_add_u32 s46, s46, s33
    s_mul_i32 s46, s46, {TFS}
    """)
    k("s_barrier")
    st(20)
    Q, KK, VV, LL, PP, OA = 24, 36, 116, 200, 210, 216
    def rdvec(dst, row, part):
        for h in range(4): k(f"ds_read_b64 {vr(dst+2*h,2)}, v3 offset:{row*440+part*144+8*h}")
        k(f"ds_read_b32 v{dst+8}, v2 offset:{row*440+part*144}")
    vecs = [(Q, 14, 0)] + [(KK + 10 * w, 14 - 2 * w, 1) for w in range(8)] + [(VV + 10 * w, 14 - 2 * w, 2) for w in range(8)]
    for v in vecs[:4]: rdvec(*v)
    nxt = 4
    for w in range(8): k(f"v_mov_b32 v{LL+w}, 0")
    for w in range(8):
        k("s_waitcnt lgkmcnt(10)")
        for i in range(9): k(f"v_dot2c_f32_bf16 v{LL+w}, v{Q+i}, v{KK+10*w+i}")
        rdvec(*vecs[nxt]); nxt += 1
    while nxt < len(vecs):
        rdvec(*vecs[nxt]); nxt += 1
    sc = f2u(18.0 ** -0.5)
    def rndL():
        for i in range(4): k(f"v_cvt_pk_bf16_f32 v{PP+i}, v{LL+2*i}, v{LL+2*i+1}")
        for i in range(4):
            k(f"v_lshlrev_b32 v{LL+2*i}, 16, v{PP+i}")
            k(f"v_and_b32 v{LL+2*i+1}, 0xffff0000, v{PP+i}")
    rndL()
    for w in range(8): k(f"v_mul_f32 v{LL+w}, {sc:#x}, v{LL+w}")
    rndL()
    k(f"v_mov_b32 v6, {f2u(-1e9):#x}")
    for w in range(1, 8):
        k(f"v_cmp_le_u32 s[{58+2*(w&1)}:{59+2*(w&1)}], {2*w}, v4")
        if w > 1: k(f"v_cndmask_b32 v{LL+w-1}, v6, v{LL+w-1}, s[{58+2*((w-1)&1)}:{59+2*((w-1)&1)}]")
    k(f"v_cndmask_b32 v{LL+7}, v6, v{LL+7}, s[60:61]")
    k(f"v_max3_f32 v7, v{LL}, v{LL+1}, v{LL+2}")
    k(f"v_max3_f32 v8, v{LL+3}, v{LL+4}, v{LL+5}")
    k(f"v_max3_f32 v7, v7, v{LL+6}, v{LL+7}")
    k(f"v_max_f32 v7, v7, v8")
    l2e = f2u(math.log2(math.e))
    for w in range(8): k(f"v_sub_f32 v{LL+w}, v{LL+w}, v7")
    for w in range(8): k(f"v_mul_f32 v{LL+w}, {l2e:#x}, v{LL+w}")
    for w in range(8): k(f"v_exp_f32 v{LL+w}, v{LL+w}")
    k(f"v_add_f32 v7, v{LL}, v{LL+1}")
    k(f"v_add_f32 v8, v{LL+2}, v{LL+3}")
    k(f"v_add_f32 v9, v{LL+4}, v{LL+5}")
    k(f"v_add_f32 v10, v{LL+6}, v{LL+7}")
    k("v_add_f32 v7, v7, v8\nv_add_f32 v9, v9, v10\nv_add_f32 v7, v7, v9\nv_rcp_f32 v7, v7")
    for w in range(8): k(f"v_mul_f32 v{LL+w}, v{LL+w}, v7")
    for i in range(4): k(f"v_cvt_pk_bf16_f32 v{PP+i}, v{LL+2*i}, v{LL+2*i+1}")
    for i in range(18): k(f"v_mov_b32 v{OA+i}, 0")
    k("s_waitcnt lgkmcnt(0)")
    for wp in range(4):
        x, y = VV + 20 * wp, VV + 20 * wp + 10
        for i in range(9):
            k(f"v_perm_b32 v{KK+2*i}, v{y+i}, v{x+i}, s56")
            k(f"v_perm_b32 v{KK+2*i+1}, v{y+i}, v{x+i}, s57")
        for i in range(18): k(f"v_dot2c_f32_bf16 v{OA+i}, v{KK+i}, v{PP+wp}")
    for i in range(9): k(f"v_cvt_pk_bf16_f32 v{Q+i}, v{OA+2*i}, v{OA+2*i+1}")
    for h in range(4): k(f"ds_write_b64 v3, {vr(Q+2*h,2)} offset:{14*440+8*h}")
    k(f"ds_write_b32 v2, v{Q+8} offset:{14*440}")
    k("s_waitcnt lgkmcnt(0)")
    k("s_barrier")
    for n in range(3):
        k(f"ds_read_b64 {vr(KK+4*n,2)}, v13 offset:{64*n}")
        k(f"ds_read_b64 {vr(KK+4*n+2,2)}, v13 offset:{64*n+8}")
    for n in range(3):
        k(f"s_waitcnt lgkmcnt({4-2*n})")
        if n == 2: k("s_mov_b64 exec, 0xffff")
        k(f"buffer_store_dwordx4 {vr(KK+4*n,4)}, v12, s[16:19], s46 offen offset:{1024*n} sc1")
    k("s_mov_b64 exec, -1")
    if stamps and not fused:
        st(20); k("s_waitcnt vmcnt(0)"); st(20)
    if fused: k(f"s_branch {L['g2X']}")
    else: k("s_endpgm")

def gen_k1(name, stamps=False):
    k = Kern(name); st = Stamps(k, stamps, 1)
    L = {n: k.lab(n) for n in "end D H Dq C2q att".split()}
    preamble(k, 256, L["end"], [(4, "ws"), (6, "w_in"), (64, "wqkv"), (66, "w_sp")])
    k1_body(k, st, L, False)
    k.label(L["end"])
    k("s_endpgm")
    return k

def w3_unit(k, issue, ploop):
    Ln, Lg = k.lab("nat"), k.lab("go")
    k(f"""
    s_load_dwordx2 s[28:29], s[0:1], {KA['wo']}
    s_load_dwordx2 s[30:31], s[0:1], {KA['w_out']}
    s_mul_i32 s20, s2, 3
    s_add_u32 s20, s20, s40          ; unit
    s_cmp_lt_u32 s40, 3
    s_cselect_b32 s20, s20, 720
    s_lshr_b32 s21, s20, 3           ; step
    s_and_b32 s22, s20, 7            ; nt
    s_waitcnt lgkmcnt(0)
    s_cmp_lt_u32 s21, 18
    s_cselect_b32 s24, s28, s30
    s_cselect_b32 s25, s29, s31
    s_mov_b32 s26, {2304*1152}
    s_cselect_b32 s26, {576*1152}, s26
    s_mov_b32 s27, 0x20000
    s_cbranch_scc1 {Ln}
    s_sub_u32 s50, s21, 18
    s_mul_i32 s55, s50, 57
    s_lshr_b32 s55, s55, 9           ; u
    s_mul_i32 s56, s55, 9
    s_sub_u32 s56, s50, s56          ; v
    s_mul_i32 s55, s55, 288
    s_lshr_b32 s57, s56, 2
    s_mul_i32 s57, s57, 144
    s_and_b32 s50, s56, 3
    s_lshl_b32 s50, s50, 5
    s_add_u32 s57, s57, s50
    s_cmp_eq_u32 s56, 8
    s_cselect_b32 s57, 128, s57
    s_cselect_b32 s28, 4, 16
    s_cselect_b32 s29, 8, 4
    s_cselect_b32 s30, 144, 8
    s_add_u32 s23, s55, s57
    s_branch {Lg}
    {Ln}:
    s_lshl_b32 s23, s21, 5
    s_mov_b32 s28, 4
    s_mov_b32 s29, 8
    s_mov_b32 s30, 16
    {Lg}:
    s_mul_i32 s23, s23, 1152
    s_mul_i32 s50, s22, 144
    s_add_u32 s23, s23, s50
    s_cmp_lt_u32 s20, 720
    s_cselect_b32 s23, s23, 0x7fffffff
    s_mul_i32 s31, s40, 5120
    s_add_u32 s31, s31, 104448
    s_mov_b32 m0, s31
    """)
    for n in range(5):
        k(f"""
        v_add_u32 v12, {n*64}, v0
        v_mul_u32_u24 v13, 57, v12
        v_lshrrev_b32 v13, 9, v13        ; rho
        v_mul_u32_u24 v14, 9, v13
        v_sub_u32 v12, v12, v14          ; chunk
        v_bfe_u32 v15, v13, 2, 1
        v_mul_u32_u24 v15, s28, v15
        v_bfe_u32 v14, v13, 3, 1
        v_mad_u32_u24 v15, v14, s29, v15
        v_bfe_u32 v14, v13, 4, 1
        v_mad_u32_u24 v15, v14, s30, v15
        v_and_b32 v14, 3, v13
        v_add_u32 v15, v15, v14
        v_mul_u32_u24 v15, 1152, v15
        v_lshl_add_u32 v15, v12, 4, v15
        v_lshrrev_b32 v13, 5, v13
        v_lshl_or_b32 v15, v13, 30, v15
        buffer_load_dwordx4 v15, s[24:27], s23 offen lds
        s_add_u32 m0, m0, 1024
        """)
    k(f"""
    v_lshrrev_b32 v12, 4, v0         ; g
    v_bfe_u32 v13, v0, 2, 2          ; r
    v_and_b32 v14, 3, v0             ; c4
    v_lshl_add_u32 v15, v12, 3, v13
    v_mul_u32_u24 v15, 144, v15
    v_lshl_add_u32 v15, v14, 3, v15
    v_add_u32 v15, s31, v15
    v_and_b32 v12, 1, v12
    v_lshrrev_b32 v16, 1, v14
    v_lshl_add_u32 v12, v12, 1, v16
    v_lshl_add_u32 v12, v12, 3, v13
    v_mul_u32_u24 v12, 144, v12
    v_and_b32 v14, 1, v14
    v_lshl_add_u32 v12, v14, 3, v12
    v_add_u32 v12, s31, v12
    s_lshr_b32 s55, s21, 1
    s_lshl_b32 s55, s55, 3
    s_add_u32 s55, s55, s22
    s_mul_i32 s55, s55, 9216
    s_and_b32 s56, s21, 1
    s_lshl_b32 s57, s56, 9
    s_add_u32 s57, s57, s55
    s_add_u32 s57, s57, 8192
    s_lshl_b32 s56, s56, 10
    s_add_u32 s55, s55, s56
    s_add_u32 s56, s55, 4096
    """)
    ploop(2, issue, 14)
    ploop(1, issue, 9)
    for j in range(4):
        k(f"ds_read_b64_tr_b16 {vr(20+j*4,2)}, v15 offset:{j*32}")
        k(f"ds_read_b64_tr_b16 {vr(22+j*4,2)}, v15 offset:{j*32+576}")
    k("ds_read_b64_tr_b16 v[36:37], v12 offset:128")
    k(f"ds_read_b64_tr_b16 v[38:39], v12 offset:{128+576}")
    for j in range(4):
        k(f"s_waitcnt lgkmcnt({8-2*j})")
        k(f"buffer_store_dwordx4 {vr(20+j*4,4)}, v1, s[68:71], s{55+(j>>1)} offen offset:{(j&1)*2048} sc1")
    k("s_waitcnt lgkmcnt(0)")
    k("s_mov_b32 exec_hi, 0")
    k("buffer_store_dwordx4 v[36:39], v1, s[68:71], s57 offen sc1")
    k("s_mov_b32 exec_hi, -1")
    ploop(2, issue, 14)
    ploop(1, issue, 9)

def g23_body(k, st, L, fused, single=False):
    XS = " sc1" if single else ""
    S, R, SZ, BO = 32, 3, 34816, 16384
    ZS = 126976
    S3, R3, SZ3, BO3, LA3, SL0 = 45, 7, 17408, 8192, 4, 5
    stamps = st.on
    def tiles():
        k("""
        s_and_b32 s36, s34, 1
        s_lshl_b32 s36, s36, 3
        s_and_b32 s37, s35, 7
        s_add_u32 s36, s36, s37          ; mt
        s_lshr_b32 s37, s34, 1
        s_lshl_b32 s37, s37, 2
        s_lshr_b32 s38, s35, 3
        s_add_u32 s37, s37, s38          ; nt
        s_and_b32 s38, s34, 3
        s_lshl_b32 s38, s38, 3
        s_and_b32 s39, s35, 7
        s_add_u32 s38, s38, s39
        s_lshr_b32 s39, s34, 2
        s_lshl_b32 s39, s39, 2
        s_lshr_b32 s50, s35, 3
        s_add_u32 s39, s39, s50          ; nt3
        """)
    if fused:
        k.label(L["g2X"])
        k(f"s_cmp_ge_u32 s33, 4\ns_cbranch_scc1 {L['g2D2']}")
    k.label(L["g2C"])
    ACC, BUF = 104, [0, 52]
    VA01, VA23, VB, VL16, VT = 248, 249, 250, 251, 252
    acc = lambda i, j: ACC + (i * 9 + j) * 4
    k(f"""
    s_load_dwordx2 s[6:7], s[0:1], {KA['b_sp']}
    s_load_dwordx2 s[64:65], s[0:1], {KA['x']}
    s_load_dwordx2 s[66:67], s[0:1], {KA['out']}
    v_mbcnt_lo_u32_b32 v{VL16}, -1, 0
    v_mbcnt_hi_u32_b32 v{VL16}, -1, v{VL16}
    v_lshlrev_b32 v{VL16}, 4, v{VL16}
    s_and_b32 s40, s33, 1            ; mh
    s_lshr_b32 s41, s33, 1           ; kh
    v_bfe_u32 v{VB}, v{VL16}, 4, 4       ; row
    v_lshrrev_b32 v{VT}, 8, v{VL16}      ; q
    s_lshl_b32 s42, s41, 2
    v_add_u32 v{VT}, s42, v{VT}
    v_lshrrev_b32 v{VA01}, 1, v{VB}
    v_xor_b32 v{VT}, v{VT}, v{VA01}
    v_lshlrev_b32 v{VT}, 4, v{VT}
    v_lshl_add_u32 v{VT}, v{VB}, 7, v{VT}
    s_lshl_b32 s42, s40, 13
    s_lshl_b32 s43, s41, 10
    s_lshl_b32 s44, s41, 12
    s_add_u32 s45, s42, s44
    v_add_u32 v{VA01}, s45, v{VT}
    s_xor_b32 s44, s44, 4096
    s_add_u32 s45, s42, s44
    v_add_u32 v{VA23}, s45, v{VT}
    s_add_u32 s45, s43, {BO}
    v_add_u32 v{VB}, s45, v{VL16}
    """)
    adv_setup(k, R, SZ)
    st()
    def reads(b):
        o = [f"ds_read_b128 {vr(BUF[b]+i*4,4)}, v{VA01 if i < 2 else VA23} offset:{(i&1)*2048}" for i in range(4)]
        o += [f"ds_read_b128 {vr(BUF[b]+16+j*4,4)}, v{VB} offset:{j*2048}" for j in range(9)]
        return o
    def mfmas(b, zero=False, seq=None):
        return [f"v_mfma_f32_16x16x32_bf16 {vr(acc(i,j),4)}, {vr(BUF[b]+16+j*4,4)}, {vr(BUF[b]+i*4,4)}, {'0' if zero else vr(acc(i,j),4)}"
                for i, j in (seq or snake(4, 9))]
    adv = adv_ins(R, [VA01, VA23, VB])
    k("s_barrier")
    st()
    for r in reads(0) + adv: k(r)
    tiles()
    k(f"""
    s_lshl_b32 s47, s40, 2
    s_lshl_b32 s69, s41, 1
    s_add_u32 s69, s69, s47
    s_lshl_b32 s46, s36, 3
    s_add_u32 s46, s46, s69          ; tfrag0
    s_mul_i32 s60, s46, {TFS}
    s_lshr_b32 s47, s37, 1
    s_mul_i32 s47, s47, 9216
    s_add_u32 s60, s60, s47
    s_and_b32 s47, s37, 1
    s_lshl_b32 s62, s47, 9
    s_add_u32 s62, s62, s60
    s_add_u32 s62, s62, {(18+8)*1024}
    s_lshl_b32 s47, s47, 12
    s_add_u32 s60, s60, s47
    s_add_u32 s60, s60, {18*1024}
    s_add_u32 s61, s60, {TFS}
    s_add_u32 s63, s62, {TFS}
    s_mul_i32 s48, s69, 4608
    s_add_u32 s48, s48, {ZS}
    s_mov_b32 s58, 15
    s_waitcnt lgkmcnt(0)
    """)
    srd(k, 16, 4, A3_OFF, A3_SZ)
    srd(k, 24, 6, 0, 4096)
    srd(k, 72, 64, 0, 2048 * 1152)
    srd(k, 76, 66, 0, 2048 * 1152)
    srd(k, 84, 4, FLG_OFF, FLG_SZ)
    k("s_barrier")
    for x in interleave(mfmas(0, True), reads(1) + adv): k(x)
    k("s_waitcnt lgkmcnt(0)")
    Ltop = k.lab("top")
    k.label(Ltop)
    k("s_barrier")
    for x in interleave(mfmas(1), reads(0) + adv): k(x)
    k("s_waitcnt vmcnt(0) lgkmcnt(0)")
    k("s_barrier")
    for x in interleave(mfmas(0), reads(1) + adv + CNT): k(x)
    k("s_waitcnt lgkmcnt(0)")
    k(f"s_cbranch_scc1 {Ltop}")
    k("s_barrier")
    st()
    XT, BT = 40, 96
    k(f"""
    v_add_u32 v{VA01}, s48, v{VL16}
    v_lshrrev_b32 v50, 9, v{VL16}
    v_lshlrev_b32 v50, 8, v50
    v_and_b32 v51, 0xf0, v{VL16}
    v_add_u32 v50, v50, v51
    v_bfe_u32 v51, v{VL16}, 8, 1
    v_lshl_add_u32 v{VT}, v51, 3, v50    ; single-piece lane offset
    v_add_u32 v{VB}, s48, v{VT}
    s_lshl_b32 s42, s40, 1
    s_add_u32 s43, s42, s41
    s_mul_i32 s43, s43, 18432
    s_xor_b32 s44, s41, 1
    s_add_u32 s44, s44, s42
    s_mul_i32 s44, s44, 18432
    """)
    zr = []
    for e in range(2):
        for p in range(4): zr.append(f"ds_read_b128 {vr(e*20+p*4,4)}, v{VA01} offset:{e*4608+p*1024}")
        zr.append(f"ds_read_b64 {vr(e*20+16,2)}, v{VB} offset:{e*4608+4096}")
    zr += [f"v_add_u32 v{VA23}, s43, v{VL16}"]
    send = [(i, j) for i in (2, 3) for j in range(9)]
    keep = [(i, j) for i in (0, 1) for j in range(9)]
    for m in interleave(mfmas(1, seq=send), zr): k(m)
    wr = [f"ds_write_b128 v{VA23}, {vr(acc(2,0)+n*4,4)} offset:{n*1024}" for n in range(18)]
    for m in interleave(mfmas(1, seq=keep), wr): k(m)
    G0, G1, GB, GBH, GO = 96, 97, 98, 99, 100
    k(f"""
    v_add_u32 v{VA23}, s44, v{VL16}
    v_bfe_u32 v53, v{VL16}, 4, 4         ; lane&15
    s_lshl_b32 s47, s46, 4
    v_add_u32 v54, s47, v53
    v_lshlrev_b32 v55, 1, v54
    buffer_load_ushort v60, v55, s[24:27], 0 offen
    buffer_load_ushort v61, v55, s[24:27], 0 offen offset:32
    v_lshrrev_b32 v52, 8, v{VL16}        ; q
    v_mul_u32_u24 v{GO}, 1152, v53
    v_lshl_add_u32 v{GO}, v52, 3, v{GO}
    s_lshl_b32 s70, s38, 2
    s_add_u32 s70, s70, s42
    s_add_u32 s70, s70, s41
    s_mul_i32 s47, s70, {16*1152}
    s_mul_i32 s50, s39, 144
    s_add_u32 s47, s47, s50          ; out offset
    """.replace("s70", "s52"))
    for j in range(5): k(f"buffer_load_dwordx2 {vr(XT+2*j,2)}, v{GO}, s[72:75], s47 offen offset:{j*32}")
    k("s_waitcnt lgkmcnt(0)")
    k("s_barrier")
    for n in range(18): k(f"ds_read_b128 {vr(acc(2,0)+n*4,4)}, v{VA23} offset:{n*1024}")
    k(f"""
    s_lshl_b32 s42, s40, 12
    s_lshl_b32 s43, s41, 10
    s_add_u32 s42, s42, s43
    s_add_u32 s42, s42, {SL0*SZ3}
    s_lshl_b32 s44, s41, 11
    s_add_u32 s45, s42, s44
    v_add_u32 v{G0}, s45, v{VL16}
    s_xor_b32 s44, s44, 2048
    s_add_u32 s45, s42, s44
    v_add_u32 v{G1}, s45, v{VL16}
    s_add_u32 s45, s43, {BO3+SL0*SZ3}
    v_add_u32 v{GB}, s45, v{VL16}
    v_and_b32 v53, 7, v53
    v_lshl_add_u32 v53, v52, 3, v53
    v_lshlrev_b32 v53, 4, v53
    s_lshl_b32 s45, s41, 9
    s_add_u32 s45, s45, {BO3+8192+SL0*SZ3}
    v_add_u32 v{GBH}, s45, v53
    s_waitcnt vmcnt(5)
    v_lshlrev_b32 v70, 16, v60
    v_lshlrev_b32 v72, 16, v61
    v_mov_b32 v71, v70
    v_mov_b32 v73, v72
    s_waitcnt lgkmcnt(0)
    s_barrier
    """)
    st()
    T = 52
    for e in range(2):
        for j in range(9):
            a, b = acc(e, j), acc(2 + e, j)
            z = e * 20 + j * 2
            t = T + (j & 1) * 4
            k(f"""
            v_pk_add_f32 {vr(a,2)}, {vr(a,2)}, {vr(b,2)}
            v_pk_add_f32 {vr(a+2,2)}, {vr(a+2,2)}, {vr(b+2,2)}
            v_lshlrev_b32 v{t}, 16, v{z}
            v_and_b32 v{t+1}, 0xffff0000, v{z}
            v_pk_add_f32 {vr(a,2)}, {vr(a,2)}, {vr(70+2*e,2)}
            v_pk_add_f32 {vr(a+2,2)}, {vr(a+2,2)}, {vr(70+2*e,2)}
            v_lshlrev_b32 v{t+2}, 16, v{z+1}
            v_and_b32 v{t+3}, 0xffff0000, v{z+1}
            v_pk_mul_f32 {vr(a,2)}, {vr(a,2)}, {vr(t,2)}
            v_pk_mul_f32 {vr(a+2,2)}, {vr(a+2,2)}, {vr(t+2,2)}
            v_cvt_pk_bf16_f32 v{z}, v{a}, v{a+1}
            v_cvt_pk_bf16_f32 v{z+1}, v{a+2}, v{a+3}
            """)
            if j & 1:
                p = j >> 1
                k(f"buffer_store_dwordx4 {vr(e*20+p*4,4)}, v{VL16}, s[16:19], s{60+e} offen offset:{p*1024} sc1")
            elif j == 8:
                k(f"buffer_store_dwordx2 {vr(e*20+16,2)}, v{VT}, s[16:19], s{62+e} offen sc1")
    AC3, BU3 = 104, [0, 28]
    ac3 = lambda i, j: AC3 + (i * 5 + j) * 4
    k("s_waitcnt vmcnt(10)")
    for j in range(5):
        for h in range(2):
            k(f"v_lshlrev_b32 v{ac3(0,j)+2*h}, 16, v{XT+2*j+h}")
            k(f"v_and_b32 v{ac3(0,j)+2*h+1}, 0xffff0000, v{XT+2*j+h}")
    for r in range(ac3(1, 0), ac3(1, 4) + 4): k(f"v_mov_b32 v{r}, 0")
    adv_setup(k, R3, SZ3)
    k(f"s_mov_b32 s59, {SL0}")
    st()
    k("s_waitcnt vmcnt(0)")
    set_flag(k, f"s_lshl_b32 s50, s36, 8\ns_lshl_b32 s51, s37, 4\ns_add_u32 s50, s50, s51\ns_lshl_b32 s51, s33, 2\ns_add_u32 s50, s50, s51\ns_add_u32 s50, s50, {F4}", 60)
    def reads3(sub, b):
        o = [f"ds_read_b128 {vr(BU3[b],4)}, v{G0}", f"ds_read_b128 {vr(BU3[b]+4,4)}, v{G1}"]
        o += [f"ds_read_b128 {vr(BU3[b]+8+j*4,4)}, v{GB} offset:{j*2048}" for j in range(4)]
        o += [f"ds_read_b128 {vr(BU3[b]+24,4)}, v{GBH}"]
        return o
    def mf3(b):
        return [f"v_mfma_f32_16x16x32_bf16 {vr(ac3(i,j),4)}, {vr(BU3[b]+8+j*4,4)}, {vr(BU3[b]+i*4,4)}, {vr(ac3(i,j),4)}"
                for i, j in snake(2, 5)]
    last = consumer_loop(k, S3, 1, reads3, mf3, adv_ins(R3, [G0, G1, GB, GBH]), True, st=st)
    st()
    for m in mf3(last): k(m)
    k("s_lshl_b32 s42, s40, 1")
    ksplit_reduce(k, ac3(1, 0), 5, 42, 41, VL16, G0, G1, 0)
    for n in range(5): k(f"ds_read_b128 {vr(ac3(1,0)+n*4,4)}, v{G1} offset:{n*1024}")
    for j in range(5):
        k(f"s_waitcnt lgkmcnt({4-j})")
        a, b = ac3(0, j), ac3(1, j)
        k(f"v_pk_add_f32 {vr(a,2)}, {vr(a,2)}, {vr(b,2)}")
        k(f"v_pk_add_f32 {vr(a+2,2)}, {vr(a+2,2)}, {vr(b+2,2)}")
        k(f"v_cvt_pk_bf16_f32 v{2*j}, v{a}, v{a+1}")
        k(f"v_cvt_pk_bf16_f32 v{2*j+1}, v{a+2}, v{a+3}")
        if j == 4: k("s_mov_b32 exec_hi, 0")
        k(f"buffer_store_dwordx2 {vr(2*j,2)}, v{GO}, s[76:79], s47 offen offset:{j*32}")
    if stamps:
        k("s_mov_b32 exec_hi, -1")
        st(); k("s_waitcnt vmcnt(0)"); st()
    k("s_endpgm")
    k.label(L["g2D"])
    LD = " sc1" if fused else ""
    if fused: k.label(L["g2D2"])
    if OPT.get("pd", 3): k(f"s_setprio {OPT.get('pd', 3)}")
    k(f"s_load_dwordx2 s[6:7], s[0:1], {KA['w_sp']}")
    tiles()
    srd(k, 12, 4, Z2T_OFF, Z2T_SZ)
    srd(k, 16, 4, A3_OFF, A3_SZ)
    srd(k, 84, 4, FLG_OFF, FLG_SZ)
    k(f"""
    v_mbcnt_lo_u32_b32 v0, -1, 0
    v_mbcnt_hi_u32_b32 v0, -1, v0
    v_lshlrev_b32 v1, 4, v0
    v_lshlrev_b32 v2, 2, v0
    v_lshrrev_b32 v5, 4, v0
    v_and_b32 v6, 7, v0
    v_xor_b32 v6, v6, v5
    v_lshrrev_b32 v5, 3, v0
    v_lshlrev_b32 v5, 12, v5
    v_lshl_add_u32 v6, v6, 4, v5
    v_xor_b32 v7, 64, v6
    s_sub_u32 s40, s33, 4            ; pw
    s_lshl_b32 s41, s40, 12
    s_lshl_b32 s42, s36, 19
    s_lshl_b32 s50, s40, 17
    s_add_u32 s42, s42, s50          ; A goff
    s_mul_i32 s43, s37, 18432
    s_lshl_b32 s45, s40, 9
    s_add_u32 s46, s43, s45
    s_add_u32 s46, s46, 16384        ; B2 goff
    s_add_u32 s43, s43, s41          ; B goff
    s_add_u32 s47, s41, {BO}
    s_add_u32 s45, s45, {BO+16384}
    s_mov_b32 s49, 0
    s_waitcnt lgkmcnt(0)
    """)
    srd(k, 8, 6, 0, 2048 * 4096)
    def issueA():
        k("s_add_u32 m0, s41, s49")
        for n in range(4):
            if n: k(f"s_add_u32 m0, m0, 1024\ns_add_u32 s50, s42, {n*32768}")
            k(f"buffer_load_dwordx4 v{6+(n&1)}, s[8:11], s{50 if n else 42} offen lds")
        k("s_add_u32 s42, s42, 128")
    def issueB():
        lin_dma(k, 4, 12, 43, 47, 49, mods=LD)
        k("s_add_u32 m0, s45, s49")
        k("s_mov_b32 exec_hi, 0")
        k(f"buffer_load_dwordx4 v1, s[12:15], s46 offen{LD} lds")
        k("s_mov_b32 exec_hi, -1")
        k(f"s_add_u32 s43, s43, {144*2048}")
        k(f"s_add_u32 s46, s46, {144*2048}")
    def issue():
        issueA(); issueB(); slot_adv_prod(k, R, SZ, 49)
    def ploop(n, iss, allowed):
        Lp = k.lab("pl")
        k(f"s_mov_b32 s58, {n}")
        k.label(Lp)
        k(f"s_waitcnt vmcnt({allowed})")
        k("s_barrier")
        iss()
        k(f"s_sub_u32 s58, s58, 1\ns_cmp_lg_u32 s58, 0\ns_cbranch_scc1 {Lp}")
    if fused:
        k(f"s_lshl_b32 s53, s37, 8\ns_add_u32 s53, s53, {F2}")
        ld = lambda: k("buffer_load_dword v4, v2, s[84:87], s53 offen sc1")
        ld(); k("s_waitcnt vmcnt(0)")
        spin(k, ld, lambda: k("v_cmp_ne_u32 vcc, s101, v4"))
    issue(); issue()
    srd(k, 68, 4, W3_OFF, W3_SZ)
    k(f"""
    s_lshl_b32 s60, s40, 11          ; g3 A lds
    s_lshl_b32 s61, s38, 2
    s_add_u32 s61, s61, s40
    s_mul_i32 s61, s61, {TFS}        ; g3 A goff
    s_mul_i32 s62, s39, 9216
    s_lshl_b32 s63, s40, 8
    s_add_u32 s48, s62, s63
    s_add_u32 s48, s48, 8192         ; g3 B2 goff
    s_add_u32 s62, s62, s60          ; g3 B goff
    s_add_u32 s65, s60, {BO3}
    s_add_u32 s66, s63, {BO3+8192}
    s_mov_b32 s67, {SL0*SZ3}
    s_lshl_b32 s51, s36, 3
    s_lshl_b32 s52, s40, 1
    s_add_u32 s51, s51, s52
    s_mul_i32 s51, s51, {TFS}
    s_lshr_b32 s50, s37, 1
    s_mul_i32 s50, s50, 9216
    s_add_u32 s51, s51, s50
    s_and_b32 s50, s37, 1
    s_lshl_b32 s44, s50, 9
    s_add_u32 s44, s44, s51
    s_add_u32 s44, s44, {26*1024}
    s_lshl_b32 s50, s50, 12
    s_add_u32 s51, s51, s50
    s_add_u32 s51, s51, {18*1024}
    s_mul_i32 s52, s52, 4608
    s_add_u32 s52, s52, {ZS}
    s_lshr_b32 s53, s38, 1
    s_lshl_b32 s53, s53, 8
    s_add_u32 s53, s53, {F4}
    s_movk_i32 s54, {F3}
    """)
    ZB = OPT.get("zb", 21)
    if fused:
        ploop(4, issue, 9)
        if single:
            w3_unit(k, issue, ploop)
        Ls = k.lab("f3")
        k(f"s_cmp_lg_u32 s40, 0\ns_cbranch_scc1 {Ls}")
        set_flag(k, f"s_lshl_b32 s50, s2, 2\ns_add_u32 s50, s50, {F3}", 8)
        k.label(Ls)
        ploop(ZB - 5 - (6 if single else 0), issue, 9)
        ld = lambda: k("buffer_load_dwordx4 v[8:11], v1, s[84:87], s54 offen sc1")
        ld()
        ploop(1, issue, 10)
        k("s_waitcnt vmcnt(9)")
        spin(k, ld, lambda: k("v_xor_b32 v8, s101, v8\nv_xor_b32 v9, s101, v9\nv_xor_b32 v10, s101, v10\nv_xor_b32 v11, s101, v11\nv_or3_b32 v8, v8, v9, v10\nv_or_b32 v8, v8, v11\nv_cmp_ne_u32 vcc, 0, v8"))
    else:
        ploop(ZB, issue, 9)
    for e in range(2):
        k(f"s_add_u32 m0, s52, {e*4608}")
        for n in range(4): k(f"buffer_load_dwordx4 v1, s[16:19], s51 offen offset:{n*1024}{LD} lds")
        k(f"s_add_u32 m0, s52, {e*4608+4096}")
        k("s_mov_b32 exec_hi, 0")
        k(f"buffer_load_dwordx4 v1, s[16:19], s44 offen{LD} lds")
        k("s_mov_b32 exec_hi, -1")
        k(f"s_add_u32 s51, s51, {TFS}\ns_add_u32 s44, s44, {TFS}")
    ploop(2, issue, 19)
    ploop(30 - ZB - 2, issue, 9)
    def issue3():
        k("s_add_u32 m0, s60, s67")
        for n in range(2): k(f"buffer_load_dwordx4 v1, s[16:19], s61 offen offset:{n*1024} sc1 lds")
        k("s_add_u32 m0, s65, s67")
        for n in range(2): k(f"buffer_load_dwordx4 v1, s[68:71], s62 offen offset:{n*1024}{XS} lds")
        k("s_add_u32 m0, s66, s67")
        k("s_mov_b64 exec, 0xffff")
        k(f"buffer_load_dwordx4 v1, s[68:71], s48 offen{XS} lds")
        k("s_mov_b64 exec, -1")
        k(f"s_add_u32 s61, s61, 2048")
        k(f"s_add_u32 s62, s62, {8*9216}")
        k(f"s_add_u32 s48, s48, {8*9216}")
        slot_adv_prod(k, R3, SZ3, 67)
    k("s_waitcnt vmcnt(9)")
    k("s_barrier")
    issue3(); issue3()
    k("s_waitcnt vmcnt(10)")
    k("s_barrier")
    k("s_barrier")
    k("s_barrier")
    k("s_barrier")
    issue3(); issue3()
    ploop(4, issue3, 15)
    ld4 = lambda: k("buffer_load_dword v4, v2, s[84:87], s53 offen sc1")
    ld4()
    k("s_waitcnt vmcnt(16)")
    k("s_barrier")
    issue3()
    k("s_waitcnt vmcnt(16)")
    k("s_barrier")
    k("s_waitcnt vmcnt(5)")
    spin(k, ld4, lambda: k("v_cmp_ne_u32 vcc, s101, v4"))
    issue3()
    ploop(S3 - LA3 - 6, issue3, 15)
    for b in range(S3 - LA3, S3):
        k(f"s_waitcnt vmcnt({(S3-1-b)*5})")
        k("s_barrier")
    k("s_endpgm")

def gen_g23(name, stamps=False):
    k = Kern(name); st = Stamps(k, stamps, 3)
    L = {n: k.lab(n) for n in "end g2C g2D".split()}
    preamble(k, 256, L["end"], [(4, "ws")])
    k("s_waitcnt lgkmcnt(0)")
    st.init()
    k(f"s_cmp_ge_u32 s33, 4\ns_cbranch_scc1 {L['g2D']}")
    g23_body(k, st, L, False)
    k.label(L["end"])
    k("s_endpgm")
    return k

def gen_main(name, stamps=False, single=False):
    k = Kern(name); st = Stamps(k, stamps, 1)
    L = {n: k.lab(n) for n in "end D H Dq C2q att g2C g2D g2D2 g2X".split()}
    preamble(k, 256, L["end"], [(4, "ws"), (6, "w_in"), (64, "wqkv"), (66, "w_sp")] +
             ([(68, "x"), (70, "wo"), (72, "w_out"), (74, "dbg")] if single else []))
    k("s_mov_b32 s101, 1")
    k1_body(k, st, L, True, single)
    g23_body(k, st, L, True, single)
    k.label(L["end"])
    k("s_endpgm")
    return k

def gen_prep6(name):
    k = gen_prep(name, 9)
    items = []
    for kind, t in k.items:
        if t == "s_mov_b64 exec, 1":
            k2 = Kern("x")
            srd(k2, 24, 4, FLG_OFF, FLG_SZ)
            k2("s_mul_i32 s47, s2, 104\ns_mov_b64 exec, 0x3ffffff\nbuffer_store_dword v40, v7, s[24:27], s47 offen")
            items += k2.items
        items.append((kind, t))
    k.items = items
    return k

if __name__ == "__main__":
    HEADER = open("parallel_sum__sliding_local_dilated__mixer_gmlp__prompt.s.ref").read().split("; Override launch")[0]
    stamps = "stamps" in sys.argv[2:]
    for a in sys.argv[2:]:
        if "=" in a: OPT[a.split("=")[0]] = int(a.split("=")[1])
    ks = [(gen_prep6("prep_kernel"), 104, 173, 576, 73728)]
    if "single" in sys.argv[2:]:
        ks = [(gen_main("parallel_sum__sliding_local_dilated__mixer_gmlp__prompt_kernel", stamps, True), 256, 256, 512, 163840)]
    elif "fused" in sys.argv[2:]:
        ks += [(gen_main("main_kernel", stamps), 256, 256, 512, 163840)]
    else:
        ks += [(gen_k1("k1_kernel", stamps), 256, 256, 512, 163840), (gen_g23("g23_kernel", stamps), 256, 256, 512, 163840)]
    txt = assemble_file(HEADER + "; generated by a python script (tile loops, fragment layouts and wait states hand-designed)\n", ks)
    txt = re.sub(r"(?m)^(\s+buffer_store_dwordx4 .*offen( offset:[0-9]+)?)$", r"\1 sc1", txt)
    if "plain" in sys.argv[2:]:
        txt = re.sub(r"; @launch kernel=\S+ grid", "; @launch grid", txt)
    open(sys.argv[1], "w").write(txt)
```

```python
import sys, math, re
from asmlib import *
import gen2
from gen2 import *
from gen4 import reduce16

FLG_OFF = 0x3430000; FLG_SZ = 32768
F0 = 16384
F1, F2, F4, F3 = 0, 4096, 8192, 12288
TFS = 90 * 1024
ATT = 69632
HSC = 153600

def snake(no, ni):
    return [(o, i if o % 2 == 0 else ni - 1 - i) for o in range(no) for i in range(ni)]

def w144_voff(k, d, sid, pitch):
    k(f"""
    v_add_u32 v2, s{sid}, v0
    v_mul_u32_u24 v3, 3641, v2
    v_lshrrev_b32 v3, 16, v3
    v_mul_u32_u24 v4, 18, v3
    v_sub_u32 v2, v2, v4
    v_and_b32 v4, 4, v3
    v_and_b32 v5, 8, v3
    v_lshlrev_b32 v4, 1, v4
    v_lshrrev_b32 v5, 1, v5
    v_and_b32 v3, 0x33, v3
    v_or3_b32 v3, v3, v4, v5
    v_mul_u32_u24 v3, {pitch}, v3
    v_lshl_add_u32 v{d}, v2, 4, v3
    """)
def qkv_voff(k, d, sid):
    k(f"""
    v_add_u32 v2, s{sid}, v0
    v_mul_u32_u24 v3, 2341, v2
    v_lshrrev_b32 v3, 16, v3
    v_mul_u32_u24 v4, 28, v3
    v_sub_u32 v2, v2, v4
    v_and_b32 v4, 4, v3
    v_lshrrev_b32 v5, 1, v4
    v_xor_b32 v2, v2, v5
    v_lshlrev_b32 v4, 1, v4
    v_and_b32 v5, 8, v3
    v_lshrrev_b32 v5, 1, v5
    v_and_b32 v3, 0x33, v3
    v_or3_b32 v3, v3, v4, v5
    v_mul_u32_u24 v3, 3456, v3
    v_mul_u32_u24 v4, 57, v2
    v_lshrrev_b32 v4, 9, v4
    v_mul_u32_u24 v5, {1152-144}, v4
    v_lshl_add_u32 v5, v2, 4, v5
    v_add_u32 v3, v3, v5
    v_mov_b32 v5, 0x80000000
    v_cmp_gt_u32 vcc, 27, v2
    v_cndmask_b32 v{d}, v5, v3, vcc
    """)

def lin_dma(k, n, srdr, soff, mbase, slot, vl16=1, mods=""):
    for g in range(0, n, 4):
        if g == 0:
            k(f"s_add_u32 m0, s{mbase}, s{slot}"); so = soff
        else:
            k("s_add_u32 m0, m0, 4096"); k(f"s_add_u32 s50, s{soff}, {g*1024}"); so = 50
        for i in range(min(4, n - g)):
            k(f"buffer_load_dwordx4 v{vl16}, s[{srdr}:{srdr+3}], s{so} offen offset:{i*1024}{mods} lds")
def gat_dma(k, n, srdr, soff, mbase, slot, V):
    k(f"s_add_u32 m0, s{mbase}, s{slot}")
    for i in range(n):
        if i: k("s_add_u32 m0, m0, 1024")
        k(f"buffer_load_dwordx4 v{V+i}, s[{srdr}:{srdr+3}], s{soff} offen lds")

def spin(k, load, check):
    Lp, Ld = k.lab("sp"), k.lab("sd")
    check()
    k(f"s_cbranch_vccz {Ld}")
    k("s_mov_b32 s50, 0x8000")
    k.label(Lp)
    k(f"s_sleep {OPT.get('slp', 4)}")
    load()
    k("s_waitcnt vmcnt(0)")
    k("s_sub_u32 s50, s50, 1")
    check()
    k("s_cmp_eq_u32 s50, 0")
    k("s_cselect_b64 vcc, 0, vcc")
    k(f"s_cbranch_vccnz {Lp}")
    k.label(Ld)

def set_flag(k, soff_expr_lines, vt):
    k(soff_expr_lines)
    k(f"""
    v_mov_b32 v{vt}, s101
    v_mov_b32 v{vt+1}, 0
    s_mov_b64 exec, 1
    buffer_store_dword v{vt}, v{vt+1}, s[84:87], s50 offen sc1
    s_mov_b64 exec, -1
    """)

CNT = ["s_sub_u32 s58, s58, 1", "s_cmp_lg_u32 s58, 0"]


def phase0(k, st, L):
    SZ = 51200
    Lw, Ld, Ln6, Lnz, Lnt = k.lab("w3"), k.lab("p0d"), k.lab("n6"), k.lab("nz"), k.lab("nt")
    srd(k, 84, 4, FLG_OFF, FLG_SZ)
    k(f"""
    s_lshl_b32 s44, s34, 4
    s_and_b32 s50, s35, 15
    s_add_u32 s44, s44, s50
    s_cmp_lg_u32 s33, 7
    s_cbranch_scc1 {Lnz}
    s_lshl_b32 s50, s36, 8
    s_lshl_b32 s51, s37, 4
    s_add_u32 s50, s50, s51
    s_lshl_b32 s51, s37, 8
    s_lshl_b32 s52, s36, 4
    s_add_u32 s51, s51, s52
    s_add_u32 s51, s51, {F2}
    s_add_u32 s52, s50, {F4}
    s_lshl_b32 s53, s2, 2
    s_add_u32 s53, s53, {F3}
    v_mov_b32 v4, s50
    v_writelane_b32 v4, s51, 1
    v_writelane_b32 v4, s52, 2
    v_writelane_b32 v4, s53, 3
    s_mov_b64 exec, 15
    buffer_load_dword v241, v4, s[84:87], 0 offen
    s_mov_b64 exec, -1
    {Lnz}:
    s_cmp_lg_u32 s33, 6
    s_cbranch_scc1 {Lnt}
    """)
    srd(k, 28, 74, 0, 256)
    Lrd, Lgot = k.lab("rd"), k.lab("got")
    k(f"""
    v_mov_b32 v4, 0
    s_mov_b64 exec, 1
    s_cmp_lg_u32 s2, 0
    s_cbranch_scc1 {Lrd}
    s_memrealtime s[50:51]
    s_waitcnt lgkmcnt(0)
    s_or_b32 s50, s50, 1
    v_mov_b32 v5, s50
    buffer_store_dword v5, v4, s[28:31], 0 offen sc1
    s_branch {Lgot}
    {Lrd}:
    """)
    ldn = lambda: k("buffer_load_dword v5, v4, s[28:31], 0 offen sc1")
    ldn(); k("s_waitcnt vmcnt(0)")
    spin(k, ldn, lambda: k("v_cmp_eq_u32 vcc, 0, v5"))
    k(f"""
    {Lgot}:
    v_readfirstlane_b32 s101, v5
    v_mov_b32 v4, {HSC}
    ds_write_b32 v4, v5
    s_mov_b64 exec, -1
    {Lnt}:
    s_cmp_eq_u32 s32, 0
    s_cbranch_scc1 {Lw}
    """)
    srd(k, 24, 68, 0, 2048 * 1152)
    k(f"""
    s_cmp_ge_u32 s33, 6
    s_cbranch_scc1 {Ln6}
    v_and_b32 v2, 15, v0             ; row
    v_lshrrev_b32 v3, 4, v0          ; q
    s_mul_i32 s45, s44, {16*1152}
    s_mul_i32 s46, s33, 192
    s_add_u32 s45, s45, s46
    v_mul_u32_u24 v4, 1152, v2
    v_lshl_add_u32 v4, v3, 4, v4
    buffer_load_dwordx4 v[8:11], v4, s[24:27], s45 offen
    buffer_load_dwordx4 v[12:15], v4, s[24:27], s45 offen offset:64
    buffer_load_dwordx4 v[16:19], v4, s[24:27], s45 offen offset:128
    v_mul_u32_u24 v5, 112, v2
    v_add_u32 v5, {2*SZ}, v5
    s_lshl_b32 s46, s33, 4
    v_lshl_add_u32 v6, v3, 2, v5
    v_add_u32 v6, s46, v6
    s_mul_i32 s46, s33, 3
    s_lshl_b32 s47, s44, 11
    """)
    for i in range(3):
        k(f"""
        s_add_u32 s50, s46, {i}
        s_lshr_b32 s51, s50, 1
        s_lshl_b32 s51, s51, 18
        s_and_b32 s50, s50, 1
        s_lshl_b32 s50, s50, 10
        s_add_u32 s51, s51, s50
        s_add_u32 s{60+i}, s51, s47
        """)
    k("s_waitcnt vmcnt(0)")
    X, D = 20, 68
    for i in range(12):
        k(f"v_lshlrev_b32 v{X+2*i}, 16, v{8+i}")
        k(f"v_and_b32 v{X+2*i+1}, 0xffff0000, v{8+i}")
    def tree(base, n, dst):
        k(f"v_pk_add_f32 v[92:93], {vr(base,2)}, {vr(base+2,2)}")
        k(f"v_pk_add_f32 v[94:95], {vr(base+4,2)}, {vr(base+6,2)}")
        for i in range(4, n // 2): k(f"v_pk_add_f32 {vr(92+2*(i&1),2)}, {vr(92+2*(i&1),2)}, {vr(base+2*i,2)}")
        k("v_pk_add_f32 v[92:93], v[92:93], v[94:95]")
        k(f"v_add_f32 v{dst}, v92, v93")
    tree(X, 24, 96)
    k("ds_write_b32 v6, v96")
    k("s_waitcnt lgkmcnt(0)")
    k("s_barrier")
    for i in range(6): k(f"ds_read_b128 {vr(44+4*i,4)}, v5 offset:{i*16}")
    k("s_waitcnt lgkmcnt(0)")
    tree(44, 24, 96)
    k(f"v_mul_f32 v96, {f2u(1.0/576):#x}, v96")
    k("v_mov_b32 v97, v96")
    for i in range(12): k(f"v_pk_add_f32 {vr(D+2*i,2)}, {vr(X+2*i,2)}, v[96:97] neg_lo:[0,1] neg_hi:[0,1]")
    k(f"v_pk_mul_f32 v[92:93], {vr(D,2)}, {vr(D,2)}")
    k(f"v_pk_mul_f32 v[94:95], {vr(D+2,2)}, {vr(D+2,2)}")
    for i in range(2, 12): k(f"v_pk_fma_f32 {vr(92+2*(i&1),2)}, {vr(D+2*i,2)}, {vr(D+2*i,2)}, {vr(92+2*(i&1),2)}")
    k("v_pk_add_f32 v[92:93], v[92:93], v[94:95]")
    k("v_add_f32 v98, v92, v93")
    k("ds_write_b32 v6, v98 offset:2048")
    rnd_bf16(k, 96, 96)
    k("v_mov_b32 v97, v96")
    for i in range(12): k(f"v_pk_add_f32 {vr(X+2*i,2)}, {vr(X+2*i,2)}, v[96:97] neg_lo:[0,1] neg_hi:[0,1]")
    k("s_waitcnt lgkmcnt(0)")
    k("s_barrier")
    for i in range(6): k(f"ds_read_b128 {vr(44+4*i,4)}, v5 offset:{2048+i*16}")
    for i in range(12): k(f"v_cvt_pk_bf16_f32 v{8+i}, v{X+2*i}, v{X+2*i+1}")
    for i in range(12):
        k(f"v_lshlrev_b32 v{X+2*i}, 16, v{8+i}")
        k(f"v_and_b32 v{X+2*i+1}, 0xffff0000, v{8+i}")
    k("s_waitcnt lgkmcnt(0)")
    tree(44, 24, 98)
    k(f"v_mul_f32 v98, {f2u(1.0/576):#x}, v98")
    rnd_bf16(k, 98, 98)
    k(f"v_add_f32 v98, {f2u(1e-5):#x}, v98")
    rnd_bf16(k, 98, 98)
    k("v_sqrt_f32 v98, v98")
    rnd_bf16(k, 98, 98)
    k("v_rcp_f32 v98, v98")
    k("v_mov_b32 v99, v98")
    for i in range(12): k(f"v_pk_mul_f32 {vr(X+2*i,2)}, {vr(X+2*i,2)}, v[98:99]")
    for i in range(12): k(f"v_cvt_pk_bf16_f32 v{8+i}, v{X+2*i}, v{X+2*i+1}")
    for i in range(3): k(f"buffer_store_dwordx4 {vr(8+4*i,4)}, v1, s[8:11], s{60+i} offen sc1")
    k(f"s_waitcnt vmcnt(0)\ns_barrier\ns_branch {Ld}")
    k.label(Ln6)
    srd(k, 20, 4, ST_OFF, ST_SZ)
    Lz = k.lab("z7")
    k(f"""
    v_mov_b32 v4, 0
    v_lshlrev_b32 v5, 2, v0
    s_lshl_b32 s45, s44, 7
    s_cmp_lg_u32 s33, 7
    s_cbranch_scc1 {Lz}
    s_mov_b32 exec_hi, 0
    buffer_store_dword v4, v5, s[20:23], s45 offen sc1
    s_mov_b32 exec_hi, -1
    {Lz}:
    s_barrier
    s_barrier
    s_waitcnt vmcnt(0)
    s_barrier
    s_cmp_lg_u32 s33, 6
    s_cbranch_scc1 {Ld}
    v_mov_b32 v4, s101
    s_add_u32 s45, s45, {F0}
    s_mov_b32 exec_hi, 0
    buffer_store_dword v4, v5, s[84:87], s45 offen sc1
    s_mov_b32 exec_hi, -1
    s_branch {Ld}
    """)
    k.label(Lw)
    def warm():
        if OPT.get("w0", 0):
            k(f"""
            s_lshl_b32 s50, s44, 3
            s_add_u32 s50, s50, s33
            s_lshl_b32 s51, s50, 6
            v_add_u32 v243, s51, v0
            s_mov_b32 s52, 116509
            v_mul_lo_u32 v242, s52, v243
            v_lshrrev_b32 v242, 22, v242
            v_lshlrev_b32 v243, 7, v243
            v_mul_u32_u24 v242, 4608, v242
            v_add_u32 v243, v243, v242
            s_mov_b32 s51, 0x7fffffff
            s_cmp_lt_u32 s50, 324
            s_cselect_b32 s51, 4608, s51
            buffer_load_dword v243, v243, s[12:15], s51 offen
            """)
            return
        k(f"""
        s_lshl_b32 s50, s44, 3
        s_add_u32 s50, s50, s33
        s_sub_u32 s51, s50, 648
        s_cmp_lt_u32 s50, 648
        s_cselect_b32 s28, s6, s64
        s_cselect_b32 s29, s7, s65
        s_cselect_b32 s50, s50, s51
        s_mov_b32 s30, {576*3456}
        s_cselect_b32 s30, {576*9216}, s30
        s_mov_b32 s31, 0x20000
        s_lshl_b32 s50, s50, 13
        v_lshlrev_b32 v243, 7, v0
        buffer_load_dword v243, v243, s[28:31], s50 offen
        """)
    warm()
    if OPT.get("cpf", 1):
        Lnc, Lpc = k.lab("nc"), k.lab("pc")
        k(f"""
        s_cmp_lg_u32 s35, 0
        s_cbranch_scc1 {Lnc}
        s_getpc_b64 s[28:29]
        {Lpc}:
        s_mov_b32 s30, {L['end']}-{Lpc}
        s_mov_b32 s31, 0x20000
        s_lshl_b32 s50, s33, 13
        v_lshlrev_b32 v242, 7, v0
        buffer_load_dword v242, v242, s[28:31], s50 offen
        {Lnc}:
        """)
    k.label(Ld)

def k1_body(k, st, L, fused, single, G):
    R, SZ = 3, 51200
    BO1, BOZ, BOQ = 16384, 32768, 18432
    stamps = st.on
    k(f"""
    s_and_b32 s36, s34, 1
    s_lshl_b32 s36, s36, 3
    s_and_b32 s37, s35, 7
    s_add_u32 s36, s36, s37          ; z2 mt
    s_lshr_b32 s37, s34, 1
    s_lshl_b32 s37, s37, 2
    s_lshr_b32 s38, s35, 3
    s_add_u32 s37, s37, s38          ; z2 nt
    s_lshr_b32 s32, s35, 4
    s_and_b32 s38, s34, 1
    s_lshl_b32 s38, s38, 2
    s_and_b32 s39, s35, 3
    s_add_u32 s38, s38, s39
    s_lshr_b32 s39, s34, 1
    s_lshl_b32 s50, s39, 1
    s_lshl_b32 s39, s39, 2
    s_lshr_b32 s51, s35, 2
    s_add_u32 s39, s39, s51          ; z1 nt
    s_bfe_u32 s51, s35, 0x10003
    s_add_u32 s50, s50, s51          ; hg
    s_cmp_eq_u32 s32, 0
    s_cselect_b32 s38, s38, s36
    s_cselect_b32 s39, s39, s50
    s_waitcnt lgkmcnt(0)
    """)
    srd(k, 8, 4, XN_OFF, XN_SZ)
    srd(k, 12, 6, 0, 576 * 9216)
    XS = " sc1" if single else ""
    st.init()
    if single:
        st(250)
        phase0(k, st, L)
        st(250)
    k(f"s_cmp_ge_u32 s33, 4\ns_cbranch_scc1 {L['D']}")
    srd(k, 16, 4, A3_OFF, A3_SZ)
    def loop2(reads, half, adv, vmw):
        Ltop = k.lab("top")
        k("s_mov_b32 s58, 8")
        k("s_barrier")
        st()
        for r in reads(0, 0): k(r)
        k("s_waitcnt lgkmcnt(0)")
        if vmw: k("s_barrier")
        half(0, reads(1, 1) + adv, True)
        k("s_waitcnt vmcnt(0) lgkmcnt(0)")
        k.label(Ltop)
        k("s_barrier")
        half(1, reads(0, 0), False)
        k("s_waitcnt lgkmcnt(0)")
        half(0, reads(1, 1) + adv + CNT, False)
        k("s_waitcnt lgkmcnt(0)")
        k(f"s_cbranch_scc1 {Ltop}")
        st()
    st()
    ACC, BUF = 104, [0, 36]
    VA, VB, VL16, VLN = 244, 245, 246, 247
    acc = lambda i, j: ACC + (i * 5 + j) * 4
    k(f"""
    s_mov_b32 s40, s33
    s_and_b32 s41, s40, 1            ; wm
    s_lshr_b32 s42, s40, 1           ; wn
    v_mov_b32 v{VL16}, v1
    v_mov_b32 v{VLN}, v0
    s_lshl_b32 s43, s41, 13
    v_add_u32 v{VA}, s43, v1
    """)
    tr_lane_base(k, VB, 288, 2)
    k(f"s_mul_i32 s43, s42, 160\ns_add_u32 s43, s43, {BO1}\nv_add_u32 v{VB}, s43, v{VB}")
    Lq, Ld = k.lab("cq"), k.lab("cd")
    ZA, ZB, ZL16, ZL8 = 248, 249, 250, 251
    QA, QBE, QBO, QW = 248, 249, 250, 251
    k(f"s_cmp_lg_u32 s32, 0\ns_cbranch_scc1 {Lq}")
    k(f"""
    v_mov_b32 v{ZL16}, v1
    v_lshrrev_b32 v2, 5, v0
    v_lshlrev_b32 v2, 8, v2
    v_and_b32 v3, 15, v0
    v_lshl_add_u32 v2, v3, 4, v2
    v_bfe_u32 v3, v0, 4, 1
    v_lshl_add_u32 v{ZL8}, v3, 3, v2
    s_lshl_b32 s50, s40, 13
    v_add_u32 v{ZA}, s50, v1
    """)
    tr_lane_base(k, ZB, 288, 2)
    k(f"v_add_u32 v{ZB}, {BOZ}, v{ZB}")
    k(f"s_branch {Ld}")
    k.label(Lq)
    k(f"v_mov_b32 v{QA}, v{VA}")
    tr_lane_base(k, QBE, 448, 2)
    k(f"""
    s_mul_i32 s50, s42, 224
    s_add_u32 s50, s50, {BOQ}
    v_add_u32 v{QBE}, s50, v{QBE}
    v_lshlrev_b32 v2, 5, v2
    v_sub_u32 v3, 0, v2
    s_cmp_eq_u32 s42, 0
    s_cselect_b64 vcc, -1, 0
    v_cndmask_b32 v4, v3, v2, vcc
    v_sub_u32 v{QBO}, v{QBE}, v4
    v_add_u32 v{QBE}, v{QBE}, v4
    v_and_b32 v2, 15, v0
    s_lshl_b32 s50, s41, 6
    v_add_u32 v2, s50, v2
    v_mul_u32_u24 v{QW}, 440, v2
    v_lshrrev_b32 v2, 4, v0
    v_lshl_add_u32 v{QW}, v2, 3, v{QW}
    s_mul_i32 s50, s42, 224
    s_add_u32 s50, s50, {ATT}
    v_add_u32 v{QW}, s50, v{QW}
    """)
    k.label(Ld)
    k(f"""
    s_cmp_eq_u32 s42, 0
    s_cselect_b64 vcc, -1, 0
    s_cselect_b32 s54, -1, 0
    s_mul_i32 s46, s41, {18*1024}
    s_mul_i32 s47, s42, {5*1024}
    s_add_u32 s46, s46, s47
    s_add_u32 s46, s46, {2*SZ}
    v_add_u32 v{VL16}, s46, v1
    """)
    C, T, O, SM = 72, 80, 88, 184
    gelu_consts(k, C)
    for r in range(SM, SM + 32): k(f"v_mov_b32 v{r}, 0")
    adv_setup(k, R, SZ)
    def reads1(sub, b):
        o = [f"ds_read_b128 {vr(BUF[b]+i*4,4)}, v{VA} offset:{i*2048+sub*1024}" for i in range(4)]
        for j in range(5):
            for hh in range(2):
                o.append(f"ds_read_b64_tr_b16 {vr(BUF[b]+16+j*4+hh*2,2)}, v{VB} offset:{sub*32*288+hh*8*288+j*32}")
        return o
    def mf1(b, seq, zero):
        return [f"v_mfma_f32_16x16x32_bf16 {vr(acc(i,j),4)}, {vr(BUF[b]+i*4,4)}, {vr(BUF[b]+16+j*4,4)}, {'0' if zero else vr(acc(i,j),4)}"
                for j, i in seq]
    def half1(b, other, zero):
        for x in interleave(mf1(b, snake(4, 4), zero), other): k(x)
        Ls = k.lab("sk")
        k(f"s_cbranch_vccz {Ls}")
        for x in mf1(b, [(4, i) for i in range(4)], zero): k(x)
        k.label(Ls)
    if single:
        k("s_barrier")
        k(f"v_mov_b32 v2, {HSC}\nds_read_b32 v2, v2\ns_waitcnt lgkmcnt(0)\nv_readfirstlane_b32 s101, v2")
    if single and OPT.get("w0", 0):
        Ln1, Ln2 = k.lab("n1"), k.lab("n2")
        srd(k, 72, 64, 0, 576 * 3456)
        k(f"""
        s_lshl_b32 s50, s2, 2
        s_add_u32 s50, s50, s40
        s_lshl_b32 s51, s50, 6
        v_add_u32 v242, s51, v0
        v_lshlrev_b32 v241, 7, v242
        s_mov_b32 s52, 116509
        v_mul_lo_u32 v242, s52, v242
        v_lshrrev_b32 v242, 22, v242
        v_mul_u32_u24 v242, 4608, v242
        v_add_u32 v242, v241, v242
        v_subrev_u32 v241, {324*64*128}, v241
        s_cmp_lt_u32 s50, 324
        s_cbranch_scc0 {Ln1}
        buffer_load_dword v242, v242, s[12:15], 0 offen
        s_branch {Ln2}
        {Ln1}:
        buffer_load_dword v242, v241, s[72:75], 0 offen
        {Ln2}:
        """)
    loop2(reads1, half1, adv_ins(R, [VA, VB]), False)
    k("s_barrier")
    half1(1, [], False)
    n = 0
    for jj in range(5):
        if jj == 4:
            Ls = k.lab("us"); k(f"s_cbranch_vccz {Ls}")
        for P in range(2):
            a, b = acc(2 * P, jj), acc(2 * P + 1, jj)
            gelu(k, [a, a + 2, b, b + 2], T, C)
            o = O + (n & 1) * 4; n += 1
            for x, q in enumerate([a, a + 2, b, b + 2]): k(f"v_cvt_pk_bf16_f32 v{o+x}, v{q}, v{q+1}")
            k(f"ds_write_b128 v{VL16}, {vr(o,4)} offset:{(P*9+jj)*1024}")
            for e, q in enumerate([a, b]):
                i = 2 * P + e
                for h in range(2):
                    k(f"v_pk_add_f32 {vr(SM+4*i+2*h,2)}, {vr(SM+4*i+2*h,2)}, {vr(q+2*h,2)}")
                    k(f"v_pk_fma_f32 {vr(SM+16+4*i+2*h,2)}, {vr(q+2*h,2)}, {vr(q+2*h,2)}, {vr(SM+16+4*i+2*h,2)}")
    k.label(Ls)
    for m in range(1, 4):
        v = 0x11111111 << m
        k(f"s_mov_b32 s{58+2*m}, {v:#x}\ns_mov_b32 s{59+2*m}, {v:#x}")
    val = lambda P, i: SM + (i & 1) * 16 + (2 * P + (i >> 3)) * 4 + ((i >> 1) & 3)
    sets = [[val(P, i) for i in range(16)] for P in range(2)]
    reduce16(k, sets, 60)
    k(f"""
    s_lshl_b32 s46, s40, 9
    s_add_u32 s46, s46, {2*SZ+36864}
    v_lshlrev_b32 v{T+1}, 2, v{VLN}
    v_add_u32 v{T+1}, s46, v{T+1}
    ds_write_b32 v{T+1}, v{sets[0][0]}
    ds_write_b32 v{T+1}, v{sets[1][0]} offset:256
    s_waitcnt lgkmcnt(0)
    """)
    k("s_waitcnt vmcnt(0)")
    st()
    k(f"s_cmp_lg_u32 s32, 0\ns_cbranch_scc1 {L['C2q']}")
    ACZ, BZ = 104, [0, 52]
    acz = lambda i, j: ACZ + (i * 9 + j) * 4
    def readsz(sub, b):
        o = [f"ds_read_b128 {vr(BZ[b]+i*4,4)}, v{ZA} offset:{i*2048+sub*1024}" for i in range(4)]
        for j in range(9):
            for hh in range(2):
                o.append(f"ds_read_b64_tr_b16 {vr(BZ[b]+16+j*4+hh*2,2)}, v{ZB} offset:{sub*32*288+hh*8*288+j*32}")
        return o
    def halfz(b, other, zero):
        mf = [f"v_mfma_f32_16x16x32_bf16 {vr(acz(i,j),4)}, {vr(BZ[b]+16+j*4,4)}, {vr(BZ[b]+i*4,4)}, {'0' if zero else vr(acz(i,j),4)}"
              for i, j in snake(4, 9)]
        for x in interleave(mf, other): k(x)
    loop2(readsz, halfz, adv_ins(R, [ZA, ZB]), True)
    halfz(1, [], False)
    C, T, O = 0, 8, 16
    gelu_consts(k, C)
    k(f"""
    s_lshl_b32 s46, s38, 4
    s_lshl_b32 s47, s40, 2
    s_add_u32 s46, s46, s47          ; tfrag0
    s_mul_i32 s46, s46, {TFS}
    s_lshr_b32 s47, s39, 1
    s_mul_i32 s47, s47, 9216
    s_add_u32 s46, s46, s47
    s_and_b32 s47, s39, 1
    s_lshl_b32 s48, s47, 9
    s_add_u32 s48, s48, s46
    s_add_u32 s48, s48, {(18+8)*1024}
    s_lshl_b32 s47, s47, 12
    s_add_u32 s46, s46, s47
    s_add_u32 s46, s46, {18*1024}
    """)
    n = 0
    for i in range(4):
        for p in range(4):
            a, b = acz(i, 2 * p), acz(i, 2 * p + 1)
            gelu(k, [a, a + 2, b, b + 2], T, C)
            o = O + (n & 1) * 4; n += 1
            for x, q in enumerate([a, a + 2, b, b + 2]): k(f"v_cvt_pk_bf16_f32 v{o+x}, v{q}, v{q+1}")
            k(f"buffer_store_dwordx4 {vr(o,4)}, v{ZL16}, s[16:19], s46 offen offset:{p*1024} sc1")
        if i < 3: k(f"s_add_u32 s46, s46, {TFS}\ns_add_u32 s{49+i}, s{48+i}, {TFS}")
    for i in (0, 2):
        a, b = acz(i, 8), acz(i + 1, 8)
        gelu(k, [a, a + 2, b, b + 2], T, C)
        o = O + (n & 1) * 4; n += 1
        for x, q in enumerate([a, a + 2, b, b + 2]): k(f"v_cvt_pk_bf16_f32 v{o+x}, v{q}, v{q+1}")
        k(f"buffer_store_dwordx2 {vr(o,2)}, v{ZL8}, s[16:19], s{48+i} offen sc1")
        k(f"buffer_store_dwordx2 {vr(o+2,2)}, v{ZL8}, s[16:19], s{49+i} offen sc1")
    if stamps and not fused:
        st(); k("s_waitcnt vmcnt(0)"); st()
    k(f"s_branch {L['g2C']}" if fused else "s_endpgm")
    k.label(L["D"])
    if OPT.get("pd", 3): k(f"s_setprio {OPT.get('pd', 3)}")
    k(f"""
    s_sub_u32 s40, s33, 4            ; pw
    s_lshl_b32 s41, s40, 12          ; A lds
    s_lshl_b32 s42, s36, 14
    s_add_u32 s42, s42, s41          ; A goff
    s_mul_i32 s43, s37, 288
    s_add_u32 s43, s43, 4608         ; B goff
    s_add_u32 s47, s41, {BO1}        ; B lds
    s_lshl_b32 s48, s40, 9
    s_add_u32 s48, s48, {BO1+16384}
    s_mov_b32 s49, 0
    s_lshl_b32 s51, s40, 8
    """)
    def half_dma(srdr, v, soff, mbase, mods=""):
        k(f"s_add_u32 m0, s{mbase}, s49")
        k("s_mov_b32 exec_hi, 0")
        k(f"buffer_load_dwordx4 v{v}, s[{srdr}:{srdr+3}], s{soff} offen{mods} lds")
        k("s_mov_b32 exec_hi, -1")
    def i1A():
        lin_dma(k, 4, 8, 42, 41, 49, mods=XS); k(f"s_add_u32 s42, s42, {128*2048}")
    def i1B():
        gat_dma(k, 4, 12, 43, 47, 49, 8); half_dma(12, 12, 43, 48); k(f"s_add_u32 s43, s43, {64*9216}")
    def issue1():
        i1A(); i1B(); slot_adv_prod(k, R, SZ, 49)
    def setup2():
        srd(k, 72, 64, 0, 576 * 3456)
        srd(k, 16, 4, A3_OFF, A3_SZ)
        srd(k, 20, 4, ST_OFF, ST_SZ)
        srd(k, 24, 66, 0, 2048 * 4096)
        srd(k, 80, 4, Z2T_OFF, Z2T_SZ)
        srd(k, 84, 4, FLG_OFF, FLG_SZ)
        for r in range(20, 27): k(f"v_mov_b32 v{r}, 0x80000000")
        Lq, Ld = k.lab("dq"), k.lab("dd")
        k(f"""
        s_cmp_lg_u32 s32, 0
        s_cbranch_scc1 {Lq}
        s_lshl_b32 s63, s40, 13          ; A lds
        s_lshl_b32 s60, s38, 15
        s_add_u32 s60, s60, s63          ; A goff
        s_mul_i32 s61, s39, 288          ; B goff
        s_add_u32 s88, s41, {BOZ}
        s_lshl_b32 s89, s40, 9
        s_add_u32 s89, s89, {BOZ+16384}
        s_mov_b32 s62, 0
        s_branch {Ld}
        {Lq}:
        s_lshl_b32 s60, s38, 14
        s_lshl_b32 s89, s40, 9
        s_sub_u32 s62, s60, 2048
        s_cmp_eq_u32 s38, 0
        s_cselect_b32 s62, 0, s62
        s_add_u32 s62, s62, s89
        s_add_u32 s60, s60, s41          ; A goff
        s_add_u32 s63, s41, 2048
        s_mul_i32 s61, s39, 144
        s_mul_i32 s88, s40, 7168
        s_add_u32 s88, s88, {BOQ}
        s_mul_i32 s51, s40, 448
        """)
        for n in range(7):
            qkv_voff(k, 20 + n, 51)
            k("s_add_u32 s51, s51, 64")
        k.label(Ld)
        k(f"""
        v_lshlrev_b32 v28, 7, v0
        s_lshl_b32 s44, s2, 2
        s_add_u32 s44, s44, s40
        s_lshl_b32 s44, s44, 13
        v_lshlrev_b32 v29, 2, v0
        v_lshrrev_b32 v30, 4, v0
        v_lshlrev_b32 v30, 5, v30
        s_lshl_b32 s45, s36, 10
        s_lshl_b32 s50, s40, 8
        s_add_u32 s45, s45, s50
        s_mul_i32 s50, s40, {9*1024}
        s_add_u32 s50, s50, {2*SZ}
        v_add_u32 v31, s50, v1
        s_lshl_b32 s46, s36, 1
        s_lshr_b32 s50, s40, 1
        s_add_u32 s46, s46, s50
        s_mul_i32 s46, s46, 144
        s_mul_i32 s50, s37, 9
        s_add_u32 s46, s46, s50
        s_lshl_b32 s46, s46, 11
        s_and_b32 s50, s40, 1
        s_lshl_b32 s50, s50, 10
        s_add_u32 s46, s46, s50          ; Z2T offset
        s_lshl_b32 s53, s36, 8           ; F1 row
        s_lshl_b32 s50, s40, 9
        s_add_u32 s50, s50, {2*SZ+36864}
        v_add_u32 v35, s50, v29
        v_bfe_u32 v27, v0, 3, 1
        v_lshlrev_b32 v27, 5, v27
        v_lshrrev_b32 v2, 4, v0
        v_lshl_add_u32 v27, v2, 3, v27
        v_and_b32 v2, 7, v0
        v_add_lshl_u32 v27, v27, v2, 2
        s_lshl_b32 s55, s36, 10
        s_and_b32 s50, s40, 1
        s_lshl_b32 s50, s50, 9
        s_add_u32 s55, s55, s50
        """)
    if single:
        Lnp = k.lab("np")
        k(f"""
        v_lshlrev_b32 v28, 7, v0
        s_lshl_b32 s52, s36, 10
        s_add_u32 s52, s52, {F0}
        s_cmp_lg_u32 s40, 2
        s_cbranch_scc1 {Lnp}
        s_mov_b64 exec, 0xff
        buffer_load_dword v33, v28, s[84:87], s52 offen sc1
        s_mov_b64 exec, -1
        {Lnp}:
        """)
        for n in range(5):
            if n == 4: k("s_lshl_b32 s51, s40, 5\ns_add_u32 s51, s51, 1024")
            w144_voff(k, 8 + n, 51, 9216)
            k("s_add_u32 s51, s51, 64")
        setup2()
        Lnp = k.lab("np")
        k(f"s_cmp_lg_u32 s40, 2\ns_cbranch_scc1 {Lnp}")
        ldx = lambda: k("buffer_load_dword v33, v28, s[84:87], s52 offen sc1")
        k("s_mov_b64 exec, 0xff\ns_waitcnt vmcnt(0) lgkmcnt(0)")
        spin(k, ldx, lambda: k("v_cmp_ne_u32 vcc, s101, v33"))
        k("s_mov_b64 exec, -1")
        k.label(Lnp)
        k("s_barrier")
        st(250)
        issue1(); issue1()
        k(f"v_mov_b32 v33, {HSC}\nds_read_b32 v33, v33\ns_waitcnt lgkmcnt(0)\nv_readfirstlane_b32 s101, v33")
    else:
        i1A()
        k("s_mov_b32 m0, s47")
        for n in range(4):
            w144_voff(k, 8 + n, 51, 9216)
            k("s_add_u32 s51, s51, 64")
            k(f"buffer_load_dwordx4 v{8+n}, s[12:15], s43 offen lds")
            k("s_add_u32 m0, m0, 1024")
        k("s_lshl_b32 s51, s40, 5\ns_add_u32 s51, s51, 1024")
        w144_voff(k, 12, 51, 9216)
        half_dma(12, 12, 43, 48)
        k(f"s_add_u32 s43, s43, {64*9216}\ns_mov_b32 s49, {SZ}")
        issue1()
    k("s_waitcnt vmcnt(9)")
    k("s_barrier")
    issue1()
    def ploop(n, iss, allowed):
        Lp = k.lab("pl")
        k(f"s_mov_b32 s58, {n}")
        k.label(Lp)
        k(f"s_waitcnt vmcnt({allowed})")
        k("s_barrier")
        iss()
        k(f"s_sub_u32 s58, s58, 1\ns_cmp_lg_u32 s58, 0\ns_cbranch_scc1 {Lp}")
    ploop(6, issue1, 9)
    def issue2():
        Lq, Ld = k.lab("iq"), k.lab("id")
        k(f"s_cmp_lg_u32 s32, 0\ns_cbranch_scc1 {Lq}")
        lin_dma(k, 8, 8, 60, 63, 49, mods=XS); gat_dma(k, 4, 12, 61, 88, 49, 8); half_dma(12, 12, 61, 89)
        k(f"s_add_u32 s61, s61, {64*9216}\ns_branch {Ld}")
        k.label(Lq)
        lin_dma(k, 4, 8, 60, 63, 49, mods=XS); half_dma(8, 1, 62, 89, XS); gat_dma(k, 7, 72, 61, 88, 49, 20)
        k(f"s_add_u32 s62, s62, {128*2048}\ns_add_u32 s61, s61, {64*3456}")
        k.label(Ld)
        k(f"s_add_u32 s60, s60, {128*2048}")
        slot_adv_prod(k, R, SZ, 49)
    N2 = 12
    if single:
        k(f"""
        s_lshl_b32 s54, s38, 3
        s_lshl_b32 s50, s38, 4
        s_cmp_eq_u32 s32, 0
        s_cselect_b32 s54, s50, s54
        s_max_u32 s54, s54, 1
        s_min_u32 s54, s54, 112
        s_lshl_b32 s54, s54, 7
        s_add_u32 s54, s54, {F0 - 128}
        """)
        ldb = lambda: k("buffer_load_dword v33, v28, s[84:87], s54 offen sc1")
        k("s_mov_b64 exec, 0x1ffff"); ldb(); k("s_mov_b64 exec, -1")
    k("s_waitcnt vmcnt(%d)" % (10 if single else 9))
    k("s_barrier")
    if single:
        k("s_mov_b64 exec, 0x1ffff\ns_waitcnt vmcnt(0)")
        spin(k, ldb, lambda: k("v_cmp_ne_u32 vcc, s101, v33"))
        k("s_mov_b64 exec, -1")
    issue2()
    k(f"s_waitcnt vmcnt({N2})")
    k("s_barrier")
    issue2()
    if OPT.get("wpf", 1): k("buffer_load_dword v32, v28, s[24:27], s44 offen")
    k("s_barrier")
    k(f"s_waitcnt vmcnt({N2+OPT.get('wpf', 1)})")
    k("s_barrier")
    Z = 64
    for j in range(9): k(f"ds_read_b128 {vr(Z+4*j,4)}, v31 offset:{j*1024}")
    k(f"""
    ds_read_b32 v34, v35
    ds_read_b32 v33, v35 offset:256
    s_waitcnt lgkmcnt(0)
    s_barrier
    buffer_atomic_add_f32 v34, v27, s[20:23], s55 offen
    buffer_atomic_add_f32 v33, v27, s[20:23], s55 offen offset:256
    """)
    issue2()
    k(f"s_waitcnt vmcnt({N2+2+OPT.get('wpf', 1)})")
    k("s_barrier")
    issue2()
    k(f"s_waitcnt vmcnt({N2})")
    set_flag(k, f"s_lshl_b32 s50, s37, 4\ns_add_u32 s50, s50, s53\ns_lshl_b32 s51, s40, 2\ns_add_u32 s50, s50, s51", 33)
    k("s_barrier")
    issue2()
    PB = OPT.get("pb", 13)
    if PB > 12: ploop(PB - 12, issue2, N2)
    ld1 = lambda: k("buffer_load_dword v33, v29, s[84:87], s53 offen sc1")
    ld1()
    k(f"s_waitcnt vmcnt({N2+1})")
    k("s_barrier")
    issue2()
    k(f"s_waitcnt vmcnt({N2})")
    spin(k, ld1, lambda: k("v_cmp_ne_u32 vcc, s101, v33"))
    for i in range(4): k(f"buffer_load_dwordx4 {vr(36+4*i,4)}, v30, s[20:23], s45 offen offset:{(i>>1)*128+(i&1)*16} sc1")
    k("s_barrier")
    st(250)
    vm = [("L%d" % (PB + 2), N2), ("s", 4)]
    def allowed(tag):
        n = 0
        for t, c in reversed(vm):
            if t == tag: return n
            n += c
        raise KeyError(tag)
    def rcalc():
        k(f"s_waitcnt vmcnt({allowed('s')})")
        inv = f2u(1.0 / 2304)
        for i in range(8): k(f"v_mul_f32 v{36+2*i}, {inv:#x}, v{36+2*i}")
        for i in range(8): k(f"v_mul_f32 v{37+2*i}, {inv:#x}, v{37+2*i}")
        for i in range(8): k(f"v_fma_f32 v{37+2*i}, -v{36+2*i}, v{36+2*i}, v{37+2*i}")
        for i in range(8): k(f"v_max_f32 v{37+2*i}, 0, v{37+2*i}")
        def rnd8(o):
            for i in range(4): k(f"v_cvt_pk_bf16_f32 v{52+i}, v{o+4*i}, v{o+2+4*i}")
            for i in range(4):
                k(f"v_lshlrev_b32 v{o+4*i}, 16, v{52+i}")
                k(f"v_and_b32 v{o+2+4*i}, 0xffff0000, v{52+i}")
        rnd8(36); rnd8(37)
        for i in range(8): k(f"v_add_f32 v{37+2*i}, {f2u(1e-5):#x}, v{37+2*i}")
        rnd8(37)
        for i in range(8): k(f"v_sqrt_f32 v{37+2*i}, v{37+2*i}")
        rnd8(37)
        for i in range(8): k(f"v_rcp_f32 v{37+2*i}, v{37+2*i}")
        for i in range(8): k(f"v_mul_f32 v{36+2*i}, v{36+2*i}, v{37+2*i}")
    def unit(j):
        w, t = Z + 4 * j, 56
        for i in range(4):
            k(f"v_lshlrev_b32 v{t+2*i}, 16, v{w+i}")
            k(f"v_and_b32 v{t+2*i+1}, 0xffff0000, v{w+i}")
        for i in range(8): k(f"v_fma_f32 v{t+i}, v{t+i}, v{37+2*i}, -v{36+2*i}")
        for i in range(4): k(f"v_cvt_pk_bf16_f32 v{w+i}, v{t+2*i}, v{t+2*i+1}")
        k(f"v_permlane32_swap_b32 v{w}, v{w+2}")
        k(f"v_permlane32_swap_b32 v{w+1}, v{w+3}")
        k(f"v_permlane16_swap_b32 v{w}, v{w+2}")
        k(f"v_permlane16_swap_b32 v{w+1}, v{w+3}")
        if j and j % 2 == 0: k("s_add_u32 s46, s46, 4096")
        k(f"buffer_store_dwordx4 {vr(w,4)}, v1, s[80:83], s46 offen offset:{(j&1)*2048} sc1")
        vm.append(("z", 1))
    work = [rcalc] + [(lambda j=j: unit(j)) for j in range(9)]
    split = {13: [[0, 1, 2], [3, 4, 5], [6, 7, 8, 9]], 12: [[0, 1], [2, 3, 4], [5, 6], [7, 8, 9]], 11: [[0], [1, 2], [3, 4], [5, 6], [7, 8, 9]]}[PB]
    for n, b in enumerate(range(PB + 1, 17)):
        if b + 2 <= 17:
            issue2(); vm.append((f"L{b+2}", N2))
        for w_ in split[n]: work[w_]()
        k(f"s_waitcnt vmcnt({allowed(f'L{b+1}')})")
        k("s_barrier")
    st(250)
    if fused:
        k("s_waitcnt vmcnt(0)")
        set_flag(k, f"s_lshl_b32 s50, s37, 8\ns_lshl_b32 s51, s36, 4\ns_add_u32 s50, s50, s51\ns_lshl_b32 s51, s40, 2\ns_add_u32 s50, s50, s51\ns_add_u32 s50, s50, {F2}", 33)
    if single:
        k(f"""
        s_load_dwordx2 s[28:29], s[0:1], {KA['wo']}
        s_load_dwordx2 s[30:31], s[0:1], {KA['w_out']}
        s_lshr_b32 s50, s44, 13
        s_sub_u32 s51, s50, 81
        s_waitcnt lgkmcnt(0)
        s_cmp_lt_u32 s50, 81
        s_cselect_b32 s24, s28, s30
        s_cselect_b32 s25, s29, s31
        s_cselect_b32 s50, s50, s51
        s_mov_b32 s26, {2304*1152}
        s_cselect_b32 s26, {576*1152}, s26
        s_mov_b32 s27, 0x20000
        s_lshl_b32 s50, s50, 13
        buffer_load_dword v240, v28, s[24:27], s50 offen
        """)
    Lha = k.lab("ha")
    k(f"s_cmp_lg_u32 s32, 0\ns_cbranch_scc1 {Lha}")
    k(f"s_branch {L['g2D']}" if fused else "s_endpgm")
    k.label(Lha)
    k("s_setprio 0")
    k("s_barrier")
    k(f"s_branch {L['att']}")
    k.label(L["C2q"])
    ACQ, BQ = 104, [0, 48]
    acq = lambda i, j: ACQ + (i * 7 + j) * 4
    def readsq(sub, b):
        o = [f"ds_read_b128 {vr(BQ[b]+i*4,4)}, v{QA} offset:{i*2048+sub*1024}" for i in range(5)]
        for j in range(7):
            for hh in range(2):
                o.append(f"ds_read_b64_tr_b16 {vr(BQ[b]+20+j*4+hh*2,2)}, v{QBO if j & 1 else QBE} offset:{sub*32*448+hh*8*448+j*32}")
        return o
    def halfq(b, other, zero):
        mf = [f"v_mfma_f32_16x16x32_bf16 {vr(acq(i,j),4)}, {vr(BQ[b]+20+j*4,4)}, {vr(BQ[b]+i*4,4)}, {'0' if zero else vr(acq(i,j),4)}"
              for i, j in snake(5, 7)]
        for x in interleave(mf, other): k(x)
    loop2(readsq, halfq, adv_ins(R, [QA, QBE, QBO]), True)
    k("s_barrier")
    def wq(i, j, n):
        a = acq(i, j); o = (n & 3) * 2
        return [f"v_cvt_pk_bf16_f32 v{o}, v{a}, v{a+1}", f"v_cvt_pk_bf16_f32 v{o+1}, v{a+2}, v{a+3}",
                f"ds_write_b64 v{QW}, {vr(o,2)} offset:{i*16*440+j*32}"]
    n = 0
    for i in range(6):
        mf = [f"v_mfma_f32_16x16x32_bf16 {vr(acq(i,j),4)}, {vr(BQ[1]+20+j*4,4)}, {vr(BQ[1]+i*4,4)}, {vr(acq(i,j),4)}" for j in range(7)] if i < 5 else []
        for j in range(7):
            if mf: k(mf[j])
            if i > 0 and j < 6:
                for x in wq(i - 1, j, n): k(x)
                n += 1
    k("s_mov_b32 exec_hi, s54")
    for i in range(5):
        for x in wq(i, 6, n): k(x)
        n += 1
    k("s_mov_b32 exec_hi, -1")
    k("s_waitcnt lgkmcnt(0)")
    k("v_mbcnt_lo_u32_b32 v0, -1, 0")
    k("v_mbcnt_hi_u32_b32 v0, -1, v0")
    k.label(L["att"])
    k(f"""
    s_and_b32 s55, s33, 3            ; head
    s_lshr_b32 s41, s33, 2
    s_and_b32 s42, s55, 1
    s_lshl_b32 s43, s41, 6
    s_add_u32 s44, s43, 2
    v_add_u32 v2, s44, v0
    v_mul_u32_u24 v2, 440, v2
    s_mul_i32 s44, s55, 36
    s_add_u32 s44, s44, {ATT}
    s_lshl_b32 s45, s42, 2
    s_add_u32 s45, s45, s44
    v_add_u32 v3, s45, v2
    s_xor_b32 s45, s42, 1
    s_lshl_b32 s45, s45, 5
    s_add_u32 s45, s45, s44
    v_add_u32 v2, s45, v2
    s_lshl_b32 s46, s38, 7
    s_add_u32 s46, s46, s43
    v_add_u32 v4, s46, v0            ; t
    s_mov_b32 s21, 0x05040100
    s_mov_b32 s22, 0x07060302
    v_and_b32 v11, 15, v0
    v_lshrrev_b32 v12, 4, v0
    s_lshl_b32 s46, s33, 4
    s_add_u32 s46, s46, 16
    v_add_u32 v13, s46, v11
    v_mul_u32_u24 v13, 440, v13
    v_lshl_add_u32 v13, v12, 4, v13
    v_add_u32 v13, {ATT}, v13
    s_mul_i32 s46, s39, 9
    v_add_u32 v12, s46, v12
    v_lshlrev_b32 v12, 8, v12
    v_lshl_add_u32 v12, v11, 4, v12
    s_lshl_b32 s46, s38, 3
    s_add_u32 s46, s46, s33
    s_mul_i32 s20, s46, {TFS}
    """)
    Lc = k.lab("ac")
    k(f"s_cmp_lt_u32 s33, 4\ns_cbranch_scc1 {Lc}")
    G["setup"]()
    k.label(Lc)
    k("s_barrier")
    st(20)
    Q, KK, VV, LL, PP, OA = 24, 36, 116, 200, 210, 216
    def rdvec(dst, row, part):
        for h in range(4): k(f"ds_read_b64 {vr(dst+2*h,2)}, v3 offset:{row*440+part*144+8*h}")
        k(f"ds_read_b32 v{dst+8}, v2 offset:{row*440+part*144}")
    vecs = [(Q, 14, 0)] + [(KK + 10 * w, 14 - 2 * w, 1) for w in range(8)] + [(VV + 10 * w, 14 - 2 * w, 2) for w in range(8)]
    for v in vecs[:4]: rdvec(*v)
    nxt = 4
    for w in range(8): k(f"v_mov_b32 v{LL+w}, 0")
    for w in range(8):
        k("s_waitcnt lgkmcnt(10)")
        for i in range(9): k(f"v_dot2c_f32_bf16 v{LL+w}, v{Q+i}, v{KK+10*w+i}")
        rdvec(*vecs[nxt]); nxt += 1
    while nxt < len(vecs):
        rdvec(*vecs[nxt]); nxt += 1
    sc = f2u(18.0 ** -0.5)
    def rndL():
        for i in range(4): k(f"v_cvt_pk_bf16_f32 v{PP+i}, v{LL+2*i}, v{LL+2*i+1}")
        for i in range(4):
            k(f"v_lshlrev_b32 v{LL+2*i}, 16, v{PP+i}")
            k(f"v_and_b32 v{LL+2*i+1}, 0xffff0000, v{PP+i}")
    rndL()
    for w in range(8): k(f"v_mul_f32 v{LL+w}, {sc:#x}, v{LL+w}")
    rndL()
    k(f"v_mov_b32 v6, {f2u(-1e9):#x}")
    for w in range(1, 8):
        k(f"v_cmp_le_u32 s[{24+2*(w&1)}:{25+2*(w&1)}], {2*w}, v4")
        if w > 1: k(f"v_cndmask_b32 v{LL+w-1}, v6, v{LL+w-1}, s[{24+2*((w-1)&1)}:{25+2*((w-1)&1)}]")
    k(f"v_cndmask_b32 v{LL+7}, v6, v{LL+7}, s[26:27]")
    k(f"v_max3_f32 v7, v{LL}, v{LL+1}, v{LL+2}")
    k(f"v_max3_f32 v8, v{LL+3}, v{LL+4}, v{LL+5}")
    k(f"v_max3_f32 v7, v7, v{LL+6}, v{LL+7}")
    k(f"v_max_f32 v7, v7, v8")
    l2e = f2u(math.log2(math.e))
    for w in range(8): k(f"v_sub_f32 v{LL+w}, v{LL+w}, v7")
    for w in range(8): k(f"v_mul_f32 v{LL+w}, {l2e:#x}, v{LL+w}")
    for w in range(8): k(f"v_exp_f32 v{LL+w}, v{LL+w}")
    k(f"v_add_f32 v7, v{LL}, v{LL+1}")
    k(f"v_add_f32 v8, v{LL+2}, v{LL+3}")
    k(f"v_add_f32 v9, v{LL+4}, v{LL+5}")
    k(f"v_add_f32 v10, v{LL+6}, v{LL+7}")
    k("v_add_f32 v7, v7, v8\nv_add_f32 v9, v9, v10\nv_add_f32 v7, v7, v9\nv_rcp_f32 v7, v7")
    for w in range(8): k(f"v_mul_f32 v{LL+w}, v{LL+w}, v7")
    for i in range(4): k(f"v_cvt_pk_bf16_f32 v{PP+i}, v{LL+2*i}, v{LL+2*i+1}")
    Lc = k.lab("ac")
    k(f"s_cmp_lt_u32 s33, 4\ns_cbranch_scc1 {Lc}")
    k(f"s_waitcnt vmcnt(0)\nv_cmp_ne_u32 vcc, s101, v248\ns_cbranch_vccnz {Lc}")
    G["B01"]()
    k.label(Lc)
    for i in range(18): k(f"v_mov_b32 v{OA+i}, 0")
    k("s_waitcnt lgkmcnt(0)")
    for wp in range(4):
        x, y = VV + 20 * wp, VV + 20 * wp + 10
        for i in range(9):
            k(f"v_perm_b32 v{KK+2*i}, v{y+i}, v{x+i}, s21")
            k(f"v_perm_b32 v{KK+2*i+1}, v{y+i}, v{x+i}, s22")
        for i in range(18): k(f"v_dot2c_f32_bf16 v{OA+i}, v{KK+i}, v{PP+wp}")
    for i in range(9): k(f"v_cvt_pk_bf16_f32 v{Q+i}, v{OA+2*i}, v{OA+2*i+1}")
    for h in range(4): k(f"ds_write_b64 v3, {vr(Q+2*h,2)} offset:{14*440+8*h}")
    k(f"ds_write_b32 v2, v{Q+8} offset:{14*440}")
    k("s_waitcnt lgkmcnt(0)")
    k("s_barrier")
    for n in range(3):
        k(f"ds_read_b64 {vr(KK+4*n,2)}, v13 offset:{64*n}")
        k(f"ds_read_b64 {vr(KK+4*n+2,2)}, v13 offset:{64*n+8}")
    for n in range(3):
        k(f"s_waitcnt lgkmcnt({4-2*n})")
        if n == 2: k("s_mov_b64 exec, 0xffff")
        k(f"buffer_store_dwordx4 {vr(KK+4*n,4)}, v12, s[16:19], s20 offen offset:{1024*n} sc1")
    k("s_mov_b64 exec, -1")
    if stamps and not fused:
        st(20); k("s_waitcnt vmcnt(0)"); st(20)
    if fused: k(f"s_branch {L['g2X']}")
    else: k("s_endpgm")

def w3_unit(k, issue, ploop):
    Ln, Lg = k.lab("nat"), k.lab("go")
    k(f"""
    s_load_dwordx2 s[28:29], s[0:1], {KA['wo']}
    s_load_dwordx2 s[30:31], s[0:1], {KA['w_out']}
    s_mul_i32 s20, s2, 3
    s_add_u32 s20, s20, s40          ; unit
    s_cmp_lt_u32 s40, 3
    s_cselect_b32 s20, s20, 720
    s_lshr_b32 s21, s20, 3           ; step
    s_and_b32 s22, s20, 7            ; nt
    s_waitcnt lgkmcnt(0)
    s_cmp_lt_u32 s21, 18
    s_cselect_b32 s24, s28, s30
    s_cselect_b32 s25, s29, s31
    s_mov_b32 s26, {2304*1152}
    s_cselect_b32 s26, {576*1152}, s26
    s_mov_b32 s27, 0x20000
    s_cbranch_scc1 {Ln}
    s_sub_u32 s50, s21, 18
    s_mul_i32 s55, s50, 57
    s_lshr_b32 s55, s55, 9           ; u
    s_mul_i32 s56, s55, 9
    s_sub_u32 s56, s50, s56          ; v
    s_mul_i32 s55, s55, 288
    s_lshr_b32 s57, s56, 2
    s_mul_i32 s57, s57, 144
    s_and_b32 s50, s56, 3
    s_lshl_b32 s50, s50, 5
    s_add_u32 s57, s57, s50
    s_cmp_eq_u32 s56, 8
    s_cselect_b32 s57, 128, s57
    s_cselect_b32 s28, 4, 16
    s_cselect_b32 s29, 8, 4
    s_cselect_b32 s30, 144, 8
    s_add_u32 s23, s55, s57
    s_branch {Lg}
    {Ln}:
    s_lshl_b32 s23, s21, 5
    s_mov_b32 s28, 4
    s_mov_b32 s29, 8
    s_mov_b32 s30, 16
    {Lg}:
    s_mul_i32 s23, s23, 1152
    s_mul_i32 s50, s22, 144
    s_add_u32 s23, s23, s50
    s_cmp_lt_u32 s20, 720
    s_cselect_b32 s23, s23, 0x7fffffff
    s_mul_i32 s31, s40, 5120
    s_add_u32 s31, s31, 104448
    s_mov_b32 m0, s31
    """)
    for n in range(5):
        k(f"""
        v_add_u32 v12, {n*64}, v0
        v_mul_u32_u24 v13, 57, v12
        v_lshrrev_b32 v13, 9, v13        ; rho
        v_mul_u32_u24 v14, 9, v13
        v_sub_u32 v12, v12, v14          ; chunk
        v_bfe_u32 v15, v13, 2, 1
        v_mul_u32_u24 v15, s28, v15
        v_bfe_u32 v14, v13, 3, 1
        v_mad_u32_u24 v15, v14, s29, v15
        v_bfe_u32 v14, v13, 4, 1
        v_mad_u32_u24 v15, v14, s30, v15
        v_and_b32 v14, 3, v13
        v_add_u32 v15, v15, v14
        v_mul_u32_u24 v15, 1152, v15
        v_lshl_add_u32 v15, v12, 4, v15
        v_lshrrev_b32 v13, 5, v13
        v_lshl_or_b32 v15, v13, 30, v15
        buffer_load_dwordx4 v15, s[24:27], s23 offen lds
        s_add_u32 m0, m0, 1024
        """)
    k(f"""
    v_lshrrev_b32 v12, 4, v0         ; g
    v_bfe_u32 v13, v0, 2, 2          ; r
    v_and_b32 v14, 3, v0             ; c4
    v_lshl_add_u32 v15, v12, 3, v13
    v_mul_u32_u24 v15, 144, v15
    v_lshl_add_u32 v15, v14, 3, v15
    v_add_u32 v15, s31, v15
    v_and_b32 v12, 1, v12
    v_lshrrev_b32 v16, 1, v14
    v_lshl_add_u32 v12, v12, 1, v16
    v_lshl_add_u32 v12, v12, 3, v13
    v_mul_u32_u24 v12, 144, v12
    v_and_b32 v14, 1, v14
    v_lshl_add_u32 v12, v14, 3, v12
    v_add_u32 v12, s31, v12
    s_lshr_b32 s55, s21, 1
    s_lshl_b32 s55, s55, 3
    s_add_u32 s55, s55, s22
    s_mul_i32 s55, s55, 9216
    s_and_b32 s56, s21, 1
    s_lshl_b32 s57, s56, 9
    s_add_u32 s57, s57, s55
    s_add_u32 s57, s57, 8192
    s_lshl_b32 s56, s56, 10
    s_add_u32 s55, s55, s56
    s_add_u32 s56, s55, 4096
    """)
    ploop(2, issue, 14)
    ploop(1, issue, 9)
    for j in range(4):
        k(f"ds_read_b64_tr_b16 {vr(20+j*4,2)}, v15 offset:{j*32}")
        k(f"ds_read_b64_tr_b16 {vr(22+j*4,2)}, v15 offset:{j*32+576}")
    k("ds_read_b64_tr_b16 v[36:37], v12 offset:128")
    k(f"ds_read_b64_tr_b16 v[38:39], v12 offset:{128+576}")
    for j in range(4):
        k(f"s_waitcnt lgkmcnt({8-2*j})")
        k(f"buffer_store_dwordx4 {vr(20+j*4,4)}, v1, s[68:71], s{55+(j>>1)} offen offset:{(j&1)*2048} sc1")
    k("s_waitcnt lgkmcnt(0)")
    k("s_mov_b32 exec_hi, 0")
    k("buffer_store_dwordx4 v[36:39], v1, s[68:71], s57 offen sc1")
    k("s_mov_b32 exec_hi, -1")
    ploop(2, issue, 14)
    ploop(1, issue, 9)

S2, R2, SZ2, BO2 = 32, 3, 34816, 16384
ZS = 126976
S3, R3, SZ3, BO3, LA3, SL0 = 45, 7, 17408, 8192, 4, 5
PL, PF, PA = 244, 245, 246

def tiles(k):
    k("""
    s_and_b32 s38, s34, 3
    s_lshl_b32 s38, s38, 3
    s_and_b32 s39, s35, 7
    s_add_u32 s38, s38, s39
    s_lshr_b32 s39, s34, 2
    s_lshl_b32 s39, s39, 2
    s_lshr_b32 s50, s35, 3
    s_add_u32 s39, s39, s50          ; nt3
    """)

def g2_hooks(k):
    def issueA():
        k("s_add_u32 m0, s41, s49")
        for n in range(4):
            if n: k(f"s_add_u32 m0, m0, 1024\ns_add_u32 s50, s42, {n*32768}")
            k(f"buffer_load_dwordx4 v{PA+(n&1)}, s[8:11], s{50 if n else 42} offen lds")
        k("s_add_u32 s42, s42, 128")
    def issueB():
        lin_dma(k, 4, 12, 43, 47, 49, vl16=PL, mods=" sc1")
        k("s_add_u32 m0, s45, s49")
        k("s_mov_b32 exec_hi, 0")
        k(f"buffer_load_dwordx4 v{PL}, s[12:15], s46 offen sc1 lds")
        k("s_mov_b32 exec_hi, -1")
        k(f"s_add_u32 s43, s43, {144*2048}")
        k(f"s_add_u32 s46, s46, {144*2048}")
    def poll(): k(f"buffer_load_dword v248, v{PF}, s[84:87], s53 offen sc1")
    def setup():
        srd(k, 8, 66, 0, 2048 * 4096)
        srd(k, 12, 4, Z2T_OFF, Z2T_SZ)
        k(f"""
        v_lshlrev_b32 v{PL}, 4, v0
        v_lshlrev_b32 v{PF}, 2, v0
        v_lshrrev_b32 v{PA+1}, 4, v0
        v_and_b32 v{PA}, 7, v0
        v_xor_b32 v{PA}, v{PA}, v{PA+1}
        v_lshrrev_b32 v{PA+1}, 3, v0
        v_lshlrev_b32 v{PA+1}, 12, v{PA+1}
        v_lshl_add_u32 v{PA}, v{PA}, 4, v{PA+1}
        v_xor_b32 v{PA+1}, 64, v{PA}
        s_lshl_b32 s41, s40, 12
        s_lshl_b32 s42, s36, 19
        s_lshl_b32 s50, s40, 17
        s_add_u32 s42, s42, s50          ; A goff
        s_mul_i32 s43, s37, 18432
        s_lshl_b32 s45, s40, 9
        s_add_u32 s46, s43, s45
        s_add_u32 s46, s46, 16384        ; B2 goff
        s_add_u32 s43, s43, s41          ; B goff
        s_add_u32 s47, s41, {BO2}
        s_add_u32 s45, s45, {BO2+16384}
        s_lshl_b32 s53, s37, 8
        s_add_u32 s53, s53, {F2}
        s_mov_b32 s100, 0
        s_mov_b32 s49, 0
        """)
        issueA()
        k(f"s_mov_b32 s49, {SZ2}")
        issueA()
        poll()
    def B01():
        k("s_mov_b32 s49, 0")
        issueB()
        k(f"s_mov_b32 s49, {SZ2}")
        issueB()
        k(f"s_mov_b32 s49, {2*SZ2}\ns_mov_b32 s100, 1")
    return dict(setup=setup, B01=B01, issueA=issueA, issueB=issueB, poll=poll)

def g23_body(k, st, L, G):
    R, SZ, BO = R2, SZ2, BO2
    stamps = st.on
    k.label(L["g2X"])
    k(f"s_cmp_ge_u32 s33, 4\ns_cbranch_scc1 {L['g2D2']}")
    k.label(L["g2C"])
    ACC, BUF, ZR, XT, BR, BP, T = 72, [0, 36], 152, 192, 204, 208, 216
    VA0, VA1, VB, VL16, VT, GO = 248, 249, 250, 251, 252, 240
    acc = lambda i, j: ACC + (i * 5 + j) * 4
    k(f"""
    s_load_dwordx2 s[6:7], s[0:1], {KA['b_sp']}
    s_load_dwordx2 s[64:65], s[0:1], {KA['x']}
    s_load_dwordx2 s[66:67], s[0:1], {KA['out']}
    v_mbcnt_lo_u32_b32 v{VL16}, -1, 0
    v_mbcnt_hi_u32_b32 v{VL16}, -1, v{VL16}
    v_lshlrev_b32 v{VL16}, 4, v{VL16}
    s_and_b32 s40, s33, 1            ; wm
    s_lshr_b32 s41, s33, 1           ; wn
    v_bfe_u32 v{T}, v{VL16}, 4, 4        ; row
    v_lshrrev_b32 v{T+1}, 8, v{VL16}     ; q
    v_lshrrev_b32 v{VA0}, 1, v{T}
    v_xor_b32 v{VA0}, v{T+1}, v{VA0}
    v_lshlrev_b32 v{VA0}, 4, v{VA0}
    v_lshl_add_u32 v{VA0}, v{T}, 7, v{VA0}
    s_lshl_b32 s42, s40, 13
    v_add_u32 v{VA0}, s42, v{VA0}
    v_xor_b32 v{VA1}, 64, v{VA0}
    s_lshl_b32 s43, s41, 13
    s_add_u32 s43, s43, {BO}
    v_add_u32 v{VB}, s43, v{VL16}
    s_cmp_eq_u32 s41, 0
    s_cselect_b64 vcc, -1, 0
    """)
    adv_setup(k, R, SZ)
    st()
    def reads(sub, b):
        o = [f"ds_read_b128 {vr(BUF[b]+i*4,4)}, v{VA1 if sub else VA0} offset:{i*2048}" for i in range(4)]
        o += [f"ds_read_b128 {vr(BUF[b]+16+j*4,4)}, v{VB} offset:{(j if j < 4 else 8)*2048+sub*1024}" for j in range(5)]
        return o
    def mf(b, seq, zero):
        return [f"v_mfma_f32_16x16x32_bf16 {vr(acc(i,j),4)}, {vr(BUF[b]+16+j*4,4)}, {vr(BUF[b]+i*4,4)}, {'0' if zero else vr(acc(i,j),4)}"
                for i, j in seq]
    def half(b, other, zero):
        for x in interleave(mf(b, snake(4, 4), zero), other): k(x)
        Ls = k.lab("sk")
        k(f"s_cbranch_vccz {Ls}")
        for x in mf(b, [(3 - i, 4) for i in range(4)], zero): k(x)
        k.label(Ls)
    adv = adv_ins(R, [VA0, VA1, VB])
    k("s_barrier")
    st()
    for r in reads(0, 0): k(r)
    tiles(k)
    k(f"""
    s_lshl_b32 s46, s36, 3
    s_lshl_b32 s47, s40, 2
    s_add_u32 s46, s46, s47          ; tfrag0
    s_mul_i32 s60, s46, {TFS}
    s_lshr_b32 s47, s37, 1
    s_mul_i32 s47, s47, 9216
    s_add_u32 s60, s60, s47
    s_and_b32 s47, s37, 1
    s_lshl_b32 s62, s47, 9
    s_add_u32 s62, s62, s60
    s_add_u32 s62, s62, {(18+8)*1024}
    s_lshl_b32 s47, s47, 12
    s_add_u32 s60, s60, s47
    s_lshl_b32 s47, s41, 11
    s_add_u32 s60, s60, s47
    s_add_u32 s60, s60, {18*1024}
    s_mul_i32 s48, s40, {4*4608}
    s_add_u32 s48, s48, {ZS}
    s_mov_b32 s58, 31
    s_waitcnt lgkmcnt(0)
    """)
    srd(k, 16, 4, A3_OFF, A3_SZ)
    srd(k, 24, 6, 0, 4096)
    srd(k, 72, 64, 0, 2048 * 1152)
    srd(k, 76, 66, 0, 2048 * 1152)
    srd(k, 84, 4, FLG_OFF, FLG_SZ)
    pre = f"""
    s_lshl_b32 s47, s46, 4
    v_add_lshl_u32 v{T+2}, s47, v{T}, 1
    v_mul_u32_u24 v{GO}, 1152, v{T}
    v_lshl_add_u32 v{GO}, v{T+1}, 3, v{GO}
    s_lshl_b32 s52, s38, 2
    s_lshl_b32 s47, s40, 1
    s_add_u32 s52, s52, s47
    s_add_u32 s52, s52, s41
    s_mul_i32 s47, s52, {16*1152}
    s_mul_i32 s50, s39, 144
    s_add_u32 s47, s47, s50
    v_lshrrev_b32 v{T+3}, 1, v{T+1}
    v_lshlrev_b32 v{T+3}, 8, v{T+3}
    v_lshl_add_u32 v{T+3}, v{T}, 4, v{T+3}
    v_and_b32 v{VT}, 1, v{T+1}
    v_lshl_add_u32 v{VT}, v{VT}, 3, v{T+3}
    """.strip().split("\n")
    pre = [x.strip() for x in pre]
    pre += [f"buffer_load_ushort v{BR+i}, v{T+2}, s[24:27], 0 offen offset:{32*i}" for i in range(4)]
    pre += [f"buffer_load_dwordx2 {vr(XT+2*j,2)}, v{GO}, s[72:75], s47 offen offset:{j*32}" for j in range(5)]
    half(0, reads(1, 1) + adv, True)
    for x in pre: k(x)
    k("s_waitcnt lgkmcnt(0)")
    Ltop = k.lab("top")
    k.label(Ltop)
    k("s_barrier")
    half(1, reads(0, 0), False)
    k("s_waitcnt lgkmcnt(0)")
    half(0, reads(1, 1) + adv + CNT, False)
    k(f"s_waitcnt vmcnt(0) lgkmcnt(0)")
    k(f"s_cbranch_scc1 {Ltop}")
    k("s_barrier")
    st()
    k(f"""
    s_lshl_b32 s50, s41, 11
    s_add_u32 s50, s50, s48
    v_add_u32 v{VA0}, s50, v{VL16}
    v_add_u32 v{VA1}, s48, v{VT}
    """)
    zr = []
    for i in range(4):
        for p in range(2): zr.append(f"ds_read_b128 {vr(ZR+i*10+p*4,4)}, v{VA0} offset:{i*4608+p*1024}")
        zr.append(f"ds_read_b64 {vr(ZR+i*10+8,2)}, v{VA1} offset:{i*4608+4096}")
    for i in range(4): zr += [f"v_lshlrev_b32 v{BP+2*i}, 16, v{BR+i}", f"v_lshlrev_b32 v{BP+2*i+1}, 16, v{BR+i}"]
    half(1, zr, False)
    G0, G1, GB, GBH = 241, 242, 243, 244
    k(f"""
    s_lshl_b32 s42, s40, 12
    s_lshl_b32 s43, s41, 10
    s_add_u32 s42, s42, s43
    s_add_u32 s42, s42, {SL0*SZ3}
    s_lshl_b32 s44, s41, 11
    s_add_u32 s45, s42, s44
    v_add_u32 v{G0}, s45, v{VL16}
    s_xor_b32 s44, s44, 2048
    s_add_u32 s45, s42, s44
    v_add_u32 v{G1}, s45, v{VL16}
    s_add_u32 s45, s43, {BO3+SL0*SZ3}
    v_add_u32 v{GB}, s45, v{VL16}
    v_and_b32 v{T}, 7, v{T}
    v_lshl_add_u32 v{T}, v{T+1}, 3, v{T}
    v_lshlrev_b32 v{T}, 4, v{T}
    s_lshl_b32 s45, s41, 9
    s_add_u32 s45, s45, {BO3+8192+SL0*SZ3}
    v_add_u32 v{GBH}, s45, v{T}
    s_waitcnt lgkmcnt(0)
    """)
    st()
    def quad(i, j, n):
        a, z, t = acc(i, j), ZR + i * 10 + j * 2, T + (n & 1) * 4
        k(f"""
        v_pk_add_f32 {vr(a,2)}, {vr(a,2)}, {vr(BP+2*i,2)}
        v_pk_add_f32 {vr(a+2,2)}, {vr(a+2,2)}, {vr(BP+2*i,2)}
        v_lshlrev_b32 v{t}, 16, v{z}
        v_and_b32 v{t+1}, 0xffff0000, v{z}
        v_lshlrev_b32 v{t+2}, 16, v{z+1}
        v_and_b32 v{t+3}, 0xffff0000, v{z+1}
        v_pk_mul_f32 {vr(a,2)}, {vr(a,2)}, {vr(t,2)}
        v_pk_mul_f32 {vr(a+2,2)}, {vr(a+2,2)}, {vr(t+2,2)}
        v_cvt_pk_bf16_f32 v{z}, v{a}, v{a+1}
        v_cvt_pk_bf16_f32 v{z+1}, v{a+2}, v{a+3}
        """)
    n = 0
    for i in range(4):
        for j in range(4):
            quad(i, j, n); n += 1
            if j & 1: k(f"buffer_store_dwordx4 {vr(ZR+i*10+(j>>1)*4,4)}, v{VL16}, s[16:19], s60 offen offset:{(j>>1)*1024} sc1")
        if i < 3: k(f"s_add_u32 s60, s60, {TFS}")
    Ls = k.lab("es")
    k(f"s_cbranch_vccz {Ls}")
    for i in range(4):
        quad(i, 4, n); n += 1
        k(f"buffer_store_dwordx2 {vr(ZR+i*10+8,2)}, v{VT}, s[16:19], s62 offen sc1")
        if i < 3: k(f"s_add_u32 s62, s62, {TFS}")
    k.label(Ls)
    AC3, BU3 = 72, [0, 28]
    ac3 = lambda i, j: AC3 + (i * 5 + j) * 4
    for j in range(5):
        for h in range(2):
            k(f"v_lshlrev_b32 v{ac3(0,j)+2*h}, 16, v{XT+2*j+h}")
            k(f"v_and_b32 v{ac3(0,j)+2*h+1}, 0xffff0000, v{XT+2*j+h}")
    for r in range(ac3(1, 0), ac3(1, 4) + 4): k(f"v_mov_b32 v{r}, 0")
    adv_setup(k, R3, SZ3)
    k(f"s_mov_b32 s59, {SL0}")
    st()
    k("s_waitcnt vmcnt(0)")
    set_flag(k, f"s_lshl_b32 s50, s36, 8\ns_lshl_b32 s51, s37, 4\ns_add_u32 s50, s50, s51\ns_lshl_b32 s51, s33, 2\ns_add_u32 s50, s50, s51\ns_add_u32 s50, s50, {F4}", 60)
    def reads3(sub, b):
        o = [f"ds_read_b128 {vr(BU3[b],4)}, v{G0}", f"ds_read_b128 {vr(BU3[b]+4,4)}, v{G1}"]
        o += [f"ds_read_b128 {vr(BU3[b]+8+j*4,4)}, v{GB} offset:{j*2048}" for j in range(4)]
        o += [f"ds_read_b128 {vr(BU3[b]+24,4)}, v{GBH}"]
        return o
    def mf3(b):
        return [f"v_mfma_f32_16x16x32_bf16 {vr(ac3(i,j),4)}, {vr(BU3[b]+8+j*4,4)}, {vr(BU3[b]+i*4,4)}, {vr(ac3(i,j),4)}"
                for i, j in snake(2, 5)]
    last = consumer_loop(k, S3, 1, reads3, mf3, adv_ins(R3, [G0, G1, GB, GBH]), True, st=st)
    st()
    for m in mf3(last): k(m)
    k("s_lshl_b32 s42, s40, 1")
    ksplit_reduce(k, ac3(1, 0), 5, 42, 41, VL16, G0, G1, 0)
    for n in range(5): k(f"ds_read_b128 {vr(ac3(1,0)+n*4,4)}, v{G1} offset:{n*1024}")
    for j in range(5):
        k(f"s_waitcnt lgkmcnt({4-j})")
        a, b = ac3(0, j), ac3(1, j)
        k(f"v_pk_add_f32 {vr(a,2)}, {vr(a,2)}, {vr(b,2)}")
        k(f"v_pk_add_f32 {vr(a+2,2)}, {vr(a+2,2)}, {vr(b+2,2)}")
        k(f"v_cvt_pk_bf16_f32 v{2*j}, v{a}, v{a+1}")
        k(f"v_cvt_pk_bf16_f32 v{2*j+1}, v{a+2}, v{a+3}")
        if j == 4: k("s_mov_b32 exec_hi, 0")
        k(f"buffer_store_dwordx2 {vr(2*j,2)}, v{GO}, s[76:79], s47 offen offset:{j*32}")
    if stamps:
        k("s_mov_b32 exec_hi, -1")
        st(); k("s_waitcnt vmcnt(0)"); st()
    k("s_endpgm")
    k.label(L["g2D"])
    G["setup"]()
    k.label(L["g2D2"])
    if OPT.get("pd", 3): k(f"s_setprio {OPT.get('pd', 3)}")
    Lb = k.lab("bd")
    k(f"s_cmp_lg_u32 s100, 0\ns_cbranch_scc1 {Lb}")
    k("s_waitcnt vmcnt(0)")
    spin(k, G["poll"], lambda: k("v_cmp_ne_u32 vcc, s101, v248"))
    G["B01"]()
    k.label(Lb)
    def issue():
        G["issueA"](); G["issueB"](); slot_adv_prod(k, R, SZ, 49)
    def ploop(n, iss, allowed):
        Lp = k.lab("pl")
        k(f"s_mov_b32 s58, {n}")
        k.label(Lp)
        k(f"s_waitcnt vmcnt({allowed})")
        k("s_barrier")
        iss()
        k(f"s_sub_u32 s58, s58, 1\ns_cmp_lg_u32 s58, 0\ns_cbranch_scc1 {Lp}")
    tiles(k)
    srd(k, 68, 4, W3_OFF, W3_SZ)
    k(f"""
    v_mov_b32 v1, v{PL}
    s_lshl_b32 s60, s40, 11          ; g3 A lds
    s_lshl_b32 s61, s38, 2
    s_add_u32 s61, s61, s40
    s_mul_i32 s61, s61, {TFS}        ; g3 A goff
    s_mul_i32 s62, s39, 9216
    s_lshl_b32 s63, s40, 8
    s_add_u32 s48, s62, s63
    s_add_u32 s48, s48, 8192         ; g3 B2 goff
    s_add_u32 s62, s62, s60          ; g3 B goff
    s_add_u32 s65, s60, {BO3}
    s_add_u32 s66, s63, {BO3+8192}
    s_mov_b32 s67, {SL0*SZ3}
    s_lshl_b32 s51, s36, 3
    s_lshl_b32 s52, s40, 1
    s_add_u32 s51, s51, s52
    s_mul_i32 s51, s51, {TFS}
    s_lshr_b32 s50, s37, 1
    s_mul_i32 s50, s50, 9216
    s_add_u32 s51, s51, s50
    s_and_b32 s50, s37, 1
    s_lshl_b32 s44, s50, 9
    s_add_u32 s44, s44, s51
    s_add_u32 s44, s44, {26*1024}
    s_lshl_b32 s50, s50, 12
    s_add_u32 s51, s51, s50
    s_add_u32 s51, s51, {18*1024}
    s_mul_i32 s52, s52, 4608
    s_add_u32 s52, s52, {ZS}
    s_lshr_b32 s53, s38, 1
    s_lshl_b32 s53, s53, 8
    s_add_u32 s53, s53, {F4}
    s_movk_i32 s54, {F3}
    """)
    ZB = OPT.get("zb", 21)
    ploop(1, issue, 5)
    ploop(3, issue, 9)
    w3_unit(k, issue, ploop)
    Ls = k.lab("f3")
    k(f"s_cmp_lg_u32 s40, 0\ns_cbranch_scc1 {Ls}")
    set_flag(k, f"s_lshl_b32 s50, s2, 2\ns_add_u32 s50, s50, {F3}", 8)
    k.label(Ls)
    ploop(ZB - 11, issue, 9)
    ld = lambda: k("buffer_load_dwordx4 v[8:11], v1, s[84:87], s54 offen sc1")
    ld()
    ploop(1, issue, 10)
    k("s_waitcnt vmcnt(9)")
    spin(k, ld, lambda: k("v_xor_b32 v8, s101, v8\nv_xor_b32 v9, s101, v9\nv_xor_b32 v10, s101, v10\nv_xor_b32 v11, s101, v11\nv_or3_b32 v8, v8, v9, v10\nv_or_b32 v8, v8, v11\nv_cmp_ne_u32 vcc, 0, v8"))
    for e in range(2):
        k(f"s_add_u32 m0, s52, {e*4608}")
        for n in range(4): k(f"buffer_load_dwordx4 v1, s[16:19], s51 offen offset:{n*1024} sc1 lds")
        k(f"s_add_u32 m0, s52, {e*4608+4096}")
        k("s_mov_b32 exec_hi, 0")
        k(f"buffer_load_dwordx4 v1, s[16:19], s44 offen sc1 lds")
        k("s_mov_b32 exec_hi, -1")
        k(f"s_add_u32 s51, s51, {TFS}\ns_add_u32 s44, s44, {TFS}")
    ploop(2, issue, 19)
    ploop(30 - ZB - 2, issue, 9)
    def issue3():
        k("s_add_u32 m0, s60, s67")
        for n in range(2): k(f"buffer_load_dwordx4 v1, s[16:19], s61 offen offset:{n*1024} sc1 lds")
        k("s_add_u32 m0, s65, s67")
        for n in range(2): k(f"buffer_load_dwordx4 v1, s[68:71], s62 offen offset:{n*1024} sc1 lds")
        k("s_add_u32 m0, s66, s67")
        k("s_mov_b64 exec, 0xffff")
        k(f"buffer_load_dwordx4 v1, s[68:71], s48 offen sc1 lds")
        k("s_mov_b64 exec, -1")
        k(f"s_add_u32 s61, s61, 2048")
        k(f"s_add_u32 s62, s62, {8*9216}")
        k(f"s_add_u32 s48, s48, {8*9216}")
        slot_adv_prod(k, R3, SZ3, 67)
    k("s_waitcnt vmcnt(9)")
    k("s_barrier")
    issue3(); issue3()
    k("s_waitcnt vmcnt(10)")
    k("s_barrier")
    k("s_barrier")
    issue3(); issue3()
    NW = 0
    if OPT.get("w3l2", 0):
        k(f"""
        s_lshr_b32 s50, s34, 2
        s_mul_i32 s50, s50, {4*9216}
        s_mul_i32 s55, s35, {8*9216}
        s_add_u32 s50, s50, s55
        s_mul_i32 s55, s40, 9216
        s_add_u32 s50, s50, s55
        v_lshlrev_b32 v12, 7, v0
        buffer_load_dword v13, v12, s[68:71], s50 offen
        s_add_u32 s50, s50, {32*8*9216}
        buffer_load_dword v14, v12, s[68:71], s50 offen
        """)
        NW = 2
    ploop(3, issue3, 15 + NW)
    ploop(1, issue3, 15)
    ld4 = lambda: k(f"buffer_load_dword v4, v{PF}, s[84:87], s53 offen sc1")
    ld4()
    k("s_waitcnt vmcnt(16)")
    k("s_barrier")
    issue3()
    k("s_waitcnt vmcnt(16)")
    k("s_barrier")
    k("s_waitcnt vmcnt(5)")
    spin(k, ld4, lambda: k("v_cmp_ne_u32 vcc, s101, v4"))
    issue3()
    ploop(S3 - LA3 - 6, issue3, 15)
    for b in range(S3 - LA3, S3):
        k(f"s_waitcnt vmcnt({(S3-1-b)*5})")
        k("s_barrier")
    k("s_endpgm")

def gen_main(name, stamps=False):
    k = Kern(name); st = Stamps(k, stamps, 1)
    L = {n: k.lab(n) for n in "end D C2q att g2C g2D g2D2 g2X".split()}
    preamble(k, 256, L["end"], [(4, "ws"), (6, "w_in"), (64, "wqkv"), (66, "w_sp"), (68, "x"), (74, "dbg")])
    k("s_mov_b32 s101, 1\ns_mov_b32 s100, 0")
    for r in range(244, 249): k(f"v_mov_b32 v{r}, 0")
    G = g2_hooks(k)
    k1_body(k, st, L, True, True, G)
    g23_body(k, st, L, G)
    k.label(L["end"])
    k("s_endpgm")
    return k

if __name__ == "__main__":
    HEADER = open("parallel_sum__sliding_local_dilated__mixer_gmlp__prompt.s.ref").read().split("; Override launch")[0]
    stamps = "stamps" in sys.argv[2:]
    for a in sys.argv[2:]:
        if "=" in a: OPT[a.split("=")[0]] = int(a.split("=")[1])
    ks = [(gen_main("parallel_sum__sliding_local_dilated__mixer_gmlp__prompt_kernel", stamps), 256, 256, 512, 163840)]
    txt = assemble_file(HEADER + "; generated by a python script (tile loops, fragment layouts and wait states hand-designed)\n", ks)
    if "plain" in sys.argv[2:]:
        txt = re.sub(r"; @launch kernel=\S+ grid", "; @launch grid", txt)
    open(sys.argv[1], "w").write(txt)
```

```python
import sys, math, re
from asmlib import *
import gen2
from gen2 import *
from gen4 import reduce16

FLG_OFF = 0x3430000; FLG_SZ = 32768
F0 = 16384
F1, F2, F4, F3 = 0, 4096, 8192, 12288
TFS = 90 * 1024
ATT = 69632
HSC = 153600

def snake(no, ni):
    return [(o, i if o % 2 == 0 else ni - 1 - i) for o in range(no) for i in range(ni)]

def w144_voff(k, d, sid, pitch):
    k(f"""
    v_add_u32 v2, s{sid}, v0
    v_mul_u32_u24 v3, 3641, v2
    v_lshrrev_b32 v3, 16, v3
    v_mul_u32_u24 v4, 18, v3
    v_sub_u32 v2, v2, v4
    v_and_b32 v4, 4, v3
    v_and_b32 v5, 8, v3
    v_lshlrev_b32 v4, 1, v4
    v_lshrrev_b32 v5, 1, v5
    v_and_b32 v3, 0x33, v3
    v_or3_b32 v3, v3, v4, v5
    v_mul_u32_u24 v3, {pitch}, v3
    v_lshl_add_u32 v{d}, v2, 4, v3
    """)
def qkv_voff(k, d, sid):
    k(f"""
    v_add_u32 v2, s{sid}, v0
    v_mul_u32_u24 v3, 2341, v2
    v_lshrrev_b32 v3, 16, v3
    v_mul_u32_u24 v4, 28, v3
    v_sub_u32 v2, v2, v4
    v_and_b32 v4, 4, v3
    v_lshrrev_b32 v5, 1, v4
    v_xor_b32 v2, v2, v5
    v_lshlrev_b32 v4, 1, v4
    v_and_b32 v5, 8, v3
    v_lshrrev_b32 v5, 1, v5
    v_and_b32 v3, 0x33, v3
    v_or3_b32 v3, v3, v4, v5
    v_mul_u32_u24 v3, 3456, v3
    v_mul_u32_u24 v4, 57, v2
    v_lshrrev_b32 v4, 9, v4
    v_mul_u32_u24 v5, {1152-144}, v4
    v_lshl_add_u32 v5, v2, 4, v5
    v_add_u32 v3, v3, v5
    v_mov_b32 v5, 0x80000000
    v_cmp_gt_u32 vcc, 27, v2
    v_cndmask_b32 v{d}, v5, v3, vcc
    """)

def lin_dma(k, n, srdr, soff, mbase, slot, vl16=1, mods=""):
    for g in range(0, n, 4):
        if g == 0:
            k(f"s_add_u32 m0, s{mbase}, s{slot}"); so = soff
        else:
            k("s_add_u32 m0, m0, 4096"); k(f"s_add_u32 s50, s{soff}, {g*1024}"); so = 50
        for i in range(min(4, n - g)):
            k(f"buffer_load_dwordx4 v{vl16}, s[{srdr}:{srdr+3}], s{so} offen offset:{i*1024}{mods} lds")
def gat_dma(k, n, srdr, soff, mbase, slot, V):
    k(f"s_add_u32 m0, s{mbase}, s{slot}")
    for i in range(n):
        if i: k("s_add_u32 m0, m0, 1024")
        k(f"buffer_load_dwordx4 v{V+i}, s[{srdr}:{srdr+3}], s{soff} offen lds")

def spin(k, load, check):
    Lp, Ld = k.lab("sp"), k.lab("sd")
    check()
    k(f"s_cbranch_vccz {Ld}")
    k("s_mov_b32 s50, 0x8000")
    k.label(Lp)
    k(f"s_sleep {OPT.get('slp', 4)}")
    load()
    k("s_waitcnt vmcnt(0)")
    k("s_sub_u32 s50, s50, 1")
    check()
    k("s_cmp_eq_u32 s50, 0")
    k("s_cselect_b64 vcc, 0, vcc")
    k(f"s_cbranch_vccnz {Lp}")
    k.label(Ld)

def set_flag(k, soff_expr_lines, vt):
    k(soff_expr_lines)
    k(f"""
    v_mov_b32 v{vt}, s101
    v_mov_b32 v{vt+1}, 0
    s_mov_b64 exec, 1
    buffer_store_dword v{vt}, v{vt+1}, s[84:87], s50 offen sc1
    s_mov_b64 exec, -1
    """)

CNT = ["s_sub_u32 s58, s58, 1", "s_cmp_lg_u32 s58, 0"]


def phase0(k, st, L):
    SZ = 51200
    Lw, Ld, Ln6, Lnz, Lnt = k.lab("w3"), k.lab("p0d"), k.lab("n6"), k.lab("nz"), k.lab("nt")
    srd(k, 84, 4, FLG_OFF, FLG_SZ)
    k(f"""
    s_lshl_b32 s44, s34, 4
    s_and_b32 s50, s35, 15
    s_add_u32 s44, s44, s50
    s_cmp_lg_u32 s33, 7
    s_cbranch_scc1 {Lnz}
    s_lshl_b32 s50, s36, 8
    s_lshl_b32 s51, s37, 4
    s_add_u32 s50, s50, s51
    s_lshl_b32 s51, s37, 8
    s_lshl_b32 s52, s36, 4
    s_add_u32 s51, s51, s52
    s_add_u32 s51, s51, {F2}
    s_add_u32 s52, s50, {F4}
    s_lshl_b32 s53, s2, 2
    s_add_u32 s53, s53, {F3}
    v_mov_b32 v4, s50
    v_writelane_b32 v4, s51, 1
    v_writelane_b32 v4, s52, 2
    v_writelane_b32 v4, s53, 3
    s_mov_b64 exec, 15
    buffer_load_dword v241, v4, s[84:87], 0 offen
    s_mov_b64 exec, -1
    {Lnz}:
    s_cmp_lg_u32 s33, 6
    s_cbranch_scc1 {Lnt}
    """)
    srd(k, 28, 74, 0, 256)
    Lrd, Lgot = k.lab("rd"), k.lab("got")
    k(f"""
    v_mov_b32 v4, 0
    s_mov_b64 exec, 1
    s_cmp_lg_u32 s2, 0
    s_cbranch_scc1 {Lrd}
    s_memrealtime s[50:51]
    s_waitcnt lgkmcnt(0)
    s_or_b32 s50, s50, 1
    v_mov_b32 v5, s50
    buffer_store_dword v5, v4, s[28:31], 0 offen sc1
    s_branch {Lgot}
    {Lrd}:
    """)
    ldn = lambda: k("buffer_load_dword v5, v4, s[28:31], 0 offen sc1")
    ldn(); k("s_waitcnt vmcnt(0)")
    spin(k, ldn, lambda: k("v_cmp_eq_u32 vcc, 0, v5"))
    k(f"""
    {Lgot}:
    v_readfirstlane_b32 s101, v5
    v_mov_b32 v4, {HSC}
    ds_write_b32 v4, v5
    s_mov_b64 exec, -1
    {Lnt}:
    s_cmp_eq_u32 s32, 0
    s_cbranch_scc1 {Lw}
    """)
    srd(k, 24, 68, 0, 2048 * 1152)
    k(f"""
    s_cmp_ge_u32 s33, 6
    s_cbranch_scc1 {Ln6}
    v_and_b32 v2, 15, v0             ; row
    v_lshrrev_b32 v3, 4, v0          ; q
    s_mul_i32 s45, s44, {16*1152}
    s_mul_i32 s46, s33, 192
    s_add_u32 s45, s45, s46
    v_mul_u32_u24 v4, 1152, v2
    v_lshl_add_u32 v4, v3, 4, v4
    buffer_load_dwordx4 v[8:11], v4, s[24:27], s45 offen
    buffer_load_dwordx4 v[12:15], v4, s[24:27], s45 offen offset:64
    buffer_load_dwordx4 v[16:19], v4, s[24:27], s45 offen offset:128
    v_mul_u32_u24 v5, 112, v2
    v_add_u32 v5, {2*SZ}, v5
    s_lshl_b32 s46, s33, 4
    v_lshl_add_u32 v6, v3, 2, v5
    v_add_u32 v6, s46, v6
    s_mul_i32 s46, s33, 3
    s_lshl_b32 s47, s44, 11
    """)
    for i in range(3):
        k(f"""
        s_add_u32 s50, s46, {i}
        s_lshr_b32 s51, s50, 1
        s_lshl_b32 s51, s51, 18
        s_and_b32 s50, s50, 1
        s_lshl_b32 s50, s50, 10
        s_add_u32 s51, s51, s50
        s_add_u32 s{60+i}, s51, s47
        """)
    k("s_waitcnt vmcnt(0)")
    X, D = 20, 68
    for i in range(12):
        k(f"v_lshlrev_b32 v{X+2*i}, 16, v{8+i}")
        k(f"v_and_b32 v{X+2*i+1}, 0xffff0000, v{8+i}")
    def tree(base, n, dst):
        k(f"v_pk_add_f32 v[92:93], {vr(base,2)}, {vr(base+2,2)}")
        k(f"v_pk_add_f32 v[94:95], {vr(base+4,2)}, {vr(base+6,2)}")
        for i in range(4, n // 2): k(f"v_pk_add_f32 {vr(92+2*(i&1),2)}, {vr(92+2*(i&1),2)}, {vr(base+2*i,2)}")
        k("v_pk_add_f32 v[92:93], v[92:93], v[94:95]")
        k(f"v_add_f32 v{dst}, v92, v93")
    tree(X, 24, 96)
    k("ds_write_b32 v6, v96")
    k("s_waitcnt lgkmcnt(0)")
    k("s_barrier")
    for i in range(6): k(f"ds_read_b128 {vr(44+4*i,4)}, v5 offset:{i*16}")
    k("s_waitcnt lgkmcnt(0)")
    tree(44, 24, 96)
    k(f"v_mul_f32 v96, {f2u(1.0/576):#x}, v96")
    k("v_mov_b32 v97, v96")
    for i in range(12): k(f"v_pk_add_f32 {vr(D+2*i,2)}, {vr(X+2*i,2)}, v[96:97] neg_lo:[0,1] neg_hi:[0,1]")
    k(f"v_pk_mul_f32 v[92:93], {vr(D,2)}, {vr(D,2)}")
    k(f"v_pk_mul_f32 v[94:95], {vr(D+2,2)}, {vr(D+2,2)}")
    for i in range(2, 12): k(f"v_pk_fma_f32 {vr(92+2*(i&1),2)}, {vr(D+2*i,2)}, {vr(D+2*i,2)}, {vr(92+2*(i&1),2)}")
    k("v_pk_add_f32 v[92:93], v[92:93], v[94:95]")
    k("v_add_f32 v98, v92, v93")
    k("ds_write_b32 v6, v98 offset:2048")
    rnd_bf16(k, 96, 96)
    k("v_mov_b32 v97, v96")
    for i in range(12): k(f"v_pk_add_f32 {vr(X+2*i,2)}, {vr(X+2*i,2)}, v[96:97] neg_lo:[0,1] neg_hi:[0,1]")
    k("s_waitcnt lgkmcnt(0)")
    k("s_barrier")
    for i in range(6): k(f"ds_read_b128 {vr(44+4*i,4)}, v5 offset:{2048+i*16}")
    for i in range(12): k(f"v_cvt_pk_bf16_f32 v{8+i}, v{X+2*i}, v{X+2*i+1}")
    for i in range(12):
        k(f"v_lshlrev_b32 v{X+2*i}, 16, v{8+i}")
        k(f"v_and_b32 v{X+2*i+1}, 0xffff0000, v{8+i}")
    k("s_waitcnt lgkmcnt(0)")
    tree(44, 24, 98)
    k(f"v_mul_f32 v98, {f2u(1.0/576):#x}, v98")
    rnd_bf16(k, 98, 98)
    k(f"v_add_f32 v98, {f2u(1e-5):#x}, v98")
    rnd_bf16(k, 98, 98)
    k("v_sqrt_f32 v98, v98")
    rnd_bf16(k, 98, 98)
    k("v_rcp_f32 v98, v98")
    k("v_mov_b32 v99, v98")
    for i in range(12): k(f"v_pk_mul_f32 {vr(X+2*i,2)}, {vr(X+2*i,2)}, v[98:99]")
    for i in range(12): k(f"v_cvt_pk_bf16_f32 v{8+i}, v{X+2*i}, v{X+2*i+1}")
    for i in range(3): k(f"buffer_store_dwordx4 {vr(8+4*i,4)}, v1, s[8:11], s{60+i} offen sc1")
    k(f"s_waitcnt vmcnt(0)\ns_barrier\ns_branch {Ld}")
    k.label(Ln6)
    srd(k, 20, 4, ST_OFF, ST_SZ)
    Lz = k.lab("z7")
    k(f"""
    v_mov_b32 v4, 0
    v_lshlrev_b32 v5, 2, v0
    s_lshl_b32 s45, s44, 7
    s_cmp_lg_u32 s33, 7
    s_cbranch_scc1 {Lz}
    s_mov_b32 exec_hi, 0
    buffer_store_dword v4, v5, s[20:23], s45 offen sc1
    s_mov_b32 exec_hi, -1
    {Lz}:
    s_barrier
    s_barrier
    s_waitcnt vmcnt(0)
    s_barrier
    s_cmp_lg_u32 s33, 6
    s_cbranch_scc1 {Ld}
    v_mov_b32 v4, s101
    s_add_u32 s45, s45, {F0}
    s_mov_b32 exec_hi, 0
    buffer_store_dword v4, v5, s[84:87], s45 offen sc1
    s_mov_b32 exec_hi, -1
    s_branch {Ld}
    """)
    k.label(Lw)
    def warm():
        if OPT.get("w0", 0):
            k(f"""
            s_lshl_b32 s50, s44, 3
            s_add_u32 s50, s50, s33
            s_lshl_b32 s51, s50, 6
            v_add_u32 v243, s51, v0
            s_mov_b32 s52, 116509
            v_mul_lo_u32 v242, s52, v243
            v_lshrrev_b32 v242, 22, v242
            v_lshlrev_b32 v243, 7, v243
            v_mul_u32_u24 v242, 4608, v242
            v_add_u32 v243, v243, v242
            s_mov_b32 s51, 0x7fffffff
            s_cmp_lt_u32 s50, 324
            s_cselect_b32 s51, 4608, s51
            buffer_load_dword v243, v243, s[12:15], s51 offen
            """)
            return
        k(f"""
        s_lshl_b32 s50, s44, 3
        s_add_u32 s50, s50, s33
        s_sub_u32 s51, s50, 648
        s_cmp_lt_u32 s50, 648
        s_cselect_b32 s28, s6, s64
        s_cselect_b32 s29, s7, s65
        s_cselect_b32 s50, s50, s51
        s_mov_b32 s30, {576*3456}
        s_cselect_b32 s30, {576*9216}, s30
        s_mov_b32 s31, 0x20000
        s_lshl_b32 s50, s50, 13
        v_lshlrev_b32 v243, 7, v0
        buffer_load_dword v243, v243, s[28:31], s50 offen
        """)
    warm()
    Lnc, Lpc = k.lab("nc"), k.lab("pc")
    k(f"""
    s_cmp_lg_u32 s35, 0
    s_cbranch_scc1 {Lnc}
    s_getpc_b64 s[28:29]
    {Lpc}:
    s_mov_b32 s30, {L['end']}-{Lpc}
    s_mov_b32 s31, 0x20000
    s_lshl_b32 s50, s33, 13
    v_lshlrev_b32 v242, 7, v0
    buffer_load_dword v242, v242, s[28:31], s50 offen
    {Lnc}:
    """)
    k.label(Ld)

def k1_body(k, st, L, fused, single, G):
    R, SZ = 3, 51200
    BO1, BOZ, BOQ = 16384, 32768, 18432
    stamps = st.on
    k(f"""
    s_and_b32 s36, s34, 1
    s_lshl_b32 s36, s36, 3
    s_and_b32 s37, s35, 7
    s_add_u32 s36, s36, s37          ; z2 mt
    s_lshr_b32 s37, s34, 1
    s_lshl_b32 s37, s37, 2
    s_lshr_b32 s38, s35, 3
    s_add_u32 s37, s37, s38          ; z2 nt
    s_lshr_b32 s32, s35, 4
    s_and_b32 s38, s34, 1
    s_lshl_b32 s38, s38, 2
    s_and_b32 s39, s35, 3
    s_add_u32 s38, s38, s39
    s_lshr_b32 s39, s34, 1
    s_lshl_b32 s50, s39, 1
    s_lshl_b32 s39, s39, 2
    s_lshr_b32 s51, s35, 2
    s_add_u32 s39, s39, s51          ; z1 nt
    s_bfe_u32 s51, s35, 0x10003
    s_add_u32 s50, s50, s51          ; hg
    s_cmp_eq_u32 s32, 0
    s_cselect_b32 s38, s38, s36
    s_cselect_b32 s39, s39, s50
    s_waitcnt lgkmcnt(0)
    """)
    srd(k, 8, 4, XN_OFF, XN_SZ)
    srd(k, 12, 6, 0, 576 * 9216)
    XS = " sc1" if single else ""
    st.init()
    if single:
        st(250)
        phase0(k, st, L)
        st(250)
    k(f"s_cmp_ge_u32 s33, 4\ns_cbranch_scc1 {L['D']}")
    srd(k, 16, 4, A3_OFF, A3_SZ)
    def loop2(reads, half, adv, vmw):
        Ltop = k.lab("top")
        k("s_mov_b32 s58, 8")
        k("s_barrier")
        st()
        for r in reads(0, 0): k(r)
        k("s_waitcnt lgkmcnt(0)")
        if vmw: k("s_barrier")
        half(0, reads(1, 1) + adv, True)
        k("s_waitcnt vmcnt(0) lgkmcnt(0)")
        k.label(Ltop)
        k("s_barrier")
        half(1, reads(0, 0), False)
        k("s_waitcnt lgkmcnt(0)")
        half(0, reads(1, 1) + adv + CNT, False)
        k("s_waitcnt lgkmcnt(0)")
        k(f"s_cbranch_scc1 {Ltop}")
        st()
    st()
    ACC, BUF = 104, [0, 36]
    VA, VB, VL16, VLN = 244, 245, 246, 247
    acc = lambda i, j: ACC + (i * 5 + j) * 4
    k(f"""
    s_mov_b32 s40, s33
    s_and_b32 s41, s40, 1            ; wm
    s_lshr_b32 s42, s40, 1           ; wn
    v_mov_b32 v{VL16}, v1
    v_mov_b32 v{VLN}, v0
    s_lshl_b32 s43, s41, 13
    v_add_u32 v{VA}, s43, v1
    """)
    tr_lane_base(k, VB, 288, 2)
    k(f"s_mul_i32 s43, s42, 160\ns_add_u32 s43, s43, {BO1}\nv_add_u32 v{VB}, s43, v{VB}")
    Lq, Ld = k.lab("cq"), k.lab("cd")
    ZA, ZB, ZL16, ZL8 = 248, 249, 250, 251
    QA, QBE, QBO, QW = 248, 249, 250, 251
    k(f"s_cmp_lg_u32 s32, 0\ns_cbranch_scc1 {Lq}")
    k(f"""
    v_mov_b32 v{ZL16}, v1
    v_lshrrev_b32 v2, 5, v0
    v_lshlrev_b32 v2, 8, v2
    v_and_b32 v3, 15, v0
    v_lshl_add_u32 v2, v3, 4, v2
    v_bfe_u32 v3, v0, 4, 1
    v_lshl_add_u32 v{ZL8}, v3, 3, v2
    s_lshl_b32 s50, s40, 13
    v_add_u32 v{ZA}, s50, v1
    """)
    tr_lane_base(k, ZB, 288, 2)
    k(f"v_add_u32 v{ZB}, {BOZ}, v{ZB}")
    k(f"s_branch {Ld}")
    k.label(Lq)
    k(f"v_mov_b32 v{QA}, v{VA}")
    tr_lane_base(k, QBE, 448, 2)
    k(f"""
    s_mul_i32 s50, s42, 224
    s_add_u32 s50, s50, {BOQ}
    v_add_u32 v{QBE}, s50, v{QBE}
    v_lshlrev_b32 v2, 5, v2
    v_sub_u32 v3, 0, v2
    s_cmp_eq_u32 s42, 0
    s_cselect_b64 vcc, -1, 0
    v_cndmask_b32 v4, v3, v2, vcc
    v_sub_u32 v{QBO}, v{QBE}, v4
    v_add_u32 v{QBE}, v{QBE}, v4
    v_and_b32 v2, 15, v0
    s_lshl_b32 s50, s41, 6
    v_add_u32 v2, s50, v2
    v_mul_u32_u24 v{QW}, 440, v2
    v_lshrrev_b32 v2, 4, v0
    v_lshl_add_u32 v{QW}, v2, 3, v{QW}
    s_mul_i32 s50, s42, 224
    s_add_u32 s50, s50, {ATT}
    v_add_u32 v{QW}, s50, v{QW}
    """)
    k.label(Ld)
    k(f"""
    s_cmp_eq_u32 s42, 0
    s_cselect_b64 vcc, -1, 0
    s_cselect_b32 s54, -1, 0
    s_mul_i32 s46, s41, {18*1024}
    s_mul_i32 s47, s42, {5*1024}
    s_add_u32 s46, s46, s47
    s_add_u32 s46, s46, {2*SZ}
    v_add_u32 v{VL16}, s46, v1
    """)
    C, T, O, SM = 72, 80, 88, 184
    gelu_consts(k, C)
    for r in range(SM, SM + 32): k(f"v_mov_b32 v{r}, 0")
    adv_setup(k, R, SZ)
    def reads1(sub, b):
        o = [f"ds_read_b128 {vr(BUF[b]+i*4,4)}, v{VA} offset:{i*2048+sub*1024}" for i in range(4)]
        for j in range(5):
            for hh in range(2):
                o.append(f"ds_read_b64_tr_b16 {vr(BUF[b]+16+j*4+hh*2,2)}, v{VB} offset:{sub*32*288+hh*8*288+j*32}")
        return o
    def mf1(b, seq, zero):
        return [f"v_mfma_f32_16x16x32_bf16 {vr(acc(i,j),4)}, {vr(BUF[b]+i*4,4)}, {vr(BUF[b]+16+j*4,4)}, {'0' if zero else vr(acc(i,j),4)}"
                for j, i in seq]
    def half1(b, other, zero):
        for x in interleave(mf1(b, snake(4, 4), zero), other): k(x)
        Ls = k.lab("sk")
        k(f"s_cbranch_vccz {Ls}")
        for x in mf1(b, [(4, i) for i in range(4)], zero): k(x)
        k.label(Ls)
    if single:
        k("s_barrier")
        k(f"v_mov_b32 v2, {HSC}\nds_read_b32 v2, v2\ns_waitcnt lgkmcnt(0)\nv_readfirstlane_b32 s101, v2")
    if single and OPT.get("w0", 0):
        Ln1, Ln2 = k.lab("n1"), k.lab("n2")
        srd(k, 72, 64, 0, 576 * 3456)
        k(f"""
        s_lshl_b32 s50, s2, 2
        s_add_u32 s50, s50, s40
        s_lshl_b32 s51, s50, 6
        v_add_u32 v242, s51, v0
        v_lshlrev_b32 v241, 7, v242
        s_mov_b32 s52, 116509
        v_mul_lo_u32 v242, s52, v242
        v_lshrrev_b32 v242, 22, v242
        v_mul_u32_u24 v242, 4608, v242
        v_add_u32 v242, v241, v242
        v_subrev_u32 v241, {324*64*128}, v241
        s_cmp_lt_u32 s50, 324
        s_cbranch_scc0 {Ln1}
        buffer_load_dword v242, v242, s[12:15], 0 offen
        s_branch {Ln2}
        {Ln1}:
        buffer_load_dword v242, v241, s[72:75], 0 offen
        {Ln2}:
        """)
    loop2(reads1, half1, adv_ins(R, [VA, VB]), False)
    k("s_barrier")
    half1(1, [], False)
    n = 0
    for jj in range(5):
        if jj == 4:
            Ls = k.lab("us"); k(f"s_cbranch_vccz {Ls}")
        for P in range(2):
            a, b = acc(2 * P, jj), acc(2 * P + 1, jj)
            gelu(k, [a, a + 2, b, b + 2], T, C)
            o = O + (n & 1) * 4; n += 1
            for x, q in enumerate([a, a + 2, b, b + 2]): k(f"v_cvt_pk_bf16_f32 v{o+x}, v{q}, v{q+1}")
            k(f"ds_write_b128 v{VL16}, {vr(o,4)} offset:{(P*9+jj)*1024}")
            for e, q in enumerate([a, b]):
                i = 2 * P + e
                for h in range(2):
                    k(f"v_pk_add_f32 {vr(SM+4*i+2*h,2)}, {vr(SM+4*i+2*h,2)}, {vr(q+2*h,2)}")
                    k(f"v_pk_fma_f32 {vr(SM+16+4*i+2*h,2)}, {vr(q+2*h,2)}, {vr(q+2*h,2)}, {vr(SM+16+4*i+2*h,2)}")
    k.label(Ls)
    for m in range(1, 4):
        v = 0x11111111 << m
        k(f"s_mov_b32 s{58+2*m}, {v:#x}\ns_mov_b32 s{59+2*m}, {v:#x}")
    val = lambda P, i: SM + (i & 1) * 16 + (2 * P + (i >> 3)) * 4 + ((i >> 1) & 3)
    sets = [[val(P, i) for i in range(16)] for P in range(2)]
    reduce16(k, sets, 60)
    k(f"""
    s_lshl_b32 s46, s40, 9
    s_add_u32 s46, s46, {2*SZ+36864}
    v_lshlrev_b32 v{T+1}, 2, v{VLN}
    v_add_u32 v{T+1}, s46, v{T+1}
    ds_write_b32 v{T+1}, v{sets[0][0]}
    ds_write_b32 v{T+1}, v{sets[1][0]} offset:256
    s_waitcnt lgkmcnt(0)
    """)
    k("s_waitcnt vmcnt(0)")
    st()
    k(f"s_cmp_lg_u32 s32, 0\ns_cbranch_scc1 {L['C2q']}")
    ACZ, BZ = 104, [0, 52]
    acz = lambda i, j: ACZ + (i * 9 + j) * 4
    def readsz(sub, b):
        o = [f"ds_read_b128 {vr(BZ[b]+i*4,4)}, v{ZA} offset:{i*2048+sub*1024}" for i in range(4)]
        for j in range(9):
            for hh in range(2):
                o.append(f"ds_read_b64_tr_b16 {vr(BZ[b]+16+j*4+hh*2,2)}, v{ZB} offset:{sub*32*288+hh*8*288+j*32}")
        return o
    def halfz(b, other, zero):
        mf = [f"v_mfma_f32_16x16x32_bf16 {vr(acz(i,j),4)}, {vr(BZ[b]+16+j*4,4)}, {vr(BZ[b]+i*4,4)}, {'0' if zero else vr(acz(i,j),4)}"
              for i, j in snake(4, 9)]
        for x in interleave(mf, other): k(x)
    loop2(readsz, halfz, adv_ins(R, [ZA, ZB]), True)
    halfz(1, [], False)
    C, T, O = 0, 8, 16
    gelu_consts(k, C)
    k(f"""
    s_lshl_b32 s46, s38, 4
    s_lshl_b32 s47, s40, 2
    s_add_u32 s46, s46, s47          ; tfrag0
    s_mul_i32 s46, s46, {TFS}
    s_lshr_b32 s47, s39, 1
    s_mul_i32 s47, s47, 9216
    s_add_u32 s46, s46, s47
    s_and_b32 s47, s39, 1
    s_lshl_b32 s48, s47, 9
    s_add_u32 s48, s48, s46
    s_add_u32 s48, s48, {(18+8)*1024}
    s_lshl_b32 s47, s47, 12
    s_add_u32 s46, s46, s47
    s_add_u32 s46, s46, {18*1024}
    """)
    n = 0
    for i in range(4):
        for p in range(4):
            a, b = acz(i, 2 * p), acz(i, 2 * p + 1)
            gelu(k, [a, a + 2, b, b + 2], T, C)
            o = O + (n & 1) * 4; n += 1
            for x, q in enumerate([a, a + 2, b, b + 2]): k(f"v_cvt_pk_bf16_f32 v{o+x}, v{q}, v{q+1}")
            k(f"buffer_store_dwordx4 {vr(o,4)}, v{ZL16}, s[16:19], s46 offen offset:{p*1024} sc1")
        if i < 3: k(f"s_add_u32 s46, s46, {TFS}\ns_add_u32 s{49+i}, s{48+i}, {TFS}")
    for i in (0, 2):
        a, b = acz(i, 8), acz(i + 1, 8)
        gelu(k, [a, a + 2, b, b + 2], T, C)
        o = O + (n & 1) * 4; n += 1
        for x, q in enumerate([a, a + 2, b, b + 2]): k(f"v_cvt_pk_bf16_f32 v{o+x}, v{q}, v{q+1}")
        k(f"buffer_store_dwordx2 {vr(o,2)}, v{ZL8}, s[16:19], s{48+i} offen sc1")
        k(f"buffer_store_dwordx2 {vr(o+2,2)}, v{ZL8}, s[16:19], s{49+i} offen sc1")
    if stamps and not fused:
        st(); k("s_waitcnt vmcnt(0)"); st()
    k(f"s_branch {L['g2C']}" if fused else "s_endpgm")
    k.label(L["D"])
    if OPT.get("pd", 3): k(f"s_setprio {OPT.get('pd', 3)}")
    k(f"""
    s_sub_u32 s40, s33, 4            ; pw
    s_lshl_b32 s41, s40, 12          ; A lds
    s_lshl_b32 s42, s36, 14
    s_add_u32 s42, s42, s41          ; A goff
    s_mul_i32 s43, s37, 288
    s_add_u32 s43, s43, 4608         ; B goff
    s_add_u32 s47, s41, {BO1}        ; B lds
    s_lshl_b32 s48, s40, 9
    s_add_u32 s48, s48, {BO1+16384}
    s_mov_b32 s49, 0
    s_lshl_b32 s51, s40, 8
    """)
    def half_dma(srdr, v, soff, mbase, mods=""):
        k(f"s_add_u32 m0, s{mbase}, s49")
        k("s_mov_b32 exec_hi, 0")
        k(f"buffer_load_dwordx4 v{v}, s[{srdr}:{srdr+3}], s{soff} offen{mods} lds")
        k("s_mov_b32 exec_hi, -1")
    def i1A():
        lin_dma(k, 4, 8, 42, 41, 49, mods=XS); k(f"s_add_u32 s42, s42, {128*2048}")
    def i1B():
        gat_dma(k, 4, 12, 43, 47, 49, 8); half_dma(12, 12, 43, 48); k(f"s_add_u32 s43, s43, {64*9216}")
    def issue1():
        i1A(); i1B(); slot_adv_prod(k, R, SZ, 49)
    def setup2():
        srd(k, 72, 64, 0, 576 * 3456)
        srd(k, 16, 4, A3_OFF, A3_SZ)
        srd(k, 20, 4, ST_OFF, ST_SZ)
        srd(k, 24, 66, 0, 2048 * 4096)
        srd(k, 80, 4, Z2T_OFF, Z2T_SZ)
        srd(k, 84, 4, FLG_OFF, FLG_SZ)
        for r in range(20, 27): k(f"v_mov_b32 v{r}, 0x80000000")
        Lq, Ld = k.lab("dq"), k.lab("dd")
        k(f"""
        s_cmp_lg_u32 s32, 0
        s_cbranch_scc1 {Lq}
        s_lshl_b32 s63, s40, 13          ; A lds
        s_lshl_b32 s60, s38, 15
        s_add_u32 s60, s60, s63          ; A goff
        s_mul_i32 s61, s39, 288          ; B goff
        s_add_u32 s88, s41, {BOZ}
        s_lshl_b32 s89, s40, 9
        s_add_u32 s89, s89, {BOZ+16384}
        s_mov_b32 s62, 0
        s_branch {Ld}
        {Lq}:
        s_lshl_b32 s60, s38, 14
        s_lshl_b32 s89, s40, 9
        s_sub_u32 s62, s60, 2048
        s_cmp_eq_u32 s38, 0
        s_cselect_b32 s62, 0, s62
        s_add_u32 s62, s62, s89
        s_add_u32 s60, s60, s41          ; A goff
        s_add_u32 s63, s41, 2048
        s_mul_i32 s61, s39, 144
        s_mul_i32 s88, s40, 7168
        s_add_u32 s88, s88, {BOQ}
        s_mul_i32 s51, s40, 448
        """)
        for n in range(7):
            qkv_voff(k, 20 + n, 51)
            k("s_add_u32 s51, s51, 64")
        k.label(Ld)
        k(f"""
        v_lshlrev_b32 v28, 7, v0
        s_lshl_b32 s44, s2, 2
        s_add_u32 s44, s44, s40
        s_lshl_b32 s44, s44, 13
        v_lshlrev_b32 v29, 2, v0
        v_lshrrev_b32 v30, 4, v0
        v_lshlrev_b32 v30, 5, v30
        s_lshl_b32 s45, s36, 10
        s_lshl_b32 s50, s40, 8
        s_add_u32 s45, s45, s50
        s_mul_i32 s50, s40, {9*1024}
        s_add_u32 s50, s50, {2*SZ}
        v_add_u32 v31, s50, v1
        s_lshl_b32 s46, s36, 1
        s_lshr_b32 s50, s40, 1
        s_add_u32 s46, s46, s50
        s_mul_i32 s46, s46, 144
        s_mul_i32 s50, s37, 9
        s_add_u32 s46, s46, s50
        s_lshl_b32 s46, s46, 11
        s_and_b32 s50, s40, 1
        s_lshl_b32 s50, s50, 10
        s_add_u32 s46, s46, s50          ; Z2T offset
        s_lshl_b32 s53, s36, 8           ; F1 row
        s_lshl_b32 s50, s40, 9
        s_add_u32 s50, s50, {2*SZ+36864}
        v_add_u32 v35, s50, v29
        v_bfe_u32 v27, v0, 3, 1
        v_lshlrev_b32 v27, 5, v27
        v_lshrrev_b32 v2, 4, v0
        v_lshl_add_u32 v27, v2, 3, v27
        v_and_b32 v2, 7, v0
        v_add_lshl_u32 v27, v27, v2, 2
        s_lshl_b32 s55, s36, 10
        s_and_b32 s50, s40, 1
        s_lshl_b32 s50, s50, 9
        s_add_u32 s55, s55, s50
        """)
    if single:
        Lnp = k.lab("np")
        k(f"""
        v_lshlrev_b32 v28, 7, v0
        s_lshl_b32 s52, s36, 10
        s_add_u32 s52, s52, {F0}
        s_cmp_lg_u32 s40, 2
        s_cbranch_scc1 {Lnp}
        s_mov_b64 exec, 0xff
        buffer_load_dword v33, v28, s[84:87], s52 offen sc1
        s_mov_b64 exec, -1
        {Lnp}:
        """)
        for n in range(5):
            if n == 4: k("s_lshl_b32 s51, s40, 5\ns_add_u32 s51, s51, 1024")
            w144_voff(k, 8 + n, 51, 9216)
            k("s_add_u32 s51, s51, 64")
        setup2()
        Lnp = k.lab("np")
        k(f"s_cmp_lg_u32 s40, 2\ns_cbranch_scc1 {Lnp}")
        ldx = lambda: k("buffer_load_dword v33, v28, s[84:87], s52 offen sc1")
        k("s_mov_b64 exec, 0xff\ns_waitcnt vmcnt(0) lgkmcnt(0)")
        spin(k, ldx, lambda: k("v_cmp_ne_u32 vcc, s101, v33"))
        k("s_mov_b64 exec, -1")
        k.label(Lnp)
        k("s_barrier")
        st(250)
        issue1(); issue1()
        k(f"v_mov_b32 v33, {HSC}\nds_read_b32 v33, v33\ns_waitcnt lgkmcnt(0)\nv_readfirstlane_b32 s101, v33")
    else:
        i1A()
        k("s_mov_b32 m0, s47")
        for n in range(4):
            w144_voff(k, 8 + n, 51, 9216)
            k("s_add_u32 s51, s51, 64")
            k(f"buffer_load_dwordx4 v{8+n}, s[12:15], s43 offen lds")
            k("s_add_u32 m0, m0, 1024")
        k("s_lshl_b32 s51, s40, 5\ns_add_u32 s51, s51, 1024")
        w144_voff(k, 12, 51, 9216)
        half_dma(12, 12, 43, 48)
        k(f"s_add_u32 s43, s43, {64*9216}\ns_mov_b32 s49, {SZ}")
        issue1()
    k("s_waitcnt vmcnt(9)")
    k("s_barrier")
    issue1()
    def ploop(n, iss, allowed):
        Lp = k.lab("pl")
        k(f"s_mov_b32 s58, {n}")
        k.label(Lp)
        k(f"s_waitcnt vmcnt({allowed})")
        k("s_barrier")
        iss()
        k(f"s_sub_u32 s58, s58, 1\ns_cmp_lg_u32 s58, 0\ns_cbranch_scc1 {Lp}")
    ploop(6, issue1, 9)
    def issue2():
        Lq, Ld = k.lab("iq"), k.lab("id")
        k(f"s_cmp_lg_u32 s32, 0\ns_cbranch_scc1 {Lq}")
        lin_dma(k, 8, 8, 60, 63, 49, mods=XS); gat_dma(k, 4, 12, 61, 88, 49, 8); half_dma(12, 12, 61, 89)
        k(f"s_add_u32 s61, s61, {64*9216}\ns_branch {Ld}")
        k.label(Lq)
        lin_dma(k, 4, 8, 60, 63, 49, mods=XS); half_dma(8, 1, 62, 89, XS); gat_dma(k, 7, 72, 61, 88, 49, 20)
        k(f"s_add_u32 s62, s62, {128*2048}\ns_add_u32 s61, s61, {64*3456}")
        k.label(Ld)
        k(f"s_add_u32 s60, s60, {128*2048}")
        slot_adv_prod(k, R, SZ, 49)
    N2 = 12
    if single:
        k(f"""
        s_lshl_b32 s54, s38, 3
        s_lshl_b32 s50, s38, 4
        s_cmp_eq_u32 s32, 0
        s_cselect_b32 s54, s50, s54
        s_max_u32 s54, s54, 1
        s_min_u32 s54, s54, 112
        s_lshl_b32 s54, s54, 7
        s_add_u32 s54, s54, {F0 - 128}
        """)
        ldb = lambda: k("buffer_load_dword v33, v28, s[84:87], s54 offen sc1")
        k("s_mov_b64 exec, 0x1ffff"); ldb(); k("s_mov_b64 exec, -1")
    k("s_waitcnt vmcnt(%d)" % (10 if single else 9))
    k("s_barrier")
    if single:
        k("s_mov_b64 exec, 0x1ffff\ns_waitcnt vmcnt(0)")
        spin(k, ldb, lambda: k("v_cmp_ne_u32 vcc, s101, v33"))
        k("s_mov_b64 exec, -1")
    issue2()
    k(f"s_waitcnt vmcnt({N2})")
    k("s_barrier")
    issue2()
    if OPT.get("wpf", 1): k("buffer_load_dword v32, v28, s[24:27], s44 offen")
    k("s_barrier")
    k(f"s_waitcnt vmcnt({N2+OPT.get('wpf', 1)})")
    k("s_barrier")
    Z = 64
    for j in range(9): k(f"ds_read_b128 {vr(Z+4*j,4)}, v31 offset:{j*1024}")
    k(f"""
    ds_read_b32 v34, v35
    ds_read_b32 v33, v35 offset:256
    s_waitcnt lgkmcnt(0)
    s_barrier
    buffer_atomic_add_f32 v34, v27, s[20:23], s55 offen
    buffer_atomic_add_f32 v33, v27, s[20:23], s55 offen offset:256
    """)
    issue2()
    k(f"s_waitcnt vmcnt({N2+2+OPT.get('wpf', 1)})")
    k("s_barrier")
    issue2()
    k(f"s_waitcnt vmcnt({N2})")
    set_flag(k, f"s_lshl_b32 s50, s37, 4\ns_add_u32 s50, s50, s53\ns_lshl_b32 s51, s40, 2\ns_add_u32 s50, s50, s51", 33)
    k("s_barrier")
    issue2()
    PB = OPT.get("pb", 13)
    if PB > 12: ploop(PB - 12, issue2, N2)
    ld1 = lambda: k("buffer_load_dword v33, v29, s[84:87], s53 offen sc1")
    ld1()
    k(f"s_waitcnt vmcnt({N2+1})")
    k("s_barrier")
    issue2()
    k(f"s_waitcnt vmcnt({N2})")
    spin(k, ld1, lambda: k("v_cmp_ne_u32 vcc, s101, v33"))
    for i in range(4): k(f"buffer_load_dwordx4 {vr(36+4*i,4)}, v30, s[20:23], s45 offen offset:{(i>>1)*128+(i&1)*16} sc1")
    k("s_barrier")
    st(250)
    vm = [("L%d" % (PB + 2), N2), ("s", 4)]
    def allowed(tag):
        n = 0
        for t, c in reversed(vm):
            if t == tag: return n
            n += c
        raise KeyError(tag)
    def rcalc():
        k(f"s_waitcnt vmcnt({allowed('s')})")
        inv = f2u(1.0 / 2304)
        for i in range(8): k(f"v_mul_f32 v{36+2*i}, {inv:#x}, v{36+2*i}")
        for i in range(8): k(f"v_mul_f32 v{37+2*i}, {inv:#x}, v{37+2*i}")
        for i in range(8): k(f"v_fma_f32 v{37+2*i}, -v{36+2*i}, v{36+2*i}, v{37+2*i}")
        for i in range(8): k(f"v_max_f32 v{37+2*i}, 0, v{37+2*i}")
        def rnd8(o):
            for i in range(4): k(f"v_cvt_pk_bf16_f32 v{52+i}, v{o+4*i}, v{o+2+4*i}")
            for i in range(4):
                k(f"v_lshlrev_b32 v{o+4*i}, 16, v{52+i}")
                k(f"v_and_b32 v{o+2+4*i}, 0xffff0000, v{52+i}")
        rnd8(36); rnd8(37)
        for i in range(8): k(f"v_add_f32 v{37+2*i}, {f2u(1e-5):#x}, v{37+2*i}")
        rnd8(37)
        for i in range(8): k(f"v_sqrt_f32 v{37+2*i}, v{37+2*i}")
        rnd8(37)
        for i in range(8): k(f"v_rcp_f32 v{37+2*i}, v{37+2*i}")
        for i in range(8): k(f"v_mul_f32 v{36+2*i}, v{36+2*i}, v{37+2*i}")
    def unit(j):
        w, t = Z + 4 * j, 56
        for i in range(4):
            k(f"v_lshlrev_b32 v{t+2*i}, 16, v{w+i}")
            k(f"v_and_b32 v{t+2*i+1}, 0xffff0000, v{w+i}")
        for i in range(8): k(f"v_fma_f32 v{t+i}, v{t+i}, v{37+2*i}, -v{36+2*i}")
        for i in range(4): k(f"v_cvt_pk_bf16_f32 v{w+i}, v{t+2*i}, v{t+2*i+1}")
        k(f"v_permlane32_swap_b32 v{w}, v{w+2}")
        k(f"v_permlane32_swap_b32 v{w+1}, v{w+3}")
        k(f"v_permlane16_swap_b32 v{w}, v{w+2}")
        k(f"v_permlane16_swap_b32 v{w+1}, v{w+3}")
        if j and j % 2 == 0: k("s_add_u32 s46, s46, 4096")
        k(f"buffer_store_dwordx4 {vr(w,4)}, v1, s[80:83], s46 offen offset:{(j&1)*2048} sc1")
        vm.append(("z", 1))
    work = [rcalc] + [(lambda j=j: unit(j)) for j in range(9)]
    split = {13: [[0, 1, 2], [3, 4, 5], [6, 7, 8, 9]], 12: [[0, 1], [2, 3, 4], [5, 6], [7, 8, 9]], 11: [[0], [1, 2], [3, 4], [5, 6], [7, 8, 9]]}[PB]
    for n, b in enumerate(range(PB + 1, 17)):
        if b + 2 <= 17:
            issue2(); vm.append((f"L{b+2}", N2))
        for w_ in split[n]: work[w_]()
        k(f"s_waitcnt vmcnt({allowed(f'L{b+1}')})")
        k("s_barrier")
    st(250)
    if fused:
        k("s_waitcnt vmcnt(0)")
        set_flag(k, f"s_lshl_b32 s50, s37, 8\ns_lshl_b32 s51, s36, 4\ns_add_u32 s50, s50, s51\ns_lshl_b32 s51, s40, 2\ns_add_u32 s50, s50, s51\ns_add_u32 s50, s50, {F2}", 33)
    if single:
        k(f"""
        s_load_dwordx2 s[28:29], s[0:1], {KA['wo']}
        s_load_dwordx2 s[30:31], s[0:1], {KA['w_out']}
        s_lshr_b32 s50, s44, 13
        s_sub_u32 s51, s50, 81
        s_waitcnt lgkmcnt(0)
        s_cmp_lt_u32 s50, 81
        s_cselect_b32 s24, s28, s30
        s_cselect_b32 s25, s29, s31
        s_cselect_b32 s50, s50, s51
        s_mov_b32 s26, {2304*1152}
        s_cselect_b32 s26, {576*1152}, s26
        s_mov_b32 s27, 0x20000
        s_lshl_b32 s50, s50, 13
        buffer_load_dword v240, v28, s[24:27], s50 offen
        """)
    Lha = k.lab("ha")
    k(f"s_cmp_lg_u32 s32, 0\ns_cbranch_scc1 {Lha}")
    k(f"s_branch {L['g2D']}" if fused else "s_endpgm")
    k.label(Lha)
    k("s_setprio 0")
    k("s_barrier")
    k(f"s_branch {L['att']}")
    k.label(L["C2q"])
    ACQ, BQ = 104, [0, 48]
    acq = lambda i, j: ACQ + (i * 7 + j) * 4
    def readsq(sub, b):
        o = [f"ds_read_b128 {vr(BQ[b]+i*4,4)}, v{QA} offset:{i*2048+sub*1024}" for i in range(5)]
        for j in range(7):
            for hh in range(2):
                o.append(f"ds_read_b64_tr_b16 {vr(BQ[b]+20+j*4+hh*2,2)}, v{QBO if j & 1 else QBE} offset:{sub*32*448+hh*8*448+j*32}")
        return o
    def halfq(b, other, zero):
        mf = [f"v_mfma_f32_16x16x32_bf16 {vr(acq(i,j),4)}, {vr(BQ[b]+20+j*4,4)}, {vr(BQ[b]+i*4,4)}, {'0' if zero else vr(acq(i,j),4)}"
              for i, j in snake(5, 7)]
        for x in interleave(mf, other): k(x)
    loop2(readsq, halfq, adv_ins(R, [QA, QBE, QBO]), True)
    k("s_barrier")
    def wq(i, j, n):
        a = acq(i, j); o = (n & 3) * 2
        return [f"v_cvt_pk_bf16_f32 v{o}, v{a}, v{a+1}", f"v_cvt_pk_bf16_f32 v{o+1}, v{a+2}, v{a+3}",
                f"ds_write_b64 v{QW}, {vr(o,2)} offset:{i*16*440+j*32}"]
    n = 0
    for i in range(6):
        mf = [f"v_mfma_f32_16x16x32_bf16 {vr(acq(i,j),4)}, {vr(BQ[1]+20+j*4,4)}, {vr(BQ[1]+i*4,4)}, {vr(acq(i,j),4)}" for j in range(7)] if i < 5 else []
        for j in range(7):
            if mf: k(mf[j])
            if i > 0 and j < 6:
                for x in wq(i - 1, j, n): k(x)
                n += 1
    k("s_mov_b32 exec_hi, s54")
    for i in range(5):
        for x in wq(i, 6, n): k(x)
        n += 1
    k("s_mov_b32 exec_hi, -1")
    k("s_waitcnt lgkmcnt(0)")
    k("v_mbcnt_lo_u32_b32 v0, -1, 0")
    k("v_mbcnt_hi_u32_b32 v0, -1, v0")
    k.label(L["att"])
    k(f"""
    s_and_b32 s55, s33, 3            ; head
    s_lshr_b32 s41, s33, 2
    s_and_b32 s42, s55, 1
    s_lshl_b32 s43, s41, 6
    s_add_u32 s44, s43, 2
    v_add_u32 v2, s44, v0
    v_mul_u32_u24 v2, 440, v2
    s_mul_i32 s44, s55, 36
    s_add_u32 s44, s44, {ATT}
    s_lshl_b32 s45, s42, 2
    s_add_u32 s45, s45, s44
    v_add_u32 v3, s45, v2
    s_xor_b32 s45, s42, 1
    s_lshl_b32 s45, s45, 5
    s_add_u32 s45, s45, s44
    v_add_u32 v2, s45, v2
    s_lshl_b32 s46, s38, 7
    s_add_u32 s46, s46, s43
    v_add_u32 v4, s46, v0            ; t
    s_mov_b32 s21, 0x05040100
    s_mov_b32 s22, 0x07060302
    v_and_b32 v11, 15, v0
    v_lshrrev_b32 v12, 4, v0
    s_lshl_b32 s46, s33, 4
    s_add_u32 s46, s46, 16
    v_add_u32 v13, s46, v11
    v_mul_u32_u24 v13, 440, v13
    v_lshl_add_u32 v13, v12, 4, v13
    v_add_u32 v13, {ATT}, v13
    s_mul_i32 s46, s39, 9
    v_add_u32 v12, s46, v12
    v_lshlrev_b32 v12, 8, v12
    v_lshl_add_u32 v12, v11, 4, v12
    s_lshl_b32 s46, s38, 3
    s_add_u32 s46, s46, s33
    s_mul_i32 s20, s46, {TFS}
    """)
    Lc = k.lab("ac")
    k(f"s_cmp_lt_u32 s33, 4\ns_cbranch_scc1 {Lc}")
    G["setup"]()
    k.label(Lc)
    k("s_barrier")
    st(20)
    Q, KK, VV, LL, PP, OA = 24, 36, 116, 200, 210, 216
    def rdvec(dst, row, part):
        for h in range(4): k(f"ds_read_b64 {vr(dst+2*h,2)}, v3 offset:{row*440+part*144+8*h}")
        k(f"ds_read_b32 v{dst+8}, v2 offset:{row*440+part*144}")
    vecs = [(Q, 14, 0)] + [(KK + 10 * w, 14 - 2 * w, 1) for w in range(8)] + [(VV + 10 * w, 14 - 2 * w, 2) for w in range(8)]
    for v in vecs[:4]: rdvec(*v)
    nxt = 4
    for w in range(8): k(f"v_mov_b32 v{LL+w}, 0")
    for w in range(8):
        k("s_waitcnt lgkmcnt(10)")
        for i in range(9): k(f"v_dot2c_f32_bf16 v{LL+w}, v{Q+i}, v{KK+10*w+i}")
        rdvec(*vecs[nxt]); nxt += 1
    while nxt < len(vecs):
        rdvec(*vecs[nxt]); nxt += 1
    sc = f2u(18.0 ** -0.5)
    def rndL():
        for i in range(4): k(f"v_cvt_pk_bf16_f32 v{PP+i}, v{LL+2*i}, v{LL+2*i+1}")
        for i in range(4):
            k(f"v_lshlrev_b32 v{LL+2*i}, 16, v{PP+i}")
            k(f"v_and_b32 v{LL+2*i+1}, 0xffff0000, v{PP+i}")
    rndL()
    for w in range(8): k(f"v_mul_f32 v{LL+w}, {sc:#x}, v{LL+w}")
    rndL()
    k(f"v_mov_b32 v6, {f2u(-1e9):#x}")
    for w in range(1, 8):
        k(f"v_cmp_le_u32 s[{24+2*(w&1)}:{25+2*(w&1)}], {2*w}, v4")
        if w > 1: k(f"v_cndmask_b32 v{LL+w-1}, v6, v{LL+w-1}, s[{24+2*((w-1)&1)}:{25+2*((w-1)&1)}]")
    k(f"v_cndmask_b32 v{LL+7}, v6, v{LL+7}, s[26:27]")
    k(f"v_max3_f32 v7, v{LL}, v{LL+1}, v{LL+2}")
    k(f"v_max3_f32 v8, v{LL+3}, v{LL+4}, v{LL+5}")
    k(f"v_max3_f32 v7, v7, v{LL+6}, v{LL+7}")
    k(f"v_max_f32 v7, v7, v8")
    l2e = f2u(math.log2(math.e))
    for w in range(8): k(f"v_sub_f32 v{LL+w}, v{LL+w}, v7")
    for w in range(8): k(f"v_mul_f32 v{LL+w}, {l2e:#x}, v{LL+w}")
    for w in range(8): k(f"v_exp_f32 v{LL+w}, v{LL+w}")
    k(f"v_add_f32 v7, v{LL}, v{LL+1}")
    k(f"v_add_f32 v8, v{LL+2}, v{LL+3}")
    k(f"v_add_f32 v9, v{LL+4}, v{LL+5}")
    k(f"v_add_f32 v10, v{LL+6}, v{LL+7}")
    k("v_add_f32 v7, v7, v8\nv_add_f32 v9, v9, v10\nv_add_f32 v7, v7, v9\nv_rcp_f32 v7, v7")
    for w in range(8): k(f"v_mul_f32 v{LL+w}, v{LL+w}, v7")
    for i in range(4): k(f"v_cvt_pk_bf16_f32 v{PP+i}, v{LL+2*i}, v{LL+2*i+1}")
    Lc = k.lab("ac")
    k(f"s_cmp_lt_u32 s33, 4\ns_cbranch_scc1 {Lc}")
    k(f"s_waitcnt vmcnt(0)\nv_cmp_ne_u32 vcc, s101, v248\ns_cbranch_vccnz {Lc}")
    G["B01"]()
    k.label(Lc)
    for i in range(18): k(f"v_mov_b32 v{OA+i}, 0")
    k("s_waitcnt lgkmcnt(0)")
    for wp in range(4):
        x, y = VV + 20 * wp, VV + 20 * wp + 10
        for i in range(9):
            k(f"v_perm_b32 v{KK+2*i}, v{y+i}, v{x+i}, s21")
            k(f"v_perm_b32 v{KK+2*i+1}, v{y+i}, v{x+i}, s22")
        for i in range(18): k(f"v_dot2c_f32_bf16 v{OA+i}, v{KK+i}, v{PP+wp}")
    for i in range(9): k(f"v_cvt_pk_bf16_f32 v{Q+i}, v{OA+2*i}, v{OA+2*i+1}")
    for h in range(4): k(f"ds_write_b64 v3, {vr(Q+2*h,2)} offset:{14*440+8*h}")
    k(f"ds_write_b32 v2, v{Q+8} offset:{14*440}")
    k("s_waitcnt lgkmcnt(0)")
    k("s_barrier")
    for n in range(3):
        k(f"ds_read_b64 {vr(KK+4*n,2)}, v13 offset:{64*n}")
        k(f"ds_read_b64 {vr(KK+4*n+2,2)}, v13 offset:{64*n+8}")
    for n in range(3):
        k(f"s_waitcnt lgkmcnt({4-2*n})")
        if n == 2: k("s_mov_b64 exec, 0xffff")
        k(f"buffer_store_dwordx4 {vr(KK+4*n,4)}, v12, s[16:19], s20 offen offset:{1024*n} sc1")
    k("s_mov_b64 exec, -1")
    if stamps and not fused:
        st(20); k("s_waitcnt vmcnt(0)"); st(20)
    if fused: k(f"s_branch {L['g2X']}")
    else: k("s_endpgm")

def w3_unit(k, issue, ploop):
    Ln, Lg = k.lab("nat"), k.lab("go")
    k(f"""
    s_load_dwordx2 s[28:29], s[0:1], {KA['wo']}
    s_load_dwordx2 s[30:31], s[0:1], {KA['w_out']}
    s_mul_i32 s20, s2, 3
    s_add_u32 s20, s20, s40          ; unit
    s_cmp_lt_u32 s40, 3
    s_cselect_b32 s20, s20, 720
    s_lshr_b32 s21, s20, 3           ; step
    s_and_b32 s22, s20, 7            ; nt
    s_waitcnt lgkmcnt(0)
    s_cmp_lt_u32 s21, 18
    s_cselect_b32 s24, s28, s30
    s_cselect_b32 s25, s29, s31
    s_mov_b32 s26, {2304*1152}
    s_cselect_b32 s26, {576*1152}, s26
    s_mov_b32 s27, 0x20000
    s_cbranch_scc1 {Ln}
    s_sub_u32 s50, s21, 18
    s_mul_i32 s55, s50, 57
    s_lshr_b32 s55, s55, 9           ; u
    s_mul_i32 s56, s55, 9
    s_sub_u32 s56, s50, s56          ; v
    s_mul_i32 s55, s55, 288
    s_lshr_b32 s57, s56, 2
    s_mul_i32 s57, s57, 144
    s_and_b32 s50, s56, 3
    s_lshl_b32 s50, s50, 5
    s_add_u32 s57, s57, s50
    s_cmp_eq_u32 s56, 8
    s_cselect_b32 s57, 128, s57
    s_cselect_b32 s28, 4, 16
    s_cselect_b32 s29, 8, 4
    s_cselect_b32 s30, 144, 8
    s_add_u32 s23, s55, s57
    s_branch {Lg}
    {Ln}:
    s_lshl_b32 s23, s21, 5
    s_mov_b32 s28, 4
    s_mov_b32 s29, 8
    s_mov_b32 s30, 16
    {Lg}:
    s_mul_i32 s23, s23, 1152
    s_mul_i32 s50, s22, 144
    s_add_u32 s23, s23, s50
    s_cmp_lt_u32 s20, 720
    s_cselect_b32 s23, s23, 0x7fffffff
    s_mul_i32 s31, s40, 5120
    s_add_u32 s31, s31, 104448
    s_mov_b32 m0, s31
    """)
    for n in range(5):
        k(f"""
        v_add_u32 v12, {n*64}, v0
        v_mul_u32_u24 v13, 57, v12
        v_lshrrev_b32 v13, 9, v13        ; rho
        v_mul_u32_u24 v14, 9, v13
        v_sub_u32 v12, v12, v14          ; chunk
        v_bfe_u32 v15, v13, 2, 1
        v_mul_u32_u24 v15, s28, v15
        v_bfe_u32 v14, v13, 3, 1
        v_mad_u32_u24 v15, v14, s29, v15
        v_bfe_u32 v14, v13, 4, 1
        v_mad_u32_u24 v15, v14, s30, v15
        v_and_b32 v14, 3, v13
        v_add_u32 v15, v15, v14
        v_mul_u32_u24 v15, 1152, v15
        v_lshl_add_u32 v15, v12, 4, v15
        v_lshrrev_b32 v13, 5, v13
        v_lshl_or_b32 v15, v13, 30, v15
        buffer_load_dwordx4 v15, s[24:27], s23 offen lds
        s_add_u32 m0, m0, 1024
        """)
    k(f"""
    v_lshrrev_b32 v12, 4, v0         ; g
    v_bfe_u32 v13, v0, 2, 2          ; r
    v_and_b32 v14, 3, v0             ; c4
    v_lshl_add_u32 v15, v12, 3, v13
    v_mul_u32_u24 v15, 144, v15
    v_lshl_add_u32 v15, v14, 3, v15
    v_add_u32 v15, s31, v15
    v_and_b32 v12, 1, v12
    v_lshrrev_b32 v16, 1, v14
    v_lshl_add_u32 v12, v12, 1, v16
    v_lshl_add_u32 v12, v12, 3, v13
    v_mul_u32_u24 v12, 144, v12
    v_and_b32 v14, 1, v14
    v_lshl_add_u32 v12, v14, 3, v12
    v_add_u32 v12, s31, v12
    s_lshr_b32 s55, s21, 1
    s_lshl_b32 s55, s55, 3
    s_add_u32 s55, s55, s22
    s_mul_i32 s55, s55, 9216
    s_and_b32 s56, s21, 1
    s_lshl_b32 s57, s56, 9
    s_add_u32 s57, s57, s55
    s_add_u32 s57, s57, 8192
    s_lshl_b32 s56, s56, 10
    s_add_u32 s55, s55, s56
    s_add_u32 s56, s55, 4096
    """)
    ploop(2, issue, 14)
    ploop(1, issue, 9)
    for j in range(4):
        k(f"ds_read_b64_tr_b16 {vr(20+j*4,2)}, v15 offset:{j*32}")
        k(f"ds_read_b64_tr_b16 {vr(22+j*4,2)}, v15 offset:{j*32+576}")
    k("ds_read_b64_tr_b16 v[36:37], v12 offset:128")
    k(f"ds_read_b64_tr_b16 v[38:39], v12 offset:{128+576}")
    for j in range(4):
        k(f"s_waitcnt lgkmcnt({8-2*j})")
        k(f"buffer_store_dwordx4 {vr(20+j*4,4)}, v1, s[68:71], s{55+(j>>1)} offen offset:{(j&1)*2048} sc1")
    k("s_waitcnt lgkmcnt(0)")
    k("s_mov_b32 exec_hi, 0")
    k("buffer_store_dwordx4 v[36:39], v1, s[68:71], s57 offen sc1")
    k("s_mov_b32 exec_hi, -1")
    ploop(2, issue, 14)
    ploop(1, issue, 9)

S2, R2, SZ2, BO2 = 32, 3, 34816, 16384
ZS = 126976
S3, R3, SZ3, BO3, LA3, SL0 = 45, 7, 17408, 8192, 4, 5
PL, PF, PA = 244, 245, 246

def tiles(k):
    k("""
    s_and_b32 s38, s34, 3
    s_lshl_b32 s38, s38, 3
    s_and_b32 s39, s35, 7
    s_add_u32 s38, s38, s39
    s_lshr_b32 s39, s34, 2
    s_lshl_b32 s39, s39, 2
    s_lshr_b32 s50, s35, 3
    s_add_u32 s39, s39, s50          ; nt3
    """)

def g2_hooks(k):
    def issueA():
        k("s_add_u32 m0, s41, s49")
        for n in range(4):
            if n: k(f"s_add_u32 m0, m0, 1024\ns_add_u32 s50, s42, {n*32768}")
            k(f"buffer_load_dwordx4 v{PA+(n&1)}, s[8:11], s{50 if n else 42} offen lds")
        k("s_add_u32 s42, s42, 128")
    def issueB():
        lin_dma(k, 4, 12, 43, 47, 49, vl16=PL, mods=" sc1")
        k("s_add_u32 m0, s45, s49")
        k("s_mov_b32 exec_hi, 0")
        k(f"buffer_load_dwordx4 v{PL}, s[12:15], s46 offen sc1 lds")
        k("s_mov_b32 exec_hi, -1")
        k(f"s_add_u32 s43, s43, {144*2048}")
        k(f"s_add_u32 s46, s46, {144*2048}")
    def poll(): k(f"buffer_load_dword v248, v{PF}, s[84:87], s53 offen sc1")
    def setup():
        srd(k, 8, 66, 0, 2048 * 4096)
        srd(k, 12, 4, Z2T_OFF, Z2T_SZ)
        k(f"""
        v_lshlrev_b32 v{PL}, 4, v0
        v_lshlrev_b32 v{PF}, 2, v0
        v_lshrrev_b32 v{PA+1}, 4, v0
        v_and_b32 v{PA}, 7, v0
        v_xor_b32 v{PA}, v{PA}, v{PA+1}
        v_lshrrev_b32 v{PA+1}, 3, v0
        v_lshlrev_b32 v{PA+1}, 12, v{PA+1}
        v_lshl_add_u32 v{PA}, v{PA}, 4, v{PA+1}
        v_xor_b32 v{PA+1}, 64, v{PA}
        s_lshl_b32 s41, s40, 12
        s_lshl_b32 s42, s36, 19
        s_lshl_b32 s50, s40, 17
        s_add_u32 s42, s42, s50          ; A goff
        s_mul_i32 s43, s37, 18432
        s_lshl_b32 s45, s40, 9
        s_add_u32 s46, s43, s45
        s_add_u32 s46, s46, 16384        ; B2 goff
        s_add_u32 s43, s43, s41          ; B goff
        s_add_u32 s47, s41, {BO2}
        s_add_u32 s45, s45, {BO2+16384}
        s_lshl_b32 s53, s37, 8
        s_add_u32 s53, s53, {F2}
        s_mov_b32 s100, 0
        s_mov_b32 s49, 0
        """)
        issueA()
        k(f"s_mov_b32 s49, {SZ2}")
        issueA()
        poll()
    def B01():
        k("s_mov_b32 s49, 0")
        issueB()
        k(f"s_mov_b32 s49, {SZ2}")
        issueB()
        k(f"s_mov_b32 s49, {2*SZ2}\ns_mov_b32 s100, 1")
    return dict(setup=setup, B01=B01, issueA=issueA, issueB=issueB, poll=poll)

def g23_body(k, st, L, G):
    R, SZ, BO = R2, SZ2, BO2
    stamps = st.on
    k.label(L["g2X"])
    k(f"s_cmp_ge_u32 s33, 4\ns_cbranch_scc1 {L['g2D2']}")
    k.label(L["g2C"])
    ACC, BUF, ZR, XT, BR, BP, T = 72, [0, 36], 152, 192, 204, 208, 216
    VA0, VA1, VB, VL16, VT, GO = 248, 249, 250, 251, 252, 240
    acc = lambda i, j: ACC + (i * 5 + j) * 4
    k(f"""
    s_load_dwordx2 s[6:7], s[0:1], {KA['b_sp']}
    s_load_dwordx2 s[64:65], s[0:1], {KA['x']}
    s_load_dwordx2 s[66:67], s[0:1], {KA['out']}
    v_mbcnt_lo_u32_b32 v{VL16}, -1, 0
    v_mbcnt_hi_u32_b32 v{VL16}, -1, v{VL16}
    v_lshlrev_b32 v{VL16}, 4, v{VL16}
    s_and_b32 s40, s33, 1            ; wm
    s_lshr_b32 s41, s33, 1           ; wn
    v_bfe_u32 v{T}, v{VL16}, 4, 4        ; row
    v_lshrrev_b32 v{T+1}, 8, v{VL16}     ; q
    v_lshrrev_b32 v{VA0}, 1, v{T}
    v_xor_b32 v{VA0}, v{T+1}, v{VA0}
    v_lshlrev_b32 v{VA0}, 4, v{VA0}
    v_lshl_add_u32 v{VA0}, v{T}, 7, v{VA0}
    s_lshl_b32 s42, s40, 13
    v_add_u32 v{VA0}, s42, v{VA0}
    v_xor_b32 v{VA1}, 64, v{VA0}
    s_lshl_b32 s43, s41, 13
    s_add_u32 s43, s43, {BO}
    v_add_u32 v{VB}, s43, v{VL16}
    s_cmp_eq_u32 s41, 0
    s_cselect_b64 vcc, -1, 0
    """)
    adv_setup(k, R, SZ)
    st()
    def reads(sub, b):
        o = [f"ds_read_b128 {vr(BUF[b]+i*4,4)}, v{VA1 if sub else VA0} offset:{i*2048}" for i in range(4)]
        o += [f"ds_read_b128 {vr(BUF[b]+16+j*4,4)}, v{VB} offset:{(j if j < 4 else 8)*2048+sub*1024}" for j in range(5)]
        return o
    def mf(b, seq, zero):
        return [f"v_mfma_f32_16x16x32_bf16 {vr(acc(i,j),4)}, {vr(BUF[b]+16+j*4,4)}, {vr(BUF[b]+i*4,4)}, {'0' if zero else vr(acc(i,j),4)}"
                for i, j in seq]
    def half(b, other, zero):
        for x in interleave(mf(b, snake(4, 4), zero), other): k(x)
        Ls = k.lab("sk")
        k(f"s_cbranch_vccz {Ls}")
        for x in mf(b, [(3 - i, 4) for i in range(4)], zero): k(x)
        k.label(Ls)
    adv = adv_ins(R, [VA0, VA1, VB])
    k("s_barrier")
    st()
    for r in reads(0, 0): k(r)
    tiles(k)
    k(f"""
    s_lshl_b32 s46, s36, 3
    s_lshl_b32 s47, s40, 2
    s_add_u32 s46, s46, s47          ; tfrag0
    s_mul_i32 s60, s46, {TFS}
    s_lshr_b32 s47, s37, 1
    s_mul_i32 s47, s47, 9216
    s_add_u32 s60, s60, s47
    s_and_b32 s47, s37, 1
    s_lshl_b32 s62, s47, 9
    s_add_u32 s62, s62, s60
    s_add_u32 s62, s62, {(18+8)*1024}
    s_lshl_b32 s47, s47, 12
    s_add_u32 s60, s60, s47
    s_lshl_b32 s47, s41, 11
    s_add_u32 s60, s60, s47
    s_add_u32 s60, s60, {18*1024}
    s_mul_i32 s48, s40, {4*4608}
    s_add_u32 s48, s48, {ZS}
    s_mov_b32 s58, 31
    s_waitcnt lgkmcnt(0)
    """)
    srd(k, 16, 4, A3_OFF, A3_SZ)
    srd(k, 24, 6, 0, 4096)
    srd(k, 72, 64, 0, 2048 * 1152)
    srd(k, 76, 66, 0, 2048 * 1152)
    srd(k, 84, 4, FLG_OFF, FLG_SZ)
    pre = f"""
    s_lshl_b32 s47, s46, 4
    v_add_lshl_u32 v{T+2}, s47, v{T}, 1
    v_mul_u32_u24 v{GO}, 1152, v{T}
    v_lshl_add_u32 v{GO}, v{T+1}, 3, v{GO}
    s_lshl_b32 s52, s38, 2
    s_lshl_b32 s47, s40, 1
    s_add_u32 s52, s52, s47
    s_add_u32 s52, s52, s41
    s_mul_i32 s47, s52, {16*1152}
    s_mul_i32 s50, s39, 144
    s_add_u32 s47, s47, s50
    v_lshrrev_b32 v{T+3}, 1, v{T+1}
    v_lshlrev_b32 v{T+3}, 8, v{T+3}
    v_lshl_add_u32 v{T+3}, v{T}, 4, v{T+3}
    v_and_b32 v{VT}, 1, v{T+1}
    v_lshl_add_u32 v{VT}, v{VT}, 3, v{T+3}
    """.strip().split("\n")
    pre = [x.strip() for x in pre]
    pre += [f"buffer_load_ushort v{BR+i}, v{T+2}, s[24:27], 0 offen offset:{32*i}" for i in range(4)]
    pre += [f"buffer_load_dwordx2 {vr(XT+2*j,2)}, v{GO}, s[72:75], s47 offen offset:{j*32}" for j in range(5)]
    half(0, reads(1, 1) + adv, True)
    for x in pre: k(x)
    k("s_waitcnt lgkmcnt(0)")
    Ltop = k.lab("top")
    k.label(Ltop)
    k("s_barrier")
    half(1, reads(0, 0), False)
    k("s_waitcnt lgkmcnt(0)")
    half(0, reads(1, 1) + adv + CNT, False)
    k(f"s_waitcnt vmcnt(0) lgkmcnt(0)")
    k(f"s_cbranch_scc1 {Ltop}")
    k("s_barrier")
    st()
    k(f"""
    s_lshl_b32 s50, s41, 11
    s_add_u32 s50, s50, s48
    v_add_u32 v{VA0}, s50, v{VL16}
    v_add_u32 v{VA1}, s48, v{VT}
    """)
    zr = []
    for i in range(4):
        for p in range(2): zr.append(f"ds_read_b128 {vr(ZR+i*10+p*4,4)}, v{VA0} offset:{i*4608+p*1024}")
        zr.append(f"ds_read_b64 {vr(ZR+i*10+8,2)}, v{VA1} offset:{i*4608+4096}")
    for i in range(4): zr += [f"v_lshlrev_b32 v{BP+2*i}, 16, v{BR+i}", f"v_lshlrev_b32 v{BP+2*i+1}, 16, v{BR+i}"]
    half(1, zr, False)
    G0, G1, GB, GBH = 241, 242, 243, 244
    k(f"""
    s_lshl_b32 s42, s40, 12
    s_lshl_b32 s43, s41, 10
    s_add_u32 s42, s42, s43
    s_add_u32 s42, s42, {SL0*SZ3}
    s_lshl_b32 s44, s41, 11
    s_add_u32 s45, s42, s44
    v_add_u32 v{G0}, s45, v{VL16}
    s_xor_b32 s44, s44, 2048
    s_add_u32 s45, s42, s44
    v_add_u32 v{G1}, s45, v{VL16}
    s_add_u32 s45, s43, {BO3+SL0*SZ3}
    v_add_u32 v{GB}, s45, v{VL16}
    v_and_b32 v{T}, 7, v{T}
    v_lshl_add_u32 v{T}, v{T+1}, 3, v{T}
    v_lshlrev_b32 v{T}, 4, v{T}
    s_lshl_b32 s45, s41, 9
    s_add_u32 s45, s45, {BO3+8192+SL0*SZ3}
    v_add_u32 v{GBH}, s45, v{T}
    s_waitcnt lgkmcnt(0)
    """)
    st()
    def quad(i, j, n):
        a, z, t = acc(i, j), ZR + i * 10 + j * 2, T + (n & 1) * 4
        k(f"""
        v_pk_add_f32 {vr(a,2)}, {vr(a,2)}, {vr(BP+2*i,2)}
        v_pk_add_f32 {vr(a+2,2)}, {vr(a+2,2)}, {vr(BP+2*i,2)}
        v_lshlrev_b32 v{t}, 16, v{z}
        v_and_b32 v{t+1}, 0xffff0000, v{z}
        v_lshlrev_b32 v{t+2}, 16, v{z+1}
        v_and_b32 v{t+3}, 0xffff0000, v{z+1}
        v_pk_mul_f32 {vr(a,2)}, {vr(a,2)}, {vr(t,2)}
        v_pk_mul_f32 {vr(a+2,2)}, {vr(a+2,2)}, {vr(t+2,2)}
        v_cvt_pk_bf16_f32 v{z}, v{a}, v{a+1}
        v_cvt_pk_bf16_f32 v{z+1}, v{a+2}, v{a+3}
        """)
    n = 0
    for i in range(4):
        for j in range(4):
            quad(i, j, n); n += 1
            if j & 1: k(f"buffer_store_dwordx4 {vr(ZR+i*10+(j>>1)*4,4)}, v{VL16}, s[16:19], s60 offen offset:{(j>>1)*1024} sc1")
        if i < 3: k(f"s_add_u32 s60, s60, {TFS}")
    Ls = k.lab("es")
    k(f"s_cbranch_vccz {Ls}")
    for i in range(4):
        quad(i, 4, n); n += 1
        k(f"buffer_store_dwordx2 {vr(ZR+i*10+8,2)}, v{VT}, s[16:19], s62 offen sc1")
        if i < 3: k(f"s_add_u32 s62, s62, {TFS}")
    k.label(Ls)
    AC3, BU3 = 72, [0, 28]
    ac3 = lambda i, j: AC3 + (i * 5 + j) * 4
    for j in range(5):
        for h in range(2):
            k(f"v_lshlrev_b32 v{ac3(0,j)+2*h}, 16, v{XT+2*j+h}")
            k(f"v_and_b32 v{ac3(0,j)+2*h+1}, 0xffff0000, v{XT+2*j+h}")
    for r in range(ac3(1, 0), ac3(1, 4) + 4): k(f"v_mov_b32 v{r}, 0")
    adv_setup(k, R3, SZ3)
    k(f"s_mov_b32 s59, {SL0}")
    st()
    k("s_waitcnt vmcnt(0)")
    set_flag(k, f"s_lshl_b32 s50, s36, 8\ns_lshl_b32 s51, s37, 4\ns_add_u32 s50, s50, s51\ns_lshl_b32 s51, s33, 2\ns_add_u32 s50, s50, s51\ns_add_u32 s50, s50, {F4}", 60)
    def reads3(sub, b):
        o = [f"ds_read_b128 {vr(BU3[b],4)}, v{G0}", f"ds_read_b128 {vr(BU3[b]+4,4)}, v{G1}"]
        o += [f"ds_read_b128 {vr(BU3[b]+8+j*4,4)}, v{GB} offset:{j*2048}" for j in range(4)]
        o += [f"ds_read_b128 {vr(BU3[b]+24,4)}, v{GBH}"]
        return o
    def mf3(b):
        return [f"v_mfma_f32_16x16x32_bf16 {vr(ac3(i,j),4)}, {vr(BU3[b]+8+j*4,4)}, {vr(BU3[b]+i*4,4)}, {vr(ac3(i,j),4)}"
                for i, j in snake(2, 5)]
    last = consumer_loop(k, S3, 1, reads3, mf3, adv_ins(R3, [G0, G1, GB, GBH]), True, st=st)
    st()
    for m in mf3(last): k(m)
    k("s_lshl_b32 s42, s40, 1")
    ksplit_reduce(k, ac3(1, 0), 5, 42, 41, VL16, G0, G1, 0)
    for n in range(5): k(f"ds_read_b128 {vr(ac3(1,0)+n*4,4)}, v{G1} offset:{n*1024}")
    for j in range(5):
        k(f"s_waitcnt lgkmcnt({4-j})")
        a, b = ac3(0, j), ac3(1, j)
        k(f"v_pk_add_f32 {vr(a,2)}, {vr(a,2)}, {vr(b,2)}")
        k(f"v_pk_add_f32 {vr(a+2,2)}, {vr(a+2,2)}, {vr(b+2,2)}")
        k(f"v_cvt_pk_bf16_f32 v{2*j}, v{a}, v{a+1}")
        k(f"v_cvt_pk_bf16_f32 v{2*j+1}, v{a+2}, v{a+3}")
        if j == 4: k("s_mov_b32 exec_hi, 0")
        k(f"buffer_store_dwordx2 {vr(2*j,2)}, v{GO}, s[76:79], s47 offen offset:{j*32}")
    if stamps:
        k("s_mov_b32 exec_hi, -1")
        st(); k("s_waitcnt vmcnt(0)"); st()
    k("s_endpgm")
    k.label(L["g2D"])
    G["setup"]()
    k.label(L["g2D2"])
    if OPT.get("pd", 3): k(f"s_setprio {OPT.get('pd', 3)}")
    Lb = k.lab("bd")
    k(f"s_cmp_lg_u32 s100, 0\ns_cbranch_scc1 {Lb}")
    k("s_waitcnt vmcnt(0)")
    spin(k, G["poll"], lambda: k("v_cmp_ne_u32 vcc, s101, v248"))
    G["B01"]()
    k.label(Lb)
    def issue():
        G["issueA"](); G["issueB"](); slot_adv_prod(k, R, SZ, 49)
    def ploop(n, iss, allowed):
        Lp = k.lab("pl")
        k(f"s_mov_b32 s58, {n}")
        k.label(Lp)
        k(f"s_waitcnt vmcnt({allowed})")
        k("s_barrier")
        iss()
        k(f"s_sub_u32 s58, s58, 1\ns_cmp_lg_u32 s58, 0\ns_cbranch_scc1 {Lp}")
    tiles(k)
    srd(k, 68, 4, W3_OFF, W3_SZ)
    k(f"""
    v_mov_b32 v1, v{PL}
    s_lshl_b32 s60, s40, 11          ; g3 A lds
    s_lshl_b32 s61, s38, 2
    s_add_u32 s61, s61, s40
    s_mul_i32 s61, s61, {TFS}        ; g3 A goff
    s_mul_i32 s62, s39, 9216
    s_lshl_b32 s63, s40, 8
    s_add_u32 s48, s62, s63
    s_add_u32 s48, s48, 8192         ; g3 B2 goff
    s_add_u32 s62, s62, s60          ; g3 B goff
    s_add_u32 s65, s60, {BO3}
    s_add_u32 s66, s63, {BO3+8192}
    s_mov_b32 s67, {SL0*SZ3}
    s_lshl_b32 s51, s36, 3
    s_lshl_b32 s52, s40, 1
    s_add_u32 s51, s51, s52
    s_mul_i32 s51, s51, {TFS}
    s_lshr_b32 s50, s37, 1
    s_mul_i32 s50, s50, 9216
    s_add_u32 s51, s51, s50
    s_and_b32 s50, s37, 1
    s_lshl_b32 s44, s50, 9
    s_add_u32 s44, s44, s51
    s_add_u32 s44, s44, {26*1024}
    s_lshl_b32 s50, s50, 12
    s_add_u32 s51, s51, s50
    s_add_u32 s51, s51, {18*1024}
    s_mul_i32 s52, s52, 4608
    s_add_u32 s52, s52, {ZS}
    s_lshr_b32 s53, s38, 1
    s_lshl_b32 s53, s53, 8
    s_add_u32 s53, s53, {F4}
    s_movk_i32 s54, {F3}
    """)
    ZB = OPT.get("zb", 21)
    ploop(1, issue, 5)
    ploop(3, issue, 9)
    w3_unit(k, issue, ploop)
    Ls = k.lab("f3")
    k(f"s_cmp_lg_u32 s40, 0\ns_cbranch_scc1 {Ls}")
    set_flag(k, f"s_lshl_b32 s50, s2, 2\ns_add_u32 s50, s50, {F3}", 8)
    k.label(Ls)
    ploop(ZB - 11, issue, 9)
    ld = lambda: k("buffer_load_dwordx4 v[8:11], v1, s[84:87], s54 offen sc1")
    ld()
    ploop(1, issue, 10)
    k("s_waitcnt vmcnt(9)")
    spin(k, ld, lambda: k("v_xor_b32 v8, s101, v8\nv_xor_b32 v9, s101, v9\nv_xor_b32 v10, s101, v10\nv_xor_b32 v11, s101, v11\nv_or3_b32 v8, v8, v9, v10\nv_or_b32 v8, v8, v11\nv_cmp_ne_u32 vcc, 0, v8"))
    for e in range(2):
        k(f"s_add_u32 m0, s52, {e*4608}")
        for n in range(4): k(f"buffer_load_dwordx4 v1, s[16:19], s51 offen offset:{n*1024} sc1 lds")
        k(f"s_add_u32 m0, s52, {e*4608+4096}")
        k("s_mov_b32 exec_hi, 0")
        k(f"buffer_load_dwordx4 v1, s[16:19], s44 offen sc1 lds")
        k("s_mov_b32 exec_hi, -1")
        k(f"s_add_u32 s51, s51, {TFS}\ns_add_u32 s44, s44, {TFS}")
    ploop(2, issue, 19)
    ploop(30 - ZB - 2, issue, 9)
    def issue3():
        k("s_add_u32 m0, s60, s67")
        for n in range(2): k(f"buffer_load_dwordx4 v1, s[16:19], s61 offen offset:{n*1024} sc1 lds")
        k("s_add_u32 m0, s65, s67")
        for n in range(2): k(f"buffer_load_dwordx4 v1, s[68:71], s62 offen offset:{n*1024} sc1 lds")
        k("s_add_u32 m0, s66, s67")
        k("s_mov_b64 exec, 0xffff")
        k(f"buffer_load_dwordx4 v1, s[68:71], s48 offen sc1 lds")
        k("s_mov_b64 exec, -1")
        k(f"s_add_u32 s61, s61, 2048")
        k(f"s_add_u32 s62, s62, {8*9216}")
        k(f"s_add_u32 s48, s48, {8*9216}")
        slot_adv_prod(k, R3, SZ3, 67)
    k("s_waitcnt vmcnt(9)")
    k("s_barrier")
    issue3(); issue3()
    k("s_waitcnt vmcnt(10)")
    k("s_barrier")
    k("s_barrier")
    issue3(); issue3()
    NW = 0
    if OPT.get("w3l2", 0):
        k(f"""
        s_lshr_b32 s50, s34, 2
        s_mul_i32 s50, s50, {4*9216}
        s_mul_i32 s55, s35, {8*9216}
        s_add_u32 s50, s50, s55
        s_mul_i32 s55, s40, 9216
        s_add_u32 s50, s50, s55
        v_lshlrev_b32 v12, 7, v0
        buffer_load_dword v13, v12, s[68:71], s50 offen
        s_add_u32 s50, s50, {32*8*9216}
        buffer_load_dword v14, v12, s[68:71], s50 offen
        """)
        NW = 2
    ploop(3, issue3, 15 + NW)
    ploop(1, issue3, 15)
    ld4 = lambda: k(f"buffer_load_dword v4, v{PF}, s[84:87], s53 offen sc1")
    ld4()
    k("s_waitcnt vmcnt(16)")
    k("s_barrier")
    issue3()
    k("s_waitcnt vmcnt(16)")
    k("s_barrier")
    k("s_waitcnt vmcnt(5)")
    spin(k, ld4, lambda: k("v_cmp_ne_u32 vcc, s101, v4"))
    issue3()
    ploop(S3 - LA3 - 6, issue3, 15)
    for b in range(S3 - LA3, S3):
        k(f"s_waitcnt vmcnt({(S3-1-b)*5})")
        k("s_barrier")
    k("s_endpgm")

class DbgStamps:
    def __init__(self, k): self.k, self.on, self.n = k, True, 0
    def init(self):
        k = self.k
        k(f"s_load_dwordx2 s[90:91], s[0:1], {KA['dbg']}\ns_waitcnt lgkmcnt(0)")
        srd(k, 96, 90, 0, 256)
        k("s_mov_b32 s95, 4")
    def __call__(self, v=254):
        k = self.k
        self.n += 1
        if self.n <= 3: return
        L = k.lab("ds")
        k(f"""
        s_cmp_lg_u32 s33, 0
        s_cbranch_scc1 {L}
        s_memrealtime s[92:93]
        s_waitcnt lgkmcnt(0)
        s_sub_u32 s92, s92, s101
        v_mov_b32 v{v}, s92
        v_mov_b32 v{v-1}, 0
        s_mov_b64 exec, 1
        buffer_atomic_umax v{v}, v{v-1}, s[96:99], s95 offen
        s_mov_b64 exec, -1
        s_add_u32 s95, s95, 4
        {L}:
        """)

def gen_main(name, stamps=False):
    k = Kern(name); st = Stamps(k, stamps, 1)
    if OPT.get("dbg", 0): st = DbgStamps(k)
    L = {n: k.lab(n) for n in "end D C2q att g2C g2D g2D2 g2X".split()}
    preamble(k, 256, L["end"], [(4, "ws"), (6, "w_in"), (64, "wqkv"), (66, "w_sp"), (68, "x"), (74, "dbg")])
    k("s_mov_b32 s101, 1\ns_mov_b32 s100, 0")
    for r in range(244, 249): k(f"v_mov_b32 v{r}, 0")
    G = g2_hooks(k)
    k1_body(k, st, L, True, True, G)
    g23_body(k, st, L, G)
    k.label(L["end"])
    k("s_endpgm")
    return k

if __name__ == "__main__":
    HEADER = open("parallel_sum__sliding_local_dilated__mixer_gmlp__prompt.s.ref").read().split("; Override launch")[0]
    stamps = "stamps" in sys.argv[2:]
    for a in sys.argv[2:]:
        if "=" in a: OPT[a.split("=")[0]] = int(a.split("=")[1])
    ks = [(gen_main("parallel_sum__sliding_local_dilated__mixer_gmlp__prompt_kernel", stamps), 256, 256, 512, 163840)]
    txt = assemble_file(HEADER + "; generated by a python script (tile loops, fragment layouts and wait states hand-designed)\n", ks)
    if "plain" in sys.argv[2:]:
        txt = re.sub(r"; @launch kernel=\S+ grid", "; @launch grid", txt)
    open(sys.argv[1], "w").write(txt)
```

```python
import sys, math, re
from asmlib import *
import gen2
from gen2 import *
from gen4 import reduce16

FLG_OFF = 0x3430000; FLG_SZ = 32768
F5 = 13312
W1_OFF = WSP_OFF; W1_SZ = 16 * 9 * 18432
WQ_REL = W1_SZ; W12_SZ = W1_SZ + 8 * 9 * 28672
F0 = 16384
F1, F2, F4, F3 = 0, 4096, 8192, 12288
TFS = 90 * 1024
ATT = 69632
HSC = 153600

def snake(no, ni):
    return [(o, i if o % 2 == 0 else ni - 1 - i) for o in range(no) for i in range(ni)]

def w144_voff(k, d, sid, pitch):
    k(f"""
    v_add_u32 v2, s{sid}, v0
    v_mul_u32_u24 v3, 3641, v2
    v_lshrrev_b32 v3, 16, v3
    v_mul_u32_u24 v4, 18, v3
    v_sub_u32 v2, v2, v4
    v_and_b32 v4, 4, v3
    v_and_b32 v5, 8, v3
    v_lshlrev_b32 v4, 1, v4
    v_lshrrev_b32 v5, 1, v5
    v_and_b32 v3, 0x33, v3
    v_or3_b32 v3, v3, v4, v5
    v_mul_u32_u24 v3, {pitch}, v3
    v_lshl_add_u32 v{d}, v2, 4, v3
    """)
def qkv_voff(k, d, sid):
    k(f"""
    v_add_u32 v2, s{sid}, v0
    v_mul_u32_u24 v3, 2341, v2
    v_lshrrev_b32 v3, 16, v3
    v_mul_u32_u24 v4, 28, v3
    v_sub_u32 v2, v2, v4
    v_and_b32 v4, 4, v3
    v_lshrrev_b32 v5, 1, v4
    v_xor_b32 v2, v2, v5
    v_lshlrev_b32 v4, 1, v4
    v_and_b32 v5, 8, v3
    v_lshrrev_b32 v5, 1, v5
    v_and_b32 v3, 0x33, v3
    v_or3_b32 v3, v3, v4, v5
    v_mul_u32_u24 v3, 3456, v3
    v_mul_u32_u24 v4, 57, v2
    v_lshrrev_b32 v4, 9, v4
    v_mul_u32_u24 v5, {1152-144}, v4
    v_lshl_add_u32 v5, v2, 4, v5
    v_add_u32 v3, v3, v5
    v_mov_b32 v5, 0x80000000
    v_cmp_gt_u32 vcc, 27, v2
    v_cndmask_b32 v{d}, v5, v3, vcc
    """)

def lin_dma(k, n, srdr, soff, mbase, slot, vl16=1, mods=""):
    for g in range(0, n, 4):
        if g == 0:
            k(f"s_add_u32 m0, s{mbase}, s{slot}"); so = soff
        else:
            k("s_add_u32 m0, m0, 4096"); k(f"s_add_u32 s50, s{soff}, {g*1024}"); so = 50
        for i in range(min(4, n - g)):
            k(f"buffer_load_dwordx4 v{vl16}, s[{srdr}:{srdr+3}], s{so} offen offset:{i*1024}{mods} lds")
def gat_dma(k, n, srdr, soff, mbase, slot, V):
    k(f"s_add_u32 m0, s{mbase}, s{slot}")
    for i in range(n):
        if i: k("s_add_u32 m0, m0, 1024")
        k(f"buffer_load_dwordx4 v{V+i}, s[{srdr}:{srdr+3}], s{soff} offen lds")

def spin(k, load, check):
    Lp, Ld = k.lab("sp"), k.lab("sd")
    check()
    k(f"s_cbranch_vccz {Ld}")
    k("s_mov_b32 s50, 0x8000")
    k.label(Lp)
    k(f"s_sleep {OPT.get('slp', 4)}")
    load()
    k("s_waitcnt vmcnt(0)")
    k("s_sub_u32 s50, s50, 1")
    check()
    k("s_cmp_eq_u32 s50, 0")
    k("s_cselect_b64 vcc, 0, vcc")
    k(f"s_cbranch_vccnz {Lp}")
    k.label(Ld)

def set_flag(k, soff_expr_lines, vt):
    k(soff_expr_lines)
    k(f"""
    v_mov_b32 v{vt}, s101
    v_mov_b32 v{vt+1}, 0
    s_mov_b64 exec, 1
    buffer_store_dword v{vt}, v{vt+1}, s[84:87], s50 offen sc1
    s_mov_b64 exec, -1
    """)

CNT = ["s_sub_u32 s58, s58, 1", "s_cmp_lg_u32 s58, 0"]


def phase0(k, st, L):
    SZ = 51200
    Lw, Ld, Ln6, Lnz, Lnt = k.lab("w3"), k.lab("p0d"), k.lab("n6"), k.lab("nz"), k.lab("nt")
    srd(k, 84, 4, FLG_OFF, FLG_SZ)
    k(f"""
    s_cmp_lg_u32 s33, 7
    s_cbranch_scc1 {Lnz}
    s_lshl_b32 s50, s36, 8
    s_lshl_b32 s51, s37, 4
    s_add_u32 s50, s50, s51
    s_lshl_b32 s51, s37, 8
    s_lshl_b32 s52, s36, 4
    s_add_u32 s51, s51, s52
    s_add_u32 s51, s51, {F2}
    s_add_u32 s52, s50, {F4}
    s_lshl_b32 s53, s2, 2
    s_add_u32 s53, s53, {F3}
    v_mov_b32 v4, s50
    v_writelane_b32 v4, s51, 1
    v_writelane_b32 v4, s52, 2
    v_writelane_b32 v4, s53, 3
    s_lshl_b32 s53, s44, 2
    s_add_u32 s53, s53, {F5}
    v_writelane_b32 v4, s53, 4
    s_mov_b64 exec, 31
    buffer_load_dword v241, v4, s[84:87], 0 offen
    s_mov_b64 exec, -1
    {Lnz}:
    s_cmp_lg_u32 s33, 6
    s_cbranch_scc1 {Lnt}
    """)
    srd(k, 28, 74, 0, 256)
    Lrd, Lgot = k.lab("rd"), k.lab("got")
    k(f"""
    v_mov_b32 v4, 0
    s_mov_b64 exec, 1
    s_cmp_lg_u32 s2, 0
    s_cbranch_scc1 {Lrd}
    s_memrealtime s[50:51]
    s_waitcnt lgkmcnt(0)
    s_or_b32 s50, s50, 1
    v_mov_b32 v5, s50
    buffer_store_dword v5, v4, s[28:31], 0 offen sc1
    s_branch {Lgot}
    {Lrd}:
    """)
    ldn = lambda: k("buffer_load_dword v5, v4, s[28:31], 0 offen sc1")
    ldn(); k("s_waitcnt vmcnt(0)")
    spin(k, ldn, lambda: k("v_cmp_eq_u32 vcc, 0, v5"))
    k(f"""
    {Lgot}:
    v_readfirstlane_b32 s101, v5
    v_mov_b32 v4, {HSC}
    ds_write_b32 v4, v5
    s_mov_b64 exec, -1
    {Lnt}:
    s_cmp_eq_u32 s32, 0
    s_cbranch_scc1 {Lw}
    """)
    k(f"""
    s_cmp_ge_u32 s33, 6
    s_cbranch_scc1 {Ln6}
    v_mul_u32_u24 v5, 112, v2
    v_add_u32 v5, {2*SZ}, v5
    s_lshl_b32 s46, s33, 4
    v_lshl_add_u32 v6, v3, 2, v5
    v_add_u32 v6, s46, v6
    s_mul_i32 s46, s33, 3
    s_lshl_b32 s47, s44, 11
    """)
    for i in range(3):
        k(f"""
        s_add_u32 s50, s46, {i}
        s_lshr_b32 s51, s50, 1
        s_lshl_b32 s51, s51, 18
        s_and_b32 s50, s50, 1
        s_lshl_b32 s50, s50, 10
        s_add_u32 s51, s51, s50
        s_add_u32 s{60+i}, s51, s47
        """)
    k("s_waitcnt vmcnt(0)")
    X, D = 20, 68
    for i in range(12):
        k(f"v_lshlrev_b32 v{X+2*i}, 16, v{8+i}")
        k(f"v_and_b32 v{X+2*i+1}, 0xffff0000, v{8+i}")
    def tree(base, n, dst):
        k(f"v_pk_add_f32 v[92:93], {vr(base,2)}, {vr(base+2,2)}")
        k(f"v_pk_add_f32 v[94:95], {vr(base+4,2)}, {vr(base+6,2)}")
        for i in range(4, n // 2): k(f"v_pk_add_f32 {vr(92+2*(i&1),2)}, {vr(92+2*(i&1),2)}, {vr(base+2*i,2)}")
        k("v_pk_add_f32 v[92:93], v[92:93], v[94:95]")
        k(f"v_add_f32 v{dst}, v92, v93")
    tree(X, 24, 96)
    k("ds_write_b32 v6, v96")
    k("s_waitcnt lgkmcnt(0)")
    k("s_barrier")
    for i in range(6): k(f"ds_read_b128 {vr(44+4*i,4)}, v5 offset:{i*16}")
    k("s_waitcnt lgkmcnt(0)")
    tree(44, 24, 96)
    k(f"v_mul_f32 v96, {f2u(1.0/576):#x}, v96")
    k("v_mov_b32 v97, v96")
    for i in range(12): k(f"v_pk_add_f32 {vr(D+2*i,2)}, {vr(X+2*i,2)}, v[96:97] neg_lo:[0,1] neg_hi:[0,1]")
    k(f"v_pk_mul_f32 v[92:93], {vr(D,2)}, {vr(D,2)}")
    k(f"v_pk_mul_f32 v[94:95], {vr(D+2,2)}, {vr(D+2,2)}")
    for i in range(2, 12): k(f"v_pk_fma_f32 {vr(92+2*(i&1),2)}, {vr(D+2*i,2)}, {vr(D+2*i,2)}, {vr(92+2*(i&1),2)}")
    k("v_pk_add_f32 v[92:93], v[92:93], v[94:95]")
    k("v_add_f32 v98, v92, v93")
    k("ds_write_b32 v6, v98 offset:2048")
    rnd_bf16(k, 96, 96)
    k("v_mov_b32 v97, v96")
    for i in range(12): k(f"v_pk_add_f32 {vr(X+2*i,2)}, {vr(X+2*i,2)}, v[96:97] neg_lo:[0,1] neg_hi:[0,1]")
    k("s_waitcnt lgkmcnt(0)")
    k("s_barrier")
    for i in range(6): k(f"ds_read_b128 {vr(44+4*i,4)}, v5 offset:{2048+i*16}")
    for i in range(12): k(f"v_cvt_pk_bf16_f32 v{8+i}, v{X+2*i}, v{X+2*i+1}")
    for i in range(12):
        k(f"v_lshlrev_b32 v{X+2*i}, 16, v{8+i}")
        k(f"v_and_b32 v{X+2*i+1}, 0xffff0000, v{8+i}")
    k("s_waitcnt lgkmcnt(0)")
    tree(44, 24, 98)
    k(f"v_mul_f32 v98, {f2u(1.0/576):#x}, v98")
    rnd_bf16(k, 98, 98)
    k(f"v_add_f32 v98, {f2u(1e-5):#x}, v98")
    rnd_bf16(k, 98, 98)
    k("v_sqrt_f32 v98, v98")
    rnd_bf16(k, 98, 98)
    k("v_rcp_f32 v98, v98")
    k("v_mov_b32 v99, v98")
    for i in range(12): k(f"v_pk_mul_f32 {vr(X+2*i,2)}, {vr(X+2*i,2)}, v[98:99]")
    for i in range(12): k(f"v_cvt_pk_bf16_f32 v{8+i}, v{X+2*i}, v{X+2*i+1}")
    for i in range(3): k(f"buffer_store_dwordx4 {vr(8+4*i,4)}, v1, s[8:11], s{60+i} offen sc1")
    k(f"s_waitcnt vmcnt(0)\ns_barrier\ns_branch {Ld}")
    k.label(Ln6)
    srd(k, 20, 4, ST_OFF, ST_SZ)
    Lz = k.lab("z7")
    k(f"""
    v_mov_b32 v4, 0
    v_lshlrev_b32 v5, 2, v0
    s_lshl_b32 s45, s44, 7
    s_cmp_lg_u32 s33, 7
    s_cbranch_scc1 {Lz}
    s_mov_b32 exec_hi, 0
    buffer_store_dword v4, v5, s[20:23], s45 offen sc1
    s_mov_b32 exec_hi, -1
    {Lz}:
    s_barrier
    s_barrier
    s_waitcnt vmcnt(0)
    s_barrier
    s_cmp_lg_u32 s33, 6
    s_cbranch_scc1 {Ld}
    v_mov_b32 v4, s101
    s_add_u32 s45, s45, {F0}
    s_mov_b32 exec_hi, 0
    buffer_store_dword v4, v5, s[84:87], s45 offen sc1
    s_mov_b32 exec_hi, -1
    s_branch {Ld}
    """)
    k.label(Lw)
    Lpf, Lq, Lgo, Ldn, Ls = k.lab("pf"), k.lab("rq"), k.lab("rg"), k.lab("rd"), k.lab("rs")
    srd(k, 20, 4, W1_OFF, W12_SZ)
    k(f"""
    s_lshl_b32 s45, s33, 7
    s_add_u32 s45, s45, s44          ; g
    s_cmp_ge_u32 s45, 576
    s_cbranch_scc1 {Lpf}
    s_mov_b32 s27, 0x20000
    s_cmp_ge_u32 s45, 288
    s_cbranch_scc1 {Lq}
    s_mov_b32 s24, s6
    s_mov_b32 s25, s7
    s_mov_b32 s26, {576*9216}
    s_lshr_b32 s46, s45, 4           ; step
    s_and_b32 s47, s45, 15           ; nt
    s_mul_i32 s48, s46, {32*9216}
    s_mul_i32 s50, s47, 288
    s_add_u32 s48, s48, s50
    s_mul_i32 s49, s47, 9
    s_lshr_b32 s50, s46, 1
    s_add_u32 s49, s49, s50
    s_mul_i32 s49, s49, 18432
    s_movk_i32 s52, 18
    s_movk_i32 s53, 3641
    s_movk_i32 s54, 9216
    s_mov_b32 s55, 0
    s_mov_b32 s56, 0
    s_branch {Lgo}
    {Lq}:
    s_mov_b32 s24, s64
    s_mov_b32 s25, s65
    s_mov_b32 s26, {576*3456}
    s_sub_u32 s45, s45, 288
    s_lshr_b32 s46, s45, 4           ; step
    s_bfe_u32 s47, s45, 0x30001      ; hg
    s_mul_i32 s48, s46, {32*3456}
    s_mul_i32 s50, s47, 144
    s_add_u32 s48, s48, s50
    s_mul_i32 s49, s47, 9
    s_lshr_b32 s50, s46, 1
    s_add_u32 s49, s49, s50
    s_mul_i32 s49, s49, 28672
    s_and_b32 s56, s45, 1
    s_mul_i32 s50, s56, {7*2048}
    s_add_u32 s49, s49, s50
    s_add_u32 s49, s49, {WQ_REL}
    s_mul_i32 s56, s56, 14
    s_movk_i32 s52, 14
    s_movk_i32 s53, 4682
    s_movk_i32 s54, 3456
    s_movk_i32 s55, 1008
    {Lgo}:
    s_and_b32 s50, s46, 1
    s_lshl_b32 s50, s50, 10
    s_add_u32 s49, s49, s50
    s_mul_i32 s57, s33, 9216
    s_add_u32 s57, s57, 86016
    s_mov_b32 m0, s57
    """)
    for n in range(9):
        k(f"""
        v_add_u32 v2, {n*64}, v0
        v_mul_u32_u24 v3, s53, v2
        v_lshrrev_b32 v3, 16, v3         ; row
        v_mul_u32_u24 v4, s52, v3
        v_sub_u32 v2, v2, v4
        v_add_u32 v2, s56, v2            ; chunk
        v_mul_u32_u24 v4, 57, v2
        v_lshrrev_b32 v4, 9, v4          ; segment
        v_mul_u32_u24 v5, s54, v3
        v_lshl_add_u32 v5, v2, 4, v5
        v_mad_u32_u24 v5, v4, s55, v5
        v_lshrrev_b32 v3, 5, v3
        v_add_u32 v2, 5, v2
        v_lshrrev_b32 v2, 5, v2          ; chunk 27 -> 1
        v_or_b32 v3, v3, v2
        v_lshl_or_b32 v5, v3, 30, v5
        buffer_load_dwordx4 v5, s[24:27], s48 offen lds
        s_add_u32 m0, m0, 1024
        """)
    k(f"""
    v_lshrrev_b32 v2, 4, v0
    v_bfe_u32 v3, v0, 2, 2
    v_lshl_add_u32 v2, v2, 3, v3
    s_lshl_b32 s50, s52, 4
    v_mul_u32_u24 v2, s50, v2
    v_and_b32 v3, 3, v0
    v_lshl_add_u32 v2, v3, 3, v2
    v_add_u32 v2, s57, v2
    s_lshl_b32 s50, s52, 6
    v_add_u32 v3, s50, v2
    s_waitcnt vmcnt(0)
    """)
    for j in range(9):
        k(f"ds_read_b64_tr_b16 {vr(8+j*4,2)}, v2 offset:{j*32}")
        k(f"ds_read_b64_tr_b16 {vr(10+j*4,2)}, v3 offset:{j*32}")
    for j in range(9):
        if j == 7: k(f"s_cmp_eq_u32 s52, 14\ns_cbranch_scc1 {Ls}")
        k(f"s_waitcnt lgkmcnt({min(15, 16-2*j)})")
        k(f"buffer_store_dwordx4 {vr(8+j*4,4)}, v1, s[20:23], s49 offen offset:{(j&1)*2048} sc1")
        if j & 1: k("s_add_u32 s49, s49, 4096")
    k.label(Ls)
    k(f"s_waitcnt lgkmcnt(0)\ns_branch {Ldn}")
    k.label(Lpf)
    k(f"""
    s_sub_u32 s50, s45, 576
    s_lshl_b32 s51, s50, 6
    v_add_u32 v243, s51, v0
    s_mov_b32 s52, 116509
    v_mul_lo_u32 v242, s52, v243
    v_lshrrev_b32 v242, 22, v242
    v_lshlrev_b32 v243, 7, v243
    v_mul_u32_u24 v242, 4608, v242
    v_add_u32 v243, v243, v242
    s_mov_b32 s51, 0x7fffffff
    s_cmp_lt_u32 s50, 324
    s_cselect_b32 s51, 4608, s51
    buffer_load_dword v243, v243, s[12:15], s51 offen
    """)
    k.label(Ldn)
    Lnc, Lpc = k.lab("nc"), k.lab("pc")
    k(f"""
    s_cmp_lg_u32 s35, 0
    s_cbranch_scc1 {Lnc}
    s_getpc_b64 s[28:29]
    {Lpc}:
    s_mov_b32 s30, {L['end']}-{Lpc}
    s_mov_b32 s31, 0x20000
    s_lshl_b32 s50, s33, 13
    v_lshlrev_b32 v242, 7, v0
    buffer_load_dword v242, v242, s[28:31], s50 offen
    {Lnc}:
    """)
    k.label(Ld)

def loop4(k, S, reads, half, adv, st, after_first=None, vm_wait=False, vm_first=False):
    def stage_reads(p): return reads(0, 2 * p) + reads(1, 2 * p + 1)
    def interval(p, other, zero=False):
        n = len(other); cut = min(n, 16)
        half(2 * p, other[:cut], zero); half(2 * p + 1, other[cut:], False)
    k("s_barrier")
    st()
    for r in stage_reads(0) + adv: k(r)
    if after_first: after_first()
    k("s_waitcnt lgkmcnt(0)")
    k("s_barrier")
    interval(0, stage_reads(1) + adv, True)
    m = S - 2
    k(f"s_mov_b32 s58, {(m+1)//2}")
    k("s_waitcnt vmcnt(0) lgkmcnt(0)" if vm_first else "s_waitcnt lgkmcnt(0)")
    Ltop, Lex = k.lab("top"), k.lab("ex")
    k.label(Ltop)
    k("s_barrier")
    interval(1, stage_reads(0) + adv + (CNT if m & 1 else []))
    k("s_waitcnt lgkmcnt(0)")
    if m & 1: k(f"s_cbranch_scc0 {Lex}")
    k("s_barrier")
    interval(0, stage_reads(1) + adv + ([] if m & 1 else CNT))
    k("s_waitcnt vmcnt(0) lgkmcnt(0)" if vm_wait else "s_waitcnt lgkmcnt(0)")
    k(f"s_branch {Ltop}" if m & 1 else f"s_cbranch_scc1 {Ltop}")
    k.label(Lex)
    st()
    return (S - 1) & 1

def k1_body(k, st, L, fused, single, G):
    R, SZ = 3, 51200
    BO1, BOZ, BOQ = 16384, 32768, 18432
    stamps = st.on
    k(f"""
    s_and_b32 s36, s34, 1
    s_lshl_b32 s36, s36, 3
    s_and_b32 s37, s35, 7
    s_add_u32 s36, s36, s37          ; z2 mt
    s_lshr_b32 s37, s34, 1
    s_lshl_b32 s37, s37, 2
    s_lshr_b32 s38, s35, 3
    s_add_u32 s37, s37, s38          ; z2 nt
    s_lshr_b32 s32, s35, 4
    s_and_b32 s38, s34, 1
    s_lshl_b32 s38, s38, 2
    s_and_b32 s39, s35, 3
    s_add_u32 s38, s38, s39
    s_lshr_b32 s39, s34, 1
    s_lshl_b32 s50, s39, 1
    s_lshl_b32 s39, s39, 2
    s_lshr_b32 s51, s35, 2
    s_add_u32 s39, s39, s51          ; z1 nt
    s_bfe_u32 s51, s35, 0x10003
    s_add_u32 s50, s50, s51          ; hg
    s_cmp_eq_u32 s32, 0
    s_cselect_b32 s38, s38, s36
    s_cselect_b32 s39, s39, s50
    s_lshl_b32 s44, s34, 4
    s_and_b32 s50, s35, 15
    s_add_u32 s44, s44, s50
    s_mov_b32 s3, s44
    v_and_b32 v2, 15, v0             ; row
    v_lshrrev_b32 v3, 4, v0          ; q
    s_mul_i32 s45, s44, {16*1152}
    s_mul_i32 s46, s33, 192
    s_add_u32 s45, s45, s46
    s_cmp_lt_u32 s33, 6
    s_cselect_b32 s50, s32, 0
    v_mul_u32_u24 v4, 1152, v2
    v_lshl_add_u32 v7, v3, 4, v4
    s_mov_b32 s26, {2048*1152}
    s_mov_b32 s27, 0x20000
    s_waitcnt lgkmcnt(0)
    s_mov_b32 s24, s68
    s_mov_b32 s25, s69
    s_cmp_eq_u32 s50, 0
    s_cbranch_scc1 {L['nx']}
    buffer_load_dwordx4 v[8:11], v7, s[24:27], s45 offen
    buffer_load_dwordx4 v[12:15], v7, s[24:27], s45 offen offset:64
    buffer_load_dwordx4 v[16:19], v7, s[24:27], s45 offen offset:128
    {L['nx']}:
    """)
    srd(k, 8, 4, XN_OFF, XN_SZ)
    srd(k, 12, 6, 0, 576 * 9216)
    XS = " sc1" if single else ""
    st.init()
    if single:
        st(250)
        phase0(k, st, L)
        st(250)
    k(f"s_cmp_ge_u32 s33, 4\ns_cbranch_scc1 {L['D']}")
    srd(k, 16, 4, A3_OFF, A3_SZ)
    def loop2(reads, half, adv, vmw):
        Ltop = k.lab("top")
        k("s_mov_b32 s58, 8")
        k("s_barrier")
        st()
        for r in reads(0, 0): k(r)
        k("s_waitcnt lgkmcnt(0)")
        if vmw: k("s_barrier")
        half(0, reads(1, 1) + adv, True)
        k("s_waitcnt vmcnt(0) lgkmcnt(0)")
        k.label(Ltop)
        k("s_barrier")
        half(1, reads(0, 0), False)
        k("s_waitcnt lgkmcnt(0)")
        half(0, reads(1, 1) + adv + CNT, False)
        k("s_waitcnt lgkmcnt(0)")
        k(f"s_cbranch_scc1 {Ltop}")
        st()
    st()
    ACC, BUF = 144, [0, 36, 72, 108]
    VA, VB, VL16, VLN = 244, 245, 246, 247
    acc = lambda i, j: ACC + (i * 5 + j) * 4
    k(f"""
    s_mov_b32 s40, s33
    s_and_b32 s41, s40, 1            ; wm
    s_lshr_b32 s42, s40, 1           ; wn
    v_mov_b32 v{VL16}, v1
    v_mov_b32 v{VLN}, v0
    s_lshl_b32 s43, s41, 13
    v_add_u32 v{VA}, s43, v1
    """)
    tr_lane_base(k, VB, 288, 2)
    k(f"s_mul_i32 s43, s42, 160\ns_add_u32 s43, s43, {BO1}\nv_add_u32 v{VB}, s43, v{VB}")
    Lq, Ld = k.lab("cq"), k.lab("cd")
    ZA, ZB, ZL16, ZL8 = 248, 249, 250, 251
    QA, QBE, QBO, QW = 248, 249, 250, 251
    k(f"s_cmp_lg_u32 s32, 0\ns_cbranch_scc1 {Lq}")
    k(f"""
    v_mov_b32 v{ZL16}, v1
    v_lshrrev_b32 v2, 5, v0
    v_lshlrev_b32 v2, 8, v2
    v_and_b32 v3, 15, v0
    v_lshl_add_u32 v2, v3, 4, v2
    v_bfe_u32 v3, v0, 4, 1
    v_lshl_add_u32 v{ZL8}, v3, 3, v2
    s_lshl_b32 s50, s40, 13
    v_add_u32 v{ZA}, s50, v1
    """)
    k(f"v_add_u32 v{ZB}, {BOZ}, v1")
    k(f"s_branch {Ld}")
    k.label(Lq)
    k(f"v_mov_b32 v{QA}, v{VA}")
    k(f"""
    s_mul_i32 s50, s42, {7*2048}
    s_add_u32 s50, s50, {BOQ}
    v_add_u32 v{QBE}, s50, v1
    v_mov_b32 v{QBO}, 0
    v_and_b32 v2, 15, v0
    s_lshl_b32 s50, s41, 6
    v_add_u32 v2, s50, v2
    v_mul_u32_u24 v{QW}, 440, v2
    v_lshrrev_b32 v2, 4, v0
    v_lshl_add_u32 v{QW}, v2, 3, v{QW}
    s_mul_i32 s50, s42, 224
    s_add_u32 s50, s50, {ATT}
    v_add_u32 v{QW}, s50, v{QW}
    """)
    k.label(Ld)
    k(f"""
    s_cmp_eq_u32 s42, 0
    s_cselect_b64 vcc, -1, 0
    s_cselect_b32 s54, -1, 0
    s_mul_i32 s46, s41, {18*1024}
    s_mul_i32 s47, s42, {5*1024}
    s_add_u32 s46, s46, s47
    s_add_u32 s46, s46, {2*SZ}
    v_add_u32 v{VL16}, s46, v1
    """)
    C, T, O, SM = 224, 232, 72, 80
    gelu_consts(k, C)
    adv_setup(k, R, SZ)
    def reads1(sub, b):
        o = [f"ds_read_b128 {vr(BUF[b]+i*4,4)}, v{VA} offset:{i*2048+sub*1024}" for i in range(4)]
        for j in range(5):
            for hh in range(2):
                o.append(f"ds_read_b64_tr_b16 {vr(BUF[b]+16+j*4+hh*2,2)}, v{VB} offset:{sub*32*288+hh*8*288+j*32}")
        return o
    def mf1(b, seq, zero):
        return [f"v_mfma_f32_16x16x32_bf16 {vr(acc(i,j),4)}, {vr(BUF[b]+i*4,4)}, {vr(BUF[b]+16+j*4,4)}, {'0' if zero else vr(acc(i,j),4)}"
                for j, i in seq]
    def half1(b, other, zero):
        for x in interleave(mf1(b, snake(4, 4), zero), other): k(x)
        Ls = k.lab("sk")
        k(f"s_cbranch_vccz {Ls}")
        for x in mf1(b, [(4, i) for i in range(4)], zero): k(x)
        k.label(Ls)
    if single:
        k("s_barrier")
        k(f"v_mov_b32 v2, {HSC}\nds_read_b32 v2, v2\ns_waitcnt lgkmcnt(0)\nv_readfirstlane_b32 s101, v2")
    lp = loop4(k, 9, reads1, half1, adv_ins(R, [VA, VB]), st, vm_first=True)
    assert lp == 0
    k("s_barrier")
    half1(0, [f"v_mov_b32 v{r}, 0" for r in range(SM, SM + 16)], False)
    half1(1, [f"v_mov_b32 v{r}, 0" for r in range(SM + 16, SM + 32)], False)
    n = 0
    for jj in range(5):
        if jj == 4:
            Ls = k.lab("us"); k(f"s_cbranch_vccz {Ls}")
        for P in range(2):
            a, b = acc(2 * P, jj), acc(2 * P + 1, jj)
            gelu(k, [a, a + 2, b, b + 2], T, C)
            o = O + (n & 1) * 4; n += 1
            for x, q in enumerate([a, a + 2, b, b + 2]): k(f"v_cvt_pk_bf16_f32 v{o+x}, v{q}, v{q+1}")
            k(f"ds_write_b128 v{VL16}, {vr(o,4)} offset:{(P*9+jj)*1024}")
            for e, q in enumerate([a, b]):
                i = 2 * P + e
                for h in range(2):
                    k(f"v_pk_add_f32 {vr(SM+4*i+2*h,2)}, {vr(SM+4*i+2*h,2)}, {vr(q+2*h,2)}")
                    k(f"v_pk_fma_f32 {vr(SM+16+4*i+2*h,2)}, {vr(q+2*h,2)}, {vr(q+2*h,2)}, {vr(SM+16+4*i+2*h,2)}")
    k.label(Ls)
    for m in range(1, 4):
        v = 0x11111111 << m
        k(f"s_mov_b32 s{58+2*m}, {v:#x}\ns_mov_b32 s{59+2*m}, {v:#x}")
    val = lambda P, i: SM + (i & 1) * 16 + (2 * P + (i >> 3)) * 4 + ((i >> 1) & 3)
    sets = [[val(P, i) for i in range(16)] for P in range(2)]
    reduce16(k, sets, 60)
    k(f"""
    s_lshl_b32 s46, s40, 9
    s_add_u32 s46, s46, {2*SZ+36864}
    v_lshlrev_b32 v{T+1}, 2, v{VLN}
    v_add_u32 v{T+1}, s46, v{T+1}
    ds_write_b32 v{T+1}, v{sets[0][0]}
    ds_write_b32 v{T+1}, v{sets[1][0]} offset:256
    s_waitcnt lgkmcnt(0)
    """)
    k("s_waitcnt vmcnt(0)")
    st()
    k(f"s_cmp_lg_u32 s32, 0\ns_cbranch_scc1 {L['C2q']}")
    ACZ, BZ = 104, [0, 52]
    acz = lambda i, j: ACZ + (i * 9 + j) * 4
    def readsz(sub, b):
        o = [f"ds_read_b128 {vr(BZ[b]+i*4,4)}, v{ZA} offset:{i*2048+sub*1024}" for i in range(4)]
        o += [f"ds_read_b128 {vr(BZ[b]+16+j*4,4)}, v{ZB} offset:{j*2048+sub*1024}" for j in range(9)]
        return o
    def halfz(b, other, zero):
        mf = [f"v_mfma_f32_16x16x32_bf16 {vr(acz(i,j),4)}, {vr(BZ[b]+16+j*4,4)}, {vr(BZ[b]+i*4,4)}, {'0' if zero else vr(acz(i,j),4)}"
              for i, j in snake(4, 9)]
        for x in interleave(mf, other): k(x)
    loop2(readsz, halfz, adv_ins(R, [ZA, ZB]), True)
    halfz(1, [], False)
    C, T, O = 0, 8, 16
    gelu_consts(k, C)
    k(f"""
    s_lshl_b32 s46, s38, 4
    s_lshl_b32 s47, s40, 2
    s_add_u32 s46, s46, s47          ; tfrag0
    s_mul_i32 s46, s46, {TFS}
    s_lshr_b32 s47, s39, 1
    s_mul_i32 s47, s47, 9216
    s_add_u32 s46, s46, s47
    s_and_b32 s47, s39, 1
    s_lshl_b32 s48, s47, 9
    s_add_u32 s48, s48, s46
    s_add_u32 s48, s48, {(18+8)*1024}
    s_lshl_b32 s47, s47, 12
    s_add_u32 s46, s46, s47
    s_add_u32 s46, s46, {18*1024}
    """)
    n = 0
    for i in range(4):
        for p in range(4):
            a, b = acz(i, 2 * p), acz(i, 2 * p + 1)
            gelu(k, [a, a + 2, b, b + 2], T, C)
            o = O + (n & 1) * 4; n += 1
            for x, q in enumerate([a, a + 2, b, b + 2]): k(f"v_cvt_pk_bf16_f32 v{o+x}, v{q}, v{q+1}")
            k(f"buffer_store_dwordx4 {vr(o,4)}, v{ZL16}, s[16:19], s46 offen offset:{p*1024} sc1")
        if i < 3: k(f"s_add_u32 s46, s46, {TFS}\ns_add_u32 s{49+i}, s{48+i}, {TFS}")
    for i in (0, 2):
        a, b = acz(i, 8), acz(i + 1, 8)
        gelu(k, [a, a + 2, b, b + 2], T, C)
        o = O + (n & 1) * 4; n += 1
        for x, q in enumerate([a, a + 2, b, b + 2]): k(f"v_cvt_pk_bf16_f32 v{o+x}, v{q}, v{q+1}")
        k(f"buffer_store_dwordx2 {vr(o,2)}, v{ZL8}, s[16:19], s{48+i} offen sc1")
        k(f"buffer_store_dwordx2 {vr(o+2,2)}, v{ZL8}, s[16:19], s{49+i} offen sc1")
    if stamps and not fused:
        st(); k("s_waitcnt vmcnt(0)"); st()
    k(f"s_branch {L['g2C']}" if fused else "s_endpgm")
    k.label(L["D"])
    if OPT.get("pd", 3): k(f"s_setprio {OPT.get('pd', 3)}")
    k(f"""
    s_sub_u32 s40, s33, 4            ; pw
    s_lshl_b32 s41, s40, 12          ; A lds
    s_lshl_b32 s42, s36, 14
    s_add_u32 s42, s42, s41          ; A goff
    s_mul_i32 s43, s37, 288
    s_add_u32 s43, s43, 4608         ; B goff
    s_add_u32 s47, s41, {BO1}        ; B lds
    s_lshl_b32 s48, s40, 9
    s_add_u32 s48, s48, {BO1+16384}
    s_mov_b32 s49, 0
    s_lshl_b32 s51, s40, 8
    """)
    def half_dma(srdr, v, soff, mbase, mods=""):
        k(f"s_add_u32 m0, s{mbase}, s49")
        k("s_mov_b32 exec_hi, 0")
        k(f"buffer_load_dwordx4 v{v}, s[{srdr}:{srdr+3}], s{soff} offen{mods} lds")
        k("s_mov_b32 exec_hi, -1")
    def i1A():
        lin_dma(k, 4, 8, 42, 41, 49, mods=XS); k(f"s_add_u32 s42, s42, {128*2048}")
    def i1B():
        gat_dma(k, 4, 12, 43, 47, 49, 8); half_dma(12, 12, 43, 48); k(f"s_add_u32 s43, s43, {64*9216}")
    def issue1():
        i1A(); i1B(); slot_adv_prod(k, R, SZ, 49)
    def setup2():
        srd(k, 72, 4, W1_OFF, W12_SZ)
        srd(k, 16, 4, A3_OFF, A3_SZ)
        srd(k, 20, 4, ST_OFF, ST_SZ)
        srd(k, 24, 66, 0, 2048 * 4096)
        srd(k, 80, 4, Z2T_OFF, Z2T_SZ)
        srd(k, 84, 4, FLG_OFF, FLG_SZ)
        Lq, Ld = k.lab("dq"), k.lab("dd")
        k(f"""
        s_cmp_lg_u32 s32, 0
        s_cbranch_scc1 {Lq}
        s_lshl_b32 s63, s40, 13          ; A lds
        s_lshl_b32 s60, s38, 15
        s_add_u32 s60, s60, s63          ; A goff
        s_mul_i32 s61, s39, {9*18432}
        s_lshl_b32 s89, s40, 9
        s_add_u32 s62, s61, s89
        s_add_u32 s62, s62, 16384
        s_add_u32 s61, s61, s41          ; B goff
        s_add_u32 s88, s41, {BOZ}
        s_add_u32 s89, s89, {BOZ+16384}
        s_branch {Ld}
        {Lq}:
        s_lshl_b32 s60, s38, 14
        s_lshl_b32 s89, s40, 9
        s_sub_u32 s62, s60, 2048
        s_cmp_eq_u32 s38, 0
        s_cselect_b32 s62, 0, s62
        s_add_u32 s62, s62, s89
        s_add_u32 s60, s60, s41          ; A goff
        s_add_u32 s63, s41, 2048
        s_mul_i32 s61, s39, {9*28672}
        s_mul_i32 s88, s40, 7168
        s_add_u32 s61, s61, s88
        s_add_u32 s61, s61, {WQ_REL}
        s_add_u32 s88, s88, {BOQ}
        """)
        k.label(Ld)
        k(f"""
        v_lshlrev_b32 v28, 7, v0
        s_lshl_b32 s44, s2, 2
        s_add_u32 s44, s44, s40
        s_lshl_b32 s44, s44, 13
        v_lshlrev_b32 v29, 2, v0
        v_lshrrev_b32 v30, 4, v0
        v_lshlrev_b32 v30, 5, v30
        s_lshl_b32 s45, s36, 10
        s_lshl_b32 s50, s40, 8
        s_add_u32 s45, s45, s50
        s_mul_i32 s50, s40, {9*1024}
        s_add_u32 s50, s50, {2*SZ}
        v_add_u32 v31, s50, v1
        s_lshl_b32 s46, s36, 1
        s_lshr_b32 s50, s40, 1
        s_add_u32 s46, s46, s50
        s_mul_i32 s46, s46, 144
        s_mul_i32 s50, s37, 9
        s_add_u32 s46, s46, s50
        s_lshl_b32 s46, s46, 11
        s_and_b32 s50, s40, 1
        s_lshl_b32 s50, s50, 10
        s_add_u32 s46, s46, s50          ; Z2T offset
        s_lshl_b32 s53, s36, 8           ; F1 row
        s_lshl_b32 s50, s40, 9
        s_add_u32 s50, s50, {2*SZ+36864}
        v_add_u32 v35, s50, v29
        v_bfe_u32 v27, v0, 3, 1
        v_lshlrev_b32 v27, 5, v27
        v_lshrrev_b32 v2, 4, v0
        v_lshl_add_u32 v27, v2, 3, v27
        v_and_b32 v2, 7, v0
        v_add_lshl_u32 v27, v27, v2, 2
        s_lshl_b32 s55, s36, 10
        s_and_b32 s50, s40, 1
        s_lshl_b32 s50, s50, 9
        s_add_u32 s55, s55, s50
        """)
    if single:
        Lnp = k.lab("np")
        k(f"""
        v_lshlrev_b32 v28, 7, v0
        s_lshl_b32 s52, s36, 10
        s_add_u32 s52, s52, {F0}
        s_cmp_lg_u32 s40, 2
        s_cbranch_scc1 {Lnp}
        s_mov_b64 exec, 0xff
        buffer_load_dword v33, v28, s[84:87], s52 offen sc1
        s_mov_b64 exec, -1
        {Lnp}:
        """)
        for n in range(5):
            if n == 4: k("s_lshl_b32 s51, s40, 5\ns_add_u32 s51, s51, 1024")
            w144_voff(k, 8 + n, 51, 9216)
            k("s_add_u32 s51, s51, 64")
        if OPT.get("eb", 1):
            i1B(); k(f"s_mov_b32 s49, {SZ}"); i1B(); k("s_mov_b32 s49, 0")
        setup2()
        Lnp = k.lab("np")
        k(f"s_cmp_lg_u32 s40, 2\ns_cbranch_scc1 {Lnp}")
        ldx = lambda: k("buffer_load_dword v33, v28, s[84:87], s52 offen sc1")
        k("s_mov_b64 exec, 0xff\ns_waitcnt vmcnt(0) lgkmcnt(0)")
        spin(k, ldx, lambda: k("v_cmp_ne_u32 vcc, s101, v33"))
        k("s_mov_b64 exec, -1")
        k.label(Lnp)
        k("s_barrier")
        st(250)
        if OPT.get("eb", 1):
            i1A(); k(f"s_mov_b32 s49, {SZ}"); i1A(); k(f"s_mov_b32 s49, {2*SZ}")
        else:
            issue1(); issue1()
        k(f"v_mov_b32 v33, {HSC}\nds_read_b32 v33, v33\ns_waitcnt lgkmcnt(0)\nv_readfirstlane_b32 s101, v33")
    else:
        i1A()
        k("s_mov_b32 m0, s47")
        for n in range(4):
            w144_voff(k, 8 + n, 51, 9216)
            k("s_add_u32 s51, s51, 64")
            k(f"buffer_load_dwordx4 v{8+n}, s[12:15], s43 offen lds")
            k("s_add_u32 m0, m0, 1024")
        k("s_lshl_b32 s51, s40, 5\ns_add_u32 s51, s51, 1024")
        w144_voff(k, 12, 51, 9216)
        half_dma(12, 12, 43, 48)
        k(f"s_add_u32 s43, s43, {64*9216}\ns_mov_b32 s49, {SZ}")
        issue1()
    k("s_waitcnt vmcnt(%d)" % (4 if OPT.get("eb", 1) else 9))
    k("s_barrier")
    issue1()
    def ploop(n, iss, allowed):
        Lp = k.lab("pl")
        k(f"s_mov_b32 s58, {n}")
        k.label(Lp)
        k(f"s_waitcnt vmcnt({allowed})")
        k("s_barrier")
        iss()
        k(f"s_sub_u32 s58, s58, 1\ns_cmp_lg_u32 s58, 0\ns_cbranch_scc1 {Lp}")
    ploop(1, issue1, 9)
    k("s_waitcnt vmcnt(9)")
    k("s_barrier")
    Lnb = k.lab("nb")
    k(f"s_or_b32 s50, s40, s32\ns_cmp_lg_u32 s50, 0\ns_cbranch_scc1 {Lnb}")
    set_flag(k, f"s_lshl_b32 s50, s3, 2\ns_add_u32 s50, s50, {F5}", 33)
    k.label(Lnb)
    issue1()
    ploop(4, issue1, 9)
    def issue2():
        Lq, Ld = k.lab("iq"), k.lab("id")
        k(f"s_cmp_lg_u32 s32, 0\ns_cbranch_scc1 {Lq}")
        lin_dma(k, 8, 8, 60, 63, 49, mods=XS); lin_dma(k, 4, 72, 61, 88, 49, mods=XS); half_dma(72, 1, 62, 89, XS)
        k(f"s_add_u32 s61, s61, 18432\ns_add_u32 s62, s62, 18432\ns_branch {Ld}")
        k.label(Lq)
        lin_dma(k, 4, 8, 60, 63, 49, mods=XS); half_dma(8, 1, 62, 89, XS); lin_dma(k, 7, 72, 61, 88, 49, mods=XS)
        k(f"s_add_u32 s62, s62, {128*2048}\ns_add_u32 s61, s61, 28672")
        k.label(Ld)
        k(f"s_add_u32 s60, s60, {128*2048}")
        slot_adv_prod(k, R, SZ, 49)
    N2 = 12
    if single:
        k(f"""
        s_lshl_b32 s54, s38, 3
        s_lshl_b32 s50, s38, 4
        s_cmp_eq_u32 s32, 0
        s_cselect_b32 s54, s50, s54
        s_max_u32 s54, s54, 1
        s_min_u32 s54, s54, 112
        s_lshl_b32 s54, s54, 7
        s_add_u32 s54, s54, {F0 - 128}
        """)
        k(f"s_movk_i32 s56, {F5}\nv_lshlrev_b32 v20, 3, v0")
        def ldb():
            k("buffer_load_dwordx2 v[22:23], v20, s[84:87], s56 offen sc1")
            k("s_mov_b64 exec, 0x1ffff\nbuffer_load_dword v33, v28, s[84:87], s54 offen sc1\ns_mov_b64 exec, -1")
        k("v_mov_b32 v33, s101")
        ldb()
    k("s_waitcnt vmcnt(11)")
    k("s_barrier")
    k("s_waitcnt vmcnt(0)")
    spin(k, ldb, lambda: k("v_xor_b32 v22, s101, v22\nv_xor_b32 v23, s101, v23\nv_xor_b32 v21, s101, v33\nv_or3_b32 v21, v21, v22, v23\nv_cmp_ne_u32 vcc, 0, v21"))
    issue2()
    k(f"s_waitcnt vmcnt({N2})")
    k("s_barrier")
    issue2()
    if OPT.get("wpf", 1): k("buffer_load_dword v32, v28, s[24:27], s44 offen")
    k("s_barrier")
    k(f"s_waitcnt vmcnt({N2+OPT.get('wpf', 1)})")
    k("s_barrier")
    Z = 64
    for j in range(9): k(f"ds_read_b128 {vr(Z+4*j,4)}, v31 offset:{j*1024}")
    k(f"""
    ds_read_b32 v34, v35
    ds_read_b32 v33, v35 offset:256
    s_waitcnt lgkmcnt(0)
    s_barrier
    buffer_atomic_add_f32 v34, v27, s[20:23], s55 offen
    buffer_atomic_add_f32 v33, v27, s[20:23], s55 offen offset:256
    """)
    issue2()
    k(f"s_waitcnt vmcnt({N2+2+OPT.get('wpf', 1)})")
    k("s_barrier")
    issue2()
    k(f"s_waitcnt vmcnt({N2})")
    set_flag(k, f"s_lshl_b32 s50, s37, 4\ns_add_u32 s50, s50, s53\ns_lshl_b32 s51, s40, 2\ns_add_u32 s50, s50, s51", 33)
    k("s_barrier")
    issue2()
    PB = OPT.get("pb", 13)
    if PB > 12: ploop(PB - 12, issue2, N2)
    ld1 = lambda: k("buffer_load_dword v33, v29, s[84:87], s53 offen sc1")
    ld1()
    k(f"s_waitcnt vmcnt({N2+1})")
    k("s_barrier")
    issue2()
    k(f"s_waitcnt vmcnt({N2})")
    spin(k, ld1, lambda: k("v_cmp_ne_u32 vcc, s101, v33"))
    for i in range(4): k(f"buffer_load_dwordx4 {vr(36+4*i,4)}, v30, s[20:23], s45 offen offset:{(i>>1)*128+(i&1)*16} sc1")
    k("s_barrier")
    st(250)
    vm = [("L%d" % (PB + 2), N2), ("s", 4)]
    def allowed(tag):
        n = 0
        for t, c in reversed(vm):
            if t == tag: return n
            n += c
        raise KeyError(tag)
    def rcalc():
        k(f"s_waitcnt vmcnt({allowed('s')})")
        inv = f2u(1.0 / 2304)
        for i in range(8): k(f"v_mul_f32 v{36+2*i}, {inv:#x}, v{36+2*i}")
        for i in range(8): k(f"v_mul_f32 v{37+2*i}, {inv:#x}, v{37+2*i}")
        for i in range(8): k(f"v_fma_f32 v{37+2*i}, -v{36+2*i}, v{36+2*i}, v{37+2*i}")
        for i in range(8): k(f"v_max_f32 v{37+2*i}, 0, v{37+2*i}")
        def rnd8(o):
            for i in range(4): k(f"v_cvt_pk_bf16_f32 v{52+i}, v{o+4*i}, v{o+2+4*i}")
            for i in range(4):
                k(f"v_lshlrev_b32 v{o+4*i}, 16, v{52+i}")
                k(f"v_and_b32 v{o+2+4*i}, 0xffff0000, v{52+i}")
        rnd8(36); rnd8(37)
        for i in range(8): k(f"v_add_f32 v{37+2*i}, {f2u(1e-5):#x}, v{37+2*i}")
        rnd8(37)
        for i in range(8): k(f"v_sqrt_f32 v{37+2*i}, v{37+2*i}")
        rnd8(37)
        for i in range(8): k(f"v_rcp_f32 v{37+2*i}, v{37+2*i}")
        for i in range(8): k(f"v_mul_f32 v{36+2*i}, v{36+2*i}, v{37+2*i}")
    def unit(j):
        w, t = Z + 4 * j, 56
        for i in range(4):
            k(f"v_lshlrev_b32 v{t+2*i}, 16, v{w+i}")
            k(f"v_and_b32 v{t+2*i+1}, 0xffff0000, v{w+i}")
        for i in range(8): k(f"v_fma_f32 v{t+i}, v{t+i}, v{37+2*i}, -v{36+2*i}")
        for i in range(4): k(f"v_cvt_pk_bf16_f32 v{w+i}, v{t+2*i}, v{t+2*i+1}")
        k(f"v_permlane32_swap_b32 v{w}, v{w+2}")
        k(f"v_permlane32_swap_b32 v{w+1}, v{w+3}")
        k(f"v_permlane16_swap_b32 v{w}, v{w+2}")
        k(f"v_permlane16_swap_b32 v{w+1}, v{w+3}")
        if j and j % 2 == 0: k("s_add_u32 s46, s46, 4096")
        k(f"buffer_store_dwordx4 {vr(w,4)}, v1, s[80:83], s46 offen offset:{(j&1)*2048} sc1")
        vm.append(("z", 1))
    work = [rcalc] + [(lambda j=j: unit(j)) for j in range(9)]
    split = {13: [[0, 1, 2], [3, 4, 5], [6, 7, 8, 9]], 12: [[0, 1], [2, 3, 4], [5, 6], [7, 8, 9]], 11: [[0], [1, 2], [3, 4], [5, 6], [7, 8, 9]]}[PB]
    for n, b in enumerate(range(PB + 1, 17)):
        if b + 2 <= 17:
            issue2(); vm.append((f"L{b+2}", N2))
        for w_ in split[n]: work[w_]()
        k(f"s_waitcnt vmcnt({allowed(f'L{b+1}')})")
        k("s_barrier")
    st(250)
    if fused:
        k("s_waitcnt vmcnt(0)")
        set_flag(k, f"s_lshl_b32 s50, s37, 8\ns_lshl_b32 s51, s36, 4\ns_add_u32 s50, s50, s51\ns_lshl_b32 s51, s40, 2\ns_add_u32 s50, s50, s51\ns_add_u32 s50, s50, {F2}", 33)
    if single:
        k(f"""
        s_load_dwordx2 s[28:29], s[0:1], {KA['wo']}
        s_load_dwordx2 s[30:31], s[0:1], {KA['w_out']}
        s_lshr_b32 s50, s44, 13
        s_sub_u32 s51, s50, 81
        s_waitcnt lgkmcnt(0)
        s_cmp_lt_u32 s50, 81
        s_cselect_b32 s24, s28, s30
        s_cselect_b32 s25, s29, s31
        s_cselect_b32 s50, s50, s51
        s_mov_b32 s26, {2304*1152}
        s_cselect_b32 s26, {576*1152}, s26
        s_mov_b32 s27, 0x20000
        s_lshl_b32 s50, s50, 13
        buffer_load_dword v240, v28, s[24:27], s50 offen
        """)
    Lha = k.lab("ha")
    k(f"s_cmp_lg_u32 s32, 0\ns_cbranch_scc1 {Lha}")
    k(f"s_branch {L['g2D']}" if fused else "s_endpgm")
    k.label(Lha)
    k("s_setprio 0")
    k("s_barrier")
    k(f"s_branch {L['att']}")
    k.label(L["C2q"])
    ACQ, BQ = 104, [0, 48]
    acq = lambda i, j: ACQ + (i * 7 + j) * 4
    def readsq(sub, b):
        o = [f"ds_read_b128 {vr(BQ[b]+i*4,4)}, v{QA} offset:{i*2048+sub*1024}" for i in range(5)]
        o += [f"ds_read_b128 {vr(BQ[b]+20+j*4,4)}, v{QBE} offset:{j*2048+sub*1024}" for j in range(7)]
        return o
    def halfq(b, other, zero):
        mf = [f"v_mfma_f32_16x16x32_bf16 {vr(acq(i,j),4)}, {vr(BQ[b]+20+j*4,4)}, {vr(BQ[b]+i*4,4)}, {'0' if zero else vr(acq(i,j),4)}"
              for i, j in snake(5, 7)]
        for x in interleave(mf, other): k(x)
    loop2(readsq, halfq, adv_ins(R, [QA, QBE]), True)
    k("s_barrier")
    def wq(i, j, n):
        a = acq(i, j); o = (n & 3) * 2
        return [f"v_cvt_pk_bf16_f32 v{o}, v{a}, v{a+1}", f"v_cvt_pk_bf16_f32 v{o+1}, v{a+2}, v{a+3}",
                f"ds_write_b64 v{QW}, {vr(o,2)} offset:{i*16*440+j*32}"]
    n = 0
    for i in range(6):
        mf = [f"v_mfma_f32_16x16x32_bf16 {vr(acq(i,j),4)}, {vr(BQ[1]+20+j*4,4)}, {vr(BQ[1]+i*4,4)}, {vr(acq(i,j),4)}" for j in range(7)] if i < 5 else []
        for j in range(7):
            if mf: k(mf[j])
            if i > 0 and j < 6:
                for x in wq(i - 1, j, n): k(x)
                n += 1
    k("s_mov_b32 exec_hi, s54")
    for i in range(5):
        for x in wq(i, 6, n): k(x)
        n += 1
    k("s_mov_b32 exec_hi, -1")
    k("s_waitcnt lgkmcnt(0)")
    k("v_mbcnt_lo_u32_b32 v0, -1, 0")
    k("v_mbcnt_hi_u32_b32 v0, -1, v0")
    k.label(L["att"])
    k(f"""
    s_and_b32 s55, s33, 3            ; head
    s_lshr_b32 s41, s33, 2
    s_and_b32 s42, s55, 1
    s_lshl_b32 s43, s41, 6
    s_add_u32 s44, s43, 2
    v_add_u32 v2, s44, v0
    v_mul_u32_u24 v2, 440, v2
    s_mul_i32 s44, s55, 36
    s_add_u32 s44, s44, {ATT}
    s_lshl_b32 s45, s42, 2
    s_add_u32 s45, s45, s44
    v_add_u32 v3, s45, v2
    s_xor_b32 s45, s42, 1
    s_lshl_b32 s45, s45, 5
    s_add_u32 s45, s45, s44
    v_add_u32 v2, s45, v2
    s_lshl_b32 s46, s38, 7
    s_add_u32 s46, s46, s43
    v_add_u32 v4, s46, v0            ; t
    s_mov_b32 s21, 0x05040100
    s_mov_b32 s22, 0x07060302
    v_and_b32 v11, 15, v0
    v_lshrrev_b32 v12, 4, v0
    s_lshl_b32 s46, s33, 4
    s_add_u32 s46, s46, 16
    v_add_u32 v13, s46, v11
    v_mul_u32_u24 v13, 440, v13
    v_lshl_add_u32 v13, v12, 4, v13
    v_add_u32 v13, {ATT}, v13
    s_mul_i32 s46, s39, 9
    v_add_u32 v12, s46, v12
    v_lshlrev_b32 v12, 8, v12
    v_lshl_add_u32 v12, v11, 4, v12
    s_lshl_b32 s46, s38, 3
    s_add_u32 s46, s46, s33
    s_mul_i32 s20, s46, {TFS}
    """)
    Lc = k.lab("ac")
    k(f"s_cmp_lt_u32 s33, 4\ns_cbranch_scc1 {Lc}")
    G["setup"]()
    k.label(Lc)
    k("s_barrier")
    st(20)
    Q, KK, VV, LL, PP, OA = 24, 36, 116, 200, 210, 216
    def rdvec(dst, row, part):
        for h in range(4): k(f"ds_read_b64 {vr(dst+2*h,2)}, v3 offset:{row*440+part*144+8*h}")
        k(f"ds_read_b32 v{dst+8}, v2 offset:{row*440+part*144}")
    vecs = [(Q, 14, 0)] + [(KK + 10 * w, 14 - 2 * w, 1) for w in range(8)] + [(VV + 10 * w, 14 - 2 * w, 2) for w in range(8)]
    for v in vecs[:4]: rdvec(*v)
    nxt = 4
    for w in range(8): k(f"v_mov_b32 v{LL+w}, 0")
    for w in range(8):
        k("s_waitcnt lgkmcnt(10)")
        for i in range(9): k(f"v_dot2c_f32_bf16 v{LL+w}, v{Q+i}, v{KK+10*w+i}")
        rdvec(*vecs[nxt]); nxt += 1
    while nxt < len(vecs):
        rdvec(*vecs[nxt]); nxt += 1
    sc = f2u(18.0 ** -0.5)
    def rndL():
        for i in range(4): k(f"v_cvt_pk_bf16_f32 v{PP+i}, v{LL+2*i}, v{LL+2*i+1}")
        for i in range(4):
            k(f"v_lshlrev_b32 v{LL+2*i}, 16, v{PP+i}")
            k(f"v_and_b32 v{LL+2*i+1}, 0xffff0000, v{PP+i}")
    rndL()
    for w in range(8): k(f"v_mul_f32 v{LL+w}, {sc:#x}, v{LL+w}")
    rndL()
    k(f"v_mov_b32 v6, {f2u(-1e9):#x}")
    for w in range(1, 8):
        k(f"v_cmp_le_u32 s[{24+2*(w&1)}:{25+2*(w&1)}], {2*w}, v4")
        if w > 1: k(f"v_cndmask_b32 v{LL+w-1}, v6, v{LL+w-1}, s[{24+2*((w-1)&1)}:{25+2*((w-1)&1)}]")
    k(f"v_cndmask_b32 v{LL+7}, v6, v{LL+7}, s[26:27]")
    k(f"v_max3_f32 v7, v{LL}, v{LL+1}, v{LL+2}")
    k(f"v_max3_f32 v8, v{LL+3}, v{LL+4}, v{LL+5}")
    k(f"v_max3_f32 v7, v7, v{LL+6}, v{LL+7}")
    k(f"v_max_f32 v7, v7, v8")
    l2e = f2u(math.log2(math.e))
    for w in range(8): k(f"v_sub_f32 v{LL+w}, v{LL+w}, v7")
    for w in range(8): k(f"v_mul_f32 v{LL+w}, {l2e:#x}, v{LL+w}")
    for w in range(8): k(f"v_exp_f32 v{LL+w}, v{LL+w}")
    k(f"v_add_f32 v7, v{LL}, v{LL+1}")
    k(f"v_add_f32 v8, v{LL+2}, v{LL+3}")
    k(f"v_add_f32 v9, v{LL+4}, v{LL+5}")
    k(f"v_add_f32 v10, v{LL+6}, v{LL+7}")
    k("v_add_f32 v7, v7, v8\nv_add_f32 v9, v9, v10\nv_add_f32 v7, v7, v9\nv_rcp_f32 v7, v7")
    for w in range(8): k(f"v_mul_f32 v{LL+w}, v{LL+w}, v7")
    for i in range(4): k(f"v_cvt_pk_bf16_f32 v{PP+i}, v{LL+2*i}, v{LL+2*i+1}")
    Lc = k.lab("ac")
    k(f"s_cmp_lt_u32 s33, 4\ns_cbranch_scc1 {Lc}")
    k(f"s_waitcnt vmcnt(0)\nv_cmp_ne_u32 vcc, s101, v248\ns_cbranch_vccnz {Lc}")
    G["B01"]()
    k.label(Lc)
    for i in range(18): k(f"v_mov_b32 v{OA+i}, 0")
    k("s_waitcnt lgkmcnt(0)")
    for wp in range(4):
        x, y = VV + 20 * wp, VV + 20 * wp + 10
        for i in range(9):
            k(f"v_perm_b32 v{KK+2*i}, v{y+i}, v{x+i}, s21")
            k(f"v_perm_b32 v{KK+2*i+1}, v{y+i}, v{x+i}, s22")
        for i in range(18): k(f"v_dot2c_f32_bf16 v{OA+i}, v{KK+i}, v{PP+wp}")
    for i in range(9): k(f"v_cvt_pk_bf16_f32 v{Q+i}, v{OA+2*i}, v{OA+2*i+1}")
    for h in range(4): k(f"ds_write_b64 v3, {vr(Q+2*h,2)} offset:{14*440+8*h}")
    k(f"ds_write_b32 v2, v{Q+8} offset:{14*440}")
    k("s_waitcnt lgkmcnt(0)")
    k("s_barrier")
    for n in range(3):
        k(f"ds_read_b64 {vr(KK+4*n,2)}, v13 offset:{64*n}")
        k(f"ds_read_b64 {vr(KK+4*n+2,2)}, v13 offset:{64*n+8}")
    for n in range(3):
        k(f"s_waitcnt lgkmcnt({4-2*n})")
        if n == 2: k("s_mov_b64 exec, 0xffff")
        k(f"buffer_store_dwordx4 {vr(KK+4*n,4)}, v12, s[16:19], s20 offen offset:{1024*n} sc1")
    k("s_mov_b64 exec, -1")
    if stamps and not fused:
        st(20); k("s_waitcnt vmcnt(0)"); st(20)
    if fused: k(f"s_branch {L['g2X']}")
    else: k("s_endpgm")

def w3_unit(k, issue, ploop):
    Ln, Lg = k.lab("nat"), k.lab("go")
    k(f"""
    s_load_dwordx2 s[28:29], s[0:1], {KA['wo']}
    s_load_dwordx2 s[30:31], s[0:1], {KA['w_out']}
    s_mul_i32 s20, s2, 3
    s_add_u32 s20, s20, s40          ; unit
    s_cmp_lt_u32 s40, 3
    s_cselect_b32 s20, s20, 720
    s_lshr_b32 s21, s20, 3           ; step
    s_and_b32 s22, s20, 7            ; nt
    s_waitcnt lgkmcnt(0)
    s_cmp_lt_u32 s21, 18
    s_cselect_b32 s24, s28, s30
    s_cselect_b32 s25, s29, s31
    s_mov_b32 s26, {2304*1152}
    s_cselect_b32 s26, {576*1152}, s26
    s_mov_b32 s27, 0x20000
    s_cbranch_scc1 {Ln}
    s_sub_u32 s50, s21, 18
    s_mul_i32 s55, s50, 57
    s_lshr_b32 s55, s55, 9           ; u
    s_mul_i32 s56, s55, 9
    s_sub_u32 s56, s50, s56          ; v
    s_mul_i32 s55, s55, 288
    s_lshr_b32 s57, s56, 2
    s_mul_i32 s57, s57, 144
    s_and_b32 s50, s56, 3
    s_lshl_b32 s50, s50, 5
    s_add_u32 s57, s57, s50
    s_cmp_eq_u32 s56, 8
    s_cselect_b32 s57, 128, s57
    s_cselect_b32 s28, 4, 16
    s_cselect_b32 s29, 8, 4
    s_cselect_b32 s30, 144, 8
    s_add_u32 s23, s55, s57
    s_branch {Lg}
    {Ln}:
    s_lshl_b32 s23, s21, 5
    s_mov_b32 s28, 4
    s_mov_b32 s29, 8
    s_mov_b32 s30, 16
    {Lg}:
    s_mul_i32 s23, s23, 1152
    s_mul_i32 s50, s22, 144
    s_add_u32 s23, s23, s50
    s_cmp_lt_u32 s20, 720
    s_cselect_b32 s23, s23, 0x7fffffff
    s_mul_i32 s31, s40, 5120
    s_add_u32 s31, s31, 104448
    s_mov_b32 m0, s31
    """)
    for n in range(5):
        k(f"""
        v_add_u32 v12, {n*64}, v0
        v_mul_u32_u24 v13, 57, v12
        v_lshrrev_b32 v13, 9, v13        ; rho
        v_mul_u32_u24 v14, 9, v13
        v_sub_u32 v12, v12, v14          ; chunk
        v_bfe_u32 v15, v13, 2, 1
        v_mul_u32_u24 v15, s28, v15
        v_bfe_u32 v14, v13, 3, 1
        v_mad_u32_u24 v15, v14, s29, v15
        v_bfe_u32 v14, v13, 4, 1
        v_mad_u32_u24 v15, v14, s30, v15
        v_and_b32 v14, 3, v13
        v_add_u32 v15, v15, v14
        v_mul_u32_u24 v15, 1152, v15
        v_lshl_add_u32 v15, v12, 4, v15
        v_lshrrev_b32 v13, 5, v13
        v_lshl_or_b32 v15, v13, 30, v15
        buffer_load_dwordx4 v15, s[24:27], s23 offen lds
        s_add_u32 m0, m0, 1024
        """)
    k(f"""
    v_lshrrev_b32 v12, 4, v0         ; g
    v_bfe_u32 v13, v0, 2, 2          ; r
    v_and_b32 v14, 3, v0             ; c4
    v_lshl_add_u32 v15, v12, 3, v13
    v_mul_u32_u24 v15, 144, v15
    v_lshl_add_u32 v15, v14, 3, v15
    v_add_u32 v15, s31, v15
    v_and_b32 v12, 1, v12
    v_lshrrev_b32 v16, 1, v14
    v_lshl_add_u32 v12, v12, 1, v16
    v_lshl_add_u32 v12, v12, 3, v13
    v_mul_u32_u24 v12, 144, v12
    v_and_b32 v14, 1, v14
    v_lshl_add_u32 v12, v14, 3, v12
    v_add_u32 v12, s31, v12
    s_lshr_b32 s55, s21, 1
    s_lshl_b32 s55, s55, 3
    s_add_u32 s55, s55, s22
    s_mul_i32 s55, s55, 9216
    s_and_b32 s56, s21, 1
    s_lshl_b32 s57, s56, 9
    s_add_u32 s57, s57, s55
    s_add_u32 s57, s57, 8192
    s_lshl_b32 s56, s56, 10
    s_add_u32 s55, s55, s56
    s_add_u32 s56, s55, 4096
    """)
    ploop(2, issue, 14)
    ploop(1, issue, 9)
    for j in range(4):
        k(f"ds_read_b64_tr_b16 {vr(20+j*4,2)}, v15 offset:{j*32}")
        k(f"ds_read_b64_tr_b16 {vr(22+j*4,2)}, v15 offset:{j*32+576}")
    k("ds_read_b64_tr_b16 v[36:37], v12 offset:128")
    k(f"ds_read_b64_tr_b16 v[38:39], v12 offset:{128+576}")
    for j in range(4):
        k(f"s_waitcnt lgkmcnt({8-2*j})")
        k(f"buffer_store_dwordx4 {vr(20+j*4,4)}, v1, s[68:71], s{55+(j>>1)} offen offset:{(j&1)*2048} sc1")
    k("s_waitcnt lgkmcnt(0)")
    k("s_mov_b32 exec_hi, 0")
    k("buffer_store_dwordx4 v[36:39], v1, s[68:71], s57 offen sc1")
    k("s_mov_b32 exec_hi, -1")
    ploop(2, issue, 14)
    ploop(1, issue, 9)

S2, R2, SZ2, BO2 = 32, 3, 34816, 16384
ZS = 126976
S3, R3, SZ3, BO3, LA3, SL0 = 45, 7, 17408, 8192, 4, 5
PL, PF, PA = 244, 245, 246

def tiles(k):
    k("""
    s_and_b32 s38, s34, 3
    s_lshl_b32 s38, s38, 3
    s_and_b32 s39, s35, 7
    s_add_u32 s38, s38, s39
    s_lshr_b32 s39, s34, 2
    s_lshl_b32 s39, s39, 2
    s_lshr_b32 s50, s35, 3
    s_add_u32 s39, s39, s50          ; nt3
    """)

def g2_hooks(k):
    def issueA():
        k("s_add_u32 m0, s41, s49")
        for n in range(4):
            if n: k(f"s_add_u32 m0, m0, 1024\ns_add_u32 s50, s42, {n*32768}")
            k(f"buffer_load_dwordx4 v{PA+(n&1)}, s[8:11], s{50 if n else 42} offen lds")
        k("s_add_u32 s42, s42, 128")
    def issueB():
        lin_dma(k, 4, 12, 43, 47, 49, vl16=PL, mods=" sc1")
        k("s_add_u32 m0, s45, s49")
        k("s_mov_b32 exec_hi, 0")
        k(f"buffer_load_dwordx4 v{PL}, s[12:15], s46 offen sc1 lds")
        k("s_mov_b32 exec_hi, -1")
        k(f"s_add_u32 s43, s43, {144*2048}")
        k(f"s_add_u32 s46, s46, {144*2048}")
    def poll(): k(f"buffer_load_dword v248, v{PF}, s[84:87], s53 offen sc1")
    def setup():
        srd(k, 8, 66, 0, 2048 * 4096)
        srd(k, 12, 4, Z2T_OFF, Z2T_SZ)
        k(f"""
        v_lshlrev_b32 v{PL}, 4, v0
        v_lshlrev_b32 v{PF}, 2, v0
        v_lshrrev_b32 v{PA+1}, 4, v0
        v_and_b32 v{PA}, 7, v0
        v_xor_b32 v{PA}, v{PA}, v{PA+1}
        v_lshrrev_b32 v{PA+1}, 3, v0
        v_lshlrev_b32 v{PA+1}, 12, v{PA+1}
        v_lshl_add_u32 v{PA}, v{PA}, 4, v{PA+1}
        v_xor_b32 v{PA+1}, 64, v{PA}
        s_lshl_b32 s41, s40, 12
        s_lshl_b32 s42, s36, 19
        s_lshl_b32 s50, s40, 17
        s_add_u32 s42, s42, s50          ; A goff
        s_mul_i32 s43, s37, 18432
        s_lshl_b32 s45, s40, 9
        s_add_u32 s46, s43, s45
        s_add_u32 s46, s46, 16384        ; B2 goff
        s_add_u32 s43, s43, s41          ; B goff
        s_add_u32 s47, s41, {BO2}
        s_add_u32 s45, s45, {BO2+16384}
        s_lshl_b32 s53, s37, 8
        s_add_u32 s53, s53, {F2}
        s_mov_b32 s100, 0
        s_mov_b32 s49, 0
        """)
        issueA()
        k(f"s_mov_b32 s49, {SZ2}")
        issueA()
        poll()
    def B01():
        k("s_mov_b32 s49, 0")
        issueB()
        k(f"s_mov_b32 s49, {SZ2}")
        issueB()
        k(f"s_mov_b32 s49, {2*SZ2}\ns_mov_b32 s100, 1")
    return dict(setup=setup, B01=B01, issueA=issueA, issueB=issueB, poll=poll)

def g23_body(k, st, L, G):
    R, SZ, BO = R2, SZ2, BO2
    stamps = st.on
    k.label(L["g2X"])
    k(f"s_cmp_ge_u32 s33, 4\ns_cbranch_scc1 {L['g2D2']}")
    k.label(L["g2C"])
    ACC, BUF, ZR, XT, BR, BP, T = 144, [0, 36, 72, 108], 0, 224, 234, 40, 48
    RW, QQ = 238, 239
    G0, G1, GB, GBH = 241, 242, 243, 244
    VA0, VA1, VB, VL16, VT, GO = 248, 249, 250, 251, 252, 240
    acc = lambda i, j: ACC + (i * 5 + j) * 4
    k(f"""
    s_load_dwordx2 s[6:7], s[0:1], {KA['b_sp']}
    s_load_dwordx2 s[64:65], s[0:1], {KA['x']}
    s_load_dwordx2 s[66:67], s[0:1], {KA['out']}
    v_mbcnt_lo_u32_b32 v{VL16}, -1, 0
    v_mbcnt_hi_u32_b32 v{VL16}, -1, v{VL16}
    v_lshlrev_b32 v{VL16}, 4, v{VL16}
    s_and_b32 s40, s33, 1            ; wm
    s_lshr_b32 s41, s33, 1           ; wn
    v_bfe_u32 v{RW}, v{VL16}, 4, 4        ; row
    v_lshrrev_b32 v{QQ}, 8, v{VL16}     ; q
    v_lshrrev_b32 v{VA0}, 1, v{RW}
    v_xor_b32 v{VA0}, v{QQ}, v{VA0}
    v_lshlrev_b32 v{VA0}, 4, v{VA0}
    v_lshl_add_u32 v{VA0}, v{RW}, 7, v{VA0}
    s_lshl_b32 s42, s40, 13
    v_add_u32 v{VA0}, s42, v{VA0}
    v_xor_b32 v{VA1}, 64, v{VA0}
    s_lshl_b32 s43, s41, 13
    s_add_u32 s43, s43, {BO}
    v_add_u32 v{VB}, s43, v{VL16}
    s_cmp_eq_u32 s41, 0
    s_cselect_b64 vcc, -1, 0
    """)
    adv_setup(k, R, SZ)
    st()
    def reads(sub, b):
        o = [f"ds_read_b128 {vr(BUF[b]+i*4,4)}, v{VA1 if sub else VA0} offset:{i*2048}" for i in range(4)]
        o += [f"ds_read_b128 {vr(BUF[b]+16+j*4,4)}, v{VB} offset:{(j if j < 4 else 8)*2048+sub*1024}" for j in range(5)]
        return o
    def mf(b, seq, zero):
        return [f"v_mfma_f32_16x16x32_bf16 {vr(acc(i,j),4)}, {vr(BUF[b]+16+j*4,4)}, {vr(BUF[b]+i*4,4)}, {'0' if zero else vr(acc(i,j),4)}"
                for i, j in seq]
    def half(b, other, zero):
        for x in interleave(mf(b, snake(4, 4), zero), other): k(x)
        Ls = k.lab("sk")
        k(f"s_cbranch_vccz {Ls}")
        for x in mf(b, [(3 - i, 4) for i in range(4)], zero): k(x)
        k.label(Ls)
    adv = adv_ins(R, [VA0, VA1, VB])
    def first():
        tiles(k)
        k(f"""
        s_lshl_b32 s46, s36, 3
        s_lshl_b32 s47, s40, 2
        s_add_u32 s46, s46, s47          ; tfrag0
        s_mul_i32 s60, s46, {TFS}
        s_lshr_b32 s47, s37, 1
        s_mul_i32 s47, s47, 9216
        s_add_u32 s60, s60, s47
        s_and_b32 s47, s37, 1
        s_lshl_b32 s62, s47, 9
        s_add_u32 s62, s62, s60
        s_add_u32 s62, s62, {(18+8)*1024}
        s_lshl_b32 s47, s47, 12
        s_add_u32 s60, s60, s47
        s_lshl_b32 s47, s41, 11
        s_add_u32 s60, s60, s47
        s_add_u32 s60, s60, {18*1024}
        s_mul_i32 s48, s40, {4*4608}
        s_add_u32 s48, s48, {ZS}
        s_waitcnt lgkmcnt(0)
        """)
        srd(k, 16, 4, A3_OFF, A3_SZ)
        srd(k, 24, 6, 0, 4096)
        srd(k, 72, 64, 0, 2048 * 1152)
        srd(k, 76, 66, 0, 2048 * 1152)
        srd(k, 84, 4, FLG_OFF, FLG_SZ)
        pre = f"""
        s_lshl_b32 s47, s46, 4
        v_add_lshl_u32 v{G0}, s47, v{RW}, 1
        v_mul_u32_u24 v{GO}, 1152, v{RW}
        v_lshl_add_u32 v{GO}, v{QQ}, 3, v{GO}
        s_lshl_b32 s52, s38, 2
        s_lshl_b32 s47, s40, 1
        s_add_u32 s52, s52, s47
        s_add_u32 s52, s52, s41
        s_mul_i32 s47, s52, {16*1152}
        s_mul_i32 s50, s39, 144
        s_add_u32 s47, s47, s50
        v_lshrrev_b32 v{G1}, 1, v{QQ}
        v_lshlrev_b32 v{G1}, 8, v{G1}
        v_lshl_add_u32 v{G1}, v{RW}, 4, v{G1}
        v_and_b32 v{VT}, 1, v{QQ}
        v_lshl_add_u32 v{VT}, v{VT}, 3, v{G1}
        """.strip().split("\n")
        pre = [x.strip() for x in pre]
        pre += [f"buffer_load_ushort v{BR+i}, v{G0}, s[24:27], 0 offen offset:{32*i}" for i in range(4)]
        pre += [f"buffer_load_dwordx2 {vr(XT+2*j,2)}, v{GO}, s[72:75], s47 offen offset:{j*32}" for j in range(5)]
        for x in pre: k(x)
    lp = loop4(k, S2, reads, half, adv, st, after_first=first, vm_wait=True)
    assert lp == 1
    k("s_barrier")
    k(f"""
    s_lshl_b32 s50, s41, 11
    s_add_u32 s50, s50, s48
    v_add_u32 v{VA0}, s50, v{VL16}
    v_add_u32 v{VA1}, s48, v{VT}
    """)
    zr = []
    for i in range(4):
        for p in range(2): zr.append(f"ds_read_b128 {vr(ZR+i*10+p*4,4)}, v{VA0} offset:{i*4608+p*1024}")
        zr.append(f"ds_read_b64 {vr(ZR+i*10+8,2)}, v{VA1} offset:{i*4608+4096}")
    for i in range(4): zr += [f"v_lshlrev_b32 v{BP+2*i}, 16, v{BR+i}", f"v_lshlrev_b32 v{BP+2*i+1}, 16, v{BR+i}"]
    half(2, zr[:12], False)
    half(3, zr[12:], False)
    k(f"""
    s_lshl_b32 s42, s40, 12
    s_lshl_b32 s43, s41, 10
    s_add_u32 s42, s42, s43
    s_add_u32 s42, s42, {SL0*SZ3}
    s_lshl_b32 s44, s41, 11
    s_add_u32 s45, s42, s44
    v_add_u32 v{G0}, s45, v{VL16}
    s_xor_b32 s44, s44, 2048
    s_add_u32 s45, s42, s44
    v_add_u32 v{G1}, s45, v{VL16}
    s_add_u32 s45, s43, {BO3+SL0*SZ3}
    v_add_u32 v{GB}, s45, v{VL16}
    v_and_b32 v{RW}, 7, v{RW}
    v_lshl_add_u32 v{RW}, v{QQ}, 3, v{RW}
    v_lshlrev_b32 v{RW}, 4, v{RW}
    s_lshl_b32 s45, s41, 9
    s_add_u32 s45, s45, {BO3+8192+SL0*SZ3}
    v_add_u32 v{GBH}, s45, v{RW}
    s_waitcnt lgkmcnt(0)
    """)
    st()
    def quad(i, j, n):
        a, z, t = acc(i, j), ZR + i * 10 + j * 2, T + (n & 1) * 4
        k(f"""
        v_pk_add_f32 {vr(a,2)}, {vr(a,2)}, {vr(BP+2*i,2)}
        v_pk_add_f32 {vr(a+2,2)}, {vr(a+2,2)}, {vr(BP+2*i,2)}
        v_lshlrev_b32 v{t}, 16, v{z}
        v_and_b32 v{t+1}, 0xffff0000, v{z}
        v_lshlrev_b32 v{t+2}, 16, v{z+1}
        v_and_b32 v{t+3}, 0xffff0000, v{z+1}
        v_pk_mul_f32 {vr(a,2)}, {vr(a,2)}, {vr(t,2)}
        v_pk_mul_f32 {vr(a+2,2)}, {vr(a+2,2)}, {vr(t+2,2)}
        v_cvt_pk_bf16_f32 v{z}, v{a}, v{a+1}
        v_cvt_pk_bf16_f32 v{z+1}, v{a+2}, v{a+3}
        """)
    n = 0
    for i in range(4):
        for j in range(4):
            quad(i, j, n); n += 1
            if j & 1: k(f"buffer_store_dwordx4 {vr(ZR+i*10+(j>>1)*4,4)}, v{VL16}, s[16:19], s60 offen offset:{(j>>1)*1024} sc1")
        if i < 3: k(f"s_add_u32 s60, s60, {TFS}")
    Ls = k.lab("es")
    k(f"s_cbranch_vccz {Ls}")
    for i in range(4):
        quad(i, 4, n); n += 1
        k(f"buffer_store_dwordx2 {vr(ZR+i*10+8,2)}, v{VT}, s[16:19], s62 offen sc1")
        if i < 3: k(f"s_add_u32 s62, s62, {TFS}")
    k.label(Ls)
    AC3, BU3 = 144, [0, 28]
    ac3 = lambda i, j: AC3 + (i * 5 + j) * 4
    for j in range(5):
        for h in range(2):
            k(f"v_lshlrev_b32 v{ac3(0,j)+2*h}, 16, v{XT+2*j+h}")
            k(f"v_and_b32 v{ac3(0,j)+2*h+1}, 0xffff0000, v{XT+2*j+h}")
    for r in range(ac3(1, 0), ac3(1, 4) + 4): k(f"v_mov_b32 v{r}, 0")
    adv_setup(k, R3, SZ3)
    k(f"s_mov_b32 s59, {SL0}")
    st()
    k("s_waitcnt vmcnt(0)")
    set_flag(k, f"s_lshl_b32 s50, s36, 8\ns_lshl_b32 s51, s37, 4\ns_add_u32 s50, s50, s51\ns_lshl_b32 s51, s33, 2\ns_add_u32 s50, s50, s51\ns_add_u32 s50, s50, {F4}", 60)
    def reads3(sub, b):
        o = [f"ds_read_b128 {vr(BU3[b],4)}, v{G0}", f"ds_read_b128 {vr(BU3[b]+4,4)}, v{G1}"]
        o += [f"ds_read_b128 {vr(BU3[b]+8+j*4,4)}, v{GB} offset:{j*2048}" for j in range(4)]
        o += [f"ds_read_b128 {vr(BU3[b]+24,4)}, v{GBH}"]
        return o
    def mf3(b):
        return [f"v_mfma_f32_16x16x32_bf16 {vr(ac3(i,j),4)}, {vr(BU3[b]+8+j*4,4)}, {vr(BU3[b]+i*4,4)}, {vr(ac3(i,j),4)}"
                for i, j in snake(2, 5)]
    last = consumer_loop(k, S3, 1, reads3, mf3, adv_ins(R3, [G0, G1, GB, GBH]), True, st=st)
    st()
    for m in mf3(last): k(m)
    k("s_lshl_b32 s42, s40, 1")
    ksplit_reduce(k, ac3(1, 0), 5, 42, 41, VL16, G0, G1, 0)
    for n in range(5): k(f"ds_read_b128 {vr(ac3(1,0)+n*4,4)}, v{G1} offset:{n*1024}")
    for j in range(5):
        k(f"s_waitcnt lgkmcnt({4-j})")
        a, b = ac3(0, j), ac3(1, j)
        k(f"v_pk_add_f32 {vr(a,2)}, {vr(a,2)}, {vr(b,2)}")
        k(f"v_pk_add_f32 {vr(a+2,2)}, {vr(a+2,2)}, {vr(b+2,2)}")
        k(f"v_cvt_pk_bf16_f32 v{2*j}, v{a}, v{a+1}")
        k(f"v_cvt_pk_bf16_f32 v{2*j+1}, v{a+2}, v{a+3}")
        if j == 4: k("s_mov_b32 exec_hi, 0")
        k(f"buffer_store_dwordx2 {vr(2*j,2)}, v{GO}, s[76:79], s47 offen offset:{j*32}")
    if stamps:
        k("s_mov_b32 exec_hi, -1")
        st(); k("s_waitcnt vmcnt(0)"); st()
    k("s_endpgm")
    k.label(L["g2D"])
    G["setup"]()
    k.label(L["g2D2"])
    if OPT.get("pd", 3): k(f"s_setprio {OPT.get('pd', 3)}")
    Lb = k.lab("bd")
    k(f"s_cmp_lg_u32 s100, 0\ns_cbranch_scc1 {Lb}")
    k("s_waitcnt vmcnt(0)")
    spin(k, G["poll"], lambda: k("v_cmp_ne_u32 vcc, s101, v248"))
    G["B01"]()
    k.label(Lb)
    def issue():
        G["issueA"](); G["issueB"](); slot_adv_prod(k, R, SZ, 49)
    def ploop(n, iss, allowed):
        Lp = k.lab("pl")
        k(f"s_mov_b32 s58, {n}")
        k.label(Lp)
        k(f"s_waitcnt vmcnt({allowed})")
        k("s_barrier")
        iss()
        k(f"s_sub_u32 s58, s58, 1\ns_cmp_lg_u32 s58, 0\ns_cbranch_scc1 {Lp}")
    tiles(k)
    srd(k, 68, 4, W3_OFF, W3_SZ)
    k(f"""
    v_mov_b32 v1, v{PL}
    s_lshl_b32 s60, s40, 11          ; g3 A lds
    s_lshl_b32 s61, s38, 2
    s_add_u32 s61, s61, s40
    s_mul_i32 s61, s61, {TFS}        ; g3 A goff
    s_mul_i32 s62, s39, 9216
    s_lshl_b32 s63, s40, 8
    s_add_u32 s48, s62, s63
    s_add_u32 s48, s48, 8192         ; g3 B2 goff
    s_add_u32 s62, s62, s60          ; g3 B goff
    s_add_u32 s65, s60, {BO3}
    s_add_u32 s66, s63, {BO3+8192}
    s_mov_b32 s67, {SL0*SZ3}
    s_lshl_b32 s51, s36, 3
    s_lshl_b32 s52, s40, 1
    s_add_u32 s51, s51, s52
    s_mul_i32 s51, s51, {TFS}
    s_lshr_b32 s50, s37, 1
    s_mul_i32 s50, s50, 9216
    s_add_u32 s51, s51, s50
    s_and_b32 s50, s37, 1
    s_lshl_b32 s44, s50, 9
    s_add_u32 s44, s44, s51
    s_add_u32 s44, s44, {26*1024}
    s_lshl_b32 s50, s50, 12
    s_add_u32 s51, s51, s50
    s_add_u32 s51, s51, {18*1024}
    s_mul_i32 s52, s52, 4608
    s_add_u32 s52, s52, {ZS}
    s_lshr_b32 s53, s38, 1
    s_lshl_b32 s53, s53, 8
    s_add_u32 s53, s53, {F4}
    s_movk_i32 s54, {F3}
    """)
    ZB = OPT.get("zb", 21)
    ploop(1, issue, 5)
    ploop(3, issue, 9)
    w3_unit(k, issue, ploop)
    Ls = k.lab("f3")
    k(f"s_cmp_lg_u32 s40, 0\ns_cbranch_scc1 {Ls}")
    set_flag(k, f"s_lshl_b32 s50, s2, 2\ns_add_u32 s50, s50, {F3}", 8)
    k.label(Ls)
    ploop(ZB - 11, issue, 9)
    ld = lambda: k("buffer_load_dwordx4 v[8:11], v1, s[84:87], s54 offen sc1")
    ld()
    ploop(1, issue, 10)
    k("s_waitcnt vmcnt(9)")
    spin(k, ld, lambda: k("v_xor_b32 v8, s101, v8\nv_xor_b32 v9, s101, v9\nv_xor_b32 v10, s101, v10\nv_xor_b32 v11, s101, v11\nv_or3_b32 v8, v8, v9, v10\nv_or_b32 v8, v8, v11\nv_cmp_ne_u32 vcc, 0, v8"))
    for e in range(2):
        k(f"s_add_u32 m0, s52, {e*4608}")
        for n in range(4): k(f"buffer_load_dwordx4 v1, s[16:19], s51 offen offset:{n*1024} sc1 lds")
        k(f"s_add_u32 m0, s52, {e*4608+4096}")
        k("s_mov_b32 exec_hi, 0")
        k(f"buffer_load_dwordx4 v1, s[16:19], s44 offen sc1 lds")
        k("s_mov_b32 exec_hi, -1")
        k(f"s_add_u32 s51, s51, {TFS}\ns_add_u32 s44, s44, {TFS}")
    ploop(2, issue, 19)
    ploop(30 - ZB - 2, issue, 9)
    def issue3():
        k("s_add_u32 m0, s60, s67")
        for n in range(2): k(f"buffer_load_dwordx4 v1, s[16:19], s61 offen offset:{n*1024} sc1 lds")
        k("s_add_u32 m0, s65, s67")
        for n in range(2): k(f"buffer_load_dwordx4 v1, s[68:71], s62 offen offset:{n*1024} sc1 lds")
        k("s_add_u32 m0, s66, s67")
        k("s_mov_b64 exec, 0xffff")
        k(f"buffer_load_dwordx4 v1, s[68:71], s48 offen sc1 lds")
        k("s_mov_b64 exec, -1")
        k(f"s_add_u32 s61, s61, 2048")
        k(f"s_add_u32 s62, s62, {8*9216}")
        k(f"s_add_u32 s48, s48, {8*9216}")
        slot_adv_prod(k, R3, SZ3, 67)
    k("s_waitcnt vmcnt(9)")
    k("s_barrier")
    issue3(); issue3()
    k("s_waitcnt vmcnt(10)")
    k("s_barrier")
    k("s_barrier")
    issue3(); issue3()
    NW = 0
    if OPT.get("w3l2", 0):
        k(f"""
        s_lshr_b32 s50, s34, 2
        s_mul_i32 s50, s50, {4*9216}
        s_mul_i32 s55, s35, {8*9216}
        s_add_u32 s50, s50, s55
        s_mul_i32 s55, s40, 9216
        s_add_u32 s50, s50, s55
        v_lshlrev_b32 v12, 7, v0
        buffer_load_dword v13, v12, s[68:71], s50 offen
        s_add_u32 s50, s50, {32*8*9216}
        buffer_load_dword v14, v12, s[68:71], s50 offen
        """)
        NW = 2
    ploop(3, issue3, 15 + NW)
    ploop(1, issue3, 15)
    ld4 = lambda: k(f"buffer_load_dword v4, v{PF}, s[84:87], s53 offen sc1")
    ld4()
    k("s_waitcnt vmcnt(16)")
    k("s_barrier")
    issue3()
    k("s_waitcnt vmcnt(16)")
    k("s_barrier")
    k("s_waitcnt vmcnt(5)")
    spin(k, ld4, lambda: k("v_cmp_ne_u32 vcc, s101, v4"))
    issue3()
    ploop(S3 - LA3 - 6, issue3, 15)
    for b in range(S3 - LA3, S3):
        k(f"s_waitcnt vmcnt({(S3-1-b)*5})")
        k("s_barrier")
    k("s_endpgm")

class DbgStamps:
    def __init__(self, k): self.k, self.on, self.n = k, True, 0
    def init(self):
        k = self.k
        k(f"s_load_dwordx2 s[90:91], s[0:1], {KA['dbg']}\ns_waitcnt lgkmcnt(0)")
        srd(k, 96, 90, 0, 256)
        k("s_mov_b32 s95, 4")
    def __call__(self, v=254):
        k = self.k
        self.n += 1
        if self.n <= 3: return
        L = k.lab("ds")
        k(f"""
        s_cmp_lg_u32 s33, 0
        s_cbranch_scc1 {L}
        s_memrealtime s[92:93]
        s_waitcnt lgkmcnt(0)
        s_sub_u32 s92, s92, s101
        v_mov_b32 v{v}, s92
        v_mov_b32 v{v-1}, 0
        s_mov_b64 exec, 1
        buffer_atomic_umax v{v}, v{v-1}, s[96:99], s95 offen
        s_mov_b64 exec, -1
        s_add_u32 s95, s95, 4
        {L}:
        """)

def gen_main(name, stamps=False):
    k = Kern(name); st = Stamps(k, stamps, 1)
    if OPT.get("dbg", 0): st = DbgStamps(k)
    L = {n: k.lab(n) for n in "end D C2q att g2C g2D g2D2 g2X nx".split()}
    preamble(k, 256, L["end"], [(4, "ws"), (6, "w_in"), (64, "wqkv"), (66, "w_sp"), (68, "x"), (74, "dbg")])
    k("s_mov_b32 s101, 1\ns_mov_b32 s100, 0")
    for r in range(244, 249): k(f"v_mov_b32 v{r}, 0")
    G = g2_hooks(k)
    k1_body(k, st, L, True, True, G)
    g23_body(k, st, L, G)
    k.label(L["end"])
    k("s_endpgm")
    return k

if __name__ == "__main__":
    HEADER = open("parallel_sum__sliding_local_dilated__mixer_gmlp__prompt.s.ref").read().split("; Override launch")[0]
    stamps = "stamps" in sys.argv[2:]
    for a in sys.argv[2:]:
        if "=" in a: OPT[a.split("=")[0]] = int(a.split("=")[1])
    ks = [(gen_main("parallel_sum__sliding_local_dilated__mixer_gmlp__prompt_kernel", stamps), 256, 256, 512, 163840)]
    txt = assemble_file(HEADER + "; generated by a python script (tile loops, fragment layouts and wait states hand-designed)\n", ks)
    if "plain" in sys.argv[2:]:
        txt = re.sub(r"; @launch kernel=\S+ grid", "; @launch grid", txt)
    open(sys.argv[1], "w").write(txt)
```

```python
import sys, math, re
from asmlib import *
import gen2
from gen2 import *
from gen4 import reduce16

FLG_OFF = 0x3430000; FLG_SZ = 32768
F5 = 13312
W1_OFF = WSP_OFF; W1_SZ = 16 * 9 * 18432
WQ_REL = W1_SZ; W12_SZ = W1_SZ + 8 * 9 * 28672
F0 = 16384
F1, F2, F4, F3 = 0, 4096, 8192, 12288
TFS = 90 * 1024
ATT = 69632
XSC = 153600
BSC = XSC + 9216
HSC = BSC + 256

def snake(no, ni):
    return [(o, i if o % 2 == 0 else ni - 1 - i) for o in range(no) for i in range(ni)]

def w144_voff(k, d, sid, pitch):
    k(f"""
    v_add_u32 v2, s{sid}, v0
    v_mul_u32_u24 v3, 3641, v2
    v_lshrrev_b32 v3, 16, v3
    v_mul_u32_u24 v4, 18, v3
    v_sub_u32 v2, v2, v4
    v_and_b32 v4, 4, v3
    v_and_b32 v5, 8, v3
    v_lshlrev_b32 v4, 1, v4
    v_lshrrev_b32 v5, 1, v5
    v_and_b32 v3, 0x33, v3
    v_or3_b32 v3, v3, v4, v5
    v_mul_u32_u24 v3, {pitch}, v3
    v_lshl_add_u32 v{d}, v2, 4, v3
    """)
def qkv_voff(k, d, sid):
    k(f"""
    v_add_u32 v2, s{sid}, v0
    v_mul_u32_u24 v3, 2341, v2
    v_lshrrev_b32 v3, 16, v3
    v_mul_u32_u24 v4, 28, v3
    v_sub_u32 v2, v2, v4
    v_and_b32 v4, 4, v3
    v_lshrrev_b32 v5, 1, v4
    v_xor_b32 v2, v2, v5
    v_lshlrev_b32 v4, 1, v4
    v_and_b32 v5, 8, v3
    v_lshrrev_b32 v5, 1, v5
    v_and_b32 v3, 0x33, v3
    v_or3_b32 v3, v3, v4, v5
    v_mul_u32_u24 v3, 3456, v3
    v_mul_u32_u24 v4, 57, v2
    v_lshrrev_b32 v4, 9, v4
    v_mul_u32_u24 v5, {1152-144}, v4
    v_lshl_add_u32 v5, v2, 4, v5
    v_add_u32 v3, v3, v5
    v_mov_b32 v5, 0x80000000
    v_cmp_gt_u32 vcc, 27, v2
    v_cndmask_b32 v{d}, v5, v3, vcc
    """)

def lin_dma(k, n, srdr, soff, mbase, slot, vl16=1, mods=""):
    for g in range(0, n, 4):
        if g == 0:
            k(f"s_add_u32 m0, s{mbase}, s{slot}"); so = soff
        else:
            k("s_add_u32 m0, m0, 4096"); k(f"s_add_u32 s50, s{soff}, {g*1024}"); so = 50
        for i in range(min(4, n - g)):
            k(f"buffer_load_dwordx4 v{vl16}, s[{srdr}:{srdr+3}], s{so} offen offset:{i*1024}{mods} lds")
def gat_dma(k, n, srdr, soff, mbase, slot, V):
    k(f"s_add_u32 m0, s{mbase}, s{slot}")
    for i in range(n):
        if i: k("s_add_u32 m0, m0, 1024")
        k(f"buffer_load_dwordx4 v{V+i}, s[{srdr}:{srdr+3}], s{soff} offen lds")

def spin(k, load, check):
    Lp, Ld = k.lab("sp"), k.lab("sd")
    check()
    k(f"s_cbranch_vccz {Ld}")
    k("s_mov_b32 s50, 0x8000")
    k.label(Lp)
    k(f"s_sleep {OPT.get('slp', 4)}")
    load()
    k("s_waitcnt vmcnt(0)")
    k("s_sub_u32 s50, s50, 1")
    check()
    k("s_cmp_eq_u32 s50, 0")
    k("s_cselect_b64 vcc, 0, vcc")
    k(f"s_cbranch_vccnz {Lp}")
    k.label(Ld)

def set_flag(k, soff_expr_lines, vt):
    k(soff_expr_lines)
    k(f"""
    v_mov_b32 v{vt}, s101
    v_mov_b32 v{vt+1}, 0
    s_mov_b64 exec, 1
    buffer_store_dword v{vt}, v{vt+1}, s[84:87], s50 offen sc1
    s_mov_b64 exec, -1
    """)

CNT = ["s_sub_u32 s58, s58, 1", "s_cmp_lg_u32 s58, 0"]


def phase0(k, st, L):
    SZ = 51200
    Lw, Ld, Ln6, Lnz, Lnt = k.lab("w3"), k.lab("p0d"), k.lab("n6"), k.lab("nz"), k.lab("nt")
    srd(k, 84, 4, FLG_OFF, FLG_SZ)
    k(f"""
    s_cmp_lg_u32 s33, 7
    s_cbranch_scc1 {Lnz}
    s_lshl_b32 s50, s36, 8
    s_lshl_b32 s51, s37, 4
    s_add_u32 s50, s50, s51
    s_lshl_b32 s51, s37, 8
    s_lshl_b32 s52, s36, 4
    s_add_u32 s51, s51, s52
    s_add_u32 s51, s51, {F2}
    s_add_u32 s52, s50, {F4}
    s_lshl_b32 s53, s2, 2
    s_add_u32 s53, s53, {F3}
    v_mov_b32 v4, s50
    v_writelane_b32 v4, s51, 1
    v_writelane_b32 v4, s52, 2
    v_writelane_b32 v4, s53, 3
    s_lshl_b32 s53, s44, 2
    s_add_u32 s53, s53, {F5}
    v_writelane_b32 v4, s53, 4
    s_mov_b64 exec, 31
    buffer_load_dword v241, v4, s[84:87], 0 offen
    s_mov_b64 exec, -1
    {Lnz}:
    s_cmp_lg_u32 s33, 6
    s_cbranch_scc1 {Lnt}
    """)
    srd(k, 28, 74, 0, 256)
    Lrd, Lgot = k.lab("rd"), k.lab("got")
    k(f"""
    v_mov_b32 v4, 0
    s_mov_b64 exec, 1
    s_cmp_lg_u32 s2, 0
    s_cbranch_scc1 {Lrd}
    s_memrealtime s[50:51]
    s_waitcnt lgkmcnt(0)
    s_or_b32 s50, s50, 1
    v_mov_b32 v5, s50
    buffer_store_dword v5, v4, s[28:31], 0 offen sc1
    s_branch {Lgot}
    {Lrd}:
    """)
    ldn = lambda: k("buffer_load_dword v5, v4, s[28:31], 0 offen sc1")
    ldn(); k("s_waitcnt vmcnt(0)")
    spin(k, ldn, lambda: k("v_cmp_eq_u32 vcc, 0, v5"))
    k(f"""
    {Lgot}:
    v_readfirstlane_b32 s101, v5
    v_mov_b32 v4, {HSC}
    ds_write_b32 v4, v5
    s_mov_b64 exec, -1
    {Lnt}:
    s_cmp_eq_u32 s32, 0
    s_cbranch_scc1 {Lw}
    """)
    k(f"""
    s_cmp_ge_u32 s33, 6
    s_cbranch_scc1 {Ln6}
    v_mul_u32_u24 v5, 112, v2
    v_add_u32 v5, {2*SZ}, v5
    s_lshl_b32 s46, s33, 4
    v_lshl_add_u32 v6, v3, 2, v5
    v_add_u32 v6, s46, v6
    s_mul_i32 s46, s33, 3
    s_lshl_b32 s47, s44, 11
    """)
    for i in range(3):
        k(f"""
        s_add_u32 s50, s46, {i}
        s_lshr_b32 s51, s50, 1
        s_lshl_b32 s51, s51, 18
        s_and_b32 s50, s50, 1
        s_lshl_b32 s50, s50, 10
        s_add_u32 s51, s51, s50
        s_add_u32 s{60+i}, s51, s47
        """)
    k("s_waitcnt vmcnt(0)")
    X, D = 20, 68
    for i in range(12):
        k(f"v_lshlrev_b32 v{X+2*i}, 16, v{8+i}")
        k(f"v_and_b32 v{X+2*i+1}, 0xffff0000, v{8+i}")
    def tree(base, n, dst):
        k(f"v_pk_add_f32 v[92:93], {vr(base,2)}, {vr(base+2,2)}")
        k(f"v_pk_add_f32 v[94:95], {vr(base+4,2)}, {vr(base+6,2)}")
        for i in range(4, n // 2): k(f"v_pk_add_f32 {vr(92+2*(i&1),2)}, {vr(92+2*(i&1),2)}, {vr(base+2*i,2)}")
        k("v_pk_add_f32 v[92:93], v[92:93], v[94:95]")
        k(f"v_add_f32 v{dst}, v92, v93")
    tree(X, 24, 96)
    k("ds_write_b32 v6, v96")
    k("s_waitcnt lgkmcnt(0)")
    k("s_barrier")
    for i in range(6): k(f"ds_read_b128 {vr(44+4*i,4)}, v5 offset:{i*16}")
    k("s_waitcnt lgkmcnt(0)")
    tree(44, 24, 96)
    k(f"v_mul_f32 v96, {f2u(1.0/576):#x}, v96")
    k("v_mov_b32 v97, v96")
    for i in range(12): k(f"v_pk_add_f32 {vr(D+2*i,2)}, {vr(X+2*i,2)}, v[96:97] neg_lo:[0,1] neg_hi:[0,1]")
    k(f"v_pk_mul_f32 v[92:93], {vr(D,2)}, {vr(D,2)}")
    k(f"v_pk_mul_f32 v[94:95], {vr(D+2,2)}, {vr(D+2,2)}")
    for i in range(2, 12): k(f"v_pk_fma_f32 {vr(92+2*(i&1),2)}, {vr(D+2*i,2)}, {vr(D+2*i,2)}, {vr(92+2*(i&1),2)}")
    k("v_pk_add_f32 v[92:93], v[92:93], v[94:95]")
    k("v_add_f32 v98, v92, v93")
    k("ds_write_b32 v6, v98 offset:2048")
    rnd_bf16(k, 96, 96)
    k("v_mov_b32 v97, v96")
    for i in range(12): k(f"v_pk_add_f32 {vr(X+2*i,2)}, {vr(X+2*i,2)}, v[96:97] neg_lo:[0,1] neg_hi:[0,1]")
    k("s_waitcnt lgkmcnt(0)")
    k("s_barrier")
    for i in range(6): k(f"ds_read_b128 {vr(44+4*i,4)}, v5 offset:{2048+i*16}")
    for i in range(12): k(f"v_cvt_pk_bf16_f32 v{8+i}, v{X+2*i}, v{X+2*i+1}")
    for i in range(12):
        k(f"v_lshlrev_b32 v{X+2*i}, 16, v{8+i}")
        k(f"v_and_b32 v{X+2*i+1}, 0xffff0000, v{8+i}")
    k("s_waitcnt lgkmcnt(0)")
    tree(44, 24, 98)
    k(f"v_mul_f32 v98, {f2u(1.0/576):#x}, v98")
    rnd_bf16(k, 98, 98)
    k(f"v_add_f32 v98, {f2u(1e-5):#x}, v98")
    rnd_bf16(k, 98, 98)
    k("v_sqrt_f32 v98, v98")
    rnd_bf16(k, 98, 98)
    k("v_rcp_f32 v98, v98")
    k("v_mov_b32 v99, v98")
    for i in range(12): k(f"v_pk_mul_f32 {vr(X+2*i,2)}, {vr(X+2*i,2)}, v[98:99]")
    for i in range(12): k(f"v_cvt_pk_bf16_f32 v{8+i}, v{X+2*i}, v{X+2*i+1}")
    for i in range(3): k(f"buffer_store_dwordx4 {vr(8+4*i,4)}, v1, s[8:11], s{60+i} offen sc1")
    k(f"s_waitcnt vmcnt(0)\ns_barrier\ns_branch {Ld}")
    k.label(Ln6)
    srd(k, 20, 4, ST_OFF, ST_SZ)
    Lz = k.lab("z7")
    k(f"""
    v_mov_b32 v4, 0
    v_lshlrev_b32 v5, 2, v0
    s_lshl_b32 s45, s44, 7
    s_cmp_lg_u32 s33, 7
    s_cbranch_scc1 {Lz}
    s_mov_b32 exec_hi, 0
    buffer_store_dword v4, v5, s[20:23], s45 offen sc1
    s_mov_b32 exec_hi, -1
    {Lz}:
    s_barrier
    s_barrier
    s_waitcnt vmcnt(0)
    s_barrier
    s_cmp_lg_u32 s33, 6
    s_cbranch_scc1 {Ld}
    v_mov_b32 v4, s101
    s_add_u32 s45, s45, {F0}
    s_mov_b32 exec_hi, 0
    buffer_store_dword v4, v5, s[84:87], s45 offen sc1
    s_mov_b32 exec_hi, -1
    s_branch {Ld}
    """)
    k.label(Lw)
    Lpf, Lq, Lgo, Ldn, Ls = k.lab("pf"), k.lab("rq"), k.lab("rg"), k.lab("rd"), k.lab("rs")
    srd(k, 20, 4, W1_OFF, W12_SZ)
    k(f"""
    s_lshl_b32 s45, s33, 7
    s_add_u32 s45, s45, s44          ; g
    s_cmp_ge_u32 s45, 576
    s_cbranch_scc1 {Lpf}
    s_mov_b32 s27, 0x20000
    s_cmp_ge_u32 s45, 288
    s_cbranch_scc1 {Lq}
    s_mov_b32 s24, s6
    s_mov_b32 s25, s7
    s_mov_b32 s26, {576*9216}
    s_lshr_b32 s46, s45, 4           ; step
    s_and_b32 s47, s45, 15           ; nt
    s_mul_i32 s48, s46, {32*9216}
    s_mul_i32 s50, s47, 288
    s_add_u32 s48, s48, s50
    s_mul_i32 s49, s47, 9
    s_lshr_b32 s50, s46, 1
    s_add_u32 s49, s49, s50
    s_mul_i32 s49, s49, 18432
    s_movk_i32 s52, 18
    s_movk_i32 s53, 3641
    s_movk_i32 s54, 9216
    s_mov_b32 s55, 0
    s_mov_b32 s56, 0
    s_branch {Lgo}
    {Lq}:
    s_mov_b32 s24, s64
    s_mov_b32 s25, s65
    s_mov_b32 s26, {576*3456}
    s_sub_u32 s45, s45, 288
    s_lshr_b32 s46, s45, 4           ; step
    s_bfe_u32 s47, s45, 0x30001      ; hg
    s_mul_i32 s48, s46, {32*3456}
    s_mul_i32 s50, s47, 144
    s_add_u32 s48, s48, s50
    s_mul_i32 s49, s47, 9
    s_lshr_b32 s50, s46, 1
    s_add_u32 s49, s49, s50
    s_mul_i32 s49, s49, 28672
    s_and_b32 s56, s45, 1
    s_mul_i32 s50, s56, {7*2048}
    s_add_u32 s49, s49, s50
    s_add_u32 s49, s49, {WQ_REL}
    s_mul_i32 s56, s56, 14
    s_movk_i32 s52, 14
    s_movk_i32 s53, 4682
    s_movk_i32 s54, 3456
    s_movk_i32 s55, 1008
    {Lgo}:
    s_and_b32 s50, s46, 1
    s_lshl_b32 s50, s50, 10
    s_add_u32 s49, s49, s50
    s_mul_i32 s57, s33, 9216
    s_add_u32 s57, s57, 86016
    s_mov_b32 m0, s57
    """)
    for n in range(9):
        k(f"""
        v_add_u32 v2, {n*64}, v0
        v_mul_u32_u24 v3, s53, v2
        v_lshrrev_b32 v3, 16, v3         ; row
        v_mul_u32_u24 v4, s52, v3
        v_sub_u32 v2, v2, v4
        v_add_u32 v2, s56, v2            ; chunk
        v_mul_u32_u24 v4, 57, v2
        v_lshrrev_b32 v4, 9, v4          ; segment
        v_mul_u32_u24 v5, s54, v3
        v_lshl_add_u32 v5, v2, 4, v5
        v_mad_u32_u24 v5, v4, s55, v5
        v_lshrrev_b32 v3, 5, v3
        v_add_u32 v2, 5, v2
        v_lshrrev_b32 v2, 5, v2          ; chunk 27 -> 1
        v_or_b32 v3, v3, v2
        v_lshl_or_b32 v5, v3, 30, v5
        buffer_load_dwordx4 v5, s[24:27], s48 offen lds
        s_add_u32 m0, m0, 1024
        """)
    k(f"""
    v_lshrrev_b32 v2, 4, v0
    v_bfe_u32 v3, v0, 2, 2
    v_lshl_add_u32 v2, v2, 3, v3
    s_lshl_b32 s50, s52, 4
    v_mul_u32_u24 v2, s50, v2
    v_and_b32 v3, 3, v0
    v_lshl_add_u32 v2, v3, 3, v2
    v_add_u32 v2, s57, v2
    s_lshl_b32 s50, s52, 6
    v_add_u32 v3, s50, v2
    s_waitcnt vmcnt(0)
    """)
    for j in range(9):
        k(f"ds_read_b64_tr_b16 {vr(8+j*4,2)}, v2 offset:{j*32}")
        k(f"ds_read_b64_tr_b16 {vr(10+j*4,2)}, v3 offset:{j*32}")
    for j in range(9):
        if j == 7: k(f"s_cmp_eq_u32 s52, 14\ns_cbranch_scc1 {Ls}")
        k(f"s_waitcnt lgkmcnt({min(15, 16-2*j)})")
        k(f"buffer_store_dwordx4 {vr(8+j*4,4)}, v1, s[20:23], s49 offen offset:{(j&1)*2048} sc1")
        if j & 1: k("s_add_u32 s49, s49, 4096")
    k.label(Ls)
    k(f"s_waitcnt lgkmcnt(0)\ns_branch {Ldn}")
    k.label(Lpf)
    k(f"""
    s_sub_u32 s50, s45, 576
    s_lshl_b32 s51, s50, 6
    v_add_u32 v243, s51, v0
    s_mov_b32 s52, 116509
    v_mul_lo_u32 v242, s52, v243
    v_lshrrev_b32 v242, 22, v242
    v_lshlrev_b32 v243, 7, v243
    v_mul_u32_u24 v242, 4608, v242
    v_add_u32 v243, v243, v242
    s_mov_b32 s51, 0x7fffffff
    s_cmp_lt_u32 s50, 324
    s_cselect_b32 s51, 4608, s51
    buffer_load_dword v243, v243, s[12:15], s51 offen
    """)
    k.label(Ldn)
    Lnc, Lpc = k.lab("nc"), k.lab("pc")
    k(f"""
    s_cmp_lg_u32 s35, 0
    s_cbranch_scc1 {Lnc}
    s_getpc_b64 s[28:29]
    {Lpc}:
    s_mov_b32 s30, {L['end']}-{Lpc}
    s_mov_b32 s31, 0x20000
    s_lshl_b32 s50, s33, 13
    v_lshlrev_b32 v242, 7, v0
    buffer_load_dword v242, v242, s[28:31], s50 offen
    {Lnc}:
    """)
    k.label(Ld)

def loop4(k, S, reads, half, adv, st, after_first=None, vm_wait=False, vm_first=False):
    def stage_reads(p): return reads(0, 2 * p) + reads(1, 2 * p + 1)
    def interval(p, other, zero=False):
        n = len(other); cut = min(n, 16)
        half(2 * p, other[:cut], zero); half(2 * p + 1, other[cut:], False)
    k("s_barrier")
    st()
    for r in stage_reads(0) + adv: k(r)
    if after_first: after_first()
    k("s_waitcnt lgkmcnt(0)")
    k("s_barrier")
    interval(0, stage_reads(1) + adv, True)
    m = S - 2
    k(f"s_mov_b32 s58, {(m+1)//2}")
    k("s_waitcnt vmcnt(0) lgkmcnt(0)" if vm_first else "s_waitcnt lgkmcnt(0)")
    Ltop, Lex = k.lab("top"), k.lab("ex")
    k.label(Ltop)
    k("s_barrier")
    interval(1, stage_reads(0) + adv + (CNT if m & 1 else []))
    k("s_waitcnt lgkmcnt(0)")
    if m & 1: k(f"s_cbranch_scc0 {Lex}")
    k("s_barrier")
    interval(0, stage_reads(1) + adv + ([] if m & 1 else CNT))
    k("s_waitcnt vmcnt(0) lgkmcnt(0)" if vm_wait else "s_waitcnt lgkmcnt(0)")
    k(f"s_branch {Ltop}" if m & 1 else f"s_cbranch_scc1 {Ltop}")
    k.label(Lex)
    st()
    return (S - 1) & 1

def k1_body(k, st, L, fused, single, G):
    R, SZ = 3, 51200
    BO1, BOZ, BOQ = 16384, 32768, 18432
    stamps = st.on
    k(f"""
    s_and_b32 s36, s34, 1
    s_lshl_b32 s36, s36, 3
    s_and_b32 s37, s35, 7
    s_add_u32 s36, s36, s37          ; z2 mt
    s_lshr_b32 s37, s34, 1
    s_lshl_b32 s37, s37, 2
    s_lshr_b32 s38, s35, 3
    s_add_u32 s37, s37, s38          ; z2 nt
    s_lshr_b32 s32, s35, 4
    s_and_b32 s38, s34, 1
    s_lshl_b32 s38, s38, 2
    s_and_b32 s39, s35, 3
    s_add_u32 s38, s38, s39
    s_lshr_b32 s39, s34, 1
    s_lshl_b32 s50, s39, 1
    s_lshl_b32 s39, s39, 2
    s_lshr_b32 s51, s35, 2
    s_add_u32 s39, s39, s51          ; z1 nt
    s_bfe_u32 s51, s35, 0x10003
    s_add_u32 s50, s50, s51          ; hg
    s_cmp_eq_u32 s32, 0
    s_cselect_b32 s38, s38, s36
    s_cselect_b32 s39, s39, s50
    s_lshl_b32 s44, s34, 4
    s_and_b32 s50, s35, 15
    s_add_u32 s44, s44, s50
    s_mov_b32 s3, s44
    v_and_b32 v2, 15, v0             ; row
    v_lshrrev_b32 v3, 4, v0          ; q
    s_mul_i32 s45, s44, {16*1152}
    s_mul_i32 s46, s33, 192
    s_add_u32 s45, s45, s46
    s_cmp_lt_u32 s33, 6
    s_cselect_b32 s50, s32, 0
    v_mul_u32_u24 v4, 1152, v2
    v_lshl_add_u32 v7, v3, 4, v4
    s_mov_b32 s26, {2048*1152}
    s_mov_b32 s27, 0x20000
    s_waitcnt lgkmcnt(0)
    s_mov_b32 s24, s68
    s_mov_b32 s25, s69
    s_cmp_eq_u32 s50, 0
    s_cbranch_scc1 {L['nx']}
    buffer_load_dwordx4 v[8:11], v7, s[24:27], s45 offen
    buffer_load_dwordx4 v[12:15], v7, s[24:27], s45 offen offset:64
    buffer_load_dwordx4 v[16:19], v7, s[24:27], s45 offen offset:128
    {L['nx']}:
    """)
    srd(k, 8, 4, XN_OFF, XN_SZ)
    srd(k, 12, 6, 0, 576 * 9216)
    XS = " sc1" if single else ""
    st.init()
    if single:
        st(250)
        phase0(k, st, L)
        st(250)
    k(f"s_cmp_ge_u32 s33, 4\ns_cbranch_scc1 {L['D']}")
    srd(k, 16, 4, A3_OFF, A3_SZ)
    def loop2(reads, half, adv, vmw):
        Ltop = k.lab("top")
        k("s_mov_b32 s58, 8")
        k("s_barrier")
        st()
        for r in reads(0, 0): k(r)
        k("s_waitcnt lgkmcnt(0)")
        if vmw: k("s_barrier")
        half(0, reads(1, 1) + adv, True)
        k("s_waitcnt vmcnt(0) lgkmcnt(0)")
        k.label(Ltop)
        k("s_barrier")
        half(1, reads(0, 0), False)
        k("s_waitcnt lgkmcnt(0)")
        half(0, reads(1, 1) + adv + CNT, False)
        k("s_waitcnt lgkmcnt(0)")
        k(f"s_cbranch_scc1 {Ltop}")
        st()
    st()
    ACC, BUF = 144, [0, 36, 72, 108]
    VA, VB, VL16, VLN = 244, 245, 246, 247
    acc = lambda i, j: ACC + (i * 5 + j) * 4
    k(f"""
    s_mov_b32 s40, s33
    s_and_b32 s41, s40, 1            ; wm
    s_lshr_b32 s42, s40, 1           ; wn
    v_mov_b32 v{VL16}, v1
    v_mov_b32 v{VLN}, v0
    s_lshl_b32 s43, s41, 13
    v_add_u32 v{VA}, s43, v1
    """)
    tr_lane_base(k, VB, 288, 2)
    k(f"s_mul_i32 s43, s42, 160\ns_add_u32 s43, s43, {BO1}\nv_add_u32 v{VB}, s43, v{VB}")
    Lq, Ld = k.lab("cq"), k.lab("cd")
    ZA, ZB, ZL16, ZL8 = 248, 249, 250, 251
    QA, QBE, QBO, QW = 248, 249, 250, 251
    k(f"s_cmp_lg_u32 s32, 0\ns_cbranch_scc1 {Lq}")
    k(f"""
    v_mov_b32 v{ZL16}, v1
    v_lshrrev_b32 v2, 5, v0
    v_lshlrev_b32 v2, 8, v2
    v_and_b32 v3, 15, v0
    v_lshl_add_u32 v2, v3, 4, v2
    v_bfe_u32 v3, v0, 4, 1
    v_lshl_add_u32 v{ZL8}, v3, 3, v2
    s_lshl_b32 s50, s40, 13
    v_add_u32 v{ZA}, s50, v1
    """)
    k(f"v_add_u32 v{ZB}, {BOZ}, v1")
    k(f"s_branch {Ld}")
    k.label(Lq)
    k(f"v_mov_b32 v{QA}, v{VA}")
    k(f"""
    s_mul_i32 s50, s42, {7*2048}
    s_add_u32 s50, s50, {BOQ}
    v_add_u32 v{QBE}, s50, v1
    v_mov_b32 v{QBO}, 0
    v_and_b32 v2, 15, v0
    s_lshl_b32 s50, s41, 6
    v_add_u32 v2, s50, v2
    v_mul_u32_u24 v{QW}, 440, v2
    v_lshrrev_b32 v2, 4, v0
    v_lshl_add_u32 v{QW}, v2, 3, v{QW}
    s_mul_i32 s50, s42, 224
    s_add_u32 s50, s50, {ATT}
    v_add_u32 v{QW}, s50, v{QW}
    """)
    k.label(Ld)
    k(f"""
    s_cmp_eq_u32 s42, 0
    s_cselect_b64 vcc, -1, 0
    s_cselect_b32 s54, -1, 0
    s_mul_i32 s46, s41, {18*1024}
    s_mul_i32 s47, s42, {5*1024}
    s_add_u32 s46, s46, s47
    s_add_u32 s46, s46, {2*SZ}
    v_add_u32 v{VL16}, s46, v1
    """)
    C, T, O, SM = 224, 232, 72, 80
    gelu_consts(k, C)
    adv_setup(k, R, SZ)
    def reads1(sub, b):
        o = [f"ds_read_b128 {vr(BUF[b]+i*4,4)}, v{VA} offset:{i*2048+sub*1024}" for i in range(4)]
        for j in range(5):
            for hh in range(2):
                o.append(f"ds_read_b64_tr_b16 {vr(BUF[b]+16+j*4+hh*2,2)}, v{VB} offset:{sub*32*288+hh*8*288+j*32}")
        return o
    def mf1(b, seq, zero):
        return [f"v_mfma_f32_16x16x32_bf16 {vr(acc(i,j),4)}, {vr(BUF[b]+i*4,4)}, {vr(BUF[b]+16+j*4,4)}, {'0' if zero else vr(acc(i,j),4)}"
                for j, i in seq]
    def half1(b, other, zero):
        for x in interleave(mf1(b, snake(4, 4), zero), other): k(x)
        Ls = k.lab("sk")
        k(f"s_cbranch_vccz {Ls}")
        for x in mf1(b, [(4, i) for i in range(4)], zero): k(x)
        k.label(Ls)
    if single:
        k("s_barrier")
        k(f"v_mov_b32 v2, {HSC}\nds_read_b32 v2, v2\ns_waitcnt lgkmcnt(0)\nv_readfirstlane_b32 s101, v2")
    lp = loop4(k, 9, reads1, half1, adv_ins(R, [VA, VB]), st, vm_first=True)
    assert lp == 0
    k("s_barrier")
    half1(0, [f"v_mov_b32 v{r}, 0" for r in range(SM, SM + 16)], False)
    half1(1, [f"v_mov_b32 v{r}, 0" for r in range(SM + 16, SM + 32)], False)
    n = 0
    for jj in range(5):
        if jj == 4:
            Ls = k.lab("us"); k(f"s_cbranch_vccz {Ls}")
        for P in range(2):
            a, b = acc(2 * P, jj), acc(2 * P + 1, jj)
            gelu(k, [a, a + 2, b, b + 2], T, C)
            o = O + (n & 1) * 4; n += 1
            for x, q in enumerate([a, a + 2, b, b + 2]): k(f"v_cvt_pk_bf16_f32 v{o+x}, v{q}, v{q+1}")
            k(f"ds_write_b128 v{VL16}, {vr(o,4)} offset:{(P*9+jj)*1024}")
            for e, q in enumerate([a, b]):
                i = 2 * P + e
                for h in range(2):
                    k(f"v_pk_add_f32 {vr(SM+4*i+2*h,2)}, {vr(SM+4*i+2*h,2)}, {vr(q+2*h,2)}")
                    k(f"v_pk_fma_f32 {vr(SM+16+4*i+2*h,2)}, {vr(q+2*h,2)}, {vr(q+2*h,2)}, {vr(SM+16+4*i+2*h,2)}")
    k.label(Ls)
    for m in range(1, 4):
        v = 0x11111111 << m
        k(f"s_mov_b32 s{58+2*m}, {v:#x}\ns_mov_b32 s{59+2*m}, {v:#x}")
    val = lambda P, i: SM + (i & 1) * 16 + (2 * P + (i >> 3)) * 4 + ((i >> 1) & 3)
    sets = [[val(P, i) for i in range(16)] for P in range(2)]
    reduce16(k, sets, 60)
    k(f"""
    s_lshl_b32 s46, s40, 9
    s_add_u32 s46, s46, {2*SZ+36864}
    v_lshlrev_b32 v{T+1}, 2, v{VLN}
    v_add_u32 v{T+1}, s46, v{T+1}
    ds_write_b32 v{T+1}, v{sets[0][0]}
    ds_write_b32 v{T+1}, v{sets[1][0]} offset:256
    s_waitcnt lgkmcnt(0)
    """)
    k("s_waitcnt vmcnt(0)")
    st()
    k(f"s_cmp_lg_u32 s32, 0\ns_cbranch_scc1 {L['C2q']}")
    ACZ, BZ = 104, [0, 52]
    acz = lambda i, j: ACZ + (i * 9 + j) * 4
    def readsz(sub, b):
        o = [f"ds_read_b128 {vr(BZ[b]+i*4,4)}, v{ZA} offset:{i*2048+sub*1024}" for i in range(4)]
        o += [f"ds_read_b128 {vr(BZ[b]+16+j*4,4)}, v{ZB} offset:{j*2048+sub*1024}" for j in range(9)]
        return o
    def halfz(b, other, zero):
        mf = [f"v_mfma_f32_16x16x32_bf16 {vr(acz(i,j),4)}, {vr(BZ[b]+16+j*4,4)}, {vr(BZ[b]+i*4,4)}, {'0' if zero else vr(acz(i,j),4)}"
              for i, j in snake(4, 9)]
        for x in interleave(mf, other): k(x)
    loop2(readsz, halfz, adv_ins(R, [ZA, ZB]), True)
    halfz(1, [], False)
    C, T, O = 0, 8, 16
    gelu_consts(k, C)
    k(f"""
    s_lshl_b32 s46, s38, 4
    s_lshl_b32 s47, s40, 2
    s_add_u32 s46, s46, s47          ; tfrag0
    s_mul_i32 s46, s46, {TFS}
    s_lshr_b32 s47, s39, 1
    s_mul_i32 s47, s47, 9216
    s_add_u32 s46, s46, s47
    s_and_b32 s47, s39, 1
    s_lshl_b32 s48, s47, 9
    s_add_u32 s48, s48, s46
    s_add_u32 s48, s48, {(18+8)*1024}
    s_lshl_b32 s47, s47, 12
    s_add_u32 s46, s46, s47
    s_add_u32 s46, s46, {18*1024}
    """)
    n = 0
    for i in range(4):
        for p in range(4):
            a, b = acz(i, 2 * p), acz(i, 2 * p + 1)
            gelu(k, [a, a + 2, b, b + 2], T, C)
            o = O + (n & 1) * 4; n += 1
            for x, q in enumerate([a, a + 2, b, b + 2]): k(f"v_cvt_pk_bf16_f32 v{o+x}, v{q}, v{q+1}")
            k(f"buffer_store_dwordx4 {vr(o,4)}, v{ZL16}, s[16:19], s46 offen offset:{p*1024} sc1")
        if i < 3: k(f"s_add_u32 s46, s46, {TFS}\ns_add_u32 s{49+i}, s{48+i}, {TFS}")
    for i in (0, 2):
        a, b = acz(i, 8), acz(i + 1, 8)
        gelu(k, [a, a + 2, b, b + 2], T, C)
        o = O + (n & 1) * 4; n += 1
        for x, q in enumerate([a, a + 2, b, b + 2]): k(f"v_cvt_pk_bf16_f32 v{o+x}, v{q}, v{q+1}")
        k(f"buffer_store_dwordx2 {vr(o,2)}, v{ZL8}, s[16:19], s{48+i} offen sc1")
        k(f"buffer_store_dwordx2 {vr(o+2,2)}, v{ZL8}, s[16:19], s{49+i} offen sc1")
    if stamps and not fused:
        st(); k("s_waitcnt vmcnt(0)"); st()
    k(f"s_branch {L['g2C']}" if fused else "s_endpgm")
    k.label(L["D"])
    if OPT.get("pd", 3): k(f"s_setprio {OPT.get('pd', 3)}")
    k(f"""
    s_sub_u32 s40, s33, 4            ; pw
    s_lshl_b32 s41, s40, 12          ; A lds
    s_lshl_b32 s42, s36, 14
    s_add_u32 s42, s42, s41          ; A goff
    s_mul_i32 s43, s37, 288
    s_add_u32 s43, s43, 4608         ; B goff
    s_add_u32 s47, s41, {BO1}        ; B lds
    s_lshl_b32 s48, s40, 9
    s_add_u32 s48, s48, {BO1+16384}
    s_mov_b32 s49, 0
    s_lshl_b32 s51, s40, 8
    """)
    def half_dma(srdr, v, soff, mbase, mods=""):
        k(f"s_add_u32 m0, s{mbase}, s49")
        k("s_mov_b32 exec_hi, 0")
        k(f"buffer_load_dwordx4 v{v}, s[{srdr}:{srdr+3}], s{soff} offen{mods} lds")
        k("s_mov_b32 exec_hi, -1")
    def i1A():
        lin_dma(k, 4, 8, 42, 41, 49, mods=XS); k(f"s_add_u32 s42, s42, {128*2048}")
    def i1B():
        gat_dma(k, 4, 12, 43, 47, 49, 8); half_dma(12, 12, 43, 48); k(f"s_add_u32 s43, s43, {64*9216}")
    def issue1():
        i1A(); i1B(); slot_adv_prod(k, R, SZ, 49)
    def setup2():
        srd(k, 72, 4, W1_OFF, W12_SZ)
        srd(k, 16, 4, A3_OFF, A3_SZ)
        srd(k, 20, 4, ST_OFF, ST_SZ)
        srd(k, 24, 66, 0, 2048 * 4096)
        srd(k, 80, 4, Z2T_OFF, Z2T_SZ)
        srd(k, 84, 4, FLG_OFF, FLG_SZ)
        Lq, Ld = k.lab("dq"), k.lab("dd")
        k(f"""
        s_cmp_lg_u32 s32, 0
        s_cbranch_scc1 {Lq}
        s_lshl_b32 s63, s40, 13          ; A lds
        s_lshl_b32 s60, s38, 15
        s_add_u32 s60, s60, s63          ; A goff
        s_mul_i32 s61, s39, {9*18432}
        s_lshl_b32 s89, s40, 9
        s_add_u32 s62, s61, s89
        s_add_u32 s62, s62, 16384
        s_add_u32 s61, s61, s41          ; B goff
        s_add_u32 s88, s41, {BOZ}
        s_add_u32 s89, s89, {BOZ+16384}
        s_branch {Ld}
        {Lq}:
        s_lshl_b32 s60, s38, 14
        s_lshl_b32 s89, s40, 9
        s_sub_u32 s62, s60, 2048
        s_cmp_eq_u32 s38, 0
        s_cselect_b32 s62, 0, s62
        s_add_u32 s62, s62, s89
        s_add_u32 s60, s60, s41          ; A goff
        s_add_u32 s63, s41, 2048
        s_mul_i32 s61, s39, {9*28672}
        s_mul_i32 s88, s40, 7168
        s_add_u32 s61, s61, s88
        s_add_u32 s61, s61, {WQ_REL}
        s_add_u32 s88, s88, {BOQ}
        """)
        k.label(Ld)
        k(f"""
        v_lshlrev_b32 v28, 7, v0
        s_lshl_b32 s44, s2, 2
        s_add_u32 s44, s44, s40
        s_lshl_b32 s44, s44, 13
        v_lshlrev_b32 v29, 2, v0
        v_lshrrev_b32 v30, 4, v0
        v_lshlrev_b32 v30, 5, v30
        s_lshl_b32 s45, s36, 10
        s_lshl_b32 s50, s40, 8
        s_add_u32 s45, s45, s50
        s_mul_i32 s50, s40, {9*1024}
        s_add_u32 s50, s50, {2*SZ}
        v_add_u32 v31, s50, v1
        s_lshl_b32 s46, s36, 1
        s_lshr_b32 s50, s40, 1
        s_add_u32 s46, s46, s50
        s_mul_i32 s46, s46, 144
        s_mul_i32 s50, s37, 9
        s_add_u32 s46, s46, s50
        s_lshl_b32 s46, s46, 11
        s_and_b32 s50, s40, 1
        s_lshl_b32 s50, s50, 10
        s_add_u32 s46, s46, s50          ; Z2T offset
        s_lshl_b32 s53, s36, 8           ; F1 row
        s_lshl_b32 s50, s40, 9
        s_add_u32 s50, s50, {2*SZ+36864}
        v_add_u32 v35, s50, v29
        v_bfe_u32 v27, v0, 3, 1
        v_lshlrev_b32 v27, 5, v27
        v_lshrrev_b32 v2, 4, v0
        v_lshl_add_u32 v27, v2, 3, v27
        v_and_b32 v2, 7, v0
        v_add_lshl_u32 v27, v27, v2, 2
        s_lshl_b32 s55, s36, 10
        s_and_b32 s50, s40, 1
        s_lshl_b32 s50, s50, 9
        s_add_u32 s55, s55, s50
        """)
    if single:
        Lnp = k.lab("np")
        k(f"""
        v_lshlrev_b32 v28, 7, v0
        s_lshl_b32 s52, s36, 10
        s_add_u32 s52, s52, {F0}
        s_cmp_lg_u32 s40, 2
        s_cbranch_scc1 {Lnp}
        s_mov_b64 exec, 0xff
        buffer_load_dword v33, v28, s[84:87], s52 offen sc1
        s_mov_b64 exec, -1
        {Lnp}:
        """)
        for n in range(5):
            if n == 4: k("s_lshl_b32 s51, s40, 5\ns_add_u32 s51, s51, 1024")
            w144_voff(k, 8 + n, 51, 9216)
            k("s_add_u32 s51, s51, 64")
        if OPT.get("eb", 1):
            i1B(); k(f"s_mov_b32 s49, {SZ}"); i1B(); k("s_mov_b32 s49, 0")
        setup2()
        Lnp = k.lab("np")
        k(f"s_cmp_lg_u32 s40, 2\ns_cbranch_scc1 {Lnp}")
        ldx = lambda: k("buffer_load_dword v33, v28, s[84:87], s52 offen sc1")
        k("s_mov_b64 exec, 0xff\ns_waitcnt vmcnt(0) lgkmcnt(0)")
        spin(k, ldx, lambda: k("v_cmp_ne_u32 vcc, s101, v33"))
        k("s_mov_b64 exec, -1")
        k.label(Lnp)
        k("s_barrier")
        st(250)
        if OPT.get("eb", 1):
            i1A(); k(f"s_mov_b32 s49, {SZ}"); i1A(); k(f"s_mov_b32 s49, {2*SZ}")
        else:
            issue1(); issue1()
        k(f"v_mov_b32 v33, {HSC}\nds_read_b32 v33, v33\ns_waitcnt lgkmcnt(0)\nv_readfirstlane_b32 s101, v33")
    else:
        i1A()
        k("s_mov_b32 m0, s47")
        for n in range(4):
            w144_voff(k, 8 + n, 51, 9216)
            k("s_add_u32 s51, s51, 64")
            k(f"buffer_load_dwordx4 v{8+n}, s[12:15], s43 offen lds")
            k("s_add_u32 m0, m0, 1024")
        k("s_lshl_b32 s51, s40, 5\ns_add_u32 s51, s51, 1024")
        w144_voff(k, 12, 51, 9216)
        half_dma(12, 12, 43, 48)
        k(f"s_add_u32 s43, s43, {64*9216}\ns_mov_b32 s49, {SZ}")
        issue1()
    k("s_waitcnt vmcnt(%d)" % (4 if OPT.get("eb", 1) else 9))
    k("s_barrier")
    issue1()
    def ploop(n, iss, allowed):
        Lp = k.lab("pl")
        k(f"s_mov_b32 s58, {n}")
        k.label(Lp)
        k(f"s_waitcnt vmcnt({allowed})")
        k("s_barrier")
        iss()
        k(f"s_sub_u32 s58, s58, 1\ns_cmp_lg_u32 s58, 0\ns_cbranch_scc1 {Lp}")
    ploop(1, issue1, 9)
    k("s_waitcnt vmcnt(9)")
    k("s_barrier")
    Lnb = k.lab("nb")
    k(f"s_or_b32 s50, s40, s32\ns_cmp_lg_u32 s50, 0\ns_cbranch_scc1 {Lnb}")
    set_flag(k, f"s_lshl_b32 s50, s3, 2\ns_add_u32 s50, s50, {F5}", 33)
    k.label(Lnb)
    issue1()
    ploop(4, issue1, 9)
    def issue2():
        Lq, Ld = k.lab("iq"), k.lab("id")
        k(f"s_cmp_lg_u32 s32, 0\ns_cbranch_scc1 {Lq}")
        lin_dma(k, 8, 8, 60, 63, 49, mods=XS); lin_dma(k, 4, 72, 61, 88, 49, mods=XS); half_dma(72, 1, 62, 89, XS)
        k(f"s_add_u32 s61, s61, 18432\ns_add_u32 s62, s62, 18432\ns_branch {Ld}")
        k.label(Lq)
        lin_dma(k, 4, 8, 60, 63, 49, mods=XS); half_dma(8, 1, 62, 89, XS); lin_dma(k, 7, 72, 61, 88, 49, mods=XS)
        k(f"s_add_u32 s62, s62, {128*2048}\ns_add_u32 s61, s61, 28672")
        k.label(Ld)
        k(f"s_add_u32 s60, s60, {128*2048}")
        slot_adv_prod(k, R, SZ, 49)
    N2 = 12
    if single:
        k(f"""
        s_lshl_b32 s54, s38, 3
        s_lshl_b32 s50, s38, 4
        s_cmp_eq_u32 s32, 0
        s_cselect_b32 s54, s50, s54
        s_max_u32 s54, s54, 1
        s_min_u32 s54, s54, 112
        s_lshl_b32 s54, s54, 7
        s_add_u32 s54, s54, {F0 - 128}
        """)
        k(f"s_movk_i32 s56, {F5}\nv_lshlrev_b32 v20, 3, v0")
        def ldb():
            k("buffer_load_dwordx2 v[22:23], v20, s[84:87], s56 offen sc1")
            k("s_mov_b64 exec, 0x1ffff\nbuffer_load_dword v33, v28, s[84:87], s54 offen sc1\ns_mov_b64 exec, -1")
        k("v_mov_b32 v33, s101")
        ldb()
    k("s_waitcnt vmcnt(11)")
    k("s_barrier")
    k("s_waitcnt vmcnt(0)")
    spin(k, ldb, lambda: k("v_xor_b32 v22, s101, v22\nv_xor_b32 v23, s101, v23\nv_xor_b32 v21, s101, v33\nv_or3_b32 v21, v21, v22, v23\nv_cmp_ne_u32 vcc, 0, v21"))
    issue2()
    k(f"s_waitcnt vmcnt({N2})")
    k("s_barrier")
    issue2()
    k("s_barrier")
    k("buffer_load_dword v32, v28, s[24:27], s44 offen")
    Lx = k.lab("xw")
    k(f"""
    s_load_dwordx2 s[28:29], s[0:1], {KA['wo']}
    s_load_dwordx2 s[30:31], s[0:1], {KA['w_out']}
    s_load_dwordx2 s[56:57], s[0:1], {KA['b_sp']}
    s_and_b32 s50, s34, 3
    s_lshl_b32 s50, s50, 3
    s_and_b32 s51, s35, 7
    s_add_u32 s50, s50, s51          ; mt3
    s_mul_i32 s50, s50, {64*1152}
    s_lshr_b32 s51, s34, 2
    s_lshl_b32 s51, s51, 2
    s_lshr_b32 s54, s35, 3
    s_add_u32 s51, s51, s54          ; nt3
    s_mul_i32 s51, s51, 144
    s_add_u32 s54, s50, s51
    s_mov_b32 s76, s68
    s_mov_b32 s77, s69
    s_mov_b32 s78, {2048*1152}
    s_mov_b32 s79, 0x20000
    s_lshl_b32 s51, s40, 6
    s_lshl_b32 s50, s40, 10
    s_add_u32 m0, s50, {XSC}
    """)
    for n in range(3):
        if n == 2: k(f"s_cmp_lg_u32 s40, 0\ns_cbranch_scc1 {Lx}")
        k(f"""
        v_add_u32 v2, s51, v0
        v_mul_u32_u24 v3, 3641, v2
        v_lshrrev_b32 v3, 15, v3         ; id/9
        v_mul_u32_u24 v3, {1152-144}, v3
        v_lshl_add_u32 v2, v2, 4, v3
        buffer_load_dwordx4 v2, s[76:79], s54 offen lds
        s_add_u32 s51, s51, 256
        s_add_u32 m0, m0, 4096
        """)
    k(f"""
    s_waitcnt lgkmcnt(0)
    s_mov_b32 s76, s56
    s_mov_b32 s77, s57
    s_mov_b32 s78, 4096
    s_mov_b32 s79, 0x20000
    s_lshl_b32 s50, s36, 8
    s_mov_b32 m0, {BSC}
    s_mov_b64 exec, 0xffff
    buffer_load_dwordx4 v1, s[76:79], s50 offen lds
    s_mov_b64 exec, -1
    {Lx}:
    s_lshr_b32 s50, s44, 13
    s_sub_u32 s51, s50, 81
    s_waitcnt lgkmcnt(0)
    s_cmp_lt_u32 s50, 81
    s_cselect_b32 s24, s28, s30
    s_cselect_b32 s25, s29, s31
    s_cselect_b32 s50, s50, s51
    s_mov_b32 s26, {2304*1152}
    s_cselect_b32 s26, {576*1152}, s26
    s_mov_b32 s27, 0x20000
    s_lshl_b32 s50, s50, 13
    buffer_load_dword v240, v28, s[24:27], s50 offen
    """)
    NX = 4
    k(f"s_waitcnt vmcnt({N2+NX})")
    k("s_barrier")
    Z = 64
    for j in range(9): k(f"ds_read_b128 {vr(Z+4*j,4)}, v31 offset:{j*1024}")
    k(f"""
    ds_read_b32 v34, v35
    ds_read_b32 v33, v35 offset:256
    s_waitcnt lgkmcnt(0)
    s_barrier
    buffer_atomic_add_f32 v34, v27, s[20:23], s55 offen
    buffer_atomic_add_f32 v33, v27, s[20:23], s55 offen offset:256
    """)
    issue2()
    k(f"s_waitcnt vmcnt({N2+2+NX})")
    k("s_barrier")
    issue2()
    k(f"s_waitcnt vmcnt({N2})")
    set_flag(k, f"s_lshl_b32 s50, s37, 4\ns_add_u32 s50, s50, s53\ns_lshl_b32 s51, s40, 2\ns_add_u32 s50, s50, s51", 33)
    k("s_barrier")
    issue2()
    PB = OPT.get("pb", 13)
    if PB > 12: ploop(PB - 12, issue2, N2)
    ld1 = lambda: k("buffer_load_dword v33, v29, s[84:87], s53 offen sc1")
    ld1()
    k(f"s_waitcnt vmcnt({N2+1})")
    k("s_barrier")
    issue2()
    k(f"s_waitcnt vmcnt({N2})")
    spin(k, ld1, lambda: k("v_cmp_ne_u32 vcc, s101, v33"))
    for i in range(4): k(f"buffer_load_dwordx4 {vr(36+4*i,4)}, v30, s[20:23], s45 offen offset:{(i>>1)*128+(i&1)*16} sc1")
    k("s_barrier")
    st(250)
    vm = [("L%d" % (PB + 2), N2), ("s", 4)]
    def allowed(tag):
        n = 0
        for t, c in reversed(vm):
            if t == tag: return n
            n += c
        raise KeyError(tag)
    def rcalc():
        k(f"s_waitcnt vmcnt({allowed('s')})")
        inv = f2u(1.0 / 2304)
        for i in range(8): k(f"v_mul_f32 v{36+2*i}, {inv:#x}, v{36+2*i}")
        for i in range(8): k(f"v_mul_f32 v{37+2*i}, {inv:#x}, v{37+2*i}")
        for i in range(8): k(f"v_fma_f32 v{37+2*i}, -v{36+2*i}, v{36+2*i}, v{37+2*i}")
        for i in range(8): k(f"v_max_f32 v{37+2*i}, 0, v{37+2*i}")
        def rnd8(o):
            for i in range(4): k(f"v_cvt_pk_bf16_f32 v{52+i}, v{o+4*i}, v{o+2+4*i}")
            for i in range(4):
                k(f"v_lshlrev_b32 v{o+4*i}, 16, v{52+i}")
                k(f"v_and_b32 v{o+2+4*i}, 0xffff0000, v{52+i}")
        rnd8(36); rnd8(37)
        for i in range(8): k(f"v_add_f32 v{37+2*i}, {f2u(1e-5):#x}, v{37+2*i}")
        rnd8(37)
        for i in range(8): k(f"v_sqrt_f32 v{37+2*i}, v{37+2*i}")
        rnd8(37)
        for i in range(8): k(f"v_rcp_f32 v{37+2*i}, v{37+2*i}")
        for i in range(8): k(f"v_mul_f32 v{36+2*i}, v{36+2*i}, v{37+2*i}")
    def unit(j):
        w, t = Z + 4 * j, 56
        for i in range(4):
            k(f"v_lshlrev_b32 v{t+2*i}, 16, v{w+i}")
            k(f"v_and_b32 v{t+2*i+1}, 0xffff0000, v{w+i}")
        for i in range(8): k(f"v_fma_f32 v{t+i}, v{t+i}, v{37+2*i}, -v{36+2*i}")
        for i in range(4): k(f"v_cvt_pk_bf16_f32 v{w+i}, v{t+2*i}, v{t+2*i+1}")
        k(f"v_permlane32_swap_b32 v{w}, v{w+2}")
        k(f"v_permlane32_swap_b32 v{w+1}, v{w+3}")
        k(f"v_permlane16_swap_b32 v{w}, v{w+2}")
        k(f"v_permlane16_swap_b32 v{w+1}, v{w+3}")
        if j and j % 2 == 0: k("s_add_u32 s46, s46, 4096")
        k(f"buffer_store_dwordx4 {vr(w,4)}, v1, s[80:83], s46 offen offset:{(j&1)*2048} sc1")
        vm.append(("z", 1))
    work = [rcalc] + [(lambda j=j: unit(j)) for j in range(9)]
    split = {13: [[0, 1, 2], [3, 4, 5], [6, 7, 8, 9]], 12: [[0, 1], [2, 3, 4], [5, 6], [7, 8, 9]], 11: [[0], [1, 2], [3, 4], [5, 6], [7, 8, 9]]}[PB]
    for n, b in enumerate(range(PB + 1, 17)):
        if b + 2 <= 17:
            issue2(); vm.append((f"L{b+2}", N2))
        for w_ in split[n]: work[w_]()
        k(f"s_waitcnt vmcnt({allowed(f'L{b+1}')})")
        k("s_barrier")
    st(250)
    if fused:
        k("s_waitcnt vmcnt(0)")
        set_flag(k, f"s_lshl_b32 s50, s37, 8\ns_lshl_b32 s51, s36, 4\ns_add_u32 s50, s50, s51\ns_lshl_b32 s51, s40, 2\ns_add_u32 s50, s50, s51\ns_add_u32 s50, s50, {F2}", 33)
    Lha = k.lab("ha")
    k(f"s_cmp_lg_u32 s32, 0\ns_cbranch_scc1 {Lha}")
    k(f"s_branch {L['g2D']}" if fused else "s_endpgm")
    k.label(Lha)
    k("s_setprio 0")
    k("s_barrier")
    k(f"s_branch {L['att']}")
    k.label(L["C2q"])
    ACQ, BQ = 104, [0, 48]
    acq = lambda i, j: ACQ + (i * 7 + j) * 4
    def readsq(sub, b):
        o = [f"ds_read_b128 {vr(BQ[b]+i*4,4)}, v{QA} offset:{i*2048+sub*1024}" for i in range(5)]
        o += [f"ds_read_b128 {vr(BQ[b]+20+j*4,4)}, v{QBE} offset:{j*2048+sub*1024}" for j in range(7)]
        return o
    def halfq(b, other, zero):
        mf = [f"v_mfma_f32_16x16x32_bf16 {vr(acq(i,j),4)}, {vr(BQ[b]+20+j*4,4)}, {vr(BQ[b]+i*4,4)}, {'0' if zero else vr(acq(i,j),4)}"
              for i, j in snake(5, 7)]
        for x in interleave(mf, other): k(x)
    loop2(readsq, halfq, adv_ins(R, [QA, QBE]), True)
    k("s_barrier")
    def wq(i, j, n):
        a = acq(i, j); o = (n & 3) * 2
        return [f"v_cvt_pk_bf16_f32 v{o}, v{a}, v{a+1}", f"v_cvt_pk_bf16_f32 v{o+1}, v{a+2}, v{a+3}",
                f"ds_write_b64 v{QW}, {vr(o,2)} offset:{i*16*440+j*32}"]
    n = 0
    for i in range(6):
        mf = [f"v_mfma_f32_16x16x32_bf16 {vr(acq(i,j),4)}, {vr(BQ[1]+20+j*4,4)}, {vr(BQ[1]+i*4,4)}, {vr(acq(i,j),4)}" for j in range(7)] if i < 5 else []
        for j in range(7):
            if mf: k(mf[j])
            if i > 0 and j < 6:
                for x in wq(i - 1, j, n): k(x)
                n += 1
    k("s_mov_b32 exec_hi, s54")
    for i in range(5):
        for x in wq(i, 6, n): k(x)
        n += 1
    k("s_mov_b32 exec_hi, -1")
    k("s_waitcnt lgkmcnt(0)")
    k("v_mbcnt_lo_u32_b32 v0, -1, 0")
    k("v_mbcnt_hi_u32_b32 v0, -1, v0")
    k.label(L["att"])
    k(f"""
    s_and_b32 s55, s33, 3            ; head
    s_lshr_b32 s41, s33, 2
    s_and_b32 s42, s55, 1
    s_lshl_b32 s43, s41, 6
    s_add_u32 s44, s43, 2
    v_add_u32 v2, s44, v0
    v_mul_u32_u24 v2, 440, v2
    s_mul_i32 s44, s55, 36
    s_add_u32 s44, s44, {ATT}
    s_lshl_b32 s45, s42, 2
    s_add_u32 s45, s45, s44
    v_add_u32 v3, s45, v2
    s_xor_b32 s45, s42, 1
    s_lshl_b32 s45, s45, 5
    s_add_u32 s45, s45, s44
    v_add_u32 v2, s45, v2
    s_lshl_b32 s46, s38, 7
    s_add_u32 s46, s46, s43
    v_add_u32 v4, s46, v0            ; t
    s_mov_b32 s21, 0x05040100
    s_mov_b32 s22, 0x07060302
    v_and_b32 v11, 15, v0
    v_lshrrev_b32 v12, 4, v0
    s_lshl_b32 s46, s33, 4
    s_add_u32 s46, s46, 16
    v_add_u32 v13, s46, v11
    v_mul_u32_u24 v13, 440, v13
    v_lshl_add_u32 v13, v12, 4, v13
    v_add_u32 v13, {ATT}, v13
    s_mul_i32 s46, s39, 9
    v_add_u32 v12, s46, v12
    v_lshlrev_b32 v12, 8, v12
    v_lshl_add_u32 v12, v11, 4, v12
    s_lshl_b32 s46, s38, 3
    s_add_u32 s46, s46, s33
    s_mul_i32 s20, s46, {TFS}
    """)
    Lc = k.lab("ac")
    k(f"s_cmp_lt_u32 s33, 4\ns_cbranch_scc1 {Lc}")
    G["setup"]()
    k.label(Lc)
    k("s_barrier")
    st(20)
    Q, KK, VV, LL, PP, OA = 24, 36, 116, 200, 210, 216
    def rdvec(dst, row, part):
        for h in range(4): k(f"ds_read_b64 {vr(dst+2*h,2)}, v3 offset:{row*440+part*144+8*h}")
        k(f"ds_read_b32 v{dst+8}, v2 offset:{row*440+part*144}")
    vecs = [(Q, 14, 0)] + [(KK + 10 * w, 14 - 2 * w, 1) for w in range(8)] + [(VV + 10 * w, 14 - 2 * w, 2) for w in range(8)]
    for v in vecs[:4]: rdvec(*v)
    nxt = 4
    for w in range(8): k(f"v_mov_b32 v{LL+w}, 0")
    for w in range(8):
        k("s_waitcnt lgkmcnt(10)")
        for i in range(9): k(f"v_dot2c_f32_bf16 v{LL+w}, v{Q+i}, v{KK+10*w+i}")
        rdvec(*vecs[nxt]); nxt += 1
    while nxt < len(vecs):
        rdvec(*vecs[nxt]); nxt += 1
    sc = f2u(18.0 ** -0.5)
    def rndL():
        for i in range(4): k(f"v_cvt_pk_bf16_f32 v{PP+i}, v{LL+2*i}, v{LL+2*i+1}")
        for i in range(4):
            k(f"v_lshlrev_b32 v{LL+2*i}, 16, v{PP+i}")
            k(f"v_and_b32 v{LL+2*i+1}, 0xffff0000, v{PP+i}")
    rndL()
    for w in range(8): k(f"v_mul_f32 v{LL+w}, {sc:#x}, v{LL+w}")
    rndL()
    k(f"v_mov_b32 v6, {f2u(-1e9):#x}")
    for w in range(1, 8):
        k(f"v_cmp_le_u32 s[{24+2*(w&1)}:{25+2*(w&1)}], {2*w}, v4")
        if w > 1: k(f"v_cndmask_b32 v{LL+w-1}, v6, v{LL+w-1}, s[{24+2*((w-1)&1)}:{25+2*((w-1)&1)}]")
    k(f"v_cndmask_b32 v{LL+7}, v6, v{LL+7}, s[26:27]")
    k(f"v_max3_f32 v7, v{LL}, v{LL+1}, v{LL+2}")
    k(f"v_max3_f32 v8, v{LL+3}, v{LL+4}, v{LL+5}")
    k(f"v_max3_f32 v7, v7, v{LL+6}, v{LL+7}")
    k(f"v_max_f32 v7, v7, v8")
    l2e = f2u(math.log2(math.e))
    for w in range(8): k(f"v_sub_f32 v{LL+w}, v{LL+w}, v7")
    for w in range(8): k(f"v_mul_f32 v{LL+w}, {l2e:#x}, v{LL+w}")
    for w in range(8): k(f"v_exp_f32 v{LL+w}, v{LL+w}")
    k(f"v_add_f32 v7, v{LL}, v{LL+1}")
    k(f"v_add_f32 v8, v{LL+2}, v{LL+3}")
    k(f"v_add_f32 v9, v{LL+4}, v{LL+5}")
    k(f"v_add_f32 v10, v{LL+6}, v{LL+7}")
    k("v_add_f32 v7, v7, v8\nv_add_f32 v9, v9, v10\nv_add_f32 v7, v7, v9\nv_rcp_f32 v7, v7")
    for w in range(8): k(f"v_mul_f32 v{LL+w}, v{LL+w}, v7")
    for i in range(4): k(f"v_cvt_pk_bf16_f32 v{PP+i}, v{LL+2*i}, v{LL+2*i+1}")
    Lc = k.lab("ac")
    k(f"s_cmp_lt_u32 s33, 4\ns_cbranch_scc1 {Lc}")
    k(f"s_waitcnt vmcnt(0)\nv_cmp_ne_u32 vcc, s101, v248\ns_cbranch_vccnz {Lc}")
    G["B01"]()
    k.label(Lc)
    for i in range(18): k(f"v_mov_b32 v{OA+i}, 0")
    k("s_waitcnt lgkmcnt(0)")
    for wp in range(4):
        x, y = VV + 20 * wp, VV + 20 * wp + 10
        for i in range(9):
            k(f"v_perm_b32 v{KK+2*i}, v{y+i}, v{x+i}, s21")
            k(f"v_perm_b32 v{KK+2*i+1}, v{y+i}, v{x+i}, s22")
        for i in range(18): k(f"v_dot2c_f32_bf16 v{OA+i}, v{KK+i}, v{PP+wp}")
    for i in range(9): k(f"v_cvt_pk_bf16_f32 v{Q+i}, v{OA+2*i}, v{OA+2*i+1}")
    for h in range(4): k(f"ds_write_b64 v3, {vr(Q+2*h,2)} offset:{14*440+8*h}")
    k(f"ds_write_b32 v2, v{Q+8} offset:{14*440}")
    k("s_waitcnt lgkmcnt(0)")
    k("s_barrier")
    for n in range(3):
        k(f"ds_read_b64 {vr(KK+4*n,2)}, v13 offset:{64*n}")
        k(f"ds_read_b64 {vr(KK+4*n+2,2)}, v13 offset:{64*n+8}")
    for n in range(3):
        k(f"s_waitcnt lgkmcnt({4-2*n})")
        if n == 2: k("s_mov_b64 exec, 0xffff")
        k(f"buffer_store_dwordx4 {vr(KK+4*n,4)}, v12, s[16:19], s20 offen offset:{1024*n} sc1")
    k("s_mov_b64 exec, -1")
    if stamps and not fused:
        st(20); k("s_waitcnt vmcnt(0)"); st(20)
    if fused: k(f"s_branch {L['g2X']}")
    else: k("s_endpgm")

def w3_unit(k):
    Ln, Lg = k.lab("nat"), k.lab("go")
    k(f"""
    s_mul_i32 s20, s3, 3
    s_add_u32 s20, s20, s40          ; unit
    s_cmp_lt_u32 s40, 3
    s_cselect_b32 s20, s20, 360
    s_lshr_b32 s21, s20, 2           ; step
    s_and_b32 s22, s20, 3
    s_lshl_b32 s22, s22, 1
    s_cmp_lt_u32 s21, 18
    s_cselect_b32 s24, s28, s30
    s_cselect_b32 s25, s29, s31
    s_mov_b32 s26, {2304*1152}
    s_cselect_b32 s26, {576*1152}, s26
    s_mov_b32 s27, 0x20000
    s_cbranch_scc1 {Ln}
    s_sub_u32 s50, s21, 18
    s_mul_i32 s55, s50, 57
    s_lshr_b32 s55, s55, 9           ; u
    s_mul_i32 s56, s55, 9
    s_sub_u32 s56, s50, s56          ; v
    s_mul_i32 s55, s55, 288
    s_lshr_b32 s57, s56, 2
    s_mul_i32 s57, s57, 144
    s_and_b32 s50, s56, 3
    s_lshl_b32 s50, s50, 5
    s_add_u32 s57, s57, s50
    s_cmp_eq_u32 s56, 8
    s_cselect_b32 s57, 128, s57
    s_cselect_b32 s28, 4, 16
    s_cselect_b32 s29, 8, 4
    s_cselect_b32 s30, 144, 8
    s_add_u32 s23, s55, s57
    s_branch {Lg}
    {Ln}:
    s_lshl_b32 s23, s21, 5
    s_mov_b32 s28, 4
    s_mov_b32 s29, 8
    s_mov_b32 s30, 16
    {Lg}:
    s_mul_i32 s23, s23, 1152
    s_mul_i32 s50, s22, 144
    s_add_u32 s23, s23, s50
    s_cmp_lt_u32 s20, 360
    s_cselect_b32 s23, s23, 0x7fffffff
    s_mul_i32 s31, s40, 9216
    s_add_u32 s31, s31, 69632
    s_mov_b32 m0, s31
    """)
    for n in range(9):
        k(f"""
        v_add_u32 v12, {n*64}, v0
        v_mul_u32_u24 v13, 3641, v12
        v_lshrrev_b32 v13, 16, v13       ; rho
        v_mul_u32_u24 v14, 18, v13
        v_sub_u32 v12, v12, v14          ; chunk
        v_bfe_u32 v15, v13, 2, 1
        v_mul_u32_u24 v15, s28, v15
        v_bfe_u32 v14, v13, 3, 1
        v_mad_u32_u24 v15, v14, s29, v15
        v_bfe_u32 v14, v13, 4, 1
        v_mad_u32_u24 v15, v14, s30, v15
        v_and_b32 v14, 3, v13
        v_add_u32 v15, v15, v14
        v_mul_u32_u24 v15, 1152, v15
        v_lshl_add_u32 v15, v12, 4, v15
        buffer_load_dwordx4 v15, s[24:27], s23 offen lds
        s_add_u32 m0, m0, 1024
        """)
    k(f"""
    v_lshrrev_b32 v12, 4, v0         ; g
    v_bfe_u32 v13, v0, 2, 2          ; r
    v_and_b32 v14, 3, v0             ; c4
    v_lshl_add_u32 v15, v12, 3, v13
    v_mul_u32_u24 v15, 288, v15
    v_lshl_add_u32 v15, v14, 3, v15
    v_add_u32 v15, s31, v15
    v_and_b32 v12, 1, v12
    v_lshrrev_b32 v16, 1, v14
    v_lshl_add_u32 v12, v12, 1, v16
    v_lshl_add_u32 v12, v12, 3, v13
    v_mul_u32_u24 v12, 288, v12
    v_and_b32 v14, 1, v14
    v_lshl_add_u32 v12, v14, 3, v12
    v_add_u32 v12, s31, v12
    s_lshr_b32 s55, s21, 1
    s_lshl_b32 s55, s55, 3
    s_add_u32 s55, s55, s22
    s_mul_i32 s55, s55, 9216
    s_and_b32 s56, s21, 1
    s_lshl_b32 s57, s56, 9
    s_add_u32 s57, s57, s55
    s_add_u32 s57, s57, 8192
    s_lshl_b32 s56, s56, 10
    s_add_u32 s55, s55, s56
    s_add_u32 s56, s55, 4096
    """)
    k("s_waitcnt vmcnt(0)")
    for e in range(2):
        for j in range(4):
            k(f"ds_read_b64_tr_b16 {vr(100+e*20+j*4,2)}, v15 offset:{e*144+j*32}")
            k(f"ds_read_b64_tr_b16 {vr(102+e*20+j*4,2)}, v15 offset:{e*144+j*32+1152}")
        k(f"ds_read_b64_tr_b16 {vr(116+e*20,2)}, v12 offset:{e*144+128}")
        k(f"ds_read_b64_tr_b16 {vr(118+e*20,2)}, v12 offset:{e*144+128+1152}")
    for e in range(2):
        k(f"s_waitcnt lgkmcnt({10 if e == 0 else 0})")
        for j in range(4):
            k(f"buffer_store_dwordx4 {vr(100+e*20+j*4,4)}, v1, s[68:71], s{55+(j>>1)} offen offset:{(j&1)*2048} sc1")
        k("s_mov_b32 exec_hi, 0")
        k(f"buffer_store_dwordx4 {vr(116+e*20,4)}, v1, s[68:71], s57 offen sc1")
        k("s_mov_b32 exec_hi, -1")
        if e == 0: k("s_add_u32 s55, s55, 9216\ns_add_u32 s56, s56, 9216\ns_add_u32 s57, s57, 9216")

S2, R2, SZ2, BO2 = 32, 3, 34816, 16384
ZS = 104448
S3, R3, SZ3, BO3, LA3, SL0 = 45, 6, 17408, 8192, 4, 4
PL, PF, PA = 244, 245, 246

def tiles(k):
    k("""
    s_and_b32 s38, s34, 3
    s_lshl_b32 s38, s38, 3
    s_and_b32 s39, s35, 7
    s_add_u32 s38, s38, s39
    s_lshr_b32 s39, s34, 2
    s_lshl_b32 s39, s39, 2
    s_lshr_b32 s50, s35, 3
    s_add_u32 s39, s39, s50          ; nt3
    """)

def g2_hooks(k):
    def issueA():
        k("s_add_u32 m0, s41, s49")
        for n in range(4):
            if n: k(f"s_add_u32 m0, m0, 1024\ns_add_u32 s50, s42, {n*32768}")
            k(f"buffer_load_dwordx4 v{PA+(n&1)}, s[8:11], s{50 if n else 42} offen lds")
        k("s_add_u32 s42, s42, s88")
    def issueB():
        lin_dma(k, 4, 12, 43, 47, 49, vl16=PL, mods=" sc1")
        k("s_add_u32 m0, s45, s49")
        k("s_mov_b32 exec_hi, 0")
        k(f"buffer_load_dwordx4 v{PL}, s[12:15], s46 offen sc1 lds")
        k("s_mov_b32 exec_hi, -1")
        k("s_add_u32 s43, s43, s89")
        k("s_add_u32 s46, s46, s89")
    def poll(): k(f"buffer_load_dword v248, v{PF}, s[84:87], s53 offen sc1")
    def setup():
        srd(k, 8, 66, 0, 2048 * 4096)
        srd(k, 12, 4, Z2T_OFF, Z2T_SZ)
        k(f"""
        v_lshlrev_b32 v{PL}, 4, v0
        v_lshlrev_b32 v{PF}, 2, v0
        v_lshrrev_b32 v{PA+1}, 4, v0
        v_and_b32 v{PA}, 7, v0
        v_xor_b32 v{PA}, v{PA}, v{PA+1}
        v_lshrrev_b32 v{PA+1}, 3, v0
        v_lshlrev_b32 v{PA+1}, 12, v{PA+1}
        v_lshl_add_u32 v{PA}, v{PA}, 4, v{PA+1}
        v_xor_b32 v{PA+1}, 64, v{PA}
        s_lshl_b32 s41, s40, 12
        s_lshl_b32 s42, s36, 19
        s_lshl_b32 s50, s40, 17
        s_add_u32 s42, s42, s50          ; A goff
        s_mul_i32 s43, s37, 18432
        s_lshl_b32 s45, s40, 9
        s_add_u32 s46, s43, s45
        s_add_u32 s46, s46, 16384        ; B2 goff
        s_add_u32 s43, s43, s41          ; B goff
        s_add_u32 s47, s41, {BO2}
        s_add_u32 s45, s45, {BO2+16384}
        s_lshl_b32 s53, s37, 8
        s_add_u32 s53, s53, {F2}
        s_mov_b32 s100, 0
        s_mov_b32 s49, 0
        s_lshr_b32 s59, s35, 3
        s_add_u32 s59, s59, s35
        s_and_b32 s59, s59, {OPT.get("ko", 0) & 1}
        s_movk_i32 s88, 128
        s_mov_b32 s89, {144*2048}
        s_lshl_b32 s50, s59, 11
        s_add_u32 s42, s42, s50
        s_mul_i32 s50, s59, {16*144*2048}
        s_add_u32 s43, s43, s50
        s_add_u32 s46, s46, s50
        """)
        issueA()
        k(f"s_mov_b32 s49, {SZ2}")
        issueA()
        poll()
    def B01():
        k("s_mov_b32 s49, 0")
        issueB()
        k(f"s_mov_b32 s49, {SZ2}")
        issueB()
        k(f"s_mov_b32 s49, {2*SZ2}\ns_mov_b32 s100, 1")
    return dict(setup=setup, B01=B01, issueA=issueA, issueB=issueB, poll=poll)

def g23_body(k, st, L, G):
    R, SZ, BO = R2, SZ2, BO2
    stamps = st.on
    k.label(L["g2X"])
    k(f"s_cmp_ge_u32 s33, 4\ns_cbranch_scc1 {L['g2D2']}")
    k.label(L["g2C"])
    ACC, BUF, ZR, XT, BR, BP, T = 144, [0, 36, 72, 108], 0, 224, 234, 40, 48
    RW, QQ = 238, 239
    G0, G1, GB, GBH = 241, 242, 243, 244
    VA0, VA1, VB, VL16, VT, GO = 248, 249, 250, 251, 252, 240
    acc = lambda i, j: ACC + (i * 5 + j) * 4
    k(f"""
    s_load_dwordx2 s[66:67], s[0:1], {KA['out']}
    v_mbcnt_lo_u32_b32 v{VL16}, -1, 0
    v_mbcnt_hi_u32_b32 v{VL16}, -1, v{VL16}
    v_lshlrev_b32 v{VL16}, 4, v{VL16}
    s_and_b32 s40, s33, 1            ; wm
    s_lshr_b32 s41, s33, 1           ; wn
    v_bfe_u32 v{RW}, v{VL16}, 4, 4        ; row
    v_lshrrev_b32 v{QQ}, 8, v{VL16}     ; q
    v_lshrrev_b32 v{VA0}, 1, v{RW}
    v_xor_b32 v{VA0}, v{QQ}, v{VA0}
    v_lshlrev_b32 v{VA0}, 4, v{VA0}
    v_lshl_add_u32 v{VA0}, v{RW}, 7, v{VA0}
    s_lshl_b32 s42, s40, 13
    v_add_u32 v{VA0}, s42, v{VA0}
    v_xor_b32 v{VA1}, 64, v{VA0}
    s_lshl_b32 s43, s41, 13
    s_add_u32 s43, s43, {BO}
    v_add_u32 v{VB}, s43, v{VL16}
    s_cmp_eq_u32 s41, 0
    s_cselect_b64 vcc, -1, 0
    """)
    adv_setup(k, R, SZ)
    st()
    def reads(sub, b):
        o = [f"ds_read_b128 {vr(BUF[b]+i*4,4)}, v{VA1 if sub else VA0} offset:{i*2048}" for i in range(4)]
        o += [f"ds_read_b128 {vr(BUF[b]+16+j*4,4)}, v{VB} offset:{(j if j < 4 else 8)*2048+sub*1024}" for j in range(5)]
        return o
    def mf(b, seq, zero):
        return [f"v_mfma_f32_16x16x32_bf16 {vr(acc(i,j),4)}, {vr(BUF[b]+16+j*4,4)}, {vr(BUF[b]+i*4,4)}, {'0' if zero else vr(acc(i,j),4)}"
                for i, j in seq]
    def half(b, other, zero):
        for x in interleave(mf(b, snake(4, 4), zero), other): k(x)
        Ls = k.lab("sk")
        k(f"s_cbranch_vccz {Ls}")
        for x in mf(b, [(3 - i, 4) for i in range(4)], zero): k(x)
        k.label(Ls)
    adv = adv_ins(R, [VA0, VA1, VB])
    def first():
        tiles(k)
        k(f"""
        s_lshl_b32 s46, s36, 3
        s_lshl_b32 s47, s40, 2
        s_add_u32 s46, s46, s47          ; tfrag0
        s_mul_i32 s60, s46, {TFS}
        s_lshr_b32 s47, s37, 1
        s_mul_i32 s47, s47, 9216
        s_add_u32 s60, s60, s47
        s_and_b32 s47, s37, 1
        s_lshl_b32 s62, s47, 9
        s_add_u32 s62, s62, s60
        s_add_u32 s62, s62, {(18+8)*1024}
        s_lshl_b32 s47, s47, 12
        s_add_u32 s60, s60, s47
        s_lshl_b32 s47, s41, 11
        s_add_u32 s60, s60, s47
        s_add_u32 s60, s60, {18*1024}
        s_mul_i32 s48, s40, {4*4608}
        s_add_u32 s48, s48, {ZS}
        s_waitcnt lgkmcnt(0)
        """)
        srd(k, 16, 4, A3_OFF, A3_SZ)
        srd(k, 76, 66, 0, 2048 * 1152)
        srd(k, 84, 4, FLG_OFF, FLG_SZ)
        pre = f"""
        s_lshl_b32 s47, s40, 6
        v_add_lshl_u32 v{G0}, s47, v{RW}, 1
        v_add_u32 v{G0}, {BSC}, v{G0}
        s_lshl_b32 s47, s40, 5
        s_lshl_b32 s50, s41, 4
        s_add_u32 s47, s47, s50
        v_add_u32 v{GB}, s47, v{RW}
        v_mul_u32_u24 v{GB}, 144, v{GB}
        v_lshl_add_u32 v{GB}, v{QQ}, 3, v{GB}
        v_add_u32 v{GB}, {XSC}, v{GB}
        v_mul_u32_u24 v{GO}, 1152, v{RW}
        v_lshl_add_u32 v{GO}, v{QQ}, 3, v{GO}
        s_lshl_b32 s52, s38, 2
        s_lshl_b32 s47, s40, 1
        s_add_u32 s52, s52, s47
        s_add_u32 s52, s52, s41
        s_mul_i32 s47, s52, {16*1152}
        s_mul_i32 s50, s39, 144
        s_add_u32 s47, s47, s50
        v_lshrrev_b32 v{G1}, 1, v{QQ}
        v_lshlrev_b32 v{G1}, 8, v{G1}
        v_lshl_add_u32 v{G1}, v{RW}, 4, v{G1}
        v_and_b32 v{VT}, 1, v{QQ}
        v_lshl_add_u32 v{VT}, v{VT}, 3, v{G1}
        """.strip().split("\n")
        pre = [x.strip() for x in pre]
        pre += [f"ds_read_u16 v{BR+i}, v{G0} offset:{32*i}" for i in range(4)]
        pre += [f"ds_read_b64 {vr(XT+2*j,2)}, v{GB} offset:{j*32}" for j in range(5)]
        for x in pre: k(x)
    lp = loop4(k, S2, reads, half, adv, st, after_first=first, vm_wait=True)
    assert lp == 1
    k("s_barrier")
    k(f"""
    s_lshl_b32 s50, s41, 11
    s_add_u32 s50, s50, s48
    v_add_u32 v{VA0}, s50, v{VL16}
    v_add_u32 v{VA1}, s48, v{VT}
    """)
    zr = []
    for i in range(4):
        for p in range(2): zr.append(f"ds_read_b128 {vr(ZR+i*10+p*4,4)}, v{VA0} offset:{i*4608+p*1024}")
        zr.append(f"ds_read_b64 {vr(ZR+i*10+8,2)}, v{VA1} offset:{i*4608+4096}")
    for i in range(4): zr += [f"v_lshlrev_b32 v{BP+2*i}, 16, v{BR+i}", f"v_lshlrev_b32 v{BP+2*i+1}, 16, v{BR+i}"]
    half(2, zr[:12], False)
    half(3, zr[12:], False)
    k(f"""
    s_lshl_b32 s42, s40, 12
    s_lshl_b32 s43, s41, 10
    s_add_u32 s42, s42, s43
    s_add_u32 s42, s42, {SL0*SZ3}
    s_lshl_b32 s44, s41, 11
    s_add_u32 s45, s42, s44
    v_add_u32 v{G0}, s45, v{VL16}
    s_xor_b32 s44, s44, 2048
    s_add_u32 s45, s42, s44
    v_add_u32 v{G1}, s45, v{VL16}
    s_add_u32 s45, s43, {BO3+SL0*SZ3}
    v_add_u32 v{GB}, s45, v{VL16}
    v_and_b32 v{RW}, 7, v{RW}
    v_lshl_add_u32 v{RW}, v{QQ}, 3, v{RW}
    v_lshlrev_b32 v{RW}, 4, v{RW}
    s_lshl_b32 s45, s41, 9
    s_add_u32 s45, s45, {BO3+8192+SL0*SZ3}
    v_add_u32 v{GBH}, s45, v{RW}
    s_waitcnt lgkmcnt(0)
    """)
    st()
    def quad(i, j, n):
        a, z, t = acc(i, j), ZR + i * 10 + j * 2, T + (n & 1) * 4
        k(f"""
        v_pk_add_f32 {vr(a,2)}, {vr(a,2)}, {vr(BP+2*i,2)}
        v_pk_add_f32 {vr(a+2,2)}, {vr(a+2,2)}, {vr(BP+2*i,2)}
        v_lshlrev_b32 v{t}, 16, v{z}
        v_and_b32 v{t+1}, 0xffff0000, v{z}
        v_lshlrev_b32 v{t+2}, 16, v{z+1}
        v_and_b32 v{t+3}, 0xffff0000, v{z+1}
        v_pk_mul_f32 {vr(a,2)}, {vr(a,2)}, {vr(t,2)}
        v_pk_mul_f32 {vr(a+2,2)}, {vr(a+2,2)}, {vr(t+2,2)}
        v_cvt_pk_bf16_f32 v{z}, v{a}, v{a+1}
        v_cvt_pk_bf16_f32 v{z+1}, v{a+2}, v{a+3}
        """)
    n = 0
    for i in range(4):
        for j in range(4):
            quad(i, j, n); n += 1
            if j & 1: k(f"buffer_store_dwordx4 {vr(ZR+i*10+(j>>1)*4,4)}, v{VL16}, s[16:19], s60 offen offset:{(j>>1)*1024} sc1")
        if i < 3: k(f"s_add_u32 s60, s60, {TFS}")
    Ls = k.lab("es")
    k(f"s_cbranch_vccz {Ls}")
    for i in range(4):
        quad(i, 4, n); n += 1
        k(f"buffer_store_dwordx2 {vr(ZR+i*10+8,2)}, v{VT}, s[16:19], s62 offen sc1")
        if i < 3: k(f"s_add_u32 s62, s62, {TFS}")
    k.label(Ls)
    AC3, BU3 = 144, [0, 28]
    ac3 = lambda i, j: AC3 + (i * 5 + j) * 4
    for j in range(5):
        for h in range(2):
            k(f"v_lshlrev_b32 v{ac3(0,j)+2*h}, 16, v{XT+2*j+h}")
            k(f"v_and_b32 v{ac3(0,j)+2*h+1}, 0xffff0000, v{XT+2*j+h}")
    for r in range(ac3(1, 0), ac3(1, 4) + 4): k(f"v_mov_b32 v{r}, 0")
    adv_setup(k, R3, SZ3)
    k(f"s_mov_b32 s59, {SL0}")
    st()
    k("s_waitcnt vmcnt(0)")
    set_flag(k, f"s_lshl_b32 s50, s36, 8\ns_lshl_b32 s51, s37, 4\ns_add_u32 s50, s50, s51\ns_lshl_b32 s51, s33, 2\ns_add_u32 s50, s50, s51\ns_add_u32 s50, s50, {F4}", 60)
    def reads3(sub, b):
        o = [f"ds_read_b128 {vr(BU3[b],4)}, v{G0}", f"ds_read_b128 {vr(BU3[b]+4,4)}, v{G1}"]
        o += [f"ds_read_b128 {vr(BU3[b]+8+j*4,4)}, v{GB} offset:{j*2048}" for j in range(4)]
        o += [f"ds_read_b128 {vr(BU3[b]+24,4)}, v{GBH}"]
        return o
    def mf3(b):
        return [f"v_mfma_f32_16x16x32_bf16 {vr(ac3(i,j),4)}, {vr(BU3[b]+8+j*4,4)}, {vr(BU3[b]+i*4,4)}, {vr(ac3(i,j),4)}"
                for i, j in snake(2, 5)]
    last = consumer_loop(k, S3, 1, reads3, mf3, adv_ins(R3, [G0, G1, GB, GBH]), True, st=st)
    st()
    for m in mf3(last): k(m)
    k("s_lshl_b32 s42, s40, 1")
    ksplit_reduce(k, ac3(1, 0), 5, 42, 41, VL16, G0, G1, 0)
    for n in range(5): k(f"ds_read_b128 {vr(ac3(1,0)+n*4,4)}, v{G1} offset:{n*1024}")
    for j in range(5):
        k(f"s_waitcnt lgkmcnt({4-j})")
        a, b = ac3(0, j), ac3(1, j)
        k(f"v_pk_add_f32 {vr(a,2)}, {vr(a,2)}, {vr(b,2)}")
        k(f"v_pk_add_f32 {vr(a+2,2)}, {vr(a+2,2)}, {vr(b+2,2)}")
        k(f"v_cvt_pk_bf16_f32 v{2*j}, v{a}, v{a+1}")
        k(f"v_cvt_pk_bf16_f32 v{2*j+1}, v{a+2}, v{a+3}")
        if j == 4: k("s_mov_b32 exec_hi, 0")
        k(f"buffer_store_dwordx2 {vr(2*j,2)}, v{GO}, s[76:79], s47 offen offset:{j*32}")
    if stamps:
        k("s_mov_b32 exec_hi, -1")
        st(); k("s_waitcnt vmcnt(0)"); st()
    k("s_endpgm")
    k.label(L["g2D"])
    G["setup"]()
    srd(k, 68, 4, W3_OFF, W3_SZ)
    Lw = k.lab("nw")
    k(f"s_cmp_eq_u32 s40, 3\ns_cbranch_scc1 {Lw}")
    w3_unit(k)
    k.label(Lw)
    k.label(L["g2D2"])
    if OPT.get("pd", 3): k(f"s_setprio {OPT.get('pd', 3)}")
    Lb = k.lab("bd")
    k(f"s_cmp_lg_u32 s100, 0\ns_cbranch_scc1 {Lb}")
    k("s_waitcnt vmcnt(0)")
    spin(k, G["poll"], lambda: k("v_cmp_ne_u32 vcc, s101, v248"))
    G["B01"]()
    k.label(Lb)
    def issue():
        G["issueA"](); G["issueB"](); slot_adv_prod(k, R, SZ, 49)
    def ploop(n, iss, allowed):
        Lp = k.lab("pl")
        k(f"s_mov_b32 s58, {n}")
        k.label(Lp)
        k(f"s_waitcnt vmcnt({allowed})")
        k("s_barrier")
        iss()
        k(f"s_sub_u32 s58, s58, 1\ns_cmp_lg_u32 s58, 0\ns_cbranch_scc1 {Lp}")
    tiles(k)
    srd(k, 68, 4, W3_OFF, W3_SZ)
    k(f"""
    v_mov_b32 v1, v{PL}
    s_lshl_b32 s60, s40, 11          ; g3 A lds
    s_lshl_b32 s61, s38, 2
    s_add_u32 s61, s61, s40
    s_mul_i32 s61, s61, {TFS}        ; g3 A goff
    s_mul_i32 s62, s39, 9216
    s_lshl_b32 s63, s40, 8
    s_add_u32 s48, s62, s63
    s_add_u32 s48, s48, 8192         ; g3 B2 goff
    s_add_u32 s62, s62, s60          ; g3 B goff
    s_add_u32 s65, s60, {BO3}
    s_add_u32 s66, s63, {BO3+8192}
    s_mov_b32 s67, {SL0*SZ3}
    s_lshl_b32 s51, s36, 3
    s_lshl_b32 s52, s40, 1
    s_add_u32 s51, s51, s52
    s_mul_i32 s51, s51, {TFS}
    s_lshr_b32 s50, s37, 1
    s_mul_i32 s50, s50, 9216
    s_add_u32 s51, s51, s50
    s_and_b32 s50, s37, 1
    s_lshl_b32 s44, s50, 9
    s_add_u32 s44, s44, s51
    s_add_u32 s44, s44, {26*1024}
    s_lshl_b32 s50, s50, 12
    s_add_u32 s51, s51, s50
    s_add_u32 s51, s51, {18*1024}
    s_mul_i32 s52, s52, 4608
    s_add_u32 s52, s52, {ZS}
    s_lshr_b32 s53, s38, 1
    s_lshl_b32 s53, s53, 8
    s_add_u32 s53, s53, {F4}
    s_movk_i32 s54, {F3}
    s_movk_i32 s20, 2048
    s_mov_b32 s21, {8*9216}
    s_lshr_b32 s22, s35, 3
    s_add_u32 s22, s22, s35
    s_and_b32 s22, s22, {(OPT.get("ko", 0) >> 1) & 1}
    """)
    ZB = OPT.get("zb", 21)
    ploop(1, issue, 5)
    ploop(4, issue, 9)
    Ls = k.lab("f3")
    k(f"s_cmp_lg_u32 s40, 0\ns_cbranch_scc1 {Ls}")
    set_flag(k, f"s_lshl_b32 s50, s2, 2\ns_add_u32 s50, s50, {F3}", 8)
    k.label(Ls)
    ploop(9, issue, 9)
    if OPT.get("ko", 0) & 1:
        k(f"""
        s_lshl_b32 s50, s59, 5
        s_sub_u32 s50, 15, s50           ; +15 / -17 stages
        s_mul_i32 s55, s50, 128
        s_add_u32 s42, s42, s55
        s_mul_i32 s55, s50, {144*2048}
        s_add_u32 s43, s43, s55
        s_add_u32 s46, s46, s55
        s_sub_u32 s88, 0, s88
        s_sub_u32 s89, 0, s89
        """)
    ploop(ZB - 15, issue, 9)
    ld = lambda: k("buffer_load_dwordx4 v[8:11], v1, s[84:87], s54 offen sc1")
    ld()
    ploop(1, issue, 10)
    k("s_waitcnt vmcnt(9)")
    spin(k, ld, lambda: k("v_xor_b32 v8, s101, v8\nv_xor_b32 v9, s101, v9\nv_xor_b32 v10, s101, v10\nv_xor_b32 v11, s101, v11\nv_or3_b32 v8, v8, v9, v10\nv_or_b32 v8, v8, v11\nv_cmp_ne_u32 vcc, 0, v8"))
    for e in range(2):
        k(f"s_add_u32 m0, s52, {e*4608}")
        for n in range(4): k(f"buffer_load_dwordx4 v1, s[16:19], s51 offen offset:{n*1024} sc1 lds")
        k(f"s_add_u32 m0, s52, {e*4608+4096}")
        k("s_mov_b32 exec_hi, 0")
        k(f"buffer_load_dwordx4 v1, s[16:19], s44 offen sc1 lds")
        k("s_mov_b32 exec_hi, -1")
        k(f"s_add_u32 s51, s51, {TFS}\ns_add_u32 s44, s44, {TFS}")
    ploop(2, issue, 19)
    ploop(30 - ZB - 2, issue, 9)
    def issue3():
        k("s_add_u32 m0, s60, s67")
        for n in range(2): k(f"buffer_load_dwordx4 v1, s[16:19], s61 offen offset:{n*1024} sc1 lds")
        k("s_add_u32 m0, s65, s67")
        for n in range(2): k(f"buffer_load_dwordx4 v1, s[68:71], s62 offen offset:{n*1024} sc1 lds")
        k("s_add_u32 m0, s66, s67")
        k("s_mov_b64 exec, 0xffff")
        k(f"buffer_load_dwordx4 v1, s[68:71], s48 offen sc1 lds")
        k("s_mov_b64 exec, -1")
        k("s_add_u32 s61, s61, s20")
        k("s_add_u32 s62, s62, s21")
        k("s_add_u32 s48, s48, s21")
        slot_adv_prod(k, R3, SZ3, 67)
    k("s_waitcnt vmcnt(9)")
    k("s_barrier")
    issue3(); issue3()
    k("s_waitcnt vmcnt(10)")
    k("s_barrier")
    k("s_barrier")
    issue3(); issue3()
    NW = 0
    if OPT.get("w3l2", 0):
        k(f"""
        s_lshr_b32 s50, s34, 2
        s_mul_i32 s50, s50, {4*9216}
        s_mul_i32 s55, s35, {8*9216}
        s_add_u32 s50, s50, s55
        s_mul_i32 s55, s40, 9216
        s_add_u32 s50, s50, s55
        v_lshlrev_b32 v12, 7, v0
        buffer_load_dword v13, v12, s[68:71], s50 offen
        s_add_u32 s50, s50, {32*8*9216}
        buffer_load_dword v14, v12, s[68:71], s50 offen
        """)
        NW = 2
    ploop(3, issue3, 15 + NW)
    ploop(1, issue3, 15)
    ld4 = lambda: k(f"buffer_load_dword v4, v{PF}, s[84:87], s53 offen sc1")
    ld4()
    k("s_waitcnt vmcnt(16)")
    k("s_barrier")
    issue3()
    k("s_waitcnt vmcnt(16)")
    k("s_barrier")
    k("s_waitcnt vmcnt(5)")
    spin(k, ld4, lambda: k("v_cmp_ne_u32 vcc, s101, v4"))
    def jump3(expr):
        k(expr)
        k(f"""
        s_mul_i32 s55, s50, 2048
        s_add_u32 s61, s61, s55
        s_mul_i32 s55, s50, {8*9216}
        s_add_u32 s62, s62, s55
        s_add_u32 s48, s48, s55
        """)
    jump3("s_mul_i32 s50, s22, 18")
    issue3()
    ploop(17, issue3, 15)
    if OPT.get("ko", 0) & 2:
        jump3("s_mul_i32 s50, s22, 36\ns_sub_u32 s50, 17, s50")
        k("s_sub_u32 s20, 0, s20\ns_sub_u32 s21, 0, s21")
    ploop(18, issue3, 15)
    for b in range(S3 - LA3, S3):
        k(f"s_waitcnt vmcnt({(S3-1-b)*5})")
        k("s_barrier")
    k("s_endpgm")

class DbgStamps:
    def __init__(self, k): self.k, self.on, self.n = k, True, 0
    def init(self):
        k = self.k
        k(f"s_load_dwordx2 s[90:91], s[0:1], {KA['dbg']}\ns_waitcnt lgkmcnt(0)")
        srd(k, 96, 90, 0, 256)
        k("s_mov_b32 s95, 4")
    def __call__(self, v=254):
        k = self.k
        self.n += 1
        if self.n <= 3: return
        L = k.lab("ds")
        k(f"""
        s_cmp_lg_u32 s33, 0
        s_cbranch_scc1 {L}
        s_memrealtime s[92:93]
        s_waitcnt lgkmcnt(0)
        s_sub_u32 s92, s92, s101
        v_mov_b32 v{v}, s92
        v_mov_b32 v{v-1}, 0
        s_mov_b64 exec, 1
        buffer_atomic_umax v{v}, v{v-1}, s[96:99], s95 offen
        s_mov_b64 exec, -1
        s_add_u32 s95, s95, 4
        {L}:
        """)

def gen_main(name, stamps=False):
    k = Kern(name); st = Stamps(k, stamps, 1)
    if OPT.get("dbg", 0): st = DbgStamps(k)
    L = {n: k.lab(n) for n in "end D C2q att g2C g2D g2D2 g2X nx".split()}
    preamble(k, 256, L["end"], [(4, "ws"), (6, "w_in"), (64, "wqkv"), (66, "w_sp"), (68, "x"), (74, "dbg")])
    k("s_mov_b32 s101, 1\ns_mov_b32 s100, 0")
    for r in range(244, 249): k(f"v_mov_b32 v{r}, 0")
    G = g2_hooks(k)
    k1_body(k, st, L, True, True, G)
    g23_body(k, st, L, G)
    k.label(L["end"])
    k("s_endpgm")
    return k

if __name__ == "__main__":
    HEADER = open("parallel_sum__sliding_local_dilated__mixer_gmlp__prompt.s.ref").read().split("; Override launch")[0]
    stamps = "stamps" in sys.argv[2:]
    for a in sys.argv[2:]:
        if "=" in a: OPT[a.split("=")[0]] = int(a.split("=")[1])
    ks = [(gen_main("parallel_sum__sliding_local_dilated__mixer_gmlp__prompt_kernel", stamps), 256, 256, 512, 163840)]
    txt = assemble_file(HEADER + "; generated by a python script (tile loops, fragment layouts and wait states hand-designed)\n", ks)
    if "plain" in sys.argv[2:]:
        txt = re.sub(r"; @launch kernel=\S+ grid", "; @launch grid", txt)
    open(sys.argv[1], "w").write(txt)
```

```python
import sys, math, re
from asmlib import *
import gen2
from gen2 import *
from gen4 import reduce16

FLG_OFF = 0x3430000; FLG_SZ = 32768
F5 = 13312
W1_OFF = WSP_OFF; W1_SZ = 16 * 9 * 18432
WQ_REL = W1_SZ; W12_SZ = W1_SZ + 8 * 9 * 28672
RS_OFF = 0x3440000; RS_SZ = 128 * 128
F0 = 16384
F1, F2, F4, F3 = 0, 4096, 8192, 12288
TFS = 90 * 1024
ATT = 69632
XSC = 153600
BSC = XSC + 9216
HSC = BSC + 256

def snake(no, ni):
    return [(o, i if o % 2 == 0 else ni - 1 - i) for o in range(no) for i in range(ni)]

def w144_voff(k, d, sid, pitch):
    k(f"""
    v_add_u32 v2, s{sid}, v0
    v_mul_u32_u24 v3, 3641, v2
    v_lshrrev_b32 v3, 16, v3
    v_mul_u32_u24 v4, 18, v3
    v_sub_u32 v2, v2, v4
    v_and_b32 v4, 4, v3
    v_and_b32 v5, 8, v3
    v_lshlrev_b32 v4, 1, v4
    v_lshrrev_b32 v5, 1, v5
    v_and_b32 v3, 0x33, v3
    v_or3_b32 v3, v3, v4, v5
    v_mul_u32_u24 v3, {pitch}, v3
    v_lshl_add_u32 v{d}, v2, 4, v3
    """)
def qkv_voff(k, d, sid):
    k(f"""
    v_add_u32 v2, s{sid}, v0
    v_mul_u32_u24 v3, 2341, v2
    v_lshrrev_b32 v3, 16, v3
    v_mul_u32_u24 v4, 28, v3
    v_sub_u32 v2, v2, v4
    v_and_b32 v4, 4, v3
    v_lshrrev_b32 v5, 1, v4
    v_xor_b32 v2, v2, v5
    v_lshlrev_b32 v4, 1, v4
    v_and_b32 v5, 8, v3
    v_lshrrev_b32 v5, 1, v5
    v_and_b32 v3, 0x33, v3
    v_or3_b32 v3, v3, v4, v5
    v_mul_u32_u24 v3, 3456, v3
    v_mul_u32_u24 v4, 57, v2
    v_lshrrev_b32 v4, 9, v4
    v_mul_u32_u24 v5, {1152-144}, v4
    v_lshl_add_u32 v5, v2, 4, v5
    v_add_u32 v3, v3, v5
    v_mov_b32 v5, 0x80000000
    v_cmp_gt_u32 vcc, 27, v2
    v_cndmask_b32 v{d}, v5, v3, vcc
    """)

def lin_dma(k, n, srdr, soff, mbase, slot, vl16=1, mods=""):
    for g in range(0, n, 4):
        if g == 0:
            k(f"s_add_u32 m0, s{mbase}, s{slot}"); so = soff
        else:
            k("s_add_u32 m0, m0, 4096"); k(f"s_add_u32 s50, s{soff}, {g*1024}"); so = 50
        for i in range(min(4, n - g)):
            k(f"buffer_load_dwordx4 v{vl16}, s[{srdr}:{srdr+3}], s{so} offen offset:{i*1024}{mods} lds")
def gat_dma(k, n, srdr, soff, mbase, slot, V):
    k(f"s_add_u32 m0, s{mbase}, s{slot}")
    for i in range(n):
        if i: k("s_add_u32 m0, m0, 1024")
        k(f"buffer_load_dwordx4 v{V+i}, s[{srdr}:{srdr+3}], s{soff} offen lds")

def spin(k, load, check):
    Lp, Ld = k.lab("sp"), k.lab("sd")
    check()
    k(f"s_cbranch_vccz {Ld}")
    k("s_mov_b32 s50, 0x20000")
    k.label(Lp)
    k(f"s_sleep {OPT.get('slp', 4)}")
    load()
    k("s_waitcnt vmcnt(0)")
    k("s_sub_u32 s50, s50, 1")
    check()
    k("s_cmp_eq_u32 s50, 0")
    k("s_cselect_b64 vcc, 0, vcc")
    k(f"s_cbranch_vccnz {Lp}")
    k.label(Ld)

def set_flag(k, soff_expr_lines, vt):
    k(soff_expr_lines)
    k(f"""
    v_mov_b32 v{vt}, s101
    v_mov_b32 v{vt+1}, 0
    s_mov_b64 exec, 1
    buffer_store_dword v{vt}, v{vt+1}, s[84:87], s50 offen sc1
    s_mov_b64 exec, -1
    """)

CNT = ["s_sub_u32 s58, s58, 1", "s_cmp_lg_u32 s58, 0"]


def phase0(k, st, L):
    SZ = 51200
    Lw, Ld, Ln6, Lnz, Lnt = k.lab("w3"), k.lab("p0d"), k.lab("n6"), k.lab("nz"), k.lab("nt")
    srd(k, 84, 4, FLG_OFF, FLG_SZ)
    k(f"""
    s_cmp_lg_u32 s33, 7
    s_cbranch_scc1 {Lnz}
    s_lshl_b32 s50, s36, 8
    s_lshl_b32 s51, s37, 4
    s_add_u32 s50, s50, s51
    s_lshl_b32 s51, s37, 8
    s_lshl_b32 s52, s36, 4
    s_add_u32 s51, s51, s52
    s_add_u32 s51, s51, {F2}
    s_add_u32 s52, s50, {F4}
    s_lshl_b32 s53, s2, 2
    s_add_u32 s53, s53, {F3}
    v_mov_b32 v4, s50
    v_writelane_b32 v4, s51, 1
    v_writelane_b32 v4, s52, 2
    v_writelane_b32 v4, s53, 3
    s_lshl_b32 s53, s44, 2
    s_add_u32 s53, s53, {F5}
    v_writelane_b32 v4, s53, 4
    s_mov_b64 exec, 31
    buffer_load_dword v252, v4, s[84:87], 0 offen
    s_mov_b64 exec, -1
    {Lnz}:
    s_cmp_eq_u32 s32, 0
    s_cbranch_scc1 {Lw}
    """)
    k(f"""
    s_cmp_ge_u32 s33, 4
    s_cbranch_scc1 {Ln6}
    v_mul_u32_u24 v5, 144, v2
    v_add_u32 v5, {2*SZ}, v5
    s_lshl_b32 s47, s33, 5
    v_lshl_add_u32 v6, v3, 3, v5
    v_add_u32 v6, s47, v6
    s_lshl_b32 s47, s44, 11
    """)
    for i in range(5):
        k(f"""
        s_add_u32 s50, s46, {i}
        s_lshr_b32 s51, s50, 1
        s_lshl_b32 s51, s51, 18
        s_and_b32 s50, s50, 1
        s_lshl_b32 s50, s50, 10
        s_add_u32 s51, s51, s50
        s_add_u32 s{53+i}, s51, s47
        """)
    k("s_cmp_lt_u32 s33, 2\ns_cselect_b32 s57, s57, 0x7fffffff")
    k("s_waitcnt vmcnt(0)")
    X = 28
    for i in range(20):
        k(f"v_lshlrev_b32 v{X+2*i}, 16, v{8+i}")
        k(f"v_and_b32 v{X+2*i+1}, 0xffff0000, v{8+i}")
    k(f"v_pk_add_f32 v[68:69], {vr(X,2)}, {vr(X+2,2)}")
    k(f"v_pk_mul_f32 v[70:71], {vr(X,2)}, {vr(X,2)}")
    k(f"v_pk_mul_f32 v[72:73], {vr(X+2,2)}, {vr(X+2,2)}")
    for i in range(2, 20):
        k(f"v_pk_add_f32 v[68:69], v[68:69], {vr(X+2*i,2)}")
        k(f"v_pk_fma_f32 {vr(70+2*(i&1),2)}, {vr(X+2*i,2)}, {vr(X+2*i,2)}, {vr(70+2*(i&1),2)}")
    k("v_pk_add_f32 v[70:71], v[70:71], v[72:73]\nv_add_f32 v68, v68, v69\nv_add_f32 v69, v70, v71")
    k("ds_write_b64 v6, v[68:69]")
    k("s_waitcnt lgkmcnt(0)")
    k("s_barrier")
    for i in range(8): k(f"ds_read_b128 {vr(68+4*i,4)}, v5 offset:{i*16}")
    k("s_waitcnt lgkmcnt(0)")
    for w in (8, 4, 2, 1):
        for i in range(w): k(f"v_pk_add_f32 {vr(68+2*i,2)}, {vr(68+2*i,2)}, {vr(68+2*(i+w),2)}")
    inv = f2u(1.0 / 576)
    k(f"""
    v_mul_f32 v96, {inv:#x}, v68
    v_mul_f32 v98, {inv:#x}, v69
    v_fma_f32 v98, -v96, v96, v98
    v_max_f32 v98, 0, v98
    """)
    rnd_bf16(k, 96, 96)
    rnd_bf16(k, 98, 98)
    k("v_mov_b32 v97, v96")
    k(f"v_add_f32 v98, {f2u(1e-5):#x}, v98")
    rnd_bf16(k, 98, 98)
    k("v_sqrt_f32 v98, v98")
    for i in range(20): k(f"v_pk_add_f32 {vr(X+2*i,2)}, {vr(X+2*i,2)}, v[96:97] neg_lo:[0,1] neg_hi:[0,1]")
    rnd_bf16(k, 98, 98)
    k("v_rcp_f32 v98, v98")
    for i in range(20): k(f"v_cvt_pk_bf16_f32 v{8+i}, v{X+2*i}, v{X+2*i+1}")
    k("v_mov_b32 v99, v98")
    for i in range(20):
        k(f"v_lshlrev_b32 v{X+2*i}, 16, v{8+i}")
        k(f"v_and_b32 v{X+2*i+1}, 0xffff0000, v{8+i}")
    for i in range(20): k(f"v_pk_mul_f32 {vr(X+2*i,2)}, {vr(X+2*i,2)}, v[98:99]")
    for i in range(20): k(f"v_cvt_pk_bf16_f32 v{8+i}, v{X+2*i}, v{X+2*i+1}")
    for i in range(5): k(f"buffer_store_dwordx4 {vr(8+4*i,4)}, v1, s[8:11], s{53+i} offen sc1")
    k(f"s_cmp_lg_u32 s33, 0\ns_cbranch_scc1 {Ld}")
    srd(k, 20, 4, RS_OFF, RS_SZ)
    k(f"""
    v_sub_f32 v96, 0, v96
    v_cmp_gt_u32 vcc, 16, v0
    v_lshlrev_b32 v97, 2, v0
    s_lshl_b32 s45, s44, 7
    v_cndmask_b32 v96, v98, v96, vcc
    s_mov_b32 exec_hi, 0
    buffer_store_dword v96, v97, s[20:23], s45 offen sc1
    s_mov_b32 exec_hi, -1
    s_branch {Ld}
    """)
    k.label(Ln6)
    srd(k, 20, 4, ST_OFF, ST_SZ)
    Lz = k.lab("z7")
    k(f"""
    v_mov_b32 v4, 0
    v_lshlrev_b32 v5, 2, v0
    s_lshl_b32 s45, s44, 7
    s_cmp_lg_u32 s33, 7
    s_cbranch_scc1 {Lz}
    s_mov_b32 exec_hi, 0
    buffer_store_dword v4, v5, s[20:23], s45 offen sc1
    s_mov_b32 exec_hi, -1
    {Lz}:
    s_barrier
    s_branch {Ld}
    """)
    k.label(Lw)
    Lnw = k.lab("nw")
    k(f"""
    s_cmp_ge_u32 s33, 4
    s_cbranch_scc1 {Lnw}
    s_lshl_b32 s45, s33, 7
    s_add_u32 s45, s45, s44          ; g 0..511
    s_lshl_b32 s51, s45, 6
    v_add_u32 v243, s51, v0
    s_mov_b32 s52, 116509
    v_mul_lo_u32 v242, s52, v243
    v_lshrrev_b32 v242, 22, v242
    v_lshlrev_b32 v243, 7, v243
    v_mul_u32_u24 v242, 4608, v242
    v_add_u32 v242, v243, v242
    s_mov_b32 s51, 0x7fffffff
    s_cmp_lt_u32 s45, 324
    s_cselect_b32 s50, 4608, s51
    s_cselect_b32 s51, 0, s51
    buffer_load_dword v252, v242, s[12:15], s50 offen
    buffer_load_dword v252, v242, s[12:15], s51 offen
    s_mov_b32 s24, s64
    s_mov_b32 s25, s65
    s_mov_b32 s26, {576*3456}
    s_mov_b32 s27, 0x20000
    s_sub_u32 s50, 511, s45
    s_lshl_b32 s50, s50, 13
    v_lshlrev_b32 v243, 7, v0
    buffer_load_dword v252, v243, s[24:27], s50 offen
    {Lnw}:
    """)
    Lnc, Lpc = k.lab("nc"), k.lab("pc")
    k(f"""
    s_cmp_lg_u32 s35, 0
    s_cbranch_scc1 {Lnc}
    s_getpc_b64 s[28:29]
    {Lpc}:
    s_mov_b32 s30, {L['end']}-{Lpc}
    s_mov_b32 s31, 0x20000
    s_lshl_b32 s50, s33, 13
    v_lshlrev_b32 v242, 7, v0
    buffer_load_dword v252, v242, s[28:31], s50 offen
    {Lnc}:
    """)
    k.label(Ld)

def loop4(k, S, reads, half, adv, st, after_first=None, vm_wait=False, vm_first=False):
    def stage_reads(p): return reads(0, 2 * p) + reads(1, 2 * p + 1)
    def interval(p, other, zero=False):
        n = len(other); cut = min(n, 16)
        half(2 * p, other[:cut], zero); half(2 * p + 1, other[cut:], False)
    k("s_barrier")
    st()
    for r in stage_reads(0) + adv: k(r)
    if after_first: after_first()
    k("s_waitcnt lgkmcnt(0)")
    k("s_barrier")
    interval(0, stage_reads(1) + adv, True)
    m = S - 2
    k(f"s_mov_b32 s58, {(m+1)//2}")
    k("s_waitcnt vmcnt(0) lgkmcnt(0)" if vm_first else "s_waitcnt lgkmcnt(0)")
    Ltop, Lex = k.lab("top"), k.lab("ex")
    k.label(Ltop)
    k("s_barrier")
    interval(1, stage_reads(0) + adv + (CNT if m & 1 else []))
    k("s_waitcnt lgkmcnt(0)")
    if m & 1: k(f"s_cbranch_scc0 {Lex}")
    k("s_barrier")
    interval(0, stage_reads(1) + adv + ([] if m & 1 else CNT))
    k("s_waitcnt vmcnt(0) lgkmcnt(0)" if vm_wait else "s_waitcnt lgkmcnt(0)")
    k(f"s_branch {Ltop}" if m & 1 else f"s_cbranch_scc1 {Ltop}")
    k.label(Lex)
    st()
    return (S - 1) & 1

def k1_body(k, st, L, fused, single, G):
    R, SZ = 3, 51200
    BO1, BOZ, BOQ = 16384, 32768, 18432
    RSC = 2 * SZ + 40960
    stamps = st.on
    k(f"""
    s_and_b32 s36, s34, 1
    s_lshl_b32 s36, s36, 3
    s_and_b32 s37, s35, 7
    s_add_u32 s36, s36, s37          ; z2 mt
    s_lshr_b32 s37, s34, 1
    s_lshl_b32 s37, s37, 2
    s_lshr_b32 s38, s35, 3
    s_add_u32 s37, s37, s38          ; z2 nt
    s_lshr_b32 s32, s35, 4
    s_and_b32 s38, s34, 1
    s_lshl_b32 s38, s38, 2
    s_and_b32 s39, s35, 3
    s_add_u32 s38, s38, s39
    s_lshr_b32 s39, s34, 1
    s_lshl_b32 s50, s39, 1
    s_lshl_b32 s39, s39, 2
    s_lshr_b32 s51, s35, 2
    s_add_u32 s39, s39, s51          ; z1 nt
    s_bfe_u32 s51, s35, 0x10003
    s_add_u32 s50, s50, s51          ; hg
    s_cmp_eq_u32 s32, 0
    s_cselect_b32 s38, s38, s36
    s_cselect_b32 s39, s39, s50
    s_lshl_b32 s44, s34, 4
    s_and_b32 s50, s35, 15
    s_add_u32 s44, s44, s50
    s_mov_b32 s3, s44
    v_and_b32 v2, 15, v0             ; row
    v_lshrrev_b32 v3, 4, v0          ; q
    s_mul_i32 s45, s44, {16*1152}
    s_mul_i32 s46, s33, 5
    s_lshr_b32 s50, s33, 1
    s_and_b32 s50, s50, s33
    s_sub_u32 s46, s46, s50
    s_lshl_b32 s51, s46, 6
    s_add_u32 s45, s45, s51
    s_add_u32 s52, s45, 256
    s_cmp_lt_u32 s33, 2
    s_cselect_b32 s52, s52, 0x7fffffff
    s_cmp_lt_u32 s33, 4
    s_cselect_b32 s50, s32, 0
    v_mul_u32_u24 v4, 1152, v2
    v_lshl_add_u32 v7, v3, 4, v4
    s_mov_b32 s26, {2048*1152}
    s_mov_b32 s27, 0x20000
    s_waitcnt lgkmcnt(0)
    s_mov_b32 s24, s68
    s_mov_b32 s25, s69
    s_cmp_eq_u32 s50, 0
    s_cbranch_scc1 {L['nx']}
    buffer_load_dwordx4 v[8:11], v7, s[24:27], s45 offen
    buffer_load_dwordx4 v[12:15], v7, s[24:27], s45 offen offset:64
    buffer_load_dwordx4 v[16:19], v7, s[24:27], s45 offen offset:128
    buffer_load_dwordx4 v[20:23], v7, s[24:27], s45 offen offset:192
    buffer_load_dwordx4 v[24:27], v7, s[24:27], s52 offen
    {L['nx']}:
    """)
    srd(k, 8, 4, XN_OFF, XN_SZ)
    srd(k, 12, 6, 0, 576 * 9216)
    XS = " sc1" if single else ""
    st.init()
    def half_dma(srdr, v, soff, mbase, mods=""):
        k(f"s_add_u32 m0, s{mbase}, s49")
        k("s_mov_b32 exec_hi, 0")
        k(f"buffer_load_dwordx4 v{v}, s[{srdr}:{srdr+3}], s{soff} offen{mods} lds")
        k("s_mov_b32 exec_hi, -1")
    def i1A():
        k("s_add_u32 m0, s41, s49")
        for n in range(4):
            if n: k(f"s_add_u32 m0, m0, 1024\ns_add_u32 s50, s42, {n*8*1152}")
            k(f"buffer_load_dwordx4 v{105+(n&1)}, s[76:79], s{50 if n else 42} offen lds")
        k("s_add_u32 s42, s42, 128")
    def i1B():
        gat_dma(k, 4, 12, 43, 47, 49, 100); half_dma(12, 104, 43, 48); k(f"s_add_u32 s43, s43, {64*9216}")
    def issue1():
        i1A(); i1B(); slot_adv_prod(k, R, SZ, 49)
    Lne = k.lab("ne")
    srd(k, 76, 68, 0, 2048 * 1152)
    for r in range(100, 107): k(f"v_mov_b32 v{r}, 0")
    k(f"s_cmp_lt_u32 s33, 4\ns_cbranch_scc1 {Lne}")
    srd(k, 28, 74, 0, 256)
    Lnp = k.lab("npub")
    k(f"""
    s_xor_b32 s50, s33, 6
    s_or_b32 s50, s50, s2
    s_cmp_lg_u32 s50, 0
    s_cbranch_scc1 {Lnp}
    s_memrealtime s[50:51]
    v_mov_b32 v4, 0
    s_waitcnt lgkmcnt(0)
    s_or_b32 s50, s50, 1
    v_mov_b32 v5, s50
    s_mov_b64 exec, 1
    buffer_store_dword v5, v4, s[28:31], 0 offen sc1
    s_mov_b64 exec, -1
    {Lnp}:
    """)
    k(f"""
    s_sub_u32 s40, s33, 4            ; pw
    s_lshl_b32 s41, s40, 12          ; A lds
    s_mul_i32 s42, s36, {128*1152}
    s_mul_i32 s50, s40, {32*1152}
    s_add_u32 s42, s42, s50
    s_mul_i32 s43, s37, 288
    s_add_u32 s43, s43, 4608         ; B goff
    s_add_u32 s47, s41, {BO1}        ; B lds
    s_lshl_b32 s48, s40, 9
    s_add_u32 s48, s48, {BO1+16384}
    s_mov_b32 s49, 0
    v_lshrrev_b32 v106, 4, v0
    v_and_b32 v105, 7, v0
    v_xor_b32 v105, v105, v106
    v_lshrrev_b32 v106, 3, v0
    v_mul_u32_u24 v106, 1152, v106
    v_lshl_add_u32 v105, v105, 4, v106
    v_and_b32 v107, 64, v105
    v_lshlrev_b32 v107, 1, v107
    v_add_u32 v106, 64, v105
    v_sub_u32 v106, v106, v107
    s_lshl_b32 s51, s40, 8
    """)
    i1A()
    k("s_mov_b32 m0, s47")
    for n in range(4):
        w144_voff(k, 100 + n, 51, 9216)
        k("s_add_u32 s51, s51, 64")
        k(f"buffer_load_dwordx4 v{100+n}, s[12:15], s43 offen lds")
        k("s_add_u32 m0, m0, 1024")
    k("s_lshl_b32 s51, s40, 5\ns_add_u32 s51, s51, 1024")
    w144_voff(k, 104, 51, 9216)
    half_dma(12, 104, 43, 48)
    k(f"s_add_u32 s43, s43, {64*9216}\ns_mov_b32 s49, {SZ}")
    i1A(); i1B()
    k.label(Lne)
    if single:
        st(250)
        phase0(k, st, L)
        st(250)
    k(f"s_cmp_ge_u32 s33, 4\ns_cbranch_scc1 {L['D']}")
    srd(k, 16, 4, A3_OFF, A3_SZ)
    def loop2(reads, half, adv, vmw):
        Ltop = k.lab("top")
        k("s_mov_b32 s58, 8")
        k("s_barrier")
        st()
        for r in reads(0, 0): k(r)
        k("s_waitcnt lgkmcnt(0)")
        if vmw: k("s_barrier")
        half(0, reads(1, 1) + adv, True)
        k("s_waitcnt vmcnt(0) lgkmcnt(0)")
        k.label(Ltop)
        k("s_barrier")
        half(1, reads(0, 0), False)
        k("s_waitcnt lgkmcnt(0)")
        half(0, reads(1, 1) + adv + CNT, False)
        k("s_waitcnt lgkmcnt(0)")
        k(f"s_cbranch_scc1 {Ltop}")
        st()
    st()
    ACC, BUF, CS, ONE = 144, [0, 36, 72, 108], 224, 244
    VA0, VA1, VB, VL16 = 248, 249, 250, 251
    acc = lambda i, j: ACC + (i * 5 + j) * 4
    k(f"""
    s_mov_b32 s40, s33
    s_and_b32 s41, s40, 1            ; wm
    s_lshr_b32 s42, s40, 1           ; wn
    v_and_b32 v2, 15, v0
    v_lshrrev_b32 v3, 4, v0
    v_lshrrev_b32 v{VA0}, 1, v2
    v_xor_b32 v{VA0}, v3, v{VA0}
    v_lshlrev_b32 v{VA0}, 4, v{VA0}
    v_lshl_add_u32 v{VA0}, v2, 7, v{VA0}
    s_lshl_b32 s43, s41, 13
    v_add_u32 v{VA0}, s43, v{VA0}
    v_xor_b32 v{VA1}, 64, v{VA0}
    """)
    for r in range(4): k(f"v_mov_b32 v{ONE+r}, 0x3f803f80")
    tr_lane_base(k, VB, 288, 2)
    k(f"s_mul_i32 s43, s42, 160\ns_add_u32 s43, s43, {BO1}\nv_add_u32 v{VB}, s43, v{VB}")
    k(f"""
    s_cmp_eq_u32 s42, 0
    s_cselect_b64 vcc, -1, 0
    s_cselect_b32 s54, -1, 0
    s_mul_i32 s46, s41, {18*1024}
    s_mul_i32 s47, s42, {5*1024}
    s_add_u32 s46, s46, s47
    s_add_u32 s46, s46, {2*SZ}
    v_add_u32 v{VL16}, s46, v1
    """)
    C, T, O, SM, NM, RR = 0, 8, 72, 80, 112, 128
    adv_setup(k, R, SZ)
    def reads1(sub, b):
        o = [f"ds_read_b128 {vr(BUF[b]+i*4,4)}, v{VA1 if sub else VA0} offset:{i*2048}" for i in range(4)]
        for j in range(5):
            for hh in range(2):
                o.append(f"ds_read_b64_tr_b16 {vr(BUF[b]+16+j*4+hh*2,2)}, v{VB} offset:{sub*32*288+hh*8*288+j*32}")
        return o
    def mf1(b, seq, zero):
        return [f"v_mfma_f32_16x16x32_bf16 {vr(acc(i,j) if i < 4 else CS+4*j,4)}, {vr(BUF[b]+i*4 if i < 4 else ONE,4)}, {vr(BUF[b]+16+j*4,4)}, "
                f"{'0' if zero else vr(acc(i,j) if i < 4 else CS+4*j,4)}" for j, i in seq]
    def half1(b, other, zero):
        for x in interleave(mf1(b, snake(4, 5), zero), other): k(x)
        Ls = k.lab("sk")
        k(f"s_cbranch_vccz {Ls}")
        for x in mf1(b, [(4, i) for i in range(5)], zero): k(x)
        k.label(Ls)
    tag = lambda: k(f"v_mov_b32 v{ONE-1}, {HSC}\nds_read_b32 v{ONE-1}, v{ONE-1}\ns_waitcnt lgkmcnt(0)\nv_readfirstlane_b32 s101, v{ONE-1}")
    lp = loop4(k, 9, reads1, half1, adv_ins(R, [VA0, VA1, VB]), st, vm_first=True)
    assert lp == 0
    k("s_barrier")
    k(f"""
    v_mbcnt_lo_u32_b32 v{VB}, -1, 0
    v_mbcnt_hi_u32_b32 v{VB}, -1, v{VB}  ; lane
    v_and_b32 v{VA0}, 48, v{VB}
    s_lshl_b32 s43, s41, 9
    s_add_u32 s43, s43, {RSC}
    v_add_u32 v{VA0}, s43, v{VA0}
    """)
    rs = [f"ds_read_b128 {vr(NM+4*i,4)}, v{VA0} offset:{i*128}" for i in range(4)] + [f"ds_read_b128 {vr(RR+4*i,4)}, v{VA0} offset:{i*128+64}" for i in range(4)]
    half1(0, rs + [f"v_mov_b32 v{r}, 0" for r in range(SM, SM + 12)], False)
    half1(1, [f"v_mov_b32 v{r}, 0" for r in range(SM + 12, SM + 32)], False)
    gelu_consts(k, C)
    k(f"v_mov_b32 v6, {HSC}\nds_read_b32 v6, v6\ns_waitcnt lgkmcnt(0)\nv_readfirstlane_b32 s101, v6")
    VLN = VB
    n = 0
    for jj in range(5):
        if jj == 4:
            Ls = k.lab("us"); k(f"s_cbranch_vccz {Ls}")
        for P in range(2):
            a, b = acc(2 * P, jj), acc(2 * P + 1, jj)
            for x, q in enumerate([a, a + 2, b, b + 2]): k(f"v_pk_fma_f32 {vr(q,2)}, {vr(NM+8*P+2*x,2)}, {vr(CS+4*jj,2)}, {vr(q,2)}")
            for x, q in enumerate([a, a + 2, b, b + 2]): k(f"v_pk_mul_f32 {vr(q,2)}, {vr(q,2)}, {vr(RR+8*P+2*x,2)}")
            gelu(k, [a, a + 2, b, b + 2], T, C)
            o = O + (n & 1) * 4; n += 1
            for x, q in enumerate([a, a + 2, b, b + 2]): k(f"v_cvt_pk_bf16_f32 v{o+x}, v{q}, v{q+1}")
            k(f"ds_write_b128 v{VL16}, {vr(o,4)} offset:{(P*9+jj)*1024}")
            for e, q in enumerate([a, b]):
                i = 2 * P + e
                for h in range(2):
                    k(f"v_pk_add_f32 {vr(SM+4*i+2*h,2)}, {vr(SM+4*i+2*h,2)}, {vr(q+2*h,2)}")
                    k(f"v_pk_fma_f32 {vr(SM+16+4*i+2*h,2)}, {vr(q+2*h,2)}, {vr(q+2*h,2)}, {vr(SM+16+4*i+2*h,2)}")
    k.label(Ls)
    for m in range(1, 4):
        v = 0x11111111 << m
        k(f"s_mov_b32 s{58+2*m}, {v:#x}\ns_mov_b32 s{59+2*m}, {v:#x}")
    val = lambda P, i: SM + (i & 1) * 16 + (2 * P + (i >> 3)) * 4 + ((i >> 1) & 3)
    sets = [[val(P, i) for i in range(16)] for P in range(2)]
    reduce16(k, sets, 60)
    k(f"""
    s_lshl_b32 s46, s40, 9
    s_add_u32 s46, s46, {2*SZ+36864}
    v_lshlrev_b32 v{T+1}, 2, v{VLN}
    v_add_u32 v{T+1}, s46, v{T+1}
    ds_write_b32 v{T+1}, v{sets[0][0]}
    ds_write_b32 v{T+1}, v{sets[1][0]} offset:256
    v_mov_b32 v0, v{VLN}
    v_lshlrev_b32 v1, 4, v0
    """)
    Lq, Ld = k.lab("cq"), k.lab("cd")
    ZA, ZB, ZL16, ZL8 = 248, 249, 250, 251
    QA, QBE, QBO, QW = 248, 249, 250, 251
    k(f"s_cmp_lg_u32 s32, 0\ns_cbranch_scc1 {Lq}")
    k(f"""
    v_mov_b32 v{ZL16}, v1
    v_lshrrev_b32 v2, 5, v0
    v_lshlrev_b32 v2, 8, v2
    v_and_b32 v3, 15, v0
    v_lshl_add_u32 v2, v3, 4, v2
    v_bfe_u32 v3, v0, 4, 1
    v_lshl_add_u32 v{ZL8}, v3, 3, v2
    s_lshl_b32 s50, s40, 13
    v_add_u32 v{ZA}, s50, v1
    """)
    tr_lane_base(k, ZB, 288, 2)
    k(f"v_add_u32 v{ZB}, {BOZ}, v{ZB}")
    k(f"s_branch {Ld}")
    k.label(Lq)
    k(f"s_mul_i32 s50, s41, 10240\nv_add_u32 v{QA}, s50, v1")
    tr_lane_base(k, QBE, 448, 2)
    k(f"""
    s_mul_i32 s50, s42, 224
    s_add_u32 s50, s50, {BOQ}
    v_add_u32 v{QBE}, s50, v{QBE}
    v_lshlrev_b32 v2, 5, v2
    v_sub_u32 v3, 0, v2
    v_cndmask_b32 v4, v3, v2, vcc
    v_sub_u32 v{QBO}, v{QBE}, v4
    v_add_u32 v{QBE}, v{QBE}, v4
    v_and_b32 v2, 15, v0
    s_mul_i32 s50, s41, 80
    v_add_u32 v2, s50, v2
    v_mul_u32_u24 v{QW}, 440, v2
    v_lshrrev_b32 v2, 4, v0
    v_lshl_add_u32 v{QW}, v2, 3, v{QW}
    s_mul_i32 s50, s42, 224
    s_add_u32 s50, s50, {ATT}
    v_add_u32 v{QW}, s50, v{QW}
    """)
    k.label(Ld)
    k("s_waitcnt vmcnt(0) lgkmcnt(0)")
    st()
    k(f"s_cmp_lg_u32 s32, 0\ns_cbranch_scc1 {L['C2q']}")
    ACZ, BZ = 104, [0, 52]
    acz = lambda i, j: ACZ + (i * 9 + j) * 4
    def readsz(sub, b):
        o = [f"ds_read_b128 {vr(BZ[b]+i*4,4)}, v{ZA} offset:{i*2048+sub*1024}" for i in range(4)]
        for j in range(9):
            for hh in range(2):
                o.append(f"ds_read_b64_tr_b16 {vr(BZ[b]+16+j*4+hh*2,2)}, v{ZB} offset:{sub*32*288+hh*8*288+j*32}")
        return o
    def halfz(b, other, zero):
        mf = [f"v_mfma_f32_16x16x32_bf16 {vr(acz(i,j),4)}, {vr(BZ[b]+16+j*4,4)}, {vr(BZ[b]+i*4,4)}, {'0' if zero else vr(acz(i,j),4)}"
              for i, j in snake(4, 9)]
        for x in interleave(mf, other): k(x)
    loop2(readsz, halfz, adv_ins(R, [ZA, ZB]), True)
    halfz(1, [], False)
    C, T, O = 0, 8, 16
    gelu_consts(k, C)
    k(f"""
    s_lshl_b32 s46, s38, 4
    s_lshl_b32 s47, s40, 2
    s_add_u32 s46, s46, s47          ; tfrag0
    s_mul_i32 s46, s46, {TFS}
    s_lshr_b32 s47, s39, 1
    s_mul_i32 s47, s47, 9216
    s_add_u32 s46, s46, s47
    s_and_b32 s47, s39, 1
    s_lshl_b32 s48, s47, 9
    s_add_u32 s48, s48, s46
    s_add_u32 s48, s48, {(18+8)*1024}
    s_lshl_b32 s47, s47, 12
    s_add_u32 s46, s46, s47
    s_add_u32 s46, s46, {18*1024}
    """)
    n = 0
    for i in range(4):
        for p in range(4):
            a, b = acz(i, 2 * p), acz(i, 2 * p + 1)
            gelu(k, [a, a + 2, b, b + 2], T, C)
            o = O + (n & 1) * 4; n += 1
            for x, q in enumerate([a, a + 2, b, b + 2]): k(f"v_cvt_pk_bf16_f32 v{o+x}, v{q}, v{q+1}")
            k(f"buffer_store_dwordx4 {vr(o,4)}, v{ZL16}, s[16:19], s46 offen offset:{p*1024} sc1")
        if i < 3: k(f"s_add_u32 s46, s46, {TFS}\ns_add_u32 s{49+i}, s{48+i}, {TFS}")
    for i in (0, 2):
        a, b = acz(i, 8), acz(i + 1, 8)
        gelu(k, [a, a + 2, b, b + 2], T, C)
        o = O + (n & 1) * 4; n += 1
        for x, q in enumerate([a, a + 2, b, b + 2]): k(f"v_cvt_pk_bf16_f32 v{o+x}, v{q}, v{q+1}")
        k(f"buffer_store_dwordx2 {vr(o,2)}, v{ZL8}, s[16:19], s{48+i} offen sc1")
        k(f"buffer_store_dwordx2 {vr(o+2,2)}, v{ZL8}, s[16:19], s{49+i} offen sc1")
    if stamps and not fused:
        st(); k("s_waitcnt vmcnt(0)"); st()
    k(f"s_branch {L['g2C']}" if fused else "s_endpgm")
    k.label(L["D"])
    if OPT.get("pd", 3): k(f"s_setprio {OPT.get('pd', 3)}")
    k(f"""
    s_add_u32 s47, s41, {BO1}        ; B lds
    s_lshl_b32 s48, s40, 9
    s_add_u32 s48, s48, {BO1+16384}
    s_mov_b32 s49, {2*SZ}
    """)
    def setup2():
        srd(k, 72, 64, 0, 576 * 3456)
        for r in range(110, 117): k(f"v_mov_b32 v{r}, 0x80000000")
        srd(k, 16, 4, A3_OFF, A3_SZ)
        srd(k, 20, 4, ST_OFF, ST_SZ)
        srd(k, 24, 66, 0, 2048 * 4096)
        srd(k, 80, 4, Z2T_OFF, Z2T_SZ)
        srd(k, 84, 4, FLG_OFF, FLG_SZ)
        Lq, Ld = k.lab("dq"), k.lab("dd")
        k(f"""
        s_cmp_lg_u32 s32, 0
        s_cbranch_scc1 {Lq}
        s_lshl_b32 s63, s40, 13          ; A lds
        s_lshl_b32 s60, s38, 15
        s_add_u32 s60, s60, s63          ; A goff
        s_mul_i32 s61, s39, 288          ; B goff
        s_add_u32 s88, s41, {BOZ}
        s_lshl_b32 s89, s40, 9
        s_add_u32 s89, s89, {BOZ+16384}
        s_mov_b32 s62, 0
        s_branch {Ld}
        {Lq}:
        s_lshl_b32 s60, s38, 14
        s_lshl_b32 s89, s40, 9
        s_sub_u32 s62, s60, 2048
        s_cmp_eq_u32 s38, 0
        s_cselect_b32 s62, 0, s62
        s_add_u32 s62, s62, s89
        s_add_u32 s60, s60, s41          ; A goff
        s_add_u32 s63, s41, 2048
        s_mul_i32 s61, s39, 144
        s_mul_i32 s88, s40, 7168
        s_add_u32 s88, s88, {BOQ}
        s_mul_i32 s51, s40, 448
        """)
        for n in range(7):
            qkv_voff(k, 110 + n, 51)
            k("s_add_u32 s51, s51, 64")
        k.label(Ld)
        k(f"""
        v_lshlrev_b32 v28, 7, v0
        s_lshl_b32 s44, s2, 2
        s_add_u32 s44, s44, s40
        s_lshl_b32 s44, s44, 13
        v_lshlrev_b32 v29, 2, v0
        v_lshrrev_b32 v30, 4, v0
        v_lshlrev_b32 v30, 5, v30
        s_lshl_b32 s45, s36, 10
        s_lshl_b32 s50, s40, 8
        s_add_u32 s45, s45, s50
        s_mul_i32 s50, s40, {9*1024}
        s_add_u32 s50, s50, {2*SZ}
        v_add_u32 v31, s50, v1
        s_lshl_b32 s46, s36, 1
        s_lshr_b32 s50, s40, 1
        s_add_u32 s46, s46, s50
        s_mul_i32 s46, s46, 144
        s_mul_i32 s50, s37, 9
        s_add_u32 s46, s46, s50
        s_lshl_b32 s46, s46, 11
        s_and_b32 s50, s40, 1
        s_lshl_b32 s50, s50, 10
        s_add_u32 s46, s46, s50          ; Z2T offset
        s_lshl_b32 s53, s36, 8           ; F1 row
        s_lshl_b32 s50, s40, 9
        s_add_u32 s50, s50, {2*SZ+36864}
        v_add_u32 v35, s50, v29
        v_bfe_u32 v27, v0, 3, 1
        v_lshlrev_b32 v27, 5, v27
        v_lshrrev_b32 v2, 4, v0
        v_lshl_add_u32 v27, v2, 3, v27
        v_and_b32 v2, 7, v0
        v_add_lshl_u32 v27, v27, v2, 2
        s_lshl_b32 s55, s36, 10
        s_and_b32 s50, s40, 1
        s_lshl_b32 s50, s50, 9
        s_add_u32 s55, s55, s50
        """)
    setup2()
    k("s_waitcnt vmcnt(9) lgkmcnt(0)")
    k("s_barrier")
    st(250)
    k(f"s_load_dwordx2 s[56:57], s[0:1], {KA['dbg']}\ns_waitcnt lgkmcnt(0)")
    srd(k, 28, 56, 0, 256)
    k("v_mov_b32 v34, 0")
    ldn = lambda: k("buffer_load_dword v33, v34, s[28:31], 0 offen sc1")
    Lt = k.lab("tg")
    k(f"s_cmp_lg_u32 s40, 2\ns_cbranch_scc1 {Lt}")
    ldn()
    k.label(Lt)
    issue1()
    def ploop(n, iss, allowed):
        Lp = k.lab("pl")
        k(f"s_mov_b32 s58, {n}")
        k.label(Lp)
        k(f"s_waitcnt vmcnt({allowed})")
        k("s_barrier")
        iss()
        k(f"s_sub_u32 s58, s58, 1\ns_cmp_lg_u32 s58, 0\ns_cbranch_scc1 {Lp}")
    k("s_waitcnt vmcnt(9)")
    Lt = k.lab("tg")
    k(f"s_cmp_lg_u32 s40, 2\ns_cbranch_scc1 {Lt}")
    spin(k, ldn, lambda: k("v_cmp_eq_u32 vcc, 0, v33"))
    k(f"v_readfirstlane_b32 s101, v33\nv_mov_b32 v34, {HSC}\nds_write_b32 v34, v33\ns_waitcnt lgkmcnt(0)")
    k.label(Lt)
    k("s_barrier")
    issue1()
    k(f"v_mov_b32 v33, {HSC}\nds_read_b32 v33, v33\ns_waitcnt vmcnt(9) lgkmcnt(0)\nv_readfirstlane_b32 s101, v33")
    k("s_barrier")
    Lnb = k.lab("nb")
    k(f"""
    s_xor_b32 s50, s32, 1
    s_or_b32 s50, s50, s40
    s_cmp_lg_u32 s50, 0
    s_cbranch_scc1 {Lnb}
    v_mov_b32 v33, s101
    s_lshl_b32 s50, s3, 7
    s_add_u32 s50, s50, {F0}
    s_mov_b32 exec_hi, 0
    buffer_store_dword v33, v29, s[84:87], s50 offen sc1
    s_mov_b32 exec_hi, -1
    """)
    k.label(Lnb)
    issue1()
    ploop(4, issue1, 9)
    def issue2():
        Lq, Ld = k.lab("iq"), k.lab("id")
        k(f"s_cmp_lg_u32 s32, 0\ns_cbranch_scc1 {Lq}")
        lin_dma(k, 8, 8, 60, 63, 49, mods=XS); gat_dma(k, 4, 12, 61, 88, 49, 100); half_dma(12, 104, 61, 89)
        k(f"s_add_u32 s61, s61, {64*9216}\ns_branch {Ld}")
        k.label(Lq)
        lin_dma(k, 4, 8, 60, 63, 49, mods=XS); half_dma(8, 1, 62, 89, XS); gat_dma(k, 7, 72, 61, 88, 49, 110)
        k(f"s_add_u32 s62, s62, {128*2048}\ns_add_u32 s61, s61, {64*3456}")
        k.label(Ld)
        k(f"s_add_u32 s60, s60, {128*2048}")
        slot_adv_prod(k, R, SZ, 49)
    N2 = 12
    if single:
        k(f"""
        s_lshl_b32 s54, s38, 3
        s_lshl_b32 s50, s38, 4
        s_cmp_eq_u32 s32, 0
        s_cselect_b32 s54, s50, s54
        s_max_u32 s54, s54, 1
        s_min_u32 s54, s54, 112
        s_lshl_b32 s54, s54, 7
        s_add_u32 s54, s54, {F0 - 128}
        """)
        k(f"""
        s_movk_i32 s56, {F5}
        v_lshlrev_b32 v20, 3, v0
        s_lshl_b32 s50, s36, 10
        s_add_u32 s50, s50, {F0 - 17*128}
        v_cmp_gt_u32 vcc, 17, v0
        v_mov_b32 v24, s50
        v_mov_b32 v25, s54
        v_cndmask_b32 v24, v24, v25, vcc
        v_add_u32 v24, v24, v28
        """)
        def ldb():
            k("s_mov_b64 exec, 0x1ffffff\nbuffer_load_dword v33, v24, s[84:87], 0 offen sc1\ns_mov_b64 exec, -1")
        k("v_mov_b32 v33, s101")
        ldb()
    k("s_waitcnt vmcnt(10)")
    k("s_barrier")
    k("s_waitcnt vmcnt(0)")
    spin(k, ldb, lambda: k("v_cmp_ne_u32 vcc, s101, v33"))
    srd(k, 28, 4, RS_OFF, RS_SZ)
    k(f"s_lshl_b32 s50, s36, 10\ns_mov_b32 m0, {RSC}\nbuffer_load_dwordx4 v1, s[28:31], s50 offen sc1 lds")
    issue2()
    k(f"s_waitcnt vmcnt({N2})")
    k("s_barrier")
    issue2()
    k("s_barrier")
    k("buffer_load_dword v32, v28, s[24:27], s44 offen")
    Lx = k.lab("xw")
    k(f"""
    s_load_dwordx2 s[28:29], s[0:1], {KA['wo']}
    s_load_dwordx2 s[30:31], s[0:1], {KA['w_out']}
    s_load_dwordx2 s[56:57], s[0:1], {KA['b_sp']}
    s_and_b32 s50, s34, 3
    s_lshl_b32 s50, s50, 3
    s_and_b32 s51, s35, 7
    s_add_u32 s50, s50, s51          ; mt3
    s_mul_i32 s50, s50, {64*1152}
    s_lshr_b32 s51, s34, 2
    s_lshl_b32 s51, s51, 2
    s_lshr_b32 s54, s35, 3
    s_add_u32 s51, s51, s54          ; nt3
    s_mul_i32 s51, s51, 144
    s_add_u32 s54, s50, s51
    s_mov_b32 s76, s68
    s_mov_b32 s77, s69
    s_mov_b32 s78, {2048*1152}
    s_mov_b32 s79, 0x20000
    s_lshl_b32 s51, s40, 6
    s_lshl_b32 s50, s40, 10
    s_add_u32 m0, s50, {XSC}
    """)
    for n in range(3):
        if n == 2: k(f"s_cmp_lg_u32 s40, 0\ns_cbranch_scc1 {Lx}")
        k(f"""
        v_add_u32 v2, s51, v0
        v_mul_u32_u24 v3, 3641, v2
        v_lshrrev_b32 v3, 15, v3         ; id/9
        v_mul_u32_u24 v3, {1152-144}, v3
        v_lshl_add_u32 v2, v2, 4, v3
        buffer_load_dwordx4 v2, s[76:79], s54 offen lds
        s_add_u32 s51, s51, 256
        s_add_u32 m0, m0, 4096
        """)
    k(f"""
    s_waitcnt lgkmcnt(0)
    s_mov_b32 s76, s56
    s_mov_b32 s77, s57
    s_mov_b32 s78, 4096
    s_mov_b32 s79, 0x20000
    s_lshl_b32 s50, s36, 8
    s_mov_b32 m0, {BSC}
    s_mov_b64 exec, 0xffff
    buffer_load_dwordx4 v1, s[76:79], s50 offen lds
    s_mov_b64 exec, -1
    {Lx}:
    s_lshr_b32 s50, s44, 13
    s_sub_u32 s51, s50, 81
    s_waitcnt lgkmcnt(0)
    s_cmp_lt_u32 s50, 81
    s_cselect_b32 s24, s28, s30
    s_cselect_b32 s25, s29, s31
    s_cselect_b32 s50, s50, s51
    s_mov_b32 s26, {2304*1152}
    s_cselect_b32 s26, {576*1152}, s26
    s_mov_b32 s27, 0x20000
    s_lshl_b32 s50, s50, 13
    buffer_load_dword v240, v28, s[24:27], s50 offen
    """)
    NX = 4
    k(f"s_waitcnt vmcnt({N2+NX})")
    k("s_barrier")
    Z = 64
    for j in range(9): k(f"ds_read_b128 {vr(Z+4*j,4)}, v31 offset:{j*1024}")
    k(f"""
    ds_read_b32 v34, v35
    ds_read_b32 v33, v35 offset:256
    s_waitcnt lgkmcnt(0)
    s_barrier
    buffer_atomic_add_f32 v34, v27, s[20:23], s55 offen
    buffer_atomic_add_f32 v33, v27, s[20:23], s55 offen offset:256
    """)
    issue2()
    k(f"s_waitcnt vmcnt({N2+2+NX})")
    k("s_barrier")
    issue2()
    k(f"s_waitcnt vmcnt({N2})")
    set_flag(k, f"s_lshl_b32 s50, s37, 4\ns_add_u32 s50, s50, s53\ns_lshl_b32 s51, s40, 2\ns_add_u32 s50, s50, s51", 33)
    k("s_barrier")
    issue2()
    PB = OPT.get("pb", 13)
    if PB > 12: ploop(PB - 12, issue2, N2)
    ld1 = lambda: k("buffer_load_dword v33, v29, s[84:87], s53 offen sc1")
    ld1()
    k(f"s_waitcnt vmcnt({N2+1})")
    k("s_barrier")
    issue2()
    k(f"s_waitcnt vmcnt({N2})")
    spin(k, ld1, lambda: k("v_cmp_ne_u32 vcc, s101, v33"))
    for i in range(4): k(f"buffer_load_dwordx4 {vr(36+4*i,4)}, v30, s[20:23], s45 offen offset:{(i>>1)*128+(i&1)*16} sc1")
    k("s_barrier")
    st(250)
    vm = [("L%d" % (PB + 2), N2), ("s", 4)]
    def allowed(tag):
        n = 0
        for t, c in reversed(vm):
            if t == tag: return n
            n += c
        raise KeyError(tag)
    def rcalc():
        k(f"s_waitcnt vmcnt({allowed('s')})")
        inv = f2u(1.0 / 2304)
        for i in range(8): k(f"v_mul_f32 v{36+2*i}, {inv:#x}, v{36+2*i}")
        for i in range(8): k(f"v_mul_f32 v{37+2*i}, {inv:#x}, v{37+2*i}")
        for i in range(8): k(f"v_fma_f32 v{37+2*i}, -v{36+2*i}, v{36+2*i}, v{37+2*i}")
        for i in range(8): k(f"v_max_f32 v{37+2*i}, 0, v{37+2*i}")
        def rnd8(o):
            for i in range(4): k(f"v_cvt_pk_bf16_f32 v{52+i}, v{o+4*i}, v{o+2+4*i}")
            for i in range(4):
                k(f"v_lshlrev_b32 v{o+4*i}, 16, v{52+i}")
                k(f"v_and_b32 v{o+2+4*i}, 0xffff0000, v{52+i}")
        rnd8(36); rnd8(37)
        for i in range(8): k(f"v_add_f32 v{37+2*i}, {f2u(1e-5):#x}, v{37+2*i}")
        rnd8(37)
        for i in range(8): k(f"v_sqrt_f32 v{37+2*i}, v{37+2*i}")
        rnd8(37)
        for i in range(8): k(f"v_rcp_f32 v{37+2*i}, v{37+2*i}")
        for i in range(8): k(f"v_mul_f32 v{36+2*i}, v{36+2*i}, v{37+2*i}")
    def unit(j):
        w, t = Z + 4 * j, 56
        for i in range(4):
            k(f"v_lshlrev_b32 v{t+2*i}, 16, v{w+i}")
            k(f"v_and_b32 v{t+2*i+1}, 0xffff0000, v{w+i}")
        for i in range(8): k(f"v_fma_f32 v{t+i}, v{t+i}, v{37+2*i}, -v{36+2*i}")
        for i in range(4): k(f"v_cvt_pk_bf16_f32 v{w+i}, v{t+2*i}, v{t+2*i+1}")
        k(f"v_permlane32_swap_b32 v{w}, v{w+2}")
        k(f"v_permlane32_swap_b32 v{w+1}, v{w+3}")
        k(f"v_permlane16_swap_b32 v{w}, v{w+2}")
        k(f"v_permlane16_swap_b32 v{w+1}, v{w+3}")
        if j and j % 2 == 0: k("s_add_u32 s46, s46, 4096")
        k(f"buffer_store_dwordx4 {vr(w,4)}, v1, s[80:83], s46 offen offset:{(j&1)*2048} sc1")
        vm.append(("z", 1))
    work = [rcalc] + [(lambda j=j: unit(j)) for j in range(9)]
    split = {13: [[0, 1, 2], [3, 4, 5], [6, 7, 8, 9]], 12: [[0, 1], [2, 3, 4], [5, 6], [7, 8, 9]], 11: [[0], [1, 2], [3, 4], [5, 6], [7, 8, 9]]}[PB]
    for n, b in enumerate(range(PB + 1, 17)):
        if b + 2 <= 17:
            issue2(); vm.append((f"L{b+2}", N2))
        for w_ in split[n]: work[w_]()
        k(f"s_waitcnt vmcnt({allowed(f'L{b+1}')})")
        k("s_barrier")
    st(250)
    if fused:
        k("s_waitcnt vmcnt(0)")
        set_flag(k, f"s_lshl_b32 s50, s37, 8\ns_lshl_b32 s51, s36, 4\ns_add_u32 s50, s50, s51\ns_lshl_b32 s51, s40, 2\ns_add_u32 s50, s50, s51\ns_add_u32 s50, s50, {F2}", 33)
    Lha = k.lab("ha")
    k(f"s_cmp_lg_u32 s32, 0\ns_cbranch_scc1 {Lha}")
    k(f"s_branch {L['g2D']}" if fused else "s_endpgm")
    k.label(Lha)
    k("s_setprio 0")
    k("s_barrier")
    k(f"s_branch {L['att']}")
    k.label(L["C2q"])
    ACQ, BQ = 104, [0, 48]
    acq = lambda i, j: ACQ + (i * 7 + j) * 4
    def readsq(sub, b):
        o = [f"ds_read_b128 {vr(BQ[b]+i*4,4)}, v{QA} offset:{i*2048+sub*1024}" for i in range(5)]
        for j in range(7):
            for hh in range(2):
                o.append(f"ds_read_b64_tr_b16 {vr(BQ[b]+20+j*4+hh*2,2)}, v{QBO if j & 1 else QBE} offset:{sub*32*448+hh*8*448+j*32}")
        return o
    def mfq(b, seq, zero):
        return [f"v_mfma_f32_16x16x32_bf16 {vr(acq(i,j),4)}, {vr(BQ[b]+20+j*4,4)}, {vr(BQ[b]+i*4,4)}, {'0' if zero else vr(acq(i,j),4)}"
                for i, j in seq]
    def halfq(b, other, zero):
        for x in interleave(mfq(b, snake(4, 7), zero), other): k(x)
        Ls = k.lab("sk")
        k(f"s_cbranch_vccz {Ls}")
        for x in mfq(b, [(4, j) for j in range(7)], zero): k(x)
        k.label(Ls)
    k("s_cmp_eq_u32 s41, 0\ns_cselect_b64 vcc, -1, 0")
    loop2(readsq, halfq, adv_ins(R, [QA, QBE, QBO]), True)
    k("s_barrier")
    def wq(i, j, n):
        a = acq(i, j); o = (n & 3) * 2
        return [f"v_cvt_pk_bf16_f32 v{o}, v{a}, v{a+1}", f"v_cvt_pk_bf16_f32 v{o+1}, v{a+2}, v{a+3}",
                f"ds_write_b64 v{QW}, {vr(o,2)} offset:{i*16*440+j*32}"]
    n = 0
    Ls = k.lab("sk")
    k(f"s_cbranch_vccz {Ls}")
    for x in mfq(1, [(4, j) for j in range(7)], False): k(x)
    k.label(Ls)
    for i in range(5):
        mf = mfq(1, [(i, j) for j in range(7)], False) if i < 4 else []
        for j in range(7):
            if mf: k(mf[j])
            if i > 0 and j < 6:
                for x in wq(i - 1, j, n): k(x)
                n += 1
    Ls = k.lab("sk")
    k(f"s_cbranch_vccz {Ls}")
    for j in range(6):
        for x in wq(4, j, n): k(x)
        n += 1
    k("s_mov_b32 exec_hi, s54")
    for x in wq(4, 6, n): k(x)
    n += 1
    k.label(Ls)
    k("s_mov_b32 exec_hi, s54")
    for i in range(4):
        for x in wq(i, 6, n): k(x)
        n += 1
    k("s_mov_b32 exec_hi, -1")
    k("s_waitcnt lgkmcnt(0)")
    k("v_mbcnt_lo_u32_b32 v0, -1, 0")
    k("v_mbcnt_hi_u32_b32 v0, -1, v0")
    k.label(L["att"])
    k(f"""
    s_and_b32 s55, s33, 3            ; head
    s_lshr_b32 s41, s33, 2
    s_and_b32 s42, s55, 1
    s_lshl_b32 s43, s41, 6
    s_add_u32 s44, s43, 2
    v_add_u32 v2, s44, v0
    v_mul_u32_u24 v2, 440, v2
    s_mul_i32 s44, s55, 36
    s_add_u32 s44, s44, {ATT}
    s_lshl_b32 s45, s42, 2
    s_add_u32 s45, s45, s44
    v_add_u32 v3, s45, v2
    s_xor_b32 s45, s42, 1
    s_lshl_b32 s45, s45, 5
    s_add_u32 s45, s45, s44
    v_add_u32 v2, s45, v2
    s_lshl_b32 s46, s38, 7
    s_add_u32 s46, s46, s43
    v_add_u32 v4, s46, v0            ; t
    s_mov_b32 s21, 0x05040100
    s_mov_b32 s22, 0x07060302
    v_and_b32 v11, 15, v0
    v_lshrrev_b32 v12, 4, v0
    s_lshl_b32 s46, s33, 4
    s_add_u32 s46, s46, 16
    v_add_u32 v13, s46, v11
    v_mul_u32_u24 v13, 440, v13
    v_lshl_add_u32 v13, v12, 4, v13
    v_add_u32 v13, {ATT}, v13
    s_mul_i32 s46, s39, 9
    v_add_u32 v12, s46, v12
    v_lshlrev_b32 v12, 8, v12
    v_lshl_add_u32 v12, v11, 4, v12
    s_lshl_b32 s46, s38, 3
    s_add_u32 s46, s46, s33
    s_mul_i32 s20, s46, {TFS}
    """)
    Lc = k.lab("ac")
    k(f"s_cmp_lt_u32 s33, 4\ns_cbranch_scc1 {Lc}")
    G["setup"]()
    k.label(Lc)
    k("s_barrier")
    st(20)
    Q, KK, VV, LL, PP, OA = 24, 36, 116, 200, 210, 216
    def rdvec(dst, row, part):
        for h in range(4): k(f"ds_read_b64 {vr(dst+2*h,2)}, v3 offset:{row*440+part*144+8*h}")
        k(f"ds_read_b32 v{dst+8}, v2 offset:{row*440+part*144}")
    vecs = [(Q, 14, 0)] + [(KK + 10 * w, 14 - 2 * w, 1) for w in range(8)] + [(VV + 10 * w, 14 - 2 * w, 2) for w in range(8)]
    for v in vecs[:4]: rdvec(*v)
    nxt = 4
    for w in range(8): k(f"v_mov_b32 v{LL+w}, 0")
    for w in range(8):
        k("s_waitcnt lgkmcnt(10)")
        for i in range(9): k(f"v_dot2c_f32_bf16 v{LL+w}, v{Q+i}, v{KK+10*w+i}")
        rdvec(*vecs[nxt]); nxt += 1
    while nxt < len(vecs):
        rdvec(*vecs[nxt]); nxt += 1
    if OPT.get("ast", 0): st(20)
    sc = f2u(18.0 ** -0.5)
    def rndL():
        for i in range(4): k(f"v_cvt_pk_bf16_f32 v{PP+i}, v{LL+2*i}, v{LL+2*i+1}")
        for i in range(4):
            k(f"v_lshlrev_b32 v{LL+2*i}, 16, v{PP+i}")
            k(f"v_and_b32 v{LL+2*i+1}, 0xffff0000, v{PP+i}")
    rndL()
    for w in range(8): k(f"v_mul_f32 v{LL+w}, {sc:#x}, v{LL+w}")
    rndL()
    k(f"v_mov_b32 v6, {f2u(-1e9):#x}")
    for w in range(1, 8):
        k(f"v_cmp_le_u32 s[{24+2*(w&1)}:{25+2*(w&1)}], {2*w}, v4")
        if w > 1: k(f"v_cndmask_b32 v{LL+w-1}, v6, v{LL+w-1}, s[{24+2*((w-1)&1)}:{25+2*((w-1)&1)}]")
    k(f"v_cndmask_b32 v{LL+7}, v6, v{LL+7}, s[26:27]")
    k(f"v_max3_f32 v7, v{LL}, v{LL+1}, v{LL+2}")
    k(f"v_max3_f32 v8, v{LL+3}, v{LL+4}, v{LL+5}")
    k(f"v_max3_f32 v7, v7, v{LL+6}, v{LL+7}")
    k(f"v_max_f32 v7, v7, v8")
    l2e = f2u(math.log2(math.e))
    for w in range(8): k(f"v_sub_f32 v{LL+w}, v{LL+w}, v7")
    for w in range(8): k(f"v_mul_f32 v{LL+w}, {l2e:#x}, v{LL+w}")
    for w in range(8): k(f"v_exp_f32 v{LL+w}, v{LL+w}")
    k(f"v_add_f32 v7, v{LL}, v{LL+1}")
    k(f"v_add_f32 v8, v{LL+2}, v{LL+3}")
    k(f"v_add_f32 v9, v{LL+4}, v{LL+5}")
    k(f"v_add_f32 v10, v{LL+6}, v{LL+7}")
    k("v_add_f32 v7, v7, v8\nv_add_f32 v9, v9, v10\nv_add_f32 v7, v7, v9\nv_rcp_f32 v7, v7")
    for w in range(8): k(f"v_mul_f32 v{LL+w}, v{LL+w}, v7")
    for i in range(4): k(f"v_cvt_pk_bf16_f32 v{PP+i}, v{LL+2*i}, v{LL+2*i+1}")
    if OPT.get("ast", 0): st(20)
    Lc = k.lab("ac")
    k(f"s_cmp_lt_u32 s33, 4\ns_cbranch_scc1 {Lc}")
    k(f"s_waitcnt vmcnt(0)\nv_cmp_ne_u32 vcc, s101, v248\ns_cbranch_vccnz {Lc}")
    G["B01"]()
    k.label(Lc)
    for i in range(18): k(f"v_mov_b32 v{OA+i}, 0")
    k("s_waitcnt lgkmcnt(0)")
    for wp in range(4):
        x, y = VV + 20 * wp, VV + 20 * wp + 10
        for i in range(9):
            k(f"v_perm_b32 v{KK+2*i}, v{y+i}, v{x+i}, s21")
            k(f"v_perm_b32 v{KK+2*i+1}, v{y+i}, v{x+i}, s22")
        for i in range(18): k(f"v_dot2c_f32_bf16 v{OA+i}, v{KK+i}, v{PP+wp}")
    for i in range(9): k(f"v_cvt_pk_bf16_f32 v{Q+i}, v{OA+2*i}, v{OA+2*i+1}")
    if OPT.get("ast", 0): st(20)
    for h in range(4): k(f"ds_write_b64 v3, {vr(Q+2*h,2)} offset:{14*440+8*h}")
    k(f"ds_write_b32 v2, v{Q+8} offset:{14*440}")
    k("s_waitcnt lgkmcnt(0)")
    k("s_barrier")
    if OPT.get("ast", 0): st(20)
    for n in range(3):
        k(f"ds_read_b64 {vr(KK+4*n,2)}, v13 offset:{64*n}")
        k(f"ds_read_b64 {vr(KK+4*n+2,2)}, v13 offset:{64*n+8}")
    for n in range(3):
        k(f"s_waitcnt lgkmcnt({4-2*n})")
        if n == 2: k("s_mov_b64 exec, 0xffff")
        k(f"buffer_store_dwordx4 {vr(KK+4*n,4)}, v12, s[16:19], s20 offen offset:{1024*n} sc1")
    k("s_mov_b64 exec, -1")
    if stamps and not fused:
        st(20); k("s_waitcnt vmcnt(0)"); st(20)
    if fused: k(f"s_branch {L['g2X']}")
    else: k("s_endpgm")

def w3_unit(k):
    Ln, Lg = k.lab("nat"), k.lab("go")
    k(f"""
    s_mul_i32 s20, s3, 3
    s_add_u32 s20, s20, s40          ; unit
    s_cmp_lt_u32 s40, 3
    s_cselect_b32 s20, s20, 360
    s_lshr_b32 s21, s20, 2           ; step
    s_and_b32 s22, s20, 3
    s_lshl_b32 s22, s22, 1
    s_cmp_lt_u32 s21, 18
    s_cselect_b32 s24, s28, s30
    s_cselect_b32 s25, s29, s31
    s_mov_b32 s26, {2304*1152}
    s_cselect_b32 s26, {576*1152}, s26
    s_mov_b32 s27, 0x20000
    s_cbranch_scc1 {Ln}
    s_sub_u32 s50, s21, 18
    s_mul_i32 s55, s50, 57
    s_lshr_b32 s55, s55, 9           ; u
    s_mul_i32 s56, s55, 9
    s_sub_u32 s56, s50, s56          ; v
    s_mul_i32 s55, s55, 288
    s_lshr_b32 s57, s56, 2
    s_mul_i32 s57, s57, 144
    s_and_b32 s50, s56, 3
    s_lshl_b32 s50, s50, 5
    s_add_u32 s57, s57, s50
    s_cmp_eq_u32 s56, 8
    s_cselect_b32 s57, 128, s57
    s_cselect_b32 s28, 4, 16
    s_cselect_b32 s29, 8, 4
    s_cselect_b32 s30, 144, 8
    s_add_u32 s23, s55, s57
    s_branch {Lg}
    {Ln}:
    s_lshl_b32 s23, s21, 5
    s_mov_b32 s28, 4
    s_mov_b32 s29, 8
    s_mov_b32 s30, 16
    {Lg}:
    s_mul_i32 s23, s23, 1152
    s_mul_i32 s50, s22, 144
    s_add_u32 s23, s23, s50
    s_cmp_lt_u32 s20, 360
    s_cselect_b32 s23, s23, 0x7fffffff
    s_mul_i32 s31, s40, 9216
    s_add_u32 s31, s31, 69632
    s_mov_b32 m0, s31
    """)
    for n in range(9):
        k(f"""
        v_add_u32 v12, {n*64}, v0
        v_mul_u32_u24 v13, 3641, v12
        v_lshrrev_b32 v13, 16, v13       ; rho
        v_mul_u32_u24 v14, 18, v13
        v_sub_u32 v12, v12, v14          ; chunk
        v_bfe_u32 v15, v13, 2, 1
        v_mul_u32_u24 v15, s28, v15
        v_bfe_u32 v14, v13, 3, 1
        v_mad_u32_u24 v15, v14, s29, v15
        v_bfe_u32 v14, v13, 4, 1
        v_mad_u32_u24 v15, v14, s30, v15
        v_and_b32 v14, 3, v13
        v_add_u32 v15, v15, v14
        v_mul_u32_u24 v15, 1152, v15
        v_lshl_add_u32 v15, v12, 4, v15
        buffer_load_dwordx4 v15, s[24:27], s23 offen lds
        s_add_u32 m0, m0, 1024
        """)
    k(f"""
    v_lshrrev_b32 v12, 4, v0         ; g
    v_bfe_u32 v13, v0, 2, 2          ; r
    v_and_b32 v14, 3, v0             ; c4
    v_lshl_add_u32 v15, v12, 3, v13
    v_mul_u32_u24 v15, 288, v15
    v_lshl_add_u32 v15, v14, 3, v15
    v_add_u32 v15, s31, v15
    v_and_b32 v12, 1, v12
    v_lshrrev_b32 v16, 1, v14
    v_lshl_add_u32 v12, v12, 1, v16
    v_lshl_add_u32 v12, v12, 3, v13
    v_mul_u32_u24 v12, 288, v12
    v_and_b32 v14, 1, v14
    v_lshl_add_u32 v12, v14, 3, v12
    v_add_u32 v12, s31, v12
    s_lshr_b32 s55, s21, 1
    s_lshl_b32 s55, s55, 3
    s_add_u32 s55, s55, s22
    s_mul_i32 s55, s55, 9216
    s_and_b32 s56, s21, 1
    s_lshl_b32 s57, s56, 9
    s_add_u32 s57, s57, s55
    s_add_u32 s57, s57, 8192
    s_lshl_b32 s56, s56, 10
    s_add_u32 s55, s55, s56
    s_add_u32 s56, s55, 4096
    """)
    k("s_waitcnt vmcnt(0)")
    for e in range(2):
        for j in range(4):
            k(f"ds_read_b64_tr_b16 {vr(100+e*20+j*4,2)}, v15 offset:{e*144+j*32}")
            k(f"ds_read_b64_tr_b16 {vr(102+e*20+j*4,2)}, v15 offset:{e*144+j*32+1152}")
        k(f"ds_read_b64_tr_b16 {vr(116+e*20,2)}, v12 offset:{e*144+128}")
        k(f"ds_read_b64_tr_b16 {vr(118+e*20,2)}, v12 offset:{e*144+128+1152}")
    for e in range(2):
        k(f"s_waitcnt lgkmcnt({10 if e == 0 else 0})")
        for j in range(4):
            k(f"buffer_store_dwordx4 {vr(100+e*20+j*4,4)}, v1, s[68:71], s{55+(j>>1)} offen offset:{(j&1)*2048} sc1")
        k("s_mov_b32 exec_hi, 0")
        k(f"buffer_store_dwordx4 {vr(116+e*20,4)}, v1, s[68:71], s57 offen sc1")
        k("s_mov_b32 exec_hi, -1")
        if e == 0: k("s_add_u32 s55, s55, 9216\ns_add_u32 s56, s56, 9216\ns_add_u32 s57, s57, 9216")

S2, R2, SZ2, BO2 = 32, 3, 34816, 16384
ZS = 104448
S3, R3, SZ3, BO3, LA3, SL0 = 45, 6, 17408, 8192, 4, 4
PL, PF, PA = 244, 245, 246

def tiles(k):
    k("""
    s_and_b32 s38, s34, 3
    s_lshl_b32 s38, s38, 3
    s_and_b32 s39, s35, 7
    s_add_u32 s38, s38, s39
    s_lshr_b32 s39, s34, 2
    s_lshl_b32 s39, s39, 2
    s_lshr_b32 s50, s35, 3
    s_add_u32 s39, s39, s50          ; nt3
    """)

def g2_hooks(k):
    def issueA():
        k("s_add_u32 m0, s41, s49")
        for n in range(4):
            if n: k(f"s_add_u32 m0, m0, 1024\ns_add_u32 s50, s42, {n*32768}")
            k(f"buffer_load_dwordx4 v{PA+(n&1)}, s[8:11], s{50 if n else 42} offen lds")
        k("s_add_u32 s42, s42, s88")
    def issueB():
        lin_dma(k, 4, 12, 43, 47, 49, vl16=PL, mods=" sc1")
        k("s_add_u32 m0, s45, s49")
        k("s_mov_b32 exec_hi, 0")
        k(f"buffer_load_dwordx4 v{PL}, s[12:15], s46 offen sc1 lds")
        k("s_mov_b32 exec_hi, -1")
        k("s_add_u32 s43, s43, s89")
        k("s_add_u32 s46, s46, s89")
    def poll(): k(f"buffer_load_dword v248, v{PF}, s[84:87], s53 offen sc1")
    def setup():
        srd(k, 8, 66, 0, 2048 * 4096)
        srd(k, 12, 4, Z2T_OFF, Z2T_SZ)
        k(f"""
        v_lshlrev_b32 v{PL}, 4, v0
        v_lshlrev_b32 v{PF}, 2, v0
        v_lshrrev_b32 v{PA+1}, 4, v0
        v_and_b32 v{PA}, 7, v0
        v_xor_b32 v{PA}, v{PA}, v{PA+1}
        v_lshrrev_b32 v{PA+1}, 3, v0
        v_lshlrev_b32 v{PA+1}, 12, v{PA+1}
        v_lshl_add_u32 v{PA}, v{PA}, 4, v{PA+1}
        v_xor_b32 v{PA+1}, 64, v{PA}
        s_lshl_b32 s41, s40, 12
        s_lshl_b32 s42, s36, 19
        s_lshl_b32 s50, s40, 17
        s_add_u32 s42, s42, s50          ; A goff
        s_mul_i32 s43, s37, 18432
        s_lshl_b32 s45, s40, 9
        s_add_u32 s46, s43, s45
        s_add_u32 s46, s46, 16384        ; B2 goff
        s_add_u32 s43, s43, s41          ; B goff
        s_add_u32 s47, s41, {BO2}
        s_add_u32 s45, s45, {BO2+16384}
        s_lshl_b32 s53, s37, 8
        s_add_u32 s53, s53, {F2}
        s_mov_b32 s100, 0
        s_mov_b32 s49, 0
        s_lshr_b32 s59, s35, 3
        s_add_u32 s59, s59, s35
        s_and_b32 s59, s59, {OPT.get("ko", 0) & 1}
        s_movk_i32 s88, 128
        s_mov_b32 s89, {144*2048}
        s_lshl_b32 s50, s59, 11
        s_add_u32 s42, s42, s50
        s_mul_i32 s50, s59, {16*144*2048}
        s_add_u32 s43, s43, s50
        s_add_u32 s46, s46, s50
        """)
        issueA()
        k(f"s_mov_b32 s49, {SZ2}")
        issueA()
        poll()
    def B01():
        k("s_mov_b32 s49, 0")
        issueB()
        k(f"s_mov_b32 s49, {SZ2}")
        issueB()
        k(f"s_mov_b32 s49, {2*SZ2}\ns_mov_b32 s100, 1")
    return dict(setup=setup, B01=B01, issueA=issueA, issueB=issueB, poll=poll)

def g23_body(k, st, L, G):
    R, SZ, BO = R2, SZ2, BO2
    stamps = st.on
    k.label(L["g2X"])
    k(f"s_cmp_ge_u32 s33, 4\ns_cbranch_scc1 {L['g2D2']}")
    k.label(L["g2C"])
    ACC, BUF, ZR, XT, BR, BP, T = 144, [0, 36, 72, 108], 0, 224, 234, 40, 48
    RW, QQ = 238, 239
    G0, G1, GB, GBH = 241, 242, 243, 244
    VA0, VA1, VB, VL16, VT, GO = 248, 249, 250, 251, 252, 240
    acc = lambda i, j: ACC + (i * 5 + j) * 4
    k(f"""
    s_load_dwordx2 s[66:67], s[0:1], {KA['out']}
    v_mbcnt_lo_u32_b32 v{VL16}, -1, 0
    v_mbcnt_hi_u32_b32 v{VL16}, -1, v{VL16}
    v_lshlrev_b32 v{VL16}, 4, v{VL16}
    s_and_b32 s40, s33, 1            ; wm
    s_lshr_b32 s41, s33, 1           ; wn
    v_bfe_u32 v{RW}, v{VL16}, 4, 4        ; row
    v_lshrrev_b32 v{QQ}, 8, v{VL16}     ; q
    v_lshrrev_b32 v{VA0}, 1, v{RW}
    v_xor_b32 v{VA0}, v{QQ}, v{VA0}
    v_lshlrev_b32 v{VA0}, 4, v{VA0}
    v_lshl_add_u32 v{VA0}, v{RW}, 7, v{VA0}
    s_lshl_b32 s42, s40, 13
    v_add_u32 v{VA0}, s42, v{VA0}
    v_xor_b32 v{VA1}, 64, v{VA0}
    s_lshl_b32 s43, s41, 13
    s_add_u32 s43, s43, {BO}
    v_add_u32 v{VB}, s43, v{VL16}
    s_cmp_eq_u32 s41, 0
    s_cselect_b64 vcc, -1, 0
    """)
    adv_setup(k, R, SZ)
    st()
    def reads(sub, b):
        o = [f"ds_read_b128 {vr(BUF[b]+i*4,4)}, v{VA1 if sub else VA0} offset:{i*2048}" for i in range(4)]
        o += [f"ds_read_b128 {vr(BUF[b]+16+j*4,4)}, v{VB} offset:{(j if j < 4 else 8)*2048+sub*1024}" for j in range(5)]
        return o
    def mf(b, seq, zero):
        return [f"v_mfma_f32_16x16x32_bf16 {vr(acc(i,j),4)}, {vr(BUF[b]+16+j*4,4)}, {vr(BUF[b]+i*4,4)}, {'0' if zero else vr(acc(i,j),4)}"
                for i, j in seq]
    def half(b, other, zero):
        for x in interleave(mf(b, snake(4, 4), zero), other): k(x)
        Ls = k.lab("sk")
        k(f"s_cbranch_vccz {Ls}")
        for x in mf(b, [(3 - i, 4) for i in range(4)], zero): k(x)
        k.label(Ls)
    adv = adv_ins(R, [VA0, VA1, VB])
    def first():
        tiles(k)
        k(f"""
        s_lshl_b32 s46, s36, 3
        s_lshl_b32 s47, s40, 2
        s_add_u32 s46, s46, s47          ; tfrag0
        s_mul_i32 s60, s46, {TFS}
        s_lshr_b32 s47, s37, 1
        s_mul_i32 s47, s47, 9216
        s_add_u32 s60, s60, s47
        s_and_b32 s47, s37, 1
        s_lshl_b32 s62, s47, 9
        s_add_u32 s62, s62, s60
        s_add_u32 s62, s62, {(18+8)*1024}
        s_lshl_b32 s47, s47, 12
        s_add_u32 s60, s60, s47
        s_lshl_b32 s47, s41, 11
        s_add_u32 s60, s60, s47
        s_add_u32 s60, s60, {18*1024}
        s_mul_i32 s48, s40, {4*4608}
        s_add_u32 s48, s48, {ZS}
        s_waitcnt lgkmcnt(0)
        """)
        srd(k, 16, 4, A3_OFF, A3_SZ)
        srd(k, 76, 66, 0, 2048 * 1152)
        srd(k, 84, 4, FLG_OFF, FLG_SZ)
        pre = f"""
        s_lshl_b32 s47, s40, 6
        v_add_lshl_u32 v{G0}, s47, v{RW}, 1
        v_add_u32 v{G0}, {BSC}, v{G0}
        s_lshl_b32 s47, s40, 5
        s_lshl_b32 s50, s41, 4
        s_add_u32 s47, s47, s50
        v_add_u32 v{GB}, s47, v{RW}
        v_mul_u32_u24 v{GB}, 144, v{GB}
        v_lshl_add_u32 v{GB}, v{QQ}, 3, v{GB}
        v_add_u32 v{GB}, {XSC}, v{GB}
        v_mul_u32_u24 v{GO}, 1152, v{RW}
        v_lshl_add_u32 v{GO}, v{QQ}, 3, v{GO}
        s_lshl_b32 s52, s38, 2
        s_lshl_b32 s47, s40, 1
        s_add_u32 s52, s52, s47
        s_add_u32 s52, s52, s41
        s_mul_i32 s47, s52, {16*1152}
        s_mul_i32 s50, s39, 144
        s_add_u32 s47, s47, s50
        v_lshrrev_b32 v{G1}, 1, v{QQ}
        v_lshlrev_b32 v{G1}, 8, v{G1}
        v_lshl_add_u32 v{G1}, v{RW}, 4, v{G1}
        v_and_b32 v{VT}, 1, v{QQ}
        v_lshl_add_u32 v{VT}, v{VT}, 3, v{G1}
        """.strip().split("\n")
        pre = [x.strip() for x in pre]
        pre += [f"ds_read_u16 v{BR+i}, v{G0} offset:{32*i}" for i in range(4)]
        pre += [f"ds_read_b64 {vr(XT+2*j,2)}, v{GB} offset:{j*32}" for j in range(5)]
        for x in pre: k(x)
    lp = loop4(k, S2, reads, half, adv, st, after_first=first, vm_wait=True)
    assert lp == 1
    k("s_barrier")
    k(f"""
    s_lshl_b32 s50, s41, 11
    s_add_u32 s50, s50, s48
    v_add_u32 v{VA0}, s50, v{VL16}
    v_add_u32 v{VA1}, s48, v{VT}
    """)
    zr = []
    for i in range(4):
        for p in range(2): zr.append(f"ds_read_b128 {vr(ZR+i*10+p*4,4)}, v{VA0} offset:{i*4608+p*1024}")
        zr.append(f"ds_read_b64 {vr(ZR+i*10+8,2)}, v{VA1} offset:{i*4608+4096}")
    for i in range(4): zr += [f"v_lshlrev_b32 v{BP+2*i}, 16, v{BR+i}", f"v_lshlrev_b32 v{BP+2*i+1}, 16, v{BR+i}"]
    half(2, zr[:12], False)
    half(3, zr[12:], False)
    k(f"""
    s_lshl_b32 s42, s40, 12
    s_lshl_b32 s43, s41, 10
    s_add_u32 s42, s42, s43
    s_add_u32 s42, s42, {SL0*SZ3}
    s_lshl_b32 s44, s41, 11
    s_add_u32 s45, s42, s44
    v_add_u32 v{G0}, s45, v{VL16}
    s_xor_b32 s44, s44, 2048
    s_add_u32 s45, s42, s44
    v_add_u32 v{G1}, s45, v{VL16}
    s_add_u32 s45, s43, {BO3+SL0*SZ3}
    v_add_u32 v{GB}, s45, v{VL16}
    v_and_b32 v{RW}, 7, v{RW}
    v_lshl_add_u32 v{RW}, v{QQ}, 3, v{RW}
    v_lshlrev_b32 v{RW}, 4, v{RW}
    s_lshl_b32 s45, s41, 9
    s_add_u32 s45, s45, {BO3+8192+SL0*SZ3}
    v_add_u32 v{GBH}, s45, v{RW}
    s_waitcnt lgkmcnt(0)
    """)
    st()
    def quad(i, j, n):
        a, z, t = acc(i, j), ZR + i * 10 + j * 2, T + (n & 1) * 4
        k(f"""
        v_pk_add_f32 {vr(a,2)}, {vr(a,2)}, {vr(BP+2*i,2)}
        v_pk_add_f32 {vr(a+2,2)}, {vr(a+2,2)}, {vr(BP+2*i,2)}
        v_lshlrev_b32 v{t}, 16, v{z}
        v_and_b32 v{t+1}, 0xffff0000, v{z}
        v_lshlrev_b32 v{t+2}, 16, v{z+1}
        v_and_b32 v{t+3}, 0xffff0000, v{z+1}
        v_pk_mul_f32 {vr(a,2)}, {vr(a,2)}, {vr(t,2)}
        v_pk_mul_f32 {vr(a+2,2)}, {vr(a+2,2)}, {vr(t+2,2)}
        v_cvt_pk_bf16_f32 v{z}, v{a}, v{a+1}
        v_cvt_pk_bf16_f32 v{z+1}, v{a+2}, v{a+3}
        """)
    n = 0
    for i in range(4):
        for j in range(4):
            quad(i, j, n); n += 1
            if j & 1: k(f"buffer_store_dwordx4 {vr(ZR+i*10+(j>>1)*4,4)}, v{VL16}, s[16:19], s60 offen offset:{(j>>1)*1024} sc1")
        if i < 3: k(f"s_add_u32 s60, s60, {TFS}")
    Ls = k.lab("es")
    k(f"s_cbranch_vccz {Ls}")
    for i in range(4):
        quad(i, 4, n); n += 1
        k(f"buffer_store_dwordx2 {vr(ZR+i*10+8,2)}, v{VT}, s[16:19], s62 offen sc1")
        if i < 3: k(f"s_add_u32 s62, s62, {TFS}")
    k.label(Ls)
    AC3, BU3 = 144, [0, 28]
    ac3 = lambda i, j: AC3 + (i * 5 + j) * 4
    for j in range(5):
        for h in range(2):
            k(f"v_lshlrev_b32 v{ac3(0,j)+2*h}, 16, v{XT+2*j+h}")
            k(f"v_and_b32 v{ac3(0,j)+2*h+1}, 0xffff0000, v{XT+2*j+h}")
    for r in range(ac3(1, 0), ac3(1, 4) + 4): k(f"v_mov_b32 v{r}, 0")
    adv_setup(k, R3, SZ3)
    k(f"s_mov_b32 s59, {SL0}")
    st()
    k("s_waitcnt vmcnt(0)")
    set_flag(k, f"s_lshl_b32 s50, s36, 8\ns_lshl_b32 s51, s37, 4\ns_add_u32 s50, s50, s51\ns_lshl_b32 s51, s33, 2\ns_add_u32 s50, s50, s51\ns_add_u32 s50, s50, {F4}", 60)
    def reads3(sub, b):
        o = [f"ds_read_b128 {vr(BU3[b],4)}, v{G0}", f"ds_read_b128 {vr(BU3[b]+4,4)}, v{G1}"]
        o += [f"ds_read_b128 {vr(BU3[b]+8+j*4,4)}, v{GB} offset:{j*2048}" for j in range(4)]
        o += [f"ds_read_b128 {vr(BU3[b]+24,4)}, v{GBH}"]
        return o
    def mf3(b):
        return [f"v_mfma_f32_16x16x32_bf16 {vr(ac3(i,j),4)}, {vr(BU3[b]+8+j*4,4)}, {vr(BU3[b]+i*4,4)}, {vr(ac3(i,j),4)}"
                for i, j in snake(2, 5)]
    last = consumer_loop(k, S3, 1, reads3, mf3, adv_ins(R3, [G0, G1, GB, GBH]), True, st=st)
    st()
    for m in mf3(last): k(m)
    k("s_lshl_b32 s42, s40, 1")
    ksplit_reduce(k, ac3(1, 0), 5, 42, 41, VL16, G0, G1, 0)
    for n in range(5): k(f"ds_read_b128 {vr(ac3(1,0)+n*4,4)}, v{G1} offset:{n*1024}")
    for j in range(5):
        k(f"s_waitcnt lgkmcnt({4-j})")
        a, b = ac3(0, j), ac3(1, j)
        k(f"v_pk_add_f32 {vr(a,2)}, {vr(a,2)}, {vr(b,2)}")
        k(f"v_pk_add_f32 {vr(a+2,2)}, {vr(a+2,2)}, {vr(b+2,2)}")
        k(f"v_cvt_pk_bf16_f32 v{2*j}, v{a}, v{a+1}")
        k(f"v_cvt_pk_bf16_f32 v{2*j+1}, v{a+2}, v{a+3}")
        if j == 4: k("s_mov_b32 exec_hi, 0")
        k(f"buffer_store_dwordx2 {vr(2*j,2)}, v{GO}, s[76:79], s47 offen offset:{j*32}")
    if stamps:
        k("s_mov_b32 exec_hi, -1")
        st(); k("s_waitcnt vmcnt(0)"); st()
    k("s_endpgm")
    k.label(L["g2D"])
    G["setup"]()
    srd(k, 68, 4, W3_OFF, W3_SZ)
    Lw = k.lab("nw")
    k(f"s_cmp_eq_u32 s40, 3\ns_cbranch_scc1 {Lw}")
    w3_unit(k)
    k.label(Lw)
    k.label(L["g2D2"])
    if OPT.get("pd", 3): k(f"s_setprio {OPT.get('pd', 3)}")
    Lb = k.lab("bd")
    k(f"s_cmp_lg_u32 s100, 0\ns_cbranch_scc1 {Lb}")
    k("s_waitcnt vmcnt(0)")
    spin(k, G["poll"], lambda: k("v_cmp_ne_u32 vcc, s101, v248"))
    G["B01"]()
    k.label(Lb)
    def issue():
        G["issueA"](); G["issueB"](); slot_adv_prod(k, R, SZ, 49)
    def ploop(n, iss, allowed):
        Lp = k.lab("pl")
        k(f"s_mov_b32 s58, {n}")
        k.label(Lp)
        k(f"s_waitcnt vmcnt({allowed})")
        k("s_barrier")
        iss()
        k(f"s_sub_u32 s58, s58, 1\ns_cmp_lg_u32 s58, 0\ns_cbranch_scc1 {Lp}")
    tiles(k)
    srd(k, 68, 4, W3_OFF, W3_SZ)
    k(f"""
    v_mov_b32 v1, v{PL}
    s_lshl_b32 s60, s40, 11          ; g3 A lds
    s_lshl_b32 s61, s38, 2
    s_add_u32 s61, s61, s40
    s_mul_i32 s61, s61, {TFS}        ; g3 A goff
    s_mul_i32 s62, s39, 9216
    s_lshl_b32 s63, s40, 8
    s_add_u32 s48, s62, s63
    s_add_u32 s48, s48, 8192         ; g3 B2 goff
    s_add_u32 s62, s62, s60          ; g3 B goff
    s_add_u32 s65, s60, {BO3}
    s_add_u32 s66, s63, {BO3+8192}
    s_mov_b32 s67, {SL0*SZ3}
    s_lshl_b32 s51, s36, 3
    s_lshl_b32 s52, s40, 1
    s_add_u32 s51, s51, s52
    s_mul_i32 s51, s51, {TFS}
    s_lshr_b32 s50, s37, 1
    s_mul_i32 s50, s50, 9216
    s_add_u32 s51, s51, s50
    s_and_b32 s50, s37, 1
    s_lshl_b32 s44, s50, 9
    s_add_u32 s44, s44, s51
    s_add_u32 s44, s44, {26*1024}
    s_lshl_b32 s50, s50, 12
    s_add_u32 s51, s51, s50
    s_add_u32 s51, s51, {18*1024}
    s_mul_i32 s52, s52, 4608
    s_add_u32 s52, s52, {ZS}
    s_lshr_b32 s53, s38, 1
    s_lshl_b32 s53, s53, 8
    s_add_u32 s53, s53, {F4}
    s_movk_i32 s54, {F3}
    s_movk_i32 s20, 2048
    s_mov_b32 s21, {8*9216}
    s_lshr_b32 s22, s35, 3
    s_add_u32 s22, s22, s35
    s_and_b32 s22, s22, {(OPT.get("ko", 0) >> 1) & 1}
    """)
    ZB = OPT.get("zb", 21)
    ploop(1, issue, 5)
    ploop(4, issue, 9)
    Ls = k.lab("f3")
    k(f"s_cmp_lg_u32 s40, 0\ns_cbranch_scc1 {Ls}")
    set_flag(k, f"s_lshl_b32 s50, s2, 2\ns_add_u32 s50, s50, {F3}", 8)
    k.label(Ls)
    ploop(9, issue, 9)
    if OPT.get("ko", 0) & 1:
        k(f"""
        s_lshl_b32 s50, s59, 5
        s_sub_u32 s50, 15, s50           ; +15 / -17 stages
        s_mul_i32 s55, s50, 128
        s_add_u32 s42, s42, s55
        s_mul_i32 s55, s50, {144*2048}
        s_add_u32 s43, s43, s55
        s_add_u32 s46, s46, s55
        s_sub_u32 s88, 0, s88
        s_sub_u32 s89, 0, s89
        """)
    ploop(ZB - 15, issue, 9)
    ld = lambda: k("buffer_load_dwordx4 v[8:11], v1, s[84:87], s54 offen sc1")
    ld()
    ploop(1, issue, 10)
    k("s_waitcnt vmcnt(9)")
    spin(k, ld, lambda: k("v_xor_b32 v8, s101, v8\nv_xor_b32 v9, s101, v9\nv_xor_b32 v10, s101, v10\nv_xor_b32 v11, s101, v11\nv_or3_b32 v8, v8, v9, v10\nv_or_b32 v8, v8, v11\nv_cmp_ne_u32 vcc, 0, v8"))
    ploop(30 - ZB, issue, 9)
    for e in range(2):
        k(f"s_add_u32 m0, s52, {e*4608}")
        for n in range(4): k(f"buffer_load_dwordx4 v1, s[16:19], s51 offen offset:{n*1024} sc1 lds")
        k(f"s_add_u32 m0, s52, {e*4608+4096}")
        k("s_mov_b32 exec_hi, 0")
        k(f"buffer_load_dwordx4 v1, s[16:19], s44 offen sc1 lds")
        k("s_mov_b32 exec_hi, -1")
        k(f"s_add_u32 s51, s51, {TFS}\ns_add_u32 s44, s44, {TFS}")
    def issue3():
        k("s_add_u32 m0, s60, s67")
        for n in range(2): k(f"buffer_load_dwordx4 v1, s[16:19], s61 offen offset:{n*1024} sc1 lds")
        k("s_add_u32 m0, s65, s67")
        for n in range(2): k(f"buffer_load_dwordx4 v1, s[68:71], s62 offen offset:{n*1024} sc1 lds")
        k("s_add_u32 m0, s66, s67")
        k("s_mov_b64 exec, 0xffff")
        k(f"buffer_load_dwordx4 v1, s[68:71], s48 offen sc1 lds")
        k("s_mov_b64 exec, -1")
        k("s_add_u32 s61, s61, s20")
        k("s_add_u32 s62, s62, s21")
        k("s_add_u32 s48, s48, s21")
        slot_adv_prod(k, R3, SZ3, 67)
    k("s_waitcnt vmcnt(19)")
    k("s_barrier")
    issue3(); issue3()
    k("s_waitcnt vmcnt(20)")
    k("s_barrier")
    k("s_waitcnt vmcnt(10)")
    k("s_barrier")
    issue3(); issue3()
    NW = 0
    if OPT.get("w3l2", 0):
        k(f"""
        s_lshr_b32 s50, s34, 2
        s_mul_i32 s50, s50, {4*9216}
        s_mul_i32 s55, s35, {8*9216}
        s_add_u32 s50, s50, s55
        s_mul_i32 s55, s40, 9216
        s_add_u32 s50, s50, s55
        v_lshlrev_b32 v12, 7, v0
        buffer_load_dword v13, v12, s[68:71], s50 offen
        s_add_u32 s50, s50, {32*8*9216}
        buffer_load_dword v14, v12, s[68:71], s50 offen
        """)
        NW = 2
    ploop(3, issue3, 15 + NW)
    ploop(1, issue3, 15)
    ld4 = lambda: k(f"buffer_load_dword v4, v{PF}, s[84:87], s53 offen sc1")
    ld4()
    k("s_waitcnt vmcnt(16)")
    k("s_barrier")
    issue3()
    k("s_waitcnt vmcnt(16)")
    k("s_barrier")
    k("s_waitcnt vmcnt(5)")
    spin(k, ld4, lambda: k("v_cmp_ne_u32 vcc, s101, v4"))
    def jump3(expr):
        k(expr)
        k(f"""
        s_mul_i32 s55, s50, 2048
        s_add_u32 s61, s61, s55
        s_mul_i32 s55, s50, {8*9216}
        s_add_u32 s62, s62, s55
        s_add_u32 s48, s48, s55
        """)
    jump3("s_mul_i32 s50, s22, 18")
    issue3()
    ploop(17, issue3, 15)
    if OPT.get("ko", 0) & 2:
        jump3("s_mul_i32 s50, s22, 36\ns_sub_u32 s50, 17, s50")
        k("s_sub_u32 s20, 0, s20\ns_sub_u32 s21, 0, s21")
    ploop(18, issue3, 15)
    for b in range(S3 - LA3, S3):
        k(f"s_waitcnt vmcnt({(S3-1-b)*5})")
        k("s_barrier")
    k("s_endpgm")

class DbgStamps:
    def __init__(self, k): self.k, self.on, self.n = k, True, 0
    def init(self):
        k = self.k
        k(f"s_load_dwordx2 s[90:91], s[0:1], {KA['dbg']}\ns_waitcnt lgkmcnt(0)")
        srd(k, 96, 90, 0, 256)
        k("s_mov_b32 s95, 4")
    def __call__(self, v=254):
        k = self.k
        self.n += 1
        if self.n <= 3: return
        L = k.lab("ds")
        k(f"""
        s_cmp_lg_u32 s33, 0
        s_cbranch_scc1 {L}
        s_memrealtime s[92:93]
        s_waitcnt lgkmcnt(0)
        s_sub_u32 s92, s92, s101
        v_mov_b32 v{v}, s92
        v_mov_b32 v{v-1}, 0
        s_mov_b64 exec, 1
        buffer_atomic_umax v{v}, v{v-1}, s[96:99], s95 offen
        s_mov_b64 exec, -1
        s_add_u32 s95, s95, 4
        {L}:
        """)

def gen_main(name, stamps=False):
    k = Kern(name); st = Stamps(k, stamps, 1)
    if OPT.get("dbg", 0): st = DbgStamps(k)
    L = {n: k.lab(n) for n in "end D C2q att g2C g2D g2D2 g2X nx".split()}
    preamble(k, 256, L["end"], [(4, "ws"), (6, "w_in"), (64, "wqkv"), (66, "w_sp"), (68, "x"), (74, "dbg")])
    k("s_mov_b32 s101, 1\ns_mov_b32 s100, 0")
    for r in range(244, 249): k(f"v_mov_b32 v{r}, 0")
    G = g2_hooks(k)
    k1_body(k, st, L, True, True, G)
    g23_body(k, st, L, G)
    k.label(L["end"])
    k("s_endpgm")
    return k

if __name__ == "__main__":
    HEADER = open("parallel_sum__sliding_local_dilated__mixer_gmlp__prompt.s.ref").read().split("; Override launch")[0]
    stamps = "stamps" in sys.argv[2:]
    for a in sys.argv[2:]:
        if "=" in a: OPT[a.split("=")[0]] = int(a.split("=")[1])
    ks = [(gen_main("parallel_sum__sliding_local_dilated__mixer_gmlp__prompt_kernel", stamps), 256, 256, 512, 163840)]
    txt = assemble_file(HEADER + "; generated by a python script (tile loops, fragment layouts and wait states hand-designed)\n", ks)
    if "plain" in sys.argv[2:]:
        txt = re.sub(r"; @launch kernel=\S+ grid", "; @launch grid", txt)
    open(sys.argv[1], "w").write(txt)
```

```python
import sys, math, re
from asmlib import *
import gen2
from gen2 import *
from gen4 import reduce16

FLG_OFF = 0x3450000; FLG_SZ = 0x24000
F5 = 0x4000 + 0x1c000
W1_OFF = WSP_OFF; W1_SZ = 16 * 9 * 18432
WQ_REL = 0; W12_SZ = 8 * 9 * 28672
RS_OFF = 0x3440000; RS_SZ = 128 * 128
F0 = 16384
F1, F2, F4, F3 = 0x8000, 0x10000, 0x18000, 12288
TFS = 90 * 1024
ATT = 69632
XSC = 153600
BSC = XSC + 9216
HSC = BSC + 256

def snake(no, ni):
    return [(o, i if o % 2 == 0 else ni - 1 - i) for o in range(no) for i in range(ni)]

def w144_voff(k, d, sid, pitch):
    k(f"""
    v_add_u32 v2, s{sid}, v0
    v_mul_u32_u24 v3, 3641, v2
    v_lshrrev_b32 v3, 16, v3
    v_mul_u32_u24 v4, 18, v3
    v_sub_u32 v2, v2, v4
    v_and_b32 v4, 4, v3
    v_and_b32 v5, 8, v3
    v_lshlrev_b32 v4, 1, v4
    v_lshrrev_b32 v5, 1, v5
    v_and_b32 v3, 0x33, v3
    v_or3_b32 v3, v3, v4, v5
    v_mul_u32_u24 v3, {pitch}, v3
    v_lshl_add_u32 v{d}, v2, 4, v3
    """)
def qkv_voff(k, d, sid):
    k(f"""
    v_add_u32 v2, s{sid}, v0
    v_mul_u32_u24 v3, 2341, v2
    v_lshrrev_b32 v3, 16, v3
    v_mul_u32_u24 v4, 28, v3
    v_sub_u32 v2, v2, v4
    v_and_b32 v4, 4, v3
    v_lshrrev_b32 v5, 1, v4
    v_xor_b32 v2, v2, v5
    v_lshlrev_b32 v4, 1, v4
    v_and_b32 v5, 8, v3
    v_lshrrev_b32 v5, 1, v5
    v_and_b32 v3, 0x33, v3
    v_or3_b32 v3, v3, v4, v5
    v_mul_u32_u24 v3, 3456, v3
    v_mul_u32_u24 v4, 57, v2
    v_lshrrev_b32 v4, 9, v4
    v_mul_u32_u24 v5, {1152-144}, v4
    v_lshl_add_u32 v5, v2, 4, v5
    v_add_u32 v3, v3, v5
    v_mov_b32 v5, 0x80000000
    v_cmp_gt_u32 vcc, 27, v2
    v_cndmask_b32 v{d}, v5, v3, vcc
    """)

def lin_dma(k, n, srdr, soff, mbase, slot, vl16=1, mods=""):
    for g in range(0, n, 4):
        if g == 0:
            k(f"s_add_u32 m0, s{mbase}, s{slot}"); so = soff
        else:
            k("s_add_u32 m0, m0, 4096"); k(f"s_add_u32 s50, s{soff}, {g*1024}"); so = 50
        for i in range(min(4, n - g)):
            k(f"buffer_load_dwordx4 v{vl16}, s[{srdr}:{srdr+3}], s{so} offen offset:{i*1024}{mods} lds")
def gat_dma(k, n, srdr, soff, mbase, slot, V):
    k(f"s_add_u32 m0, s{mbase}, s{slot}")
    for i in range(n):
        if i: k("s_add_u32 m0, m0, 1024")
        k(f"buffer_load_dwordx4 v{V+i}, s[{srdr}:{srdr+3}], s{soff} offen lds")

def spin(k, load, check):
    Lp, Ld = k.lab("sp"), k.lab("sd")
    check()
    k(f"s_cbranch_vccz {Ld}")
    k("s_mov_b32 s50, 0x20000")
    k.label(Lp)
    k(f"s_sleep {OPT.get('slp', 2)}")
    load()
    k("s_waitcnt vmcnt(0)")
    k("s_sub_u32 s50, s50, 1")
    check()
    k("s_cmp_eq_u32 s50, 0")
    k("s_cselect_b64 vcc, 0, vcc")
    k(f"s_cbranch_vccnz {Lp}")
    k.label(Ld)

def set_flag(k, soff_expr_lines, vt):
    k(soff_expr_lines)
    k(f"""
    v_mov_b32 v{vt}, s101
    v_mov_b32 v{vt+1}, 0
    s_mov_b64 exec, 1
    buffer_store_dword v{vt}, v{vt+1}, s[84:87], s50 offen sc1
    s_mov_b64 exec, -1
    """)

CNT = ["s_sub_u32 s58, s58, 1", "s_cmp_lg_u32 s58, 0"]


def phase0(k, st, L):
    SZ = 51200
    Lw, Ld, Ln6, Lnz, Lnt = k.lab("w3"), k.lab("p0d"), k.lab("n6"), k.lab("nz"), k.lab("nt")
    srd(k, 84, 4, FLG_OFF, FLG_SZ)
    k(f"""
    s_cmp_lg_u32 s33, 7
    s_cbranch_scc1 {Lnz}
    s_lshl_b32 s50, s36, 11
    s_lshl_b32 s51, s37, 7
    s_add_u32 s50, s50, s51
    s_lshl_b32 s51, s37, 11
    s_lshl_b32 s52, s36, 7
    s_add_u32 s51, s51, s52
    s_add_u32 s51, s51, {F2}
    s_add_u32 s52, s50, {F4}
    s_add_u32 s50, s50, {F1}
    s_lshl_b32 s53, s2, 2
    s_add_u32 s53, s53, {F3}
    v_mov_b32 v4, s50
    v_writelane_b32 v4, s51, 1
    v_writelane_b32 v4, s52, 2
    v_writelane_b32 v4, s53, 3
    s_mov_b64 exec, 15
    buffer_load_dword v252, v4, s[84:87], 0 offen
    s_mov_b64 exec, -1
    {Lnz}:
    s_cmp_eq_u32 s32, 0
    s_cbranch_scc1 {Lw}
    """)
    k(f"""
    s_cmp_ge_u32 s33, 4
    s_cbranch_scc1 {Ln6}
    v_mul_u32_u24 v5, 144, v2
    v_add_u32 v5, {2*SZ}, v5
    s_lshl_b32 s47, s33, 5
    v_lshl_add_u32 v6, v3, 3, v5
    v_add_u32 v6, s47, v6
    s_lshl_b32 s47, s44, 11
    """)
    for i in range(5):
        k(f"""
        s_add_u32 s50, s46, {i}
        s_lshr_b32 s51, s50, 1
        s_lshl_b32 s51, s51, 18
        s_and_b32 s50, s50, 1
        s_lshl_b32 s50, s50, 10
        s_add_u32 s51, s51, s50
        s_add_u32 s{53+i}, s51, s47
        """)
    k("s_cmp_lt_u32 s33, 2\ns_cselect_b32 s57, s57, 0x7fffffff")
    k("s_waitcnt vmcnt(0)")
    X = 28
    for i in range(20):
        k(f"v_lshlrev_b32 v{X+2*i}, 16, v{8+i}")
        k(f"v_and_b32 v{X+2*i+1}, 0xffff0000, v{8+i}")
    k(f"v_pk_add_f32 v[68:69], {vr(X,2)}, {vr(X+2,2)}")
    k(f"v_pk_mul_f32 v[70:71], {vr(X,2)}, {vr(X,2)}")
    k(f"v_pk_mul_f32 v[72:73], {vr(X+2,2)}, {vr(X+2,2)}")
    for i in range(2, 20):
        k(f"v_pk_add_f32 v[68:69], v[68:69], {vr(X+2*i,2)}")
        k(f"v_pk_fma_f32 {vr(70+2*(i&1),2)}, {vr(X+2*i,2)}, {vr(X+2*i,2)}, {vr(70+2*(i&1),2)}")
    k("v_pk_add_f32 v[70:71], v[70:71], v[72:73]\nv_add_f32 v68, v68, v69\nv_add_f32 v69, v70, v71")
    k("ds_write_b64 v6, v[68:69]")
    k("s_waitcnt lgkmcnt(0)")
    k("s_barrier")
    for i in range(8): k(f"ds_read_b128 {vr(68+4*i,4)}, v5 offset:{i*16}")
    k("s_waitcnt lgkmcnt(0)")
    for w in (8, 4, 2, 1):
        for i in range(w): k(f"v_pk_add_f32 {vr(68+2*i,2)}, {vr(68+2*i,2)}, {vr(68+2*(i+w),2)}")
    inv = f2u(1.0 / 576)
    k(f"""
    v_mul_f32 v96, {inv:#x}, v68
    v_mul_f32 v98, {inv:#x}, v69
    v_fma_f32 v98, -v96, v96, v98
    v_max_f32 v98, 0, v98
    """)
    rnd_bf16(k, 96, 96)
    rnd_bf16(k, 98, 98)
    k("v_mov_b32 v97, v96")
    k(f"v_add_f32 v98, {f2u(1e-5):#x}, v98")
    rnd_bf16(k, 98, 98)
    k("v_sqrt_f32 v98, v98")
    for i in range(20): k(f"v_pk_add_f32 {vr(X+2*i,2)}, {vr(X+2*i,2)}, v[96:97] neg_lo:[0,1] neg_hi:[0,1]")
    rnd_bf16(k, 98, 98)
    k("v_rcp_f32 v98, v98")
    for i in range(20): k(f"v_cvt_pk_bf16_f32 v{8+i}, v{X+2*i}, v{X+2*i+1}")
    k("v_mov_b32 v99, v98")
    for i in range(20):
        k(f"v_lshlrev_b32 v{X+2*i}, 16, v{8+i}")
        k(f"v_and_b32 v{X+2*i+1}, 0xffff0000, v{8+i}")
    for i in range(20): k(f"v_pk_mul_f32 {vr(X+2*i,2)}, {vr(X+2*i,2)}, v[98:99]")
    for i in range(20): k(f"v_cvt_pk_bf16_f32 v{8+i}, v{X+2*i}, v{X+2*i+1}")
    for i in range(5): k(f"buffer_store_dwordx4 {vr(8+4*i,4)}, v1, s[8:11], s{53+i} offen sc1")
    k(f"s_cmp_lg_u32 s33, 0\ns_cbranch_scc1 {Ld}")
    srd(k, 20, 4, RS_OFF, RS_SZ)
    k(f"""
    v_sub_f32 v96, 0, v96
    v_cmp_gt_u32 vcc, 16, v0
    v_lshlrev_b32 v97, 2, v0
    s_lshl_b32 s45, s44, 7
    v_cndmask_b32 v96, v98, v96, vcc
    s_mov_b32 exec_hi, 0
    buffer_store_dword v96, v97, s[20:23], s45 offen sc1
    s_mov_b32 exec_hi, -1
    s_branch {Ld}
    """)
    k.label(Ln6)
    srd(k, 20, 4, ST_OFF, ST_SZ)
    Lz = k.lab("z7")
    k(f"""
    v_mov_b32 v4, 0
    v_lshlrev_b32 v5, 2, v0
    s_lshl_b32 s45, s44, 7
    s_cmp_lg_u32 s33, 7
    s_cbranch_scc1 {Lz}
    s_mov_b32 exec_hi, 0
    buffer_store_dword v4, v5, s[20:23], s45 offen sc1
    s_mov_b32 exec_hi, -1
    {Lz}:
    s_barrier
    s_branch {Ld}
    """)
    k.label(Lw)
    Lnw = k.lab("nw")
    k(f"""
    s_cmp_ge_u32 s33, 4
    s_cbranch_scc1 {Lnw}
    s_lshl_b32 s45, s33, 7
    s_add_u32 s45, s45, s44          ; g 0..511
    s_lshl_b32 s51, s45, 6
    v_add_u32 v243, s51, v0
    s_mov_b32 s52, 116509
    v_mul_lo_u32 v242, s52, v243
    v_lshrrev_b32 v242, 22, v242
    v_lshlrev_b32 v243, 7, v243
    v_mul_u32_u24 v242, 4608, v242
    v_add_u32 v242, v243, v242
    s_mov_b32 s51, 0x7fffffff
    s_cmp_lt_u32 s45, 324
    s_cselect_b32 s50, 4608, s51
    s_cselect_b32 s51, 0, s51
    buffer_load_dword v252, v242, s[12:15], s50 offen
    buffer_load_dword v252, v242, s[12:15], s51 offen
    s_sub_u32 s45, 511, s45
    s_cmp_ge_u32 s45, 288
    s_cbranch_scc1 {Lnw}
    s_mov_b32 s24, s64
    s_mov_b32 s25, s65
    s_mov_b32 s26, {576*3456}
    s_mov_b32 s27, 0x20000
    s_lshr_b32 s46, s45, 4           ; step
    s_bfe_u32 s47, s45, 0x30001      ; hg
    s_mul_i32 s48, s46, {32*3456}
    s_mul_i32 s50, s47, 144
    s_add_u32 s48, s48, s50
    s_mul_i32 s49, s47, 9
    s_lshr_b32 s50, s46, 1
    s_add_u32 s49, s49, s50
    s_mul_i32 s49, s49, 28672
    s_and_b32 s56, s45, 1
    s_mul_i32 s50, s56, {7*2048}
    s_add_u32 s49, s49, s50
    s_mul_i32 s56, s56, 14
    s_movk_i32 s52, 14
    s_movk_i32 s53, 4682
    s_movk_i32 s54, 3456
    s_movk_i32 s55, 1008
    s_and_b32 s50, s46, 1
    s_lshl_b32 s50, s50, 10
    s_add_u32 s49, s49, s50
    s_mul_i32 s57, s33, 7168
    s_add_u32 s57, s57, 86016
    s_mov_b32 m0, s57
    """)
    srd(k, 20, 4, W1_OFF, W12_SZ)
    for n in range(7):
        k(f"""
        v_add_u32 v2, {n*64}, v0
        v_mul_u32_u24 v3, s53, v2
        v_lshrrev_b32 v3, 16, v3         ; row
        v_mul_u32_u24 v4, s52, v3
        v_sub_u32 v2, v2, v4
        v_add_u32 v2, s56, v2            ; chunk
        v_mul_u32_u24 v4, 57, v2
        v_lshrrev_b32 v4, 9, v4          ; segment
        v_mul_u32_u24 v5, s54, v3
        v_lshl_add_u32 v5, v2, 4, v5
        v_mad_u32_u24 v5, v4, s55, v5
        v_lshrrev_b32 v3, 5, v3
        v_add_u32 v2, 5, v2
        v_lshrrev_b32 v2, 5, v2          ; chunk 27 -> 1
        v_or_b32 v3, v3, v2
        v_lshl_or_b32 v5, v3, 30, v5
        buffer_load_dwordx4 v5, s[24:27], s48 offen lds
        s_add_u32 m0, m0, 1024
        """)
    k(f"""
    v_lshrrev_b32 v2, 4, v0
    v_bfe_u32 v3, v0, 2, 2
    v_lshl_add_u32 v2, v2, 3, v3
    s_lshl_b32 s50, s52, 4
    v_mul_u32_u24 v2, s50, v2
    v_and_b32 v3, 3, v0
    v_lshl_add_u32 v2, v3, 3, v2
    v_add_u32 v2, s57, v2
    s_lshl_b32 s50, s52, 6
    v_add_u32 v3, s50, v2
    s_waitcnt vmcnt(0)
    """)
    for j in range(7):
        k(f"ds_read_b64_tr_b16 {vr(8+j*4,2)}, v2 offset:{j*32}")
        k(f"ds_read_b64_tr_b16 {vr(10+j*4,2)}, v3 offset:{j*32}")
    for j in range(7):
        k(f"s_waitcnt lgkmcnt({12-2*j})")
        k(f"buffer_store_dwordx4 {vr(8+j*4,4)}, v1, s[20:23], s49 offen offset:{(j&1)*2048} sc1")
        if j & 1: k("s_add_u32 s49, s49, 4096")
    k(f"""
    {Lnw}:
    """)
    Lnc, Lpc = k.lab("nc"), k.lab("pc")
    k(f"""
    s_cmp_lg_u32 s35, 0
    s_cbranch_scc1 {Lnc}
    s_getpc_b64 s[28:29]
    {Lpc}:
    s_mov_b32 s30, {L['end']}-{Lpc}
    s_mov_b32 s31, 0x20000
    s_lshl_b32 s50, s33, 13
    v_lshlrev_b32 v242, 7, v0
    buffer_load_dword v252, v242, s[28:31], s50 offen
    {Lnc}:
    """)
    k.label(Ld)

def loop4(k, S, reads, half, adv, st, after_first=None, vm_wait=False, vm_first=False):
    def stage_reads(p): return reads(0, 2 * p) + reads(1, 2 * p + 1)
    def interval(p, other, zero=False):
        n = len(other); cut = min(n, 16)
        half(2 * p, other[:cut], zero); half(2 * p + 1, other[cut:], False)
    k("s_barrier")
    st()
    for r in stage_reads(0) + adv: k(r)
    if after_first: after_first()
    k("s_waitcnt lgkmcnt(0)")
    k("s_barrier")
    interval(0, stage_reads(1) + adv, True)
    m = S - 2
    k(f"s_mov_b32 s58, {(m+1)//2}")
    k("s_waitcnt vmcnt(0) lgkmcnt(0)" if vm_first else "s_waitcnt lgkmcnt(0)")
    Ltop, Lex = k.lab("top"), k.lab("ex")
    k.label(Ltop)
    k("s_barrier")
    interval(1, stage_reads(0) + adv + (CNT if m & 1 else []))
    k("s_waitcnt lgkmcnt(0)")
    if m & 1: k(f"s_cbranch_scc0 {Lex}")
    k("s_barrier")
    interval(0, stage_reads(1) + adv + ([] if m & 1 else CNT))
    k("s_waitcnt vmcnt(0) lgkmcnt(0)" if vm_wait else "s_waitcnt lgkmcnt(0)")
    k(f"s_branch {Ltop}" if m & 1 else f"s_cbranch_scc1 {Ltop}")
    k.label(Lex)
    st()
    return (S - 1) & 1

def k1_body(k, st, L, fused, single, G):
    R, SZ = 3, 51200
    BO1, BOZ, BOQ = 16384, 32768, 18432
    RSC = 2 * SZ + 40960
    stamps = st.on
    k(f"""
    s_and_b32 s36, s34, 1
    s_lshl_b32 s36, s36, 3
    s_and_b32 s37, s35, 7
    s_add_u32 s36, s36, s37          ; z2 mt
    s_lshr_b32 s37, s34, 1
    s_lshl_b32 s37, s37, 2
    s_lshr_b32 s38, s35, 3
    s_add_u32 s37, s37, s38          ; z2 nt
    s_lshr_b32 s32, s35, 4
    s_and_b32 s38, s34, 1
    s_lshl_b32 s38, s38, 2
    s_and_b32 s39, s35, 3
    s_add_u32 s38, s38, s39
    s_lshr_b32 s39, s34, 1
    s_lshl_b32 s50, s39, 1
    s_lshl_b32 s39, s39, 2
    s_lshr_b32 s51, s35, 2
    s_add_u32 s39, s39, s51          ; z1 nt
    s_bfe_u32 s51, s35, 0x10003
    s_add_u32 s50, s50, s51          ; hg
    s_cmp_eq_u32 s32, 0
    s_cselect_b32 s38, s38, s36
    s_cselect_b32 s39, s39, s50
    s_lshl_b32 s44, s34, 4
    s_and_b32 s50, s35, 15
    s_add_u32 s44, s44, s50
    s_mov_b32 s3, s44
    v_and_b32 v2, 15, v0             ; row
    v_lshrrev_b32 v3, 4, v0          ; q
    s_mul_i32 s45, s44, {16*1152}
    s_mul_i32 s46, s33, 5
    s_lshr_b32 s50, s33, 1
    s_and_b32 s50, s50, s33
    s_sub_u32 s46, s46, s50
    s_lshl_b32 s51, s46, 6
    s_add_u32 s45, s45, s51
    s_add_u32 s52, s45, 256
    s_cmp_lt_u32 s33, 2
    s_cselect_b32 s52, s52, 0x7fffffff
    s_cmp_lt_u32 s33, 4
    s_cselect_b32 s50, s32, 0
    v_mul_u32_u24 v4, 1152, v2
    v_lshl_add_u32 v7, v3, 4, v4
    s_mov_b32 s26, {2048*1152}
    s_mov_b32 s27, 0x20000
    s_waitcnt lgkmcnt(0)
    s_mov_b32 s24, s68
    s_mov_b32 s25, s69
    s_cmp_eq_u32 s50, 0
    s_cbranch_scc1 {L['nx']}
    buffer_load_dwordx4 v[8:11], v7, s[24:27], s45 offen
    buffer_load_dwordx4 v[12:15], v7, s[24:27], s45 offen offset:64
    buffer_load_dwordx4 v[16:19], v7, s[24:27], s45 offen offset:128
    buffer_load_dwordx4 v[20:23], v7, s[24:27], s45 offen offset:192
    buffer_load_dwordx4 v[24:27], v7, s[24:27], s52 offen
    {L['nx']}:
    """)
    srd(k, 8, 4, XN_OFF, XN_SZ)
    srd(k, 12, 6, 0, 576 * 9216)
    XS = " sc1" if single else ""
    st.init()
    def half_dma(srdr, v, soff, mbase, mods=""):
        k(f"s_add_u32 m0, s{mbase}, s49")
        k("s_mov_b32 exec_hi, 0")
        k(f"buffer_load_dwordx4 v{v}, s[{srdr}:{srdr+3}], s{soff} offen{mods} lds")
        k("s_mov_b32 exec_hi, -1")
    def i1A():
        k("s_add_u32 m0, s41, s49")
        for n in range(4):
            if n: k(f"s_add_u32 m0, m0, 1024\ns_add_u32 s50, s42, {n*8*1152}")
            k(f"buffer_load_dwordx4 v{105+(n&1)}, s[76:79], s{50 if n else 42} offen lds")
        k("s_add_u32 s42, s42, 128")
    def i1B():
        gat_dma(k, 4, 12, 43, 47, 49, 100); half_dma(12, 104, 43, 48); k(f"s_add_u32 s43, s43, {64*9216}")
    def issue1():
        i1A(); i1B(); slot_adv_prod(k, R, SZ, 49)
    Lne = k.lab("ne")
    srd(k, 76, 68, 0, 2048 * 1152)
    for r in range(100, 107): k(f"v_mov_b32 v{r}, 0")
    k(f"s_cmp_lt_u32 s33, 4\ns_cbranch_scc1 {Lne}")
    srd(k, 28, 74, 0, 256)
    Lnp = k.lab("npub")
    k(f"""
    s_xor_b32 s50, s33, 6
    s_or_b32 s50, s50, s2
    s_cmp_lg_u32 s50, 0
    s_cbranch_scc1 {Lnp}
    s_memrealtime s[50:51]
    v_mov_b32 v4, 0
    s_waitcnt lgkmcnt(0)
    s_or_b32 s50, s50, 1
    v_mov_b32 v5, s50
    s_mov_b64 exec, 1
    buffer_store_dword v5, v4, s[28:31], 0 offen sc1
    s_mov_b64 exec, -1
    {Lnp}:
    """)
    k(f"""
    s_sub_u32 s40, s33, 4            ; pw
    s_lshl_b32 s41, s40, 12          ; A lds
    s_mul_i32 s42, s36, {128*1152}
    s_mul_i32 s50, s40, {32*1152}
    s_add_u32 s42, s42, s50
    s_mul_i32 s43, s37, 288
    s_add_u32 s43, s43, 4608         ; B goff
    s_add_u32 s47, s41, {BO1}        ; B lds
    s_lshl_b32 s48, s40, 9
    s_add_u32 s48, s48, {BO1+16384}
    s_mov_b32 s49, 0
    v_lshrrev_b32 v106, 4, v0
    v_and_b32 v105, 7, v0
    v_xor_b32 v105, v105, v106
    v_lshrrev_b32 v106, 3, v0
    v_mul_u32_u24 v106, 1152, v106
    v_lshl_add_u32 v105, v105, 4, v106
    v_and_b32 v107, 64, v105
    v_lshlrev_b32 v107, 1, v107
    v_add_u32 v106, 64, v105
    v_sub_u32 v106, v106, v107
    s_lshl_b32 s51, s40, 8
    """)
    i1A()
    k("s_mov_b32 m0, s47")
    for n in range(4):
        w144_voff(k, 100 + n, 51, 9216)
        k("s_add_u32 s51, s51, 64")
        k(f"buffer_load_dwordx4 v{100+n}, s[12:15], s43 offen lds")
        k("s_add_u32 m0, m0, 1024")
    k("s_lshl_b32 s51, s40, 5\ns_add_u32 s51, s51, 1024")
    w144_voff(k, 104, 51, 9216)
    half_dma(12, 104, 43, 48)
    k(f"s_add_u32 s43, s43, {64*9216}\ns_mov_b32 s49, {SZ}")
    i1A(); i1B()
    k.label(Lne)
    if single:
        st(250)
        phase0(k, st, L)
        st(250)
    k(f"s_cmp_ge_u32 s33, 4\ns_cbranch_scc1 {L['D']}")
    srd(k, 16, 4, A3_OFF, A3_SZ)
    def loop2(reads, half, adv, vmw):
        Ltop = k.lab("top")
        k("s_mov_b32 s58, 8")
        k("s_barrier")
        st()
        for r in reads(0, 0): k(r)
        k("s_waitcnt lgkmcnt(0)")
        if vmw: k("s_barrier")
        half(0, reads(1, 1) + adv, True)
        k("s_waitcnt vmcnt(0) lgkmcnt(0)")
        k.label(Ltop)
        k("s_barrier")
        half(1, reads(0, 0), False)
        k("s_waitcnt lgkmcnt(0)")
        half(0, reads(1, 1) + adv + CNT, False)
        k("s_waitcnt lgkmcnt(0)")
        k(f"s_cbranch_scc1 {Ltop}")
        st()
    st()
    ACC, BUF, CS, ONE = 144, [0, 36, 72, 108], 224, 244
    VA0, VA1, VB, VL16 = 248, 249, 250, 251
    acc = lambda i, j: ACC + (i * 5 + j) * 4
    k(f"""
    s_mov_b32 s40, s33
    s_and_b32 s41, s40, 1            ; wm
    s_lshr_b32 s42, s40, 1           ; wn
    v_and_b32 v2, 15, v0
    v_lshrrev_b32 v3, 4, v0
    v_lshrrev_b32 v{VA0}, 1, v2
    v_xor_b32 v{VA0}, v3, v{VA0}
    v_lshlrev_b32 v{VA0}, 4, v{VA0}
    v_lshl_add_u32 v{VA0}, v2, 7, v{VA0}
    s_lshl_b32 s43, s41, 13
    v_add_u32 v{VA0}, s43, v{VA0}
    v_xor_b32 v{VA1}, 64, v{VA0}
    """)
    for r in range(4): k(f"v_mov_b32 v{ONE+r}, 0x3f803f80")
    tr_lane_base(k, VB, 288, 2)
    k(f"s_mul_i32 s43, s42, 160\ns_add_u32 s43, s43, {BO1}\nv_add_u32 v{VB}, s43, v{VB}")
    k(f"""
    s_cmp_eq_u32 s42, 0
    s_cselect_b64 vcc, -1, 0
    s_cselect_b32 s54, -1, 0
    s_mul_i32 s46, s41, {18*1024}
    s_mul_i32 s47, s42, {5*1024}
    s_add_u32 s46, s46, s47
    s_add_u32 s46, s46, {2*SZ}
    v_add_u32 v{VL16}, s46, v1
    """)
    C, T, O, SM, NM, RR = 0, 8, 72, 80, 112, 128
    adv_setup(k, R, SZ)
    def reads1(sub, b):
        o = [f"ds_read_b128 {vr(BUF[b]+i*4,4)}, v{VA1 if sub else VA0} offset:{i*2048}" for i in range(4)]
        for j in range(5):
            for hh in range(2):
                o.append(f"ds_read_b64_tr_b16 {vr(BUF[b]+16+j*4+hh*2,2)}, v{VB} offset:{sub*32*288+hh*8*288+j*32}")
        return o
    def mf1(b, seq, zero):
        return [f"v_mfma_f32_16x16x32_bf16 {vr(acc(i,j) if i < 4 else CS+4*j,4)}, {vr(BUF[b]+i*4 if i < 4 else ONE,4)}, {vr(BUF[b]+16+j*4,4)}, "
                f"{'0' if zero else vr(acc(i,j) if i < 4 else CS+4*j,4)}" for j, i in seq]
    def half1(b, other, zero):
        for x in interleave(mf1(b, snake(4, 5), zero), other): k(x)
        Ls = k.lab("sk")
        k(f"s_cbranch_vccz {Ls}")
        for x in mf1(b, [(4, i) for i in range(5)], zero): k(x)
        k.label(Ls)
    tag = lambda: k(f"v_mov_b32 v{ONE-1}, {HSC}\nds_read_b32 v{ONE-1}, v{ONE-1}\ns_waitcnt lgkmcnt(0)\nv_readfirstlane_b32 s101, v{ONE-1}")
    lp = loop4(k, 9, reads1, half1, adv_ins(R, [VA0, VA1, VB]), st, vm_first=True)
    assert lp == 0
    k("s_barrier")
    k(f"""
    v_mbcnt_lo_u32_b32 v{VB}, -1, 0
    v_mbcnt_hi_u32_b32 v{VB}, -1, v{VB}  ; lane
    v_and_b32 v{VA0}, 48, v{VB}
    s_lshl_b32 s43, s41, 9
    s_add_u32 s43, s43, {RSC}
    v_add_u32 v{VA0}, s43, v{VA0}
    """)
    rs = [f"ds_read_b128 {vr(NM+4*i,4)}, v{VA0} offset:{i*128}" for i in range(4)] + [f"ds_read_b128 {vr(RR+4*i,4)}, v{VA0} offset:{i*128+64}" for i in range(4)]
    half1(0, rs + [f"v_mov_b32 v{r}, 0" for r in range(SM, SM + 12)], False)
    half1(1, [f"v_mov_b32 v{r}, 0" for r in range(SM + 12, SM + 32)], False)
    gelu_consts(k, C)
    k(f"v_mov_b32 v6, {HSC}\nds_read_b32 v6, v6\ns_waitcnt lgkmcnt(0)\nv_readfirstlane_b32 s101, v6")
    VLN = VB
    n = 0
    for jj in range(5):
        if jj == 4:
            Ls = k.lab("us"); k(f"s_cbranch_vccz {Ls}")
        for P in range(2):
            a, b = acc(2 * P, jj), acc(2 * P + 1, jj)
            for x, q in enumerate([a, a + 2, b, b + 2]): k(f"v_pk_fma_f32 {vr(q,2)}, {vr(NM+8*P+2*x,2)}, {vr(CS+4*jj,2)}, {vr(q,2)}")
            for x, q in enumerate([a, a + 2, b, b + 2]): k(f"v_pk_mul_f32 {vr(q,2)}, {vr(q,2)}, {vr(RR+8*P+2*x,2)}")
            gelu(k, [a, a + 2, b, b + 2], T, C)
            o = O + (n & 1) * 4; n += 1
            for x, q in enumerate([a, a + 2, b, b + 2]): k(f"v_cvt_pk_bf16_f32 v{o+x}, v{q}, v{q+1}")
            k(f"ds_write_b128 v{VL16}, {vr(o,4)} offset:{(P*9+jj)*1024}")
            for e, q in enumerate([a, b]):
                i = 2 * P + e
                for h in range(2):
                    k(f"v_pk_add_f32 {vr(SM+4*i+2*h,2)}, {vr(SM+4*i+2*h,2)}, {vr(q+2*h,2)}")
                    k(f"v_pk_fma_f32 {vr(SM+16+4*i+2*h,2)}, {vr(q+2*h,2)}, {vr(q+2*h,2)}, {vr(SM+16+4*i+2*h,2)}")
    k.label(Ls)
    for m in range(1, 4):
        v = 0x11111111 << m
        k(f"s_mov_b32 s{58+2*m}, {v:#x}\ns_mov_b32 s{59+2*m}, {v:#x}")
    val = lambda P, i: SM + (i & 1) * 16 + (2 * P + (i >> 3)) * 4 + ((i >> 1) & 3)
    sets = [[val(P, i) for i in range(16)] for P in range(2)]
    reduce16(k, sets, 60)
    k(f"""
    s_lshl_b32 s46, s40, 9
    s_add_u32 s46, s46, {2*SZ+36864}
    v_lshlrev_b32 v{T+1}, 2, v{VLN}
    v_add_u32 v{T+1}, s46, v{T+1}
    ds_write_b32 v{T+1}, v{sets[0][0]}
    ds_write_b32 v{T+1}, v{sets[1][0]} offset:256
    v_mov_b32 v0, v{VLN}
    v_lshlrev_b32 v1, 4, v0
    """)
    Lq, Ld = k.lab("cq"), k.lab("cd")
    ZA, ZB, ZL16, ZL8 = 248, 249, 250, 251
    QA, QBE, QBO, QW = 248, 249, 250, 251
    k(f"s_cmp_lg_u32 s32, 0\ns_cbranch_scc1 {Lq}")
    k(f"""
    v_mov_b32 v{ZL16}, v1
    v_lshrrev_b32 v2, 5, v0
    v_lshlrev_b32 v2, 8, v2
    v_and_b32 v3, 15, v0
    v_lshl_add_u32 v2, v3, 4, v2
    v_bfe_u32 v3, v0, 4, 1
    v_lshl_add_u32 v{ZL8}, v3, 3, v2
    s_lshl_b32 s50, s40, 13
    v_add_u32 v{ZA}, s50, v1
    """)
    tr_lane_base(k, ZB, 288, 2)
    k(f"v_add_u32 v{ZB}, {BOZ}, v{ZB}")
    k(f"s_branch {Ld}")
    k.label(Lq)
    k(f"s_mul_i32 s50, s41, 10240\nv_add_u32 v{QA}, s50, v1")
    k(f"""
    s_mul_i32 s50, s42, {7*2048}
    s_add_u32 s50, s50, {BOQ}
    v_add_u32 v{QBE}, s50, v1
    v_and_b32 v2, 15, v0
    s_mul_i32 s50, s41, 80
    v_add_u32 v2, s50, v2
    v_mul_u32_u24 v{QW}, 440, v2
    v_lshrrev_b32 v2, 4, v0
    v_lshl_add_u32 v{QW}, v2, 3, v{QW}
    s_mul_i32 s50, s42, 224
    s_add_u32 s50, s50, {ATT}
    v_add_u32 v{QW}, s50, v{QW}
    """)
    k.label(Ld)
    k("s_waitcnt vmcnt(0) lgkmcnt(0)")
    st()
    k(f"s_cmp_lg_u32 s32, 0\ns_cbranch_scc1 {L['C2q']}")
    ACZ, BZ = 104, [0, 52]
    acz = lambda i, j: ACZ + (i * 9 + j) * 4
    def readsz(sub, b):
        o = [f"ds_read_b128 {vr(BZ[b]+i*4,4)}, v{ZA} offset:{i*2048+sub*1024}" for i in range(4)]
        for j in range(9):
            for hh in range(2):
                o.append(f"ds_read_b64_tr_b16 {vr(BZ[b]+16+j*4+hh*2,2)}, v{ZB} offset:{sub*32*288+hh*8*288+j*32}")
        return o
    def halfz(b, other, zero):
        mf = [f"v_mfma_f32_16x16x32_bf16 {vr(acz(i,j),4)}, {vr(BZ[b]+16+j*4,4)}, {vr(BZ[b]+i*4,4)}, {'0' if zero else vr(acz(i,j),4)}"
              for i, j in snake(4, 9)]
        for x in interleave(mf, other): k(x)
    loop2(readsz, halfz, adv_ins(R, [ZA, ZB]), True)
    halfz(1, [], False)
    C, T, O = 0, 8, 16
    gelu_consts(k, C)
    k(f"""
    s_lshl_b32 s46, s38, 4
    s_lshl_b32 s47, s40, 2
    s_add_u32 s46, s46, s47          ; tfrag0
    s_mul_i32 s46, s46, {TFS}
    s_bfe_u32 s47, s39, 0x10001
    s_lshl_b32 s47, s47, 2
    s_lshr_b32 s48, s39, 2
    s_add_u32 s47, s47, s48
    s_mul_i32 s47, s47, 9216
    s_add_u32 s46, s46, s47
    s_and_b32 s47, s39, 1
    s_lshl_b32 s48, s47, 9
    s_add_u32 s48, s48, s46
    s_add_u32 s48, s48, {(18+8)*1024}
    s_lshl_b32 s47, s47, 12
    s_add_u32 s46, s46, s47
    s_add_u32 s46, s46, {18*1024}
    """)
    n = 0
    for i in range(4):
        for p in range(4):
            a, b = acz(i, 2 * p), acz(i, 2 * p + 1)
            gelu(k, [a, a + 2, b, b + 2], T, C)
            o = O + (n & 1) * 4; n += 1
            for x, q in enumerate([a, a + 2, b, b + 2]): k(f"v_cvt_pk_bf16_f32 v{o+x}, v{q}, v{q+1}")
            k(f"buffer_store_dwordx4 {vr(o,4)}, v{ZL16}, s[16:19], s46 offen offset:{p*1024} sc1")
        if i < 3: k(f"s_add_u32 s46, s46, {TFS}\ns_add_u32 s{49+i}, s{48+i}, {TFS}")
    for i in (0, 2):
        a, b = acz(i, 8), acz(i + 1, 8)
        gelu(k, [a, a + 2, b, b + 2], T, C)
        o = O + (n & 1) * 4; n += 1
        for x, q in enumerate([a, a + 2, b, b + 2]): k(f"v_cvt_pk_bf16_f32 v{o+x}, v{q}, v{q+1}")
        k(f"buffer_store_dwordx2 {vr(o,2)}, v{ZL8}, s[16:19], s{48+i} offen sc1")
        k(f"buffer_store_dwordx2 {vr(o+2,2)}, v{ZL8}, s[16:19], s{49+i} offen sc1")
    if stamps and not fused:
        st(); k("s_waitcnt vmcnt(0)"); st()
    k(f"s_branch {L['g2C']}" if fused else "s_endpgm")
    k.label(L["D"])
    if OPT.get("pd", 3): k(f"s_setprio {OPT.get('pd', 3)}")
    k(f"""
    s_add_u32 s47, s41, {BO1}        ; B lds
    s_lshl_b32 s48, s40, 9
    s_add_u32 s48, s48, {BO1+16384}
    s_mov_b32 s49, {2*SZ}
    """)
    def setup2():
        srd(k, 72, 4, W1_OFF, W12_SZ)
        srd(k, 16, 4, A3_OFF, A3_SZ)
        srd(k, 20, 4, ST_OFF, ST_SZ)
        srd(k, 24, 66, 0, 2048 * 4096)
        srd(k, 80, 4, Z2T_OFF, Z2T_SZ)
        srd(k, 84, 4, FLG_OFF, FLG_SZ)
        Lq, Ld = k.lab("dq"), k.lab("dd")
        k(f"""
        s_cmp_lg_u32 s32, 0
        s_cbranch_scc1 {Lq}
        s_lshl_b32 s63, s40, 13          ; A lds
        s_lshl_b32 s60, s38, 15
        s_add_u32 s60, s60, s63          ; A goff
        s_mul_i32 s61, s39, 288          ; B goff
        s_add_u32 s88, s41, {BOZ}
        s_lshl_b32 s89, s40, 9
        s_add_u32 s89, s89, {BOZ+16384}
        s_mov_b32 s62, 0
        s_branch {Ld}
        {Lq}:
        s_lshl_b32 s60, s38, 14
        s_lshl_b32 s89, s40, 9
        s_sub_u32 s62, s60, 2048
        s_cmp_eq_u32 s38, 0
        s_cselect_b32 s62, 0, s62
        s_add_u32 s62, s62, s89
        s_add_u32 s60, s60, s41          ; A goff
        s_add_u32 s63, s41, 2048
        s_mul_i32 s61, s39, {9*28672}
        s_mul_i32 s88, s40, 7168
        s_add_u32 s61, s61, s88
        s_add_u32 s88, s88, {BOQ}
        """)
        k.label(Ld)
        k(f"""
        v_lshlrev_b32 v28, 7, v0
        s_lshl_b32 s44, s2, 2
        s_add_u32 s44, s44, s40
        s_lshl_b32 s44, s44, 13
        v_lshlrev_b32 v29, 2, v0
        v_lshrrev_b32 v30, 4, v0
        v_lshlrev_b32 v30, 5, v30
        s_lshl_b32 s45, s36, 10
        s_lshl_b32 s50, s40, 8
        s_add_u32 s45, s45, s50
        s_mul_i32 s50, s40, {9*1024}
        s_add_u32 s50, s50, {2*SZ}
        v_add_u32 v31, s50, v1
        s_lshl_b32 s46, s36, 1
        s_lshr_b32 s50, s40, 1
        s_add_u32 s46, s46, s50
        s_mul_i32 s46, s46, 144
        s_mul_i32 s50, s37, 9
        s_add_u32 s46, s46, s50
        s_lshl_b32 s46, s46, 11
        s_and_b32 s50, s40, 1
        s_lshl_b32 s50, s50, 10
        s_add_u32 s46, s46, s50          ; Z2T offset
        s_lshl_b32 s53, s36, 11
        s_add_u32 s53, s53, {F1}         ; F1 row
        v_lshrrev_b32 v26, 2, v0
        v_lshlrev_b32 v26, 7, v26
        v_and_b32 v2, 3, v0
        v_lshl_add_u32 v26, v2, 2, v26
        s_lshl_b32 s50, s40, 9
        s_add_u32 s50, s50, {2*SZ+36864}
        v_add_u32 v35, s50, v29
        v_bfe_u32 v27, v0, 3, 1
        v_lshlrev_b32 v27, 5, v27
        v_lshrrev_b32 v2, 4, v0
        v_lshl_add_u32 v27, v2, 3, v27
        v_and_b32 v2, 7, v0
        v_add_lshl_u32 v27, v27, v2, 2
        s_lshl_b32 s55, s36, 10
        s_and_b32 s50, s40, 1
        s_lshl_b32 s50, s50, 9
        s_add_u32 s55, s55, s50
        """)
    setup2()
    k("s_waitcnt vmcnt(9) lgkmcnt(0)")
    k("s_barrier")
    st(250)
    k(f"s_load_dwordx2 s[56:57], s[0:1], {KA['dbg']}\ns_waitcnt lgkmcnt(0)")
    srd(k, 28, 56, 0, 256)
    k("v_mov_b32 v34, 0")
    ldn = lambda: k("buffer_load_dword v33, v34, s[28:31], 0 offen sc1")
    Lt = k.lab("tg")
    k(f"s_cmp_lg_u32 s40, 2\ns_cbranch_scc1 {Lt}")
    ldn()
    k.label(Lt)
    issue1()
    def ploop(n, iss, allowed):
        Lp = k.lab("pl")
        k(f"s_mov_b32 s58, {n}")
        k.label(Lp)
        k(f"s_waitcnt vmcnt({allowed})")
        k("s_barrier")
        iss()
        k(f"s_sub_u32 s58, s58, 1\ns_cmp_lg_u32 s58, 0\ns_cbranch_scc1 {Lp}")
    k("s_waitcnt vmcnt(9)")
    Lt = k.lab("tg")
    k(f"s_cmp_lg_u32 s40, 2\ns_cbranch_scc1 {Lt}")
    spin(k, ldn, lambda: k("v_cmp_eq_u32 vcc, 0, v33"))
    k(f"v_readfirstlane_b32 s101, v33\nv_mov_b32 v34, {HSC}\nds_write_b32 v34, v33\ns_waitcnt lgkmcnt(0)")
    k.label(Lt)
    k("s_barrier")
    issue1()
    k(f"v_mov_b32 v33, {HSC}\nds_read_b32 v33, v33\ns_waitcnt vmcnt(9) lgkmcnt(0)\nv_readfirstlane_b32 s101, v33")
    k("s_barrier")
    Lnb = k.lab("nb")
    k(f"""
    s_cmp_lg_u32 s40, 0
    s_cbranch_scc1 {Lnb}
    v_mov_b32 v33, s101
    s_mov_b32 s51, {F5}
    s_cmp_eq_u32 s32, 0
    s_cselect_b32 s51, s51, {F0}
    s_lshl_b32 s50, s3, 7
    s_add_u32 s50, s50, s51
    s_mov_b32 exec_hi, 0
    buffer_store_dword v33, v29, s[84:87], s50 offen sc1
    s_mov_b32 exec_hi, -1
    """)
    k.label(Lnb)
    issue1()
    ploop(4, issue1, 9)
    def issue2():
        Lq, Ld = k.lab("iq"), k.lab("id")
        k(f"s_cmp_lg_u32 s32, 0\ns_cbranch_scc1 {Lq}")
        lin_dma(k, 8, 8, 60, 63, 49, mods=XS); gat_dma(k, 4, 12, 61, 88, 49, 100); half_dma(12, 104, 61, 89)
        k(f"s_add_u32 s61, s61, {64*9216}\ns_branch {Ld}")
        k.label(Lq)
        lin_dma(k, 4, 8, 60, 63, 49, mods=XS); half_dma(8, 1, 62, 89, XS); lin_dma(k, 7, 72, 61, 88, 49, mods=XS)
        k(f"s_add_u32 s62, s62, {128*2048}\ns_add_u32 s61, s61, 28672")
        k.label(Ld)
        k(f"s_add_u32 s60, s60, {128*2048}")
        slot_adv_prod(k, R, SZ, 49)
    N2 = 12
    if single:
        k(f"""
        s_lshl_b32 s54, s38, 3
        s_lshl_b32 s50, s38, 4
        s_cmp_eq_u32 s32, 0
        s_cselect_b32 s54, s50, s54
        s_max_u32 s54, s54, 1
        s_min_u32 s54, s54, 112
        s_lshl_b32 s54, s54, 7
        s_add_u32 s54, s54, {F0 - 128}
        """)
        k(f"""
        s_lshl_b32 s50, s36, 10
        s_add_u32 s50, s50, {F0 - 17*128}
        v_cmp_gt_u32 vcc, 17, v0
        v_mov_b32 v24, s50
        v_mov_b32 v25, s54
        v_cndmask_b32 v24, v24, v25, vcc
        v_add_u32 v24, v24, v28
        v_subrev_u32 v25, 25, v0
        v_lshrrev_b32 v22, 1, v25
        v_lshlrev_b32 v22, 4, v22
        v_and_b32 v25, 1, v25
        v_sub_u32 v22, v22, v25
        s_lshl_b32 s50, s39, 1
        s_sub_u32 s50, 15, s50
        v_add_u32 v22, s50, v22
        v_lshlrev_b32 v22, 7, v22
        v_add_u32 v22, {F5}, v22
        v_cmp_gt_u32 vcc, 25, v0
        s_cmp_eq_u32 s32, 0
        s_cselect_b32 s57, 0, 0x1ff
        s_cselect_b32 s56, 0x1ffffff, -1
        v_cndmask_b32 v24, v22, v24, vcc
        """)
        def ldb():
            k("s_mov_b64 exec, s[56:57]\nbuffer_load_dword v33, v24, s[84:87], 0 offen sc1\ns_mov_b64 exec, -1")
        k("v_mov_b32 v33, s101")
        ldb()
    k("s_waitcnt vmcnt(10)")
    k("s_barrier")
    k("s_waitcnt vmcnt(0)")
    spin(k, ldb, lambda: k("v_cmp_ne_u32 vcc, s101, v33"))
    srd(k, 28, 4, RS_OFF, RS_SZ)
    k(f"s_lshl_b32 s50, s36, 10\ns_mov_b32 m0, {RSC}\nbuffer_load_dwordx4 v1, s[28:31], s50 offen sc1 lds")
    issue2()
    k(f"s_waitcnt vmcnt({N2})")
    k("s_barrier")
    issue2()
    k("s_barrier")
    k("buffer_load_dword v32, v28, s[24:27], s44 offen")
    Lx = k.lab("xw")
    k(f"""
    s_load_dwordx2 s[28:29], s[0:1], {KA['wo']}
    s_load_dwordx2 s[30:31], s[0:1], {KA['w_out']}
    s_load_dwordx2 s[56:57], s[0:1], {KA['b_sp']}
    s_and_b32 s50, s34, 3
    s_lshl_b32 s50, s50, 3
    s_and_b32 s51, s35, 7
    s_add_u32 s50, s50, s51          ; mt3
    s_mul_i32 s50, s50, {64*1152}
    s_lshr_b32 s51, s34, 2
    s_lshl_b32 s51, s51, 2
    s_lshr_b32 s54, s35, 3
    s_add_u32 s51, s51, s54          ; nt3
    s_mul_i32 s51, s51, 144
    s_add_u32 s54, s50, s51
    s_mov_b32 s76, s68
    s_mov_b32 s77, s69
    s_mov_b32 s78, {2048*1152}
    s_mov_b32 s79, 0x20000
    s_lshl_b32 s51, s40, 6
    s_lshl_b32 s50, s40, 10
    s_add_u32 m0, s50, {XSC}
    """)
    for n in range(3):
        if n == 2: k(f"s_cmp_lg_u32 s40, 0\ns_cbranch_scc1 {Lx}")
        k(f"""
        v_add_u32 v2, s51, v0
        v_mul_u32_u24 v3, 3641, v2
        v_lshrrev_b32 v3, 15, v3         ; id/9
        v_mul_u32_u24 v3, {1152-144}, v3
        v_lshl_add_u32 v2, v2, 4, v3
        buffer_load_dwordx4 v2, s[76:79], s54 offen lds
        s_add_u32 s51, s51, 256
        s_add_u32 m0, m0, 4096
        """)
    k(f"""
    s_waitcnt lgkmcnt(0)
    s_mov_b32 s76, s56
    s_mov_b32 s77, s57
    s_mov_b32 s78, 4096
    s_mov_b32 s79, 0x20000
    s_lshl_b32 s50, s36, 8
    s_mov_b32 m0, {BSC}
    s_mov_b64 exec, 0xffff
    buffer_load_dwordx4 v1, s[76:79], s50 offen lds
    s_mov_b64 exec, -1
    {Lx}:
    s_lshr_b32 s50, s44, 13
    s_sub_u32 s51, s50, 81
    s_waitcnt lgkmcnt(0)
    s_cmp_lt_u32 s50, 81
    s_cselect_b32 s24, s28, s30
    s_cselect_b32 s25, s29, s31
    s_cselect_b32 s50, s50, s51
    s_mov_b32 s26, {2304*1152}
    s_cselect_b32 s26, {576*1152}, s26
    s_mov_b32 s27, 0x20000
    s_lshl_b32 s50, s50, 13
    buffer_load_dword v240, v28, s[24:27], s50 offen
    """)
    NX = 4
    k(f"s_waitcnt vmcnt({N2+NX})")
    k("s_barrier")
    Z = 64
    for j in range(9): k(f"ds_read_b128 {vr(Z+4*j,4)}, v31 offset:{j*1024}")
    k(f"""
    ds_read_b32 v34, v35
    ds_read_b32 v33, v35 offset:256
    s_waitcnt lgkmcnt(0)
    s_barrier
    buffer_atomic_add_f32 v34, v27, s[20:23], s55 offen
    buffer_atomic_add_f32 v33, v27, s[20:23], s55 offen offset:256
    """)
    issue2()
    k(f"s_waitcnt vmcnt({N2+2+NX})")
    k("s_barrier")
    issue2()
    k(f"s_waitcnt vmcnt({N2})")
    set_flag(k, f"s_lshl_b32 s50, s37, 7\ns_add_u32 s50, s50, s53\ns_lshl_b32 s51, s40, 2\ns_add_u32 s50, s50, s51", 33)
    k("s_barrier")
    issue2()
    PB = OPT.get("pb", 13)
    if PB > 12: ploop(PB - 12, issue2, N2)
    ld1 = lambda: k("buffer_load_dword v33, v26, s[84:87], s53 offen sc1")
    ld1()
    k(f"s_waitcnt vmcnt({N2+1})")
    k("s_barrier")
    issue2()
    k(f"s_waitcnt vmcnt({N2})")
    spin(k, ld1, lambda: k("v_cmp_ne_u32 vcc, s101, v33"))
    for i in range(4): k(f"buffer_load_dwordx4 {vr(36+4*i,4)}, v30, s[20:23], s45 offen offset:{(i>>1)*128+(i&1)*16} sc1")
    k("s_barrier")
    st(250)
    vm = [("L%d" % (PB + 2), N2), ("s", 4)]
    def allowed(tag):
        n = 0
        for t, c in reversed(vm):
            if t == tag: return n
            n += c
        raise KeyError(tag)
    def rcalc():
        k(f"s_waitcnt vmcnt({allowed('s')})")
        inv = f2u(1.0 / 2304)
        for i in range(8): k(f"v_mul_f32 v{36+2*i}, {inv:#x}, v{36+2*i}")
        for i in range(8): k(f"v_mul_f32 v{37+2*i}, {inv:#x}, v{37+2*i}")
        for i in range(8): k(f"v_fma_f32 v{37+2*i}, -v{36+2*i}, v{36+2*i}, v{37+2*i}")
        for i in range(8): k(f"v_max_f32 v{37+2*i}, 0, v{37+2*i}")
        def rnd8(o):
            for i in range(4): k(f"v_cvt_pk_bf16_f32 v{52+i}, v{o+4*i}, v{o+2+4*i}")
            for i in range(4):
                k(f"v_lshlrev_b32 v{o+4*i}, 16, v{52+i}")
                k(f"v_and_b32 v{o+2+4*i}, 0xffff0000, v{52+i}")
        rnd8(36); rnd8(37)
        for i in range(8): k(f"v_add_f32 v{37+2*i}, {f2u(1e-5):#x}, v{37+2*i}")
        rnd8(37)
        for i in range(8): k(f"v_sqrt_f32 v{37+2*i}, v{37+2*i}")
        rnd8(37)
        for i in range(8): k(f"v_rcp_f32 v{37+2*i}, v{37+2*i}")
        for i in range(8): k(f"v_mul_f32 v{36+2*i}, v{36+2*i}, v{37+2*i}")
    def unit(j):
        w, t = Z + 4 * j, 56
        for i in range(4):
            k(f"v_lshlrev_b32 v{t+2*i}, 16, v{w+i}")
            k(f"v_and_b32 v{t+2*i+1}, 0xffff0000, v{w+i}")
        for i in range(8): k(f"v_fma_f32 v{t+i}, v{t+i}, v{37+2*i}, -v{36+2*i}")
        for i in range(4): k(f"v_cvt_pk_bf16_f32 v{w+i}, v{t+2*i}, v{t+2*i+1}")
        k(f"v_permlane32_swap_b32 v{w}, v{w+2}")
        k(f"v_permlane32_swap_b32 v{w+1}, v{w+3}")
        k(f"v_permlane16_swap_b32 v{w}, v{w+2}")
        k(f"v_permlane16_swap_b32 v{w+1}, v{w+3}")
        if j and j % 2 == 0: k("s_add_u32 s46, s46, 4096")
        k(f"buffer_store_dwordx4 {vr(w,4)}, v1, s[80:83], s46 offen offset:{(j&1)*2048} sc1")
        vm.append(("z", 1))
    work = [rcalc] + [(lambda j=j: unit(j)) for j in range(9)]
    split = {13: [[0, 1, 2], [3, 4, 5], [6, 7, 8, 9]], 12: [[0, 1], [2, 3, 4], [5, 6], [7, 8, 9]], 11: [[0], [1, 2], [3, 4], [5, 6], [7, 8, 9]]}[PB]
    for n, b in enumerate(range(PB + 1, 17)):
        if b + 2 <= 17:
            issue2(); vm.append((f"L{b+2}", N2))
        for w_ in split[n]: work[w_]()
        k(f"s_waitcnt vmcnt({allowed(f'L{b+1}')})")
        k("s_barrier")
    st(250)
    k(f"""
    s_lshr_b32 s50, s40, 1
    s_mul_i32 s50, s50, 34816
    s_and_b32 s51, s40, 1
    s_lshl_b32 s51, s51, 10
    s_add_u32 s50, s50, s51
    s_add_u32 s50, s50, 16384
    v_add_u32 v31, s50, v1
    """)
    for j in range(9): k(f"ds_write_b128 v31, {vr(Z+4*j,4)} offset:{j*2048}")
    if fused:
        k("s_waitcnt vmcnt(0) lgkmcnt(0)")
        set_flag(k, f"s_lshl_b32 s50, s37, 11\ns_lshl_b32 s51, s36, 7\ns_add_u32 s50, s50, s51\ns_lshl_b32 s51, s40, 2\ns_add_u32 s50, s50, s51\ns_add_u32 s50, s50, {F2}", 33)
    Lha = k.lab("ha")
    k(f"s_cmp_lg_u32 s32, 0\ns_cbranch_scc1 {Lha}")
    k(f"s_branch {L['g2D']}" if fused else "s_endpgm")
    k.label(Lha)
    k("s_setprio 0")
    k("s_barrier")
    k(f"s_branch {L['att']}")
    k.label(L["C2q"])
    ACQ, BQ = 104, [0, 48]
    acq = lambda i, j: ACQ + (i * 7 + j) * 4
    def readsq(sub, b):
        o = [f"ds_read_b128 {vr(BQ[b]+i*4,4)}, v{QA} offset:{i*2048+sub*1024}" for i in range(5)]
        o += [f"ds_read_b128 {vr(BQ[b]+20+j*4,4)}, v{QBE} offset:{j*2048+sub*1024}" for j in range(7)]
        return o
    def mfq(b, seq, zero):
        return [f"v_mfma_f32_16x16x32_bf16 {vr(acq(i,j),4)}, {vr(BQ[b]+20+j*4,4)}, {vr(BQ[b]+i*4,4)}, {'0' if zero else vr(acq(i,j),4)}"
                for i, j in seq]
    def halfq(b, other, zero):
        for x in interleave(mfq(b, snake(4, 7), zero), other): k(x)
        Ls = k.lab("sk")
        k(f"s_cbranch_vccz {Ls}")
        for x in mfq(b, [(4, j) for j in range(7)], zero): k(x)
        k.label(Ls)
    k("s_cmp_eq_u32 s41, 0\ns_cselect_b64 vcc, -1, 0")
    loop2(readsq, halfq, adv_ins(R, [QA, QBE]), True)
    k("s_barrier")
    def wq(i, j, n):
        a = acq(i, j); o = (n & 3) * 2
        return [f"v_cvt_pk_bf16_f32 v{o}, v{a}, v{a+1}", f"v_cvt_pk_bf16_f32 v{o+1}, v{a+2}, v{a+3}",
                f"ds_write_b64 v{QW}, {vr(o,2)} offset:{i*16*440+j*32}"]
    n = 0
    Ls = k.lab("sk")
    k(f"s_cbranch_vccz {Ls}")
    for x in mfq(1, [(4, j) for j in range(7)], False): k(x)
    k.label(Ls)
    for i in range(5):
        mf = mfq(1, [(i, j) for j in range(7)], False) if i < 4 else []
        for j in range(7):
            if mf: k(mf[j])
            if i > 0 and j < 6:
                for x in wq(i - 1, j, n): k(x)
                n += 1
    Ls = k.lab("sk")
    k(f"s_cbranch_vccz {Ls}")
    for j in range(6):
        for x in wq(4, j, n): k(x)
        n += 1
    k("s_mov_b32 exec_hi, s54")
    for x in wq(4, 6, n): k(x)
    n += 1
    k.label(Ls)
    k("s_mov_b32 exec_hi, s54")
    for i in range(4):
        for x in wq(i, 6, n): k(x)
        n += 1
    k("s_mov_b32 exec_hi, -1")
    k("s_waitcnt lgkmcnt(0)")
    k("v_mbcnt_lo_u32_b32 v0, -1, 0")
    k("v_mbcnt_hi_u32_b32 v0, -1, v0")
    k.label(L["att"])
    k(f"""
    s_and_b32 s55, s33, 3            ; head
    s_lshr_b32 s41, s33, 2
    s_and_b32 s42, s55, 1
    s_lshl_b32 s43, s41, 6
    s_add_u32 s44, s43, 2
    v_add_u32 v2, s44, v0
    v_mul_u32_u24 v2, 440, v2
    s_mul_i32 s44, s55, 36
    s_add_u32 s44, s44, {ATT}
    s_lshl_b32 s45, s42, 2
    s_add_u32 s45, s45, s44
    v_add_u32 v3, s45, v2
    s_xor_b32 s45, s42, 1
    s_lshl_b32 s45, s45, 5
    s_add_u32 s45, s45, s44
    v_add_u32 v2, s45, v2
    s_lshl_b32 s46, s38, 7
    s_add_u32 s46, s46, s43
    v_add_u32 v4, s46, v0            ; t
    s_mov_b32 s21, 0x05040100
    s_mov_b32 s22, 0x07060302
    v_and_b32 v11, 15, v0
    v_lshrrev_b32 v12, 4, v0
    s_lshl_b32 s46, s33, 4
    s_add_u32 s46, s46, 16
    v_add_u32 v13, s46, v11
    v_mul_u32_u24 v13, 440, v13
    v_lshl_add_u32 v13, v12, 4, v13
    v_add_u32 v13, {ATT}, v13
    s_mul_i32 s46, s39, 9
    v_add_u32 v12, s46, v12
    v_lshlrev_b32 v12, 8, v12
    v_lshl_add_u32 v12, v11, 4, v12
    s_lshl_b32 s46, s38, 3
    s_add_u32 s46, s46, s33
    s_mul_i32 s20, s46, {TFS}
    """)
    Lc = k.lab("ac")
    k(f"s_cmp_lt_u32 s33, 4\ns_cbranch_scc1 {Lc}")
    G["setup"]()
    k.label(Lc)
    k("s_barrier")
    st(20)
    Q, KK, VV, LL, PP, OA = 24, 36, 116, 200, 210, 216
    def rdvec(dst, row, part):
        for h in range(4): k(f"ds_read_b64 {vr(dst+2*h,2)}, v3 offset:{row*440+part*144+8*h}")
        k(f"ds_read_b32 v{dst+8}, v2 offset:{row*440+part*144}")
    vecs = [(Q, 14, 0)] + [(KK + 10 * w, 14 - 2 * w, 1) for w in range(8)] + [(VV + 10 * w, 14 - 2 * w, 2) for w in range(8)]
    for v in vecs[:4]: rdvec(*v)
    nxt = 4
    for w in range(8): k(f"v_mov_b32 v{LL+w}, 0")
    for w in range(8):
        k("s_waitcnt lgkmcnt(10)")
        for i in range(9): k(f"v_dot2c_f32_bf16 v{LL+w}, v{Q+i}, v{KK+10*w+i}")
        rdvec(*vecs[nxt]); nxt += 1
    while nxt < len(vecs):
        rdvec(*vecs[nxt]); nxt += 1
    if OPT.get("ast", 0): st(20)
    sc = f2u(18.0 ** -0.5)
    def rndL():
        for i in range(4): k(f"v_cvt_pk_bf16_f32 v{PP+i}, v{LL+2*i}, v{LL+2*i+1}")
        for i in range(4):
            k(f"v_lshlrev_b32 v{LL+2*i}, 16, v{PP+i}")
            k(f"v_and_b32 v{LL+2*i+1}, 0xffff0000, v{PP+i}")
    rndL()
    for w in range(8): k(f"v_mul_f32 v{LL+w}, {sc:#x}, v{LL+w}")
    rndL()
    k(f"v_mov_b32 v6, {f2u(-1e9):#x}")
    for w in range(1, 8):
        k(f"v_cmp_le_u32 s[{24+2*(w&1)}:{25+2*(w&1)}], {2*w}, v4")
        if w > 1: k(f"v_cndmask_b32 v{LL+w-1}, v6, v{LL+w-1}, s[{24+2*((w-1)&1)}:{25+2*((w-1)&1)}]")
    k(f"v_cndmask_b32 v{LL+7}, v6, v{LL+7}, s[26:27]")
    k(f"v_max3_f32 v7, v{LL}, v{LL+1}, v{LL+2}")
    k(f"v_max3_f32 v8, v{LL+3}, v{LL+4}, v{LL+5}")
    k(f"v_max3_f32 v7, v7, v{LL+6}, v{LL+7}")
    k(f"v_max_f32 v7, v7, v8")
    l2e = f2u(math.log2(math.e))
    for w in range(8): k(f"v_sub_f32 v{LL+w}, v{LL+w}, v7")
    for w in range(8): k(f"v_mul_f32 v{LL+w}, {l2e:#x}, v{LL+w}")
    for w in range(8): k(f"v_exp_f32 v{LL+w}, v{LL+w}")
    k(f"v_add_f32 v7, v{LL}, v{LL+1}")
    k(f"v_add_f32 v8, v{LL+2}, v{LL+3}")
    k(f"v_add_f32 v9, v{LL+4}, v{LL+5}")
    k(f"v_add_f32 v10, v{LL+6}, v{LL+7}")
    k("v_add_f32 v7, v7, v8\nv_add_f32 v9, v9, v10\nv_add_f32 v7, v7, v9\nv_rcp_f32 v7, v7")
    for w in range(8): k(f"v_mul_f32 v{LL+w}, v{LL+w}, v7")
    for i in range(4): k(f"v_cvt_pk_bf16_f32 v{PP+i}, v{LL+2*i}, v{LL+2*i+1}")
    if OPT.get("ast", 0): st(20)
    for i in range(18): k(f"v_mov_b32 v{OA+i}, 0")
    k("s_waitcnt lgkmcnt(0)")
    for wp in range(4):
        x, y = VV + 20 * wp, VV + 20 * wp + 10
        for i in range(9):
            k(f"v_perm_b32 v{KK+2*i}, v{y+i}, v{x+i}, s21")
            k(f"v_perm_b32 v{KK+2*i+1}, v{y+i}, v{x+i}, s22")
        for i in range(18): k(f"v_dot2c_f32_bf16 v{OA+i}, v{KK+i}, v{PP+wp}")
    for i in range(9): k(f"v_cvt_pk_bf16_f32 v{Q+i}, v{OA+2*i}, v{OA+2*i+1}")
    if OPT.get("ast", 0): st(20)
    for h in range(4): k(f"ds_write_b64 v3, {vr(Q+2*h,2)} offset:{14*440+8*h}")
    k(f"ds_write_b32 v2, v{Q+8} offset:{14*440}")
    k("s_waitcnt lgkmcnt(0)")
    k("s_barrier")
    if OPT.get("ast", 0): st(20)
    for n in range(3):
        k(f"ds_read_b64 {vr(KK+4*n,2)}, v13 offset:{64*n}")
        k(f"ds_read_b64 {vr(KK+4*n+2,2)}, v13 offset:{64*n+8}")
    for n in range(3):
        k(f"s_waitcnt lgkmcnt({4-2*n})")
        if n == 2: k("s_mov_b64 exec, 0xffff")
        k(f"buffer_store_dwordx4 {vr(KK+4*n,4)}, v12, s[16:19], s20 offen offset:{1024*n} sc1")
    k("s_mov_b64 exec, -1")
    if stamps and not fused:
        st(20); k("s_waitcnt vmcnt(0)"); st(20)
    if fused: k(f"s_branch {L['g2X']}")
    else: k("s_endpgm")

def w3_unit(k):
    Ln, Lg = k.lab("nat"), k.lab("go")
    k(f"""
    s_mul_i32 s20, s3, 3
    s_add_u32 s20, s20, s40          ; unit
    s_cmp_lt_u32 s40, 3
    s_cselect_b32 s20, s20, 360
    s_lshr_b32 s21, s20, 2           ; step
    s_and_b32 s22, s20, 3
    s_lshl_b32 s22, s22, 1
    s_cmp_lt_u32 s21, 18
    s_cselect_b32 s24, s28, s30
    s_cselect_b32 s25, s29, s31
    s_mov_b32 s26, {2304*1152}
    s_cselect_b32 s26, {576*1152}, s26
    s_mov_b32 s27, 0x20000
    s_cbranch_scc1 {Ln}
    s_sub_u32 s50, s21, 18
    s_mul_i32 s55, s50, 57
    s_lshr_b32 s55, s55, 9           ; u
    s_mul_i32 s56, s55, 9
    s_sub_u32 s56, s50, s56          ; v
    s_and_b32 s57, s55, 3
    s_lshl_b32 s57, s57, 1
    s_lshr_b32 s55, s55, 2
    s_add_u32 s55, s55, s57
    s_mul_i32 s55, s55, 288
    s_lshr_b32 s57, s56, 2
    s_mul_i32 s57, s57, 144
    s_and_b32 s50, s56, 3
    s_lshl_b32 s50, s50, 5
    s_add_u32 s57, s57, s50
    s_cmp_eq_u32 s56, 8
    s_cselect_b32 s57, 128, s57
    s_cselect_b32 s28, 4, 16
    s_cselect_b32 s29, 8, 4
    s_cselect_b32 s30, 144, 8
    s_add_u32 s23, s55, s57
    s_branch {Lg}
    {Ln}:
    s_lshl_b32 s23, s21, 5
    s_mov_b32 s28, 4
    s_mov_b32 s29, 8
    s_mov_b32 s30, 16
    {Lg}:
    s_mul_i32 s23, s23, 1152
    s_mul_i32 s50, s22, 144
    s_add_u32 s23, s23, s50
    s_cmp_lt_u32 s20, 360
    s_cselect_b32 s23, s23, 0x7fffffff
    s_mul_i32 s31, s40, 9216
    s_add_u32 s31, s31, 69632
    s_mov_b32 m0, s31
    """)
    for n in range(9):
        k(f"""
        v_add_u32 v12, {n*64}, v0
        v_mul_u32_u24 v13, 3641, v12
        v_lshrrev_b32 v13, 16, v13       ; rho
        v_mul_u32_u24 v14, 18, v13
        v_sub_u32 v12, v12, v14          ; chunk
        v_bfe_u32 v15, v13, 2, 1
        v_mul_u32_u24 v15, s28, v15
        v_bfe_u32 v14, v13, 3, 1
        v_mad_u32_u24 v15, v14, s29, v15
        v_bfe_u32 v14, v13, 4, 1
        v_mad_u32_u24 v15, v14, s30, v15
        v_and_b32 v14, 3, v13
        v_add_u32 v15, v15, v14
        v_mul_u32_u24 v15, 1152, v15
        v_lshl_add_u32 v15, v12, 4, v15
        buffer_load_dwordx4 v15, s[24:27], s23 offen lds
        s_add_u32 m0, m0, 1024
        """)
    k(f"""
    v_lshrrev_b32 v12, 4, v0         ; g
    v_bfe_u32 v13, v0, 2, 2          ; r
    v_and_b32 v14, 3, v0             ; c4
    v_lshl_add_u32 v15, v12, 3, v13
    v_mul_u32_u24 v15, 288, v15
    v_lshl_add_u32 v15, v14, 3, v15
    v_add_u32 v15, s31, v15
    v_and_b32 v12, 1, v12
    v_lshrrev_b32 v16, 1, v14
    v_lshl_add_u32 v12, v12, 1, v16
    v_lshl_add_u32 v12, v12, 3, v13
    v_mul_u32_u24 v12, 288, v12
    v_and_b32 v14, 1, v14
    v_lshl_add_u32 v12, v14, 3, v12
    v_add_u32 v12, s31, v12
    s_lshr_b32 s55, s21, 1
    s_lshl_b32 s55, s55, 3
    s_add_u32 s55, s55, s22
    s_mul_i32 s55, s55, 9216
    s_and_b32 s56, s21, 1
    s_lshl_b32 s57, s56, 9
    s_add_u32 s57, s57, s55
    s_add_u32 s57, s57, 8192
    s_lshl_b32 s56, s56, 10
    s_add_u32 s55, s55, s56
    s_add_u32 s56, s55, 4096
    """)
    k("s_waitcnt vmcnt(0)")
    for e in range(2):
        for j in range(4):
            k(f"ds_read_b64_tr_b16 {vr(100+e*20+j*4,2)}, v15 offset:{e*144+j*32}")
            k(f"ds_read_b64_tr_b16 {vr(102+e*20+j*4,2)}, v15 offset:{e*144+j*32+1152}")
        k(f"ds_read_b64_tr_b16 {vr(116+e*20,2)}, v12 offset:{e*144+128}")
        k(f"ds_read_b64_tr_b16 {vr(118+e*20,2)}, v12 offset:{e*144+128+1152}")
    for e in range(2):
        k(f"s_waitcnt lgkmcnt({10 if e == 0 else 0})")
        for j in range(4):
            k(f"buffer_store_dwordx4 {vr(100+e*20+j*4,4)}, v1, s[68:71], s{55+(j>>1)} offen offset:{(j&1)*2048} sc1")
        k("s_mov_b32 exec_hi, 0")
        k(f"buffer_store_dwordx4 {vr(116+e*20,4)}, v1, s[68:71], s57 offen sc1")
        k("s_mov_b32 exec_hi, -1")
        if e == 0: k("s_add_u32 s55, s55, 9216\ns_add_u32 s56, s56, 9216\ns_add_u32 s57, s57, 9216")

S2, R2, SZ2, BO2 = 32, 3, 34816, 16384
ZS = 104448
S3, R3, SZ3, BO3, LA3, SL0 = 45, 6, 17408, 8192, 4, 4
PL, PF, PA = 244, 245, 246

def tiles(k):
    k("""
    s_and_b32 s38, s34, 3
    s_lshl_b32 s38, s38, 3
    s_and_b32 s39, s35, 7
    s_add_u32 s38, s38, s39
    s_lshr_b32 s39, s34, 2
    s_lshl_b32 s39, s39, 2
    s_lshr_b32 s50, s35, 3
    s_add_u32 s39, s39, s50          ; nt3
    """)

def g2_hooks(k):
    def issueA():
        k("s_add_u32 m0, s41, s49")
        for n in range(4):
            if n: k(f"s_add_u32 m0, m0, 1024\ns_add_u32 s50, s42, {n*32768}")
            k(f"buffer_load_dwordx4 v{PA+(n&1)}, s[8:11], s{50 if n else 42} offen lds")
        k("s_add_u32 s42, s42, s88")
    def issueB():
        lin_dma(k, 4, 12, 43, 47, 49, vl16=PL, mods=" sc1")
        k("s_add_u32 m0, s45, s49")
        k("s_mov_b32 exec_hi, 0")
        k(f"buffer_load_dwordx4 v{PL}, s[12:15], s46 offen sc1 lds")
        k("s_mov_b32 exec_hi, -1")
        k("s_add_u32 s43, s43, s89")
        k("s_add_u32 s46, s46, s89")
    def poll(): k(f"buffer_load_dword v248, v{PF}, s[84:87], s53 offen sc1")
    def setup():
        srd(k, 8, 66, 0, 2048 * 4096)
        srd(k, 12, 4, Z2T_OFF, Z2T_SZ)
        k(f"""
        v_lshlrev_b32 v{PL}, 4, v0
        v_lshrrev_b32 v{PF}, 2, v0
        v_lshlrev_b32 v{PF}, 7, v{PF}
        v_and_b32 v{PA}, 3, v0
        v_lshl_add_u32 v{PF}, v{PA}, 2, v{PF}
        v_lshrrev_b32 v{PA+1}, 4, v0
        v_and_b32 v{PA}, 7, v0
        v_xor_b32 v{PA}, v{PA}, v{PA+1}
        v_lshrrev_b32 v{PA+1}, 3, v0
        v_lshlrev_b32 v{PA+1}, 12, v{PA+1}
        v_lshl_add_u32 v{PA}, v{PA}, 4, v{PA+1}
        v_xor_b32 v{PA+1}, 64, v{PA}
        s_lshl_b32 s41, s40, 12
        s_lshl_b32 s42, s36, 19
        s_lshl_b32 s50, s40, 17
        s_add_u32 s42, s42, s50          ; A goff
        s_mul_i32 s43, s37, 18432
        s_lshl_b32 s45, s40, 9
        s_add_u32 s46, s43, s45
        s_add_u32 s46, s46, 16384        ; B2 goff
        s_add_u32 s43, s43, s41          ; B goff
        s_add_u32 s47, s41, {BO2}
        s_add_u32 s45, s45, {BO2+16384}
        s_lshl_b32 s53, s37, 11
        s_add_u32 s53, s53, {F2}
        s_mov_b32 s100, 0
        s_mov_b32 s49, 0
        s_movk_i32 s88, 128
        s_mov_b32 s89, {144*2048}
        s_lshl_b32 s59, s36, 1
        s_lshl_b32 s50, s36, 8
        s_add_u32 s42, s42, s50
        """)
        issueA()
        k(f"s_mov_b32 s49, {SZ2}")
        issueA()
        k(f"""
        s_lshl_b32 s50, s36, 8
        s_sub_u32 s42, s42, s50
        s_cmp_eq_u32 s36, 0
        s_cselect_b32 s51, 0, 256
        s_cselect_b32 s50, {2*144*2048}, 0
        s_sub_u32 s42, s42, s51
        s_add_u32 s43, s43, s50
        s_add_u32 s46, s46, s50
        s_mov_b32 s49, {2*SZ2}
        """)
        poll()
    return dict(setup=setup, issueA=issueA, issueB=issueB, poll=poll)

def g23_body(k, st, L, G):
    R, SZ, BO = R2, SZ2, BO2
    stamps = st.on
    k.label(L["g2X"])
    k(f"s_cmp_ge_u32 s33, 4\ns_cbranch_scc1 {L['g2D2']}")
    k.label(L["g2C"])
    ACC, BUF, ZR, XT, BR, BP, T = 144, [0, 36, 72, 108], 0, 224, 234, 40, 48
    RW, QQ = 238, 239
    G0, G1, GB, GBH = 241, 242, 243, 244
    VA0, VA1, VB, VL16, VT, GO = 248, 249, 250, 251, 252, 240
    acc = lambda i, j: ACC + (i * 5 + j) * 4
    k(f"""
    s_load_dwordx2 s[66:67], s[0:1], {KA['out']}
    v_mbcnt_lo_u32_b32 v{VL16}, -1, 0
    v_mbcnt_hi_u32_b32 v{VL16}, -1, v{VL16}
    v_lshlrev_b32 v{VL16}, 4, v{VL16}
    s_and_b32 s40, s33, 1            ; wm
    s_lshr_b32 s41, s33, 1           ; wn
    v_bfe_u32 v{RW}, v{VL16}, 4, 4        ; row
    v_lshrrev_b32 v{QQ}, 8, v{VL16}     ; q
    v_lshrrev_b32 v{VA0}, 1, v{RW}
    v_xor_b32 v{VA0}, v{QQ}, v{VA0}
    v_lshlrev_b32 v{VA0}, 4, v{VA0}
    v_lshl_add_u32 v{VA0}, v{RW}, 7, v{VA0}
    s_lshl_b32 s42, s40, 13
    v_add_u32 v{VA0}, s42, v{VA0}
    v_xor_b32 v{VA1}, 64, v{VA0}
    s_lshl_b32 s43, s41, 13
    s_add_u32 s43, s43, {BO}
    v_add_u32 v{VB}, s43, v{VL16}
    s_cmp_eq_u32 s41, 0
    s_cselect_b64 vcc, -1, 0
    """)
    adv_setup(k, R, SZ)
    st()
    def reads(sub, b):
        o = [f"ds_read_b128 {vr(BUF[b]+i*4,4)}, v{VA1 if sub else VA0} offset:{i*2048}" for i in range(4)]
        o += [f"ds_read_b128 {vr(BUF[b]+16+j*4,4)}, v{VB} offset:{(j if j < 4 else 8)*2048+sub*1024}" for j in range(5)]
        return o
    def mf(b, seq, zero):
        return [f"v_mfma_f32_16x16x32_bf16 {vr(acc(i,j),4)}, {vr(BUF[b]+16+j*4,4)}, {vr(BUF[b]+i*4,4)}, {'0' if zero else vr(acc(i,j),4)}"
                for i, j in seq]
    def half(b, other, zero):
        for x in interleave(mf(b, snake(4, 4), zero), other): k(x)
        Ls = k.lab("sk")
        k(f"s_cbranch_vccz {Ls}")
        for x in mf(b, [(3 - i, 4) for i in range(4)], zero): k(x)
        k.label(Ls)
    adv = adv_ins(R, [VA0, VA1, VB])
    def first():
        tiles(k)
        k(f"""
        s_lshl_b32 s46, s36, 3
        s_lshl_b32 s47, s40, 2
        s_add_u32 s46, s46, s47          ; tfrag0
        s_mul_i32 s60, s46, {TFS}
        s_bfe_u32 s47, s37, 0x10001
        s_lshl_b32 s47, s47, 2
        s_lshr_b32 s48, s37, 2
        s_add_u32 s47, s47, s48
        s_mul_i32 s47, s47, 9216
        s_add_u32 s60, s60, s47
        s_and_b32 s47, s37, 1
        s_lshl_b32 s62, s47, 9
        s_add_u32 s62, s62, s60
        s_add_u32 s62, s62, {(18+8)*1024}
        s_lshl_b32 s47, s47, 12
        s_add_u32 s60, s60, s47
        s_lshl_b32 s47, s41, 11
        s_add_u32 s60, s60, s47
        s_add_u32 s60, s60, {18*1024}
        s_mul_i32 s48, s40, {4*4608}
        s_add_u32 s48, s48, {ZS}
        s_waitcnt lgkmcnt(0)
        """)
        srd(k, 16, 4, A3_OFF, A3_SZ)
        srd(k, 76, 66, 0, 2048 * 1152)
        srd(k, 84, 4, FLG_OFF, FLG_SZ)
        pre = f"""
        s_lshl_b32 s47, s40, 6
        v_add_lshl_u32 v{G0}, s47, v{RW}, 1
        v_add_u32 v{G0}, {BSC}, v{G0}
        s_lshl_b32 s47, s40, 5
        s_lshl_b32 s50, s41, 4
        s_add_u32 s47, s47, s50
        v_add_u32 v{GB}, s47, v{RW}
        v_mul_u32_u24 v{GB}, 144, v{GB}
        v_lshl_add_u32 v{GB}, v{QQ}, 3, v{GB}
        v_add_u32 v{GB}, {XSC}, v{GB}
        v_mul_u32_u24 v{GO}, 1152, v{RW}
        v_lshl_add_u32 v{GO}, v{QQ}, 3, v{GO}
        s_lshl_b32 s52, s38, 2
        s_lshl_b32 s47, s40, 1
        s_add_u32 s52, s52, s47
        s_add_u32 s52, s52, s41
        s_mul_i32 s47, s52, {16*1152}
        s_mul_i32 s50, s39, 144
        s_add_u32 s47, s47, s50
        v_lshrrev_b32 v{G1}, 1, v{QQ}
        v_lshlrev_b32 v{G1}, 8, v{G1}
        v_lshl_add_u32 v{G1}, v{RW}, 4, v{G1}
        v_and_b32 v{VT}, 1, v{QQ}
        v_lshl_add_u32 v{VT}, v{VT}, 3, v{G1}
        """.strip().split("\n")
        pre = [x.strip() for x in pre]
        pre += [f"ds_read_u16 v{BR+i}, v{G0} offset:{32*i}" for i in range(4)]
        pre += [f"ds_read_b64 {vr(XT+2*j,2)}, v{GB} offset:{j*32}" for j in range(5)]
        for x in pre: k(x)
    lp = loop4(k, S2, reads, half, adv, st, after_first=first, vm_wait=True)
    assert lp == 1
    k("s_barrier")
    k(f"""
    s_lshl_b32 s50, s41, 11
    s_add_u32 s50, s50, s48
    v_add_u32 v{VA0}, s50, v{VL16}
    v_add_u32 v{VA1}, s48, v{VT}
    """)
    zr = []
    for i in range(4):
        for p in range(2): zr.append(f"ds_read_b128 {vr(ZR+i*10+p*4,4)}, v{VA0} offset:{i*4608+p*1024}")
        zr.append(f"ds_read_b64 {vr(ZR+i*10+8,2)}, v{VA1} offset:{i*4608+4096}")
    for i in range(4): zr += [f"v_lshlrev_b32 v{BP+2*i}, 16, v{BR+i}", f"v_lshlrev_b32 v{BP+2*i+1}, 16, v{BR+i}"]
    half(2, zr[:12], False)
    half(3, zr[12:], False)
    k(f"""
    s_lshl_b32 s42, s40, 12
    s_lshl_b32 s43, s41, 10
    s_add_u32 s42, s42, s43
    s_add_u32 s42, s42, {SL0*SZ3}
    s_lshl_b32 s44, s41, 11
    s_add_u32 s45, s42, s44
    v_add_u32 v{G0}, s45, v{VL16}
    s_xor_b32 s44, s44, 2048
    s_add_u32 s45, s42, s44
    v_add_u32 v{G1}, s45, v{VL16}
    s_add_u32 s45, s43, {BO3+SL0*SZ3}
    v_add_u32 v{GB}, s45, v{VL16}
    v_and_b32 v{RW}, 7, v{RW}
    v_lshl_add_u32 v{RW}, v{QQ}, 3, v{RW}
    v_lshlrev_b32 v{RW}, 4, v{RW}
    s_lshl_b32 s45, s41, 9
    s_add_u32 s45, s45, {BO3+8192+SL0*SZ3}
    v_add_u32 v{GBH}, s45, v{RW}
    s_waitcnt lgkmcnt(0)
    """)
    st()
    def quad(i, j, n):
        a, z, t = acc(i, j), ZR + i * 10 + j * 2, T + (n & 1) * 4
        k(f"""
        v_pk_add_f32 {vr(a,2)}, {vr(a,2)}, {vr(BP+2*i,2)}
        v_pk_add_f32 {vr(a+2,2)}, {vr(a+2,2)}, {vr(BP+2*i,2)}
        v_lshlrev_b32 v{t}, 16, v{z}
        v_and_b32 v{t+1}, 0xffff0000, v{z}
        v_lshlrev_b32 v{t+2}, 16, v{z+1}
        v_and_b32 v{t+3}, 0xffff0000, v{z+1}
        v_pk_mul_f32 {vr(a,2)}, {vr(a,2)}, {vr(t,2)}
        v_pk_mul_f32 {vr(a+2,2)}, {vr(a+2,2)}, {vr(t+2,2)}
        v_cvt_pk_bf16_f32 v{z}, v{a}, v{a+1}
        v_cvt_pk_bf16_f32 v{z+1}, v{a+2}, v{a+3}
        """)
    n = 0
    for i in range(4):
        for j in range(4):
            quad(i, j, n); n += 1
            if j & 1: k(f"buffer_store_dwordx4 {vr(ZR+i*10+(j>>1)*4,4)}, v{VL16}, s[16:19], s60 offen offset:{(j>>1)*1024} sc1")
        if i < 3: k(f"s_add_u32 s60, s60, {TFS}")
    Ls = k.lab("es")
    k(f"s_cbranch_vccz {Ls}")
    for i in range(4):
        quad(i, 4, n); n += 1
        k(f"buffer_store_dwordx2 {vr(ZR+i*10+8,2)}, v{VT}, s[16:19], s62 offen sc1")
        if i < 3: k(f"s_add_u32 s62, s62, {TFS}")
    k.label(Ls)
    AC3, BU3 = 144, [0, 28]
    ac3 = lambda i, j: AC3 + (i * 5 + j) * 4
    for j in range(5):
        for h in range(2):
            k(f"v_lshlrev_b32 v{ac3(0,j)+2*h}, 16, v{XT+2*j+h}")
            k(f"v_and_b32 v{ac3(0,j)+2*h+1}, 0xffff0000, v{XT+2*j+h}")
    for r in range(ac3(1, 0), ac3(1, 4) + 4): k(f"v_mov_b32 v{r}, 0")
    adv_setup(k, R3, SZ3)
    k(f"s_mov_b32 s59, {SL0}")
    st()
    def reads3(sub, b):
        o = [f"ds_read_b128 {vr(BU3[b],4)}, v{G0}", f"ds_read_b128 {vr(BU3[b]+4,4)}, v{G1}"]
        o += [f"ds_read_b128 {vr(BU3[b]+8+j*4,4)}, v{GB} offset:{j*2048}" for j in range(4)]
        o += [f"ds_read_b128 {vr(BU3[b]+24,4)}, v{GBH}"]
        return o
    def mf3(b):
        return [f"v_mfma_f32_16x16x32_bf16 {vr(ac3(i,j),4)}, {vr(BU3[b]+8+j*4,4)}, {vr(BU3[b]+i*4,4)}, {vr(ac3(i,j),4)}"
                for i, j in snake(2, 5)]
    adv3 = adv_ins(R3, [G0, G1, GB, GBH])
    k("s_waitcnt vmcnt(0)")
    set_flag(k, f"s_lshl_b32 s50, s36, 11\ns_lshl_b32 s51, s37, 7\ns_add_u32 s50, s50, s51\ns_lshl_b32 s51, s33, 2\ns_add_u32 s50, s50, s51\ns_add_u32 s50, s50, {F4}", 60)
    k("s_barrier")
    st()
    for r in reads3(0, 0) + adv3: k(r)
    k("s_waitcnt lgkmcnt(0)")
    for b_ in range(OPT.get("fd", 0)):
        k("s_barrier")
        for x in interleave(mf3(b_ & 1), reads3(0, 1 - (b_ & 1)) + adv3): k(x)
        k("s_waitcnt lgkmcnt(0)")
    assert OPT.get("fd", 0) % 2 == 0
    k(f"s_mov_b32 s58, {(S3 - 1 - OPT.get('fd', 0)) // 2}")
    Ltop = k.lab("top")
    k.label(Ltop)
    k("s_barrier")
    for x in interleave(mf3(0), reads3(0, 1) + adv3): k(x)
    k("s_waitcnt lgkmcnt(0)")
    k("s_barrier")
    for x in interleave(mf3(1), reads3(0, 0) + adv3 + CNT): k(x)
    k("s_waitcnt lgkmcnt(0)")
    k(f"s_cbranch_scc1 {Ltop}")
    k("s_barrier")
    last = 0
    st()
    for m in mf3(last): k(m)
    k("s_lshl_b32 s42, s40, 1")
    ksplit_reduce(k, ac3(1, 0), 5, 42, 41, VL16, G0, G1, 0)
    for n in range(5): k(f"ds_read_b128 {vr(ac3(1,0)+n*4,4)}, v{G1} offset:{n*1024}")
    for j in range(5):
        k(f"s_waitcnt lgkmcnt({4-j})")
        a, b = ac3(0, j), ac3(1, j)
        k(f"v_pk_add_f32 {vr(a,2)}, {vr(a,2)}, {vr(b,2)}")
        k(f"v_pk_add_f32 {vr(a+2,2)}, {vr(a+2,2)}, {vr(b+2,2)}")
        k(f"v_cvt_pk_bf16_f32 v{2*j}, v{a}, v{a+1}")
        k(f"v_cvt_pk_bf16_f32 v{2*j+1}, v{a+2}, v{a+3}")
        if j == 4: k("s_mov_b32 exec_hi, 0")
        k(f"buffer_store_dwordx2 {vr(2*j,2)}, v{GO}, s[76:79], s47 offen offset:{j*32}")
    if stamps:
        k("s_mov_b32 exec_hi, -1")
        st(); k("s_waitcnt vmcnt(0)"); st()
    k("s_endpgm")
    k.label(L["g2D"])
    G["setup"]()
    srd(k, 68, 4, W3_OFF, W3_SZ)
    Lw = k.lab("nw")
    k(f"s_cmp_eq_u32 s40, 3\ns_cbranch_scc1 {Lw}")
    w3_unit(k)
    k.label(Lw)
    k("s_waitcnt vmcnt(0)")
    k.label(L["g2D2"])
    if OPT.get("pd", 3): k(f"s_setprio {OPT.get('pd', 3)}")
    k("s_waitcnt vmcnt(3)")
    spin(k, G["poll"], lambda: k("v_cmp_ne_u32 vcc, s101, v248"))
    def issue():
        k(f"s_sub_u32 s59, s59, 1\ns_cmp_eq_u32 s59, 0\ns_cselect_b32 s88, 384, s23\ns_cselect_b32 s89, {3*144*2048}, s30")
        G["issueA"](); G["issueB"](); slot_adv_prod(k, R, SZ, 49)
    k(f"s_movk_i32 s23, 128\ns_mov_b32 s30, {144*2048}")
    def ploop(n, iss, allowed):
        Lp = k.lab("pl")
        k(f"s_mov_b32 s58, {n}")
        k.label(Lp)
        k(f"s_waitcnt vmcnt({allowed})")
        k("s_barrier")
        iss()
        k(f"s_sub_u32 s58, s58, 1\ns_cmp_lg_u32 s58, 0\ns_cbranch_scc1 {Lp}")
    tiles(k)
    srd(k, 68, 4, W3_OFF, W3_SZ)
    k(f"""
    v_mov_b32 v1, v{PL}
    s_lshl_b32 s60, s40, 11          ; g3 A lds
    s_lshl_b32 s61, s38, 2
    s_add_u32 s61, s61, s40
    s_mul_i32 s61, s61, {TFS}        ; g3 A goff
    s_mul_i32 s62, s39, 9216
    s_lshl_b32 s63, s40, 8
    s_add_u32 s48, s62, s63
    s_add_u32 s48, s48, 8192         ; g3 B2 goff
    s_add_u32 s62, s62, s60          ; g3 B goff
    s_add_u32 s65, s60, {BO3}
    s_add_u32 s66, s63, {BO3+8192}
    s_mov_b32 s67, {SL0*SZ3}
    s_lshl_b32 s51, s36, 3
    s_lshl_b32 s52, s40, 1
    s_add_u32 s51, s51, s52
    s_mul_i32 s51, s51, {TFS}
    s_bfe_u32 s50, s37, 0x10001
    s_lshl_b32 s50, s50, 2
    s_lshr_b32 s44, s37, 2
    s_add_u32 s50, s50, s44
    s_mul_i32 s50, s50, 9216
    s_add_u32 s51, s51, s50
    s_and_b32 s50, s37, 1
    s_lshl_b32 s44, s50, 9
    s_add_u32 s44, s44, s51
    s_add_u32 s44, s44, {26*1024}
    s_lshl_b32 s50, s50, 12
    s_add_u32 s51, s51, s50
    s_add_u32 s51, s51, {18*1024}
    s_mul_i32 s52, s52, 4608
    s_add_u32 s52, s52, {ZS}
    s_lshr_b32 s53, s38, 1
    s_lshl_b32 s53, s53, 11
    s_add_u32 s53, s53, {F4}
    s_movk_i32 s54, {F3}
    s_movk_i32 s20, 2048
    s_mov_b32 s21, {8*9216}
    s_lshr_b32 s22, s35, 3
    s_add_u32 s22, s22, s35
    s_and_b32 s22, s22, {(OPT.get("ko", 0) >> 1) & 1}
    """)
    ZB = OPT.get("zb", 21)
    ploop(5, issue, 9)
    Ls = k.lab("f3")
    k(f"s_cmp_lg_u32 s40, 0\ns_cbranch_scc1 {Ls}")
    set_flag(k, f"s_lshl_b32 s50, s2, 2\ns_add_u32 s50, s50, {F3}", 8)
    k.label(Ls)
    ploop(9, issue, 9)
    ploop(ZB - 15, issue, 9)
    ld = lambda: k("buffer_load_dwordx4 v[8:11], v1, s[84:87], s54 offen sc1")
    ld()
    ploop(1, issue, 10)
    k("s_waitcnt vmcnt(9)")
    spin(k, ld, lambda: k("v_xor_b32 v8, s101, v8\nv_xor_b32 v9, s101, v9\nv_xor_b32 v10, s101, v10\nv_xor_b32 v11, s101, v11\nv_or3_b32 v8, v8, v9, v10\nv_or_b32 v8, v8, v11\nv_cmp_ne_u32 vcc, 0, v8"))
    ploop(30 - ZB, issue, 9)
    for e in range(2):
        k(f"s_add_u32 m0, s52, {e*4608}")
        for n in range(4): k(f"buffer_load_dwordx4 v1, s[16:19], s51 offen offset:{n*1024} sc1 lds")
        k(f"s_add_u32 m0, s52, {e*4608+4096}")
        k("s_mov_b32 exec_hi, 0")
        k(f"buffer_load_dwordx4 v1, s[16:19], s44 offen sc1 lds")
        k("s_mov_b32 exec_hi, -1")
        k(f"s_add_u32 s51, s51, {TFS}\ns_add_u32 s44, s44, {TFS}")
    def issue3():
        k("s_add_u32 m0, s60, s67")
        for n in range(2): k(f"buffer_load_dwordx4 v1, s[16:19], s61 offen offset:{n*1024} sc1 lds")
        k("s_add_u32 m0, s65, s67")
        for n in range(2): k(f"buffer_load_dwordx4 v1, s[68:71], s62 offen offset:{n*1024} sc1 lds")
        k("s_add_u32 m0, s66, s67")
        k("s_mov_b64 exec, 0xffff")
        k(f"buffer_load_dwordx4 v1, s[68:71], s48 offen sc1 lds")
        k("s_mov_b64 exec, -1")
        k("s_add_u32 s61, s61, s20")
        k("s_add_u32 s62, s62, s21")
        k("s_add_u32 s48, s48, s21")
        slot_adv_prod(k, R3, SZ3, 67)
    k("s_waitcnt vmcnt(19)")
    k("s_barrier")
    issue3(); issue3()
    k("s_waitcnt vmcnt(20)")
    k("s_barrier")
    k("s_waitcnt vmcnt(10)")
    k("s_barrier")
    issue3(); issue3()
    NW = 0
    if OPT.get("w3l2", 0):
        k(f"""
        s_lshr_b32 s50, s34, 2
        s_mul_i32 s50, s50, {4*9216}
        s_mul_i32 s55, s35, {8*9216}
        s_add_u32 s50, s50, s55
        s_mul_i32 s55, s40, 9216
        s_add_u32 s50, s50, s55
        v_lshlrev_b32 v12, 7, v0
        buffer_load_dword v13, v12, s[68:71], s50 offen
        s_add_u32 s50, s50, {32*8*9216}
        buffer_load_dword v14, v12, s[68:71], s50 offen
        """)
        NW = 2
    ploop(3, issue3, 15 + NW)
    ploop(1, issue3, 15)
    ld4 = lambda: k(f"buffer_load_dword v4, v{PF}, s[84:87], s53 offen sc1")
    if OPT.get("p1", 0):
        k("s_waitcnt vmcnt(15)")
        k("s_barrier")
        issue3()
        Lq = k.lab("q4")
        k(f"s_waitcnt vmcnt(15)\ns_cmp_lg_u32 s40, 0\ns_cbranch_scc1 {Lq}")
        ld4(); k("s_waitcnt vmcnt(0)")
        spin(k, ld4, lambda: k("v_cmp_ne_u32 vcc, s101, v4"))
        k.label(Lq)
        k("s_barrier")
    else:
        ld4()
        k("s_waitcnt vmcnt(16)")
        k("s_barrier")
        issue3()
        k("s_waitcnt vmcnt(16)")
        k("s_barrier")
        k("s_waitcnt vmcnt(5)")
        k("s_mov_b32 exec_lo, 0x00ff00ff\ns_mov_b32 exec_hi, 0x00ff00ff")
        spin(k, ld4, lambda: k("v_cmp_ne_u32 vcc, s101, v4"))
        k("s_mov_b64 exec, -1")
    def jump3(expr):
        k(expr)
        k(f"""
        s_mul_i32 s55, s50, 2048
        s_add_u32 s61, s61, s55
        s_mul_i32 s55, s50, {8*9216}
        s_add_u32 s62, s62, s55
        s_add_u32 s48, s48, s55
        """)
    jump3("s_mul_i32 s50, s22, 18")
    issue3()
    ploop(15, issue3, 15)
    ld4()
    ploop(2, issue3, 16)
    k("s_waitcnt vmcnt(10)")
    spin(k, ld4, lambda: k("v_cmp_ne_u32 vcc, s101, v4"))
    if OPT.get("ko", 0) & 2:
        jump3("s_mul_i32 s50, s22, 36\ns_sub_u32 s50, 17, s50")
        k("s_sub_u32 s20, 0, s20\ns_sub_u32 s21, 0, s21")
    ploop(18, issue3, 15)
    for b in range(S3 - LA3, S3):
        k(f"s_waitcnt vmcnt({(S3-1-b)*5})")
        k("s_barrier")
    k("s_endpgm")

class DbgStamps:
    def __init__(self, k): self.k, self.on, self.n = k, True, 0
    def init(self):
        k = self.k
        k(f"s_load_dwordx2 s[90:91], s[0:1], {KA['dbg']}\ns_waitcnt lgkmcnt(0)")
        srd(k, 96, 90, 0, 256)
        k("s_mov_b32 s95, 4")
    def __call__(self, v=254):
        k = self.k
        self.n += 1
        if self.n <= 3: return
        L = k.lab("ds")
        k(f"""
        s_cmp_lg_u32 s33, 0
        s_cbranch_scc1 {L}
        s_memrealtime s[92:93]
        s_waitcnt lgkmcnt(0)
        s_sub_u32 s92, s92, s101
        v_mov_b32 v{v}, s92
        v_mov_b32 v{v-1}, 0
        s_mov_b64 exec, 1
        buffer_atomic_umax v{v}, v{v-1}, s[96:99], s95 offen
        s_mov_b64 exec, -1
        s_add_u32 s95, s95, 4
        {L}:
        """)

def gen_main(name, stamps=False):
    k = Kern(name); st = Stamps(k, stamps, 1)
    if OPT.get("dbg", 0): st = DbgStamps(k)
    L = {n: k.lab(n) for n in "end D C2q att g2C g2D g2D2 g2X nx".split()}
    preamble(k, 256, L["end"], [(4, "ws"), (6, "w_in"), (64, "wqkv"), (66, "w_sp"), (68, "x"), (74, "dbg")])
    k("s_mov_b32 s101, 1\ns_mov_b32 s100, 0")
    for r in range(244, 249): k(f"v_mov_b32 v{r}, 0")
    G = g2_hooks(k)
    k1_body(k, st, L, True, True, G)
    g23_body(k, st, L, G)
    k.label(L["end"])
    k("s_endpgm")
    return k

if __name__ == "__main__":
    HEADER = open("parallel_sum__sliding_local_dilated__mixer_gmlp__prompt.s.ref").read().split("; Override launch")[0]
    stamps = "stamps" in sys.argv[2:]
    for a in sys.argv[2:]:
        if "=" in a: OPT[a.split("=")[0]] = int(a.split("=")[1])
    ks = [(gen_main("parallel_sum__sliding_local_dilated__mixer_gmlp__prompt_kernel", stamps), 256, 256, 512, 163840)]
    txt = assemble_file(HEADER + "; generated by a python script (tile loops, fragment layouts and wait states hand-designed)\n", ks)
    if "plain" in sys.argv[2:]:
        txt = re.sub(r"; @launch kernel=\S+ grid", "; @launch grid", txt)
    open(sys.argv[1], "w").write(txt)
```

```python
import sys, math, re
from asmlib import *
import gen2
from gen2 import *
from gen4 import reduce16

FLG_OFF = 0x3450000; FLG_SZ = 0x24000
F5 = 0x4000 + 0x1c000
W1_OFF = WSP_OFF; W1_SZ = 16 * 9 * 18432
WQ_REL = 0; W12_SZ = 8 * 9 * 28672
RS_OFF = 0x3440000; RS_SZ = 128 * 128
F0 = 16384
F1, F2, F4, F3 = 0x8000, 0x10000, 0x18000, 12288
TFS = 90 * 1024
ATT = 69632
XSC = 153600
BSC = XSC + 9216
HSC = BSC + 256

def snake(no, ni):
    return [(o, i if o % 2 == 0 else ni - 1 - i) for o in range(no) for i in range(ni)]

def w144_voff(k, d, sid, pitch):
    k(f"""
    v_add_u32 v2, s{sid}, v0
    v_mul_u32_u24 v3, 3641, v2
    v_lshrrev_b32 v3, 16, v3
    v_mul_u32_u24 v4, 18, v3
    v_sub_u32 v2, v2, v4
    v_and_b32 v4, 4, v3
    v_and_b32 v5, 8, v3
    v_lshlrev_b32 v4, 1, v4
    v_lshrrev_b32 v5, 1, v5
    v_and_b32 v3, 0x33, v3
    v_or3_b32 v3, v3, v4, v5
    v_mul_u32_u24 v3, {pitch}, v3
    v_lshl_add_u32 v{d}, v2, 4, v3
    """)
def qkv_voff(k, d, sid):
    k(f"""
    v_add_u32 v2, s{sid}, v0
    v_mul_u32_u24 v3, 2341, v2
    v_lshrrev_b32 v3, 16, v3
    v_mul_u32_u24 v4, 28, v3
    v_sub_u32 v2, v2, v4
    v_and_b32 v4, 4, v3
    v_lshrrev_b32 v5, 1, v4
    v_xor_b32 v2, v2, v5
    v_lshlrev_b32 v4, 1, v4
    v_and_b32 v5, 8, v3
    v_lshrrev_b32 v5, 1, v5
    v_and_b32 v3, 0x33, v3
    v_or3_b32 v3, v3, v4, v5
    v_mul_u32_u24 v3, 3456, v3
    v_mul_u32_u24 v4, 57, v2
    v_lshrrev_b32 v4, 9, v4
    v_mul_u32_u24 v5, {1152-144}, v4
    v_lshl_add_u32 v5, v2, 4, v5
    v_add_u32 v3, v3, v5
    v_mov_b32 v5, 0x80000000
    v_cmp_gt_u32 vcc, 27, v2
    v_cndmask_b32 v{d}, v5, v3, vcc
    """)

def lin_dma(k, n, srdr, soff, mbase, slot, vl16=1, mods=""):
    for g in range(0, n, 4):
        if g == 0:
            k(f"s_add_u32 m0, s{mbase}, s{slot}"); so = soff
        else:
            k("s_add_u32 m0, m0, 4096"); k(f"s_add_u32 s50, s{soff}, {g*1024}"); so = 50
        for i in range(min(4, n - g)):
            k(f"buffer_load_dwordx4 v{vl16}, s[{srdr}:{srdr+3}], s{so} offen offset:{i*1024}{mods} lds")
def gat_dma(k, n, srdr, soff, mbase, slot, V):
    k(f"s_add_u32 m0, s{mbase}, s{slot}")
    for i in range(n):
        if i: k("s_add_u32 m0, m0, 1024")
        k(f"buffer_load_dwordx4 v{V+i}, s[{srdr}:{srdr+3}], s{soff} offen lds")

def spin(k, load, check):
    Lp, Ld = k.lab("sp"), k.lab("sd")
    check()
    k(f"s_cbranch_vccz {Ld}")
    k("s_mov_b32 s50, 0x20000")
    k.label(Lp)
    k(f"s_sleep {OPT.get('slp', 2)}")
    load()
    k("s_waitcnt vmcnt(0)")
    k("s_sub_u32 s50, s50, 1")
    check()
    k("s_cmp_eq_u32 s50, 0")
    k("s_cselect_b64 vcc, 0, vcc")
    k(f"s_cbranch_vccnz {Lp}")
    k.label(Ld)

def set_flag(k, soff_expr_lines, vt):
    k(soff_expr_lines)
    k(f"""
    v_mov_b32 v{vt}, s101
    v_mov_b32 v{vt+1}, 0
    s_mov_b64 exec, 1
    buffer_store_dword v{vt}, v{vt+1}, s[84:87], s50 offen sc1
    s_mov_b64 exec, -1
    """)

def only(k, pw, fn):
    Ls = k.lab("ow")
    k(f"s_cmp_lg_u32 s40, {pw}\ns_cbranch_scc1 {Ls}")
    fn()
    k.label(Ls)

CNT = ["s_sub_u32 s58, s58, 1", "s_cmp_lg_u32 s58, 0"]


def phase0(k, st, L):
    SZ = 51200
    Lw, Ld, Ln6, Lnz, Lnt = k.lab("w3"), k.lab("p0d"), k.lab("n6"), k.lab("nz"), k.lab("nt")
    srd(k, 84, 4, FLG_OFF, FLG_SZ)
    k(f"""
    s_cmp_lg_u32 s33, 7
    s_cbranch_scc1 {Lnz}
    s_lshl_b32 s50, s36, 11
    s_lshl_b32 s51, s37, 7
    s_add_u32 s50, s50, s51
    s_lshl_b32 s51, s37, 11
    s_lshl_b32 s52, s36, 7
    s_add_u32 s51, s51, s52
    s_add_u32 s51, s51, {F2}
    s_add_u32 s52, s50, {F4}
    s_add_u32 s50, s50, {F1}
    s_lshl_b32 s53, s2, 2
    s_add_u32 s53, s53, {F3}
    v_mov_b32 v4, s50
    v_writelane_b32 v4, s51, 1
    v_writelane_b32 v4, s52, 2
    v_writelane_b32 v4, s53, 3
    s_mov_b64 exec, 15
    buffer_load_dword v252, v4, s[84:87], 0 offen
    s_mov_b64 exec, -1
    {Lnz}:
    s_cmp_eq_u32 s32, 0
    s_cbranch_scc1 {Lw}
    """)
    k(f"""
    s_cmp_ge_u32 s33, 4
    s_cbranch_scc1 {Ln6}
    v_mul_u32_u24 v5, 144, v2
    v_add_u32 v5, {2*SZ}, v5
    s_lshl_b32 s47, s33, 5
    v_lshl_add_u32 v6, v3, 3, v5
    v_add_u32 v6, s47, v6
    s_lshl_b32 s47, s44, 11
    """)
    for i in range(5):
        k(f"""
        s_add_u32 s50, s46, {i}
        s_lshr_b32 s51, s50, 1
        s_lshl_b32 s51, s51, 18
        s_and_b32 s50, s50, 1
        s_lshl_b32 s50, s50, 10
        s_add_u32 s51, s51, s50
        s_add_u32 s{53+i}, s51, s47
        """)
    k("s_cmp_lt_u32 s33, 2\ns_cselect_b32 s57, s57, 0x7fffffff")
    k("s_waitcnt vmcnt(0)")
    X = 28
    for i in range(20):
        k(f"v_lshlrev_b32 v{X+2*i}, 16, v{8+i}")
        k(f"v_and_b32 v{X+2*i+1}, 0xffff0000, v{8+i}")
    k("v_lshlrev_b32 v94, 16, v94\nv_mov_b32 v95, v94")
    L4 = k.lab("l4")
    for i in range(20):
        if i == 16: k(f"s_cmp_ge_u32 s33, 2\ns_cbranch_scc1 {L4}")
        d = 74 + 2 * (i & 3)
        k(f"v_pk_add_f32 {vr(d,2)}, {vr(X+2*i,2)}, v[94:95] neg_lo:[0,1] neg_hi:[0,1]")
        if i == 0: continue
        p = 74 + 2 * ((i - 1) & 3)
        if i == 1: k(f"v_pk_mul_f32 v[70:71], {vr(p,2)}, {vr(p,2)}\nv_pk_add_f32 v[68:69], {vr(p,2)}, {vr(d,2)}\nv_pk_mul_f32 v[72:73], {vr(d,2)}, {vr(d,2)}")
        else: k(f"v_pk_add_f32 v[68:69], v[68:69], {vr(d,2)}\nv_pk_fma_f32 {vr(70+2*(i&1),2)}, {vr(d,2)}, {vr(d,2)}, {vr(70+2*(i&1),2)}")
    k.label(L4)
    k("v_pk_add_f32 v[70:71], v[70:71], v[72:73]\nv_add_f32 v68, v68, v69\nv_add_f32 v69, v70, v71")
    k("ds_write_b64 v6, v[68:69]\nv_mov_b32 v100, v94")
    k("s_waitcnt lgkmcnt(0)")
    k("s_barrier")
    for i in range(8): k(f"ds_read_b128 {vr(68+4*i,4)}, v5 offset:{i*16}")
    k("s_waitcnt lgkmcnt(0)")
    for w in (8, 4, 2, 1):
        for i in range(w): k(f"v_pk_add_f32 {vr(68+2*i,2)}, {vr(68+2*i,2)}, {vr(68+2*(i+w),2)}")
    inv = f2u(1.0 / 576)
    k(f"""
    v_mul_f32 v96, {inv:#x}, v68
    v_mul_f32 v98, {inv:#x}, v69
    v_fma_f32 v98, -v96, v96, v98
    v_max_f32 v98, 0, v98
    v_add_f32 v96, v96, v100
    """)
    rnd_bf16(k, 96, 96)
    rnd_bf16(k, 98, 98)
    k("v_mov_b32 v97, v96")
    k(f"v_add_f32 v98, {f2u(1e-5):#x}, v98")
    rnd_bf16(k, 98, 98)
    k("v_sqrt_f32 v98, v98")
    for i in range(20): k(f"v_pk_add_f32 {vr(X+2*i,2)}, {vr(X+2*i,2)}, v[96:97] neg_lo:[0,1] neg_hi:[0,1]")
    rnd_bf16(k, 98, 98)
    k("v_rcp_f32 v98, v98")
    for i in range(20): k(f"v_cvt_pk_bf16_f32 v{8+i}, v{X+2*i}, v{X+2*i+1}")
    k("v_mov_b32 v99, v98")
    for i in range(20):
        k(f"v_lshlrev_b32 v{X+2*i}, 16, v{8+i}")
        k(f"v_and_b32 v{X+2*i+1}, 0xffff0000, v{8+i}")
    for i in range(20): k(f"v_pk_mul_f32 {vr(X+2*i,2)}, {vr(X+2*i,2)}, v[98:99]")
    for i in range(20): k(f"v_cvt_pk_bf16_f32 v{8+i}, v{X+2*i}, v{X+2*i+1}")
    for i in range(5): k(f"buffer_store_dwordx4 {vr(8+4*i,4)}, v1, s[8:11], s{53+i} offen sc1")
    k(f"s_cmp_lg_u32 s33, 0\ns_cbranch_scc1 {Ld}")
    srd(k, 20, 4, RS_OFF, RS_SZ)
    k(f"""
    v_sub_f32 v96, 0, v96
    v_cmp_gt_u32 vcc, 16, v0
    v_lshlrev_b32 v97, 2, v0
    s_lshl_b32 s45, s44, 7
    v_cndmask_b32 v96, v98, v96, vcc
    s_mov_b32 exec_hi, 0
    buffer_store_dword v96, v97, s[20:23], s45 offen sc1
    s_mov_b32 exec_hi, -1
    s_branch {Ld}
    """)
    k.label(Ln6)
    srd(k, 20, 4, ST_OFF, ST_SZ)
    Lz = k.lab("z7")
    k(f"""
    v_mov_b32 v4, 0
    v_lshlrev_b32 v5, 2, v0
    s_lshl_b32 s45, s44, 7
    s_cmp_lg_u32 s33, 7
    s_cbranch_scc1 {Lz}
    s_mov_b32 exec_hi, 0
    buffer_store_dword v4, v5, s[20:23], s45 offen sc1
    s_mov_b32 exec_hi, -1
    {Lz}:
    s_barrier
    s_branch {Ld}
    """)
    k.label(Lw)
    Lnw = k.lab("nw")
    k(f"""
    s_cmp_ge_u32 s33, 4
    s_cbranch_scc1 {Lnw}
    s_lshl_b32 s45, s33, 7
    s_add_u32 s45, s45, s44          ; g 0..511
    s_lshl_b32 s51, s45, 6
    v_add_u32 v243, s51, v0
    s_mov_b32 s52, 116509
    v_mul_lo_u32 v242, s52, v243
    v_lshrrev_b32 v242, 22, v242
    v_lshlrev_b32 v243, 7, v243
    v_mul_u32_u24 v242, 4608, v242
    v_add_u32 v242, v243, v242
    s_mov_b32 s51, 0x7fffffff
    s_cmp_lt_u32 s45, 324
    s_cselect_b32 s50, 4608, s51
    s_cselect_b32 s51, 0, s51
    buffer_load_dword v252, v242, s[12:15], s50 offen
    buffer_load_dword v252, v242, s[12:15], s51 offen
    s_sub_u32 s45, 511, s45
    s_cmp_ge_u32 s45, 288
    s_cbranch_scc1 {Lnw}
    s_mov_b32 s24, s64
    s_mov_b32 s25, s65
    s_mov_b32 s26, {576*3456}
    s_mov_b32 s27, 0x20000
    s_lshr_b32 s46, s45, 4           ; step
    s_bfe_u32 s47, s45, 0x30001      ; hg
    s_mul_i32 s48, s46, {32*3456}
    s_mul_i32 s50, s47, 144
    s_add_u32 s48, s48, s50
    s_mul_i32 s49, s47, 9
    s_lshr_b32 s50, s46, 1
    s_add_u32 s49, s49, s50
    s_mul_i32 s49, s49, 28672
    s_and_b32 s56, s45, 1
    s_mul_i32 s50, s56, {7*2048}
    s_add_u32 s49, s49, s50
    s_mul_i32 s56, s56, 14
    s_movk_i32 s52, 14
    s_movk_i32 s53, 4682
    s_movk_i32 s54, 3456
    s_movk_i32 s55, 1008
    s_and_b32 s50, s46, 1
    s_lshl_b32 s50, s50, 10
    s_add_u32 s49, s49, s50
    s_mul_i32 s57, s33, 7168
    s_add_u32 s57, s57, 86016
    s_mov_b32 m0, s57
    """)
    srd(k, 20, 4, W1_OFF, W12_SZ)
    for n in range(7):
        k(f"""
        v_add_u32 v2, {n*64}, v0
        v_mul_u32_u24 v3, s53, v2
        v_lshrrev_b32 v3, 16, v3         ; row
        v_mul_u32_u24 v4, s52, v3
        v_sub_u32 v2, v2, v4
        v_add_u32 v2, s56, v2            ; chunk
        v_mul_u32_u24 v4, 57, v2
        v_lshrrev_b32 v4, 9, v4          ; segment
        v_mul_u32_u24 v5, s54, v3
        v_lshl_add_u32 v5, v2, 4, v5
        v_mad_u32_u24 v5, v4, s55, v5
        v_lshrrev_b32 v3, 5, v3
        v_add_u32 v2, 5, v2
        v_lshrrev_b32 v2, 5, v2          ; chunk 27 -> 1
        v_or_b32 v3, v3, v2
        v_lshl_or_b32 v5, v3, 30, v5
        buffer_load_dwordx4 v5, s[24:27], s48 offen lds
        s_add_u32 m0, m0, 1024
        """)
    k(f"""
    v_lshrrev_b32 v2, 4, v0
    v_bfe_u32 v3, v0, 2, 2
    v_lshl_add_u32 v2, v2, 3, v3
    s_lshl_b32 s50, s52, 4
    v_mul_u32_u24 v2, s50, v2
    v_and_b32 v3, 3, v0
    v_lshl_add_u32 v2, v3, 3, v2
    v_add_u32 v2, s57, v2
    s_lshl_b32 s50, s52, 6
    v_add_u32 v3, s50, v2
    s_waitcnt vmcnt(0)
    """)
    for j in range(7):
        k(f"ds_read_b64_tr_b16 {vr(8+j*4,2)}, v2 offset:{j*32}")
        k(f"ds_read_b64_tr_b16 {vr(10+j*4,2)}, v3 offset:{j*32}")
    for j in range(7):
        k(f"s_waitcnt lgkmcnt({12-2*j})")
        k(f"buffer_store_dwordx4 {vr(8+j*4,4)}, v1, s[20:23], s49 offen offset:{(j&1)*2048} sc1")
        if j & 1: k("s_add_u32 s49, s49, 4096")
    k(f"""
    {Lnw}:
    """)
    Lnc, Lpc = k.lab("nc"), k.lab("pc")
    k(f"""
    s_cmp_lg_u32 s35, 0
    s_cbranch_scc1 {Lnc}
    s_getpc_b64 s[28:29]
    {Lpc}:
    s_mov_b32 s30, {L['end']}-{Lpc}
    s_mov_b32 s31, 0x20000
    s_lshl_b32 s50, s33, 13
    v_lshlrev_b32 v242, 7, v0
    buffer_load_dword v252, v242, s[28:31], s50 offen
    {Lnc}:
    """)
    k.label(Ld)

def loop4(k, S, reads, half, adv, st, after_first=None, vm_wait=False, vm_first=False):
    def stage_reads(p): return reads(0, 2 * p) + reads(1, 2 * p + 1)
    def interval(p, other, zero=False):
        n = len(other); cut = min(n, 16)
        half(2 * p, other[:cut], zero); half(2 * p + 1, other[cut:], False)
    k("s_barrier")
    st()
    for r in stage_reads(0) + adv: k(r)
    if after_first: after_first()
    k("s_waitcnt lgkmcnt(0)")
    k("s_barrier")
    interval(0, stage_reads(1) + adv, True)
    m = S - 2
    k(f"s_mov_b32 s58, {(m+1)//2}")
    k("s_waitcnt vmcnt(0) lgkmcnt(0)" if vm_first else "s_waitcnt lgkmcnt(0)")
    Ltop, Lex = k.lab("top"), k.lab("ex")
    k.label(Ltop)
    k("s_barrier")
    interval(1, stage_reads(0) + adv + (CNT if m & 1 else []))
    k("s_waitcnt lgkmcnt(0)")
    if m & 1: k(f"s_cbranch_scc0 {Lex}")
    k("s_barrier")
    interval(0, stage_reads(1) + adv + ([] if m & 1 else CNT))
    k("s_waitcnt vmcnt(0) lgkmcnt(0)" if vm_wait else "s_waitcnt lgkmcnt(0)")
    k(f"s_branch {Ltop}" if m & 1 else f"s_cbranch_scc1 {Ltop}")
    k.label(Lex)
    st()
    return (S - 1) & 1

def k1_body(k, st, L, fused, single, G):
    R, SZ = 3, 51200
    BO1, BOZ, BOQ = 16384, 32768, 18432
    RSC = 2 * SZ + 40960
    stamps = st.on
    k(f"""
    s_and_b32 s36, s34, 1
    s_lshl_b32 s36, s36, 3
    s_and_b32 s37, s35, 7
    s_add_u32 s36, s36, s37          ; z2 mt
    s_lshr_b32 s37, s34, 1
    s_lshl_b32 s37, s37, 2
    s_lshr_b32 s38, s35, 3
    s_add_u32 s37, s37, s38          ; z2 nt
    s_lshr_b32 s32, s35, 4
    s_and_b32 s38, s34, 1
    s_lshl_b32 s38, s38, 2
    s_and_b32 s39, s35, 3
    s_add_u32 s38, s38, s39
    s_lshr_b32 s39, s34, 1
    s_lshl_b32 s50, s39, 1
    s_lshl_b32 s39, s39, 2
    s_lshr_b32 s51, s35, 2
    s_add_u32 s39, s39, s51          ; z1 nt
    s_bfe_u32 s51, s35, 0x10003
    s_add_u32 s50, s50, s51          ; hg
    s_cmp_eq_u32 s32, 0
    s_cselect_b32 s38, s38, s36
    s_cselect_b32 s39, s39, s50
    s_lshl_b32 s44, s34, 4
    s_and_b32 s50, s35, 15
    s_add_u32 s44, s44, s50
    s_mov_b32 s3, s44
    v_and_b32 v2, 15, v0             ; row
    v_lshrrev_b32 v3, 4, v0          ; q
    s_mul_i32 s45, s44, {16*1152}
    s_mul_i32 s46, s33, 5
    s_lshr_b32 s50, s33, 1
    s_and_b32 s50, s50, s33
    s_sub_u32 s46, s46, s50
    s_lshl_b32 s51, s46, 6
    s_add_u32 s45, s45, s51
    s_add_u32 s52, s45, 256
    s_cmp_lt_u32 s33, 2
    s_cselect_b32 s52, s52, 0x7fffffff
    s_cmp_lt_u32 s33, 4
    s_cselect_b32 s50, s32, 0
    v_mul_u32_u24 v4, 1152, v2
    v_lshl_add_u32 v7, v3, 4, v4
    s_mov_b32 s26, {2048*1152}
    s_mov_b32 s27, 0x20000
    s_waitcnt lgkmcnt(0)
    s_mov_b32 s24, s68
    s_mov_b32 s25, s69
    s_cmp_eq_u32 s50, 0
    s_cbranch_scc1 {L['nx']}
    buffer_load_dwordx4 v[8:11], v7, s[24:27], s45 offen
    buffer_load_dwordx4 v[12:15], v7, s[24:27], s45 offen offset:64
    buffer_load_dwordx4 v[16:19], v7, s[24:27], s45 offen offset:128
    buffer_load_dwordx4 v[20:23], v7, s[24:27], s45 offen offset:192
    buffer_load_dwordx4 v[24:27], v7, s[24:27], s52 offen
    s_mul_i32 s52, s44, {16*1152}
    buffer_load_ushort v94, v4, s[24:27], s52 offen
    {L['nx']}:
    """)
    srd(k, 8, 4, XN_OFF, XN_SZ)
    srd(k, 12, 6, 0, 576 * 9216)
    XS = " sc1" if single else ""
    st.init()
    def half_dma(srdr, v, soff, mbase, mods=""):
        k(f"s_add_u32 m0, s{mbase}, s49")
        k("s_mov_b32 exec_hi, 0")
        k(f"buffer_load_dwordx4 v{v}, s[{srdr}:{srdr+3}], s{soff} offen{mods} lds")
        k("s_mov_b32 exec_hi, -1")
    def i1A():
        k("s_add_u32 m0, s41, s49")
        for n in range(4):
            if n: k(f"s_add_u32 m0, m0, 1024\ns_add_u32 s50, s42, {n*8*1152}")
            k(f"buffer_load_dwordx4 v{105+(n&1)}, s[76:79], s{50 if n else 42} offen lds")
        k("s_add_u32 s42, s42, 128")
    def i1B():
        gat_dma(k, 4, 12, 43, 47, 49, 100); half_dma(12, 104, 43, 48); k(f"s_add_u32 s43, s43, {64*9216}")
    def issue1():
        i1A(); i1B(); slot_adv_prod(k, R, SZ, 49)
    Lne = k.lab("ne")
    srd(k, 76, 68, 0, 2048 * 1152)
    for r in range(100, 107): k(f"v_mov_b32 v{r}, 0")
    k(f"s_cmp_lt_u32 s33, 4\ns_cbranch_scc1 {Lne}")
    srd(k, 28, 74, 0, 256)
    Lnp = k.lab("npub")
    k(f"""
    s_xor_b32 s50, s33, 6
    s_or_b32 s50, s50, s2
    s_cmp_lg_u32 s50, 0
    s_cbranch_scc1 {Lnp}
    s_memrealtime s[50:51]
    v_mov_b32 v4, 0
    s_waitcnt lgkmcnt(0)
    s_or_b32 s50, s50, 1
    v_mov_b32 v5, s50
    s_mov_b64 exec, 1
    buffer_store_dword v5, v4, s[28:31], 0 offen sc1
    s_mov_b64 exec, -1
    {Lnp}:
    """)
    k(f"""
    s_sub_u32 s40, s33, 4            ; pw
    s_lshl_b32 s41, s40, 12          ; A lds
    s_mul_i32 s42, s36, {128*1152}
    s_mul_i32 s50, s40, {32*1152}
    s_add_u32 s42, s42, s50
    s_mul_i32 s43, s37, 288
    s_add_u32 s43, s43, 4608         ; B goff
    s_add_u32 s47, s41, {BO1}        ; B lds
    s_lshl_b32 s48, s40, 9
    s_add_u32 s48, s48, {BO1+16384}
    s_mov_b32 s49, 0
    v_lshrrev_b32 v106, 4, v0
    v_and_b32 v105, 7, v0
    v_xor_b32 v105, v105, v106
    v_lshrrev_b32 v106, 3, v0
    v_mul_u32_u24 v106, 1152, v106
    v_lshl_add_u32 v105, v105, 4, v106
    v_and_b32 v107, 64, v105
    v_lshlrev_b32 v107, 1, v107
    v_add_u32 v106, 64, v105
    v_sub_u32 v106, v106, v107
    s_lshl_b32 s51, s40, 8
    """)
    i1A()
    k("s_mov_b32 m0, s47")
    for n in range(4):
        w144_voff(k, 100 + n, 51, 9216)
        k("s_add_u32 s51, s51, 64")
        k(f"buffer_load_dwordx4 v{100+n}, s[12:15], s43 offen lds")
        k("s_add_u32 m0, m0, 1024")
    k("s_lshl_b32 s51, s40, 5\ns_add_u32 s51, s51, 1024")
    w144_voff(k, 104, 51, 9216)
    half_dma(12, 104, 43, 48)
    k(f"s_add_u32 s43, s43, {64*9216}\ns_mov_b32 s49, {SZ}")
    i1A(); i1B()
    k.label(Lne)
    if single:
        st(250)
        phase0(k, st, L)
        st(250)
    k(f"s_cmp_ge_u32 s33, 4\ns_cbranch_scc1 {L['D']}")
    srd(k, 16, 4, A3_OFF, A3_SZ)
    def loop2(reads, half, adv, vmw):
        Ltop = k.lab("top")
        k("s_mov_b32 s58, 8")
        k("s_barrier")
        st()
        for r in reads(0, 0): k(r)
        k("s_waitcnt lgkmcnt(0)")
        if vmw: k("s_barrier")
        half(0, reads(1, 1) + adv, True)
        k("s_waitcnt vmcnt(0) lgkmcnt(0)")
        k.label(Ltop)
        k("s_barrier")
        half(1, reads(0, 0), False)
        k("s_waitcnt lgkmcnt(0)")
        half(0, reads(1, 1) + adv + CNT, False)
        k("s_waitcnt lgkmcnt(0)")
        k(f"s_cbranch_scc1 {Ltop}")
        st()
    st()
    ACC, BUF, CS, ONE = 144, [0, 36, 72, 108], 224, 244
    VA0, VA1, VB, VL16 = 248, 249, 250, 251
    acc = lambda i, j: ACC + (i * 5 + j) * 4
    k(f"""
    s_mov_b32 s40, s33
    s_and_b32 s41, s40, 1            ; wm
    s_lshr_b32 s42, s40, 1           ; wn
    v_and_b32 v2, 15, v0
    v_lshrrev_b32 v3, 4, v0
    v_lshrrev_b32 v{VA0}, 1, v2
    v_xor_b32 v{VA0}, v3, v{VA0}
    v_lshlrev_b32 v{VA0}, 4, v{VA0}
    v_lshl_add_u32 v{VA0}, v2, 7, v{VA0}
    s_lshl_b32 s43, s41, 13
    v_add_u32 v{VA0}, s43, v{VA0}
    v_xor_b32 v{VA1}, 64, v{VA0}
    """)
    for r in range(4): k(f"v_mov_b32 v{ONE+r}, 0x3f803f80")
    tr_lane_base(k, VB, 288, 2)
    k(f"s_mul_i32 s43, s42, 160\ns_add_u32 s43, s43, {BO1}\nv_add_u32 v{VB}, s43, v{VB}")
    k(f"""
    s_cmp_eq_u32 s42, 0
    s_cselect_b64 vcc, -1, 0
    s_cselect_b32 s54, -1, 0
    s_mul_i32 s46, s41, {18*1024}
    s_mul_i32 s47, s42, {5*1024}
    s_add_u32 s46, s46, s47
    s_add_u32 s46, s46, {2*SZ}
    v_add_u32 v{VL16}, s46, v1
    """)
    C, T, O, SM, NM, RR = 0, 8, 72, 80, 112, 128
    adv_setup(k, R, SZ)
    def reads1(sub, b):
        o = [f"ds_read_b128 {vr(BUF[b]+i*4,4)}, v{VA1 if sub else VA0} offset:{i*2048}" for i in range(4)]
        for j in range(5):
            for hh in range(2):
                o.append(f"ds_read_b64_tr_b16 {vr(BUF[b]+16+j*4+hh*2,2)}, v{VB} offset:{sub*32*288+hh*8*288+j*32}")
        return o
    def mf1(b, seq, zero):
        return [f"v_mfma_f32_16x16x32_bf16 {vr(acc(i,j) if i < 4 else CS+4*j,4)}, {vr(BUF[b]+i*4 if i < 4 else ONE,4)}, {vr(BUF[b]+16+j*4,4)}, "
                f"{'0' if zero else vr(acc(i,j) if i < 4 else CS+4*j,4)}" for j, i in seq]
    def half1(b, other, zero):
        for x in interleave(mf1(b, snake(4, 5), zero), other): k(x)
        Ls = k.lab("sk")
        k(f"s_cbranch_vccz {Ls}")
        for x in mf1(b, [(4, i) for i in range(5)], zero): k(x)
        k.label(Ls)
    tag = lambda: k(f"v_mov_b32 v{ONE-1}, {HSC}\nds_read_b32 v{ONE-1}, v{ONE-1}\ns_waitcnt lgkmcnt(0)\nv_readfirstlane_b32 s101, v{ONE-1}")
    lp = loop4(k, 9, reads1, half1, adv_ins(R, [VA0, VA1, VB]), st, vm_first=True)
    assert lp == 0
    k("s_barrier")
    k(f"""
    v_mbcnt_lo_u32_b32 v{VB}, -1, 0
    v_mbcnt_hi_u32_b32 v{VB}, -1, v{VB}  ; lane
    v_and_b32 v{VA0}, 48, v{VB}
    s_lshl_b32 s43, s41, 9
    s_add_u32 s43, s43, {RSC}
    v_add_u32 v{VA0}, s43, v{VA0}
    """)
    rs = [f"ds_read_b128 {vr(NM+4*i,4)}, v{VA0} offset:{i*128}" for i in range(4)] + [f"ds_read_b128 {vr(RR+4*i,4)}, v{VA0} offset:{i*128+64}" for i in range(4)]
    half1(0, rs + [f"v_mov_b32 v{r}, 0" for r in range(SM, SM + 12)], False)
    half1(1, [f"v_mov_b32 v{r}, 0" for r in range(SM + 12, SM + 32)], False)
    gelu_consts(k, C)
    k(f"v_mov_b32 v6, {HSC}\nds_read_b32 v6, v6\ns_waitcnt lgkmcnt(0)\nv_readfirstlane_b32 s101, v6")
    VLN = VB
    n = 0
    for jj in range(5):
        if jj == 4:
            Ls = k.lab("us"); k(f"s_cbranch_vccz {Ls}")
        for P in range(2):
            a, b = acc(2 * P, jj), acc(2 * P + 1, jj)
            for x, q in enumerate([a, a + 2, b, b + 2]): k(f"v_pk_fma_f32 {vr(q,2)}, {vr(NM+8*P+2*x,2)}, {vr(CS+4*jj,2)}, {vr(q,2)}")
            for x, q in enumerate([a, a + 2, b, b + 2]): k(f"v_pk_mul_f32 {vr(q,2)}, {vr(q,2)}, {vr(RR+8*P+2*x,2)}")
            gelu(k, [a, a + 2, b, b + 2], T, C)
            o = O + (n & 1) * 4; n += 1
            for x, q in enumerate([a, a + 2, b, b + 2]): k(f"v_cvt_pk_bf16_f32 v{o+x}, v{q}, v{q+1}")
            k(f"ds_write_b128 v{VL16}, {vr(o,4)} offset:{(P*9+jj)*1024}")
            for e, q in enumerate([a, b]):
                i = 2 * P + e
                for h in range(2):
                    k(f"v_pk_add_f32 {vr(SM+4*i+2*h,2)}, {vr(SM+4*i+2*h,2)}, {vr(q+2*h,2)}")
                    k(f"v_pk_fma_f32 {vr(SM+16+4*i+2*h,2)}, {vr(q+2*h,2)}, {vr(q+2*h,2)}, {vr(SM+16+4*i+2*h,2)}")
    k.label(Ls)
    for m in range(1, 4):
        v = 0x11111111 << m
        k(f"s_mov_b32 s{58+2*m}, {v:#x}\ns_mov_b32 s{59+2*m}, {v:#x}")
    val = lambda P, i: SM + (i & 1) * 16 + (2 * P + (i >> 3)) * 4 + ((i >> 1) & 3)
    sets = [[val(P, i) for i in range(16)] for P in range(2)]
    reduce16(k, sets, 60)
    k(f"""
    s_lshl_b32 s46, s40, 9
    s_add_u32 s46, s46, {2*SZ+36864}
    v_lshlrev_b32 v{T+1}, 2, v{VLN}
    v_add_u32 v{T+1}, s46, v{T+1}
    ds_write_b32 v{T+1}, v{sets[0][0]}
    ds_write_b32 v{T+1}, v{sets[1][0]} offset:256
    v_mov_b32 v0, v{VLN}
    v_lshlrev_b32 v1, 4, v0
    """)
    Lq, Ld = k.lab("cq"), k.lab("cd")
    ZA, ZB, ZL16, ZL8 = 248, 249, 250, 251
    QA, QBE, QBO, QW = 248, 249, 250, 251
    k(f"s_cmp_lg_u32 s32, 0\ns_cbranch_scc1 {Lq}")
    k(f"""
    v_mov_b32 v{ZL16}, v1
    v_lshrrev_b32 v2, 5, v0
    v_lshlrev_b32 v2, 8, v2
    v_and_b32 v3, 15, v0
    v_lshl_add_u32 v2, v3, 4, v2
    v_bfe_u32 v3, v0, 4, 1
    v_lshl_add_u32 v{ZL8}, v3, 3, v2
    s_lshl_b32 s50, s40, 13
    v_add_u32 v{ZA}, s50, v1
    """)
    tr_lane_base(k, ZB, 288, 2)
    k(f"v_add_u32 v{ZB}, {BOZ}, v{ZB}")
    k(f"s_branch {Ld}")
    k.label(Lq)
    k(f"s_mul_i32 s50, s41, 10240\nv_add_u32 v{QA}, s50, v1")
    k(f"""
    s_mul_i32 s50, s42, {7*2048}
    s_add_u32 s50, s50, {BOQ}
    v_add_u32 v{QBE}, s50, v1
    v_and_b32 v2, 15, v0
    s_mul_i32 s50, s41, 80
    v_add_u32 v2, s50, v2
    v_mul_u32_u24 v{QW}, 440, v2
    v_lshrrev_b32 v2, 4, v0
    v_lshl_add_u32 v{QW}, v2, 3, v{QW}
    s_mul_i32 s50, s42, 224
    s_add_u32 s50, s50, {ATT}
    v_add_u32 v{QW}, s50, v{QW}
    """)
    k.label(Ld)
    k("s_waitcnt vmcnt(0) lgkmcnt(0)")
    st()
    k(f"s_cmp_lg_u32 s32, 0\ns_cbranch_scc1 {L['C2q']}")
    ACZ, BZ = 104, [0, 52]
    acz = lambda i, j: ACZ + (i * 9 + j) * 4
    def readsz(sub, b):
        o = [f"ds_read_b128 {vr(BZ[b]+i*4,4)}, v{ZA} offset:{i*2048+sub*1024}" for i in range(4)]
        for j in range(9):
            for hh in range(2):
                o.append(f"ds_read_b64_tr_b16 {vr(BZ[b]+16+j*4+hh*2,2)}, v{ZB} offset:{sub*32*288+hh*8*288+j*32}")
        return o
    def halfz(b, other, zero):
        mf = [f"v_mfma_f32_16x16x32_bf16 {vr(acz(i,j),4)}, {vr(BZ[b]+16+j*4,4)}, {vr(BZ[b]+i*4,4)}, {'0' if zero else vr(acz(i,j),4)}"
              for i, j in snake(4, 9)]
        for x in interleave(mf, other): k(x)
    loop2(readsz, halfz, adv_ins(R, [ZA, ZB]), True)
    halfz(1, [], False)
    C, T, O = 0, 8, 16
    gelu_consts(k, C)
    k(f"""
    s_lshl_b32 s46, s38, 4
    s_lshl_b32 s47, s40, 2
    s_add_u32 s46, s46, s47          ; tfrag0
    s_mul_i32 s46, s46, {TFS}
    s_bfe_u32 s47, s39, 0x10001
    s_lshl_b32 s47, s47, 2
    s_lshr_b32 s48, s39, 2
    s_add_u32 s47, s47, s48
    s_mul_i32 s47, s47, 9216
    s_add_u32 s46, s46, s47
    s_and_b32 s47, s39, 1
    s_lshl_b32 s48, s47, 9
    s_add_u32 s48, s48, s46
    s_add_u32 s48, s48, {(18+8)*1024}
    s_lshl_b32 s47, s47, 12
    s_add_u32 s46, s46, s47
    s_add_u32 s46, s46, {18*1024}
    """)
    n = 0
    for i in range(4):
        for p in range(4):
            a, b = acz(i, 2 * p), acz(i, 2 * p + 1)
            gelu(k, [a, a + 2, b, b + 2], T, C)
            o = O + (n & 1) * 4; n += 1
            for x, q in enumerate([a, a + 2, b, b + 2]): k(f"v_cvt_pk_bf16_f32 v{o+x}, v{q}, v{q+1}")
            k(f"buffer_store_dwordx4 {vr(o,4)}, v{ZL16}, s[16:19], s46 offen offset:{p*1024} sc1")
        if i < 3: k(f"s_add_u32 s46, s46, {TFS}\ns_add_u32 s{49+i}, s{48+i}, {TFS}")
    for i in (0, 2):
        a, b = acz(i, 8), acz(i + 1, 8)
        gelu(k, [a, a + 2, b, b + 2], T, C)
        o = O + (n & 1) * 4; n += 1
        for x, q in enumerate([a, a + 2, b, b + 2]): k(f"v_cvt_pk_bf16_f32 v{o+x}, v{q}, v{q+1}")
        k(f"buffer_store_dwordx2 {vr(o,2)}, v{ZL8}, s[16:19], s{48+i} offen sc1")
        k(f"buffer_store_dwordx2 {vr(o+2,2)}, v{ZL8}, s[16:19], s{49+i} offen sc1")
    if stamps and not fused:
        st(); k("s_waitcnt vmcnt(0)"); st()
    k(f"s_branch {L['g2C']}" if fused else "s_endpgm")
    k.label(L["D"])
    if OPT.get("pd", 3): k(f"s_setprio {OPT.get('pd', 3)}")
    k(f"""
    s_add_u32 s47, s41, {BO1}        ; B lds
    s_lshl_b32 s48, s40, 9
    s_add_u32 s48, s48, {BO1+16384}
    s_mov_b32 s49, {2*SZ}
    """)
    def setup2():
        srd(k, 72, 4, W1_OFF, W12_SZ)
        srd(k, 16, 4, A3_OFF, A3_SZ)
        srd(k, 20, 4, ST_OFF, ST_SZ)
        srd(k, 24, 66, 0, 2048 * 4096)
        srd(k, 80, 4, Z2T_OFF, Z2T_SZ)
        srd(k, 84, 4, FLG_OFF, FLG_SZ)
        Lq, Ld = k.lab("dq"), k.lab("dd")
        k(f"""
        s_cmp_lg_u32 s32, 0
        s_cbranch_scc1 {Lq}
        s_lshl_b32 s63, s40, 13          ; A lds
        s_lshl_b32 s60, s38, 15
        s_add_u32 s60, s60, s63          ; A goff
        s_mul_i32 s61, s39, 288          ; B goff
        s_add_u32 s88, s41, {BOZ}
        s_lshl_b32 s89, s40, 9
        s_add_u32 s89, s89, {BOZ+16384}
        s_mov_b32 s62, 0
        s_branch {Ld}
        {Lq}:
        s_lshl_b32 s60, s38, 14
        s_lshl_b32 s89, s40, 9
        s_sub_u32 s62, s60, 2048
        s_cmp_eq_u32 s38, 0
        s_cselect_b32 s62, 0, s62
        s_add_u32 s62, s62, s89
        s_add_u32 s60, s60, s41          ; A goff
        s_add_u32 s63, s41, 2048
        s_mul_i32 s61, s39, {9*28672}
        s_mul_i32 s88, s40, 7168
        s_add_u32 s61, s61, s88
        s_add_u32 s88, s88, {BOQ}
        """)
        k.label(Ld)
        k(f"""
        v_lshlrev_b32 v28, 7, v0
        s_lshl_b32 s44, s2, 2
        s_add_u32 s44, s44, s40
        s_lshl_b32 s44, s44, 13
        v_lshlrev_b32 v29, 2, v0
        v_lshrrev_b32 v30, 4, v0
        v_lshlrev_b32 v30, 5, v30
        s_lshl_b32 s45, s36, 10
        s_lshl_b32 s50, s40, 8
        s_add_u32 s45, s45, s50
        s_mul_i32 s50, s40, {9*1024}
        s_add_u32 s50, s50, {2*SZ}
        v_add_u32 v31, s50, v1
        s_lshl_b32 s46, s36, 1
        s_lshr_b32 s50, s40, 1
        s_add_u32 s46, s46, s50
        s_mul_i32 s46, s46, 144
        s_mul_i32 s50, s37, 9
        s_add_u32 s46, s46, s50
        s_lshl_b32 s46, s46, 11
        s_and_b32 s50, s40, 1
        s_lshl_b32 s50, s50, 10
        s_add_u32 s46, s46, s50          ; Z2T offset
        s_lshl_b32 s53, s36, 11
        s_add_u32 s53, s53, {F1}         ; F1 row
        v_lshrrev_b32 v26, 2, v0
        v_lshlrev_b32 v26, 7, v26
        v_and_b32 v2, 3, v0
        v_lshl_add_u32 v26, v2, 2, v26
        s_lshl_b32 s50, s40, 9
        s_add_u32 s50, s50, {2*SZ+36864}
        v_add_u32 v35, s50, v29
        v_bfe_u32 v27, v0, 3, 1
        v_lshlrev_b32 v27, 5, v27
        v_lshrrev_b32 v2, 4, v0
        v_lshl_add_u32 v27, v2, 3, v27
        v_and_b32 v2, 7, v0
        v_add_lshl_u32 v27, v27, v2, 2
        s_lshl_b32 s55, s36, 10
        s_and_b32 s50, s40, 1
        s_lshl_b32 s50, s50, 9
        s_add_u32 s55, s55, s50
        """)
    setup2()
    k("s_waitcnt vmcnt(9) lgkmcnt(0)")
    k("s_barrier")
    st(250)
    k(f"s_load_dwordx2 s[56:57], s[0:1], {KA['dbg']}\ns_waitcnt lgkmcnt(0)")
    srd(k, 28, 56, 0, 256)
    k("v_mov_b32 v34, 0")
    ldn = lambda: k("buffer_load_dword v33, v34, s[28:31], 0 offen sc1")
    Lt = k.lab("tg")
    k(f"s_cmp_lg_u32 s40, 2\ns_cbranch_scc1 {Lt}")
    ldn()
    k.label(Lt)
    issue1()
    def ploop(n, iss, allowed):
        Lp = k.lab("pl")
        k(f"s_mov_b32 s58, {n}")
        k.label(Lp)
        k(f"s_waitcnt vmcnt({allowed})")
        k("s_barrier")
        iss()
        k(f"s_sub_u32 s58, s58, 1\ns_cmp_lg_u32 s58, 0\ns_cbranch_scc1 {Lp}")
    k("s_waitcnt vmcnt(9)")
    Lt = k.lab("tg")
    k(f"s_cmp_lg_u32 s40, 2\ns_cbranch_scc1 {Lt}")
    spin(k, ldn, lambda: k("v_cmp_eq_u32 vcc, 0, v33"))
    k(f"v_readfirstlane_b32 s101, v33\nv_mov_b32 v34, {HSC}\nds_write_b32 v34, v33\ns_waitcnt lgkmcnt(0)")
    k.label(Lt)
    k("s_barrier")
    issue1()
    k(f"v_mov_b32 v33, {HSC}\nds_read_b32 v33, v33\ns_waitcnt vmcnt(9) lgkmcnt(0)\nv_readfirstlane_b32 s101, v33")
    k("s_barrier")
    Lnb = k.lab("nb")
    k(f"""
    s_cmp_lg_u32 s40, 0
    s_cbranch_scc1 {Lnb}
    v_mov_b32 v33, s101
    s_mov_b32 s51, {F5}
    s_cmp_eq_u32 s32, 0
    s_cselect_b32 s51, s51, {F0}
    s_lshl_b32 s50, s3, 7
    s_add_u32 s50, s50, s51
    s_mov_b32 exec_hi, 0
    buffer_store_dword v33, v29, s[84:87], s50 offen sc1
    s_mov_b32 exec_hi, -1
    """)
    k.label(Lnb)
    issue1()
    ploop(3, issue1, 9)
    def issue2():
        Lq, Ld = k.lab("iq"), k.lab("id")
        k(f"s_cmp_lg_u32 s32, 0\ns_cbranch_scc1 {Lq}")
        lin_dma(k, 8, 8, 60, 63, 49, mods=XS); gat_dma(k, 4, 12, 61, 88, 49, 100); half_dma(12, 104, 61, 89)
        k(f"s_add_u32 s61, s61, {64*9216}\ns_branch {Ld}")
        k.label(Lq)
        lin_dma(k, 4, 8, 60, 63, 49, mods=XS); half_dma(8, 1, 62, 89, XS); lin_dma(k, 7, 72, 61, 88, 49, mods=XS)
        k(f"s_add_u32 s62, s62, {128*2048}\ns_add_u32 s61, s61, 28672")
        k.label(Ld)
        k(f"s_add_u32 s60, s60, {128*2048}")
        slot_adv_prod(k, R, SZ, 49)
    N2 = 12
    if single:
        k(f"""
        s_lshl_b32 s54, s38, 3
        s_lshl_b32 s50, s38, 4
        s_cmp_eq_u32 s32, 0
        s_cselect_b32 s54, s50, s54
        s_max_u32 s54, s54, 1
        s_min_u32 s54, s54, 112
        s_lshl_b32 s54, s54, 7
        s_add_u32 s54, s54, {F0 - 128}
        """)
        k(f"""
        s_lshl_b32 s50, s36, 10
        s_add_u32 s50, s50, {F0 - 17*128}
        v_cmp_gt_u32 vcc, 17, v0
        v_mov_b32 v24, s50
        v_mov_b32 v25, s54
        v_cndmask_b32 v24, v24, v25, vcc
        v_add_u32 v24, v24, v28
        v_subrev_u32 v25, 25, v0
        v_lshrrev_b32 v22, 1, v25
        v_lshlrev_b32 v22, 4, v22
        v_and_b32 v25, 1, v25
        v_sub_u32 v22, v22, v25
        s_lshl_b32 s50, s39, 1
        s_sub_u32 s50, 15, s50
        v_add_u32 v22, s50, v22
        v_lshlrev_b32 v22, 7, v22
        v_add_u32 v22, {F5}, v22
        v_cmp_gt_u32 vcc, 25, v0
        s_cmp_eq_u32 s32, 0
        s_cselect_b32 s57, 0, 0x1ff
        s_cselect_b32 s56, 0x1ffffff, -1
        v_cndmask_b32 v24, v22, v24, vcc
        """)
        def ldb():
            k("s_mov_b64 exec, s[56:57]\nbuffer_load_dword v33, v24, s[84:87], 0 offen sc1\ns_mov_b64 exec, -1")
        k("v_mov_b32 v33, s101")
        only(k, 1, ldb)
    ploop(1, issue1, 9)
    k("s_waitcnt vmcnt(9)")
    srd(k, 28, 4, RS_OFF, RS_SZ)
    def chk7():
        spin(k, ldb, lambda: k("v_cmp_ne_u32 vcc, s101, v33"))
        k(f"s_lshl_b32 s50, s36, 10\ns_mov_b32 m0, {RSC}\nbuffer_load_dwordx4 v1, s[28:31], s50 offen sc1 lds")
    only(k, 1, chk7)
    k("s_barrier")
    issue2()
    k(f"s_waitcnt vmcnt({N2})")
    k("s_barrier")
    issue2()
    k("s_barrier")
    k("buffer_load_dword v32, v28, s[24:27], s44 offen")
    Lx = k.lab("xw")
    k(f"""
    s_load_dwordx2 s[28:29], s[0:1], {KA['wo']}
    s_load_dwordx2 s[30:31], s[0:1], {KA['w_out']}
    s_load_dwordx2 s[56:57], s[0:1], {KA['b_sp']}
    s_and_b32 s50, s34, 3
    s_lshl_b32 s50, s50, 3
    s_and_b32 s51, s35, 7
    s_add_u32 s50, s50, s51          ; mt3
    s_mul_i32 s50, s50, {64*1152}
    s_lshr_b32 s51, s34, 2
    s_lshl_b32 s51, s51, 2
    s_lshr_b32 s54, s35, 3
    s_add_u32 s51, s51, s54          ; nt3
    s_mul_i32 s51, s51, 144
    s_add_u32 s54, s50, s51
    s_mov_b32 s76, s68
    s_mov_b32 s77, s69
    s_mov_b32 s78, {2048*1152}
    s_mov_b32 s79, 0x20000
    s_lshl_b32 s51, s40, 6
    s_lshl_b32 s50, s40, 10
    s_add_u32 m0, s50, {XSC}
    """)
    for n in range(3):
        if n == 2: k(f"s_cmp_lg_u32 s40, 0\ns_cbranch_scc1 {Lx}")
        k(f"""
        v_add_u32 v2, s51, v0
        v_mul_u32_u24 v3, 3641, v2
        v_lshrrev_b32 v3, 15, v3         ; id/9
        v_mul_u32_u24 v3, {1152-144}, v3
        v_lshl_add_u32 v2, v2, 4, v3
        buffer_load_dwordx4 v2, s[76:79], s54 offen lds
        s_add_u32 s51, s51, 256
        s_add_u32 m0, m0, 4096
        """)
    k(f"""
    s_waitcnt lgkmcnt(0)
    s_mov_b32 s76, s56
    s_mov_b32 s77, s57
    s_mov_b32 s78, 4096
    s_mov_b32 s79, 0x20000
    s_lshl_b32 s50, s36, 8
    s_mov_b32 m0, {BSC}
    s_mov_b64 exec, 0xffff
    buffer_load_dwordx4 v1, s[76:79], s50 offen lds
    s_mov_b64 exec, -1
    {Lx}:
    s_lshr_b32 s50, s44, 13
    s_sub_u32 s51, s50, 81
    s_waitcnt lgkmcnt(0)
    s_cmp_lt_u32 s50, 81
    s_cselect_b32 s24, s28, s30
    s_cselect_b32 s25, s29, s31
    s_cselect_b32 s50, s50, s51
    s_mov_b32 s26, {2304*1152}
    s_cselect_b32 s26, {576*1152}, s26
    s_mov_b32 s27, 0x20000
    s_lshl_b32 s50, s50, 13
    buffer_load_dword v240, v28, s[24:27], s50 offen
    """)
    NX = 4
    k(f"s_waitcnt vmcnt({N2+NX})")
    k("s_barrier")
    Z = 64
    for j in range(9): k(f"ds_read_b128 {vr(Z+4*j,4)}, v31 offset:{j*1024}")
    k(f"""
    ds_read_b32 v34, v35
    ds_read_b32 v33, v35 offset:256
    s_waitcnt lgkmcnt(0)
    s_barrier
    buffer_atomic_add_f32 v34, v27, s[20:23], s55 offen
    buffer_atomic_add_f32 v33, v27, s[20:23], s55 offen offset:256
    """)
    issue2()
    k(f"s_waitcnt vmcnt({N2+2+NX})")
    k("s_barrier")
    issue2()
    k(f"s_waitcnt vmcnt({N2})")
    set_flag(k, f"s_lshl_b32 s50, s37, 7\ns_add_u32 s50, s50, s53\ns_lshl_b32 s51, s40, 2\ns_add_u32 s50, s50, s51", 33)
    k("s_barrier")
    issue2()
    PB = OPT.get("pb", 13)
    if PB > 12: ploop(PB - 12, issue2, N2)
    ld1 = lambda: k("buffer_load_dword v33, v26, s[84:87], s53 offen sc1")
    ld1()
    k(f"s_waitcnt vmcnt({N2+1})")
    k("s_barrier")
    issue2()
    k(f"s_waitcnt vmcnt({N2})")
    spin(k, ld1, lambda: k("v_cmp_ne_u32 vcc, s101, v33"))
    for i in range(4): k(f"buffer_load_dwordx4 {vr(36+4*i,4)}, v30, s[20:23], s45 offen offset:{(i>>1)*128+(i&1)*16} sc1")
    k("s_barrier")
    st(250)
    vm = [("L%d" % (PB + 2), N2), ("s", 4)]
    def allowed(tag):
        n = 0
        for t, c in reversed(vm):
            if t == tag: return n
            n += c
        raise KeyError(tag)
    def rcalc():
        k(f"s_waitcnt vmcnt({allowed('s')})")
        inv = f2u(1.0 / 2304)
        for i in range(8): k(f"v_mul_f32 v{36+2*i}, {inv:#x}, v{36+2*i}")
        for i in range(8): k(f"v_mul_f32 v{37+2*i}, {inv:#x}, v{37+2*i}")
        for i in range(8): k(f"v_fma_f32 v{37+2*i}, -v{36+2*i}, v{36+2*i}, v{37+2*i}")
        for i in range(8): k(f"v_max_f32 v{37+2*i}, 0, v{37+2*i}")
        def rnd8(o):
            for i in range(4): k(f"v_cvt_pk_bf16_f32 v{52+i}, v{o+4*i}, v{o+2+4*i}")
            for i in range(4):
                k(f"v_lshlrev_b32 v{o+4*i}, 16, v{52+i}")
                k(f"v_and_b32 v{o+2+4*i}, 0xffff0000, v{52+i}")
        rnd8(36); rnd8(37)
        for i in range(8): k(f"v_add_f32 v{37+2*i}, {f2u(1e-5):#x}, v{37+2*i}")
        rnd8(37)
        for i in range(8): k(f"v_sqrt_f32 v{37+2*i}, v{37+2*i}")
        rnd8(37)
        for i in range(8): k(f"v_rcp_f32 v{37+2*i}, v{37+2*i}")
        for i in range(8): k(f"v_mul_f32 v{36+2*i}, v{36+2*i}, v{37+2*i}")
    def unit(j):
        w, t = Z + 4 * j, 56
        for i in range(4):
            k(f"v_lshlrev_b32 v{t+2*i}, 16, v{w+i}")
            k(f"v_and_b32 v{t+2*i+1}, 0xffff0000, v{w+i}")
        for i in range(8): k(f"v_fma_f32 v{t+i}, v{t+i}, v{37+2*i}, -v{36+2*i}")
        for i in range(4): k(f"v_cvt_pk_bf16_f32 v{w+i}, v{t+2*i}, v{t+2*i+1}")
        k(f"v_permlane32_swap_b32 v{w}, v{w+2}")
        k(f"v_permlane32_swap_b32 v{w+1}, v{w+3}")
        k(f"v_permlane16_swap_b32 v{w}, v{w+2}")
        k(f"v_permlane16_swap_b32 v{w+1}, v{w+3}")
        if not OPT.get("lz", 0): zst(j); vm.append(("z", 1))
    def zst(j):
        if j and j % 2 == 0: k("s_add_u32 s46, s46, 4096")
        k(f"buffer_store_dwordx4 {vr(Z+4*j,4)}, v1, s[80:83], s46 offen offset:{(j&1)*2048} sc1")
    work = [rcalc] + [(lambda j=j: unit(j)) for j in range(9)]
    split = {13: [[0, 1, 2], [3, 4, 5], [6, 7, 8, 9]], 12: [[0, 1], [2, 3, 4], [5, 6], [7, 8, 9]], 11: [[0], [1, 2], [3, 4], [5, 6], [7, 8, 9]]}[PB]
    for n, b in enumerate(range(PB + 1, 17)):
        if b + 2 <= 17:
            issue2(); vm.append((f"L{b+2}", N2))
        for w_ in split[n]: work[w_]()
        k(f"s_waitcnt vmcnt({allowed(f'L{b+1}')})")
        k("s_barrier")
    st(250)
    if OPT.get("lz", 0):
        for j in range(9): zst(j)
    k(f"""
    s_lshr_b32 s50, s40, 1
    s_mul_i32 s50, s50, 34816
    s_and_b32 s51, s40, 1
    s_lshl_b32 s51, s51, 10
    s_add_u32 s50, s50, s51
    s_add_u32 s50, s50, 16384
    v_add_u32 v31, s50, v1
    """)
    for j in range(9): k(f"ds_write_b128 v31, {vr(Z+4*j,4)} offset:{j*2048}")
    if fused:
        k("s_waitcnt vmcnt(0) lgkmcnt(0)")
        set_flag(k, f"s_lshl_b32 s50, s37, 11\ns_lshl_b32 s51, s36, 7\ns_add_u32 s50, s50, s51\ns_lshl_b32 s51, s40, 2\ns_add_u32 s50, s50, s51\ns_add_u32 s50, s50, {F2}", 33)
    Lha = k.lab("ha")
    k(f"s_cmp_lg_u32 s32, 0\ns_cbranch_scc1 {Lha}")
    k(f"s_branch {L['g2D']}" if fused else "s_endpgm")
    k.label(Lha)
    k("s_setprio 0")
    k("s_barrier")
    k(f"s_branch {L['att']}")
    k.label(L["C2q"])
    ACQ, BQ = 104, [0, 48]
    acq = lambda i, j: ACQ + (i * 7 + j) * 4
    def readsq(sub, b):
        o = [f"ds_read_b128 {vr(BQ[b]+i*4,4)}, v{QA} offset:{i*2048+sub*1024}" for i in range(5)]
        o += [f"ds_read_b128 {vr(BQ[b]+20+j*4,4)}, v{QBE} offset:{j*2048+sub*1024}" for j in range(7)]
        return o
    def mfq(b, seq, zero):
        return [f"v_mfma_f32_16x16x32_bf16 {vr(acq(i,j),4)}, {vr(BQ[b]+20+j*4,4)}, {vr(BQ[b]+i*4,4)}, {'0' if zero else vr(acq(i,j),4)}"
                for i, j in seq]
    def halfq(b, other, zero):
        for x in interleave(mfq(b, snake(4, 7), zero), other): k(x)
        Ls = k.lab("sk")
        k(f"s_cbranch_vccz {Ls}")
        for x in mfq(b, [(4, j) for j in range(7)], zero): k(x)
        k.label(Ls)
    k("s_cmp_eq_u32 s41, 0\ns_cselect_b64 vcc, -1, 0")
    loop2(readsq, halfq, adv_ins(R, [QA, QBE]), True)
    k("s_barrier")
    def wq(i, j, n):
        a = acq(i, j); o = (n & 3) * 2
        return [f"v_cvt_pk_bf16_f32 v{o}, v{a}, v{a+1}", f"v_cvt_pk_bf16_f32 v{o+1}, v{a+2}, v{a+3}",
                f"ds_write_b64 v{QW}, {vr(o,2)} offset:{i*16*440+j*32}"]
    n = 0
    Ls = k.lab("sk")
    k(f"s_cbranch_vccz {Ls}")
    for x in mfq(1, [(4, j) for j in range(7)], False): k(x)
    k.label(Ls)
    for i in range(5):
        mf = mfq(1, [(i, j) for j in range(7)], False) if i < 4 else []
        for j in range(7):
            if mf: k(mf[j])
            if i > 0 and j < 6:
                for x in wq(i - 1, j, n): k(x)
                n += 1
    Ls = k.lab("sk")
    k(f"s_cbranch_vccz {Ls}")
    for j in range(6):
        for x in wq(4, j, n): k(x)
        n += 1
    k("s_mov_b32 exec_hi, s54")
    for x in wq(4, 6, n): k(x)
    n += 1
    k.label(Ls)
    k("s_mov_b32 exec_hi, s54")
    for i in range(4):
        for x in wq(i, 6, n): k(x)
        n += 1
    k("s_mov_b32 exec_hi, -1")
    k("s_waitcnt lgkmcnt(0)")
    k("v_mbcnt_lo_u32_b32 v0, -1, 0")
    k("v_mbcnt_hi_u32_b32 v0, -1, v0")
    k.label(L["att"])
    k(f"""
    s_and_b32 s55, s33, 3            ; head
    s_lshr_b32 s41, s33, 2
    s_and_b32 s42, s55, 1
    s_lshl_b32 s43, s41, 6
    s_add_u32 s44, s43, 2
    v_add_u32 v2, s44, v0
    v_mul_u32_u24 v2, 440, v2
    s_mul_i32 s44, s55, 36
    s_add_u32 s44, s44, {ATT}
    s_lshl_b32 s45, s42, 2
    s_add_u32 s45, s45, s44
    v_add_u32 v3, s45, v2
    s_xor_b32 s45, s42, 1
    s_lshl_b32 s45, s45, 5
    s_add_u32 s45, s45, s44
    v_add_u32 v2, s45, v2
    s_lshl_b32 s46, s38, 7
    s_add_u32 s46, s46, s43
    v_add_u32 v4, s46, v0            ; t
    s_mov_b32 s21, 0x05040100
    s_mov_b32 s22, 0x07060302
    v_and_b32 v11, 15, v0
    v_lshrrev_b32 v12, 4, v0
    s_lshl_b32 s46, s33, 4
    s_add_u32 s46, s46, 16
    v_add_u32 v13, s46, v11
    v_mul_u32_u24 v13, 440, v13
    v_lshl_add_u32 v13, v12, 4, v13
    v_add_u32 v13, {ATT}, v13
    s_mul_i32 s46, s39, 9
    v_add_u32 v12, s46, v12
    v_lshlrev_b32 v12, 8, v12
    v_lshl_add_u32 v12, v11, 4, v12
    s_lshl_b32 s46, s38, 3
    s_add_u32 s46, s46, s33
    s_mul_i32 s20, s46, {TFS}
    """)
    Lc = k.lab("ac")
    k(f"s_cmp_lt_u32 s33, 4\ns_cbranch_scc1 {Lc}")
    G["setup"]()
    k.label(Lc)
    k("s_barrier")
    st(20)
    Q, KK, VV, LL, PP, OA = 24, 36, 116, 200, 210, 216
    def rdvec(dst, row, part):
        for h in range(4): k(f"ds_read_b64 {vr(dst+2*h,2)}, v3 offset:{row*440+part*144+8*h}")
        k(f"ds_read_b32 v{dst+8}, v2 offset:{row*440+part*144}")
    vecs = [(Q, 14, 0)] + [(KK + 10 * w, 14 - 2 * w, 1) for w in range(8)] + [(VV + 10 * w, 14 - 2 * w, 2) for w in range(8)]
    for v in vecs[:4]: rdvec(*v)
    nxt = 4
    for w in range(8): k(f"v_mov_b32 v{LL+w}, 0")
    for w in range(8):
        k("s_waitcnt lgkmcnt(10)")
        for i in range(9): k(f"v_dot2c_f32_bf16 v{LL+w}, v{Q+i}, v{KK+10*w+i}")
        rdvec(*vecs[nxt]); nxt += 1
    while nxt < len(vecs):
        rdvec(*vecs[nxt]); nxt += 1
    if OPT.get("ast", 0): st(20)
    sc = f2u(18.0 ** -0.5)
    def rndL():
        for i in range(4): k(f"v_cvt_pk_bf16_f32 v{PP+i}, v{LL+2*i}, v{LL+2*i+1}")
        for i in range(4):
            k(f"v_lshlrev_b32 v{LL+2*i}, 16, v{PP+i}")
            k(f"v_and_b32 v{LL+2*i+1}, 0xffff0000, v{PP+i}")
    rndL()
    for w in range(8): k(f"v_mul_f32 v{LL+w}, {sc:#x}, v{LL+w}")
    rndL()
    k(f"v_mov_b32 v6, {f2u(-1e9):#x}")
    for w in range(1, 8):
        k(f"v_cmp_le_u32 s[{24+2*(w&1)}:{25+2*(w&1)}], {2*w}, v4")
        if w > 1: k(f"v_cndmask_b32 v{LL+w-1}, v6, v{LL+w-1}, s[{24+2*((w-1)&1)}:{25+2*((w-1)&1)}]")
    k(f"v_cndmask_b32 v{LL+7}, v6, v{LL+7}, s[26:27]")
    k(f"v_max3_f32 v7, v{LL}, v{LL+1}, v{LL+2}")
    k(f"v_max3_f32 v8, v{LL+3}, v{LL+4}, v{LL+5}")
    k(f"v_max3_f32 v7, v7, v{LL+6}, v{LL+7}")
    k(f"v_max_f32 v7, v7, v8")
    l2e = f2u(math.log2(math.e))
    for w in range(8): k(f"v_sub_f32 v{LL+w}, v{LL+w}, v7")
    for w in range(8): k(f"v_mul_f32 v{LL+w}, {l2e:#x}, v{LL+w}")
    for w in range(8): k(f"v_exp_f32 v{LL+w}, v{LL+w}")
    k(f"v_add_f32 v7, v{LL}, v{LL+1}")
    k(f"v_add_f32 v8, v{LL+2}, v{LL+3}")
    k(f"v_add_f32 v9, v{LL+4}, v{LL+5}")
    k(f"v_add_f32 v10, v{LL+6}, v{LL+7}")
    k("v_add_f32 v7, v7, v8\nv_add_f32 v9, v9, v10\nv_add_f32 v7, v7, v9\nv_rcp_f32 v7, v7")
    for w in range(8): k(f"v_mul_f32 v{LL+w}, v{LL+w}, v7")
    for i in range(4): k(f"v_cvt_pk_bf16_f32 v{PP+i}, v{LL+2*i}, v{LL+2*i+1}")
    if OPT.get("ast", 0): st(20)
    for i in range(18): k(f"v_mov_b32 v{OA+i}, 0")
    k("s_waitcnt lgkmcnt(0)")
    for wp in range(4):
        x, y = VV + 20 * wp, VV + 20 * wp + 10
        for i in range(9):
            k(f"v_perm_b32 v{KK+2*i}, v{y+i}, v{x+i}, s21")
            k(f"v_perm_b32 v{KK+2*i+1}, v{y+i}, v{x+i}, s22")
        for i in range(18): k(f"v_dot2c_f32_bf16 v{OA+i}, v{KK+i}, v{PP+wp}")
    for i in range(9): k(f"v_cvt_pk_bf16_f32 v{Q+i}, v{OA+2*i}, v{OA+2*i+1}")
    if OPT.get("ast", 0): st(20)
    for h in range(4): k(f"ds_write_b64 v3, {vr(Q+2*h,2)} offset:{14*440+8*h}")
    k(f"ds_write_b32 v2, v{Q+8} offset:{14*440}")
    k("s_waitcnt lgkmcnt(0)")
    k("s_barrier")
    if OPT.get("ast", 0): st(20)
    for n in range(3):
        k(f"ds_read_b64 {vr(KK+4*n,2)}, v13 offset:{64*n}")
        k(f"ds_read_b64 {vr(KK+4*n+2,2)}, v13 offset:{64*n+8}")
    for n in range(3):
        k(f"s_waitcnt lgkmcnt({4-2*n})")
        if n == 2: k("s_mov_b64 exec, 0xffff")
        k(f"buffer_store_dwordx4 {vr(KK+4*n,4)}, v12, s[16:19], s20 offen offset:{1024*n} sc1")
    k("s_mov_b64 exec, -1")
    if stamps and not fused:
        st(20); k("s_waitcnt vmcnt(0)"); st(20)
    if fused: k(f"s_branch {L['g2X']}")
    else: k("s_endpgm")

def w3_unit(k):
    Ln, Lg = k.lab("nat"), k.lab("go")
    k(f"""
    s_mul_i32 s20, s3, 3
    s_add_u32 s20, s20, s40          ; unit
    s_cmp_lt_u32 s40, 3
    s_cselect_b32 s20, s20, 360
    s_lshr_b32 s21, s20, 2           ; step
    s_and_b32 s22, s20, 3
    s_lshl_b32 s22, s22, 1
    s_cmp_lt_u32 s21, 18
    s_cselect_b32 s24, s28, s30
    s_cselect_b32 s25, s29, s31
    s_mov_b32 s26, {2304*1152}
    s_cselect_b32 s26, {576*1152}, s26
    s_mov_b32 s27, 0x20000
    s_cbranch_scc1 {Ln}
    s_sub_u32 s50, s21, 18
    s_mul_i32 s55, s50, 57
    s_lshr_b32 s55, s55, 9           ; u
    s_mul_i32 s56, s55, 9
    s_sub_u32 s56, s50, s56          ; v
    s_and_b32 s57, s55, 3
    s_lshl_b32 s57, s57, 1
    s_lshr_b32 s55, s55, 2
    s_add_u32 s55, s55, s57
    s_mul_i32 s55, s55, 288
    s_lshr_b32 s57, s56, 2
    s_mul_i32 s57, s57, 144
    s_and_b32 s50, s56, 3
    s_lshl_b32 s50, s50, 5
    s_add_u32 s57, s57, s50
    s_cmp_eq_u32 s56, 8
    s_cselect_b32 s57, 128, s57
    s_cselect_b32 s28, 4, 16
    s_cselect_b32 s29, 8, 4
    s_cselect_b32 s30, 144, 8
    s_add_u32 s23, s55, s57
    s_branch {Lg}
    {Ln}:
    s_lshl_b32 s23, s21, 5
    s_mov_b32 s28, 4
    s_mov_b32 s29, 8
    s_mov_b32 s30, 16
    {Lg}:
    s_mul_i32 s23, s23, 1152
    s_mul_i32 s50, s22, 144
    s_add_u32 s23, s23, s50
    s_cmp_lt_u32 s20, 360
    s_cselect_b32 s23, s23, 0x7fffffff
    s_mul_i32 s31, s40, 9216
    s_add_u32 s31, s31, 69632
    s_mov_b32 m0, s31
    """)
    for n in range(9):
        k(f"""
        v_add_u32 v12, {n*64}, v0
        v_mul_u32_u24 v13, 3641, v12
        v_lshrrev_b32 v13, 16, v13       ; rho
        v_mul_u32_u24 v14, 18, v13
        v_sub_u32 v12, v12, v14          ; chunk
        v_bfe_u32 v15, v13, 2, 1
        v_mul_u32_u24 v15, s28, v15
        v_bfe_u32 v14, v13, 3, 1
        v_mad_u32_u24 v15, v14, s29, v15
        v_bfe_u32 v14, v13, 4, 1
        v_mad_u32_u24 v15, v14, s30, v15
        v_and_b32 v14, 3, v13
        v_add_u32 v15, v15, v14
        v_mul_u32_u24 v15, 1152, v15
        v_lshl_add_u32 v15, v12, 4, v15
        buffer_load_dwordx4 v15, s[24:27], s23 offen lds
        s_add_u32 m0, m0, 1024
        """)
    k(f"""
    v_lshrrev_b32 v12, 4, v0         ; g
    v_bfe_u32 v13, v0, 2, 2          ; r
    v_and_b32 v14, 3, v0             ; c4
    v_lshl_add_u32 v15, v12, 3, v13
    v_mul_u32_u24 v15, 288, v15
    v_lshl_add_u32 v15, v14, 3, v15
    v_add_u32 v15, s31, v15
    v_and_b32 v12, 1, v12
    v_lshrrev_b32 v16, 1, v14
    v_lshl_add_u32 v12, v12, 1, v16
    v_lshl_add_u32 v12, v12, 3, v13
    v_mul_u32_u24 v12, 288, v12
    v_and_b32 v14, 1, v14
    v_lshl_add_u32 v12, v14, 3, v12
    v_add_u32 v12, s31, v12
    s_lshr_b32 s55, s21, 1
    s_lshl_b32 s55, s55, 3
    s_add_u32 s55, s55, s22
    s_mul_i32 s55, s55, 9216
    s_and_b32 s56, s21, 1
    s_lshl_b32 s57, s56, 9
    s_add_u32 s57, s57, s55
    s_add_u32 s57, s57, 8192
    s_lshl_b32 s56, s56, 10
    s_add_u32 s55, s55, s56
    s_add_u32 s56, s55, 4096
    """)
    k("s_waitcnt vmcnt(0)")
    for e in range(2):
        for j in range(4):
            k(f"ds_read_b64_tr_b16 {vr(100+e*20+j*4,2)}, v15 offset:{e*144+j*32}")
            k(f"ds_read_b64_tr_b16 {vr(102+e*20+j*4,2)}, v15 offset:{e*144+j*32+1152}")
        k(f"ds_read_b64_tr_b16 {vr(116+e*20,2)}, v12 offset:{e*144+128}")
        k(f"ds_read_b64_tr_b16 {vr(118+e*20,2)}, v12 offset:{e*144+128+1152}")
    for e in range(2):
        k(f"s_waitcnt lgkmcnt({10 if e == 0 else 0})")
        for j in range(4):
            k(f"buffer_store_dwordx4 {vr(100+e*20+j*4,4)}, v1, s[68:71], s{55+(j>>1)} offen offset:{(j&1)*2048} sc1")
        k("s_mov_b32 exec_hi, 0")
        k(f"buffer_store_dwordx4 {vr(116+e*20,4)}, v1, s[68:71], s57 offen sc1")
        k("s_mov_b32 exec_hi, -1")
        if e == 0: k("s_add_u32 s55, s55, 9216\ns_add_u32 s56, s56, 9216\ns_add_u32 s57, s57, 9216")

S2, R2, SZ2, BO2 = 32, 3, 34816, 16384
ZS = 104448
S3, R3, SZ3, BO3, LA3, SL0 = 45, 6, 17408, 8192, 4, 4
PL, PF, PA = 244, 245, 246

def tiles(k):
    k("""
    s_and_b32 s38, s34, 3
    s_lshl_b32 s38, s38, 3
    s_and_b32 s39, s35, 7
    s_add_u32 s38, s38, s39
    s_lshr_b32 s39, s34, 2
    s_lshl_b32 s39, s39, 2
    s_lshr_b32 s50, s35, 3
    s_add_u32 s39, s39, s50          ; nt3
    """)

def g2_hooks(k):
    def issueA():
        k("s_add_u32 m0, s41, s49")
        for n in range(4):
            if n: k(f"s_add_u32 m0, m0, 1024\ns_add_u32 s50, s42, {n*32768}")
            k(f"buffer_load_dwordx4 v{PA+(n&1)}, s[8:11], s{50 if n else 42} offen lds")
        k("s_add_u32 s42, s42, s88")
    def issueB():
        lin_dma(k, 4, 12, 43, 47, 49, vl16=PL, mods=" sc1")
        k("s_add_u32 m0, s45, s49")
        k("s_mov_b32 exec_hi, 0")
        k(f"buffer_load_dwordx4 v{PL}, s[12:15], s46 offen sc1 lds")
        k("s_mov_b32 exec_hi, -1")
        k("s_add_u32 s43, s43, s89")
        k("s_add_u32 s46, s46, s89")
    def poll(): k(f"buffer_load_dword v248, v{PF}, s[84:87], s53 offen sc1")
    def setup():
        srd(k, 8, 66, 0, 2048 * 4096)
        srd(k, 12, 4, Z2T_OFF, Z2T_SZ)
        k(f"""
        v_lshlrev_b32 v{PL}, 4, v0
        v_lshrrev_b32 v{PF}, 2, v0
        v_lshlrev_b32 v{PF}, 7, v{PF}
        v_and_b32 v{PA}, 3, v0
        v_lshl_add_u32 v{PF}, v{PA}, 2, v{PF}
        v_lshrrev_b32 v{PA+1}, 4, v0
        v_and_b32 v{PA}, 7, v0
        v_xor_b32 v{PA}, v{PA}, v{PA+1}
        v_lshrrev_b32 v{PA+1}, 3, v0
        v_lshlrev_b32 v{PA+1}, 12, v{PA+1}
        v_lshl_add_u32 v{PA}, v{PA}, 4, v{PA+1}
        v_xor_b32 v{PA+1}, 64, v{PA}
        s_lshl_b32 s41, s40, 12
        s_lshl_b32 s42, s36, 19
        s_lshl_b32 s50, s40, 17
        s_add_u32 s42, s42, s50          ; A goff
        s_mul_i32 s43, s37, 18432
        s_lshl_b32 s45, s40, 9
        s_add_u32 s46, s43, s45
        s_add_u32 s46, s46, 16384        ; B2 goff
        s_add_u32 s43, s43, s41          ; B goff
        s_add_u32 s47, s41, {BO2}
        s_add_u32 s45, s45, {BO2+16384}
        s_lshl_b32 s53, s37, 11
        s_add_u32 s53, s53, {F2}
        s_mov_b32 s100, 0
        s_mov_b32 s49, 0
        s_movk_i32 s88, 128
        s_mov_b32 s89, {144*2048}
        s_lshl_b32 s59, s36, 1
        s_lshl_b32 s50, s36, 8
        s_add_u32 s42, s42, s50
        """)
        issueA()
        k(f"s_mov_b32 s49, {SZ2}")
        issueA()
        k(f"""
        s_lshl_b32 s50, s36, 8
        s_sub_u32 s42, s42, s50
        s_cmp_eq_u32 s36, 0
        s_cselect_b32 s51, 0, 256
        s_cselect_b32 s50, {2*144*2048}, 0
        s_sub_u32 s42, s42, s51
        s_add_u32 s43, s43, s50
        s_add_u32 s46, s46, s50
        s_mov_b32 s49, {2*SZ2}
        """)
        poll()
    return dict(setup=setup, issueA=issueA, issueB=issueB, poll=poll)

def g23_body(k, st, L, G):
    R, SZ, BO = R2, SZ2, BO2
    stamps = st.on
    k.label(L["g2X"])
    k(f"s_cmp_ge_u32 s33, 4\ns_cbranch_scc1 {L['g2D2']}")
    k.label(L["g2C"])
    ACC, BUF, ZR, XT, BR, BP, T = 144, [0, 36, 72, 108], 0, 224, 234, 40, 48
    RW, QQ = 238, 239
    G0, G1, GB, GBH = 241, 242, 243, 244
    VA0, VA1, VB, VL16, VT, GO = 248, 249, 250, 251, 252, 240
    acc = lambda i, j: ACC + (i * 5 + j) * 4
    k(f"""
    s_load_dwordx2 s[66:67], s[0:1], {KA['out']}
    v_mbcnt_lo_u32_b32 v{VL16}, -1, 0
    v_mbcnt_hi_u32_b32 v{VL16}, -1, v{VL16}
    v_lshlrev_b32 v{VL16}, 4, v{VL16}
    s_and_b32 s40, s33, 1            ; wm
    s_lshr_b32 s41, s33, 1           ; wn
    v_bfe_u32 v{RW}, v{VL16}, 4, 4        ; row
    v_lshrrev_b32 v{QQ}, 8, v{VL16}     ; q
    v_lshrrev_b32 v{VA0}, 1, v{RW}
    v_xor_b32 v{VA0}, v{QQ}, v{VA0}
    v_lshlrev_b32 v{VA0}, 4, v{VA0}
    v_lshl_add_u32 v{VA0}, v{RW}, 7, v{VA0}
    s_lshl_b32 s42, s40, 13
    v_add_u32 v{VA0}, s42, v{VA0}
    v_xor_b32 v{VA1}, 64, v{VA0}
    s_lshl_b32 s43, s41, 13
    s_add_u32 s43, s43, {BO}
    v_add_u32 v{VB}, s43, v{VL16}
    s_cmp_eq_u32 s41, 0
    s_cselect_b64 vcc, -1, 0
    """)
    adv_setup(k, R, SZ)
    st()
    def reads(sub, b):
        o = [f"ds_read_b128 {vr(BUF[b]+i*4,4)}, v{VA1 if sub else VA0} offset:{i*2048}" for i in range(4)]
        o += [f"ds_read_b128 {vr(BUF[b]+16+j*4,4)}, v{VB} offset:{(j if j < 4 else 8)*2048+sub*1024}" for j in range(5)]
        return o
    def mf(b, seq, zero):
        return [f"v_mfma_f32_16x16x32_bf16 {vr(acc(i,j),4)}, {vr(BUF[b]+16+j*4,4)}, {vr(BUF[b]+i*4,4)}, {'0' if zero else vr(acc(i,j),4)}"
                for i, j in seq]
    def half(b, other, zero):
        for x in interleave(mf(b, snake(4, 4), zero), other): k(x)
        Ls = k.lab("sk")
        k(f"s_cbranch_vccz {Ls}")
        for x in mf(b, [(3 - i, 4) for i in range(4)], zero): k(x)
        k.label(Ls)
    adv = adv_ins(R, [VA0, VA1, VB])
    def first():
        tiles(k)
        k(f"""
        s_lshl_b32 s46, s36, 3
        s_lshl_b32 s47, s40, 2
        s_add_u32 s46, s46, s47          ; tfrag0
        s_mul_i32 s60, s46, {TFS}
        s_bfe_u32 s47, s37, 0x10001
        s_lshl_b32 s47, s47, 2
        s_lshr_b32 s48, s37, 2
        s_add_u32 s47, s47, s48
        s_mul_i32 s47, s47, 9216
        s_add_u32 s60, s60, s47
        s_and_b32 s47, s37, 1
        s_lshl_b32 s62, s47, 9
        s_add_u32 s62, s62, s60
        s_add_u32 s62, s62, {(18+8)*1024}
        s_lshl_b32 s47, s47, 12
        s_add_u32 s60, s60, s47
        s_lshl_b32 s47, s41, 11
        s_add_u32 s60, s60, s47
        s_add_u32 s60, s60, {18*1024}
        s_mul_i32 s48, s40, {4*4608}
        s_add_u32 s48, s48, {ZS}
        s_waitcnt lgkmcnt(0)
        """)
        srd(k, 16, 4, A3_OFF, A3_SZ)
        srd(k, 76, 66, 0, 2048 * 1152)
        srd(k, 84, 4, FLG_OFF, FLG_SZ)
        pre = f"""
        s_lshl_b32 s47, s40, 6
        v_add_lshl_u32 v{G0}, s47, v{RW}, 1
        v_add_u32 v{G0}, {BSC}, v{G0}
        s_lshl_b32 s47, s40, 5
        s_lshl_b32 s50, s41, 4
        s_add_u32 s47, s47, s50
        v_add_u32 v{GB}, s47, v{RW}
        v_mul_u32_u24 v{GB}, 144, v{GB}
        v_lshl_add_u32 v{GB}, v{QQ}, 3, v{GB}
        v_add_u32 v{GB}, {XSC}, v{GB}
        v_mul_u32_u24 v{GO}, 1152, v{RW}
        v_lshl_add_u32 v{GO}, v{QQ}, 3, v{GO}
        s_lshl_b32 s52, s38, 2
        s_lshl_b32 s47, s40, 1
        s_add_u32 s52, s52, s47
        s_add_u32 s52, s52, s41
        s_mul_i32 s47, s52, {16*1152}
        s_mul_i32 s50, s39, 144
        s_add_u32 s47, s47, s50
        v_lshrrev_b32 v{G1}, 1, v{QQ}
        v_lshlrev_b32 v{G1}, 8, v{G1}
        v_lshl_add_u32 v{G1}, v{RW}, 4, v{G1}
        v_and_b32 v{VT}, 1, v{QQ}
        v_lshl_add_u32 v{VT}, v{VT}, 3, v{G1}
        """.strip().split("\n")
        pre = [x.strip() for x in pre]
        pre += [f"ds_read_u16 v{BR+i}, v{G0} offset:{32*i}" for i in range(4)]
        pre += [f"ds_read_b64 {vr(XT+2*j,2)}, v{GB} offset:{j*32}" for j in range(5)]
        for x in pre: k(x)
    lp = loop4(k, S2, reads, half, adv, st, after_first=first, vm_wait=True)
    assert lp == 1
    k("s_barrier")
    k(f"""
    s_lshl_b32 s50, s41, 11
    s_add_u32 s50, s50, s48
    v_add_u32 v{VA0}, s50, v{VL16}
    v_add_u32 v{VA1}, s48, v{VT}
    """)
    zr = []
    for i in range(4):
        for p in range(2): zr.append(f"ds_read_b128 {vr(ZR+i*10+p*4,4)}, v{VA0} offset:{i*4608+p*1024}")
        zr.append(f"ds_read_b64 {vr(ZR+i*10+8,2)}, v{VA1} offset:{i*4608+4096}")
    for i in range(4): zr += [f"v_lshlrev_b32 v{BP+2*i}, 16, v{BR+i}", f"v_lshlrev_b32 v{BP+2*i+1}, 16, v{BR+i}"]
    half(2, zr[:12], False)
    half(3, zr[12:], False)
    k(f"""
    s_lshl_b32 s42, s40, 12
    s_lshl_b32 s43, s41, 10
    s_add_u32 s42, s42, s43
    s_add_u32 s42, s42, {SL0*SZ3}
    s_lshl_b32 s44, s41, 11
    s_add_u32 s45, s42, s44
    v_add_u32 v{G0}, s45, v{VL16}
    s_xor_b32 s44, s44, 2048
    s_add_u32 s45, s42, s44
    v_add_u32 v{G1}, s45, v{VL16}
    s_add_u32 s45, s43, {BO3+SL0*SZ3}
    v_add_u32 v{GB}, s45, v{VL16}
    v_and_b32 v{RW}, 7, v{RW}
    v_lshl_add_u32 v{RW}, v{QQ}, 3, v{RW}
    v_lshlrev_b32 v{RW}, 4, v{RW}
    s_lshl_b32 s45, s41, 9
    s_add_u32 s45, s45, {BO3+8192+SL0*SZ3}
    v_add_u32 v{GBH}, s45, v{RW}
    s_waitcnt lgkmcnt(0)
    """)
    st()
    def quad(i, j, n):
        a, z, t = acc(i, j), ZR + i * 10 + j * 2, T + (n & 1) * 4
        k(f"""
        v_pk_add_f32 {vr(a,2)}, {vr(a,2)}, {vr(BP+2*i,2)}
        v_pk_add_f32 {vr(a+2,2)}, {vr(a+2,2)}, {vr(BP+2*i,2)}
        v_lshlrev_b32 v{t}, 16, v{z}
        v_and_b32 v{t+1}, 0xffff0000, v{z}
        v_lshlrev_b32 v{t+2}, 16, v{z+1}
        v_and_b32 v{t+3}, 0xffff0000, v{z+1}
        v_pk_mul_f32 {vr(a,2)}, {vr(a,2)}, {vr(t,2)}
        v_pk_mul_f32 {vr(a+2,2)}, {vr(a+2,2)}, {vr(t+2,2)}
        v_cvt_pk_bf16_f32 v{z}, v{a}, v{a+1}
        v_cvt_pk_bf16_f32 v{z+1}, v{a+2}, v{a+3}
        """)
    n = 0
    for i in range(4):
        for j in range(4):
            quad(i, j, n); n += 1
            if j & 1: k(f"buffer_store_dwordx4 {vr(ZR+i*10+(j>>1)*4,4)}, v{VL16}, s[16:19], s60 offen offset:{(j>>1)*1024} sc1")
        if i < 3: k(f"s_add_u32 s60, s60, {TFS}")
    Ls = k.lab("es")
    k(f"s_cbranch_vccz {Ls}")
    for i in range(4):
        quad(i, 4, n); n += 1
        k(f"buffer_store_dwordx2 {vr(ZR+i*10+8,2)}, v{VT}, s[16:19], s62 offen sc1")
        if i < 3: k(f"s_add_u32 s62, s62, {TFS}")
    k.label(Ls)
    AC3, BU3 = 144, [0, 28]
    ac3 = lambda i, j: AC3 + (i * 5 + j) * 4
    for j in range(5):
        for h in range(2):
            k(f"v_lshlrev_b32 v{ac3(0,j)+2*h}, 16, v{XT+2*j+h}")
            k(f"v_and_b32 v{ac3(0,j)+2*h+1}, 0xffff0000, v{XT+2*j+h}")
    for r in range(ac3(1, 0), ac3(1, 4) + 4): k(f"v_mov_b32 v{r}, 0")
    adv_setup(k, R3, SZ3)
    k(f"s_mov_b32 s59, {SL0}")
    st()
    def reads3(sub, b):
        o = [f"ds_read_b128 {vr(BU3[b],4)}, v{G0}", f"ds_read_b128 {vr(BU3[b]+4,4)}, v{G1}"]
        o += [f"ds_read_b128 {vr(BU3[b]+8+j*4,4)}, v{GB} offset:{j*2048}" for j in range(4)]
        o += [f"ds_read_b128 {vr(BU3[b]+24,4)}, v{GBH}"]
        return o
    def mf3(b):
        return [f"v_mfma_f32_16x16x32_bf16 {vr(ac3(i,j),4)}, {vr(BU3[b]+8+j*4,4)}, {vr(BU3[b]+i*4,4)}, {vr(ac3(i,j),4)}"
                for i, j in snake(2, 5)]
    adv3 = adv_ins(R3, [G0, G1, GB, GBH])
    k("s_waitcnt vmcnt(0)")
    set_flag(k, f"s_lshl_b32 s50, s36, 11\ns_lshl_b32 s51, s37, 7\ns_add_u32 s50, s50, s51\ns_lshl_b32 s51, s33, 2\ns_add_u32 s50, s50, s51\ns_add_u32 s50, s50, {F4}", 60)
    k("s_barrier")
    st()
    for r in reads3(0, 0) + adv3: k(r)
    k("s_waitcnt lgkmcnt(0)")
    for b_ in range(OPT.get("fd", 0)):
        k("s_barrier")
        for x in interleave(mf3(b_ & 1), reads3(0, 1 - (b_ & 1)) + adv3): k(x)
        k("s_waitcnt lgkmcnt(0)")
    assert OPT.get("fd", 0) % 2 == 0
    k(f"s_mov_b32 s58, {(S3 - 1 - OPT.get('fd', 0)) // 2}")
    Ltop = k.lab("top")
    k.label(Ltop)
    k("s_barrier")
    for x in interleave(mf3(0), reads3(0, 1) + adv3): k(x)
    k("s_waitcnt lgkmcnt(0)")
    k("s_barrier")
    for x in interleave(mf3(1), reads3(0, 0) + adv3 + CNT): k(x)
    k("s_waitcnt lgkmcnt(0)")
    k(f"s_cbranch_scc1 {Ltop}")
    k("s_barrier")
    last = 0
    st()
    for m in mf3(last): k(m)
    k("s_lshl_b32 s42, s40, 1")
    ksplit_reduce(k, ac3(1, 0), 5, 42, 41, VL16, G0, G1, 0)
    for n in range(5): k(f"ds_read_b128 {vr(ac3(1,0)+n*4,4)}, v{G1} offset:{n*1024}")
    for j in range(5):
        k(f"s_waitcnt lgkmcnt({4-j})")
        a, b = ac3(0, j), ac3(1, j)
        k(f"v_pk_add_f32 {vr(a,2)}, {vr(a,2)}, {vr(b,2)}")
        k(f"v_pk_add_f32 {vr(a+2,2)}, {vr(a+2,2)}, {vr(b+2,2)}")
        k(f"v_cvt_pk_bf16_f32 v{2*j}, v{a}, v{a+1}")
        k(f"v_cvt_pk_bf16_f32 v{2*j+1}, v{a+2}, v{a+3}")
        if j == 4: k("s_mov_b32 exec_hi, 0")
        k(f"buffer_store_dwordx2 {vr(2*j,2)}, v{GO}, s[76:79], s47 offen offset:{j*32}")
    if stamps:
        k("s_mov_b32 exec_hi, -1")
        st(); k("s_waitcnt vmcnt(0)"); st()
    k("s_endpgm")
    k.label(L["g2D"])
    G["setup"]()
    srd(k, 68, 4, W3_OFF, W3_SZ)
    Lw = k.lab("nw")
    k(f"s_cmp_eq_u32 s40, 3\ns_cbranch_scc1 {Lw}")
    w3_unit(k)
    k.label(Lw)
    k("s_waitcnt vmcnt(0)")
    k.label(L["g2D2"])
    if OPT.get("pd", 3): k(f"s_setprio {OPT.get('pd', 3)}")
    k("s_waitcnt vmcnt(3)")
    spin(k, G["poll"], lambda: k("v_cmp_ne_u32 vcc, s101, v248"))
    def issue():
        k(f"s_sub_u32 s59, s59, 1\ns_cmp_eq_u32 s59, 0\ns_cselect_b32 s88, 384, s23\ns_cselect_b32 s89, {3*144*2048}, s30")
        G["issueA"](); G["issueB"](); slot_adv_prod(k, R, SZ, 49)
    k(f"s_movk_i32 s23, 128\ns_mov_b32 s30, {144*2048}")
    def ploop(n, iss, allowed):
        Lp = k.lab("pl")
        k(f"s_mov_b32 s58, {n}")
        k.label(Lp)
        k(f"s_waitcnt vmcnt({allowed})")
        k("s_barrier")
        iss()
        k(f"s_sub_u32 s58, s58, 1\ns_cmp_lg_u32 s58, 0\ns_cbranch_scc1 {Lp}")
    tiles(k)
    srd(k, 68, 4, W3_OFF, W3_SZ)
    k(f"""
    v_mov_b32 v1, v{PL}
    s_lshl_b32 s60, s40, 11          ; g3 A lds
    s_lshl_b32 s61, s38, 2
    s_add_u32 s61, s61, s40
    s_mul_i32 s61, s61, {TFS}        ; g3 A goff
    s_mul_i32 s62, s39, 9216
    s_lshl_b32 s63, s40, 8
    s_add_u32 s48, s62, s63
    s_add_u32 s48, s48, 8192         ; g3 B2 goff
    s_add_u32 s62, s62, s60          ; g3 B goff
    s_add_u32 s65, s60, {BO3}
    s_add_u32 s66, s63, {BO3+8192}
    s_mov_b32 s67, {SL0*SZ3}
    s_lshl_b32 s51, s36, 3
    s_lshl_b32 s52, s40, 1
    s_add_u32 s51, s51, s52
    s_mul_i32 s51, s51, {TFS}
    s_bfe_u32 s50, s37, 0x10001
    s_lshl_b32 s50, s50, 2
    s_lshr_b32 s44, s37, 2
    s_add_u32 s50, s50, s44
    s_mul_i32 s50, s50, 9216
    s_add_u32 s51, s51, s50
    s_and_b32 s50, s37, 1
    s_lshl_b32 s44, s50, 9
    s_add_u32 s44, s44, s51
    s_add_u32 s44, s44, {26*1024}
    s_lshl_b32 s50, s50, 12
    s_add_u32 s51, s51, s50
    s_add_u32 s51, s51, {18*1024}
    s_mul_i32 s52, s52, 4608
    s_add_u32 s52, s52, {ZS}
    s_lshr_b32 s53, s38, 1
    s_lshl_b32 s53, s53, 11
    s_add_u32 s53, s53, {F4}
    s_movk_i32 s54, {F3}
    s_movk_i32 s20, 2048
    s_mov_b32 s21, {8*9216}
    s_lshr_b32 s22, s35, 3
    s_add_u32 s22, s22, s35
    s_and_b32 s22, s22, {(OPT.get("ko", 0) >> 1) & 1}
    """)
    ZB = OPT.get("zb", 21)
    ploop(5, issue, 9)
    Ls = k.lab("f3")
    k(f"s_cmp_lg_u32 s40, 0\ns_cbranch_scc1 {Ls}")
    set_flag(k, f"s_lshl_b32 s50, s2, 2\ns_add_u32 s50, s50, {F3}", 8)
    k.label(Ls)
    ploop(9, issue, 9)
    ploop(ZB - 15, issue, 9)
    ld = lambda: k("buffer_load_dwordx4 v[8:11], v1, s[84:87], s54 offen sc1")
    only(k, 2, ld)
    ploop(1, issue, 9)
    k("s_waitcnt vmcnt(9)")
    only(k, 2, lambda: spin(k, ld, lambda: k("v_xor_b32 v8, s101, v8\nv_xor_b32 v9, s101, v9\nv_xor_b32 v10, s101, v10\nv_xor_b32 v11, s101, v11\nv_or3_b32 v8, v8, v9, v10\nv_or_b32 v8, v8, v11\nv_cmp_ne_u32 vcc, 0, v8")))
    ploop(30 - ZB, issue, 9)
    for e in range(2):
        k(f"s_add_u32 m0, s52, {e*4608}")
        for n in range(4): k(f"buffer_load_dwordx4 v1, s[16:19], s51 offen offset:{n*1024} sc1 lds")
        k(f"s_add_u32 m0, s52, {e*4608+4096}")
        k("s_mov_b32 exec_hi, 0")
        k(f"buffer_load_dwordx4 v1, s[16:19], s44 offen sc1 lds")
        k("s_mov_b32 exec_hi, -1")
        k(f"s_add_u32 s51, s51, {TFS}\ns_add_u32 s44, s44, {TFS}")
    def issue3():
        k("s_add_u32 m0, s60, s67")
        for n in range(2): k(f"buffer_load_dwordx4 v1, s[16:19], s61 offen offset:{n*1024} sc1 lds")
        k("s_add_u32 m0, s65, s67")
        for n in range(2): k(f"buffer_load_dwordx4 v1, s[68:71], s62 offen offset:{n*1024} sc1 lds")
        k("s_add_u32 m0, s66, s67")
        k("s_mov_b64 exec, 0xffff")
        k(f"buffer_load_dwordx4 v1, s[68:71], s48 offen sc1 lds")
        k("s_mov_b64 exec, -1")
        k("s_add_u32 s61, s61, s20")
        k("s_add_u32 s62, s62, s21")
        k("s_add_u32 s48, s48, s21")
        slot_adv_prod(k, R3, SZ3, 67)
    k("s_waitcnt vmcnt(19)")
    k("s_barrier")
    issue3(); issue3()
    k("s_waitcnt vmcnt(20)")
    k("s_barrier")
    k("s_waitcnt vmcnt(10)")
    k("s_barrier")
    issue3(); issue3()
    NW = 0
    if OPT.get("w3l2", 0):
        k(f"""
        s_lshr_b32 s50, s34, 2
        s_mul_i32 s50, s50, {4*9216}
        s_mul_i32 s55, s35, {8*9216}
        s_add_u32 s50, s50, s55
        s_mul_i32 s55, s40, 9216
        s_add_u32 s50, s50, s55
        v_lshlrev_b32 v12, 7, v0
        buffer_load_dword v13, v12, s[68:71], s50 offen
        s_add_u32 s50, s50, {32*8*9216}
        buffer_load_dword v14, v12, s[68:71], s50 offen
        """)
        NW = 2
    ploop(3, issue3, 15 + NW)
    ploop(1, issue3, 15)
    ld4 = lambda: k(f"buffer_load_dword v4, v{PF}, s[84:87], s53 offen sc1")
    half4 = "s_mov_b32 exec_lo, 0x00ff00ff\ns_mov_b32 exec_hi, 0x00ff00ff"
    only(k, 0, lambda: (k(half4), ld4(), k("s_mov_b64 exec, -1")))
    k("s_waitcnt vmcnt(15)")
    k("s_barrier")
    issue3()
    k("s_waitcnt vmcnt(15)")
    only(k, 0, lambda: (k("s_waitcnt vmcnt(5)\n" + half4), spin(k, ld4, lambda: k("v_cmp_ne_u32 vcc, s101, v4")), k("s_mov_b64 exec, -1")))
    k("s_barrier")
    def jump3(expr):
        k(expr)
        k(f"""
        s_mul_i32 s55, s50, 2048
        s_add_u32 s61, s61, s55
        s_mul_i32 s55, s50, {8*9216}
        s_add_u32 s62, s62, s55
        s_add_u32 s48, s48, s55
        """)
    jump3("s_mul_i32 s50, s22, 18")
    issue3()
    ploop(12, issue3, 15)
    half5 = "s_mov_b32 exec_lo, 0xff00ff00\ns_mov_b32 exec_hi, 0xff00ff00"
    only(k, 3, lambda: (k(half5), ld4(), k("s_mov_b64 exec, -1")))
    ploop(4, issue3, 15)
    only(k, 3, lambda: (k(half5), spin(k, ld4, lambda: k("v_cmp_ne_u32 vcc, s101, v4")), k("s_mov_b64 exec, -1")))
    ploop(1, issue3, 15)
    if OPT.get("ko", 0) & 2:
        jump3("s_mul_i32 s50, s22, 36\ns_sub_u32 s50, 17, s50")
        k("s_sub_u32 s20, 0, s20\ns_sub_u32 s21, 0, s21")
    ploop(18, issue3, 15)
    for b in range(S3 - LA3, S3):
        k(f"s_waitcnt vmcnt({(S3-1-b)*5})")
        k("s_barrier")
    k("s_endpgm")

class DbgStamps:
    def __init__(self, k): self.k, self.on, self.n = k, True, 0
    def init(self):
        k = self.k
        k(f"s_load_dwordx2 s[90:91], s[0:1], {KA['dbg']}\ns_waitcnt lgkmcnt(0)")
        srd(k, 96, 90, 0, 256)
        k("s_mov_b32 s95, 4")
    def __call__(self, v=254):
        k = self.k
        self.n += 1
        if self.n <= 3: return
        L = k.lab("ds")
        k(f"""
        s_cmp_lg_u32 s33, 0
        s_cbranch_scc1 {L}
        s_memrealtime s[92:93]
        s_waitcnt lgkmcnt(0)
        s_sub_u32 s92, s92, s101
        v_mov_b32 v{v}, s92
        v_mov_b32 v{v-1}, 0
        s_mov_b64 exec, 1
        buffer_atomic_umax v{v}, v{v-1}, s[96:99], s95 offen
        s_mov_b64 exec, -1
        s_add_u32 s95, s95, 4
        {L}:
        """)

def gen_main(name, stamps=False):
    k = Kern(name); st = Stamps(k, stamps, 1)
    if OPT.get("dbg", 0): st = DbgStamps(k)
    L = {n: k.lab(n) for n in "end D C2q att g2C g2D g2D2 g2X nx".split()}
    preamble(k, 256, L["end"], [(4, "ws"), (6, "w_in"), (64, "wqkv"), (66, "w_sp"), (68, "x"), (74, "dbg")])
    k("s_mov_b32 s101, 1\ns_mov_b32 s100, 0")
    for r in range(244, 249): k(f"v_mov_b32 v{r}, 0")
    G = g2_hooks(k)
    k1_body(k, st, L, True, True, G)
    g23_body(k, st, L, G)
    k.label(L["end"])
    k("s_endpgm")
    return k

if __name__ == "__main__":
    HEADER = open("parallel_sum__sliding_local_dilated__mixer_gmlp__prompt.s.ref").read().split("; Override launch")[0]
    stamps = "stamps" in sys.argv[2:]
    for a in sys.argv[2:]:
        if "=" in a: OPT[a.split("=")[0]] = int(a.split("=")[1])
    ks = [(gen_main("parallel_sum__sliding_local_dilated__mixer_gmlp__prompt_kernel", stamps), 256, 256, 512, 163840)]
    txt = assemble_file(HEADER + "; generated by a python script (tile loops, fragment layouts and wait states hand-designed)\n", ks)
    if "plain" in sys.argv[2:]:
        txt = re.sub(r"; @launch kernel=\S+ grid", "; @launch grid", txt)
    open(sys.argv[1], "w").write(txt)
```

```python
import sys, math, re
from asmlib import *
import gen2
from gen2 import *
from gen4 import reduce16

FLG_OFF = 0x3450000; FLG_SZ = 0x24000
F5 = 0x4000 + 0x1c000
W1_OFF = WSP_OFF; W1_SZ = 16 * 9 * 18432
WQ_REL = 0; W12_SZ = 8 * 9 * 28672
RS_OFF = 0x3440000; RS_SZ = 128 * 128
F0 = 16384
F1, F2, F4, F3 = 0x8000, 0x10000, 0x18000, 12288
TFS = 90 * 1024
ATT = 69632
XSC = 153600
BSC = XSC + 9216
HSC = BSC + 256

def snake(no, ni):
    return [(o, i if o % 2 == 0 else ni - 1 - i) for o in range(no) for i in range(ni)]

def w144_voff(k, d, sid, pitch):
    k(f"""
    v_add_u32 v2, s{sid}, v0
    v_mul_u32_u24 v3, 3641, v2
    v_lshrrev_b32 v3, 16, v3
    v_mul_u32_u24 v4, 18, v3
    v_sub_u32 v2, v2, v4
    v_and_b32 v4, 4, v3
    v_and_b32 v5, 8, v3
    v_lshlrev_b32 v4, 1, v4
    v_lshrrev_b32 v5, 1, v5
    v_and_b32 v3, 0x33, v3
    v_or3_b32 v3, v3, v4, v5
    v_mul_u32_u24 v3, {pitch}, v3
    v_lshl_add_u32 v{d}, v2, 4, v3
    """)
def qkv_voff(k, d, sid):
    k(f"""
    v_add_u32 v2, s{sid}, v0
    v_mul_u32_u24 v3, 2341, v2
    v_lshrrev_b32 v3, 16, v3
    v_mul_u32_u24 v4, 28, v3
    v_sub_u32 v2, v2, v4
    v_and_b32 v4, 4, v3
    v_lshrrev_b32 v5, 1, v4
    v_xor_b32 v2, v2, v5
    v_lshlrev_b32 v4, 1, v4
    v_and_b32 v5, 8, v3
    v_lshrrev_b32 v5, 1, v5
    v_and_b32 v3, 0x33, v3
    v_or3_b32 v3, v3, v4, v5
    v_mul_u32_u24 v3, 3456, v3
    v_mul_u32_u24 v4, 57, v2
    v_lshrrev_b32 v4, 9, v4
    v_mul_u32_u24 v5, {1152-144}, v4
    v_lshl_add_u32 v5, v2, 4, v5
    v_add_u32 v3, v3, v5
    v_mov_b32 v5, 0x80000000
    v_cmp_gt_u32 vcc, 27, v2
    v_cndmask_b32 v{d}, v5, v3, vcc
    """)

def lin_dma(k, n, srdr, soff, mbase, slot, vl16=1, mods=""):
    for g in range(0, n, 4):
        if g == 0:
            k(f"s_add_u32 m0, s{mbase}, s{slot}"); so = soff
        else:
            k("s_add_u32 m0, m0, 4096"); k(f"s_add_u32 s50, s{soff}, {g*1024}"); so = 50
        for i in range(min(4, n - g)):
            k(f"buffer_load_dwordx4 v{vl16}, s[{srdr}:{srdr+3}], s{so} offen offset:{i*1024}{mods} lds")
def gat_dma(k, n, srdr, soff, mbase, slot, V):
    k(f"s_add_u32 m0, s{mbase}, s{slot}")
    for i in range(n):
        if i: k("s_add_u32 m0, m0, 1024")
        k(f"buffer_load_dwordx4 v{V+i}, s[{srdr}:{srdr+3}], s{soff} offen lds")

def spin(k, load, check):
    Lp, Ld = k.lab("sp"), k.lab("sd")
    check()
    k(f"s_cbranch_vccz {Ld}")
    k("s_mov_b32 s50, 0x20000")
    k.label(Lp)
    k(f"s_sleep {OPT.get('slp', 2)}")
    load()
    k("s_waitcnt vmcnt(0)")
    k("s_sub_u32 s50, s50, 1")
    check()
    k("s_cmp_eq_u32 s50, 0")
    k("s_cselect_b64 vcc, 0, vcc")
    k(f"s_cbranch_vccnz {Lp}")
    k.label(Ld)

def set_flag(k, soff_expr_lines, vt):
    k(soff_expr_lines)
    k(f"""
    v_mov_b32 v{vt}, s101
    v_mov_b32 v{vt+1}, 0
    s_mov_b64 exec, 1
    buffer_store_dword v{vt}, v{vt+1}, s[84:87], s50 offen sc1
    s_mov_b64 exec, -1
    """)

def only(k, pw, fn):
    Ls = k.lab("ow")
    k(f"s_cmp_lg_u32 s40, {pw}\ns_cbranch_scc1 {Ls}")
    fn()
    k.label(Ls)

CNT = ["s_sub_u32 s58, s58, 1", "s_cmp_lg_u32 s58, 0"]


def phase0(k, st, L):
    SZ = 51200
    Lw, Ld, Ln6, Lnz, Lnt = k.lab("w3"), k.lab("p0d"), k.lab("n6"), k.lab("nz"), k.lab("nt")
    srd(k, 84, 4, FLG_OFF, FLG_SZ)
    k(f"""
    s_cmp_lg_u32 s33, 7
    s_cbranch_scc1 {Lnz}
    s_lshl_b32 s50, s36, 11
    s_lshl_b32 s51, s37, 7
    s_add_u32 s50, s50, s51
    s_lshl_b32 s51, s37, 11
    s_lshl_b32 s52, s36, 7
    s_add_u32 s51, s51, s52
    s_add_u32 s51, s51, {F2}
    s_add_u32 s52, s50, {F4}
    s_add_u32 s50, s50, {F1}
    s_lshl_b32 s53, s2, 2
    s_add_u32 s53, s53, {F3}
    v_mov_b32 v4, s50
    v_writelane_b32 v4, s51, 1
    v_writelane_b32 v4, s52, 2
    v_writelane_b32 v4, s53, 3
    s_mov_b64 exec, 15
    buffer_load_dword v252, v4, s[84:87], 0 offen
    s_mov_b64 exec, -1
    {Lnz}:
    s_cmp_eq_u32 s32, 0
    s_cbranch_scc1 {Lw}
    """)
    k(f"""
    s_cmp_ge_u32 s33, 4
    s_cbranch_scc1 {Ln6}
    v_mul_u32_u24 v5, 144, v2
    v_add_u32 v5, {2*SZ}, v5
    s_lshl_b32 s47, s33, 5
    v_lshl_add_u32 v6, v3, 3, v5
    v_add_u32 v6, s47, v6
    s_lshl_b32 s47, s44, 11
    """)
    for i in range(5):
        k(f"""
        s_add_u32 s50, s46, {i}
        s_lshr_b32 s51, s50, 1
        s_lshl_b32 s51, s51, 18
        s_and_b32 s50, s50, 1
        s_lshl_b32 s50, s50, 10
        s_add_u32 s51, s51, s50
        s_add_u32 s{53+i}, s51, s47
        """)
    k("s_cmp_lt_u32 s33, 2\ns_cselect_b32 s57, s57, 0x7fffffff")
    k("s_waitcnt vmcnt(0)")
    X = 28
    for i in range(20):
        k(f"v_lshlrev_b32 v{X+2*i}, 16, v{8+i}")
        k(f"v_and_b32 v{X+2*i+1}, 0xffff0000, v{8+i}")
    k("v_lshlrev_b32 v94, 16, v94\nv_mov_b32 v95, v94")
    L4 = k.lab("l4")
    for i in range(20):
        if i == 16: k(f"s_cmp_ge_u32 s33, 2\ns_cbranch_scc1 {L4}")
        d = 74 + 2 * (i & 3)
        k(f"v_pk_add_f32 {vr(d,2)}, {vr(X+2*i,2)}, v[94:95] neg_lo:[0,1] neg_hi:[0,1]")
        if i == 0: continue
        p = 74 + 2 * ((i - 1) & 3)
        if i == 1: k(f"v_pk_mul_f32 v[70:71], {vr(p,2)}, {vr(p,2)}\nv_pk_add_f32 v[68:69], {vr(p,2)}, {vr(d,2)}\nv_pk_mul_f32 v[72:73], {vr(d,2)}, {vr(d,2)}")
        else: k(f"v_pk_add_f32 v[68:69], v[68:69], {vr(d,2)}\nv_pk_fma_f32 {vr(70+2*(i&1),2)}, {vr(d,2)}, {vr(d,2)}, {vr(70+2*(i&1),2)}")
    k.label(L4)
    k("v_pk_add_f32 v[70:71], v[70:71], v[72:73]\nv_add_f32 v68, v68, v69\nv_add_f32 v69, v70, v71")
    k("ds_write_b64 v6, v[68:69]\nv_mov_b32 v100, v94")
    k("s_waitcnt lgkmcnt(0)")
    k("s_barrier")
    for i in range(8): k(f"ds_read_b128 {vr(68+4*i,4)}, v5 offset:{i*16}")
    k("s_waitcnt lgkmcnt(0)")
    for w in (8, 4, 2, 1):
        for i in range(w): k(f"v_pk_add_f32 {vr(68+2*i,2)}, {vr(68+2*i,2)}, {vr(68+2*(i+w),2)}")
    inv = f2u(1.0 / 576)
    k(f"""
    v_mul_f32 v96, {inv:#x}, v68
    v_mul_f32 v98, {inv:#x}, v69
    v_fma_f32 v98, -v96, v96, v98
    v_max_f32 v98, 0, v98
    v_add_f32 v96, v96, v100
    """)
    rnd_bf16(k, 96, 96)
    rnd_bf16(k, 98, 98)
    k("v_mov_b32 v97, v96")
    k(f"v_add_f32 v98, {f2u(1e-5):#x}, v98")
    rnd_bf16(k, 98, 98)
    k("v_sqrt_f32 v98, v98")
    for i in range(20): k(f"v_pk_add_f32 {vr(X+2*i,2)}, {vr(X+2*i,2)}, v[96:97] neg_lo:[0,1] neg_hi:[0,1]")
    rnd_bf16(k, 98, 98)
    k("v_rcp_f32 v98, v98")
    for i in range(20): k(f"v_cvt_pk_bf16_f32 v{8+i}, v{X+2*i}, v{X+2*i+1}")
    k("v_mov_b32 v99, v98")
    for i in range(20):
        k(f"v_lshlrev_b32 v{X+2*i}, 16, v{8+i}")
        k(f"v_and_b32 v{X+2*i+1}, 0xffff0000, v{8+i}")
    for i in range(20): k(f"v_pk_mul_f32 {vr(X+2*i,2)}, {vr(X+2*i,2)}, v[98:99]")
    for i in range(20): k(f"v_cvt_pk_bf16_f32 v{8+i}, v{X+2*i}, v{X+2*i+1}")
    for i in range(5): k(f"buffer_store_dwordx4 {vr(8+4*i,4)}, v1, s[8:11], s{53+i} offen sc1")
    k(f"s_cmp_lg_u32 s33, 0\ns_cbranch_scc1 {Ld}")
    srd(k, 20, 4, RS_OFF, RS_SZ)
    k(f"""
    v_sub_f32 v96, 0, v96
    v_cmp_gt_u32 vcc, 16, v0
    v_lshlrev_b32 v97, 2, v0
    s_lshl_b32 s45, s44, 7
    v_cndmask_b32 v96, v98, v96, vcc
    s_mov_b32 exec_hi, 0
    buffer_store_dword v96, v97, s[20:23], s45 offen sc1
    s_mov_b32 exec_hi, -1
    s_branch {Ld}
    """)
    k.label(Ln6)
    srd(k, 20, 4, ST_OFF, ST_SZ)
    Lz = k.lab("z7")
    k(f"""
    v_mov_b32 v4, 0
    v_lshlrev_b32 v5, 2, v0
    s_lshl_b32 s45, s44, 7
    s_cmp_lg_u32 s33, 7
    s_cbranch_scc1 {Lz}
    s_mov_b32 exec_hi, 0
    buffer_store_dword v4, v5, s[20:23], s45 offen sc1
    s_mov_b32 exec_hi, -1
    {Lz}:
    s_barrier
    s_branch {Ld}
    """)
    k.label(Lw)
    Lnw = k.lab("nw")
    k(f"""
    s_cmp_ge_u32 s33, 4
    s_cbranch_scc1 {Lnw}
    s_lshl_b32 s45, s33, 7
    s_add_u32 s45, s45, s44          ; g 0..511
    s_lshl_b32 s51, s45, 6
    v_add_u32 v243, s51, v0
    s_mov_b32 s52, 116509
    v_mul_lo_u32 v242, s52, v243
    v_lshrrev_b32 v242, 22, v242
    v_lshlrev_b32 v243, 7, v243
    v_mul_u32_u24 v242, 4608, v242
    v_add_u32 v242, v243, v242
    s_mov_b32 s51, 0x7fffffff
    s_cmp_lt_u32 s45, 324
    s_cselect_b32 s50, 4608, s51
    s_cselect_b32 s51, 0, s51
    buffer_load_dword v252, v242, s[12:15], s50 offen
    buffer_load_dword v252, v242, s[12:15], s51 offen
    s_sub_u32 s45, 511, s45
    s_cmp_ge_u32 s45, 288
    s_cbranch_scc1 {Lnw}
    s_mov_b32 s24, s64
    s_mov_b32 s25, s65
    s_mov_b32 s26, {576*3456}
    s_mov_b32 s27, 0x20000
    s_lshr_b32 s46, s45, 4           ; step
    s_bfe_u32 s47, s45, 0x30001      ; hg
    s_mul_i32 s48, s46, {32*3456}
    s_mul_i32 s50, s47, 144
    s_add_u32 s48, s48, s50
    s_mul_i32 s49, s47, 9
    s_lshr_b32 s50, s46, 1
    s_add_u32 s49, s49, s50
    s_mul_i32 s49, s49, 28672
    s_and_b32 s56, s45, 1
    s_mul_i32 s50, s56, {7*2048}
    s_add_u32 s49, s49, s50
    s_mul_i32 s56, s56, 14
    s_movk_i32 s52, 14
    s_movk_i32 s53, 4682
    s_movk_i32 s54, 3456
    s_movk_i32 s55, 1008
    s_and_b32 s50, s46, 1
    s_lshl_b32 s50, s50, 10
    s_add_u32 s49, s49, s50
    s_mul_i32 s57, s33, 7168
    s_add_u32 s57, s57, 86016
    s_mov_b32 m0, s57
    """)
    srd(k, 20, 4, W1_OFF, W12_SZ)
    for n in range(7):
        k(f"""
        v_add_u32 v2, {n*64}, v0
        v_mul_u32_u24 v3, s53, v2
        v_lshrrev_b32 v3, 16, v3         ; row
        v_mul_u32_u24 v4, s52, v3
        v_sub_u32 v2, v2, v4
        v_add_u32 v2, s56, v2            ; chunk
        v_mul_u32_u24 v4, 57, v2
        v_lshrrev_b32 v4, 9, v4          ; segment
        v_mul_u32_u24 v5, s54, v3
        v_lshl_add_u32 v5, v2, 4, v5
        v_mad_u32_u24 v5, v4, s55, v5
        v_lshrrev_b32 v3, 5, v3
        v_add_u32 v2, 5, v2
        v_lshrrev_b32 v2, 5, v2          ; chunk 27 -> 1
        v_or_b32 v3, v3, v2
        v_lshl_or_b32 v5, v3, 30, v5
        buffer_load_dwordx4 v5, s[24:27], s48 offen lds
        s_add_u32 m0, m0, 1024
        """)
    k(f"""
    v_lshrrev_b32 v2, 4, v0
    v_bfe_u32 v3, v0, 2, 2
    v_lshl_add_u32 v2, v2, 3, v3
    s_lshl_b32 s50, s52, 4
    v_mul_u32_u24 v2, s50, v2
    v_and_b32 v3, 3, v0
    v_lshl_add_u32 v2, v3, 3, v2
    v_add_u32 v2, s57, v2
    s_lshl_b32 s50, s52, 6
    v_add_u32 v3, s50, v2
    s_waitcnt vmcnt(0)
    """)
    for j in range(7):
        k(f"ds_read_b64_tr_b16 {vr(8+j*4,2)}, v2 offset:{j*32}")
        k(f"ds_read_b64_tr_b16 {vr(10+j*4,2)}, v3 offset:{j*32}")
    for j in range(7):
        k(f"s_waitcnt lgkmcnt({12-2*j})")
        k(f"buffer_store_dwordx4 {vr(8+j*4,4)}, v1, s[20:23], s49 offen offset:{(j&1)*2048} sc1")
        if j & 1: k("s_add_u32 s49, s49, 4096")
    k(f"""
    {Lnw}:
    """)
    Lnc, Lpc = k.lab("nc"), k.lab("pc")
    k(f"""
    s_cmp_lg_u32 s35, 0
    s_cbranch_scc1 {Lnc}
    s_getpc_b64 s[28:29]
    {Lpc}:
    s_mov_b32 s30, {L['end']}-{Lpc}
    s_mov_b32 s31, 0x20000
    s_lshl_b32 s50, s33, 13
    v_lshlrev_b32 v242, 7, v0
    buffer_load_dword v252, v242, s[28:31], s50 offen
    {Lnc}:
    """)
    k.label(Ld)

def loop4(k, S, reads, half, adv, st, after_first=None, vm_wait=False, vm_first=False):
    def stage_reads(p): return reads(0, 2 * p) + reads(1, 2 * p + 1)
    def interval(p, other, zero=False):
        n = len(other); cut = min(n, 16)
        half(2 * p, other[:cut], zero); half(2 * p + 1, other[cut:], False)
    k("s_barrier")
    st()
    for r in stage_reads(0) + adv: k(r)
    if after_first: after_first()
    k("s_waitcnt lgkmcnt(0)")
    k("s_barrier")
    interval(0, stage_reads(1) + adv, True)
    m = S - 2
    k(f"s_mov_b32 s58, {(m+1)//2}")
    k("s_waitcnt vmcnt(0) lgkmcnt(0)" if vm_first else "s_waitcnt lgkmcnt(0)")
    Ltop, Lex = k.lab("top"), k.lab("ex")
    k.label(Ltop)
    k("s_barrier")
    interval(1, stage_reads(0) + adv + (CNT if m & 1 else []))
    k("s_waitcnt lgkmcnt(0)")
    if m & 1: k(f"s_cbranch_scc0 {Lex}")
    k("s_barrier")
    interval(0, stage_reads(1) + adv + ([] if m & 1 else CNT))
    k("s_waitcnt vmcnt(0) lgkmcnt(0)" if vm_wait else "s_waitcnt lgkmcnt(0)")
    k(f"s_branch {Ltop}" if m & 1 else f"s_cbranch_scc1 {Ltop}")
    k.label(Lex)
    st()
    return (S - 1) & 1

def k1_body(k, st, L, fused, single, G):
    R, SZ = 3, 51200
    BO1, BOZ, BOQ = 16384, 32768, 18432
    RSC = 2 * SZ + 40960
    stamps = st.on
    k(f"""
    s_and_b32 s36, s34, 1
    s_lshl_b32 s36, s36, 3
    s_and_b32 s37, s35, 7
    s_add_u32 s36, s36, s37          ; z2 mt
    s_lshr_b32 s37, s34, 1
    s_lshl_b32 s37, s37, 2
    s_lshr_b32 s38, s35, 3
    s_add_u32 s37, s37, s38          ; z2 nt
    s_lshr_b32 s32, s35, 4
    s_and_b32 s38, s34, 1
    s_lshl_b32 s38, s38, 2
    s_and_b32 s39, s35, 3
    s_add_u32 s38, s38, s39
    s_lshr_b32 s39, s34, 1
    s_lshl_b32 s50, s39, 1
    s_lshl_b32 s39, s39, 2
    s_lshr_b32 s51, s35, 2
    s_add_u32 s39, s39, s51          ; z1 nt
    s_bfe_u32 s51, s35, 0x10003
    s_add_u32 s50, s50, s51          ; hg
    s_cmp_eq_u32 s32, 0
    s_cselect_b32 s38, s38, s36
    s_cselect_b32 s39, s39, s50
    s_lshl_b32 s44, s34, 4
    s_and_b32 s50, s35, 15
    s_add_u32 s44, s44, s50
    s_mov_b32 s3, s44
    v_and_b32 v2, 15, v0             ; row
    v_lshrrev_b32 v3, 4, v0          ; q
    s_mul_i32 s45, s44, {16*1152}
    s_mul_i32 s46, s33, 5
    s_lshr_b32 s50, s33, 1
    s_and_b32 s50, s50, s33
    s_sub_u32 s46, s46, s50
    s_lshl_b32 s51, s46, 6
    s_add_u32 s45, s45, s51
    s_add_u32 s52, s45, 256
    s_cmp_lt_u32 s33, 2
    s_cselect_b32 s52, s52, 0x7fffffff
    s_cmp_lt_u32 s33, 4
    s_cselect_b32 s50, s32, 0
    v_mul_u32_u24 v4, 1152, v2
    v_lshl_add_u32 v7, v3, 4, v4
    s_mov_b32 s26, {2048*1152}
    s_mov_b32 s27, 0x20000
    s_waitcnt lgkmcnt(0)
    s_mov_b32 s24, s68
    s_mov_b32 s25, s69
    s_cmp_eq_u32 s50, 0
    s_cbranch_scc1 {L['nx']}
    buffer_load_dwordx4 v[8:11], v7, s[24:27], s45 offen
    buffer_load_dwordx4 v[12:15], v7, s[24:27], s45 offen offset:64
    buffer_load_dwordx4 v[16:19], v7, s[24:27], s45 offen offset:128
    buffer_load_dwordx4 v[20:23], v7, s[24:27], s45 offen offset:192
    buffer_load_dwordx4 v[24:27], v7, s[24:27], s52 offen
    s_mul_i32 s52, s44, {16*1152}
    buffer_load_ushort v94, v4, s[24:27], s52 offen
    {L['nx']}:
    """)
    srd(k, 8, 4, XN_OFF, XN_SZ)
    srd(k, 12, 6, 0, 576 * 9216)
    XS = " sc1" if single else ""
    st.init()
    def half_dma(srdr, v, soff, mbase, mods=""):
        k(f"s_add_u32 m0, s{mbase}, s49")
        k("s_mov_b32 exec_hi, 0")
        k(f"buffer_load_dwordx4 v{v}, s[{srdr}:{srdr+3}], s{soff} offen{mods} lds")
        k("s_mov_b32 exec_hi, -1")
    def i1A():
        k("s_add_u32 m0, s41, s49")
        for n in range(4):
            if n: k(f"s_add_u32 m0, m0, 1024\ns_add_u32 s50, s42, {n*8*1152}")
            k(f"buffer_load_dwordx4 v{105+(n&1)}, s[76:79], s{50 if n else 42} offen lds")
        k("s_add_u32 s42, s42, 128")
    def i1B():
        gat_dma(k, 4, 12, 43, 47, 49, 100); half_dma(12, 104, 43, 48); k(f"s_add_u32 s43, s43, {64*9216}")
    def issue1():
        i1A(); i1B(); slot_adv_prod(k, R, SZ, 49)
    Lne = k.lab("ne")
    srd(k, 76, 68, 0, 2048 * 1152)
    for r in range(100, 107): k(f"v_mov_b32 v{r}, 0")
    k(f"s_cmp_lt_u32 s33, 4\ns_cbranch_scc1 {Lne}")
    srd(k, 28, 74, 0, 256)
    Lnp = k.lab("npub")
    k(f"""
    s_xor_b32 s50, s33, 6
    s_or_b32 s50, s50, s2
    s_cmp_lg_u32 s50, 0
    s_cbranch_scc1 {Lnp}
    s_memrealtime s[50:51]
    v_mov_b32 v4, 0
    s_waitcnt lgkmcnt(0)
    s_or_b32 s50, s50, 1
    v_mov_b32 v5, s50
    s_mov_b64 exec, 1
    buffer_store_dword v5, v4, s[28:31], 0 offen sc1
    s_mov_b64 exec, -1
    {Lnp}:
    """)
    k(f"""
    s_sub_u32 s40, s33, 4            ; pw
    s_lshl_b32 s41, s40, 12          ; A lds
    s_mul_i32 s42, s36, {128*1152}
    s_mul_i32 s50, s40, {32*1152}
    s_add_u32 s42, s42, s50
    s_mul_i32 s43, s37, 288
    s_add_u32 s43, s43, 4608         ; B goff
    s_add_u32 s47, s41, {BO1}        ; B lds
    s_lshl_b32 s48, s40, 9
    s_add_u32 s48, s48, {BO1+16384}
    s_mov_b32 s49, 0
    v_lshrrev_b32 v106, 4, v0
    v_and_b32 v105, 7, v0
    v_xor_b32 v105, v105, v106
    v_lshrrev_b32 v106, 3, v0
    v_mul_u32_u24 v106, 1152, v106
    v_lshl_add_u32 v105, v105, 4, v106
    v_and_b32 v107, 64, v105
    v_lshlrev_b32 v107, 1, v107
    v_add_u32 v106, 64, v105
    v_sub_u32 v106, v106, v107
    s_lshl_b32 s51, s40, 8
    """)
    i1A()
    k("s_mov_b32 m0, s47")
    for n in range(4):
        w144_voff(k, 100 + n, 51, 9216)
        k("s_add_u32 s51, s51, 64")
        k(f"buffer_load_dwordx4 v{100+n}, s[12:15], s43 offen lds")
        k("s_add_u32 m0, m0, 1024")
    k("s_lshl_b32 s51, s40, 5\ns_add_u32 s51, s51, 1024")
    w144_voff(k, 104, 51, 9216)
    half_dma(12, 104, 43, 48)
    k(f"s_add_u32 s43, s43, {64*9216}\ns_mov_b32 s49, {SZ}")
    i1A(); i1B()
    k.label(Lne)
    if single:
        st(250)
        phase0(k, st, L)
        st(250)
    k(f"s_cmp_ge_u32 s33, 4\ns_cbranch_scc1 {L['D']}")
    srd(k, 16, 4, A3_OFF, A3_SZ)
    def loop2(reads, half, adv, vmw):
        Ltop = k.lab("top")
        k("s_mov_b32 s58, 8")
        k("s_barrier")
        st()
        for r in reads(0, 0): k(r)
        k("s_waitcnt lgkmcnt(0)")
        if vmw: k("s_barrier")
        half(0, reads(1, 1) + adv, True)
        k("s_waitcnt vmcnt(0) lgkmcnt(0)")
        k.label(Ltop)
        k("s_barrier")
        half(1, reads(0, 0), False)
        k("s_waitcnt lgkmcnt(0)")
        half(0, reads(1, 1) + adv + CNT, False)
        k("s_waitcnt lgkmcnt(0)")
        k(f"s_cbranch_scc1 {Ltop}")
        st()
    st()
    ACC, BUF, CS, ONE = 144, [0, 36, 72, 108], 224, 244
    VA0, VA1, VB, VL16 = 248, 249, 250, 251
    acc = lambda i, j: ACC + (i * 5 + j) * 4
    k(f"""
    s_mov_b32 s40, s33
    s_and_b32 s41, s40, 1            ; wm
    s_lshr_b32 s42, s40, 1           ; wn
    v_and_b32 v2, 15, v0
    v_lshrrev_b32 v3, 4, v0
    v_lshrrev_b32 v{VA0}, 1, v2
    v_xor_b32 v{VA0}, v3, v{VA0}
    v_lshlrev_b32 v{VA0}, 4, v{VA0}
    v_lshl_add_u32 v{VA0}, v2, 7, v{VA0}
    s_lshl_b32 s43, s41, 13
    v_add_u32 v{VA0}, s43, v{VA0}
    v_xor_b32 v{VA1}, 64, v{VA0}
    """)
    for r in range(4): k(f"v_mov_b32 v{ONE+r}, 0x3f803f80")
    tr_lane_base(k, VB, 288, 2)
    k(f"s_mul_i32 s43, s42, 160\ns_add_u32 s43, s43, {BO1}\nv_add_u32 v{VB}, s43, v{VB}")
    k(f"""
    s_cmp_eq_u32 s42, 0
    s_cselect_b64 vcc, -1, 0
    s_cselect_b32 s54, -1, 0
    s_mul_i32 s46, s41, {18*1024}
    s_mul_i32 s47, s42, {5*1024}
    s_add_u32 s46, s46, s47
    s_add_u32 s46, s46, {2*SZ}
    v_add_u32 v{VL16}, s46, v1
    """)
    C, T, O, SM, NM, RR = 0, 8, 72, 80, 112, 128
    adv_setup(k, R, SZ)
    def reads1(sub, b):
        o = [f"ds_read_b128 {vr(BUF[b]+i*4,4)}, v{VA1 if sub else VA0} offset:{i*2048}" for i in range(4)]
        for j in range(5):
            for hh in range(2):
                o.append(f"ds_read_b64_tr_b16 {vr(BUF[b]+16+j*4+hh*2,2)}, v{VB} offset:{sub*32*288+hh*8*288+j*32}")
        return o
    def mf1(b, seq, zero):
        return [f"v_mfma_f32_16x16x32_bf16 {vr(acc(i,j) if i < 4 else CS+4*j,4)}, {vr(BUF[b]+i*4 if i < 4 else ONE,4)}, {vr(BUF[b]+16+j*4,4)}, "
                f"{'0' if zero else vr(acc(i,j) if i < 4 else CS+4*j,4)}" for j, i in seq]
    def half1(b, other, zero):
        for x in interleave(mf1(b, snake(4, 5), zero), other): k(x)
        Ls = k.lab("sk")
        k(f"s_cbranch_vccz {Ls}")
        for x in mf1(b, [(4, i) for i in range(5)], zero): k(x)
        k.label(Ls)
    tag = lambda: k(f"v_mov_b32 v{ONE-1}, {HSC}\nds_read_b32 v{ONE-1}, v{ONE-1}\ns_waitcnt lgkmcnt(0)\nv_readfirstlane_b32 s101, v{ONE-1}")
    lp = loop4(k, 9, reads1, half1, adv_ins(R, [VA0, VA1, VB]), st, vm_first=True)
    assert lp == 0
    k("s_barrier")
    k(f"""
    v_mbcnt_lo_u32_b32 v{VB}, -1, 0
    v_mbcnt_hi_u32_b32 v{VB}, -1, v{VB}  ; lane
    v_and_b32 v{VA0}, 48, v{VB}
    s_lshl_b32 s43, s41, 9
    s_add_u32 s43, s43, {RSC}
    v_add_u32 v{VA0}, s43, v{VA0}
    """)
    rs = [f"ds_read_b128 {vr(NM+4*i,4)}, v{VA0} offset:{i*128}" for i in range(4)] + [f"ds_read_b128 {vr(RR+4*i,4)}, v{VA0} offset:{i*128+64}" for i in range(4)]
    half1(0, rs + [f"v_mov_b32 v{r}, 0" for r in range(SM, SM + 12)], False)
    half1(1, [f"v_mov_b32 v{r}, 0" for r in range(SM + 12, SM + 32)], False)
    gelu_consts(k, C)
    k(f"v_mov_b32 v6, {HSC}\nds_read_b32 v6, v6\ns_waitcnt lgkmcnt(0)\nv_readfirstlane_b32 s101, v6")
    VLN = VB
    n = 0
    for jj in range(5):
        if jj == 4:
            Ls = k.lab("us"); k(f"s_cbranch_vccz {Ls}")
        for P in range(2):
            a, b = acc(2 * P, jj), acc(2 * P + 1, jj)
            for x, q in enumerate([a, a + 2, b, b + 2]): k(f"v_pk_fma_f32 {vr(q,2)}, {vr(NM+8*P+2*x,2)}, {vr(CS+4*jj,2)}, {vr(q,2)}")
            for x, q in enumerate([a, a + 2, b, b + 2]): k(f"v_pk_mul_f32 {vr(q,2)}, {vr(q,2)}, {vr(RR+8*P+2*x,2)}")
            gelu(k, [a, a + 2, b, b + 2], T, C)
            o = O + (n & 1) * 4; n += 1
            for x, q in enumerate([a, a + 2, b, b + 2]): k(f"v_cvt_pk_bf16_f32 v{o+x}, v{q}, v{q+1}")
            k(f"ds_write_b128 v{VL16}, {vr(o,4)} offset:{(P*9+jj)*1024}")
            for e, q in enumerate([a, b]):
                i = 2 * P + e
                for h in range(2):
                    k(f"v_pk_add_f32 {vr(SM+4*i+2*h,2)}, {vr(SM+4*i+2*h,2)}, {vr(q+2*h,2)}")
                    k(f"v_pk_fma_f32 {vr(SM+16+4*i+2*h,2)}, {vr(q+2*h,2)}, {vr(q+2*h,2)}, {vr(SM+16+4*i+2*h,2)}")
    k.label(Ls)
    for m in range(1, 4):
        v = 0x11111111 << m
        k(f"s_mov_b32 s{58+2*m}, {v:#x}\ns_mov_b32 s{59+2*m}, {v:#x}")
    val = lambda P, i: SM + (i & 1) * 16 + (2 * P + (i >> 3)) * 4 + ((i >> 1) & 3)
    sets = [[val(P, i) for i in range(16)] for P in range(2)]
    reduce16(k, sets, 60)
    k(f"""
    s_lshl_b32 s46, s40, 9
    s_add_u32 s46, s46, {2*SZ+36864}
    v_lshlrev_b32 v{T+1}, 2, v{VLN}
    v_add_u32 v{T+1}, s46, v{T+1}
    ds_write_b32 v{T+1}, v{sets[0][0]}
    ds_write_b32 v{T+1}, v{sets[1][0]} offset:256
    v_mov_b32 v0, v{VLN}
    v_lshlrev_b32 v1, 4, v0
    """)
    Lq, Ld = k.lab("cq"), k.lab("cd")
    ZA, ZB, ZL16, ZL8 = 248, 249, 250, 251
    QA, QBE, QBO, QW = 248, 249, 250, 251
    k(f"s_cmp_lg_u32 s32, 0\ns_cbranch_scc1 {Lq}")
    k(f"""
    v_mov_b32 v{ZL16}, v1
    v_lshrrev_b32 v2, 5, v0
    v_lshlrev_b32 v2, 8, v2
    v_and_b32 v3, 15, v0
    v_lshl_add_u32 v2, v3, 4, v2
    v_bfe_u32 v3, v0, 4, 1
    v_lshl_add_u32 v{ZL8}, v3, 3, v2
    s_lshl_b32 s50, s40, 13
    v_add_u32 v{ZA}, s50, v1
    """)
    tr_lane_base(k, ZB, 288, 2)
    k(f"v_add_u32 v{ZB}, {BOZ}, v{ZB}")
    k(f"s_branch {Ld}")
    k.label(Lq)
    k(f"s_mul_i32 s50, s41, 10240\nv_add_u32 v{QA}, s50, v1")
    k(f"""
    s_mul_i32 s50, s42, {7*2048}
    s_add_u32 s50, s50, {BOQ}
    v_add_u32 v{QBE}, s50, v1
    v_and_b32 v2, 15, v0
    s_mul_i32 s50, s41, 80
    v_add_u32 v2, s50, v2
    v_mul_u32_u24 v{QW}, 440, v2
    v_lshrrev_b32 v2, 4, v0
    v_lshl_add_u32 v{QW}, v2, 3, v{QW}
    s_mul_i32 s50, s42, 224
    s_add_u32 s50, s50, {ATT}
    v_add_u32 v{QW}, s50, v{QW}
    """)
    k.label(Ld)
    k("s_waitcnt vmcnt(0) lgkmcnt(0)")
    st()
    k(f"s_cmp_lg_u32 s32, 0\ns_cbranch_scc1 {L['C2q']}")
    ACZ, BZ = 104, [0, 52]
    acz = lambda i, j: ACZ + (i * 9 + j) * 4
    def readsz(sub, b):
        o = [f"ds_read_b128 {vr(BZ[b]+i*4,4)}, v{ZA} offset:{i*2048+sub*1024}" for i in range(4)]
        for j in range(9):
            for hh in range(2):
                o.append(f"ds_read_b64_tr_b16 {vr(BZ[b]+16+j*4+hh*2,2)}, v{ZB} offset:{sub*32*288+hh*8*288+j*32}")
        return o
    def halfz(b, other, zero):
        mf = [f"v_mfma_f32_16x16x32_bf16 {vr(acz(i,j),4)}, {vr(BZ[b]+16+j*4,4)}, {vr(BZ[b]+i*4,4)}, {'0' if zero else vr(acz(i,j),4)}"
              for i, j in snake(4, 9)]
        for x in interleave(mf, other): k(x)
    loop2(readsz, halfz, adv_ins(R, [ZA, ZB]), True)
    halfz(1, [], False)
    C, T, O = 0, 8, 16
    gelu_consts(k, C)
    k(f"""
    s_lshl_b32 s46, s38, 4
    s_lshl_b32 s47, s40, 2
    s_add_u32 s46, s46, s47          ; tfrag0
    s_mul_i32 s46, s46, {TFS}
    s_bfe_u32 s47, s39, 0x10001
    s_lshl_b32 s47, s47, 2
    s_lshr_b32 s48, s39, 2
    s_add_u32 s47, s47, s48
    s_mul_i32 s47, s47, 9216
    s_add_u32 s46, s46, s47
    s_and_b32 s47, s39, 1
    s_lshl_b32 s48, s47, 9
    s_add_u32 s48, s48, s46
    s_add_u32 s48, s48, {(18+8)*1024}
    s_lshl_b32 s47, s47, 12
    s_add_u32 s46, s46, s47
    s_add_u32 s46, s46, {18*1024}
    """)
    n = 0
    for i in range(4):
        for p in range(4):
            a, b = acz(i, 2 * p), acz(i, 2 * p + 1)
            gelu(k, [a, a + 2, b, b + 2], T, C)
            o = O + (n & 1) * 4; n += 1
            for x, q in enumerate([a, a + 2, b, b + 2]): k(f"v_cvt_pk_bf16_f32 v{o+x}, v{q}, v{q+1}")
            k(f"buffer_store_dwordx4 {vr(o,4)}, v{ZL16}, s[16:19], s46 offen offset:{p*1024} sc1")
        if i < 3: k(f"s_add_u32 s46, s46, {TFS}\ns_add_u32 s{49+i}, s{48+i}, {TFS}")
    for i in (0, 2):
        a, b = acz(i, 8), acz(i + 1, 8)
        gelu(k, [a, a + 2, b, b + 2], T, C)
        o = O + (n & 1) * 4; n += 1
        for x, q in enumerate([a, a + 2, b, b + 2]): k(f"v_cvt_pk_bf16_f32 v{o+x}, v{q}, v{q+1}")
        k(f"buffer_store_dwordx2 {vr(o,2)}, v{ZL8}, s[16:19], s{48+i} offen sc1")
        k(f"buffer_store_dwordx2 {vr(o+2,2)}, v{ZL8}, s[16:19], s{49+i} offen sc1")
    if stamps and not fused:
        st(); k("s_waitcnt vmcnt(0)"); st()
    k(f"s_branch {L['g2C']}" if fused else "s_endpgm")
    k.label(L["D"])
    if OPT.get("pd", 3): k(f"s_setprio {OPT.get('pd', 3)}")
    k(f"""
    s_add_u32 s47, s41, {BO1}        ; B lds
    s_lshl_b32 s48, s40, 9
    s_add_u32 s48, s48, {BO1+16384}
    s_mov_b32 s49, {2*SZ}
    """)
    def setup2():
        srd(k, 72, 4, W1_OFF, W12_SZ)
        srd(k, 16, 4, A3_OFF, A3_SZ)
        srd(k, 20, 4, ST_OFF, ST_SZ)
        srd(k, 24, 66, 0, 2048 * 4096)
        srd(k, 80, 4, Z2T_OFF, Z2T_SZ)
        srd(k, 84, 4, FLG_OFF, FLG_SZ)
        Lq, Ld = k.lab("dq"), k.lab("dd")
        k(f"""
        s_cmp_lg_u32 s32, 0
        s_cbranch_scc1 {Lq}
        s_lshl_b32 s63, s40, 13          ; A lds
        s_lshl_b32 s60, s38, 15
        s_add_u32 s60, s60, s63          ; A goff
        s_mul_i32 s61, s39, 288          ; B goff
        s_add_u32 s88, s41, {BOZ}
        s_lshl_b32 s89, s40, 9
        s_add_u32 s89, s89, {BOZ+16384}
        s_mov_b32 s62, 0
        s_branch {Ld}
        {Lq}:
        s_lshl_b32 s60, s38, 14
        s_lshl_b32 s89, s40, 9
        s_sub_u32 s62, s60, 2048
        s_cmp_eq_u32 s38, 0
        s_cselect_b32 s62, 0, s62
        s_add_u32 s62, s62, s89
        s_add_u32 s60, s60, s41          ; A goff
        s_add_u32 s63, s41, 2048
        s_mul_i32 s61, s39, {9*28672}
        s_mul_i32 s88, s40, 7168
        s_add_u32 s61, s61, s88
        s_add_u32 s88, s88, {BOQ}
        """)
        k.label(Ld)
        k(f"""
        v_lshlrev_b32 v28, 7, v0
        s_lshl_b32 s44, s2, 2
        s_add_u32 s44, s44, s40
        s_lshl_b32 s44, s44, 13
        v_lshlrev_b32 v29, 2, v0
        v_lshrrev_b32 v30, 4, v0
        v_lshlrev_b32 v30, 5, v30
        s_lshl_b32 s45, s36, 10
        s_lshl_b32 s50, s40, 8
        s_add_u32 s45, s45, s50
        s_mul_i32 s50, s40, {9*1024}
        s_add_u32 s50, s50, {2*SZ}
        v_add_u32 v31, s50, v1
        s_lshl_b32 s46, s36, 1
        s_lshr_b32 s50, s40, 1
        s_add_u32 s46, s46, s50
        s_mul_i32 s46, s46, 144
        s_mul_i32 s50, s37, 9
        s_add_u32 s46, s46, s50
        s_lshl_b32 s46, s46, 11
        s_and_b32 s50, s40, 1
        s_lshl_b32 s50, s50, 10
        s_add_u32 s46, s46, s50          ; Z2T offset
        s_lshl_b32 s53, s36, 11
        s_add_u32 s53, s53, {F1}         ; F1 row
        v_lshrrev_b32 v26, 2, v0
        v_lshlrev_b32 v26, 7, v26
        v_and_b32 v2, 3, v0
        v_lshl_add_u32 v26, v2, 2, v26
        s_lshl_b32 s50, s40, 9
        s_add_u32 s50, s50, {2*SZ+36864}
        v_add_u32 v35, s50, v29
        v_bfe_u32 v27, v0, 3, 1
        v_lshlrev_b32 v27, 5, v27
        v_lshrrev_b32 v2, 4, v0
        v_lshl_add_u32 v27, v2, 3, v27
        v_and_b32 v2, 7, v0
        v_add_lshl_u32 v27, v27, v2, 2
        s_lshl_b32 s55, s36, 10
        s_and_b32 s50, s40, 1
        s_lshl_b32 s50, s50, 9
        s_add_u32 s55, s55, s50
        """)
    setup2()
    k("s_waitcnt vmcnt(9) lgkmcnt(0)")
    k("s_barrier")
    st(250)
    k(f"s_load_dwordx2 s[56:57], s[0:1], {KA['dbg']}\ns_waitcnt lgkmcnt(0)")
    srd(k, 28, 56, 0, 256)
    k("v_mov_b32 v34, 0")
    ldn = lambda: k("buffer_load_dword v33, v34, s[28:31], 0 offen sc1")
    Lt = k.lab("tg")
    k(f"s_cmp_lg_u32 s40, 2\ns_cbranch_scc1 {Lt}")
    ldn()
    k.label(Lt)
    issue1()
    def ploop(n, iss, allowed):
        Lp = k.lab("pl")
        k(f"s_mov_b32 s58, {n}")
        k.label(Lp)
        k(f"s_waitcnt vmcnt({allowed})")
        k("s_barrier")
        iss()
        k(f"s_sub_u32 s58, s58, 1\ns_cmp_lg_u32 s58, 0\ns_cbranch_scc1 {Lp}")
    k("s_waitcnt vmcnt(9)")
    Lt = k.lab("tg")
    k(f"s_cmp_lg_u32 s40, 2\ns_cbranch_scc1 {Lt}")
    spin(k, ldn, lambda: k("v_cmp_eq_u32 vcc, 0, v33"))
    k(f"v_readfirstlane_b32 s101, v33\nv_mov_b32 v34, {HSC}\nds_write_b32 v34, v33\ns_waitcnt lgkmcnt(0)")
    k.label(Lt)
    k("s_barrier")
    issue1()
    k(f"v_mov_b32 v33, {HSC}\nds_read_b32 v33, v33\ns_waitcnt vmcnt(9) lgkmcnt(0)\nv_readfirstlane_b32 s101, v33")
    k("s_barrier")
    Lnb = k.lab("nb")
    k(f"""
    s_cmp_lg_u32 s40, 0
    s_cbranch_scc1 {Lnb}
    v_mov_b32 v33, s101
    s_mov_b32 s51, {F5}
    s_cmp_eq_u32 s32, 0
    s_cselect_b32 s51, s51, {F0}
    s_lshl_b32 s50, s3, 7
    s_add_u32 s50, s50, s51
    s_mov_b32 exec_hi, 0
    buffer_store_dword v33, v29, s[84:87], s50 offen sc1
    s_mov_b32 exec_hi, -1
    """)
    k.label(Lnb)
    issue1()
    ploop(3, issue1, 9)
    def issue2():
        Lq, Ld = k.lab("iq"), k.lab("id")
        k(f"s_cmp_lg_u32 s32, 0\ns_cbranch_scc1 {Lq}")
        lin_dma(k, 8, 8, 60, 63, 49, mods=XS); gat_dma(k, 4, 12, 61, 88, 49, 100); half_dma(12, 104, 61, 89)
        k(f"s_add_u32 s61, s61, {64*9216}\ns_branch {Ld}")
        k.label(Lq)
        lin_dma(k, 4, 8, 60, 63, 49, mods=XS); half_dma(8, 1, 62, 89, XS); lin_dma(k, 7, 72, 61, 88, 49, mods=XS)
        k(f"s_add_u32 s62, s62, {128*2048}\ns_add_u32 s61, s61, 28672")
        k.label(Ld)
        k(f"s_add_u32 s60, s60, {128*2048}")
        slot_adv_prod(k, R, SZ, 49)
    N2 = 12
    if single:
        k(f"""
        s_lshl_b32 s54, s38, 3
        s_lshl_b32 s50, s38, 4
        s_cmp_eq_u32 s32, 0
        s_cselect_b32 s54, s50, s54
        s_max_u32 s54, s54, 1
        s_min_u32 s54, s54, 112
        s_lshl_b32 s54, s54, 7
        s_add_u32 s54, s54, {F0 - 128}
        """)
        k(f"""
        s_lshl_b32 s50, s36, 10
        s_add_u32 s50, s50, {F0 - 17*128}
        v_cmp_gt_u32 vcc, 17, v0
        v_mov_b32 v24, s50
        v_mov_b32 v25, s54
        v_cndmask_b32 v24, v24, v25, vcc
        v_add_u32 v24, v24, v28
        v_subrev_u32 v25, 25, v0
        v_lshrrev_b32 v22, 1, v25
        v_lshlrev_b32 v22, 4, v22
        v_and_b32 v25, 1, v25
        v_sub_u32 v22, v22, v25
        s_lshl_b32 s50, s39, 1
        s_sub_u32 s50, 15, s50
        v_add_u32 v22, s50, v22
        v_lshlrev_b32 v22, 7, v22
        v_add_u32 v22, {F5}, v22
        v_cmp_gt_u32 vcc, 25, v0
        s_cmp_eq_u32 s32, 0
        s_cselect_b32 s57, 0, 0x1ff
        s_cselect_b32 s56, 0x1ffffff, -1
        v_cndmask_b32 v24, v22, v24, vcc
        """)
        def ldb():
            k("s_mov_b64 exec, s[56:57]\nbuffer_load_dword v33, v24, s[84:87], 0 offen sc1\ns_mov_b64 exec, -1")
        k("v_mov_b32 v33, s101")
        only(k, 1, ldb)
    ploop(1, issue1, 9)
    k("s_waitcnt vmcnt(9)")
    srd(k, 28, 4, RS_OFF, RS_SZ)
    def chk7():
        spin(k, ldb, lambda: k("v_cmp_ne_u32 vcc, s101, v33"))
        k(f"s_lshl_b32 s50, s36, 10\ns_mov_b32 m0, {RSC}\nbuffer_load_dwordx4 v1, s[28:31], s50 offen sc1 lds")
    only(k, 1, chk7)
    k("s_barrier")
    issue2()
    k(f"s_waitcnt vmcnt({N2})")
    k("s_barrier")
    issue2()
    k("s_barrier")
    k("buffer_load_dword v32, v28, s[24:27], s44 offen")
    Lx = k.lab("xw")
    k(f"""
    s_load_dwordx2 s[28:29], s[0:1], {KA['wo']}
    s_load_dwordx2 s[30:31], s[0:1], {KA['w_out']}
    s_load_dwordx2 s[56:57], s[0:1], {KA['b_sp']}
    s_and_b32 s50, s34, 3
    s_lshl_b32 s50, s50, 3
    s_and_b32 s51, s35, 7
    s_add_u32 s50, s50, s51          ; mt3
    s_mul_i32 s50, s50, {64*1152}
    s_lshr_b32 s51, s34, 2
    s_lshl_b32 s51, s51, 2
    s_lshr_b32 s54, s35, 3
    s_add_u32 s51, s51, s54          ; nt3
    s_mul_i32 s51, s51, 144
    s_add_u32 s54, s50, s51
    s_mov_b32 s76, s68
    s_mov_b32 s77, s69
    s_mov_b32 s78, {2048*1152}
    s_mov_b32 s79, 0x20000
    s_lshl_b32 s51, s40, 6
    s_lshl_b32 s50, s40, 10
    s_add_u32 m0, s50, {XSC}
    """)
    for n in range(3):
        if n == 2: k(f"s_cmp_lg_u32 s40, 0\ns_cbranch_scc1 {Lx}")
        k(f"""
        v_add_u32 v2, s51, v0
        v_mul_u32_u24 v3, 3641, v2
        v_lshrrev_b32 v3, 15, v3         ; id/9
        v_mul_u32_u24 v3, {1152-144}, v3
        v_lshl_add_u32 v2, v2, 4, v3
        buffer_load_dwordx4 v2, s[76:79], s54 offen lds
        s_add_u32 s51, s51, 256
        s_add_u32 m0, m0, 4096
        """)
    k(f"""
    s_waitcnt lgkmcnt(0)
    s_mov_b32 s76, s56
    s_mov_b32 s77, s57
    s_mov_b32 s78, 4096
    s_mov_b32 s79, 0x20000
    s_lshl_b32 s50, s36, 8
    s_mov_b32 m0, {BSC}
    s_mov_b64 exec, 0xffff
    buffer_load_dwordx4 v1, s[76:79], s50 offen lds
    s_mov_b64 exec, -1
    {Lx}:
    s_lshr_b32 s50, s44, 13
    s_sub_u32 s51, s50, 81
    s_waitcnt lgkmcnt(0)
    s_cmp_lt_u32 s50, 81
    s_cselect_b32 s24, s28, s30
    s_cselect_b32 s25, s29, s31
    s_cselect_b32 s50, s50, s51
    s_mov_b32 s26, {2304*1152}
    s_cselect_b32 s26, {576*1152}, s26
    s_mov_b32 s27, 0x20000
    s_lshl_b32 s50, s50, 13
    buffer_load_dword v240, v28, s[24:27], s50 offen
    """)
    NX = 4
    k(f"s_waitcnt vmcnt({N2+NX})")
    k("s_barrier")
    Z = 64
    for j in range(9): k(f"ds_read_b128 {vr(Z+4*j,4)}, v31 offset:{j*1024}")
    k(f"""
    ds_read_b32 v34, v35
    ds_read_b32 v33, v35 offset:256
    s_waitcnt lgkmcnt(0)
    s_barrier
    buffer_atomic_add_f32 v34, v27, s[20:23], s55 offen
    buffer_atomic_add_f32 v33, v27, s[20:23], s55 offen offset:256
    """)
    issue2()
    k(f"s_waitcnt vmcnt({N2+2+NX})")
    k("s_barrier")
    issue2()
    k(f"s_waitcnt vmcnt({N2})")
    set_flag(k, f"s_lshl_b32 s50, s37, 7\ns_add_u32 s50, s50, s53\ns_lshl_b32 s51, s40, 2\ns_add_u32 s50, s50, s51", 33)
    k("s_barrier")
    issue2()
    PB = OPT.get("pb", 13)
    if PB > 12: ploop(PB - 12, issue2, N2)
    ld1 = lambda: k("buffer_load_dword v33, v26, s[84:87], s53 offen sc1")
    ld1()
    k(f"s_waitcnt vmcnt({N2+1})")
    k("s_barrier")
    issue2()
    k(f"s_waitcnt vmcnt({N2})")
    spin(k, ld1, lambda: k("v_cmp_ne_u32 vcc, s101, v33"))
    for i in range(4): k(f"buffer_load_dwordx4 {vr(36+4*i,4)}, v30, s[20:23], s45 offen offset:{(i>>1)*128+(i&1)*16} sc1")
    k("s_barrier")
    st(250)
    vm = [("L%d" % (PB + 2), N2), ("s", 4)]
    def allowed(tag):
        n = 0
        for t, c in reversed(vm):
            if t == tag: return n
            n += c
        raise KeyError(tag)
    def rcalc():
        k(f"s_waitcnt vmcnt({allowed('s')})")
        inv = f2u(1.0 / 2304)
        for i in range(8): k(f"v_mul_f32 v{36+2*i}, {inv:#x}, v{36+2*i}")
        for i in range(8): k(f"v_mul_f32 v{37+2*i}, {inv:#x}, v{37+2*i}")
        for i in range(8): k(f"v_fma_f32 v{37+2*i}, -v{36+2*i}, v{36+2*i}, v{37+2*i}")
        for i in range(8): k(f"v_max_f32 v{37+2*i}, 0, v{37+2*i}")
        def rnd8(o):
            for i in range(4): k(f"v_cvt_pk_bf16_f32 v{52+i}, v{o+4*i}, v{o+2+4*i}")
            for i in range(4):
                k(f"v_lshlrev_b32 v{o+4*i}, 16, v{52+i}")
                k(f"v_and_b32 v{o+2+4*i}, 0xffff0000, v{52+i}")
        rnd8(36); rnd8(37)
        for i in range(8): k(f"v_add_f32 v{37+2*i}, {f2u(1e-5):#x}, v{37+2*i}")
        rnd8(37)
        for i in range(8): k(f"v_sqrt_f32 v{37+2*i}, v{37+2*i}")
        rnd8(37)
        for i in range(8): k(f"v_rcp_f32 v{37+2*i}, v{37+2*i}")
        for i in range(8): k(f"v_mul_f32 v{36+2*i}, v{36+2*i}, v{37+2*i}")
    def unit(j):
        w, t = Z + 4 * j, 56
        for i in range(4):
            k(f"v_lshlrev_b32 v{t+2*i}, 16, v{w+i}")
            k(f"v_and_b32 v{t+2*i+1}, 0xffff0000, v{w+i}")
        for i in range(8): k(f"v_fma_f32 v{t+i}, v{t+i}, v{37+2*i}, -v{36+2*i}")
        for i in range(4): k(f"v_cvt_pk_bf16_f32 v{w+i}, v{t+2*i}, v{t+2*i+1}")
        k(f"v_permlane32_swap_b32 v{w}, v{w+2}")
        k(f"v_permlane32_swap_b32 v{w+1}, v{w+3}")
        k(f"v_permlane16_swap_b32 v{w}, v{w+2}")
        k(f"v_permlane16_swap_b32 v{w+1}, v{w+3}")
        if not OPT.get("lz", 0): zst(j); vm.append(("z", 1))
    def zst(j):
        if j and j % 2 == 0: k("s_add_u32 s46, s46, 4096")
        k(f"buffer_store_dwordx4 {vr(Z+4*j,4)}, v1, s[80:83], s46 offen offset:{(j&1)*2048} sc1")
    work = [rcalc] + [(lambda j=j: unit(j)) for j in range(9)]
    split = {13: [[0, 1, 2], [3, 4, 5], [6, 7, 8, 9]], 12: [[0, 1], [2, 3, 4], [5, 6], [7, 8, 9]], 11: [[0], [1, 2], [3, 4], [5, 6], [7, 8, 9]]}[PB]
    for n, b in enumerate(range(PB + 1, 17)):
        if b + 2 <= 17:
            issue2(); vm.append((f"L{b+2}", N2))
        for w_ in split[n]: work[w_]()
        k(f"s_waitcnt vmcnt({allowed(f'L{b+1}')})")
        k("s_barrier")
    st(250)
    if OPT.get("lz", 0):
        for j in range(9): zst(j)
    k(f"""
    s_lshr_b32 s50, s40, 1
    s_mul_i32 s50, s50, 34816
    s_and_b32 s51, s40, 1
    s_lshl_b32 s51, s51, 10
    s_add_u32 s50, s50, s51
    s_add_u32 s50, s50, 16384
    v_add_u32 v31, s50, v1
    """)
    for j in range(9): k(f"ds_write_b128 v31, {vr(Z+4*j,4)} offset:{j*2048}")
    if fused:
        k("s_waitcnt vmcnt(0) lgkmcnt(0)")
        set_flag(k, f"s_lshl_b32 s50, s37, 11\ns_lshl_b32 s51, s36, 7\ns_add_u32 s50, s50, s51\ns_lshl_b32 s51, s40, 2\ns_add_u32 s50, s50, s51\ns_add_u32 s50, s50, {F2}", 33)
    Lha = k.lab("ha")
    k(f"s_cmp_lg_u32 s32, 0\ns_cbranch_scc1 {Lha}")
    k(f"s_branch {L['g2D']}" if fused else "s_endpgm")
    k.label(Lha)
    k("s_setprio 0")
    k("s_barrier")
    k(f"s_branch {L['att']}")
    k.label(L["C2q"])
    ACQ, BQ = 104, [0, 48]
    acq = lambda i, j: ACQ + (i * 7 + j) * 4
    def readsq(sub, b):
        o = [f"ds_read_b128 {vr(BQ[b]+i*4,4)}, v{QA} offset:{i*2048+sub*1024}" for i in range(5)]
        o += [f"ds_read_b128 {vr(BQ[b]+20+j*4,4)}, v{QBE} offset:{j*2048+sub*1024}" for j in range(7)]
        return o
    def mfq(b, seq, zero):
        return [f"v_mfma_f32_16x16x32_bf16 {vr(acq(i,j),4)}, {vr(BQ[b]+20+j*4,4)}, {vr(BQ[b]+i*4,4)}, {'0' if zero else vr(acq(i,j),4)}"
                for i, j in seq]
    def halfq(b, other, zero):
        for x in interleave(mfq(b, snake(4, 7), zero), other): k(x)
        Ls = k.lab("sk")
        k(f"s_cbranch_vccz {Ls}")
        for x in mfq(b, [(4, j) for j in range(7)], zero): k(x)
        k.label(Ls)
    k("s_cmp_eq_u32 s41, 0\ns_cselect_b64 vcc, -1, 0")
    loop2(readsq, halfq, adv_ins(R, [QA, QBE]), True)
    k("s_barrier")
    def wq(i, j, n):
        a = acq(i, j); o = (n & 3) * 2
        return [f"v_cvt_pk_bf16_f32 v{o}, v{a}, v{a+1}", f"v_cvt_pk_bf16_f32 v{o+1}, v{a+2}, v{a+3}",
                f"ds_write_b64 v{QW}, {vr(o,2)} offset:{i*16*440+j*32}"]
    n = 0
    Ls = k.lab("sk")
    k(f"s_cbranch_vccz {Ls}")
    for x in mfq(1, [(4, j) for j in range(7)], False): k(x)
    k.label(Ls)
    for i in range(5):
        mf = mfq(1, [(i, j) for j in range(7)], False) if i < 4 else []
        for j in range(7):
            if mf: k(mf[j])
            if i > 0 and j < 6:
                for x in wq(i - 1, j, n): k(x)
                n += 1
    Ls = k.lab("sk")
    k(f"s_cbranch_vccz {Ls}")
    for j in range(6):
        for x in wq(4, j, n): k(x)
        n += 1
    k("s_mov_b32 exec_hi, s54")
    for x in wq(4, 6, n): k(x)
    n += 1
    k.label(Ls)
    k("s_mov_b32 exec_hi, s54")
    for i in range(4):
        for x in wq(i, 6, n): k(x)
        n += 1
    k("s_mov_b32 exec_hi, -1")
    k("s_waitcnt lgkmcnt(0)")
    k("v_mbcnt_lo_u32_b32 v0, -1, 0")
    k("v_mbcnt_hi_u32_b32 v0, -1, v0")
    k.label(L["att"])
    k(f"""
    s_and_b32 s55, s33, 3            ; head
    s_lshr_b32 s41, s33, 2
    s_and_b32 s42, s55, 1
    s_lshl_b32 s43, s41, 6
    s_add_u32 s44, s43, 2
    v_add_u32 v2, s44, v0
    v_mul_u32_u24 v2, 440, v2
    s_mul_i32 s44, s55, 36
    s_add_u32 s44, s44, {ATT}
    s_lshl_b32 s45, s42, 2
    s_add_u32 s45, s45, s44
    v_add_u32 v3, s45, v2
    s_xor_b32 s45, s42, 1
    s_lshl_b32 s45, s45, 5
    s_add_u32 s45, s45, s44
    v_add_u32 v2, s45, v2
    s_lshl_b32 s46, s38, 7
    s_add_u32 s46, s46, s43
    v_add_u32 v4, s46, v0            ; t
    s_mov_b32 s21, 0x05040100
    s_mov_b32 s22, 0x07060302
    v_and_b32 v11, 15, v0
    v_lshrrev_b32 v12, 4, v0
    s_lshl_b32 s46, s33, 4
    s_add_u32 s46, s46, 16
    v_add_u32 v13, s46, v11
    v_mul_u32_u24 v13, 440, v13
    v_lshl_add_u32 v13, v12, 4, v13
    v_add_u32 v13, {ATT}, v13
    s_mul_i32 s46, s39, 9
    v_add_u32 v12, s46, v12
    v_lshlrev_b32 v12, 8, v12
    v_lshl_add_u32 v12, v11, 4, v12
    s_lshl_b32 s46, s38, 3
    s_add_u32 s46, s46, s33
    s_mul_i32 s20, s46, {TFS}
    """)
    Lc = k.lab("ac")
    k(f"s_cmp_lt_u32 s33, 4\ns_cbranch_scc1 {Lc}")
    G["setup"]()
    k.label(Lc)
    k("s_barrier")
    st(20)
    Q, KK, VV, LL, PP, OA = 24, 36, 116, 200, 210, 216
    def rdvec(dst, row, part):
        for h in range(4): k(f"ds_read_b64 {vr(dst+2*h,2)}, v3 offset:{row*440+part*144+8*h}")
        k(f"ds_read_b32 v{dst+8}, v2 offset:{row*440+part*144}")
    vecs = [(Q, 14, 0)] + [(KK + 10 * w, 14 - 2 * w, 1) for w in range(8)] + [(VV + 10 * w, 14 - 2 * w, 2) for w in range(8)]
    for v in vecs[:4]: rdvec(*v)
    nxt = 4
    for w in range(8): k(f"v_mov_b32 v{LL+w}, 0")
    for w in range(8):
        k("s_waitcnt lgkmcnt(10)")
        for i in range(9): k(f"v_dot2c_f32_bf16 v{LL+w}, v{Q+i}, v{KK+10*w+i}")
        rdvec(*vecs[nxt]); nxt += 1
    while nxt < len(vecs):
        rdvec(*vecs[nxt]); nxt += 1
    if OPT.get("ast", 0): st(20)
    sc = f2u(18.0 ** -0.5)
    def rndL():
        for i in range(4): k(f"v_cvt_pk_bf16_f32 v{PP+i}, v{LL+2*i}, v{LL+2*i+1}")
        for i in range(4):
            k(f"v_lshlrev_b32 v{LL+2*i}, 16, v{PP+i}")
            k(f"v_and_b32 v{LL+2*i+1}, 0xffff0000, v{PP+i}")
    rndL()
    for w in range(8): k(f"v_mul_f32 v{LL+w}, {sc:#x}, v{LL+w}")
    rndL()
    k(f"v_mov_b32 v6, {f2u(-1e9):#x}")
    for w in range(1, 8):
        k(f"v_cmp_le_u32 s[{24+2*(w&1)}:{25+2*(w&1)}], {2*w}, v4")
        if w > 1: k(f"v_cndmask_b32 v{LL+w-1}, v6, v{LL+w-1}, s[{24+2*((w-1)&1)}:{25+2*((w-1)&1)}]")
    k(f"v_cndmask_b32 v{LL+7}, v6, v{LL+7}, s[26:27]")
    k(f"v_max3_f32 v7, v{LL}, v{LL+1}, v{LL+2}")
    k(f"v_max3_f32 v8, v{LL+3}, v{LL+4}, v{LL+5}")
    k(f"v_max3_f32 v7, v7, v{LL+6}, v{LL+7}")
    k(f"v_max_f32 v7, v7, v8")
    l2e = f2u(math.log2(math.e))
    for w in range(8): k(f"v_sub_f32 v{LL+w}, v{LL+w}, v7")
    for w in range(8): k(f"v_mul_f32 v{LL+w}, {l2e:#x}, v{LL+w}")
    for w in range(8): k(f"v_exp_f32 v{LL+w}, v{LL+w}")
    k(f"v_add_f32 v7, v{LL}, v{LL+1}")
    k(f"v_add_f32 v8, v{LL+2}, v{LL+3}")
    k(f"v_add_f32 v9, v{LL+4}, v{LL+5}")
    k(f"v_add_f32 v10, v{LL+6}, v{LL+7}")
    k("v_add_f32 v7, v7, v8\nv_add_f32 v9, v9, v10\nv_add_f32 v7, v7, v9\nv_rcp_f32 v7, v7")
    for w in range(8): k(f"v_mul_f32 v{LL+w}, v{LL+w}, v7")
    for i in range(4): k(f"v_cvt_pk_bf16_f32 v{PP+i}, v{LL+2*i}, v{LL+2*i+1}")
    if OPT.get("ast", 0): st(20)
    for i in range(18): k(f"v_mov_b32 v{OA+i}, 0")
    k("s_waitcnt lgkmcnt(0)")
    for wp in range(4):
        x, y = VV + 20 * wp, VV + 20 * wp + 10
        for i in range(9):
            k(f"v_perm_b32 v{KK+2*i}, v{y+i}, v{x+i}, s21")
            k(f"v_perm_b32 v{KK+2*i+1}, v{y+i}, v{x+i}, s22")
        for i in range(18): k(f"v_dot2c_f32_bf16 v{OA+i}, v{KK+i}, v{PP+wp}")
    for i in range(9): k(f"v_cvt_pk_bf16_f32 v{Q+i}, v{OA+2*i}, v{OA+2*i+1}")
    if OPT.get("ast", 0): st(20)
    for h in range(4): k(f"ds_write_b64 v3, {vr(Q+2*h,2)} offset:{14*440+8*h}")
    k(f"ds_write_b32 v2, v{Q+8} offset:{14*440}")
    k("s_waitcnt lgkmcnt(0)")
    k("s_barrier")
    if OPT.get("ast", 0): st(20)
    for n in range(3):
        k(f"ds_read_b64 {vr(KK+4*n,2)}, v13 offset:{64*n}")
        k(f"ds_read_b64 {vr(KK+4*n+2,2)}, v13 offset:{64*n+8}")
    for n in range(3):
        k(f"s_waitcnt lgkmcnt({4-2*n})")
        if n == 2: k("s_mov_b64 exec, 0xffff")
        k(f"buffer_store_dwordx4 {vr(KK+4*n,4)}, v12, s[16:19], s20 offen offset:{1024*n} sc1")
    k("s_mov_b64 exec, -1")
    if stamps and not fused:
        st(20); k("s_waitcnt vmcnt(0)"); st(20)
    if fused: k(f"s_branch {L['g2X']}")
    else: k("s_endpgm")

def w3_unit(k):
    Ln, Lg = k.lab("nat"), k.lab("go")
    k(f"""
    s_mul_i32 s20, s3, 3
    s_add_u32 s20, s20, s40          ; unit
    s_cmp_lt_u32 s40, 3
    s_cselect_b32 s20, s20, 360
    s_lshr_b32 s21, s20, 2           ; step
    s_and_b32 s22, s20, 3
    s_lshl_b32 s22, s22, 1
    s_cmp_lt_u32 s21, 18
    s_cselect_b32 s24, s28, s30
    s_cselect_b32 s25, s29, s31
    s_mov_b32 s26, {2304*1152}
    s_cselect_b32 s26, {576*1152}, s26
    s_mov_b32 s27, 0x20000
    s_cbranch_scc1 {Ln}
    s_sub_u32 s50, s21, 18
    s_mul_i32 s55, s50, 57
    s_lshr_b32 s55, s55, 9           ; u
    s_mul_i32 s56, s55, 9
    s_sub_u32 s56, s50, s56          ; v
    s_and_b32 s57, s55, 3
    s_lshl_b32 s57, s57, 1
    s_lshr_b32 s55, s55, 2
    s_add_u32 s55, s55, s57
    s_mul_i32 s55, s55, 288
    s_lshr_b32 s57, s56, 2
    s_mul_i32 s57, s57, 144
    s_and_b32 s50, s56, 3
    s_lshl_b32 s50, s50, 5
    s_add_u32 s57, s57, s50
    s_cmp_eq_u32 s56, 8
    s_cselect_b32 s57, 128, s57
    s_cselect_b32 s28, 4, 16
    s_cselect_b32 s29, 8, 4
    s_cselect_b32 s30, 144, 8
    s_add_u32 s23, s55, s57
    s_branch {Lg}
    {Ln}:
    s_lshl_b32 s23, s21, 5
    s_mov_b32 s28, 4
    s_mov_b32 s29, 8
    s_mov_b32 s30, 16
    {Lg}:
    s_mul_i32 s23, s23, 1152
    s_mul_i32 s50, s22, 144
    s_add_u32 s23, s23, s50
    s_cmp_lt_u32 s20, 360
    s_cselect_b32 s23, s23, 0x7fffffff
    s_mul_i32 s31, s40, 9216
    s_add_u32 s31, s31, 69632
    s_mov_b32 m0, s31
    """)
    for n in range(9):
        k(f"""
        v_add_u32 v12, {n*64}, v0
        v_mul_u32_u24 v13, 3641, v12
        v_lshrrev_b32 v13, 16, v13       ; rho
        v_mul_u32_u24 v14, 18, v13
        v_sub_u32 v12, v12, v14          ; chunk
        v_bfe_u32 v15, v13, 2, 1
        v_mul_u32_u24 v15, s28, v15
        v_bfe_u32 v14, v13, 3, 1
        v_mad_u32_u24 v15, v14, s29, v15
        v_bfe_u32 v14, v13, 4, 1
        v_mad_u32_u24 v15, v14, s30, v15
        v_and_b32 v14, 3, v13
        v_add_u32 v15, v15, v14
        v_mul_u32_u24 v15, 1152, v15
        v_lshl_add_u32 v15, v12, 4, v15
        buffer_load_dwordx4 v15, s[24:27], s23 offen lds
        s_add_u32 m0, m0, 1024
        """)
    k(f"""
    v_lshrrev_b32 v12, 4, v0         ; g
    v_bfe_u32 v13, v0, 2, 2          ; r
    v_and_b32 v14, 3, v0             ; c4
    v_lshl_add_u32 v15, v12, 3, v13
    v_mul_u32_u24 v15, 288, v15
    v_lshl_add_u32 v15, v14, 3, v15
    v_add_u32 v15, s31, v15
    v_and_b32 v12, 1, v12
    v_lshrrev_b32 v16, 1, v14
    v_lshl_add_u32 v12, v12, 1, v16
    v_lshl_add_u32 v12, v12, 3, v13
    v_mul_u32_u24 v12, 288, v12
    v_and_b32 v14, 1, v14
    v_lshl_add_u32 v12, v14, 3, v12
    v_add_u32 v12, s31, v12
    s_lshr_b32 s55, s21, 1
    s_lshl_b32 s55, s55, 3
    s_add_u32 s55, s55, s22
    s_mul_i32 s55, s55, 9216
    s_and_b32 s56, s21, 1
    s_lshl_b32 s57, s56, 9
    s_add_u32 s57, s57, s55
    s_add_u32 s57, s57, 8192
    s_lshl_b32 s56, s56, 10
    s_add_u32 s55, s55, s56
    s_add_u32 s56, s55, 4096
    """)
    k("s_waitcnt vmcnt(0)")
    for e in range(2):
        for j in range(4):
            k(f"ds_read_b64_tr_b16 {vr(100+e*20+j*4,2)}, v15 offset:{e*144+j*32}")
            k(f"ds_read_b64_tr_b16 {vr(102+e*20+j*4,2)}, v15 offset:{e*144+j*32+1152}")
        k(f"ds_read_b64_tr_b16 {vr(116+e*20,2)}, v12 offset:{e*144+128}")
        k(f"ds_read_b64_tr_b16 {vr(118+e*20,2)}, v12 offset:{e*144+128+1152}")
    for e in range(2):
        k(f"s_waitcnt lgkmcnt({10 if e == 0 else 0})")
        for j in range(4):
            k(f"buffer_store_dwordx4 {vr(100+e*20+j*4,4)}, v1, s[68:71], s{55+(j>>1)} offen offset:{(j&1)*2048} sc1")
        k("s_mov_b32 exec_hi, 0")
        k(f"buffer_store_dwordx4 {vr(116+e*20,4)}, v1, s[68:71], s57 offen sc1")
        k("s_mov_b32 exec_hi, -1")
        if e == 0: k("s_add_u32 s55, s55, 9216\ns_add_u32 s56, s56, 9216\ns_add_u32 s57, s57, 9216")

S2, R2, SZ2, BO2 = 32, 3, 34816, 16384
ZS = 104448
S3, R3, SZ3, BO3, LA3, SL0 = 45, 6, 17408, 8192, 4, 4
PL, PF, PA = 244, 245, 246

def tiles(k):
    k("""
    s_and_b32 s38, s34, 3
    s_lshl_b32 s38, s38, 3
    s_and_b32 s39, s35, 7
    s_add_u32 s38, s38, s39
    s_lshr_b32 s39, s34, 2
    s_lshl_b32 s39, s39, 2
    s_lshr_b32 s50, s35, 3
    s_add_u32 s39, s39, s50          ; nt3
    """)

def g2_hooks(k):
    def issueA():
        k("s_add_u32 m0, s41, s49")
        for n in range(4):
            if n: k(f"s_add_u32 m0, m0, 1024\ns_add_u32 s50, s42, {n*32768}")
            k(f"buffer_load_dwordx4 v{PA+(n&1)}, s[8:11], s{50 if n else 42} offen lds")
        k("s_add_u32 s42, s42, s88")
    def issueB():
        lin_dma(k, 4, 12, 43, 47, 49, vl16=PL, mods=" sc1")
        k("s_add_u32 m0, s45, s49")
        k("s_mov_b32 exec_hi, 0")
        k(f"buffer_load_dwordx4 v{PL}, s[12:15], s46 offen sc1 lds")
        k("s_mov_b32 exec_hi, -1")
        k("s_add_u32 s43, s43, s89")
        k("s_add_u32 s46, s46, s89")
    def poll(): k(f"buffer_load_dword v248, v{PF}, s[84:87], s53 offen sc1")
    def setup():
        srd(k, 8, 66, 0, 2048 * 4096)
        srd(k, 12, 4, Z2T_OFF, Z2T_SZ)
        k(f"""
        v_lshlrev_b32 v{PL}, 4, v0
        v_lshrrev_b32 v{PF}, 2, v0
        v_lshlrev_b32 v{PF}, 7, v{PF}
        v_and_b32 v{PA}, 3, v0
        v_lshl_add_u32 v{PF}, v{PA}, 2, v{PF}
        v_lshrrev_b32 v{PA+1}, 4, v0
        v_and_b32 v{PA}, 7, v0
        v_xor_b32 v{PA}, v{PA}, v{PA+1}
        v_lshrrev_b32 v{PA+1}, 3, v0
        v_lshlrev_b32 v{PA+1}, 12, v{PA+1}
        v_lshl_add_u32 v{PA}, v{PA}, 4, v{PA+1}
        v_xor_b32 v{PA+1}, 64, v{PA}
        s_lshl_b32 s41, s40, 12
        s_lshl_b32 s42, s36, 19
        s_lshl_b32 s50, s40, 17
        s_add_u32 s42, s42, s50          ; A goff
        s_mul_i32 s43, s37, 18432
        s_lshl_b32 s45, s40, 9
        s_add_u32 s46, s43, s45
        s_add_u32 s46, s46, 16384        ; B2 goff
        s_add_u32 s43, s43, s41          ; B goff
        s_add_u32 s47, s41, {BO2}
        s_add_u32 s45, s45, {BO2+16384}
        s_lshl_b32 s53, s37, 11
        s_add_u32 s53, s53, {F2}
        s_mov_b32 s100, 0
        s_mov_b32 s49, 0
        s_movk_i32 s88, 128
        s_mov_b32 s89, {144*2048}
        s_lshl_b32 s59, s36, 1
        s_lshl_b32 s50, s36, 8
        s_add_u32 s42, s42, s50
        """)
        issueA()
        k(f"s_mov_b32 s49, {SZ2}")
        issueA()
        k(f"""
        s_lshl_b32 s50, s36, 8
        s_sub_u32 s42, s42, s50
        s_cmp_eq_u32 s36, 0
        s_cselect_b32 s51, 0, 256
        s_cselect_b32 s50, {2*144*2048}, 0
        s_sub_u32 s42, s42, s51
        s_add_u32 s43, s43, s50
        s_add_u32 s46, s46, s50
        s_mov_b32 s49, {2*SZ2}
        """)
        poll()
    return dict(setup=setup, issueA=issueA, issueB=issueB, poll=poll)

def g23_body(k, st, L, G):
    R, SZ, BO = R2, SZ2, BO2
    stamps = st.on
    k.label(L["g2X"])
    k(f"s_cmp_ge_u32 s33, 4\ns_cbranch_scc1 {L['g2D2']}")
    k.label(L["g2C"])
    ACC, BUF, ZR, XT, BR, BP, T = 144, [0, 36, 72, 108], 0, 224, 234, 40, 48
    RW, QQ = 238, 239
    G0, G1, GB, GBH = 241, 242, 243, 244
    VA0, VA1, VB, VL16, VT, GO = 248, 249, 250, 251, 252, 240
    acc = lambda i, j: ACC + (i * 5 + j) * 4
    k(f"""
    s_load_dwordx2 s[66:67], s[0:1], {KA['out']}
    v_mbcnt_lo_u32_b32 v{VL16}, -1, 0
    v_mbcnt_hi_u32_b32 v{VL16}, -1, v{VL16}
    v_lshlrev_b32 v{VL16}, 4, v{VL16}
    s_and_b32 s40, s33, 1            ; wm
    s_lshr_b32 s41, s33, 1           ; wn
    v_bfe_u32 v{RW}, v{VL16}, 4, 4        ; row
    v_lshrrev_b32 v{QQ}, 8, v{VL16}     ; q
    v_lshrrev_b32 v{VA0}, 1, v{RW}
    v_xor_b32 v{VA0}, v{QQ}, v{VA0}
    v_lshlrev_b32 v{VA0}, 4, v{VA0}
    v_lshl_add_u32 v{VA0}, v{RW}, 7, v{VA0}
    s_lshl_b32 s42, s40, 13
    v_add_u32 v{VA0}, s42, v{VA0}
    v_xor_b32 v{VA1}, 64, v{VA0}
    s_lshl_b32 s43, s41, 13
    s_add_u32 s43, s43, {BO}
    v_add_u32 v{VB}, s43, v{VL16}
    s_cmp_eq_u32 s41, 0
    s_cselect_b64 vcc, -1, 0
    """)
    adv_setup(k, R, SZ)
    st()
    def reads(sub, b):
        o = [f"ds_read_b128 {vr(BUF[b]+i*4,4)}, v{VA1 if sub else VA0} offset:{i*2048}" for i in range(4)]
        o += [f"ds_read_b128 {vr(BUF[b]+16+j*4,4)}, v{VB} offset:{(j if j < 4 else 8)*2048+sub*1024}" for j in range(5)]
        return o
    def mf(b, seq, zero):
        return [f"v_mfma_f32_16x16x32_bf16 {vr(acc(i,j),4)}, {vr(BUF[b]+16+j*4,4)}, {vr(BUF[b]+i*4,4)}, {'0' if zero else vr(acc(i,j),4)}"
                for i, j in seq]
    def half(b, other, zero):
        for x in interleave(mf(b, snake(4, 4), zero), other): k(x)
        Ls = k.lab("sk")
        k(f"s_cbranch_vccz {Ls}")
        for x in mf(b, [(3 - i, 4) for i in range(4)], zero): k(x)
        k.label(Ls)
    adv = adv_ins(R, [VA0, VA1, VB])
    def first():
        tiles(k)
        k(f"""
        s_lshl_b32 s46, s36, 3
        s_lshl_b32 s47, s40, 2
        s_add_u32 s46, s46, s47          ; tfrag0
        s_mul_i32 s60, s46, {TFS}
        s_bfe_u32 s47, s37, 0x10001
        s_lshl_b32 s47, s47, 2
        s_lshr_b32 s48, s37, 2
        s_add_u32 s47, s47, s48
        s_mul_i32 s47, s47, 9216
        s_add_u32 s60, s60, s47
        s_and_b32 s47, s37, 1
        s_lshl_b32 s62, s47, 9
        s_add_u32 s62, s62, s60
        s_add_u32 s62, s62, {(18+8)*1024}
        s_lshl_b32 s47, s47, 12
        s_add_u32 s60, s60, s47
        s_lshl_b32 s47, s41, 11
        s_add_u32 s60, s60, s47
        s_add_u32 s60, s60, {18*1024}
        s_mul_i32 s48, s40, {4*4608}
        s_add_u32 s48, s48, {ZS}
        s_waitcnt lgkmcnt(0)
        """)
        srd(k, 16, 4, A3_OFF, A3_SZ)
        srd(k, 76, 66, 0, 2048 * 1152)
        srd(k, 84, 4, FLG_OFF, FLG_SZ)
        pre = f"""
        s_lshl_b32 s47, s40, 6
        v_add_lshl_u32 v{G0}, s47, v{RW}, 1
        v_add_u32 v{G0}, {BSC}, v{G0}
        s_lshl_b32 s47, s40, 5
        s_lshl_b32 s50, s41, 4
        s_add_u32 s47, s47, s50
        v_add_u32 v{GB}, s47, v{RW}
        v_mul_u32_u24 v{GB}, 144, v{GB}
        v_lshl_add_u32 v{GB}, v{QQ}, 3, v{GB}
        v_add_u32 v{GB}, {XSC}, v{GB}
        v_mul_u32_u24 v{GO}, 1152, v{RW}
        v_lshl_add_u32 v{GO}, v{QQ}, 3, v{GO}
        s_lshl_b32 s52, s38, 2
        s_lshl_b32 s47, s40, 1
        s_add_u32 s52, s52, s47
        s_add_u32 s52, s52, s41
        s_mul_i32 s47, s52, {16*1152}
        s_mul_i32 s50, s39, 144
        s_add_u32 s47, s47, s50
        v_lshrrev_b32 v{G1}, 1, v{QQ}
        v_lshlrev_b32 v{G1}, 8, v{G1}
        v_lshl_add_u32 v{G1}, v{RW}, 4, v{G1}
        v_and_b32 v{VT}, 1, v{QQ}
        v_lshl_add_u32 v{VT}, v{VT}, 3, v{G1}
        """.strip().split("\n")
        pre = [x.strip() for x in pre]
        pre += [f"ds_read_u16 v{BR+i}, v{G0} offset:{32*i}" for i in range(4)]
        pre += [f"ds_read_b64 {vr(XT+2*j,2)}, v{GB} offset:{j*32}" for j in range(5)]
        for x in pre: k(x)
    lp = loop4(k, S2, reads, half, adv, st, after_first=first, vm_wait=True)
    assert lp == 1
    k("s_barrier")
    k(f"""
    s_lshl_b32 s50, s41, 11
    s_add_u32 s50, s50, s48
    v_add_u32 v{VA0}, s50, v{VL16}
    v_add_u32 v{VA1}, s48, v{VT}
    """)
    zr = []
    for i in range(4):
        for p in range(2): zr.append(f"ds_read_b128 {vr(ZR+i*10+p*4,4)}, v{VA0} offset:{i*4608+p*1024}")
        zr.append(f"ds_read_b64 {vr(ZR+i*10+8,2)}, v{VA1} offset:{i*4608+4096}")
    for i in range(4): zr += [f"v_lshlrev_b32 v{BP+2*i}, 16, v{BR+i}", f"v_lshlrev_b32 v{BP+2*i+1}, 16, v{BR+i}"]
    half(2, zr[:12], False)
    half(3, zr[12:], False)
    k(f"""
    s_lshl_b32 s42, s40, 12
    s_lshl_b32 s43, s41, 10
    s_add_u32 s42, s42, s43
    s_add_u32 s42, s42, {SL0*SZ3}
    s_lshl_b32 s44, s41, 11
    s_add_u32 s45, s42, s44
    v_add_u32 v{G0}, s45, v{VL16}
    s_xor_b32 s44, s44, 2048
    s_add_u32 s45, s42, s44
    v_add_u32 v{G1}, s45, v{VL16}
    s_add_u32 s45, s43, {BO3+SL0*SZ3}
    v_add_u32 v{GB}, s45, v{VL16}
    v_and_b32 v{RW}, 7, v{RW}
    v_lshl_add_u32 v{RW}, v{QQ}, 3, v{RW}
    v_lshlrev_b32 v{RW}, 4, v{RW}
    s_lshl_b32 s45, s41, 9
    s_add_u32 s45, s45, {BO3+8192+SL0*SZ3}
    v_add_u32 v{GBH}, s45, v{RW}
    s_waitcnt lgkmcnt(0)
    """)
    st()
    def quad(i, j, n):
        a, z, t = acc(i, j), ZR + i * 10 + j * 2, T + (n & 1) * 4
        k(f"""
        v_pk_add_f32 {vr(a,2)}, {vr(a,2)}, {vr(BP+2*i,2)}
        v_pk_add_f32 {vr(a+2,2)}, {vr(a+2,2)}, {vr(BP+2*i,2)}
        v_lshlrev_b32 v{t}, 16, v{z}
        v_and_b32 v{t+1}, 0xffff0000, v{z}
        v_lshlrev_b32 v{t+2}, 16, v{z+1}
        v_and_b32 v{t+3}, 0xffff0000, v{z+1}
        v_pk_mul_f32 {vr(a,2)}, {vr(a,2)}, {vr(t,2)}
        v_pk_mul_f32 {vr(a+2,2)}, {vr(a+2,2)}, {vr(t+2,2)}
        v_cvt_pk_bf16_f32 v{z}, v{a}, v{a+1}
        v_cvt_pk_bf16_f32 v{z+1}, v{a+2}, v{a+3}
        """)
    n = 0
    for i in range(4):
        for j in range(4):
            quad(i, j, n); n += 1
            if j & 1: k(f"buffer_store_dwordx4 {vr(ZR+i*10+(j>>1)*4,4)}, v{VL16}, s[16:19], s60 offen offset:{(j>>1)*1024} sc1")
        if i < 3: k(f"s_add_u32 s60, s60, {TFS}")
    Ls = k.lab("es")
    k(f"s_cbranch_vccz {Ls}")
    for i in range(4):
        quad(i, 4, n); n += 1
        k(f"buffer_store_dwordx2 {vr(ZR+i*10+8,2)}, v{VT}, s[16:19], s62 offen sc1")
        if i < 3: k(f"s_add_u32 s62, s62, {TFS}")
    k.label(Ls)
    AC3, BU3 = 144, [0, 28]
    ac3 = lambda i, j: AC3 + (i * 5 + j) * 4
    for j in range(5):
        for h in range(2):
            k(f"v_lshlrev_b32 v{ac3(0,j)+2*h}, 16, v{XT+2*j+h}")
            k(f"v_and_b32 v{ac3(0,j)+2*h+1}, 0xffff0000, v{XT+2*j+h}")
    for r in range(ac3(1, 0), ac3(1, 4) + 4): k(f"v_mov_b32 v{r}, 0")
    adv_setup(k, R3, SZ3)
    k(f"s_mov_b32 s59, {SL0}")
    st()
    def reads3(sub, b):
        o = [f"ds_read_b128 {vr(BU3[b],4)}, v{G0}", f"ds_read_b128 {vr(BU3[b]+4,4)}, v{G1}"]
        o += [f"ds_read_b128 {vr(BU3[b]+8+j*4,4)}, v{GB} offset:{j*2048}" for j in range(4)]
        o += [f"ds_read_b128 {vr(BU3[b]+24,4)}, v{GBH}"]
        return o
    def mf3(b):
        return [f"v_mfma_f32_16x16x32_bf16 {vr(ac3(i,j),4)}, {vr(BU3[b]+8+j*4,4)}, {vr(BU3[b]+i*4,4)}, {vr(ac3(i,j),4)}"
                for i, j in snake(2, 5)]
    adv3 = adv_ins(R3, [G0, G1, GB, GBH])
    k("s_waitcnt vmcnt(0)")
    set_flag(k, f"s_lshl_b32 s50, s36, 11\ns_lshl_b32 s51, s37, 7\ns_add_u32 s50, s50, s51\ns_lshl_b32 s51, s33, 2\ns_add_u32 s50, s50, s51\ns_add_u32 s50, s50, {F4}", 60)
    k("s_barrier")
    st()
    for r in reads3(0, 0) + adv3: k(r)
    k("s_waitcnt lgkmcnt(0)")
    for b_ in range(OPT.get("fd", 0)):
        k("s_barrier")
        for x in interleave(mf3(b_ & 1), reads3(0, 1 - (b_ & 1)) + adv3): k(x)
        k("s_waitcnt lgkmcnt(0)")
    assert OPT.get("fd", 0) % 2 == 0
    k(f"s_mov_b32 s58, {(S3 - 1 - OPT.get('fd', 0)) // 2}")
    Ltop = k.lab("top")
    k.label(Ltop)
    k("s_barrier")
    for x in interleave(mf3(0), reads3(0, 1) + adv3): k(x)
    k("s_waitcnt lgkmcnt(0)")
    k("s_barrier")
    for x in interleave(mf3(1), reads3(0, 0) + adv3 + CNT): k(x)
    k("s_waitcnt lgkmcnt(0)")
    k(f"s_cbranch_scc1 {Ltop}")
    k("s_barrier")
    last = 0
    st()
    for m in mf3(last): k(m)
    k("s_lshl_b32 s42, s40, 1")
    ksplit_reduce(k, ac3(1, 0), 5, 42, 41, VL16, G0, G1, 0)
    for n in range(5): k(f"ds_read_b128 {vr(ac3(1,0)+n*4,4)}, v{G1} offset:{n*1024}")
    for j in range(5):
        k(f"s_waitcnt lgkmcnt({4-j})")
        a, b = ac3(0, j), ac3(1, j)
        k(f"v_pk_add_f32 {vr(a,2)}, {vr(a,2)}, {vr(b,2)}")
        k(f"v_pk_add_f32 {vr(a+2,2)}, {vr(a+2,2)}, {vr(b+2,2)}")
        k(f"v_cvt_pk_bf16_f32 v{2*j}, v{a}, v{a+1}")
        k(f"v_cvt_pk_bf16_f32 v{2*j+1}, v{a+2}, v{a+3}")
        if j == 4: k("s_mov_b32 exec_hi, 0")
        k(f"buffer_store_dwordx2 {vr(2*j,2)}, v{GO}, s[76:79], s47 offen offset:{j*32}")
    if stamps:
        k("s_mov_b32 exec_hi, -1")
        st(); k("s_waitcnt vmcnt(0)"); st()
    k("s_endpgm")
    k.label(L["g2D"])
    G["setup"]()
    srd(k, 68, 4, W3_OFF, W3_SZ)
    Lw = k.lab("nw")
    k(f"s_cmp_eq_u32 s40, 3\ns_cbranch_scc1 {Lw}")
    w3_unit(k)
    k.label(Lw)
    k("s_waitcnt vmcnt(0)")
    k.label(L["g2D2"])
    if OPT.get("pd", 3): k(f"s_setprio {OPT.get('pd', 3)}")
    k("s_waitcnt vmcnt(3)")
    spin(k, G["poll"], lambda: k("v_cmp_ne_u32 vcc, s101, v248"))
    def issue():
        k(f"s_sub_u32 s59, s59, 1\ns_cmp_eq_u32 s59, 0\ns_cselect_b32 s88, 384, s23\ns_cselect_b32 s89, {3*144*2048}, s30")
        G["issueA"](); G["issueB"](); slot_adv_prod(k, R, SZ, 49)
    k(f"s_movk_i32 s23, 128\ns_mov_b32 s30, {144*2048}")
    def ploop(n, iss, allowed):
        Lp = k.lab("pl")
        k(f"s_mov_b32 s58, {n}")
        k.label(Lp)
        k(f"s_waitcnt vmcnt({allowed})")
        k("s_barrier")
        iss()
        k(f"s_sub_u32 s58, s58, 1\ns_cmp_lg_u32 s58, 0\ns_cbranch_scc1 {Lp}")
    tiles(k)
    srd(k, 68, 4, W3_OFF, W3_SZ)
    k(f"""
    v_mov_b32 v1, v{PL}
    s_lshl_b32 s60, s40, 11          ; g3 A lds
    s_lshl_b32 s61, s38, 2
    s_add_u32 s61, s61, s40
    s_mul_i32 s61, s61, {TFS}        ; g3 A goff
    s_mul_i32 s62, s39, 9216
    s_lshl_b32 s63, s40, 8
    s_add_u32 s48, s62, s63
    s_add_u32 s48, s48, 8192         ; g3 B2 goff
    s_add_u32 s62, s62, s60          ; g3 B goff
    s_add_u32 s65, s60, {BO3}
    s_add_u32 s66, s63, {BO3+8192}
    s_mov_b32 s67, {SL0*SZ3}
    s_lshl_b32 s51, s36, 3
    s_lshl_b32 s52, s40, 1
    s_add_u32 s51, s51, s52
    s_mul_i32 s51, s51, {TFS}
    s_bfe_u32 s50, s37, 0x10001
    s_lshl_b32 s50, s50, 2
    s_lshr_b32 s44, s37, 2
    s_add_u32 s50, s50, s44
    s_mul_i32 s50, s50, 9216
    s_add_u32 s51, s51, s50
    s_and_b32 s50, s37, 1
    s_lshl_b32 s44, s50, 9
    s_add_u32 s44, s44, s51
    s_add_u32 s44, s44, {26*1024}
    s_lshl_b32 s50, s50, 12
    s_add_u32 s51, s51, s50
    s_add_u32 s51, s51, {18*1024}
    s_mul_i32 s52, s52, 4608
    s_add_u32 s52, s52, {ZS}
    s_lshr_b32 s53, s38, 1
    s_lshl_b32 s53, s53, 11
    s_add_u32 s53, s53, {F4}
    s_movk_i32 s54, {F3}
    s_movk_i32 s20, 2048
    s_mov_b32 s21, {8*9216}
    s_lshr_b32 s22, s35, 3
    s_add_u32 s22, s22, s35
    s_and_b32 s22, s22, {(OPT.get("ko", 0) >> 1) & 1}
    """)
    ZB = OPT.get("zb", 21)
    ploop(5, issue, 9)
    Ls = k.lab("f3")
    k(f"s_cmp_lg_u32 s40, 0\ns_cbranch_scc1 {Ls}")
    set_flag(k, f"s_lshl_b32 s50, s2, 2\ns_add_u32 s50, s50, {F3}", 8)
    k.label(Ls)
    ploop(9, issue, 9)
    ploop(ZB - 15, issue, 9)
    ld = lambda: k("buffer_load_dwordx4 v[8:11], v1, s[84:87], s54 offen sc1")
    only(k, 2, ld)
    ploop(1, issue, 9)
    k("s_waitcnt vmcnt(9)")
    only(k, 2, lambda: spin(k, ld, lambda: k("v_xor_b32 v8, s101, v8\nv_xor_b32 v9, s101, v9\nv_xor_b32 v10, s101, v10\nv_xor_b32 v11, s101, v11\nv_or3_b32 v8, v8, v9, v10\nv_or_b32 v8, v8, v11\nv_cmp_ne_u32 vcc, 0, v8")))
    ploop(30 - ZB, issue, 9)
    for e in range(2):
        k(f"s_add_u32 m0, s52, {e*4608}")
        for n in range(4): k(f"buffer_load_dwordx4 v1, s[16:19], s51 offen offset:{n*1024} sc1 lds")
        k(f"s_add_u32 m0, s52, {e*4608+4096}")
        k("s_mov_b32 exec_hi, 0")
        k(f"buffer_load_dwordx4 v1, s[16:19], s44 offen sc1 lds")
        k("s_mov_b32 exec_hi, -1")
        k(f"s_add_u32 s51, s51, {TFS}\ns_add_u32 s44, s44, {TFS}")
    def issue3():
        k("s_add_u32 m0, s60, s67")
        for n in range(2): k(f"buffer_load_dwordx4 v1, s[16:19], s61 offen offset:{n*1024} sc1 lds")
        k("s_add_u32 m0, s65, s67")
        for n in range(2): k(f"buffer_load_dwordx4 v1, s[68:71], s62 offen offset:{n*1024} sc1 lds")
        k("s_add_u32 m0, s66, s67")
        k("s_mov_b64 exec, 0xffff")
        k(f"buffer_load_dwordx4 v1, s[68:71], s48 offen sc1 lds")
        k("s_mov_b64 exec, -1")
        k("s_add_u32 s61, s61, s20")
        k("s_add_u32 s62, s62, s21")
        k("s_add_u32 s48, s48, s21")
        slot_adv_prod(k, R3, SZ3, 67)
    k("s_waitcnt vmcnt(19)")
    k("s_barrier")
    issue3(); issue3()
    k("s_waitcnt vmcnt(20)")
    k("s_barrier")
    k("s_waitcnt vmcnt(10)")
    k("s_barrier")
    issue3(); issue3()
    NW = 0
    if OPT.get("w3l2", 0):
        k(f"""
        s_lshr_b32 s50, s34, 2
        s_mul_i32 s50, s50, {4*9216}
        s_mul_i32 s55, s35, {8*9216}
        s_add_u32 s50, s50, s55
        s_mul_i32 s55, s40, 9216
        s_add_u32 s50, s50, s55
        v_lshlrev_b32 v12, 7, v0
        buffer_load_dword v13, v12, s[68:71], s50 offen
        s_add_u32 s50, s50, {32*8*9216}
        buffer_load_dword v14, v12, s[68:71], s50 offen
        """)
        NW = 2
    ploop(3, issue3, 15 + NW)
    ploop(1, issue3, 15)
    ld4 = lambda: k(f"buffer_load_dword v4, v{PF}, s[84:87], s53 offen sc1")
    half4 = "s_mov_b32 exec_lo, 0x00ff00ff\ns_mov_b32 exec_hi, 0x00ff00ff"
    only(k, 0, lambda: (k(half4), ld4(), k("s_mov_b64 exec, -1")))
    k("s_waitcnt vmcnt(15)")
    k("s_barrier")
    issue3()
    k("s_waitcnt vmcnt(15)")
    only(k, 0, lambda: (k("s_waitcnt vmcnt(5)\n" + half4), spin(k, ld4, lambda: k("v_cmp_ne_u32 vcc, s101, v4")), k("s_mov_b64 exec, -1")))
    k("s_barrier")
    def jump3(expr):
        k(expr)
        k(f"""
        s_mul_i32 s55, s50, 2048
        s_add_u32 s61, s61, s55
        s_mul_i32 s55, s50, {8*9216}
        s_add_u32 s62, s62, s55
        s_add_u32 s48, s48, s55
        """)
    jump3("s_mul_i32 s50, s22, 18")
    issue3()
    ploop(12, issue3, 15)
    half5 = "s_mov_b32 exec_lo, 0xff00ff00\ns_mov_b32 exec_hi, 0xff00ff00"
    only(k, 3, lambda: (k(half5), ld4(), k("s_mov_b64 exec, -1")))
    ploop(4, issue3, 15)
    only(k, 3, lambda: (k(half5), spin(k, ld4, lambda: k("v_cmp_ne_u32 vcc, s101, v4")), k("s_mov_b64 exec, -1")))
    ploop(1, issue3, 15)
    if OPT.get("ko", 0) & 2:
        jump3("s_mul_i32 s50, s22, 36\ns_sub_u32 s50, 17, s50")
        k("s_sub_u32 s20, 0, s20\ns_sub_u32 s21, 0, s21")
    ploop(18, issue3, 15)
    for b in range(S3 - LA3, S3):
        k(f"s_waitcnt vmcnt({(S3-1-b)*5})")
        k("s_barrier")
    k("s_endpgm")

class DbgStamps:
    def __init__(self, k): self.k, self.on, self.n = k, True, 0
    def init(self):
        k = self.k
        k(f"s_load_dwordx2 s[90:91], s[0:1], {KA['dbg']}\ns_waitcnt lgkmcnt(0)")
        srd(k, 96, 90, 0, 256)
        k("s_mov_b32 s95, 4")
    def __call__(self, v=254):
        k = self.k
        self.n += 1
        if self.n <= 3: return
        L = k.lab("ds")
        k(f"""
        s_cmp_lg_u32 s33, 0
        s_cbranch_scc1 {L}
        s_memrealtime s[92:93]
        s_waitcnt lgkmcnt(0)
        s_sub_u32 s92, s92, s101
        v_mov_b32 v{v}, s92
        v_mov_b32 v{v-1}, 0
        s_mov_b64 exec, 1
        buffer_atomic_umax v{v}, v{v-1}, s[96:99], s95 offen
        s_mov_b64 exec, -1
        s_add_u32 s95, s95, 4
        {L}:
        """)

def gen_main(name, stamps=False):
    k = Kern(name); st = Stamps(k, stamps, 1)
    if OPT.get("dbg", 0): st = DbgStamps(k)
    L = {n: k.lab(n) for n in "end D C2q att g2C g2D g2D2 g2X nx".split()}
    preamble(k, 256, L["end"], [(4, "ws"), (6, "w_in"), (64, "wqkv"), (66, "w_sp"), (68, "x"), (74, "dbg")])
    k("s_mov_b32 s101, 1\ns_mov_b32 s100, 0")
    for r in range(244, 249): k(f"v_mov_b32 v{r}, 0")
    G = g2_hooks(k)
    k1_body(k, st, L, True, True, G)
    g23_body(k, st, L, G)
    k.label(L["end"])
    k("s_endpgm")
    return k

DOC = """; One persistent workgroup per CU (256 x 512 threads: waves 0-3 MFMA consumers, waves 4-7 LDS-DMA producers).
"""

if __name__ == "__main__":
    HEADER = open("parallel_sum__sliding_local_dilated__mixer_gmlp__prompt.s.ref").read().split("; Override launch")[0]
    stamps = "stamps" in sys.argv[2:]
    for a in sys.argv[2:]:
        if "=" in a: OPT[a.split("=")[0]] = int(a.split("=")[1])
    ks = [(gen_main("parallel_sum__sliding_local_dilated__mixer_gmlp__prompt_kernel", stamps), 256, 256, 512, 163840)]
    txt = assemble_file(HEADER + DOC, ks)
    if "plain" in sys.argv[2:]:
        txt = re.sub(r"; @launch kernel=\S+ grid", "; @launch grid", txt)
    open(sys.argv[1], "w").write(txt)
```
